```python
import torch

def _softmax(x, axis=-1):
    return torch.softmax(x, dim=axis)
def _gelu(x):
    return torch.nn.functional.gelu(x, approximate="tanh")
def _silu(x):
    return torch.nn.functional.silu(x)
def _sigmoid(x):
    return torch.sigmoid(x)
def _layernorm(x, axis=-1, eps=1e-5):
    m = x.mean(dim=axis, keepdim=True)
    v = x.var(dim=axis, keepdim=True, unbiased=False)
    return (x - m) / torch.sqrt(v + eps)
def _scatter_add(tgt, idx, src, axis=0):
    return tgt.clone().index_add_(axis, idx, src)
def _segment_sum(src, seg, n):
    out = torch.zeros((n,) + src.shape[1:], dtype=src.dtype)
    return out.index_add_(0, seg, src)
def _pad(x, pw):
    flat = tuple(v for pair in reversed(pw) for v in pair)
    return torch.nn.functional.pad(x, flat)

kernel_name = 'concat_heads__mha_block_cached__gqa_block_cached__near_ridge'

def setup_inputs():

    _w = (lambda a: (lambda t: t.to(torch.bfloat16) if t.is_floating_point() else t)(torch.as_tensor(a)))
    def _A_setup():
        B, Sq, D = 8, 128, 576
        H, Sk, Dh = 32, 128, 128
        return {
            "x": _w((lambda *s: torch.randn(*s, dtype=torch.bfloat16) * 0.8)(B, Sq, D)),
            "k_cache": _w((lambda *s: torch.randn(*s, dtype=torch.bfloat16) * 0.8)(B, H, Sk, Dh)),
            "v_cache": _w((lambda *s: torch.randn(*s, dtype=torch.bfloat16) * 0.05)(B, H, Sk, Dh)),
            "wq": _w((lambda *s: torch.randn(*s, dtype=torch.bfloat16) * 0.8)(D, H * Dh) * (D ** -0.5)),
            "wo": _w((lambda *s: torch.randn(*s, dtype=torch.bfloat16) * 0.05)(H * Dh, D) * ((H * Dh) ** -0.5)),
        }
    _A_in = _A_setup()

    def _B_setup():
        B, Sq, D = 8, 128, 576
        Hq, Hkv, Sk, Dh = 32, 32, 128, 128
        assert Hq % Hkv == 0, (Hq, Hkv)
        return {
            "x": _w((lambda *s: torch.randn(*s, dtype=torch.bfloat16) * 0.8)(B, Sq, D)),
            "k_cache": _w((lambda *s: torch.randn(*s, dtype=torch.bfloat16) * 0.8)(B, Hkv, Sk, Dh)),
            "v_cache": _w((lambda *s: torch.randn(*s, dtype=torch.bfloat16) * 0.05)(B, Hkv, Sk, Dh)),
            "wq": _w((lambda *s: torch.randn(*s, dtype=torch.bfloat16) * 0.8)(D, Hq * Dh) * (D ** -0.5)),
            "wo": _w((lambda *s: torch.randn(*s, dtype=torch.bfloat16) * 0.05)(Hq * Dh, D) * ((Hq * Dh) ** -0.5)),
        }
    _B_in = _B_setup()

    return {
        "A_x": _A_in["x"],
        "A_k_cache": _A_in["k_cache"],
        "A_v_cache": _A_in["v_cache"],
        "A_wq": _A_in["wq"],
        "A_wo": _A_in["wo"],
        "B_x": _B_in["x"],
        "B_k_cache": _B_in["k_cache"],
        "B_v_cache": _B_in["v_cache"],
        "B_wq": _B_in["wq"],
        "B_wo": _B_in["wo"],
    }

def reference(A_x, A_k_cache, A_v_cache, A_wq, A_wo, B_x, B_k_cache, B_v_cache, B_wq, B_wo):
    def _A_ref(x, k_cache, v_cache, wq, wo):
        B, Sq, D = x.shape
        H, Dh = 32, 128
        q = (lambda x, *d: x.permute(*d))((x @ wq).reshape(B, Sq, H, Dh), 0, 2, 1, 3)
        scores = torch.einsum("bhqd,bhkd->bhqk", q, k_cache) * (Dh ** -0.5)
        p = _softmax(scores, axis=-1)
        o = torch.einsum("bhqk,bhkd->bhqd", p, v_cache)
        return (lambda x, *d: x.permute(*d))(o, 0, 2, 1, 3).reshape(B, Sq, H * Dh) @ wo

    def _B_ref(x, k_cache, v_cache, wq, wo):
        B, Sq, D = x.shape
        Hq, Dh = 32, 128
        Hkv = k_cache.shape[1]
        rep = Hq // Hkv
        q = (lambda x, *d: x.permute(*d))((x @ wq).reshape(B, Sq, Hq, Dh), 0, 2, 1, 3)
        k = (lambda x, n, axis: torch.repeat_interleave(x, n, dim=axis))(k_cache, rep, axis=1)
        v = (lambda x, n, axis: torch.repeat_interleave(x, n, dim=axis))(v_cache, rep, axis=1)
        scores = torch.einsum("bhqd,bhkd->bhqk", q, k) * (Dh ** -0.5)
        p = _softmax(scores, axis=-1)
        o = torch.einsum("bhqk,bhkd->bhqd", p, v)
        return (lambda x, *d: x.permute(*d))(o, 0, 2, 1, 3).reshape(B, Sq, Hq * Dh) @ wo

    a = _A_ref(A_x, A_k_cache, A_v_cache, A_wq, A_wo)
    b = _B_ref(B_x, B_k_cache, B_v_cache, B_wq, B_wo)
    return torch.concatenate([a, b], axis=-1)
```

```python
class Asm:
    def __init__(self):
        self.lines = []
        self._uid = 0
    def __call__(self, s=""):
        for ln in s.split("\n"):
            self.lines.append("    " + ln.strip() if ln.strip() and not ln.strip().endswith(":") else ln.strip())
    def raw(self, s):
        self.lines.append(s)
    def label(self, name):
        self.lines.append(name + ":")
    def uid(self, p="L"):
        self._uid += 1
        return f"{p}_{self._uid}"
    def c(self, s):
        self.lines.append("    ; " + s)
    def ext(self, lst):
        for s in lst:
            self(s)
    def text(self):
        return "\n".join(self.lines) + "\n"

def v(n, cnt=1):
    return f"v{n}" if cnt == 1 else f"v[{n}:{n+cnt-1}]"
def s(n, cnt=1):
    return f"s{n}" if cnt == 1 else f"s[{n}:{n+cnt-1}]"
def a(n, cnt=1):
    return f"a{n}" if cnt == 1 else f"a[{n}:{n+cnt-1}]"

def kernel_begin(A, name):
    A.raw(".text")
    A.raw(f".globl {name}")
    A.raw(".p2align 8")
    A.raw(f".type {name},@function")
    A.label(name)

def kernel_desc(A, name, vgpr=256, sgpr=102, accum=256, kernarg=104):
    A.raw('.section .rodata,"a"')
    A.raw(".p2align 6")
    A.raw(f".amdhsa_kernel {name}")
    A.raw(f"  .amdhsa_next_free_vgpr {vgpr}")
    A.raw(f"  .amdhsa_next_free_sgpr {sgpr}")
    A.raw(f"  .amdhsa_accum_offset {accum}")
    A.raw("  .amdhsa_group_segment_fixed_size 0")
    A.raw(f"  .amdhsa_kernarg_size {kernarg}")
    A.raw("  .amdhsa_user_sgpr_count 2")
    A.raw("  .amdhsa_user_sgpr_kernarg_segment_ptr 1")
    A.raw("  .amdhsa_system_sgpr_workgroup_id_x 1")
    A.raw(".end_amdhsa_kernel")
```

```python
import sys
from asmlib import *
HDR = open("concat_heads__mha_block_cached__gqa_block_cached__near_ridge.s.ref").read().split("; Override launch")[0]
WS_Q, WS_S, WS_P, WS_O = 0, 16 << 20, 48 << 20, 64 << 20

def srd(A, d, lo, size):
    A(f"s_mov_b32 s{d}, s{lo}\ns_and_b32 s{d+1}, s{lo+1}, 0xffff\ns_mov_b32 s{d+2}, {size}\ns_mov_b32 s{d+3}, 0x20000")

def gemm(A, name, nwg, K, setup, lda, ldb, ldc, bmode, out_f32):
    kernel_begin(A, name)
    A(f"s_cmp_ge_u32 s2, {nwg}\ns_cbranch_scc1 {name}_end")
    setup(A)
    A("v_and_b32 v1, 31, v0\nv_lshrrev_b32 v2, 5, v0")
    A(f"s_mov_b32 s30, {lda}\nv_mul_lo_u32 v3, v1, s30\nv_lshl_add_u32 v3, v2, 4, v3")
    if bmode == "kn":
        A(f"s_mov_b32 s30, {8*ldb}\nv_mul_lo_u32 v4, v2, s30\nv_lshl_add_u32 v4, v1, 1, v4")
    else:
        A(f"s_mov_b32 s30, {ldb}\nv_mul_lo_u32 v4, v1, s30\nv_lshl_add_u32 v4, v2, 4, v4")
    for r in range(16): A(f"v_mov_b32 v{16+r}, 0")
    A(f"s_mov_b32 s31, {K//16}")
    A.label(f"{name}_loop")
    A("buffer_load_dwordx4 v[8:11], v3, s[8:11], s20 offen")
    if bmode == "kn":
        A("s_mov_b32 s32, s21")
        for i in range(8):
            A(f"buffer_load_ushort v{32+i}, v4, s[12:15], s32 offen")
            A(f"s_add_u32 s32, s32, {ldb}")
        A("s_waitcnt vmcnt(0)")
        for i in range(4):
            A(f"v_lshl_or_b32 v{12+i}, v{33+2*i}, 16, v{32+2*i}")
        A("s_nop 1")
        A(f"s_add_u32 s21, s21, {16*ldb}")
    else:
        A("buffer_load_dwordx4 v[12:15], v4, s[12:15], s21 offen")
        A("s_add_u32 s21, s21, 32")
    A("s_add_u32 s20, s20, 32")
    A("s_waitcnt vmcnt(0)")
    A("v_mfma_f32_32x32x16_bf16 v[16:31], v[8:11], v[12:15], v[16:31]")
    A(f"s_sub_u32 s31, s31, 1\ns_cmp_lg_u32 s31, 0\ns_cbranch_scc1 {name}_loop")
    A("s_nop 15\ns_nop 15")
    es = 4 if out_f32 else 2
    A(f"s_mov_b32 s30, {4*ldc}\nv_mul_lo_u32 v5, v2, s30\nv_mul_u32_u24 v6, {es}, v1\nv_add_u32 v5, v5, v6")
    for r in range(16):
        row = (r & 3) + 8 * (r >> 2)
        A(f"s_add_u32 s32, s22, {row*ldc}")
        if out_f32:
            A(f"buffer_store_dword v{16+r}, v5, s[16:19], s32 offen")
        else:
            A(f"v_cvt_pk_bf16_f32 v7, v{16+r}, v{16+r}")
            A(f"buffer_store_short v7, v5, s[16:19], s32 offen")
            A("s_waitcnt vmcnt(0)")
    A("s_waitcnt vmcnt(0)")
    A.label(f"{name}_end")
    A("s_endpgm")

def load_ptr_blk(A, dst, slot, sblk):
    A(f"s_mul_i32 s40, s{sblk}, 40\ns_add_u32 s42, s0, s40\ns_addc_u32 s43, s1, 0")
    A(f"s_load_dwordx2 s[{dst}:{dst+1}], s[42:43], {slot*8}")

def gen(probe=None, amp=50):
    A = Asm()
    A.raw(HDR.rstrip("\n"))
    if probe is not None:
        A.raw("; @launch kernel=probe_kernel grid=(256,1,1) block=(256,1,1) lds=65536")
    A.raw("; @launch kernel=qproj_kernel grid=(8192,1,1) block=(64,1,1) lds=0")
    A.raw("; @launch kernel=qk_kernel grid=(8192,1,1) block=(64,1,1) lds=0")
    A.raw("; @launch kernel=sm_kernel grid=(1024,1,1) block=(64,1,1) lds=0")
    A.raw("; @launch kernel=pv_kernel grid=(8192,1,1) block=(64,1,1) lds=0")
    A.raw("; @launch kernel=oproj_kernel grid=(1152,1,1) block=(64,1,1) lds=0")
    A.raw('.amdgcn_target "amdgcn-amd-amdhsa--gfx950"')
    names = []
    def su(A):
        A("s_lshr_b32 s3, s2, 12\ns_bfe_u32 s33, s2, 0x50007\ns_and_b32 s34, s2, 127")
        load_ptr_blk(A, 4, 0, 3); load_ptr_blk(A, 6, 3, 3)
        A("s_load_dwordx2 s[24:25], s[0:1], 96\ns_waitcnt lgkmcnt(0)")
        srd(A, 8, 4, 1179648); srd(A, 12, 6, 4718592); srd(A, 16, 24, 0x10000000)
        A("s_mul_i32 s20, s33, 36864\ns_lshl_b32 s21, s34, 6")
        A(f"s_lshl_b32 s22, s3, 23\ns_lshl_b32 s35, s33, 18\ns_add_u32 s22, s22, s35\ns_add_u32 s22, s22, s21\ns_add_u32 s22, s22, {WS_Q}")
    gemm(A, "qproj_kernel", 8192, 576, su, 1152, 8192, 8192, "kn", False); names.append("qproj_kernel")
    def su(A):
        A("s_lshr_b32 s3, s2, 12\ns_bfe_u32 s33, s2, 0x30009\ns_bfe_u32 s34, s2, 0x50004\ns_bfe_u32 s35, s2, 0x20002\ns_and_b32 s36, s2, 3")
        load_ptr_blk(A, 6, 1, 3)
        A("s_load_dwordx2 s[24:25], s[0:1], 96\ns_waitcnt lgkmcnt(0)")
        srd(A, 8, 24, 0x10000000); srd(A, 12, 6, 8388608); srd(A, 16, 24, 0x10000000)
        A(f"s_lshl_b32 s20, s3, 23\ns_lshl_b32 s37, s33, 20\ns_add_u32 s20, s20, s37\ns_lshl_b32 s37, s35, 18\ns_add_u32 s20, s20, s37\ns_lshl_b32 s37, s34, 8\ns_add_u32 s20, s20, s37\ns_add_u32 s20, s20, {WS_Q}")
        A("s_lshl_b32 s21, s33, 20\ns_lshl_b32 s37, s34, 15\ns_add_u32 s21, s21, s37\ns_lshl_b32 s37, s36, 13\ns_add_u32 s21, s21, s37")
        A(f"s_lshr_b32 s22, s2, 4\ns_lshl_b32 s22, s22, 16\ns_lshl_b32 s37, s35, 14\ns_add_u32 s22, s22, s37\ns_lshl_b32 s37, s36, 7\ns_add_u32 s22, s22, s37\ns_add_u32 s22, s22, {WS_S}")
    gemm(A, "qk_kernel", 8192, 128, su, 8192, 256, 512, "nk", True); names.append("qk_kernel")
    kernel_begin(A, "sm_kernel"); names.append("sm_kernel")
    A("s_cmp_ge_u32 s2, 1024\ns_cbranch_scc1 sm_end")
    A("s_load_dwordx2 s[24:25], s[0:1], 96\ns_waitcnt lgkmcnt(0)")
    srd(A, 8, 24, 0x10000000)
    A("s_lshl_b32 s3, s2, 6\nv_add_u32 v1, s3, v0\nv_lshlrev_b32 v2, 9, v1\nv_lshlrev_b32 v3, 8, v1")
    A(f"s_mov_b32 s20, {WS_S}\ns_mov_b32 s21, {WS_P}")
    for i in range(32):
        A(f"buffer_load_dwordx4 v[{8+4*i}:{11+4*i}], v2, s[8:11], s20 offen offset:{16*i}")
    A("s_waitcnt vmcnt(0)")
    A("v_mov_b32 v4, v8")
    for i in range(1, 128): A(f"v_max_f32 v4, v4, v{8+i}")
    import math, struct
    c = struct.unpack("<I", struct.pack("<f", math.log2(math.e) / math.sqrt(128)))[0]
    A(f"s_mov_b32 s22, {c}\nv_mul_f32 v4, s22, v4\nv_mov_b32 v5, 0")
    for i in range(128):
        A(f"v_fma_f32 v{8+i}, v{8+i}, s22, -v4\nv_exp_f32 v{8+i}, v{8+i}\ns_nop 0\nv_add_f32 v5, v5, v{8+i}")
    A("v_rcp_f32 v5, v5\ns_nop 0")
    for i in range(128): A(f"v_mul_f32 v{8+i}, v{8+i}, v5")
    for i in range(64): A(f"v_cvt_pk_bf16_f32 v{140+i}, v{8+2*i}, v{9+2*i}")
    for i in range(16):
        A(f"buffer_store_dwordx4 v[{140+4*i}:{143+4*i}], v3, s[8:11], s21 offen offset:{16*i}")
    A("s_waitcnt vmcnt(0)")
    A.label("sm_end"); A("s_endpgm")
    def su(A):
        A("s_lshr_b32 s3, s2, 12\ns_bfe_u32 s33, s2, 0x30009\ns_bfe_u32 s34, s2, 0x50004\ns_bfe_u32 s35, s2, 0x20002\ns_and_b32 s36, s2, 3")
        load_ptr_blk(A, 6, 2, 3)
        A("s_load_dwordx2 s[24:25], s[0:1], 96\ns_waitcnt lgkmcnt(0)")
        srd(A, 8, 24, 0x10000000); srd(A, 12, 6, 8388608); srd(A, 16, 24, 0x10000000)
        A(f"s_lshr_b32 s20, s2, 4\ns_lshl_b32 s20, s20, 15\ns_lshl_b32 s37, s35, 13\ns_add_u32 s20, s20, s37\ns_add_u32 s20, s20, {WS_P}")
        A("s_lshl_b32 s21, s33, 20\ns_lshl_b32 s37, s34, 15\ns_add_u32 s21, s21, s37\ns_lshl_b32 s37, s36, 6\ns_add_u32 s21, s21, s37")
        A(f"s_lshl_b32 s22, s3, 23\ns_lshl_b32 s37, s33, 20\ns_add_u32 s22, s22, s37\ns_lshl_b32 s37, s35, 18\ns_add_u32 s22, s22, s37\ns_lshl_b32 s37, s34, 8\ns_add_u32 s22, s22, s37\ns_lshl_b32 s37, s36, 6\ns_add_u32 s22, s22, s37\ns_add_u32 s22, s22, {WS_O}")
    gemm(A, "pv_kernel", 8192, 128, su, 256, 256, 8192, "kn", False); names.append("pv_kernel")
    def su(A):
        A("s_mul_hi_u32 s33, s2, 0x0e38e38f\ns_mul_i32 s34, s33, 18\ns_sub_u32 s34, s2, s34\ns_lshr_b32 s3, s33, 5\ns_and_b32 s33, s33, 31")
        load_ptr_blk(A, 6, 4, 3)
        A("s_load_dwordx2 s[24:25], s[0:1], 96\ns_load_dwordx2 s[26:27], s[0:1], 80\ns_waitcnt lgkmcnt(0)")
        srd(A, 8, 24, 0x10000000); srd(A, 12, 6, 4718592); srd(A, 16, 26, 2359296)
        A(f"s_lshl_b32 s20, s3, 23\ns_lshl_b32 s37, s33, 18\ns_add_u32 s20, s20, s37\ns_add_u32 s20, s20, {WS_O}")
        A("s_lshl_b32 s21, s34, 6")
        A("s_mul_i32 s22, s33, 73728\ns_mul_i32 s37, s3, 1152\ns_add_u32 s22, s22, s37\ns_add_u32 s22, s22, s21")
    gemm(A, "oproj_kernel", 1152, 4096, su, 8192, 1152, 2304, "kn", False); names.append("oproj_kernel")
    if probe is not None:
        kernel_begin(A, "probe_kernel"); names.append("probe_kernel")
        A("s_cmp_ge_u32 s2, 256\ns_cbranch_scc1 probe_end")
        for i, slot in enumerate((1, 2, 6, 7)):
            A(f"s_load_dwordx2 s[{40+2*i}:{41+2*i}], s[0:1], {slot*8}")
        A("v_lshrrev_b32 v1, 6, v0\nv_and_b32 v2, 63, v0\nv_lshlrev_b32 v3, 4, v2\nv_readfirstlane_b32 s3, v1\ns_waitcnt lgkmcnt(0)")
        for i in range(4): srd(A, 8 + 4*i, 40 + 2*i, 8388608)
        A("s_lshl_b32 s24, s3, 14\ns_lshl_b32 s25, s2, 15\ns_lshl_b32 s26, s3, 13\ns_add_u32 s25, s25, s26")
        A("s_memtime s[30:31]")
        for i in range(4):
            for j in range(8):
                A(f"s_add_u32 m0, s24, {((i*8+j)%16)*1024}\ns_add_u32 s27, s25, {j*1024}")
                A(f"buffer_load_dwordx4 v3, s[{8+4*i}:{11+4*i}], s27 offen {probe} lds")
        A("s_waitcnt vmcnt(0)\ns_barrier\ns_memtime s[32:33]\ns_waitcnt lgkmcnt(0)")
        A(f"s_sub_u32 s34, s32, s30\ns_mul_i32 s34, s34, {amp}")
        A.label("probe_spin")
        A("s_sleep 4\ns_memtime s[36:37]\ns_waitcnt lgkmcnt(0)\ns_sub_u32 s35, s36, s32\ns_cmp_lt_u32 s35, s34\ns_cbranch_scc1 probe_spin")
        A.label("probe_end"); A("s_endpgm")
    for n in names:
        kernel_desc(A, n)
    return A.text()

if __name__ == "__main__":
    open("naive_none.s", "w").write(gen(None))
    open("naive_def.s", "w").write(gen(""))
    open("naive_nt.s", "w").write(gen("nt"))
```

```python
import re

def _regs(tok):
    tok = tok.strip()
    neg = tok.startswith("-")
    if neg: tok = tok[1:]
    if tok.startswith("abs("): tok = tok[4:-1]
    m = re.fullmatch(r"([vsa])(\d+)", tok)
    if m: return [tok]
    m = re.fullmatch(r"([vsa])\[(\d+):(\d+)\]", tok)
    if m: return [f"{m.group(1)}{i}" for i in range(int(m.group(2)), int(m.group(3)) + 1)]
    if tok in ("vcc", "m0", "exec", "scc"): return [tok]
    return []

TRANS = ("v_exp_f32", "v_log_f32", "v_rcp_f32", "v_rsq_f32", "v_sqrt_f32", "v_sin_f32", "v_cos_f32")

class Ins:
    __slots__ = ("text", "op", "kind", "defs", "uses", "srcc", "ab", "passes", "wide_store")
    def __init__(self, text):
        self.text = text
        t = text.split(";")[0].strip()
        parts = t.split(None, 1)
        op = parts[0]; self.op = op
        ops = [x.strip() for x in parts[1].split(",")] if len(parts) > 1 else []
        toks = []
        for o in ops:
            toks.append(o.split()[0] if o else o)
        mods = t
        self.defs, self.uses, self.srcc, self.ab = [], [], [], []
        self.passes = 0; self.wide_store = False
        if op.startswith("v_mfma"):
            self.kind = "mfma"
            self.defs = _regs(toks[0]); self.ab = _regs(toks[1]) + _regs(toks[2]); self.srcc = _regs(toks[3])
            self.uses = self.ab + self.srcc
            self.passes = 8 if "32x32x16" in op else 4
        elif op.startswith("ds_read") or op.startswith("ds_bpermute") or op.startswith("ds_swizzle"):
            self.kind = "dsr"; self.defs = _regs(toks[0])
            for x in toks[1:]: self.uses += _regs(x)
        elif op.startswith("ds_write") or op.startswith("ds_add"):
            self.kind = "dsw"
            for x in toks: self.uses += _regs(x)
        elif op.startswith("buffer_load") or op.startswith("global_load"):
            if re.search(r"\blds\b", mods) or "_lds_" in op:
                self.kind = "dma"
                for x in toks: self.uses += _regs(x)
                self.uses.append("m0")
            else:
                self.kind = "vml"; self.defs = _regs(toks[0])
                for x in toks[1:]: self.uses += _regs(x)
        elif op.startswith("buffer_store") or op.startswith("global_store") or op.startswith("buffer_atomic") or op.startswith("global_atomic"):
            self.kind = "vms"
            for x in toks: self.uses += _regs(x)
            self.wide_store = op.endswith("x4") or op.endswith("x3")
            if self.wide_store:
                self.ab = _regs(toks[0] if op.startswith("buffer") else toks[1])
        elif op.startswith("v_"):
            self.kind = "valu"
            base = op.replace("_e32", "").replace("_e64", "")
            if base.startswith("v_permlane") and base.endswith("swap_b32"):
                self.defs = _regs(toks[0]) + _regs(toks[1]); self.uses = list(self.defs)
            else:
                self.defs = _regs(toks[0])
                rest = toks[1:]
                if base in ("v_add_co_u32", "v_sub_co_u32", "v_addc_co_u32"):
                    self.defs += _regs(toks[1]); rest = toks[2:]
                for x in rest: self.uses += _regs(x)
                if base.startswith("v_fmac") or base.startswith("v_pk_fmac") or base.startswith("v_dot2c"):
                    self.uses += _regs(toks[0])
        elif op.startswith("s_load") or op.startswith("s_memtime") or op.startswith("s_memrealtime"):
            self.kind = "smem"; self.defs = _regs(toks[0])
            for x in toks[1:]: self.uses += _regs(x)
        elif op in ("s_waitcnt", "s_nop", "s_barrier", "s_endpgm", "s_sleep", "s_setprio") or op.startswith("s_cbranch") or op == "s_branch":
            self.kind = "ctl"
        elif op.startswith("s_"):
            self.kind = "salu"
            if op.startswith("s_cmp"):
                for x in toks: self.uses += _regs(x)
            else:
                self.defs = _regs(toks[0])
                for x in toks[1:]: self.uses += _regs(x)
        else:
            raise ValueError("unknown instruction: " + text)

class Stream:
    def __init__(self, name=""):
        self.name = name
        self.out = []
        self.lg = []
        self.vm = []
        self.smem_pending = False
        self.inC = False
    def label(self, l): self.out.append(l + ":")
    def comment(self, c): self.out.append("; " + c)
    def _wait(self, vm=None, lg=None):
        parts = []
        if vm is not None:
            vm = min(vm, 63)
            if vm < len(self.vm):
                parts.append(f"vmcnt({vm})"); self.vm = self.vm[len(self.vm) - vm:] if vm else []
        if lg is not None:
            lg = min(lg, 15)
            if self.smem_pending: lg = 0
            if lg < len(self.lg) or self.smem_pending:
                parts.append(f"lgkmcnt({lg})"); self.lg = self.lg[len(self.lg) - lg:] if lg else []
                self.smem_pending = False
        if parts: self.out.append(Ins("s_waitcnt " + " ".join(parts)))
    def wait_vm(self, n): self._wait(vm=n)
    def wait_lg(self, n): self._wait(lg=n)
    def wait_vm_tag(self, tag):
        idx = [i for i, (d, t) in enumerate(self.vm) if t == tag]
        if idx: self._wait(vm=len(self.vm) - 1 - max(idx))
    def __call__(self, text, tag=None):
        for ln in text.split("\n"):
            ln = ln.strip()
            if not ln: continue
            if ln.endswith(":"): self.out.append(ln); continue
            if ln.startswith(";"): self.out.append(ln); continue
            self._one(Ins(ln), tag)
    def _one(self, I, tag):
        touched = set(I.uses) | set(I.defs)
        need_lg = need_vm = None
        for i, d in enumerate(self.lg):
            if d & touched: need_lg = len(self.lg) - 1 - i
        for i, (d, t) in enumerate(self.vm):
            if d & touched: need_vm = len(self.vm) - 1 - i
        if need_lg is not None or need_vm is not None:
            self._wait(vm=need_vm, lg=need_lg)
        if I.op == "s_waitcnt":
            m = re.search(r"vmcnt\((\d+)\)", I.text)
            if m:
                n = int(m.group(1)); self.vm = self.vm[len(self.vm) - n:] if n and n < len(self.vm) else ([] if n == 0 else self.vm)
            m = re.search(r"lgkmcnt\((\d+)\)", I.text)
            if m:
                n = int(m.group(1)); self.lg = self.lg[len(self.lg) - n:] if n and n < len(self.lg) else ([] if n == 0 else self.lg)
                if n == 0: self.smem_pending = False
        self.out.append(I)
        if I.kind in ("dsr", "dsw"): self.lg.append(set(I.defs))
        elif I.kind == "smem":
            self.lg.append(set(I.defs)); self.smem_pending = True
        elif I.kind in ("vml", "vms", "dma"): self.vm.append((set(I.defs), tag))

    def finish(self, mfma_states=1):
        res = []
        pos = 0
        last_valu_w = {}
        last_trans_w = {}
        last_mfma_w = {}
        last_mfma_c = {}
        last_salu_m0 = -100
        last_wstore = {}
        nops = 0
        for it in self.out:
            if isinstance(it, str):
                res.append(it if it.endswith(":") else "    " + it); continue
            I = it
            need = 0
            def req(p, dist):
                nonlocal need
                need = max(need, dist - (pos - p - 1))
            vuses = [r for r in I.uses if r[0] == "v" and r != "vcc"]
            suses = [r for r in I.uses if r[0] == "s" or r == "vcc"]
            if I.kind == "mfma":
                for r in I.uses:
                    if r in last_valu_w: req(last_valu_w[r], 2)
                for r in I.ab:
                    if r in last_mfma_w: req(last_mfma_w[r][0], {8: 12, 4: 8}[last_mfma_w[r][1]])
                for r in I.srcc:
                    if r in last_mfma_w:
                        p, ps, D = last_mfma_w[r]
                        if tuple(I.srcc) == D and ps == I.passes: pass
                        else: req(p, {8: 10, 4: 6}[ps])
                for r in I.defs:
                    if r in last_mfma_w and r not in I.srcc:
                        p, ps, D = last_mfma_w[r]
                        req(p, {8: 10, 4: 6}[ps])
            elif I.kind in ("valu", "dsr", "dsw", "vml", "vms", "dma"):
                for r in list(I.uses) + list(I.defs):
                    if r in last_mfma_w: req(last_mfma_w[r][0], {8: 12, 4: 8}[last_mfma_w[r][1]])
                if I.kind == "valu" or I.kind in ("dsr", "vml"):
                    for r in I.defs:
                        if r in last_mfma_c: req(last_mfma_c[r][0], {8: 7, 4: 3}[last_mfma_c[r][1]])
                        if r in last_wstore: req(last_wstore[r], 2)
                if I.kind == "valu":
                    base = I.op.replace("_e32", "").replace("_e64", "")
                    if base not in TRANS:
                        for r in vuses:
                            if r in last_trans_w: req(last_trans_w[r], 1)
                    if base.startswith("v_permlane") or "dpp" in I.text or "row_" in I.text:
                        for r in vuses:
                            if r in last_valu_w: req(last_valu_w[r], 2)
                    if base in ("v_readfirstlane_b32", "v_readlane_b32"):
                        for r in vuses:
                            if r in last_valu_w: req(last_valu_w[r], 1)
                    for r in suses:
                        if r in last_valu_w: req(last_valu_w[r], 2)
                    if base == "v_cndmask_b32" and "vcc" in last_valu_w and "vcc" in I.text: req(last_valu_w["vcc"], 2)
                if I.kind in ("vml", "vms", "dma"):
                    for r in suses:
                        if r in last_valu_w: req(last_valu_w[r], 5)
                if I.kind == "dma": req(last_salu_m0, 1)
            elif I.kind in ("salu", "smem"):
                for r in suses:
                    if r in last_valu_w: req(last_valu_w[r], 4)
            while need > 0:
                n = min(need, 16)
                res.append(f"    s_nop {n-1}"); pos += n; need -= n; nops += n
            res.append("    " + I.text)
            if I.kind == "valu":
                base = I.op.replace("_e32", "").replace("_e64", "")
                for r in I.defs:
                    last_valu_w[r] = pos
                    if base in TRANS: last_trans_w[r] = pos
                    else: last_trans_w.pop(r, None)
                    last_mfma_w.pop(r, None)
            elif I.kind == "mfma":
                for r in I.defs:
                    last_mfma_w[r] = (pos, I.passes, tuple(I.defs)); last_valu_w.pop(r, None); last_trans_w.pop(r, None)
                for r in I.srcc: last_mfma_c[r] = (pos, I.passes)
            elif I.kind == "salu":
                for r in I.defs:
                    last_valu_w.pop(r, None)
                    if r == "m0": last_salu_m0 = pos
            elif I.kind in ("dsr", "vml"):
                for r in I.defs:
                    last_valu_w.pop(r, None); last_trans_w.pop(r, None); last_mfma_w.pop(r, None)
            if I.kind == "vms" and I.wide_store:
                for r in I.ab: last_wstore[r] = pos
            if I.op == "s_nop": pos += int(I.text.split()[1]) + 1
            elif I.kind == "mfma": pos += mfma_states
            else: pos += 1
        self.nops = nops
        return res
```

```python
import sys, math, struct
from sched import Stream

NAME = "concat_heads__mha_block_cached__gqa_block_cached__near_ridge_kernel"
REF = "concat_heads__mha_block_cached__gqa_block_cached__near_ridge.s.ref"
SLOT = 17408
PITCH = 1056
LDS_BYTES = 9 * SLOT
WS_O, WS_D, WS_DX, WS_FLAG, WS_EPOCH, WS_STAMP = 0, 16 << 20, 32 << 20, 40 << 20, 41 << 20, 48 << 20
WS_SIZE = 64 << 20
SPIN_LIMIT = 1 << 15

def f32(x): return struct.unpack("<I", struct.pack("<f", x))[0]
def vr(n, c=1): return f"v{n}" if c == 1 else f"v[{n}:{n+c-1}]"
def mfma(d, a, b, first=False):
    return f"v_mfma_f32_16x16x32_bf16 {vr(d,4)}, {vr(a,4)}, {vr(b,4)}, {'0' if first else vr(d,4)}"

SX, SWQ, SK, SV, SWO, SWS, SOUT, SDBG = 8, 12, 16, 20, 24, 28, 32, 36
def srd(n): return f"s[{n}:{n+3}]"
S_BLK, S_KQ, S_B, S_P, S_H0, S_W, S_NONCE = 40, 41, 42, 43, 44, 45, 46

class Cfg:
    pol_x = ""; pol_wq = ""; pol_kv = "nt"; pol_wo = ""
    stop = None
    stamps = False
    real = False
    ngrp = 2
    k0_after = 5
    poll0 = 4
    poll1 = 9
    nodma = False
    k0_first = 0
    k0_n = 4
    bdetail = False
    flag0 = 1
    flag1 = 3
    cdetail = 0
    kvsched = 1
    adetail = False
    nokv = False
    nomfma = False
    noread = False

def stamp(S, cfg, idx, det=False):
    if not cfg.stamps: return
    if cfg.cdetail and idx not in (0, 13) and not (det or S.inC): return
    S(f"{'s_memrealtime' if cfg.real else 's_memtime'} s[78:79]")
    S("s_waitcnt lgkmcnt(0)")
    S(f"s_mov_b32 s{80+idx}, s78")

def stamps_store(S, cfg):
    if not cfg.stamps: return
    S("s_memrealtime s[78:79]\ns_waitcnt lgkmcnt(0)\ns_mov_b32 s95, s78")
    stamp(S, cfg, 13)
    S(f"s_lshl_b32 s66, s2, 3\ns_add_u32 s66, s66, s3\ns_lshl_b32 s66, s66, 6\ns_add_u32 s66, s66, {WS_STAMP}")
    S("v_mov_b32 v2, 0")
    S("s_mov_b64 exec, 1")
    for i in range(16):
        S(f"v_mov_b32 v3, s{80+i}")
        S(f"buffer_store_dword v3, v2, {srd(SWS)}, s66 offen offset:{4*i}")
    S("s_mov_b64 exec, -1")

def prologue(S, cfg):
    S(f"""s_cmp_ge_u32 s2, 256
    s_cbranch_scc1 L_end
    s_bfe_u32 s{S_BLK}, s2, 0x10002
    s_mul_i32 s66, s{S_BLK}, 40
    s_add_u32 s4, s0, s66
    s_addc_u32 s5, s1, 0
    s_load_dwordx8 s[48:55], s[4:5], 0
    s_load_dwordx2 s[56:57], s[4:5], 32
    s_load_dwordx4 s[60:63], s[0:1], 80
    s_load_dwordx2 s[64:65], s[0:1], 96
    v_lshrrev_b32 v2, 6, v0
    v_and_b32 v1, 63, v0
    s_and_b32 s{S_KQ}, s2, 3
    v_readfirstlane_b32 s3, v2
    s_bfe_u32 s{S_B}, s2, 0x30003
    s_lshr_b32 s{S_P}, s2, 6
    s_lshl_b32 s{S_H0}, s{S_KQ}, 2
    s_add_u32 s{S_H0}, s{S_H0}, s{S_P}
    s_lshl_b32 s{S_H0}, s{S_H0}, 1
    s_and_b32 s{S_W}, s3, 3""")
    if cfg.stamps:
        for i in range(16): S(f"s_mov_b32 s{80+i}, 0")
        S("s_memrealtime s[78:79]\ns_waitcnt lgkmcnt(0)\ns_mov_b32 s94, s78")
        stamp(S, cfg, 0)
    for d, size in ((SX, 1179648), (SWQ, 4718592), (SK, 8388608), (SV, 8388608), (SWO, 4718592), (SWS, WS_SIZE), (SOUT, 2359296), (SDBG, 256)):
        S(f"s_mov_b32 s{d+2}, {size}\ns_mov_b32 s{d+3}, 0x20000")
    S("s_waitcnt lgkmcnt(0)")
    for d, p in ((SX, 48), (SWQ, 54), (SK, 50), (SV, 52), (SWO, 56), (SWS, 64), (SOUT, 60), (SDBG, 62)):
        S(f"s_mov_b32 s{d}, s{p}\ns_and_b32 s{d+1}, s{p+1}, 0xffff")
    S("s_cmp_lt_u32 s3, 4\ns_cbranch_scc1 L_compute")

def nonce_issue(S, vt, vz):
    S(f"v_mov_b32 v{vz}, 0")
    S(f"buffer_load_dword v{vt}, v{vz}, {srd(SDBG)}, 0 offen sc1")
def nonce_check(S, vt, vz, lab):
    S(f"v_readfirstlane_b32 s{S_NONCE}, v{vt}")
    S(f"s_cmp_lg_u32 s{S_NONCE}, 0\ns_cbranch_scc1 {lab}_ok")
    S(f"s_mov_b32 s77, {SPIN_LIMIT}")
    S.label(f"{lab}_spin")
    S.out += [I for I in _raw(f"""buffer_load_dword v{vt}, v{vz}, {srd(SDBG)}, 0 offen sc1
    s_waitcnt vmcnt(0)
    v_readfirstlane_b32 s{S_NONCE}, v{vt}
    s_nop 4
    s_cmp_lg_u32 s{S_NONCE}, 0
    s_cbranch_scc1 {lab}_ok
    s_sleep 2
    s_sub_u32 s77, s77, 1
    s_cmp_lg_u32 s77, 0
    s_cbranch_scc1 {lab}_spin""")]
    S.label(f"{lab}_ok")
def _raw(text):
    from sched import Ins
    return [Ins(l.strip()) for l in text.split("\n") if l.strip()]

def c_units():
    u = [("M", 0, 0), ("M", 0, 1), ("E", 0, 0), ("M", 1, 0), ("M", 1, 1), ("E", 1, 0)]
    for hh in (0, 1):
        for ii in range(6): u.append(("P", hh, ii))
    return u
BARS = ["B0", "B1", "B2"] + [f"C{i}" for i in range(19)]
def c_plan(cfg):
    units = c_units()
    free = [(8, "B0"), (0, "B0"), (1, "B0"), (2, "B1"), (3, "B1"), (4, "B2"), (5, "B2"), (6, "C0"), (7, "C0")]
    items = [("W", j) for j in range(7)]
    for j in range(6, 18):
        if j + 1 < 18: items.append(("W", j + 1))
        items.append(("O", j))
    slot_of, issue = {}, {b: [] for b in BARS}
    pend = {j: [] for j in range(18)}
    done_units = 0
    for it in items:
        while not free:
            for sl in pend[done_units]: free.append((sl, f"C{done_units+1}"))
            done_units += 1
        sl, rel = free.pop(0)
        if it[0] == "O":
            mn = f"C{cfg.poll0}" if units[it[1]][1] == 0 else f"C{cfg.poll1}"
            if BARS.index(rel) < BARS.index(mn): rel = mn
        assert BARS.index(rel) < BARS.index(f"C{it[1]}"), (it, rel)
        slot_of[it] = sl; issue[rel].append(it); pend[it[1]].append(sl)
    return units, slot_of, issue

def loader(S, cfg):
    VXO, VWO, VKV, VKW, VVW, VMO, VEO, VOO, VFL, VN, VZ = 4, 5, 6, 7, 8, 9, 10, 11, 12, 14, 15
    KVR = 64
    sXb, sWb, sCC, sM, sT, sKV0, sKV1, sOff, sA, sB2 = 66, 67, 68, 69, 71, 72, 73, 74, 75, 70
    S(f"""s_lshl_b32 s{sT}, s{S_W}, 2
    v_lshrrev_b32 v2, 3, v1
    v_lshlrev_b32 v2, 4, v2
    v_add_u32 v2, s{sT}, v2
    v_mul_u32_u24 v3, 1152, v2
    v_and_b32 v13, 7, v1
    v_lshl_add_u32 v{VXO}, v13, 4, v3
    s_and_b32 s76, s{S_W}, 1
    s_lshl_b32 s76, s76, 3
    s_lshl_b32 s77, s{S_W}, 1
    s_and_b32 s77, s77, 4
    s_add_u32 s76, s76, s77
    v_lshrrev_b32 v2, 5, v1
    v_lshlrev_b32 v2, 4, v2
    v_add_u32 v2, s76, v2
    v_lshlrev_b32 v2, 13, v2
    v_and_b32 v13, 31, v1
    v_lshl_add_u32 v{VWO}, v13, 4, v2
    s_mul_i32 s{sM}, s{sT}, {PITCH}
    v_add_u32 v{VEO}, 1024, v{VXO}""")
    if cfg.ngrp > 1:
        starts = [round(9 * i / cfg.ngrp) for i in range(cfg.ngrp)]
        S(f"s_add_u32 s76, s{S_B}, s{S_P}\ns_add_u32 s76, s76, s{S_KQ}")
        tab = sum(starts[i % cfg.ngrp] << (4 * i) for i in range(16))
        S(f"s_mov_b32 s{sA}, {tab & 0xffffffff}\ns_mov_b32 s{sA+1}, {tab >> 32}" .replace(f"s{sA+1}", "s77"))
        S(f"s_lshl_b32 s76, s76, 2\ns_cmp_ge_u32 s76, 32\ns_cselect_b32 s{sA}, s77, s{sA}\ns_and_b32 s76, s76, 31\ns_lshr_b32 s{sCC}, s{sA}, s76\ns_and_b32 s{sCC}, s{sCC}, 15")
    else:
        S(f"s_mov_b32 s{sCC}, 0")
    def chunk(c):
        base = (c % 3) * 3 * SLOT
        S(f"""s_mul_i32 s{sXb}, s{S_B}, 147456
        s_lshl_b32 s76, s{sCC}, 7
        s_add_u32 s{sXb}, s{sXb}, s76
        s_lshl_b32 s{sWb}, s{sCC}, 19
        s_lshl_b32 s76, s{S_H0}, 8
        s_add_u32 s{sWb}, s{sWb}, s76""")
        for i in range(4):
            S(f"s_add_u32 m0, s{sM}, {base + i*PITCH}\ns_add_u32 s{sT}, s{sXb}, {i*1152}")
            S(f"buffer_load_dwordx4 v{VXO}, {srd(SX)}, s{sT} offen {cfg.pol_x} lds", tag=f"ch{c}")
        for st in range(2):
            for i in range(4):
                S(f"s_add_u32 m0, s{sM}, {base + SLOT*(1+st) + i*PITCH}\ns_add_u32 s{sT}, s{sWb}, {(32*st+i)*8192}")
                S(f"buffer_load_dwordx4 v{VWO}, {srd(SWQ)}, s{sT} offen {cfg.pol_wq} lds", tag=f"ch{c}")
        S(f"s_add_u32 s{sCC}, s{sCC}, 1\ns_cmp_eq_u32 s{sCC}, 9\ns_cselect_b32 s{sCC}, 0, s{sCC}")
    def kv_load(m, j0=0, j1=8):
        if cfg.nokv: return
        sr = SK if m < 2 else SV
        sb = sKV0 if m % 2 == 0 else sKV1
        for j in range(j0, j1):
            if j == max(4, j0): S(f"s_add_u32 s{sT}, s{sb}, 4096")
            so = sb if j < 4 else sT
            S(f"buffer_load_dwordx4 {vr(KVR+32*m+4*j,4)}, v{VKV}, {srd(sr)}, s{so} offen offset:{(j&3)*1024} {cfg.pol_kv}", tag=f"kv{m}")
    def kv_write(m, slot):
        if m < 2:
            for j in range(8):
                S(f"v_add_u32 v2, {slot*SLOT + j*4*PITCH}, v{VKW}")
                S(f"ds_write2_b64 v2, {vr(KVR+32*m+4*j,2)}, {vr(KVR+32*m+4*j+2,2)} offset0:0 offset1:2")
        else:
            S(f"v_add_u32 v2, {slot*SLOT}, v{VVW}")
            for j in range(8):
                S(f"ds_write_b128 v2, {vr(KVR+32*m+4*j,4)} offset:{j*4*PITCH}")
    chunk(0)
    stamp(S, cfg, 1)
    S(f"""s_lshl_b32 s76, s{S_W}, 13
    v_lshlrev_b32 v2, 4, v1
    v_add_u32 v{VKV}, s76, v2
    s_lshl_b32 s{sKV0}, s{S_B}, 5
    s_add_u32 s{sKV0}, s{sKV0}, s{S_H0}
    s_lshl_b32 s{sKV0}, s{sKV0}, 15
    s_add_u32 s{sKV1}, s{sKV0}, 32768
    v_lshrrev_b32 v2, 4, v1
    v_mul_u32_u24 v13, {PITCH}, v2
    s_lshl_b32 s76, s{S_W}, 8
    v_add_u32 v13, s76, v13
    v_and_b32 v3, 15, v1
    v_lshl_add_u32 v{VVW}, v3, 4, v13
    v_bfe_u32 v3, v1, 2, 2
    v_lshl_add_u32 v13, v3, 6, v13
    v_and_b32 v3, 1, v1
    v_lshl_add_u32 v13, v3, 5, v13
    v_bfe_u32 v3, v1, 1, 1
    v_lshl_add_u32 v{VKW}, v3, 3, v13""")
    S(f"""v_lshlrev_b32 v2, 4, v2
    s_lshl_b32 s76, s{S_W}, 2
    v_add_u32 v2, s76, v2
    v_mul_u32_u24 v2, 1152, v2
    v_lshlrev_b32 v3, 4, v1
    s_lshl_b32 s76, s{S_KQ}, 6
    v_add_u32 v3, s76, v3
    v_and_b32 v3, 0xff, v3
    v_add_u32 v{VMO}, v2, v3
    v_lshlrev_b32 v{VOO}, 4, v1
    v_min_u32 v2, 2, v1
    v_add3_u32 v2, v2, s{S_P}, 1
    v_and_b32 v2, 3, v2
    v_lshlrev_b32 v2, 6, v2
    s_and_b32 s76, s2, 63
    v_add_u32 v2, s76, v2
    v_lshlrev_b32 v2, 2, v2
    v_add_u32 v2, s{S_W}, v2
    v_lshlrev_b32 v{VFL}, 8, v2
    s_mul_i32 s{sOff}, s{S_B}, 3
    s_lshr_b32 s{sOff}, s{sOff}, 2""")
    S.wait_vm(8)
    chunk(1)
    for c in range(9):
        S.wait_vm_tag(f"ch{c}")
        if c == 8: S.wait_lg(0)
        if cfg.adetail: stamp(S, cfg, 2 + c)
        elif c in (0, 1, 2, 8): stamp(S, cfg, {0: 2, 1: 3, 2: 4, 8: 5}[c])
        S("s_barrier")
        if c <= 6:
            k = c - cfg.k0_first
            if cfg.k0_n == 4 and 0 <= k < 4: kv_load(0, 2 * k, 2 * k + 2)
            if cfg.k0_n == 2 and 0 <= k < 2: kv_load(0, 4 * k, 4 * k + 4)
            if cfg.k0_n == 1 and k == 0: kv_load(0)
            if not cfg.nodma: chunk(c + 2)
        if c == 4: nonce_issue(S, VN, VZ)
        if c == 6: kv_load(1)
        if c == 7: kv_write(0, 0); kv_load(2)
    nonce_check(S, VN, VZ, "L_ln")
    if cfg.stop == "A":
        S.wait_vm(0); stamps_store(S, cfg); S("s_branch L_end"); return
    units, slot_of, issue = c_plan(cfg)
    def c_issue(it):
        kind, j = it
        uk, hh, x = units[j]
        sl = slot_of[it] * SLOT
        tag = f"u{j}"
        if uk in ("M", "E"):
            row = hh * 128 + (64 * x if uk == "M" else 0)
            S(f"s_lshl_b32 s{sA}, s{S_H0}, 7\ns_add_u32 s{sA}, s{sA}, {row}\ns_mul_i32 s{sA}, s{sA}, 1152")
            if uk == "M": S(f"s_lshl_b32 s76, s{S_P}, 8\ns_add_u32 s{sA}, s{sA}, s76")
            va = VMO if uk == "M" else VEO
            for i in range(4):
                S(f"s_add_u32 m0, s{sM}, {sl + i*PITCH}\ns_add_u32 s{sT}, s{sA}, {i*1152}")
                S(f"buffer_load_dwordx4 v{va}, {srd(SWO)}, s{sT} offen {cfg.pol_wo} lds", tag=tag)
            return
        S(f"""s_add_u32 s76, s{sOff}, {x}
        s_sub_u32 s77, s76, 6
        s_cmp_ge_u32 s76, 6
        s_cselect_b32 s76, s77, s76
        s_lshr_b32 s77, s76, 1
        s_add_u32 s77, s77, s{S_P}
        s_add_u32 s77, s77, 1
        s_and_b32 s77, s77, 3
        s_and_b32 s76, s76, 1""")
        if kind == "W":
            S(f"""s_lshl_b32 s{sA}, s{S_KQ}, 2
            s_add_u32 s{sA}, s{sA}, s77
            s_lshl_b32 s{sA}, s{sA}, 2
            s_add_u32 s{sA}, s{sA}, s76
            s_add_u32 s{sA}, s{sA}, {2*hh}
            s_mul_i32 s{sA}, s{sA}, {64*1152}
            s_lshl_b32 s76, s{S_P}, 8
            s_add_u32 s{sA}, s{sA}, s76""")
            for i in range(4):
                S(f"s_add_u32 m0, s{sM}, {sl + i*PITCH}\ns_add_u32 s{sT}, s{sA}, {i*1152}")
                S(f"buffer_load_dwordx4 v{VMO}, {srd(SWO)}, s{sT} offen {cfg.pol_wo} lds", tag=tag)
        else:
            S(f"""s_lshl_b32 s77, s77, 6
            s_and_b32 s{sA}, s2, 63
            s_add_u32 s{sA}, s{sA}, s77
            s_lshl_b32 s{sA}, s{sA}, 2
            s_add_u32 s{sA}, s{sA}, s{S_W}
            s_lshl_b32 s{sA}, s{sA}, 2
            s_add_u32 s{sA}, s{sA}, s76
            s_add_u32 s{sA}, s{sA}, {2*hh}
            s_lshl_b32 s{sA}, s{sA}, 12
            s_lshl_b32 s{sB2}, s{S_W}, 12""")
            for i in range(4):
                S(f"s_add_u32 m0, s{sB2}, {sl + i*1024}\ns_add_u32 s{sT}, s{sA}, {WS_O + i*1024}")
                S(f"buffer_load_dwordx4 v{VOO}, {srd(SWS)}, s{sT} offen sc1 lds", tag=tag)
    def poll_issue(hh):
        S(f"s_mov_b32 s76, {WS_FLAG}")
        S(f"buffer_load_dword v{16+hh}, v{VFL}, {srd(SWS)}, s76 offen offset:{128*hh} sc1")
    def poll(hh):
        lab = f"L_poll{hh}"
        S(f"v_cmp_eq_u32 vcc, s{S_NONCE}, v{16+hh}")
        S(f"s_cmp_eq_u64 vcc, -1\ns_cbranch_scc1 {lab}_ok")
        S(f"s_mov_b32 s76, {WS_FLAG}\ns_mov_b32 s77, {SPIN_LIMIT}")
        S.label(lab)
        S.out += _raw(f"""buffer_load_dword v{16+hh}, v{VFL}, {srd(SWS)}, s76 offen offset:{128*hh} sc1
        s_waitcnt vmcnt(0)
        v_cmp_eq_u32 vcc, s{S_NONCE}, v{16+hh}
        s_nop 4
        s_cmp_eq_u64 vcc, -1
        s_cbranch_scc1 {lab}_ok
        s_sub_u32 s77, s77, 1
        s_cmp_lg_u32 s77, 0
        s_cbranch_scc1 {lab}""")
        S.label(f"{lab}_ok")
    kv_write(1, 2)
    kv_load(3)
    S.wait_lg(0)
    stamp(S, cfg, 6)
    S("s_barrier")
    kv_write(2, 4)
    if cfg.stop != "B":
        for it in issue["B0"]: c_issue(it)
    S.wait_lg(0)
    stamp(S, cfg, 12)
    S("s_barrier")
    kv_write(3, 6)
    if cfg.stop != "B":
        for it in issue["B1"]: c_issue(it)
    S.wait_lg(0)
    stamp(S, cfg, 7)
    S("s_barrier")
    if cfg.stop == "B":
        S.wait_vm(0); stamps_store(S, cfg); S("s_branch L_end"); return
    for it in issue["B2"]: c_issue(it)
    S.inC = True
    for i in range(18):
        S.wait_vm_tag(f"u{i}")
        if cfg.cdetail:
            if 0 <= i - (cfg.cdetail - 1) < 12: stamp(S, cfg, 1 + i - (cfg.cdetail - 1))
        elif i in (0, 6, 12, 17): stamp(S, cfg, {0: 8, 6: 9, 12: 10, 17: 11}[i])
        S("s_barrier")
        if i == cfg.poll0 - 1: poll_issue(0)
        if i == cfg.poll1 - 1: poll_issue(1)
        for it in issue[f"C{i}"]:
            if it[0] == "W": c_issue(it)
        if i == cfg.poll0: poll(0)
        if i == cfg.poll1: poll(1)
        for it in issue[f"C{i}"]:
            if it[0] == "O": c_issue(it)
    S(f"s_cmp_lg_u32 s{S_W}, 0\ns_cbranch_scc1 L_lfin")
    R = 64
    S(f"""v_and_b32 v2, 7, v1
    v_bfe_u32 v3, v1, 3, 2
    v_lshl_add_u32 v2, v3, 4, v2
    s_and_b32 s76, s{S_P}, 1
    s_lshl_b32 s76, s76, 3
    v_add_u32 v2, s76, v2
    v_lshlrev_b32 v2, 4, v2
    v_lshrrev_b32 v3, 5, v1
    v_mul_u32_u24 v3, {4*6*1024}, v3
    v_add_u32 v4, v2, v3
    s_lshl_b32 s{sA}, s{S_BLK}, 3
    s_add_u32 s{sA}, s{sA}, s{S_B}
    s_lshl_b32 s{sA}, s{sA}, 6
    s_add_u32 s{sA}, s{sA}, s{S_KQ}
    s_mul_i32 s{sA}, s{sA}, 6144
    s_lshr_b32 s76, s{S_P}, 1
    s_mul_i32 s76, s76, 3072
    s_add_u32 s{sA}, s{sA}, s76
    s_add_u32 s{sA}, s{sA}, {WS_DX}
    s_mov_b32 s77, {SPIN_LIMIT}""")
    S.label("L_dx")
    for r in range(8):
        S(f"s_add_u32 s{sT}, s{sA}, {r*2*4*6*1024}")
        for gm in range(3):
            S(f"buffer_load_dwordx4 {vr(R+12*r+4*gm,4)}, v4, {srd(SWS)}, s{sT} offen offset:{gm*1024} sc1")
    S(f"v_xor_b32 v5, s{S_NONCE}, v{R+3}")
    for i in range(1, 24):
        S(f"v_xor_b32 v6, s{S_NONCE}, v{R+4*i+3}\nv_or_b32 v5, v5, v6")
    S("v_cmp_eq_u32 vcc, 0, v5\ns_cmp_eq_u64 vcc, -1\ns_cbranch_scc1 L_dx_ok")
    S("s_sleep 1\ns_sub_u32 s77, s77, 1\ns_cmp_lg_u32 s77, 0\ns_cbranch_scc1 L_dx")
    S.label("L_dx_ok")
    AC = 16
    pay = [0, 1, 2, 4, 5, 6, 8, 9]
    for r in range(8):
        for d in range(8):
            src = R + 12 * r + pay[d]
            if r == 0:
                S(f"v_lshlrev_b32 v{AC+2*d}, 16, v{src}\nv_and_b32 v{AC+2*d+1}, 0xffff0000, v{src}")
            else:
                S(f"v_lshlrev_b32 v6, 16, v{src}\nv_and_b32 v7, 0xffff0000, v{src}\nv_add_f32 v{AC+2*d}, v{AC+2*d}, v6\nv_add_f32 v{AC+2*d+1}, v{AC+2*d+1}, v7")
    for i in range(8): S(f"v_permlane32_swap_b32 v{AC+i}, v{AC+8+i}")
    for i in range(8): S(f"v_add_f32 v{AC+i}, v{AC+i}, v{AC+8+i}")
    for i in range(4): S(f"v_cvt_pk_bf16_f32 v{32+i}, v{AC+2*i}, v{AC+2*i+1}")
    S(f"""v_and_b32 v2, 7, v1
    s_lshl_b32 s76, s{S_B}, 7
    s_lshl_b32 s77, s{S_KQ}, 5
    s_add_u32 s76, s76, s77
    s_lshl_b32 s77, s{S_P}, 3
    s_add_u32 s76, s76, s77
    v_add_u32 v2, s76, v2
    v_mul_u32_u24 v2, 2304, v2
    v_bfe_u32 v3, v1, 3, 2
    v_lshl_add_u32 v2, v3, 3, v2
    v_lshrrev_b32 v3, 5, v1
    v_lshl_add_u32 v2, v3, 6, v2
    s_mul_i32 s76, s{S_BLK}, 1152
    s_add_u32 s76, s76, 1024
    buffer_store_dwordx2 v[32:33], v2, {srd(SOUT)}, s76 offen
    buffer_store_dwordx2 v[34:35], v2, {srd(SOUT)}, s76 offen offset:32""")
    S.label("L_lfin")
    S("s_waitcnt vmcnt(0)")
    stamps_store(S, cfg)
    S("s_branch L_end")

class Pipe:
    def __init__(self, S, lead):
        self.S, self.lead = S, lead
    def run(self, groups, fill=None, start=0, maxrd=2, tail=None):
        S = self.S
        queue = []
        for gi in range(start, len(groups)):
            g = groups[gi]
            if g.get("epoch"): queue.append((gi, g["epoch"]))
            for r in g.get("pre", []) + g["reads"]: queue.append((gi, r))
        for r in (tail or []): queue.append((len(groups) + 0, r))
        nm = [len(g["mf"]) for g in groups]
        pos = [sum(nm[:i]) for i in range(len(groups) + 1)]
        fl = {}
        for (g0, g1, ins) in (fill or []):
            a, b = pos[g0], pos[g1]
            for k, x in enumerate(ins):
                fl.setdefault(a + (k * (b - a)) // len(ins), []).append(x)
        since_read = 99
        m = 0
        for gi, g in enumerate(groups):
            while queue and queue[0][0] <= gi:
                x = queue.pop(0)[1]
                x() if callable(x) else S(x)
            for mf in g["mf"]:
                S(mf)
                since_read += 1
                n = 0
                while queue and n < maxrd and queue[0][0] <= gi + self.lead:
                    x = queue[0][1]
                    if callable(x):
                        if since_read < 5: break
                        queue.pop(0); x(); n += 1
                        continue
                    behind = queue[0][0] < gi + self.lead
                    if n >= 1 and not behind: break
                    queue.pop(0); S(x); n += 1; since_read = 0
                for x in fl.get(m, []): S(*x) if isinstance(x, tuple) else S(x)
                m += 1
        for _, x in queue:
            x() if callable(x) else S(x)

def compute(S, cfg):
    VX, VW = [4, 5, 6], [7, 8, 9]
    VK0, VK1, VV0, VV1, VOST, VZ, VN = 10, 11, 12, 13, 14, 15, 16
    VM0, VM1, VT, VL0, VL1 = 17, 18, 19, 20, 21
    VRC = [[56, 57], [58, 59]]
    QP = lambda h: 64 + 32 * h
    sC = 47
    S.label("L_compute")
    S(f"v_mov_b32 v{VZ}, 0")
    S(f"s_or_b32 s66, s2, s3\ns_cmp_lg_u32 s66, 0\ns_cbranch_scc1 L_notag")
    S.out += _raw(f"""s_mov_b32 s66, {WS_EPOCH}
    buffer_load_dword v2, v{VZ}, {srd(SWS)}, s66 offen sc1
    s_waitcnt vmcnt(0)
    v_add_u32 v2, 1, v2
    v_max_u32 v2, 1, v2
    buffer_store_dword v2, v{VZ}, {srd(SWS)}, s66 offen sc1
    buffer_store_dword v2, v{VZ}, {srd(SDBG)}, 0 offen sc1
    s_waitcnt vmcnt(0)""")
    S.label("L_notag")
    S(f"""v_and_b32 v22, 15, v1
    v_lshrrev_b32 v23, 4, v1
    v_mul_u32_u24 v2, {PITCH}, v22
    v_lshl_add_u32 v{VK0}, v23, 4, v2
    v_add_u32 v{VK1}, {2*SLOT}, v{VK0}
    s_lshl_b32 s66, s{S_W}, 8
    v_add_u32 v{VX[0]}, s66, v{VK0}
    v_add_u32 v{VX[1]}, {3*SLOT}, v{VX[0]}
    v_add_u32 v{VX[2]}, {6*SLOT}, v{VX[0]}
    v_bfe_u32 v2, v1, 2, 3
    v_mul_u32_u24 v2, {PITCH}, v2
    v_lshrrev_b32 v3, 5, v1
    v_lshl_add_u32 v2, v3, 9, v2
    v_and_b32 v3, 3, v1
    v_lshl_add_u32 v2, v3, 3, v2
    v_add_u32 v{VW[0]}, {SLOT}, v2
    v_add_u32 v{VW[1]}, {4*SLOT}, v2
    v_add_u32 v{VW[2]}, {7*SLOT}, v2
    v_lshrrev_b32 v2, 2, v1
    v_mul_u32_u24 v2, {PITCH}, v2
    v_lshl_add_u32 v2, v3, 3, v2
    v_add_u32 v{VV0}, {4*SLOT}, v2
    v_add_u32 v{VV1}, {6*SLOT}, v2
    s_lshl_b32 s66, s2, 16
    s_lshl_b32 s67, s{S_W}, 14
    s_add_u32 s66, s66, s67
    v_lshlrev_b32 v{VOST}, 4, v1
    v_add_u32 v{VOST}, s66, v{VOST}
    s_mov_b32 s{sC}, {f32(math.log2(math.e) / math.sqrt(128.0))}""")
    def bar(fn=None):
        def f():
            S.wait_lg(0)
            if fn: fn()
            S("s_barrier")
        return f
    ACC = lambda t, u: 128 + 8 * t + 4 * u
    ARING = [96, 104, 112, 120, 56]
    XF = lambda c, s, u: 24 + 16 * (c & 1) + 8 * s + 4 * u
    groups = []
    for c in range(9):
        for t in range(16):
            n = 16 * c + t
            rg = ARING[n % 5]
            g = dict(reads=[f"ds_read_b64_tr_b16 {vr(rg+4*s+2*rd,2)}, v{VW[c%3]} offset:{s*SLOT + rd*8*PITCH + 32*t}" for s in range(2) for rd in range(2)],
                     mf=[mfma(ACC(t, u), rg + 4*s, XF(c, s, u), first=(c == 0 and s == 0)) for u in range(2) for s in range(2)])
            if t == 0:
                g["epoch"] = bar((lambda: stamp(S, cfg, 1)) if c == 0 else None) if c else None
                g["pre"] = [f"ds_read_b128 {vr(XF(c,s,u),4)}, v{VX[c%3]} offset:{128*u + 64*s}" for s in range(2) for u in range(2)]
            groups.append(g)
    KR = lambda i: 24 + 4 * ((i + 4) & 7)
    def k_read(h, i):
        kt, s = i >> 2, i & 3
        return f"ds_read_b128 {vr(KR(i),4)}, v{VK0 if h == 0 else VK1} offset:{(kt&1)*16*PITCH + (kt>>1)*256 + 64*s}"
    def v_reads(h, i):
        dt, j = i >> 2, i & 3
        return [f"ds_read_b64_tr_b16 {vr(KR(i)+2*rd,2)}, v{VV0 if h == 0 else VV1} offset:{rd*16*PITCH + j*256 + 32*dt}" for rd in range(2)]
    def pack(dst, src):
        return [f"v_cvt_pk_bf16_f32 v{dst+8*s+4*u+2*e+x}, v{src+8*(2*s+e)+4*u+2*x}, v{src+8*(2*s+e)+4*u+2*x+1}" for s in range(4) for u in range(2) for e in range(2) for x in range(2)]
    S("s_barrier")
    stamp(S, cfg, 1)
    if cfg.nomfma:
        for g in groups: g['mf'] = ['s_nop 0'] * 4
    if cfg.noread:
        for g in groups[5:]: g['reads'] = []; g['pre'] = []
    P = Pipe(S, 4)
    P.run(groups, fill=[(138, 144, pack(QP(0), 128))], tail=[k_read(0, i) for i in range(4)])
    stamp(S, cfg, 2)
    if cfg.stop == "A":
        for x in pack(QP(1), 192): S(x)
        for i in range(16):
            S(f"s_mov_b32 s66, {i*1024}")
            S(f"buffer_store_dwordx4 {vr(64+4*i,4)}, v{VOST}, {srd(SWS)}, s66 offen")
        S.wait_vm(0); stamps_store(S, cfg); S("s_branch L_end"); return
    SS = lambda h: 128 + 64 * h
    def qk_groups(h):
        return [dict(reads=[k_read(h, 4*kt+s) for s in range(4)],
                     mf=[mfma(SS(h)+8*kt+4*u, KR(4*kt+s), QP(h)+8*s+4*u, first=(s == 0)) for u in range(2) for s in range(4)]) for kt in range(8)]
    def pv_groups(h):
        return [dict(reads=[r for j in range(4) for r in v_reads(h, 4*dt+j)],
                     mf=[mfma(SS(h)+8*dt+4*u, KR(4*dt+j), QP(h)+8*j+4*u, first=(j == 0)) for u in range(2) for j in range(4)]) for dt in range(8)]
    def fold(op, a, b):
        return [f"v_permlane32_swap_b32 v{a}, v{b}", f"{op} v{a}, v{a}, v{b}", f"v_mov_b32 v{b}, v{a}",
                f"v_permlane16_swap_b32 v{a}, v{b}", f"{op} v{a}, v{a}, v{b}", f"v_mov_b32 v{b}, v{a}",
                f"v_permlane32_swap_b32 v{a}, v{b}"]
    def softmax(h):
        s = SS(h)
        el = [[s + 8*kt + 4*u + r for kt in range(8) for r in range(4)] for u in range(2)]
        VM, VL = [VM0, VM1], [VL0, VL1]
        o = []
        for i in range(16):
            for u in range(2):
                e = el[u]
                if i == 0: o.append(f"v_max3_f32 v{VM[u]}, v{e[0]}, v{e[1]}, v{e[2]}")
                elif i < 15: o.append(f"v_max3_f32 v{VM[u]}, v{VM[u]}, v{e[2*i+1]}, v{e[2*i+2]}")
                else: o.append(f"v_max_f32 v{VM[u]}, v{VM[u]}, v{e[31]}")
        o += fold("v_max_f32", VM0, VM1)
        o += [f"v_mul_f32 v{VM0}, s{sC}, v{VM0}", f"v_mul_f32 v{VM1}, s{sC}, v{VM1}"]
        order = [(kt, u, r) for kt in range(8) for u in range(2) for r in range(4)]
        D = 2
        for i in range(64 + 2 * D):
            if i < 64:
                kt, u, r = order[i]; x = s + 8*kt + 4*u + r
                o.append(f"v_fma_f32 v{x}, v{x}, s{sC}, -v{VM[u]}")
            j = i - D
            if 0 <= j < 64:
                kt, u, r = order[j]; x = s + 8*kt + 4*u + r
                o.append(f"v_exp_f32 v{x}, v{x}")
            j = i - 2 * D
            if 0 <= j < 64:
                kt, u, r = order[j]; x = s + 8*kt + 4*u + r
                if kt == 0 and r == 0: pass
                elif kt == 0 and r == 1: o.append(f"v_add_f32 v{VL[u]}, v{x-1}, v{x}")
                else: o.append(f"v_add_f32 v{VL[u]}, v{VL[u]}, v{x}")
                if r & 1: o.append(f"v_cvt_pk_bf16_f32 v{QP(h)+8*(kt>>1)+4*u+2*(kt&1)+(r>>1)}, v{x-1}, v{x}")
        o += fold("v_add_f32", VL0, VL1)
        o += [f"v_rcp_f32 v{VRC[h][0]}, v{VL0}", f"v_rcp_f32 v{VRC[h][1]}, v{VL1}"]
        return o
    def o_pack(h):
        s = SS(h); o = []
        pk = pack(QP(h), s)
        for st in range(4):
            for u in range(2):
                for e in range(2):
                    for r in range(4):
                        x = s + 8*(2*st+e) + 4*u + r
                        o.append(f"v_mul_f32 v{x}, v{x}, v{VRC[h][u]}")
                i = 2 * st + u
                o += pk[4*i:4*i+4]
                so = h * 8192 + i * 1024
                o.append(f"s_mov_b32 s66, {WS_O + (so & ~4095)}")
                o.append((f"buffer_store_dwordx4 {vr(QP(h)+4*i,4)}, v{VOST}, {srd(SWS)}, s66 offen offset:{so & 4095} sc1", f"o{h}"))
        return o
    def flag(h):
        S.wait_vm_tag(f"o{h}")
        S(f"""s_lshl_b32 s68, s2, 2
        s_add_u32 s68, s68, s{S_W}
        s_lshl_b32 s68, s68, 8
        s_add_u32 s68, s68, {WS_FLAG + 128*h}
        v_mov_b32 v{VT}, s{S_NONCE}
        buffer_store_dword v{VT}, v{VZ}, {srd(SWS)}, s68 offen sc1""")
    PB = Pipe(S, 1)
    nonce_issue(S, VN, VZ)
    PB.run(qk_groups(0), fill=[(0, 8, pack(QP(1), 192))], start=1)
    S.wait_lg(0); stamp(S, cfg, 3)
    S("s_barrier")
    if cfg.bdetail: stamp(S, cfg, 8)
    PB.run(qk_groups(1), fill=[(0, 8, softmax(0))])
    S.wait_lg(0); stamp(S, cfg, 4)
    S("s_barrier")
    if cfg.bdetail: stamp(S, cfg, 9)
    PB.run(pv_groups(0), fill=[(0, 8, softmax(1))])
    nonce_check(S, VN, VZ, "L_cn")
    S.wait_lg(0); stamp(S, cfg, 5)
    S("s_barrier")
    if cfg.bdetail: stamp(S, cfg, 10)
    PB.run(pv_groups(1), fill=[(0, 6, o_pack(0))])
    stamp(S, cfg, 6)
    if cfg.stop == "B":
        for x in o_pack(1): S(*x) if isinstance(x, tuple) else S(x)
        S.wait_vm(0); stamp(S, cfg, 7); stamps_store(S, cfg); S("s_branch L_end"); return
    units, slot_of, issue = c_plan(cfg)
    VA, VB = [4, 5, 6], [7, 8, 9]
    S(f"""v_add_u32 v{VA[0]}, {-4*SLOT & 0xffffffff}, v{VV0}
    v_add_u32 v{VA[1]}, {-1*SLOT & 0xffffffff}, v{VV0}
    v_add_u32 v{VA[2]}, {2*SLOT}, v{VV0}
    s_lshl_b32 s66, s{S_W}, 12
    v_lshlrev_b32 v{VB[0]}, 4, v1
    v_add_u32 v{VB[0]}, s66, v{VB[0]}
    v_add_u32 v{VB[1]}, {3*SLOT}, v{VB[0]}
    v_add_u32 v{VB[2]}, {6*SLOT}, v{VB[0]}""")
    MC = lambda nt, u: 128 + 8 * nt + 4 * u
    EC = lambda nt, u: 192 + 8 * nt + 4 * u
    RING_OWN = [24, 32, 40, 48]
    RING_PEER = [224, 232, 240, 248, 96]
    OB = lambda j, s, u: 64 + 16 * (j & 1) + 8 * s + 4 * u
    def cbar(j):
        def fn():
            if j == cfg.flag0: flag(0)
            if j == cfg.flag1: flag(1)
            if cfg.cdetail and 0 <= j - (cfg.cdetail - 1) < 12: stamp(S, cfg, 1 + j - (cfg.cdetail - 1), True)
        return bar(fn)
    own, peer = [], []
    for j, (uk, hh, x) in enumerate(units):
        sl = slot_of[("W", j)]
        va, so = VA[sl // 3], (sl % 3) * SLOT
        lst = own if j < 6 else peer
        ring = RING_OWN if j < 6 else RING_PEER
        if uk == "E":
            for nt in range(4):
                for sp in range(2):
                    rg = ring[len(lst) % len(ring)]
                    g = dict(reads=[f"ds_read_b64_tr_b16 {vr(rg+4*s+2*rd,2)}, v{va} offset:{so + (2*(2*sp+s)+rd)*128 + 32*nt}" for s in range(2) for rd in range(2)],
                             mf=[mfma(EC(nt, u), rg + 4*s, QP(hh) + 8*(2*sp+s) + 4*u, first=(hh == 0 and sp == 0 and s == 0)) for u in range(2) for s in range(2)])
                    if nt == 0 and sp == 0: g["epoch"] = cbar(j)
                    lst.append(g)
        else:
            for nt in range(8):
                rg = ring[len(lst) % len(ring)]
                bf = (lambda s, u: QP(hh) + 8*(2*x+s) + 4*u) if uk == "M" else (lambda s, u: OB(j, s, u))
                g = dict(reads=[f"ds_read_b64_tr_b16 {vr(rg+4*s+2*rd,2)}, v{va} offset:{so + (2*s+rd)*256 + 32*nt}" for s in range(2) for rd in range(2)],
                         mf=[mfma(MC(nt, u), rg + 4*s, bf(s, u), first=(j == 0 and s == 0)) for u in range(2) for s in range(2)])
                if nt == 0:
                    g["epoch"] = cbar(j)
                    if uk == "P":
                        so2 = slot_of[("O", j)]
                        g["pre"] = [f"ds_read_b128 {vr(OB(j,s,u),4)}, v{VB[so2//3]} offset:{(so2%3)*SLOT + (2*s+u)*1024}" for s in range(2) for u in range(2)]
                lst.append(g)

    GX = 24
    dx = []
    for gm in range(6): dx.append(f"v_mov_b32 v{GX+4*gm+3}, s{S_NONCE}")
    pay = [0, 1, 2, 4, 5, 6, 8, 9]
    for u in range(2):
        for nt in range(4):
            for x in range(2):
                dx.append(f"v_cvt_pk_bf16_f32 v{GX+12*u+pay[2*nt+x]}, v{EC(nt,u)+2*x}, v{EC(nt,u)+2*x+1}")
    dx += [f"s_lshl_b32 s66, s{S_BLK}, 3", f"s_add_u32 s66, s66, s{S_B}", "s_lshl_b32 s66, s66, 4", f"s_lshr_b32 s67, s{S_H0}, 1", "s_add_u32 s66, s66, s67",
           "s_lshl_b32 s66, s66, 2", f"s_add_u32 s66, s66, s{S_W}", "s_mul_i32 s66, s66, 6144", f"s_add_u32 s66, s66, {WS_DX}", "s_add_u32 s67, s66, 3072",
           f"v_lshlrev_b32 v{VT}, 4, v1"]
    for gm in range(6):
        dx.append(f"buffer_store_dwordx4 {vr(GX+4*gm,4)}, v{VT}, {srd(SWS)}, s{66 + gm//3} offen offset:{(gm%3)*1024} sc1")
    allg = own + peer
    PC = Pipe(S, 3)
    PC.run(allg, fill=[(1, 15, o_pack(1)), (52, 60, dx)])
    stamp(S, cfg, 7)
    GS, GR = 24, 64
    d = []
    for i in range(9): S(f"v_mov_b32 v{GS+4*i+3}, s{S_NONCE}")
    S(f"""s_and_b32 s68, s2, {~3 & 0xffffffff}
    s_mul_i32 s69, s{S_W}, 9216
    s_add_u32 s69, s69, {WS_D}""")
    for tau in range(1, 4):
        S(f"""s_add_u32 s66, s{S_KQ}, {tau}
        s_and_b32 s66, s66, 3
        s_add_u32 s66, s66, s68
        s_mul_i32 s66, s66, 36864
        s_add_u32 s66, s66, s69
        s_add_u32 s66, s66, {(tau-1)*3072}""")
        for u in range(2):
            for e in range(2):
                for x in range(2):
                    S(f"v_cvt_pk_bf16_f32 v{GS+12*(tau-1)+pay[4*u+2*e+x]}, v{MC(2*tau+e,u)+2*x}, v{MC(2*tau+e,u)+2*x+1}")
        for gm in range(3):
            S(f"buffer_store_dwordx4 {vr(GS+12*(tau-1)+4*gm,4)}, v{VT}, {srd(SWS)}, s66 offen offset:{gm*1024} sc1")
    S(f"s_mul_i32 s66, s2, 36864\ns_add_u32 s66, s66, s69\ns_add_u32 s67, s66, 4096\ns_add_u32 s68, s66, 8192\ns_mov_b32 s77, {SPIN_LIMIT}")
    S(f"""s_lshl_b32 s70, s{S_B}, 2
    s_add_u32 s70, s70, s{S_W}
    s_lshl_b32 s70, s70, 5
    v_add_u32 v2, s70, v22
    v_mul_u32_u24 v2, 2304, v2
    v_and_b32 v3, 1, v23
    v_lshl_add_u32 v2, v3, 5, v2
    v_lshrrev_b32 v3, 1, v23
    v_lshl_add_u32 v2, v3, 4, v2
    s_mul_i32 s70, s{S_BLK}, 1152
    s_lshl_b32 s71, s{S_P}, 8
    s_add_u32 s70, s70, s71
    s_lshl_b32 s71, s{S_KQ}, 6
    s_add_u32 s70, s70, s71
    s_add_u32 s71, s70, {16*2304}""")
    stamp(S, cfg, 8)
    S.label("L_d")
    for i in range(9):
        S(f"buffer_load_dwordx4 {vr(GR+4*i,4)}, v{VT}, {srd(SWS)}, s{66 + i//4} offen offset:{(i%4)*1024} sc1")
    S(f"v_xor_b32 v4, s{S_NONCE}, v{GR+3}")
    for i in range(1, 9):
        S(f"v_xor_b32 v5, s{S_NONCE}, v{GR+4*i+3}\nv_or_b32 v4, v4, v5")
    S("v_cmp_eq_u32 vcc, 0, v4\ns_cmp_eq_u64 vcc, -1\ns_cbranch_scc1 L_d_ok")
    S("s_sub_u32 s77, s77, 1\ns_cmp_lg_u32 s77, 0\ns_cbranch_scc1 L_d")
    S.label("L_d_ok")
    stamp(S, cfg, 9)
    for tau in range(3):
        for u in range(2):
            for e in range(2):
                for x in range(2):
                    src = GR + 12 * tau + pay[4*u+2*e+x]; a = MC(e, u) + 2 * x
                    S(f"v_lshlrev_b32 v4, 16, v{src}\nv_and_b32 v5, 0xffff0000, v{src}\nv_add_f32 v{a}, v{a}, v4\nv_add_f32 v{a+1}, v{a+1}, v5")
    for u in range(2):
        for e in range(2):
            for x in range(2):
                S(f"v_cvt_pk_bf16_f32 v{GS+4*u+2*e+x}, v{MC(e,u)+2*x}, v{MC(e,u)+2*x+1}")
    for u in range(2):
        for x in range(2): S(f"v_permlane16_swap_b32 v{GS+4*u+x}, v{GS+4*u+2+x}")
    for u in range(2):
        S(f"buffer_store_dwordx4 {vr(GS+4*u,4)}, v2, {srd(SOUT)}, s{70+u} offen")
    if cfg.stamps:
        S.wait_vm(0); stamp(S, cfg, 10)
    stamps_store(S, cfg)

def gen(cfg):
    hdr = open(REF).read().split("; Override launch")[0].rstrip("\n")
    L = [hdr, f"; @launch grid=(256,1,1) block=(512,1,1) lds={LDS_BYTES}", '.amdgcn_target "amdgcn-amd-amdhsa--gfx950"',
         ".text", f".globl {NAME}", ".p2align 8", f".type {NAME},@function", f"{NAME}:"]
    P = Stream("pro"); prologue(P, cfg); L += P.finish()
    Ld = Stream("loader"); loader(Ld, cfg); L += Ld.finish()
    L.append(".p2align 6")
    C = Stream("compute"); compute(C, cfg); L += C.finish()
    L += ["L_end:", "    s_endpgm", '.section .rodata,"a"', ".p2align 6", f".amdhsa_kernel {NAME}",
          "  .amdhsa_next_free_vgpr 256", "  .amdhsa_next_free_sgpr 102", "  .amdhsa_accum_offset 256",
          "  .amdhsa_group_segment_fixed_size 0", "  .amdhsa_kernarg_size 104", "  .amdhsa_user_sgpr_count 2",
          "  .amdhsa_user_sgpr_kernarg_segment_ptr 1", "  .amdhsa_system_sgpr_workgroup_id_x 1", ".end_amdhsa_kernel", ""]
    nb = lambda s: sum(1 for x in s.out if not isinstance(x, str) and x.op == "s_barrier")
    sys.stderr.write(f"nops: loader {Ld.nops} compute {C.nops}; barriers: loader {nb(Ld)} compute {nb(C)}\n")
    assert nb(Ld) == nb(C)
    return "\n".join(L)

if __name__ == "__main__":
    cfg = Cfg()
    out = sys.argv[1]
    for a in sys.argv[2:]:
        k, val = a.split("=", 1)
        cur = getattr(Cfg, k)
        if isinstance(cur, bool): val = val in ("1", "true", "True")
        elif isinstance(cur, int): val = int(val)
        elif val == "None": val = None
        setattr(cfg, k, val)
    open(out, "w").write(gen(cfg))
```

```python
import sys, math, struct
from sched import Stream

NAME = "concat_heads__mha_block_cached__gqa_block_cached__near_ridge_kernel"
REF = "concat_heads__mha_block_cached__gqa_block_cached__near_ridge.s.ref"
SLOT = 17408
PITCH = 1056
LDS_BYTES = 9 * SLOT
WS_O, WS_D, WS_DX, WS_FLAG, WS_EPOCH, WS_STAMP = 0, 16 << 20, 32 << 20, 40 << 20, 41 << 20, 48 << 20
WS_SIZE = 64 << 20
SPIN_LIMIT = 1 << 15

def f32(x): return struct.unpack("<I", struct.pack("<f", x))[0]
def vr(n, c=1): return f"v{n}" if c == 1 else f"v[{n}:{n+c-1}]"
def mfma(d, a, b, first=False):
    return f"v_mfma_f32_16x16x32_bf16 {vr(d,4)}, {vr(a,4)}, {vr(b,4)}, {'0' if first else vr(d,4)}"

SX, SWQ, SK, SV, SWO, SWS, SOUT, SDBG = 8, 12, 16, 20, 24, 28, 32, 36
def srd(n): return f"s[{n}:{n+3}]"
S_BLK, S_KQ, S_B, S_P, S_H0, S_W, S_NONCE = 40, 41, 42, 43, 44, 45, 46

class Cfg:
    pol_x = ""; pol_wq = ""; pol_kv = "nt"; pol_wo = ""
    stop = None
    stamps = False
    real = False
    ngrp = 2
    k0_after = 5
    poll0 = 4
    poll1 = 9
    nodma = False
    amp = -1
    ampw = 0
    k0_first = 0
    k0_n = 4
    bdetail = False
    flag0 = 1
    flag1 = 3
    cdetail = 0
    kvsched = 1
    adetail = False
    nokv = False
    nomfma = False
    noread = False

def stamp(S, cfg, idx, det=False):
    if not cfg.stamps: return
    if cfg.cdetail and idx not in (0, 13) and not (det or S.inC): return
    S(f"{'s_memrealtime' if cfg.real else 's_memtime'} s[78:79]")
    S("s_waitcnt lgkmcnt(0)")
    S(f"s_mov_b32 s{80+idx}, s78")

def stamps_store(S, cfg):
    if not cfg.stamps: return
    S("s_memrealtime s[78:79]\ns_waitcnt lgkmcnt(0)\ns_mov_b32 s95, s78")
    stamp(S, cfg, 13)
    S(f"s_lshl_b32 s66, s2, 3\ns_add_u32 s66, s66, s3\ns_lshl_b32 s66, s66, 6\ns_add_u32 s66, s66, {WS_STAMP}")
    S("v_mov_b32 v2, 0")
    S("s_mov_b64 exec, 1")
    for i in range(16):
        S(f"v_mov_b32 v3, s{80+i}")
        S(f"buffer_store_dword v3, v2, {srd(SWS)}, s66 offen offset:{4*i}")
    S("s_mov_b64 exec, -1")

def prologue(S, cfg):
    S(f"""s_cmp_ge_u32 s2, 256
    s_cbranch_scc1 L_end
    s_bfe_u32 s{S_BLK}, s2, 0x10002
    s_mul_i32 s66, s{S_BLK}, 40
    s_add_u32 s4, s0, s66
    s_addc_u32 s5, s1, 0
    s_load_dwordx8 s[48:55], s[4:5], 0
    s_load_dwordx2 s[56:57], s[4:5], 32
    s_load_dwordx4 s[60:63], s[0:1], 80
    s_load_dwordx2 s[64:65], s[0:1], 96
    v_lshrrev_b32 v2, 6, v0
    v_and_b32 v1, 63, v0
    s_and_b32 s{S_KQ}, s2, 3
    v_readfirstlane_b32 s3, v2
    s_bfe_u32 s{S_B}, s2, 0x30003
    s_lshr_b32 s{S_P}, s2, 6
    s_lshl_b32 s{S_H0}, s{S_KQ}, 2
    s_add_u32 s{S_H0}, s{S_H0}, s{S_P}
    s_lshl_b32 s{S_H0}, s{S_H0}, 1
    s_and_b32 s{S_W}, s3, 3""")
    if cfg.stamps:
        for i in range(16): S(f"s_mov_b32 s{80+i}, 0")
        S("s_memrealtime s[78:79]\ns_waitcnt lgkmcnt(0)\ns_mov_b32 s94, s78")
        stamp(S, cfg, 0)
    for d, size in ((SX, 1179648), (SWQ, 4718592), (SK, 8388608), (SV, 8388608), (SWO, 4718592), (SWS, WS_SIZE), (SOUT, 2359296), (SDBG, 256)):
        S(f"s_mov_b32 s{d+2}, {size}\ns_mov_b32 s{d+3}, 0x20000")
    S("s_waitcnt lgkmcnt(0)")
    for d, p in ((SX, 48), (SWQ, 54), (SK, 50), (SV, 52), (SWO, 56), (SWS, 64), (SOUT, 60), (SDBG, 62)):
        S(f"s_mov_b32 s{d}, s{p}\ns_and_b32 s{d+1}, s{p+1}, 0xffff")
    S("s_cmp_lt_u32 s3, 4\ns_cbranch_scc1 L_compute")

def nonce_issue(S, vt, vz):
    S(f"v_mov_b32 v{vz}, 0")
    S(f"buffer_load_dword v{vt}, v{vz}, {srd(SDBG)}, 0 offen sc1")
def nonce_check(S, vt, vz, lab):
    S(f"v_readfirstlane_b32 s{S_NONCE}, v{vt}")
    S(f"s_cmp_lg_u32 s{S_NONCE}, 0\ns_cbranch_scc1 {lab}_ok")
    S(f"s_mov_b32 s77, {SPIN_LIMIT}")
    S.label(f"{lab}_spin")
    S.out += [I for I in _raw(f"""buffer_load_dword v{vt}, v{vz}, {srd(SDBG)}, 0 offen sc1
    s_waitcnt vmcnt(0)
    v_readfirstlane_b32 s{S_NONCE}, v{vt}
    s_nop 4
    s_cmp_lg_u32 s{S_NONCE}, 0
    s_cbranch_scc1 {lab}_ok
    s_sleep 2
    s_sub_u32 s77, s77, 1
    s_cmp_lg_u32 s77, 0
    s_cbranch_scc1 {lab}_spin""")]
    S.label(f"{lab}_ok")
def _raw(text):
    from sched import Ins
    return [Ins(l.strip()) for l in text.split("\n") if l.strip()]

def c_units():
    u = [("M", 0, 0), ("M", 0, 1), ("E", 0, 0), ("M", 1, 0), ("M", 1, 1), ("E", 1, 0)]
    for hh in (0, 1):
        for ii in range(6): u.append(("P", hh, ii))
    return u
BARS = ["B0", "B1", "B2"] + [f"C{i}" for i in range(19)]
def c_plan(cfg):
    units = c_units()
    free = [(8, "B0"), (0, "B0"), (1, "B0"), (2, "B1"), (3, "B1"), (4, "B2"), (5, "B2"), (6, "C0"), (7, "C0")]
    items = [("W", j) for j in range(7)]
    for j in range(6, 18):
        if j + 1 < 18: items.append(("W", j + 1))
        items.append(("O", j))
    slot_of, issue = {}, {b: [] for b in BARS}
    pend = {j: [] for j in range(18)}
    done_units = 0
    for it in items:
        while not free:
            for sl in pend[done_units]: free.append((sl, f"C{done_units+1}"))
            done_units += 1
        sl, rel = free.pop(0)
        if it[0] == "O":
            mn = f"C{cfg.poll0}" if units[it[1]][1] == 0 else f"C{cfg.poll1}"
            if BARS.index(rel) < BARS.index(mn): rel = mn
        assert BARS.index(rel) < BARS.index(f"C{it[1]}"), (it, rel)
        slot_of[it] = sl; issue[rel].append(it); pend[it[1]].append(sl)
    return units, slot_of, issue

def loader(S, cfg):
    VXO, VWO, VKV, VKW, VVW, VMO, VEO, VOO, VFL, VN, VZ = 4, 5, 6, 7, 8, 9, 10, 11, 12, 14, 15
    KVR = 64
    sXb, sWb, sCC, sM, sT, sKV0, sKV1, sOff, sA, sB2 = 66, 67, 68, 69, 71, 72, 73, 74, 75, 70
    S(f"""s_lshl_b32 s{sT}, s{S_W}, 2
    v_lshrrev_b32 v2, 3, v1
    v_lshlrev_b32 v2, 4, v2
    v_add_u32 v2, s{sT}, v2
    v_mul_u32_u24 v3, 1152, v2
    v_and_b32 v13, 7, v1
    v_lshl_add_u32 v{VXO}, v13, 4, v3
    s_and_b32 s76, s{S_W}, 1
    s_lshl_b32 s76, s76, 3
    s_lshl_b32 s77, s{S_W}, 1
    s_and_b32 s77, s77, 4
    s_add_u32 s76, s76, s77
    v_lshrrev_b32 v2, 5, v1
    v_lshlrev_b32 v2, 4, v2
    v_add_u32 v2, s76, v2
    v_lshlrev_b32 v2, 13, v2
    v_and_b32 v13, 31, v1
    v_lshl_add_u32 v{VWO}, v13, 4, v2
    s_mul_i32 s{sM}, s{sT}, {PITCH}
    v_add_u32 v{VEO}, 1024, v{VXO}""")
    if cfg.ngrp > 1:
        starts = [round(9 * i / cfg.ngrp) for i in range(cfg.ngrp)]
        S(f"s_add_u32 s76, s{S_B}, s{S_P}\ns_add_u32 s76, s76, s{S_KQ}")
        tab = sum(starts[i % cfg.ngrp] << (4 * i) for i in range(16))
        S(f"s_mov_b32 s{sA}, {tab & 0xffffffff}\ns_mov_b32 s{sA+1}, {tab >> 32}" .replace(f"s{sA+1}", "s77"))
        S(f"s_lshl_b32 s76, s76, 2\ns_cmp_ge_u32 s76, 32\ns_cselect_b32 s{sA}, s77, s{sA}\ns_and_b32 s76, s76, 31\ns_lshr_b32 s{sCC}, s{sA}, s76\ns_and_b32 s{sCC}, s{sCC}, 15")
    else:
        S(f"s_mov_b32 s{sCC}, 0")
    def chunk(c):
        base = (c % 3) * 3 * SLOT
        S(f"""s_mul_i32 s{sXb}, s{S_B}, 147456
        s_lshl_b32 s76, s{sCC}, 7
        s_add_u32 s{sXb}, s{sXb}, s76
        s_lshl_b32 s{sWb}, s{sCC}, 19
        s_lshl_b32 s76, s{S_H0}, 8
        s_add_u32 s{sWb}, s{sWb}, s76""")
        for i in range(4):
            S(f"s_add_u32 m0, s{sM}, {base + i*PITCH}\ns_add_u32 s{sT}, s{sXb}, {i*1152}")
            S(f"buffer_load_dwordx4 v{VXO}, {srd(SX)}, s{sT} offen {cfg.pol_x} lds", tag=f"ch{c}")
        for st in range(2):
            for i in range(4):
                S(f"s_add_u32 m0, s{sM}, {base + SLOT*(1+st) + i*PITCH}\ns_add_u32 s{sT}, s{sWb}, {(32*st+i)*8192}")
                S(f"buffer_load_dwordx4 v{VWO}, {srd(SWQ)}, s{sT} offen {cfg.pol_wq} lds", tag=f"ch{c}")
        S(f"s_add_u32 s{sCC}, s{sCC}, 1\ns_cmp_eq_u32 s{sCC}, 9\ns_cselect_b32 s{sCC}, 0, s{sCC}")
    def kv_load(m, j0=0, j1=8):
        if cfg.nokv: return
        sr = SK if m < 2 else SV
        sb = sKV0 if m % 2 == 0 else sKV1
        for j in range(j0, j1):
            if j == max(4, j0): S(f"s_add_u32 s{sT}, s{sb}, 4096")
            so = sb if j < 4 else sT
            S(f"buffer_load_dwordx4 {vr(KVR+32*m+4*j,4)}, v{VKV}, {srd(sr)}, s{so} offen offset:{(j&3)*1024} {cfg.pol_kv}", tag=f"kv{m}")
    def kv_write(m, slot):
        if m < 2:
            for j in range(8):
                S(f"v_add_u32 v2, {slot*SLOT + j*4*PITCH}, v{VKW}")
                S(f"ds_write2_b64 v2, {vr(KVR+32*m+4*j,2)}, {vr(KVR+32*m+4*j+2,2)} offset0:0 offset1:2")
        else:
            S(f"v_add_u32 v2, {slot*SLOT}, v{VVW}")
            for j in range(8):
                S(f"ds_write_b128 v2, {vr(KVR+32*m+4*j,4)} offset:{j*4*PITCH}")
    chunk(0)
    stamp(S, cfg, 1)
    S(f"""s_lshl_b32 s76, s{S_W}, 13
    v_lshlrev_b32 v2, 4, v1
    v_add_u32 v{VKV}, s76, v2
    s_lshl_b32 s{sKV0}, s{S_B}, 5
    s_add_u32 s{sKV0}, s{sKV0}, s{S_H0}
    s_lshl_b32 s{sKV0}, s{sKV0}, 15
    s_add_u32 s{sKV1}, s{sKV0}, 32768
    v_lshrrev_b32 v2, 4, v1
    v_mul_u32_u24 v13, {PITCH}, v2
    s_lshl_b32 s76, s{S_W}, 8
    v_add_u32 v13, s76, v13
    v_and_b32 v3, 15, v1
    v_lshl_add_u32 v{VVW}, v3, 4, v13
    v_bfe_u32 v3, v1, 2, 2
    v_lshl_add_u32 v13, v3, 6, v13
    v_and_b32 v3, 1, v1
    v_lshl_add_u32 v13, v3, 5, v13
    v_bfe_u32 v3, v1, 1, 1
    v_lshl_add_u32 v{VKW}, v3, 3, v13""")
    S(f"""v_lshlrev_b32 v2, 4, v2
    s_lshl_b32 s76, s{S_W}, 2
    v_add_u32 v2, s76, v2
    v_mul_u32_u24 v2, 1152, v2
    v_lshlrev_b32 v3, 4, v1
    s_lshl_b32 s76, s{S_KQ}, 6
    v_add_u32 v3, s76, v3
    v_and_b32 v3, 0xff, v3
    v_add_u32 v{VMO}, v2, v3
    v_lshlrev_b32 v{VOO}, 4, v1
    v_min_u32 v2, 2, v1
    v_add3_u32 v2, v2, s{S_P}, 1
    v_and_b32 v2, 3, v2
    v_lshlrev_b32 v2, 6, v2
    s_and_b32 s76, s2, 63
    v_add_u32 v2, s76, v2
    v_lshlrev_b32 v2, 2, v2
    v_add_u32 v2, s{S_W}, v2
    v_lshlrev_b32 v{VFL}, 8, v2
    s_mul_i32 s{sOff}, s{S_B}, 3
    s_lshr_b32 s{sOff}, s{sOff}, 2""")
    S.wait_vm(8)
    chunk(1)
    for c in range(9):
        S.wait_vm_tag(f"ch{c}")
        if c == 8: S.wait_lg(0)
        if cfg.adetail: stamp(S, cfg, 2 + c)
        elif c in (0, 1, 2, 8): stamp(S, cfg, {0: 2, 1: 3, 2: 4, 8: 5}[c])
        S("s_barrier")
        if c <= 6:
            k = c - cfg.k0_first
            if cfg.k0_n == 4 and 0 <= k < 4: kv_load(0, 2 * k, 2 * k + 2)
            if cfg.k0_n == 2 and 0 <= k < 2: kv_load(0, 4 * k, 4 * k + 4)
            if cfg.k0_n == 1 and k == 0: kv_load(0)
            if not cfg.nodma: chunk(c + 2)
        if c == 4: nonce_issue(S, VN, VZ)
        if c == 6: kv_load(1)
        if c == 7: kv_write(0, 0); kv_load(2)
    nonce_check(S, VN, VZ, "L_ln")
    if cfg.stop == "A":
        S.wait_vm(0); stamps_store(S, cfg); S("s_branch L_end"); return
    units, slot_of, issue = c_plan(cfg)
    def c_issue(it):
        kind, j = it
        uk, hh, x = units[j]
        sl = slot_of[it] * SLOT
        tag = f"u{j}"
        if uk in ("M", "E"):
            row = hh * 128 + (64 * x if uk == "M" else 0)
            S(f"s_lshl_b32 s{sA}, s{S_H0}, 7\ns_add_u32 s{sA}, s{sA}, {row}\ns_mul_i32 s{sA}, s{sA}, 1152")
            if uk == "M": S(f"s_lshl_b32 s76, s{S_P}, 8\ns_add_u32 s{sA}, s{sA}, s76")
            va = VMO if uk == "M" else VEO
            for i in range(4):
                S(f"s_add_u32 m0, s{sM}, {sl + i*PITCH}\ns_add_u32 s{sT}, s{sA}, {i*1152}")
                S(f"buffer_load_dwordx4 v{va}, {srd(SWO)}, s{sT} offen {cfg.pol_wo} lds", tag=tag)
            return
        S(f"""s_add_u32 s76, s{sOff}, {x}
        s_sub_u32 s77, s76, 6
        s_cmp_ge_u32 s76, 6
        s_cselect_b32 s76, s77, s76
        s_lshr_b32 s77, s76, 1
        s_add_u32 s77, s77, s{S_P}
        s_add_u32 s77, s77, 1
        s_and_b32 s77, s77, 3
        s_and_b32 s76, s76, 1""")
        if kind == "W":
            S(f"""s_lshl_b32 s{sA}, s{S_KQ}, 2
            s_add_u32 s{sA}, s{sA}, s77
            s_lshl_b32 s{sA}, s{sA}, 2
            s_add_u32 s{sA}, s{sA}, s76
            s_add_u32 s{sA}, s{sA}, {2*hh}
            s_mul_i32 s{sA}, s{sA}, {64*1152}
            s_lshl_b32 s76, s{S_P}, 8
            s_add_u32 s{sA}, s{sA}, s76""")
            for i in range(4):
                S(f"s_add_u32 m0, s{sM}, {sl + i*PITCH}\ns_add_u32 s{sT}, s{sA}, {i*1152}")
                S(f"buffer_load_dwordx4 v{VMO}, {srd(SWO)}, s{sT} offen {cfg.pol_wo} lds", tag=tag)
        else:
            S(f"""s_lshl_b32 s77, s77, 6
            s_and_b32 s{sA}, s2, 63
            s_add_u32 s{sA}, s{sA}, s77
            s_lshl_b32 s{sA}, s{sA}, 2
            s_add_u32 s{sA}, s{sA}, s{S_W}
            s_lshl_b32 s{sA}, s{sA}, 2
            s_add_u32 s{sA}, s{sA}, s76
            s_add_u32 s{sA}, s{sA}, {2*hh}
            s_lshl_b32 s{sA}, s{sA}, 12
            s_lshl_b32 s{sB2}, s{S_W}, 12""")
            for i in range(4):
                S(f"s_add_u32 m0, s{sB2}, {sl + i*1024}\ns_add_u32 s{sT}, s{sA}, {WS_O + i*1024}")
                S(f"buffer_load_dwordx4 v{VOO}, {srd(SWS)}, s{sT} offen sc1 lds", tag=tag)
    def poll_issue(hh):
        S(f"s_mov_b32 s76, {WS_FLAG}")
        S(f"buffer_load_dword v{16+hh}, v{VFL}, {srd(SWS)}, s76 offen offset:{128*hh} sc1")
    def poll(hh):
        lab = f"L_poll{hh}"
        S(f"v_cmp_eq_u32 vcc, s{S_NONCE}, v{16+hh}")
        S(f"s_cmp_eq_u64 vcc, -1\ns_cbranch_scc1 {lab}_ok")
        S(f"s_mov_b32 s76, {WS_FLAG}\ns_mov_b32 s77, {SPIN_LIMIT}")
        S.label(lab)
        S.out += _raw(f"""buffer_load_dword v{16+hh}, v{VFL}, {srd(SWS)}, s76 offen offset:{128*hh} sc1
        s_waitcnt vmcnt(0)
        v_cmp_eq_u32 vcc, s{S_NONCE}, v{16+hh}
        s_nop 4
        s_cmp_eq_u64 vcc, -1
        s_cbranch_scc1 {lab}_ok
        s_sub_u32 s77, s77, 1
        s_cmp_lg_u32 s77, 0
        s_cbranch_scc1 {lab}""")
        S.label(f"{lab}_ok")
    kv_write(1, 2)
    kv_load(3)
    S.wait_lg(0)
    stamp(S, cfg, 6)
    S("s_barrier")
    kv_write(2, 4)
    if cfg.stop != "B":
        for it in issue["B0"]: c_issue(it)
    S.wait_lg(0)
    stamp(S, cfg, 12)
    S("s_barrier")
    kv_write(3, 6)
    if cfg.stop != "B":
        for it in issue["B1"]: c_issue(it)
    S.wait_lg(0)
    stamp(S, cfg, 7)
    S("s_barrier")
    if cfg.stop == "B":
        S.wait_vm(0); stamps_store(S, cfg); S("s_branch L_end"); return
    for it in issue["B2"]: c_issue(it)
    S.inC = True
    for i in range(18):
        S.wait_vm_tag(f"u{i}")
        if cfg.cdetail:
            if 0 <= i - (cfg.cdetail - 1) < 12: stamp(S, cfg, 1 + i - (cfg.cdetail - 1))
        elif i in (0, 6, 12, 17): stamp(S, cfg, {0: 8, 6: 9, 12: 10, 17: 11}[i])
        S("s_barrier")
        if i == cfg.poll0 - 1: poll_issue(0)
        if i == cfg.poll1 - 1: poll_issue(1)
        for it in issue[f"C{i}"]:
            if it[0] == "W": c_issue(it)
        if i == cfg.poll0: poll(0)
        if i == cfg.poll1: poll(1)
        for it in issue[f"C{i}"]:
            if it[0] == "O": c_issue(it)
    S(f"s_cmp_lg_u32 s{S_W}, 0\ns_cbranch_scc1 L_lfin")
    R = 64
    S(f"""v_and_b32 v2, 7, v1
    v_bfe_u32 v3, v1, 3, 2
    v_lshl_add_u32 v2, v3, 4, v2
    s_and_b32 s76, s{S_P}, 1
    s_lshl_b32 s76, s76, 3
    v_add_u32 v2, s76, v2
    v_lshlrev_b32 v2, 4, v2
    v_lshrrev_b32 v3, 5, v1
    v_mul_u32_u24 v3, {4*6*1024}, v3
    v_add_u32 v4, v2, v3
    s_lshl_b32 s{sA}, s{S_BLK}, 3
    s_add_u32 s{sA}, s{sA}, s{S_B}
    s_lshl_b32 s{sA}, s{sA}, 6
    s_add_u32 s{sA}, s{sA}, s{S_KQ}
    s_mul_i32 s{sA}, s{sA}, 6144
    s_lshr_b32 s76, s{S_P}, 1
    s_mul_i32 s76, s76, 3072
    s_add_u32 s{sA}, s{sA}, s76
    s_add_u32 s{sA}, s{sA}, {WS_DX}
    s_mov_b32 s77, {SPIN_LIMIT}""")
    S.label("L_dx")
    for r in range(8):
        S(f"s_add_u32 s{sT}, s{sA}, {r*2*4*6*1024}")
        for gm in range(3):
            S(f"buffer_load_dwordx4 {vr(R+12*r+4*gm,4)}, v4, {srd(SWS)}, s{sT} offen offset:{gm*1024} sc1")
    S(f"v_xor_b32 v5, s{S_NONCE}, v{R+3}")
    for i in range(1, 24):
        S(f"v_xor_b32 v6, s{S_NONCE}, v{R+4*i+3}\nv_or_b32 v5, v5, v6")
    S("v_cmp_eq_u32 vcc, 0, v5\ns_cmp_eq_u64 vcc, -1\ns_cbranch_scc1 L_dx_ok")
    S("s_sleep 1\ns_sub_u32 s77, s77, 1\ns_cmp_lg_u32 s77, 0\ns_cbranch_scc1 L_dx")
    S.label("L_dx_ok")
    AC = 16
    pay = [0, 1, 2, 4, 5, 6, 8, 9]
    for r in range(8):
        for d in range(8):
            src = R + 12 * r + pay[d]
            if r == 0:
                S(f"v_lshlrev_b32 v{AC+2*d}, 16, v{src}\nv_and_b32 v{AC+2*d+1}, 0xffff0000, v{src}")
            else:
                S(f"v_lshlrev_b32 v6, 16, v{src}\nv_and_b32 v7, 0xffff0000, v{src}\nv_add_f32 v{AC+2*d}, v{AC+2*d}, v6\nv_add_f32 v{AC+2*d+1}, v{AC+2*d+1}, v7")
    for i in range(8): S(f"v_permlane32_swap_b32 v{AC+i}, v{AC+8+i}")
    for i in range(8): S(f"v_add_f32 v{AC+i}, v{AC+i}, v{AC+8+i}")
    for i in range(4): S(f"v_cvt_pk_bf16_f32 v{32+i}, v{AC+2*i}, v{AC+2*i+1}")
    S(f"""v_and_b32 v2, 7, v1
    s_lshl_b32 s76, s{S_B}, 7
    s_lshl_b32 s77, s{S_KQ}, 5
    s_add_u32 s76, s76, s77
    s_lshl_b32 s77, s{S_P}, 3
    s_add_u32 s76, s76, s77
    v_add_u32 v2, s76, v2
    v_mul_u32_u24 v2, 2304, v2
    v_bfe_u32 v3, v1, 3, 2
    v_lshl_add_u32 v2, v3, 3, v2
    v_lshrrev_b32 v3, 5, v1
    v_lshl_add_u32 v2, v3, 6, v2
    s_mul_i32 s76, s{S_BLK}, 1152
    s_add_u32 s76, s76, 1024
    buffer_store_dwordx2 v[32:33], v2, {srd(SOUT)}, s76 offen
    buffer_store_dwordx2 v[34:35], v2, {srd(SOUT)}, s76 offen offset:32""")
    S.label("L_lfin")
    S("s_waitcnt vmcnt(0)")
    stamps_store(S, cfg)
    S("s_branch L_end")

class Pipe:
    def __init__(self, S, lead):
        self.S, self.lead = S, lead
    def run(self, groups, fill=None, start=0, maxrd=2, tail=None):
        S = self.S
        queue = []
        for gi in range(start, len(groups)):
            g = groups[gi]
            if g.get("epoch"): queue.append((gi, g["epoch"]))
            for r in g.get("pre", []) + g["reads"]: queue.append((gi, r))
        for r in (tail or []): queue.append((len(groups) + 0, r))
        nm = [len(g["mf"]) for g in groups]
        pos = [sum(nm[:i]) for i in range(len(groups) + 1)]
        fl = {}
        for (g0, g1, ins) in (fill or []):
            a, b = pos[g0], pos[g1]
            for k, x in enumerate(ins):
                fl.setdefault(a + (k * (b - a)) // len(ins), []).append(x)
        since_read = 99
        m = 0
        for gi, g in enumerate(groups):
            while queue and queue[0][0] <= gi:
                x = queue.pop(0)[1]
                x() if callable(x) else S(x)
            for mf in g["mf"]:
                S(mf)
                since_read += 1
                n = 0
                while queue and n < maxrd and queue[0][0] <= gi + self.lead:
                    x = queue[0][1]
                    if callable(x):
                        if since_read < 5: break
                        queue.pop(0); x(); n += 1
                        continue
                    behind = queue[0][0] < gi + self.lead
                    if n >= 1 and not behind: break
                    queue.pop(0); S(x); n += 1; since_read = 0
                for x in fl.get(m, []): S(*x) if isinstance(x, tuple) else S(x)
                m += 1
        for _, x in queue:
            x() if callable(x) else S(x)

def compute(S, cfg):
    VX, VW = [4, 5, 6], [7, 8, 9]
    VK0, VK1, VV0, VV1, VOST, VZ, VN = 10, 11, 12, 13, 14, 15, 16
    VM0, VM1, VT, VL0, VL1 = 17, 18, 19, 20, 21
    VRC = [[56, 57], [58, 59]]
    QP = lambda h: 64 + 32 * h
    sC = 47
    S.label("L_compute")
    S(f"v_mov_b32 v{VZ}, 0")
    S(f"s_or_b32 s66, s2, s3\ns_cmp_lg_u32 s66, 0\ns_cbranch_scc1 L_notag")
    S.out += _raw(f"""s_mov_b32 s66, {WS_EPOCH}
    buffer_load_dword v2, v{VZ}, {srd(SWS)}, s66 offen sc1
    s_waitcnt vmcnt(0)
    v_add_u32 v2, 1, v2
    v_max_u32 v2, 1, v2
    buffer_store_dword v2, v{VZ}, {srd(SWS)}, s66 offen sc1
    buffer_store_dword v2, v{VZ}, {srd(SDBG)}, 0 offen sc1
    s_waitcnt vmcnt(0)""")
    S.label("L_notag")
    S(f"""v_and_b32 v22, 15, v1
    v_lshrrev_b32 v23, 4, v1
    v_mul_u32_u24 v2, {PITCH}, v22
    v_lshl_add_u32 v{VK0}, v23, 4, v2
    v_add_u32 v{VK1}, {2*SLOT}, v{VK0}
    s_lshl_b32 s66, s{S_W}, 8
    v_add_u32 v{VX[0]}, s66, v{VK0}
    v_add_u32 v{VX[1]}, {3*SLOT}, v{VX[0]}
    v_add_u32 v{VX[2]}, {6*SLOT}, v{VX[0]}
    v_bfe_u32 v2, v1, 2, 3
    v_mul_u32_u24 v2, {PITCH}, v2
    v_lshrrev_b32 v3, 5, v1
    v_lshl_add_u32 v2, v3, 9, v2
    v_and_b32 v3, 3, v1
    v_lshl_add_u32 v2, v3, 3, v2
    v_add_u32 v{VW[0]}, {SLOT}, v2
    v_add_u32 v{VW[1]}, {4*SLOT}, v2
    v_add_u32 v{VW[2]}, {7*SLOT}, v2
    v_lshrrev_b32 v2, 2, v1
    v_mul_u32_u24 v2, {PITCH}, v2
    v_lshl_add_u32 v2, v3, 3, v2
    v_add_u32 v{VV0}, {4*SLOT}, v2
    v_add_u32 v{VV1}, {6*SLOT}, v2
    s_lshl_b32 s66, s2, 16
    s_lshl_b32 s67, s{S_W}, 14
    s_add_u32 s66, s66, s67
    v_lshlrev_b32 v{VOST}, 4, v1
    v_add_u32 v{VOST}, s66, v{VOST}
    s_mov_b32 s{sC}, {f32(math.log2(math.e) / math.sqrt(128.0))}""")
    def bar(fn=None):
        def f():
            S.wait_lg(0)
            if fn: fn()
            S("s_barrier")
        return f
    ACC = lambda t, u: 128 + 8 * t + 4 * u
    ARING = [96, 104, 112, 120, 56]
    XF = lambda c, s, u: 24 + 16 * (c & 1) + 8 * s + 4 * u
    groups = []
    for c in range(9):
        for t in range(16):
            n = 16 * c + t
            rg = ARING[n % 5]
            g = dict(reads=[f"ds_read_b64_tr_b16 {vr(rg+4*s+2*rd,2)}, v{VW[c%3]} offset:{s*SLOT + rd*8*PITCH + 32*t}" for s in range(2) for rd in range(2)],
                     mf=[mfma(ACC(t, u), rg + 4*s, XF(c, s, u), first=(c == 0 and s == 0)) for u in range(2) for s in range(2)])
            if t == 0:
                g["epoch"] = bar((lambda: stamp(S, cfg, 1)) if c == 0 else None) if c else None
                g["pre"] = [f"ds_read_b128 {vr(XF(c,s,u),4)}, v{VX[c%3]} offset:{128*u + 64*s}" for s in range(2) for u in range(2)]
            groups.append(g)
    KR = lambda i: 24 + 4 * ((i + 4) & 7)
    def k_read(h, i):
        kt, s = i >> 2, i & 3
        return f"ds_read_b128 {vr(KR(i),4)}, v{VK0 if h == 0 else VK1} offset:{(kt&1)*16*PITCH + (kt>>1)*256 + 64*s}"
    def v_reads(h, i):
        dt, j = i >> 2, i & 3
        return [f"ds_read_b64_tr_b16 {vr(KR(i)+2*rd,2)}, v{VV0 if h == 0 else VV1} offset:{rd*16*PITCH + j*256 + 32*dt}" for rd in range(2)]
    def pack(dst, src):
        return [f"v_cvt_pk_bf16_f32 v{dst+8*s+4*u+2*e+x}, v{src+8*(2*s+e)+4*u+2*x}, v{src+8*(2*s+e)+4*u+2*x+1}" for s in range(4) for u in range(2) for e in range(2) for x in range(2)]
    S("s_barrier")
    stamp(S, cfg, 1)
    if cfg.nomfma:
        for g in groups: g['mf'] = ['s_nop 0'] * 4
    if cfg.noread:
        for g in groups[5:]: g['reads'] = []; g['pre'] = []
    P = Pipe(S, 4)
    P.run(groups, fill=[(138, 144, pack(QP(0), 128))], tail=[k_read(0, i) for i in range(4)])
    stamp(S, cfg, 2)
    if cfg.stop == "A":
        for x in pack(QP(1), 192): S(x)
        for i in range(16):
            S(f"s_mov_b32 s66, {i*1024}")
            S(f"buffer_store_dwordx4 {vr(64+4*i,4)}, v{VOST}, {srd(SWS)}, s66 offen")
        S.wait_vm(0); stamps_store(S, cfg); S("s_branch L_end"); return
    SS = lambda h: 128 + 64 * h
    def qk_groups(h):
        return [dict(reads=[k_read(h, 4*kt+s) for s in range(4)],
                     mf=[mfma(SS(h)+8*kt+4*u, KR(4*kt+s), QP(h)+8*s+4*u, first=(s == 0)) for u in range(2) for s in range(4)]) for kt in range(8)]
    def pv_groups(h):
        return [dict(reads=[r for j in range(4) for r in v_reads(h, 4*dt+j)],
                     mf=[mfma(SS(h)+8*dt+4*u, KR(4*dt+j), QP(h)+8*j+4*u, first=(j == 0)) for u in range(2) for j in range(4)]) for dt in range(8)]
    def fold(op, a, b):
        return [f"v_permlane32_swap_b32 v{a}, v{b}", f"{op} v{a}, v{a}, v{b}", f"v_mov_b32 v{b}, v{a}",
                f"v_permlane16_swap_b32 v{a}, v{b}", f"{op} v{a}, v{a}, v{b}", f"v_mov_b32 v{b}, v{a}",
                f"v_permlane32_swap_b32 v{a}, v{b}"]
    def softmax(h):
        s = SS(h)
        el = [[s + 8*kt + 4*u + r for kt in range(8) for r in range(4)] for u in range(2)]
        VM, VL = [VM0, VM1], [VL0, VL1]
        o = []
        for i in range(16):
            for u in range(2):
                e = el[u]
                if i == 0: o.append(f"v_max3_f32 v{VM[u]}, v{e[0]}, v{e[1]}, v{e[2]}")
                elif i < 15: o.append(f"v_max3_f32 v{VM[u]}, v{VM[u]}, v{e[2*i+1]}, v{e[2*i+2]}")
                else: o.append(f"v_max_f32 v{VM[u]}, v{VM[u]}, v{e[31]}")
        o += fold("v_max_f32", VM0, VM1)
        o += [f"v_mul_f32 v{VM0}, s{sC}, v{VM0}", f"v_mul_f32 v{VM1}, s{sC}, v{VM1}"]
        order = [(kt, u, r) for kt in range(8) for u in range(2) for r in range(4)]
        D = 2
        for i in range(64 + 2 * D):
            if i < 64:
                kt, u, r = order[i]; x = s + 8*kt + 4*u + r
                o.append(f"v_fma_f32 v{x}, v{x}, s{sC}, -v{VM[u]}")
            j = i - D
            if 0 <= j < 64:
                kt, u, r = order[j]; x = s + 8*kt + 4*u + r
                o.append(f"v_exp_f32 v{x}, v{x}")
            j = i - 2 * D
            if 0 <= j < 64:
                kt, u, r = order[j]; x = s + 8*kt + 4*u + r
                if kt == 0 and r == 0: pass
                elif kt == 0 and r == 1: o.append(f"v_add_f32 v{VL[u]}, v{x-1}, v{x}")
                else: o.append(f"v_add_f32 v{VL[u]}, v{VL[u]}, v{x}")
                if r & 1: o.append(f"v_cvt_pk_bf16_f32 v{QP(h)+8*(kt>>1)+4*u+2*(kt&1)+(r>>1)}, v{x-1}, v{x}")
        o += fold("v_add_f32", VL0, VL1)
        o += [f"v_rcp_f32 v{VRC[h][0]}, v{VL0}", f"v_rcp_f32 v{VRC[h][1]}, v{VL1}"]
        return o
    def o_pack(h):
        s = SS(h); o = []
        pk = pack(QP(h), s)
        for st in range(4):
            for u in range(2):
                for e in range(2):
                    for r in range(4):
                        x = s + 8*(2*st+e) + 4*u + r
                        o.append(f"v_mul_f32 v{x}, v{x}, v{VRC[h][u]}")
                i = 2 * st + u
                o += pk[4*i:4*i+4]
                so = h * 8192 + i * 1024
                o.append(f"s_mov_b32 s66, {WS_O + (so & ~4095)}")
                o.append((f"buffer_store_dwordx4 {vr(QP(h)+4*i,4)}, v{VOST}, {srd(SWS)}, s66 offen offset:{so & 4095} sc1", f"o{h}"))
        return o
    def flag(h):
        S.wait_vm_tag(f"o{h}")
        S(f"""s_lshl_b32 s68, s2, 2
        s_add_u32 s68, s68, s{S_W}
        s_lshl_b32 s68, s68, 8
        s_add_u32 s68, s68, {WS_FLAG + 128*h}
        v_mov_b32 v{VT}, s{S_NONCE}
        buffer_store_dword v{VT}, v{VZ}, {srd(SWS)}, s68 offen sc1""")
    PB = Pipe(S, 1)
    nonce_issue(S, VN, VZ)
    PB.run(qk_groups(0), fill=[(0, 8, pack(QP(1), 192))], start=1)
    S.wait_lg(0); stamp(S, cfg, 3)
    S("s_barrier")
    if cfg.bdetail: stamp(S, cfg, 8)
    PB.run(qk_groups(1), fill=[(0, 8, softmax(0))])
    S.wait_lg(0); stamp(S, cfg, 4)
    S("s_barrier")
    if cfg.bdetail: stamp(S, cfg, 9)
    PB.run(pv_groups(0), fill=[(0, 8, softmax(1))])
    nonce_check(S, VN, VZ, "L_cn")
    S.wait_lg(0); stamp(S, cfg, 5)
    S("s_barrier")
    if cfg.bdetail: stamp(S, cfg, 10)
    PB.run(pv_groups(1), fill=[(0, 6, o_pack(0))])
    stamp(S, cfg, 6)
    if cfg.stop == "B":
        for x in o_pack(1): S(*x) if isinstance(x, tuple) else S(x)
        S.wait_vm(0); stamp(S, cfg, 7); stamps_store(S, cfg); S("s_branch L_end"); return
    units, slot_of, issue = c_plan(cfg)
    VA, VB = [4, 5, 6], [7, 8, 9]
    S(f"""v_add_u32 v{VA[0]}, {-4*SLOT & 0xffffffff}, v{VV0}
    v_add_u32 v{VA[1]}, {-1*SLOT & 0xffffffff}, v{VV0}
    v_add_u32 v{VA[2]}, {2*SLOT}, v{VV0}
    s_lshl_b32 s66, s{S_W}, 12
    v_lshlrev_b32 v{VB[0]}, 4, v1
    v_add_u32 v{VB[0]}, s66, v{VB[0]}
    v_add_u32 v{VB[1]}, {3*SLOT}, v{VB[0]}
    v_add_u32 v{VB[2]}, {6*SLOT}, v{VB[0]}""")
    MC = lambda nt, u: 128 + 8 * nt + 4 * u
    EC = lambda nt, u: 192 + 8 * nt + 4 * u
    RING_OWN = [24, 32, 40, 48]
    RING_PEER = [224, 232, 240, 248, 96]
    OB = lambda j, s, u: 64 + 16 * (j & 1) + 8 * s + 4 * u
    def cbar(j):
        def fn():
            if j == cfg.flag0: flag(0)
            if j == cfg.flag1: flag(1)
            if cfg.cdetail and 0 <= j - (cfg.cdetail - 1) < 12: stamp(S, cfg, 1 + j - (cfg.cdetail - 1), True)
        return bar(fn)
    own, peer = [], []
    for j, (uk, hh, x) in enumerate(units):
        sl = slot_of[("W", j)]
        va, so = VA[sl // 3], (sl % 3) * SLOT
        lst = own if j < 6 else peer
        ring = RING_OWN if j < 6 else RING_PEER
        if uk == "E":
            for nt in range(4):
                for sp in range(2):
                    rg = ring[len(lst) % len(ring)]
                    g = dict(reads=[f"ds_read_b64_tr_b16 {vr(rg+4*s+2*rd,2)}, v{va} offset:{so + (2*(2*sp+s)+rd)*128 + 32*nt}" for s in range(2) for rd in range(2)],
                             mf=[mfma(EC(nt, u), rg + 4*s, QP(hh) + 8*(2*sp+s) + 4*u, first=(hh == 0 and sp == 0 and s == 0)) for u in range(2) for s in range(2)])
                    if nt == 0 and sp == 0: g["epoch"] = cbar(j)
                    lst.append(g)
        else:
            for nt in range(8):
                rg = ring[len(lst) % len(ring)]
                bf = (lambda s, u: QP(hh) + 8*(2*x+s) + 4*u) if uk == "M" else (lambda s, u: OB(j, s, u))
                g = dict(reads=[f"ds_read_b64_tr_b16 {vr(rg+4*s+2*rd,2)}, v{va} offset:{so + (2*s+rd)*256 + 32*nt}" for s in range(2) for rd in range(2)],
                         mf=[mfma(MC(nt, u), rg + 4*s, bf(s, u), first=(j == 0 and s == 0)) for u in range(2) for s in range(2)])
                if nt == 0:
                    g["epoch"] = cbar(j)
                    if uk == "P":
                        so2 = slot_of[("O", j)]
                        g["pre"] = [f"ds_read_b128 {vr(OB(j,s,u),4)}, v{VB[so2//3]} offset:{(so2%3)*SLOT + (2*s+u)*1024}" for s in range(2) for u in range(2)]
                lst.append(g)

    GX = 24
    dx = []
    for gm in range(6): dx.append(f"v_mov_b32 v{GX+4*gm+3}, s{S_NONCE}")
    pay = [0, 1, 2, 4, 5, 6, 8, 9]
    for u in range(2):
        for nt in range(4):
            for x in range(2):
                dx.append(f"v_cvt_pk_bf16_f32 v{GX+12*u+pay[2*nt+x]}, v{EC(nt,u)+2*x}, v{EC(nt,u)+2*x+1}")
    dx += [f"s_lshl_b32 s66, s{S_BLK}, 3", f"s_add_u32 s66, s66, s{S_B}", "s_lshl_b32 s66, s66, 4", f"s_lshr_b32 s67, s{S_H0}, 1", "s_add_u32 s66, s66, s67",
           "s_lshl_b32 s66, s66, 2", f"s_add_u32 s66, s66, s{S_W}", "s_mul_i32 s66, s66, 6144", f"s_add_u32 s66, s66, {WS_DX}", "s_add_u32 s67, s66, 3072",
           f"v_lshlrev_b32 v{VT}, 4, v1"]
    for gm in range(6):
        dx.append(f"buffer_store_dwordx4 {vr(GX+4*gm,4)}, v{VT}, {srd(SWS)}, s{66 + gm//3} offen offset:{(gm%3)*1024} sc1")
    allg = own + peer
    PC = Pipe(S, 3)
    PC.run(allg, fill=[(1, 15, o_pack(1)), (52, 60, dx)])
    stamp(S, cfg, 7)
    GS, GR = 24, 64
    d = []
    for i in range(9): S(f"v_mov_b32 v{GS+4*i+3}, s{S_NONCE}")
    S(f"""s_and_b32 s68, s2, {~3 & 0xffffffff}
    s_mul_i32 s69, s{S_W}, 9216
    s_add_u32 s69, s69, {WS_D}""")
    for tau in range(1, 4):
        S(f"""s_add_u32 s66, s{S_KQ}, {tau}
        s_and_b32 s66, s66, 3
        s_add_u32 s66, s66, s68
        s_mul_i32 s66, s66, 36864
        s_add_u32 s66, s66, s69
        s_add_u32 s66, s66, {(tau-1)*3072}""")
        for u in range(2):
            for e in range(2):
                for x in range(2):
                    S(f"v_cvt_pk_bf16_f32 v{GS+12*(tau-1)+pay[4*u+2*e+x]}, v{MC(2*tau+e,u)+2*x}, v{MC(2*tau+e,u)+2*x+1}")
        for gm in range(3):
            S(f"buffer_store_dwordx4 {vr(GS+12*(tau-1)+4*gm,4)}, v{VT}, {srd(SWS)}, s66 offen offset:{gm*1024} sc1")
    S(f"s_mul_i32 s66, s2, 36864\ns_add_u32 s66, s66, s69\ns_add_u32 s67, s66, 4096\ns_add_u32 s68, s66, 8192\ns_mov_b32 s77, {SPIN_LIMIT}")
    S(f"""s_lshl_b32 s70, s{S_B}, 2
    s_add_u32 s70, s70, s{S_W}
    s_lshl_b32 s70, s70, 5
    v_add_u32 v2, s70, v22
    v_mul_u32_u24 v2, 2304, v2
    v_and_b32 v3, 1, v23
    v_lshl_add_u32 v2, v3, 5, v2
    v_lshrrev_b32 v3, 1, v23
    v_lshl_add_u32 v2, v3, 4, v2
    s_mul_i32 s70, s{S_BLK}, 1152
    s_lshl_b32 s71, s{S_P}, 8
    s_add_u32 s70, s70, s71
    s_lshl_b32 s71, s{S_KQ}, 6
    s_add_u32 s70, s70, s71
    s_add_u32 s71, s70, {16*2304}""")
    stamp(S, cfg, 8)
    S.label("L_d")
    for i in range(9):
        S(f"buffer_load_dwordx4 {vr(GR+4*i,4)}, v{VT}, {srd(SWS)}, s{66 + i//4} offen offset:{(i%4)*1024} sc1")
    S(f"v_xor_b32 v4, s{S_NONCE}, v{GR+3}")
    for i in range(1, 9):
        S(f"v_xor_b32 v5, s{S_NONCE}, v{GR+4*i+3}\nv_or_b32 v4, v4, v5")
    S("v_cmp_eq_u32 vcc, 0, v4\ns_cmp_eq_u64 vcc, -1\ns_cbranch_scc1 L_d_ok")
    S("s_sub_u32 s77, s77, 1\ns_cmp_lg_u32 s77, 0\ns_cbranch_scc1 L_d")
    S.label("L_d_ok")
    stamp(S, cfg, 9)
    for tau in range(3):
        for u in range(2):
            for e in range(2):
                for x in range(2):
                    src = GR + 12 * tau + pay[4*u+2*e+x]; a = MC(e, u) + 2 * x
                    S(f"v_lshlrev_b32 v4, 16, v{src}\nv_and_b32 v5, 0xffff0000, v{src}\nv_add_f32 v{a}, v{a}, v4\nv_add_f32 v{a+1}, v{a+1}, v5")
    for u in range(2):
        for e in range(2):
            for x in range(2):
                S(f"v_cvt_pk_bf16_f32 v{GS+4*u+2*e+x}, v{MC(e,u)+2*x}, v{MC(e,u)+2*x+1}")
    for u in range(2):
        for x in range(2): S(f"v_permlane16_swap_b32 v{GS+4*u+x}, v{GS+4*u+2+x}")
    for u in range(2):
        S(f"buffer_store_dwordx4 {vr(GS+4*u,4)}, v2, {srd(SOUT)}, s{70+u} offen")
    if cfg.stamps:
        S.wait_vm(0); stamp(S, cfg, 10)
    stamps_store(S, cfg)

def gen(cfg):
    hdr = open(REF).read().split("; Override launch")[0].rstrip("\n")
    launch = [f"; @launch grid=(256,1,1) block=(512,1,1) lds={LDS_BYTES}"]
    if cfg.amp >= 0:
        launch = [f"; @launch kernel={NAME} grid=(256,1,1) block=(512,1,1) lds={LDS_BYTES}", "; @launch kernel=amp_kernel grid=(1,1,1) block=(64,1,1) lds=0"]
    L = [hdr] + launch + ['.amdgcn_target "amdgcn-amd-amdhsa--gfx950"',
         ".text", f".globl {NAME}", ".p2align 8", f".type {NAME},@function", f"{NAME}:"]
    P = Stream("pro"); prologue(P, cfg); L += P.finish()
    Ld = Stream("loader"); loader(Ld, cfg); L += Ld.finish()
    L.append(".p2align 6")
    C = Stream("compute"); compute(C, cfg); L += C.finish()
    L += ["L_end:", "    s_endpgm", '.section .rodata,"a"', ".p2align 6", f".amdhsa_kernel {NAME}",
          "  .amdhsa_next_free_vgpr 256", "  .amdhsa_next_free_sgpr 102", "  .amdhsa_accum_offset 256",
          "  .amdhsa_group_segment_fixed_size 0", "  .amdhsa_kernarg_size 104", "  .amdhsa_user_sgpr_count 2",
          "  .amdhsa_user_sgpr_kernarg_segment_ptr 1", "  .amdhsa_system_sgpr_workgroup_id_x 1", ".end_amdhsa_kernel", ""]
    if cfg.amp >= 0:
        Am = Stream("amp")
        Am(f"""s_cmp_ge_u32 s2, 1
        s_cbranch_scc1 amp_end
        s_load_dwordx2 s[4:5], s[0:1], 96
        s_mov_b32 s10, {WS_SIZE}
        s_mov_b32 s11, 0x20000
        s_waitcnt lgkmcnt(0)
        s_mov_b32 s8, s4
        s_and_b32 s9, s5, 0xffff
        v_lshlrev_b32 v1, 9, v0
        s_mov_b32 s12, {WS_STAMP + 64 * cfg.ampw}""")
        for i in range(4):
            Am(f"s_add_u32 s13, s12, {i*64*512}")
            Am(f"buffer_load_dword v{4+i}, v1, s[8:11], s13 offen offset:56")
            Am(f"buffer_load_dword v{8+i}, v1, s[8:11], s13 offen offset:{4*cfg.amp}")
        Am("v_min_u32 v4, v4, v5\nv_min_u32 v6, v6, v7\nv_min_u32 v4, v4, v6\nv_max_u32 v8, v8, v9\nv_max_u32 v10, v10, v11\nv_max_u32 v8, v8, v10")
        Am("s_mov_b32 s14, -1\ns_mov_b32 s15, 0")
        for l in range(64):
            Am(f"v_readlane_b32 s16, v4, {l}\nv_readlane_b32 s17, v8, {l}\ns_nop 3\ns_min_u32 s14, s14, s16\ns_max_u32 s15, s15, s17")
        Am("s_sub_u32 s14, s15, s14\ns_min_u32 s14, s14, 20000\ns_mul_i32 s14, s14, 10\ns_memrealtime s[18:19]\ns_waitcnt lgkmcnt(0)")
        Am.label("amp_spin")
        Am("s_sleep 2\ns_memrealtime s[20:21]\ns_waitcnt lgkmcnt(0)\ns_sub_u32 s22, s20, s18\ns_cmp_lt_u32 s22, s14\ns_cbranch_scc1 amp_spin")
        Am.label("amp_end")
        Am("s_endpgm")
        L = L[:-1]
        L += [".text", ".globl amp_kernel", ".p2align 8", ".type amp_kernel,@function", "amp_kernel:"] + Am.finish()
        L += ['.section .rodata,"a"', ".p2align 6", ".amdhsa_kernel amp_kernel", "  .amdhsa_next_free_vgpr 32", "  .amdhsa_next_free_sgpr 32", "  .amdhsa_accum_offset 32",
              "  .amdhsa_group_segment_fixed_size 0", "  .amdhsa_kernarg_size 104", "  .amdhsa_user_sgpr_count 2",
              "  .amdhsa_user_sgpr_kernarg_segment_ptr 1", "  .amdhsa_system_sgpr_workgroup_id_x 1", ".end_amdhsa_kernel", ""]
    nb = lambda s: sum(1 for x in s.out if not isinstance(x, str) and x.op == "s_barrier")
    sys.stderr.write(f"nops: loader {Ld.nops} compute {C.nops}; barriers: loader {nb(Ld)} compute {nb(C)}\n")
    assert nb(Ld) == nb(C)
    return "\n".join(L)

if __name__ == "__main__":
    cfg = Cfg()
    out = sys.argv[1]
    for a in sys.argv[2:]:
        k, val = a.split("=", 1)
        cur = getattr(Cfg, k)
        if isinstance(cur, bool): val = val in ("1", "true", "True")
        elif isinstance(cur, int): val = int(val)
        elif val == "None": val = None
        setattr(cfg, k, val)
    open(out, "w").write(gen(cfg))
```

```python
import sys, math, struct
from sched import Stream

NAME = "concat_heads__mha_block_cached__gqa_block_cached__near_ridge_kernel"
REF = "concat_heads__mha_block_cached__gqa_block_cached__near_ridge.s.ref"
SLOT = 17408
PITCH = 1056
LDS_BYTES = 9 * SLOT
WS_O, WS_D, WS_DX, WS_FLAG, WS_EPOCH, WS_STAMP = 0, 16 << 20, 32 << 20, 40 << 20, 41 << 20, 48 << 20
WS_SIZE = 64 << 20
SPIN_LIMIT = 1 << 15

def f32(x): return struct.unpack("<I", struct.pack("<f", x))[0]
def vr(n, c=1): return f"v{n}" if c == 1 else f"v[{n}:{n+c-1}]"
def mfma(d, a, b, first=False):
    return f"v_mfma_f32_16x16x32_bf16 {vr(d,4)}, {vr(a,4)}, {vr(b,4)}, {'0' if first else vr(d,4)}"

SX, SWQ, SK, SV, SWO, SWS, SOUT, SDBG = 8, 12, 16, 20, 24, 28, 32, 36
def srd(n): return f"s[{n}:{n+3}]"
S_BLK, S_KQ, S_B, S_P, S_H0, S_W, S_NONCE = 40, 41, 42, 43, 44, 45, 46

class Cfg:
    pol_x = ""; pol_wq = ""; pol_kv = "nt"; pol_wo = ""
    stop = None
    stamps = False
    real = False
    ngrp = 2
    k0_after = 5
    poll0 = 4
    poll1 = 9
    nodma = False
    amp = -1
    ampw = 0
    k0_first = 0
    k0_n = 4
    bdetail = False
    flag0 = 1
    flag1 = 3
    cdetail = 0
    kvsched = 1
    adetail = False
    nokv = False
    nomfma = False
    noread = False

def stamp(S, cfg, idx, det=False):
    if not cfg.stamps: return
    if cfg.cdetail and idx not in (0, 13) and not (det or S.inC): return
    S(f"{'s_memrealtime' if cfg.real else 's_memtime'} s[78:79]")
    S("s_waitcnt lgkmcnt(0)")
    S(f"s_mov_b32 s{80+idx}, s78")

def stamps_store(S, cfg):
    if not cfg.stamps: return
    S("s_memrealtime s[78:79]\ns_waitcnt lgkmcnt(0)\ns_mov_b32 s95, s78")
    stamp(S, cfg, 13)
    S(f"s_lshl_b32 s66, s2, 3\ns_add_u32 s66, s66, s3\ns_lshl_b32 s66, s66, 6\ns_add_u32 s66, s66, {WS_STAMP}")
    S("v_mov_b32 v2, 0")
    S("s_mov_b64 exec, 1")
    for i in range(16):
        S(f"v_mov_b32 v3, s{80+i}")
        S(f"buffer_store_dword v3, v2, {srd(SWS)}, s66 offen offset:{4*i}")
    S("s_mov_b64 exec, -1")

def prologue(S, cfg):
    S(f"""s_cmp_ge_u32 s2, 256
    s_cbranch_scc1 L_end
    s_bfe_u32 s{S_BLK}, s2, 0x10002
    s_mul_i32 s66, s{S_BLK}, 40
    s_add_u32 s4, s0, s66
    s_addc_u32 s5, s1, 0
    s_load_dwordx8 s[48:55], s[4:5], 0
    s_load_dwordx2 s[56:57], s[4:5], 32
    s_load_dwordx4 s[60:63], s[0:1], 80
    s_load_dwordx2 s[64:65], s[0:1], 96
    v_lshrrev_b32 v2, 6, v0
    v_and_b32 v1, 63, v0
    s_and_b32 s{S_KQ}, s2, 3
    v_readfirstlane_b32 s3, v2
    s_bfe_u32 s{S_B}, s2, 0x30003
    s_lshr_b32 s{S_P}, s2, 6
    s_lshl_b32 s{S_H0}, s{S_KQ}, 2
    s_add_u32 s{S_H0}, s{S_H0}, s{S_P}
    s_lshl_b32 s{S_H0}, s{S_H0}, 1
    s_and_b32 s{S_W}, s3, 3""")
    if cfg.stamps:
        for i in range(16): S(f"s_mov_b32 s{80+i}, 0")
        S("s_memrealtime s[78:79]\ns_waitcnt lgkmcnt(0)\ns_mov_b32 s94, s78")
        stamp(S, cfg, 0)
    for d, size in ((SX, 1179648), (SWQ, 4718592), (SK, 8388608), (SV, 8388608), (SWO, 4718592), (SWS, WS_SIZE), (SOUT, 2359296), (SDBG, 256)):
        S(f"s_mov_b32 s{d+2}, {size}\ns_mov_b32 s{d+3}, 0x20000")
    S("s_waitcnt lgkmcnt(0)")
    for d, p in ((SX, 48), (SWQ, 54), (SK, 50), (SV, 52), (SWO, 56), (SWS, 64), (SOUT, 60), (SDBG, 62)):
        S(f"s_mov_b32 s{d}, s{p}\ns_and_b32 s{d+1}, s{p+1}, 0xffff")
    S("s_cmp_lt_u32 s3, 4\ns_cbranch_scc1 L_compute")

def nonce_issue(S, vt, vz):
    S(f"v_mov_b32 v{vz}, 0")
    S(f"buffer_load_dword v{vt}, v{vz}, {srd(SDBG)}, 0 offen sc1")
def nonce_check(S, vt, vz, lab):
    S(f"v_readfirstlane_b32 s{S_NONCE}, v{vt}")
    S(f"s_cmp_lg_u32 s{S_NONCE}, 0\ns_cbranch_scc1 {lab}_ok")
    S(f"s_mov_b32 s77, {SPIN_LIMIT}")
    S.label(f"{lab}_spin")
    S.out += [I for I in _raw(f"""buffer_load_dword v{vt}, v{vz}, {srd(SDBG)}, 0 offen sc1
    s_waitcnt vmcnt(0)
    v_readfirstlane_b32 s{S_NONCE}, v{vt}
    s_nop 4
    s_cmp_lg_u32 s{S_NONCE}, 0
    s_cbranch_scc1 {lab}_ok
    s_sleep 2
    s_sub_u32 s77, s77, 1
    s_cmp_lg_u32 s77, 0
    s_cbranch_scc1 {lab}_spin""")]
    S.label(f"{lab}_ok")
def _raw(text):
    from sched import Ins
    return [Ins(l.strip()) for l in text.split("\n") if l.strip()]

def c_units():
    u = [("M", 0, 0), ("M", 0, 1), ("E", 0, 0), ("M", 1, 0), ("M", 1, 1), ("E", 1, 0)]
    for hh in (0, 1):
        for ii in range(6): u.append(("P", hh, ii))
    return u
BARS = ["B0", "B1", "B2"] + [f"C{i}" for i in range(19)]
def c_plan(cfg):
    units = c_units()
    free = [(8, "B0"), (0, "B0"), (1, "B0"), (2, "B1"), (3, "B1"), (4, "B2"), (5, "B2"), (6, "C0"), (7, "C0")]
    items = [("W", j) for j in range(7)]
    for j in range(6, 18):
        if j + 1 < 18: items.append(("W", j + 1))
        items.append(("O", j))
    slot_of, issue = {}, {b: [] for b in BARS}
    pend = {j: [] for j in range(18)}
    done_units = 0
    for it in items:
        while not free:
            for sl in pend[done_units]: free.append((sl, f"C{done_units+1}"))
            done_units += 1
        sl, rel = free.pop(0)
        if it[0] == "O":
            mn = f"C{cfg.poll0}" if units[it[1]][1] == 0 else f"C{cfg.poll1}"
            if BARS.index(rel) < BARS.index(mn): rel = mn
        assert BARS.index(rel) < BARS.index(f"C{it[1]}"), (it, rel)
        slot_of[it] = sl; issue[rel].append(it); pend[it[1]].append(sl)
    return units, slot_of, issue

def loader(S, cfg):
    VXO, VWO, VKV, VKW, VVW, VMO, VEO, VOO, VFL, VN, VZ = 4, 5, 6, 7, 8, 9, 10, 11, 12, 14, 15
    KVR = 64
    sXb, sWb, sCC, sM, sT, sKV0, sKV1, sOff, sA, sB2 = 66, 67, 68, 69, 71, 72, 73, 74, 75, 70
    S(f"""s_lshl_b32 s{sT}, s{S_W}, 2
    v_lshrrev_b32 v2, 3, v1
    v_lshlrev_b32 v2, 4, v2
    v_add_u32 v2, s{sT}, v2
    v_mul_u32_u24 v3, 1152, v2
    v_and_b32 v13, 7, v1
    v_lshl_add_u32 v{VXO}, v13, 4, v3
    s_and_b32 s76, s{S_W}, 1
    s_lshl_b32 s76, s76, 3
    s_lshl_b32 s77, s{S_W}, 1
    s_and_b32 s77, s77, 4
    s_add_u32 s76, s76, s77
    v_lshrrev_b32 v2, 5, v1
    v_lshlrev_b32 v2, 4, v2
    v_add_u32 v2, s76, v2
    v_lshlrev_b32 v2, 13, v2
    v_and_b32 v13, 31, v1
    v_lshl_add_u32 v{VWO}, v13, 4, v2
    s_mul_i32 s{sM}, s{sT}, {PITCH}
    v_add_u32 v{VEO}, 1024, v{VXO}""")
    if cfg.ngrp > 1:
        starts = [round(9 * i / cfg.ngrp) for i in range(cfg.ngrp)]
        S(f"s_add_u32 s76, s{S_B}, s{S_P}\ns_add_u32 s76, s76, s{S_KQ}")
        tab = sum(starts[i % cfg.ngrp] << (4 * i) for i in range(16))
        S(f"s_mov_b32 s{sA}, {tab & 0xffffffff}\ns_mov_b32 s{sA+1}, {tab >> 32}" .replace(f"s{sA+1}", "s77"))
        S(f"s_lshl_b32 s76, s76, 2\ns_cmp_ge_u32 s76, 32\ns_cselect_b32 s{sA}, s77, s{sA}\ns_and_b32 s76, s76, 31\ns_lshr_b32 s{sCC}, s{sA}, s76\ns_and_b32 s{sCC}, s{sCC}, 15")
    else:
        S(f"s_mov_b32 s{sCC}, 0")
    def chunk(c):
        base = (c % 3) * 3 * SLOT
        S(f"""s_mul_i32 s{sXb}, s{S_B}, 147456
        s_lshl_b32 s76, s{sCC}, 7
        s_add_u32 s{sXb}, s{sXb}, s76
        s_lshl_b32 s{sWb}, s{sCC}, 19
        s_lshl_b32 s76, s{S_H0}, 8
        s_add_u32 s{sWb}, s{sWb}, s76""")
        for i in range(4):
            S(f"s_add_u32 m0, s{sM}, {base + i*PITCH}\ns_add_u32 s{sT}, s{sXb}, {i*1152}")
            S(f"buffer_load_dwordx4 v{VXO}, {srd(SX)}, s{sT} offen {cfg.pol_x} lds", tag=f"ch{c}")
        for st in range(2):
            for i in range(4):
                S(f"s_add_u32 m0, s{sM}, {base + SLOT*(1+st) + i*PITCH}\ns_add_u32 s{sT}, s{sWb}, {(32*st+i)*8192}")
                S(f"buffer_load_dwordx4 v{VWO}, {srd(SWQ)}, s{sT} offen {cfg.pol_wq} lds", tag=f"ch{c}")
        S(f"s_add_u32 s{sCC}, s{sCC}, 1\ns_cmp_eq_u32 s{sCC}, 9\ns_cselect_b32 s{sCC}, 0, s{sCC}")
    def kv_load(m, j0=0, j1=8):
        if cfg.nokv: return
        sr = SK if m < 2 else SV
        sb = sKV0 if m % 2 == 0 else sKV1
        for j in range(j0, j1):
            if j == max(4, j0): S(f"s_add_u32 s{sT}, s{sb}, 4096")
            so = sb if j < 4 else sT
            S(f"buffer_load_dwordx4 {vr(KVR+32*m+4*j,4)}, v{VKV}, {srd(sr)}, s{so} offen offset:{(j&3)*1024} {cfg.pol_kv}", tag=f"kv{m}")
    def kv_write(m, slot):
        if m < 2:
            for j in range(8):
                S(f"v_add_u32 v2, {slot*SLOT + j*4*PITCH}, v{VKW}")
                S(f"ds_write2_b64 v2, {vr(KVR+32*m+4*j,2)}, {vr(KVR+32*m+4*j+2,2)} offset0:0 offset1:2")
        else:
            S(f"v_add_u32 v2, {slot*SLOT}, v{VVW}")
            for j in range(8):
                S(f"ds_write_b128 v2, {vr(KVR+32*m+4*j,4)} offset:{j*4*PITCH}")
    chunk(0)
    stamp(S, cfg, 1)
    S(f"""s_lshl_b32 s76, s{S_W}, 13
    v_lshlrev_b32 v2, 4, v1
    v_add_u32 v{VKV}, s76, v2
    s_lshl_b32 s{sKV0}, s{S_B}, 5
    s_add_u32 s{sKV0}, s{sKV0}, s{S_H0}
    s_lshl_b32 s{sKV0}, s{sKV0}, 15
    s_add_u32 s{sKV1}, s{sKV0}, 32768
    v_lshrrev_b32 v2, 4, v1
    v_mul_u32_u24 v13, {PITCH}, v2
    s_lshl_b32 s76, s{S_W}, 8
    v_add_u32 v13, s76, v13
    v_and_b32 v3, 15, v1
    v_lshl_add_u32 v{VVW}, v3, 4, v13
    v_bfe_u32 v3, v1, 2, 2
    v_lshl_add_u32 v13, v3, 6, v13
    v_and_b32 v3, 1, v1
    v_lshl_add_u32 v13, v3, 5, v13
    v_bfe_u32 v3, v1, 1, 1
    v_lshl_add_u32 v{VKW}, v3, 3, v13""")
    S(f"""v_lshlrev_b32 v2, 4, v2
    s_lshl_b32 s76, s{S_W}, 2
    v_add_u32 v2, s76, v2
    v_mul_u32_u24 v2, 1152, v2
    v_lshlrev_b32 v3, 4, v1
    s_lshl_b32 s76, s{S_KQ}, 6
    v_add_u32 v3, s76, v3
    v_and_b32 v3, 0xff, v3
    v_add_u32 v{VMO}, v2, v3
    v_lshlrev_b32 v{VOO}, 4, v1
    v_min_u32 v2, 2, v1
    v_add3_u32 v2, v2, s{S_P}, 1
    v_and_b32 v2, 3, v2
    v_lshlrev_b32 v2, 6, v2
    s_and_b32 s76, s2, 63
    v_add_u32 v2, s76, v2
    v_lshlrev_b32 v2, 2, v2
    v_add_u32 v2, s{S_W}, v2
    v_lshlrev_b32 v{VFL}, 8, v2
    s_mul_i32 s{sOff}, s{S_B}, 3
    s_lshr_b32 s{sOff}, s{sOff}, 2""")
    S.wait_vm(8)
    chunk(1)
    for c in range(9):
        S.wait_vm_tag(f"ch{c}")
        if c == 8: S.wait_lg(0)
        if cfg.adetail: stamp(S, cfg, 2 + c)
        elif c in (0, 1, 2, 8): stamp(S, cfg, {0: 2, 1: 3, 2: 4, 8: 5}[c])
        S("s_barrier")
        if c <= 6:
            k = c - cfg.k0_first
            if cfg.k0_n == 4 and 0 <= k < 4: kv_load(0, 2 * k, 2 * k + 2)
            if cfg.k0_n == 2 and 0 <= k < 2: kv_load(0, 4 * k, 4 * k + 4)
            if cfg.k0_n == 1 and k == 0: kv_load(0)
            if not cfg.nodma: chunk(c + 2)
        if c == 4: nonce_issue(S, VN, VZ)
        if c == 6: kv_load(1)
        if c == 7: kv_write(0, 0); kv_load(2)
    nonce_check(S, VN, VZ, "L_ln")
    if cfg.stop == "A":
        S.wait_vm(0); stamps_store(S, cfg); S("s_branch L_end"); return
    units, slot_of, issue = c_plan(cfg)
    def c_issue(it):
        kind, j = it
        uk, hh, x = units[j]
        sl = slot_of[it] * SLOT
        tag = f"u{j}"
        if uk in ("M", "E"):
            row = hh * 128 + (64 * x if uk == "M" else 0)
            S(f"s_lshl_b32 s{sA}, s{S_H0}, 7\ns_add_u32 s{sA}, s{sA}, {row}\ns_mul_i32 s{sA}, s{sA}, 1152")
            if uk == "M": S(f"s_lshl_b32 s76, s{S_P}, 8\ns_add_u32 s{sA}, s{sA}, s76")
            va = VMO if uk == "M" else VEO
            for i in range(4):
                S(f"s_add_u32 m0, s{sM}, {sl + i*PITCH}\ns_add_u32 s{sT}, s{sA}, {i*1152}")
                S(f"buffer_load_dwordx4 v{va}, {srd(SWO)}, s{sT} offen {cfg.pol_wo} lds", tag=tag)
            return
        S(f"""s_add_u32 s76, s{sOff}, {x}
        s_sub_u32 s77, s76, 6
        s_cmp_ge_u32 s76, 6
        s_cselect_b32 s76, s77, s76
        s_lshr_b32 s77, s76, 1
        s_add_u32 s77, s77, s{S_P}
        s_add_u32 s77, s77, 1
        s_and_b32 s77, s77, 3
        s_and_b32 s76, s76, 1""")
        if kind == "W":
            S(f"""s_lshl_b32 s{sA}, s{S_KQ}, 2
            s_add_u32 s{sA}, s{sA}, s77
            s_lshl_b32 s{sA}, s{sA}, 2
            s_add_u32 s{sA}, s{sA}, s76
            s_add_u32 s{sA}, s{sA}, {2*hh}
            s_mul_i32 s{sA}, s{sA}, {64*1152}
            s_lshl_b32 s76, s{S_P}, 8
            s_add_u32 s{sA}, s{sA}, s76""")
            for i in range(4):
                S(f"s_add_u32 m0, s{sM}, {sl + i*PITCH}\ns_add_u32 s{sT}, s{sA}, {i*1152}")
                S(f"buffer_load_dwordx4 v{VMO}, {srd(SWO)}, s{sT} offen {cfg.pol_wo} lds", tag=tag)
        else:
            S(f"""s_lshl_b32 s77, s77, 6
            s_and_b32 s{sA}, s2, 63
            s_add_u32 s{sA}, s{sA}, s77
            s_lshl_b32 s{sA}, s{sA}, 2
            s_add_u32 s{sA}, s{sA}, s{S_W}
            s_lshl_b32 s{sA}, s{sA}, 2
            s_add_u32 s{sA}, s{sA}, s76
            s_add_u32 s{sA}, s{sA}, {2*hh}
            s_lshl_b32 s{sA}, s{sA}, 12
            s_lshl_b32 s{sB2}, s{S_W}, 12""")
            for i in range(4):
                S(f"s_add_u32 m0, s{sB2}, {sl + i*1024}\ns_add_u32 s{sT}, s{sA}, {WS_O + i*1024}")
                S(f"buffer_load_dwordx4 v{VOO}, {srd(SWS)}, s{sT} offen sc1 lds", tag=tag)
    def poll_issue(hh):
        S(f"s_mov_b32 s76, {WS_FLAG}")
        S(f"buffer_load_dword v{16+hh}, v{VFL}, {srd(SWS)}, s76 offen offset:{128*hh} sc1")
    def poll(hh):
        lab = f"L_poll{hh}"
        S(f"v_cmp_eq_u32 vcc, s{S_NONCE}, v{16+hh}")
        S(f"s_cmp_eq_u64 vcc, -1\ns_cbranch_scc1 {lab}_ok")
        S(f"s_mov_b32 s76, {WS_FLAG}\ns_mov_b32 s77, {SPIN_LIMIT}")
        S.label(lab)
        S.out += _raw(f"""buffer_load_dword v{16+hh}, v{VFL}, {srd(SWS)}, s76 offen offset:{128*hh} sc1
        s_waitcnt vmcnt(0)
        v_cmp_eq_u32 vcc, s{S_NONCE}, v{16+hh}
        s_nop 4
        s_cmp_eq_u64 vcc, -1
        s_cbranch_scc1 {lab}_ok
        s_sub_u32 s77, s77, 1
        s_cmp_lg_u32 s77, 0
        s_cbranch_scc1 {lab}""")
        S.label(f"{lab}_ok")
    kv_write(1, 2)
    kv_load(3)
    S.wait_lg(0)
    stamp(S, cfg, 6)
    S("s_barrier")
    kv_write(2, 4)
    if cfg.stop != "B":
        for it in issue["B0"]: c_issue(it)
    S.wait_lg(0)
    stamp(S, cfg, 12)
    S("s_barrier")
    kv_write(3, 6)
    if cfg.stop != "B":
        for it in issue["B1"]: c_issue(it)
    S.wait_lg(0)
    stamp(S, cfg, 7)
    S("s_barrier")
    if cfg.stop == "B":
        S.wait_vm(0); stamps_store(S, cfg); S("s_branch L_end"); return
    for it in issue["B2"]: c_issue(it)
    S.inC = True
    for i in range(18):
        S.wait_vm_tag(f"u{i}")
        if cfg.cdetail:
            if 0 <= i - (cfg.cdetail - 1) < 12: stamp(S, cfg, 1 + i - (cfg.cdetail - 1))
        elif i in (0, 6, 12, 17): stamp(S, cfg, {0: 8, 6: 9, 12: 10, 17: 11}[i])
        S("s_barrier")
        if i == cfg.poll0 - 1: poll_issue(0)
        if i == cfg.poll1 - 1: poll_issue(1)
        for it in issue[f"C{i}"]:
            if it[0] == "W": c_issue(it)
        if i == cfg.poll0: poll(0)
        if i == cfg.poll1: poll(1)
        for it in issue[f"C{i}"]:
            if it[0] == "O": c_issue(it)
    S(f"s_cmp_lg_u32 s{S_W}, 0\ns_cbranch_scc1 L_lfin")
    R = 64
    S(f"""v_and_b32 v2, 7, v1
    v_bfe_u32 v3, v1, 3, 2
    v_lshl_add_u32 v2, v3, 4, v2
    s_and_b32 s76, s{S_P}, 1
    s_lshl_b32 s76, s76, 3
    v_add_u32 v2, s76, v2
    v_lshlrev_b32 v2, 4, v2
    v_lshrrev_b32 v3, 5, v1
    v_mul_u32_u24 v3, {4*6*1024}, v3
    v_add_u32 v4, v2, v3
    s_lshl_b32 s{sA}, s{S_BLK}, 3
    s_add_u32 s{sA}, s{sA}, s{S_B}
    s_lshl_b32 s{sA}, s{sA}, 6
    s_add_u32 s{sA}, s{sA}, s{S_KQ}
    s_mul_i32 s{sA}, s{sA}, 6144
    s_lshr_b32 s76, s{S_P}, 1
    s_mul_i32 s76, s76, 3072
    s_add_u32 s{sA}, s{sA}, s76
    s_add_u32 s{sA}, s{sA}, {WS_DX}
    s_mov_b32 s77, {SPIN_LIMIT}""")
    S.label("L_dx")
    for r in range(8):
        S(f"s_add_u32 s{sT}, s{sA}, {r*2*4*6*1024}")
        for gm in range(3):
            S(f"buffer_load_dwordx4 {vr(R+12*r+4*gm,4)}, v4, {srd(SWS)}, s{sT} offen offset:{gm*1024} sc1")
    S(f"v_xor_b32 v5, s{S_NONCE}, v{R+3}")
    for i in range(1, 24):
        S(f"v_xor_b32 v6, s{S_NONCE}, v{R+4*i+3}\nv_or_b32 v5, v5, v6")
    S("v_cmp_eq_u32 vcc, 0, v5\ns_cmp_eq_u64 vcc, -1\ns_cbranch_scc1 L_dx_ok")
    S("s_sleep 1\ns_sub_u32 s77, s77, 1\ns_cmp_lg_u32 s77, 0\ns_cbranch_scc1 L_dx")
    S.label("L_dx_ok")
    AC = 16
    pay = [0, 1, 2, 4, 5, 6, 8, 9]
    for r in range(8):
        for d in range(8):
            src = R + 12 * r + pay[d]
            if r == 0:
                S(f"v_lshlrev_b32 v{AC+2*d}, 16, v{src}\nv_and_b32 v{AC+2*d+1}, 0xffff0000, v{src}")
            else:
                S(f"v_lshlrev_b32 v6, 16, v{src}\nv_and_b32 v7, 0xffff0000, v{src}\nv_add_f32 v{AC+2*d}, v{AC+2*d}, v6\nv_add_f32 v{AC+2*d+1}, v{AC+2*d+1}, v7")
    for i in range(8): S(f"v_permlane32_swap_b32 v{AC+i}, v{AC+8+i}")
    for i in range(8): S(f"v_add_f32 v{AC+i}, v{AC+i}, v{AC+8+i}")
    for i in range(4): S(f"v_cvt_pk_bf16_f32 v{32+i}, v{AC+2*i}, v{AC+2*i+1}")
    S(f"""v_and_b32 v2, 7, v1
    s_lshl_b32 s76, s{S_B}, 7
    s_lshl_b32 s77, s{S_KQ}, 5
    s_add_u32 s76, s76, s77
    s_lshl_b32 s77, s{S_P}, 3
    s_add_u32 s76, s76, s77
    v_add_u32 v2, s76, v2
    v_mul_u32_u24 v2, 2304, v2
    v_bfe_u32 v3, v1, 3, 2
    v_lshl_add_u32 v2, v3, 3, v2
    v_lshrrev_b32 v3, 5, v1
    v_lshl_add_u32 v2, v3, 6, v2
    s_mul_i32 s76, s{S_BLK}, 1152
    s_add_u32 s76, s76, 1024
    buffer_store_dwordx2 v[32:33], v2, {srd(SOUT)}, s76 offen
    buffer_store_dwordx2 v[34:35], v2, {srd(SOUT)}, s76 offen offset:32""")
    S.label("L_lfin")
    S("s_waitcnt vmcnt(0)")
    stamps_store(S, cfg)
    S("s_branch L_end")

class Pipe:
    def __init__(self, S, lead):
        self.S, self.lead = S, lead
    def run(self, groups, fill=None, start=0, maxrd=2, tail=None):
        S = self.S
        queue = []
        for gi in range(start, len(groups)):
            g = groups[gi]
            if g.get("epoch"): queue.append((gi, g["epoch"]))
            for r in g.get("pre", []) + g["reads"]: queue.append((gi, r))
        for r in (tail or []): queue.append((len(groups) + 0, r))
        nm = [len(g["mf"]) for g in groups]
        pos = [sum(nm[:i]) for i in range(len(groups) + 1)]
        fl = {}
        for (g0, g1, ins) in (fill or []):
            a, b = pos[g0], pos[g1]
            for k, x in enumerate(ins):
                fl.setdefault(a + (k * (b - a)) // len(ins), []).append(x)
        since_read = 99
        m = 0
        for gi, g in enumerate(groups):
            while queue and queue[0][0] <= gi:
                x = queue.pop(0)[1]
                x() if callable(x) else S(x)
            for mf in g["mf"]:
                S(mf)
                since_read += 1
                n = 0
                while queue and n < maxrd and queue[0][0] <= gi + self.lead:
                    x = queue[0][1]
                    if callable(x):
                        if since_read < 5: break
                        queue.pop(0); x(); n += 1
                        continue
                    behind = queue[0][0] < gi + self.lead
                    if n >= 1 and not behind: break
                    queue.pop(0); S(x); n += 1; since_read = 0
                for x in fl.get(m, []): S(*x) if isinstance(x, tuple) else S(x)
                m += 1
        for _, x in queue:
            x() if callable(x) else S(x)

def compute(S, cfg):
    VX, VW = [4, 5, 6], [7, 8, 9]
    VK0, VK1, VV0, VV1, VOST, VZ, VN = 10, 11, 12, 13, 14, 15, 16
    VM0, VM1, VT, VL0, VL1 = 17, 18, 19, 20, 21
    VRC = [[56, 57], [58, 59]]
    QP = lambda h: 64 + 32 * h
    sC = 47
    S.label("L_compute")
    S(f"v_mov_b32 v{VZ}, 0")
    S(f"s_or_b32 s66, s2, s3\ns_cmp_lg_u32 s66, 0\ns_cbranch_scc1 L_notag")
    S.out += _raw(f"""s_mov_b32 s66, {WS_EPOCH}
    buffer_load_dword v2, v{VZ}, {srd(SWS)}, s66 offen sc1
    s_waitcnt vmcnt(0)
    v_add_u32 v2, 1, v2
    v_max_u32 v2, 1, v2
    buffer_store_dword v2, v{VZ}, {srd(SWS)}, s66 offen sc1
    buffer_store_dword v2, v{VZ}, {srd(SDBG)}, 0 offen sc1
    s_waitcnt vmcnt(0)""")
    S.label("L_notag")
    S(f"""v_and_b32 v22, 15, v1
    v_lshrrev_b32 v23, 4, v1
    v_mul_u32_u24 v2, {PITCH}, v22
    v_lshl_add_u32 v{VK0}, v23, 4, v2
    v_add_u32 v{VK1}, {2*SLOT}, v{VK0}
    s_lshl_b32 s66, s{S_W}, 8
    v_add_u32 v{VX[0]}, s66, v{VK0}
    v_add_u32 v{VX[1]}, {3*SLOT}, v{VX[0]}
    v_add_u32 v{VX[2]}, {6*SLOT}, v{VX[0]}
    v_bfe_u32 v2, v1, 2, 3
    v_mul_u32_u24 v2, {PITCH}, v2
    v_lshrrev_b32 v3, 5, v1
    v_lshl_add_u32 v2, v3, 9, v2
    v_and_b32 v3, 3, v1
    v_lshl_add_u32 v2, v3, 3, v2
    v_add_u32 v{VW[0]}, {SLOT}, v2
    v_add_u32 v{VW[1]}, {4*SLOT}, v2
    v_add_u32 v{VW[2]}, {7*SLOT}, v2
    v_lshrrev_b32 v2, 2, v1
    v_mul_u32_u24 v2, {PITCH}, v2
    v_lshl_add_u32 v2, v3, 3, v2
    v_add_u32 v{VV0}, {4*SLOT}, v2
    v_add_u32 v{VV1}, {6*SLOT}, v2
    s_lshl_b32 s66, s2, 16
    s_lshl_b32 s67, s{S_W}, 14
    s_add_u32 s66, s66, s67
    v_lshlrev_b32 v{VOST}, 4, v1
    v_add_u32 v{VOST}, s66, v{VOST}
    s_mov_b32 s{sC}, {f32(math.log2(math.e) / math.sqrt(128.0))}""")
    def bar(fn=None):
        def f():
            S.wait_lg(0)
            if fn: fn()
            S("s_barrier")
        return f
    ACC = lambda t, u: 128 + 8 * t + 4 * u
    ARING = [96, 104, 112, 120, 56]
    XF = lambda c, s, u: 24 + 16 * (c & 1) + 8 * s + 4 * u
    groups = []
    for c in range(9):
        for t in range(16):
            n = 16 * c + t
            rg = ARING[n % 5]
            g = dict(reads=[f"ds_read_b64_tr_b16 {vr(rg+4*s+2*rd,2)}, v{VW[c%3]} offset:{s*SLOT + rd*8*PITCH + 32*t}" for s in range(2) for rd in range(2)],
                     mf=[mfma(ACC(t, u), rg + 4*s, XF(c, s, u), first=(c == 0 and s == 0)) for u in range(2) for s in range(2)])
            if t == 0:
                g["epoch"] = bar((lambda: stamp(S, cfg, 1)) if c == 0 else None) if c else None
                g["pre"] = [f"ds_read_b128 {vr(XF(c,s,u),4)}, v{VX[c%3]} offset:{128*u + 64*s}" for s in range(2) for u in range(2)]
            groups.append(g)
    KR = lambda i: 24 + 4 * ((i + 4) & 7)
    def k_read(h, i):
        kt, s = i >> 2, i & 3
        return f"ds_read_b128 {vr(KR(i),4)}, v{VK0 if h == 0 else VK1} offset:{(kt&1)*16*PITCH + (kt>>1)*256 + 64*s}"
    def v_reads(h, i):
        dt, j = i >> 2, i & 3
        return [f"ds_read_b64_tr_b16 {vr(KR(i)+2*rd,2)}, v{VV0 if h == 0 else VV1} offset:{rd*16*PITCH + j*256 + 32*dt}" for rd in range(2)]
    def pack(dst, src):
        return [f"v_cvt_pk_bf16_f32 v{dst+8*s+4*u+2*e+x}, v{src+8*(2*s+e)+4*u+2*x}, v{src+8*(2*s+e)+4*u+2*x+1}" for s in range(4) for u in range(2) for e in range(2) for x in range(2)]
    S("s_barrier")
    stamp(S, cfg, 1)
    if cfg.nomfma:
        for g in groups: g['mf'] = ['s_nop 0'] * 4
    if cfg.noread:
        for g in groups[5:]: g['reads'] = []; g['pre'] = []
    P = Pipe(S, 4)
    P.run(groups, fill=[(138, 144, pack(QP(0), 128))], tail=[k_read(0, i) for i in range(4)])
    stamp(S, cfg, 2)
    if cfg.stop == "A":
        for x in pack(QP(1), 192): S(x)
        for i in range(16):
            S(f"s_mov_b32 s66, {i*1024}")
            S(f"buffer_store_dwordx4 {vr(64+4*i,4)}, v{VOST}, {srd(SWS)}, s66 offen")
        S.wait_vm(0); stamps_store(S, cfg); S("s_branch L_end"); return
    SS = lambda h: 128 + 64 * h
    def qk_groups(h):
        return [dict(reads=[k_read(h, 4*kt+s) for s in range(4)],
                     mf=[mfma(SS(h)+8*kt+4*u, KR(4*kt+s), QP(h)+8*s+4*u, first=(s == 0)) for u in range(2) for s in range(4)]) for kt in range(8)]
    def pv_groups(h):
        return [dict(reads=[r for j in range(4) for r in v_reads(h, 4*dt+j)],
                     mf=[mfma(SS(h)+8*dt+4*u, KR(4*dt+j), QP(h)+8*j+4*u, first=(j == 0)) for u in range(2) for j in range(4)]) for dt in range(8)]
    def fold(op, a, b):
        return [f"v_permlane32_swap_b32 v{a}, v{b}", f"{op} v{a}, v{a}, v{b}", f"v_mov_b32 v{b}, v{a}",
                f"v_permlane16_swap_b32 v{a}, v{b}", f"{op} v{a}, v{a}, v{b}", f"v_mov_b32 v{b}, v{a}",
                f"v_permlane32_swap_b32 v{a}, v{b}"]
    def softmax(h):
        s = SS(h)
        el = [[s + 8*kt + 4*u + r for kt in range(8) for r in range(4)] for u in range(2)]
        VM, VL = [VM0, VM1], [VL0, VL1]
        o = []
        for i in range(16):
            for u in range(2):
                e = el[u]
                if i == 0: o.append(f"v_max3_f32 v{VM[u]}, v{e[0]}, v{e[1]}, v{e[2]}")
                elif i < 15: o.append(f"v_max3_f32 v{VM[u]}, v{VM[u]}, v{e[2*i+1]}, v{e[2*i+2]}")
                else: o.append(f"v_max_f32 v{VM[u]}, v{VM[u]}, v{e[31]}")
        o += fold("v_max_f32", VM0, VM1)
        o += [f"v_mul_f32 v{VM0}, s{sC}, v{VM0}", f"v_mul_f32 v{VM1}, s{sC}, v{VM1}"]
        order = [(kt, u, r) for kt in range(8) for u in range(2) for r in range(4)]
        D = 2
        for i in range(64 + 2 * D):
            if i < 64:
                kt, u, r = order[i]; x = s + 8*kt + 4*u + r
                o.append(f"v_fma_f32 v{x}, v{x}, s{sC}, -v{VM[u]}")
            j = i - D
            if 0 <= j < 64:
                kt, u, r = order[j]; x = s + 8*kt + 4*u + r
                o.append(f"v_exp_f32 v{x}, v{x}")
            j = i - 2 * D
            if 0 <= j < 64:
                kt, u, r = order[j]; x = s + 8*kt + 4*u + r
                if kt == 0 and r == 0: pass
                elif kt == 0 and r == 1: o.append(f"v_add_f32 v{VL[u]}, v{x-1}, v{x}")
                else: o.append(f"v_add_f32 v{VL[u]}, v{VL[u]}, v{x}")
                if r & 1: o.append(f"v_cvt_pk_bf16_f32 v{QP(h)+8*(kt>>1)+4*u+2*(kt&1)+(r>>1)}, v{x-1}, v{x}")
        o += fold("v_add_f32", VL0, VL1)
        o += [f"v_rcp_f32 v{VRC[h][0]}, v{VL0}", f"v_rcp_f32 v{VRC[h][1]}, v{VL1}"]
        return o
    def o_pack(h):
        s = SS(h); o = []
        pk = pack(QP(h), s)
        for st in range(4):
            for u in range(2):
                for e in range(2):
                    for r in range(4):
                        x = s + 8*(2*st+e) + 4*u + r
                        o.append(f"v_mul_f32 v{x}, v{x}, v{VRC[h][u]}")
                i = 2 * st + u
                o += pk[4*i:4*i+4]
                so = h * 8192 + i * 1024
                o.append(f"s_mov_b32 s66, {WS_O + (so & ~4095)}")
                o.append((f"buffer_store_dwordx4 {vr(QP(h)+4*i,4)}, v{VOST}, {srd(SWS)}, s66 offen offset:{so & 4095} sc1", f"o{h}"))
        return o
    def flag(h):
        S.wait_vm_tag(f"o{h}")
        S(f"""s_lshl_b32 s68, s2, 2
        s_add_u32 s68, s68, s{S_W}
        s_lshl_b32 s68, s68, 8
        s_add_u32 s68, s68, {WS_FLAG + 128*h}
        v_mov_b32 v{VT}, s{S_NONCE}
        buffer_store_dword v{VT}, v{VZ}, {srd(SWS)}, s68 offen sc1""")
    PB = Pipe(S, 1)
    nonce_issue(S, VN, VZ)
    PB.run(qk_groups(0), fill=[(0, 8, pack(QP(1), 192))], start=1)
    S.wait_lg(0); stamp(S, cfg, 3)
    S("s_barrier")
    if cfg.bdetail: stamp(S, cfg, 8)
    PB.run(qk_groups(1), fill=[(0, 8, softmax(0))])
    S.wait_lg(0); stamp(S, cfg, 4)
    S("s_barrier")
    if cfg.bdetail: stamp(S, cfg, 9)
    PB.run(pv_groups(0), fill=[(0, 8, softmax(1))])
    nonce_check(S, VN, VZ, "L_cn")
    S.wait_lg(0); stamp(S, cfg, 5)
    S("s_barrier")
    if cfg.bdetail: stamp(S, cfg, 10)
    PB.run(pv_groups(1), fill=[(0, 6, o_pack(0))])
    stamp(S, cfg, 6)
    if cfg.stop == "B":
        for x in o_pack(1): S(*x) if isinstance(x, tuple) else S(x)
        S.wait_vm(0); stamp(S, cfg, 7); stamps_store(S, cfg); S("s_branch L_end"); return
    units, slot_of, issue = c_plan(cfg)
    VA, VB = [4, 5, 6], [7, 8, 9]
    S(f"""v_add_u32 v{VA[0]}, {-4*SLOT & 0xffffffff}, v{VV0}
    v_add_u32 v{VA[1]}, {-1*SLOT & 0xffffffff}, v{VV0}
    v_add_u32 v{VA[2]}, {2*SLOT}, v{VV0}
    s_lshl_b32 s66, s{S_W}, 12
    v_lshlrev_b32 v{VB[0]}, 4, v1
    v_add_u32 v{VB[0]}, s66, v{VB[0]}
    v_add_u32 v{VB[1]}, {3*SLOT}, v{VB[0]}
    v_add_u32 v{VB[2]}, {6*SLOT}, v{VB[0]}""")
    MC = lambda nt, u: 128 + 8 * nt + 4 * u
    EC = lambda nt, u: 192 + 8 * nt + 4 * u
    RING_OWN = [24, 32, 40, 48]
    RING_PEER = [224, 232, 240, 248, 96]
    OB = lambda j, s, u: 64 + 16 * (j & 1) + 8 * s + 4 * u
    def cbar(j):
        def fn():
            if j == cfg.flag0: flag(0)
            if j == cfg.flag1: flag(1)
            if cfg.cdetail and 0 <= j - (cfg.cdetail - 1) < 12: stamp(S, cfg, 1 + j - (cfg.cdetail - 1), True)
        return bar(fn)
    own, peer = [], []
    for j, (uk, hh, x) in enumerate(units):
        sl = slot_of[("W", j)]
        va, so = VA[sl // 3], (sl % 3) * SLOT
        lst = own if j < 6 else peer
        ring = RING_OWN if j < 6 else RING_PEER
        if uk == "E":
            for nt in range(4):
                for sp in range(2):
                    rg = ring[len(lst) % len(ring)]
                    g = dict(reads=[f"ds_read_b64_tr_b16 {vr(rg+4*s+2*rd,2)}, v{va} offset:{so + (2*(2*sp+s)+rd)*128 + 32*nt}" for s in range(2) for rd in range(2)],
                             mf=[mfma(EC(nt, u), rg + 4*s, QP(hh) + 8*(2*sp+s) + 4*u, first=(hh == 0 and sp == 0 and s == 0)) for u in range(2) for s in range(2)])
                    if nt == 0 and sp == 0: g["epoch"] = cbar(j)
                    lst.append(g)
        else:
            for nt in range(8):
                rg = ring[len(lst) % len(ring)]
                bf = (lambda s, u: QP(hh) + 8*(2*x+s) + 4*u) if uk == "M" else (lambda s, u: OB(j, s, u))
                g = dict(reads=[f"ds_read_b64_tr_b16 {vr(rg+4*s+2*rd,2)}, v{va} offset:{so + (2*s+rd)*256 + 32*nt}" for s in range(2) for rd in range(2)],
                         mf=[mfma(MC(nt, u), rg + 4*s, bf(s, u), first=(j == 0 and s == 0)) for u in range(2) for s in range(2)])
                if nt == 0:
                    g["epoch"] = cbar(j)
                    if uk == "P":
                        so2 = slot_of[("O", j)]
                        g["pre"] = [f"ds_read_b128 {vr(OB(j,s,u),4)}, v{VB[so2//3]} offset:{(so2%3)*SLOT + (2*s+u)*1024}" for s in range(2) for u in range(2)]
                lst.append(g)

    GX = 24
    dx = []
    for gm in range(6): dx.append(f"v_mov_b32 v{GX+4*gm+3}, s{S_NONCE}")
    pay = [0, 1, 2, 4, 5, 6, 8, 9]
    for u in range(2):
        for nt in range(4):
            for x in range(2):
                dx.append(f"v_cvt_pk_bf16_f32 v{GX+12*u+pay[2*nt+x]}, v{EC(nt,u)+2*x}, v{EC(nt,u)+2*x+1}")
    dx += [f"s_lshl_b32 s66, s{S_BLK}, 3", f"s_add_u32 s66, s66, s{S_B}", "s_lshl_b32 s66, s66, 4", f"s_lshr_b32 s67, s{S_H0}, 1", "s_add_u32 s66, s66, s67",
           "s_lshl_b32 s66, s66, 2", f"s_add_u32 s66, s66, s{S_W}", "s_mul_i32 s66, s66, 6144", f"s_add_u32 s66, s66, {WS_DX}", "s_add_u32 s67, s66, 3072",
           f"v_lshlrev_b32 v{VT}, 4, v1"]
    for gm in range(6):
        dx.append(f"buffer_store_dwordx4 {vr(GX+4*gm,4)}, v{VT}, {srd(SWS)}, s{66 + gm//3} offen offset:{(gm%3)*1024} sc1")
    allg = own + peer
    PC = Pipe(S, 3)
    PC.run(allg, fill=[(1, 15, o_pack(1)), (52, 60, dx)])
    stamp(S, cfg, 7)
    GS, GR = 24, 64
    d = []
    for i in range(9): S(f"v_mov_b32 v{GS+4*i+3}, s{S_NONCE}")
    S(f"""s_and_b32 s68, s2, {~3 & 0xffffffff}
    s_mul_i32 s69, s{S_W}, 9216
    s_add_u32 s69, s69, {WS_D}""")
    for tau in range(1, 4):
        S(f"""s_add_u32 s66, s{S_KQ}, {tau}
        s_and_b32 s66, s66, 3
        s_add_u32 s66, s66, s68
        s_mul_i32 s66, s66, 36864
        s_add_u32 s66, s66, s69
        s_add_u32 s66, s66, {(tau-1)*3072}""")
        for u in range(2):
            for e in range(2):
                for x in range(2):
                    S(f"v_cvt_pk_bf16_f32 v{GS+12*(tau-1)+pay[4*u+2*e+x]}, v{MC(2*tau+e,u)+2*x}, v{MC(2*tau+e,u)+2*x+1}")
        for gm in range(3):
            S(f"buffer_store_dwordx4 {vr(GS+12*(tau-1)+4*gm,4)}, v{VT}, {srd(SWS)}, s66 offen offset:{gm*1024} sc1")
    S(f"s_mul_i32 s66, s2, 36864\ns_add_u32 s66, s66, s69\ns_add_u32 s67, s66, 4096\ns_add_u32 s68, s66, 8192\ns_mov_b32 s77, {SPIN_LIMIT}")
    S(f"""s_lshl_b32 s70, s{S_B}, 2
    s_add_u32 s70, s70, s{S_W}
    s_lshl_b32 s70, s70, 5
    v_add_u32 v2, s70, v22
    v_mul_u32_u24 v2, 2304, v2
    v_and_b32 v3, 1, v23
    v_lshl_add_u32 v2, v3, 5, v2
    v_lshrrev_b32 v3, 1, v23
    v_lshl_add_u32 v2, v3, 4, v2
    s_mul_i32 s70, s{S_BLK}, 1152
    s_lshl_b32 s71, s{S_P}, 8
    s_add_u32 s70, s70, s71
    s_lshl_b32 s71, s{S_KQ}, 6
    s_add_u32 s70, s70, s71
    s_add_u32 s71, s70, {16*2304}""")
    stamp(S, cfg, 8)
    S.label("L_d")
    for i in range(9):
        S(f"buffer_load_dwordx4 {vr(GR+4*i,4)}, v{VT}, {srd(SWS)}, s{66 + i//4} offen offset:{(i%4)*1024} sc1")
    S(f"v_xor_b32 v4, s{S_NONCE}, v{GR+3}")
    for i in range(1, 9):
        S(f"v_xor_b32 v5, s{S_NONCE}, v{GR+4*i+3}\nv_or_b32 v4, v4, v5")
    S("v_cmp_eq_u32 vcc, 0, v4\ns_cmp_eq_u64 vcc, -1\ns_cbranch_scc1 L_d_ok")
    S("s_sub_u32 s77, s77, 1\ns_cmp_lg_u32 s77, 0\ns_cbranch_scc1 L_d")
    S.label("L_d_ok")
    stamp(S, cfg, 9)
    for tau in range(3):
        for u in range(2):
            for e in range(2):
                for x in range(2):
                    src = GR + 12 * tau + pay[4*u+2*e+x]; a = MC(e, u) + 2 * x
                    S(f"v_lshlrev_b32 v4, 16, v{src}\nv_and_b32 v5, 0xffff0000, v{src}\nv_add_f32 v{a}, v{a}, v4\nv_add_f32 v{a+1}, v{a+1}, v5")
    for u in range(2):
        for e in range(2):
            for x in range(2):
                S(f"v_cvt_pk_bf16_f32 v{GS+4*u+2*e+x}, v{MC(e,u)+2*x}, v{MC(e,u)+2*x+1}")
    for u in range(2):
        for x in range(2): S(f"v_permlane16_swap_b32 v{GS+4*u+x}, v{GS+4*u+2+x}")
    for u in range(2):
        S(f"buffer_store_dwordx4 {vr(GS+4*u,4)}, v2, {srd(SOUT)}, s{70+u} offen")
    if cfg.stamps:
        S.wait_vm(0); stamp(S, cfg, 10)
    stamps_store(S, cfg)

def gen(cfg):
    hdr = open(REF).read().split("; Override launch")[0].rstrip("\n")
    launch = [f"; @launch grid=(256,1,1) block=(512,1,1) lds={LDS_BYTES}"]
    if cfg.amp >= 0:
        launch = [f"; @launch kernel={NAME} grid=(256,1,1) block=(512,1,1) lds={LDS_BYTES}", "; @launch kernel=amp_kernel grid=(1,1,1) block=(64,1,1) lds=0"]
        if cfg.amp in (101, 102): launch = ["; @launch kernel=pre_kernel grid=(1,1,1) block=(64,1,1) lds=0"] + launch
    L = [hdr] + launch + ['.amdgcn_target "amdgcn-amd-amdhsa--gfx950"',
         ".text", f".globl {NAME}", ".p2align 8", f".type {NAME},@function", f"{NAME}:"]
    P = Stream("pro"); prologue(P, cfg); L += P.finish()
    Ld = Stream("loader"); loader(Ld, cfg); L += Ld.finish()
    L.append(".p2align 6")
    C = Stream("compute"); compute(C, cfg); L += C.finish()
    L += ["L_end:", "    s_endpgm", '.section .rodata,"a"', ".p2align 6", f".amdhsa_kernel {NAME}",
          "  .amdhsa_next_free_vgpr 256", "  .amdhsa_next_free_sgpr 102", "  .amdhsa_accum_offset 256",
          "  .amdhsa_group_segment_fixed_size 0", "  .amdhsa_kernarg_size 104", "  .amdhsa_user_sgpr_count 2",
          "  .amdhsa_user_sgpr_kernarg_segment_ptr 1", "  .amdhsa_system_sgpr_workgroup_id_x 1", ".end_amdhsa_kernel", ""]
    if cfg.amp >= 0:
        Am = Stream("amp")
        Am(f"""s_cmp_ge_u32 s2, 1
        s_cbranch_scc1 amp_end
        s_memrealtime s[24:25]
        s_load_dwordx2 s[4:5], s[0:1], 96
        s_mov_b32 s10, {WS_SIZE}
        s_mov_b32 s11, 0x20000
        s_waitcnt lgkmcnt(0)
        s_mov_b32 s8, s4
        s_and_b32 s9, s5, 0xffff
        v_lshlrev_b32 v1, 9, v0
        s_mov_b32 s12, {WS_STAMP + 64 * cfg.ampw}""")
        for i in range(4):
            Am(f"s_add_u32 s13, s12, {i*64*512}")
            Am(f"buffer_load_dword v{4+i}, v1, s[8:11], s13 offen offset:56")
            Am(f"buffer_load_dword v{8+i}, v1, s[8:11], s13 offen offset:{4*(cfg.amp if cfg.amp < 100 else 15)}")
        Am("v_min_u32 v4, v4, v5\nv_min_u32 v6, v6, v7\nv_min_u32 v4, v4, v6\nv_max_u32 v8, v8, v9\nv_max_u32 v10, v10, v11\nv_max_u32 v8, v8, v10")
        Am("s_mov_b32 s14, -1\ns_mov_b32 s15, 0")
        for l in range(64):
            Am(f"v_readlane_b32 s16, v4, {l}\nv_readlane_b32 s17, v8, {l}\ns_nop 3\ns_min_u32 s14, s14, s16\ns_max_u32 s15, s15, s17")
        if cfg.amp == 100: Am("s_mov_b32 s14, s15\ns_mov_b32 s15, s24")
        if cfg.amp == 101:
            Am(f"s_add_u32 s4, s4, {WS_STAMP - 64}\ns_addc_u32 s5, s5, 0\ns_load_dword s26, s[4:5], 0\ns_waitcnt lgkmcnt(0)\ns_mov_b32 s15, s14\ns_mov_b32 s14, s26")
        if cfg.amp == 102: Am("s_mov_b32 s15, s14")
        Am("s_sub_u32 s14, s15, s14\ns_min_u32 s14, s14, 20000\ns_mul_i32 s14, s14, 10\ns_memrealtime s[18:19]\ns_waitcnt lgkmcnt(0)")
        Am.label("amp_spin")
        Am("s_sleep 2\ns_memrealtime s[20:21]\ns_waitcnt lgkmcnt(0)\ns_sub_u32 s22, s20, s18\ns_cmp_lt_u32 s22, s14\ns_cbranch_scc1 amp_spin")
        Am.label("amp_end")
        Am("s_endpgm")
        L = L[:-1]
        L += [".text", ".globl amp_kernel", ".p2align 8", ".type amp_kernel,@function", "amp_kernel:"] + Am.finish()
        L += [".globl pre_kernel", ".p2align 8", ".type pre_kernel,@function", "pre_kernel:",
              "s_cmp_ge_u32 s2, 1", "s_cbranch_scc1 pre_end", "s_load_dwordx2 s[4:5], s[0:1], 96", f"s_mov_b32 s10, {WS_SIZE}", "s_mov_b32 s11, 0x20000", "s_waitcnt lgkmcnt(0)",
              "s_mov_b32 s8, s4", "s_and_b32 s9, s5, 0xffff", "v_mov_b32 v1, 0", "s_memrealtime s[12:13]", "s_waitcnt lgkmcnt(0)", "v_mov_b32 v2, s12", f"s_mov_b32 s14, {WS_STAMP - 64}",
              "buffer_store_dword v2, v1, s[8:11], s14 offen", "pre_end:", "s_endpgm"]
        L += ['.section .rodata,"a"', ".p2align 6", ".amdhsa_kernel pre_kernel", "  .amdhsa_next_free_vgpr 32", "  .amdhsa_next_free_sgpr 32", "  .amdhsa_accum_offset 32",
              "  .amdhsa_group_segment_fixed_size 0", "  .amdhsa_kernarg_size 104", "  .amdhsa_user_sgpr_count 2",
              "  .amdhsa_user_sgpr_kernarg_segment_ptr 1", "  .amdhsa_system_sgpr_workgroup_id_x 1", ".end_amdhsa_kernel"]
        L += ['.section .rodata,"a"', ".p2align 6", ".amdhsa_kernel amp_kernel", "  .amdhsa_next_free_vgpr 32", "  .amdhsa_next_free_sgpr 32", "  .amdhsa_accum_offset 32",
              "  .amdhsa_group_segment_fixed_size 0", "  .amdhsa_kernarg_size 104", "  .amdhsa_user_sgpr_count 2",
              "  .amdhsa_user_sgpr_kernarg_segment_ptr 1", "  .amdhsa_system_sgpr_workgroup_id_x 1", ".end_amdhsa_kernel", ""]
    nb = lambda s: sum(1 for x in s.out if not isinstance(x, str) and x.op == "s_barrier")
    sys.stderr.write(f"nops: loader {Ld.nops} compute {C.nops}; barriers: loader {nb(Ld)} compute {nb(C)}\n")
    assert nb(Ld) == nb(C)
    return "\n".join(L)

if __name__ == "__main__":
    cfg = Cfg()
    out = sys.argv[1]
    for a in sys.argv[2:]:
        k, val = a.split("=", 1)
        cur = getattr(Cfg, k)
        if isinstance(cur, bool): val = val in ("1", "true", "True")
        elif isinstance(cur, int): val = int(val)
        elif val == "None": val = None
        setattr(cfg, k, val)
    open(out, "w").write(gen(cfg))
```

```python
import sys, math, struct
from sched import Stream

NAME = "concat_heads__mha_block_cached__gqa_block_cached__near_ridge_kernel"
REF = "concat_heads__mha_block_cached__gqa_block_cached__near_ridge.s.ref"
SLOT = 17408
PITCH = 1056
LDS_BYTES = 9 * SLOT
WS_O, WS_D, WS_DX, WS_FLAG, WS_EPOCH, WS_STAMP = 0, 16 << 20, 32 << 20, 40 << 20, 41 << 20, 48 << 20
WS_SIZE = 64 << 20
SPIN_LIMIT = 1 << 15

def f32(x): return struct.unpack("<I", struct.pack("<f", x))[0]
def vr(n, c=1): return f"v{n}" if c == 1 else f"v[{n}:{n+c-1}]"
def mfma(d, a, b, first=False):
    return f"v_mfma_f32_16x16x32_bf16 {vr(d,4)}, {vr(a,4)}, {vr(b,4)}, {'0' if first else vr(d,4)}"

SX, SWQ, SK, SV, SWO, SWS, SOUT, SDBG = 8, 12, 16, 20, 24, 28, 32, 36
def srd(n): return f"s[{n}:{n+3}]"
S_BLK, S_KQ, S_B, S_P, S_H0, S_W, S_NONCE = 40, 41, 42, 43, 44, 45, 46

class Cfg:
    pol_x = ""; pol_wq = ""; pol_kv = "nt"; pol_wo = ""
    stop = None
    stamps = False
    real = False
    ngrp = 2
    k0_after = 5
    poll0 = 4
    poll1 = 9
    nodma = False
    pre = 0
    amp = -1
    ampw = 0
    k0_first = 0
    k0_n = 4
    bdetail = False
    flag0 = 1
    flag1 = 3
    cdetail = 0
    kvsched = 1
    adetail = False
    nokv = False
    nomfma = False
    noread = False

def stamp(S, cfg, idx, det=False):
    if not cfg.stamps: return
    if cfg.cdetail and idx not in (0, 13) and not (det or S.inC): return
    S(f"{'s_memrealtime' if cfg.real else 's_memtime'} s[78:79]")
    S("s_waitcnt lgkmcnt(0)")
    S(f"s_mov_b32 s{80+idx}, s78")

def stamps_store(S, cfg):
    if not cfg.stamps: return
    S("s_memrealtime s[78:79]\ns_waitcnt lgkmcnt(0)\ns_mov_b32 s95, s78")
    stamp(S, cfg, 13)
    S(f"s_lshl_b32 s66, s2, 3\ns_add_u32 s66, s66, s3\ns_lshl_b32 s66, s66, 6\ns_add_u32 s66, s66, {WS_STAMP}")
    S("v_mov_b32 v2, 0")
    S("s_mov_b64 exec, 1")
    for i in range(16):
        S(f"v_mov_b32 v3, s{80+i}")
        S(f"buffer_store_dword v3, v2, {srd(SWS)}, s66 offen offset:{4*i}")
    S("s_mov_b64 exec, -1")

def prologue(S, cfg):
    S(f"""s_cmp_ge_u32 s2, 256
    s_cbranch_scc1 L_end
    s_bfe_u32 s{S_BLK}, s2, 0x10002
    s_mul_i32 s66, s{S_BLK}, 40
    s_add_u32 s4, s0, s66
    s_addc_u32 s5, s1, 0
    s_load_dwordx8 s[48:55], s[4:5], 0
    s_load_dwordx2 s[56:57], s[4:5], 32
    s_load_dwordx4 s[60:63], s[0:1], 80
    s_load_dwordx2 s[64:65], s[0:1], 96
    v_lshrrev_b32 v2, 6, v0
    v_and_b32 v1, 63, v0
    s_and_b32 s{S_KQ}, s2, 3
    v_readfirstlane_b32 s3, v2
    s_bfe_u32 s{S_B}, s2, 0x30003
    s_lshr_b32 s{S_P}, s2, 6
    s_lshl_b32 s{S_H0}, s{S_KQ}, 2
    s_add_u32 s{S_H0}, s{S_H0}, s{S_P}
    s_lshl_b32 s{S_H0}, s{S_H0}, 1
    s_and_b32 s{S_W}, s3, 3""")
    if cfg.stamps:
        for i in range(16): S(f"s_mov_b32 s{80+i}, 0")
        S("s_memrealtime s[78:79]\ns_waitcnt lgkmcnt(0)\ns_mov_b32 s94, s78")
        stamp(S, cfg, 0)
    for d, size in ((SX, 1179648), (SWQ, 4718592), (SK, 8388608), (SV, 8388608), (SWO, 4718592), (SWS, WS_SIZE), (SOUT, 2359296), (SDBG, 256)):
        S(f"s_mov_b32 s{d+2}, {size}\ns_mov_b32 s{d+3}, 0x20000")
    S("s_waitcnt lgkmcnt(0)")
    for d, p in ((SX, 48), (SWQ, 54), (SK, 50), (SV, 52), (SWO, 56), (SWS, 64), (SOUT, 60), (SDBG, 62)):
        S(f"s_mov_b32 s{d}, s{p}\ns_and_b32 s{d+1}, s{p+1}, 0xffff")
    S("s_cmp_lt_u32 s3, 4\ns_cbranch_scc1 L_compute")

def nonce_issue(S, vt, vz):
    S(f"v_mov_b32 v{vz}, 0")
    S(f"buffer_load_dword v{vt}, v{vz}, {srd(SDBG)}, 0 offen sc1")
def nonce_check(S, vt, vz, lab):
    S(f"v_readfirstlane_b32 s{S_NONCE}, v{vt}")
    S(f"s_cmp_lg_u32 s{S_NONCE}, 0\ns_cbranch_scc1 {lab}_ok")
    S(f"s_mov_b32 s77, {SPIN_LIMIT}")
    S.label(f"{lab}_spin")
    S.out += [I for I in _raw(f"""buffer_load_dword v{vt}, v{vz}, {srd(SDBG)}, 0 offen sc1
    s_waitcnt vmcnt(0)
    v_readfirstlane_b32 s{S_NONCE}, v{vt}
    s_nop 4
    s_cmp_lg_u32 s{S_NONCE}, 0
    s_cbranch_scc1 {lab}_ok
    s_sleep 2
    s_sub_u32 s77, s77, 1
    s_cmp_lg_u32 s77, 0
    s_cbranch_scc1 {lab}_spin""")]
    S.label(f"{lab}_ok")
def _raw(text):
    from sched import Ins
    return [Ins(l.strip()) for l in text.split("\n") if l.strip()]

def c_units():
    u = [("M", 0, 0), ("M", 0, 1), ("E", 0, 0), ("M", 1, 0), ("M", 1, 1), ("E", 1, 0)]
    for hh in (0, 1):
        for ii in range(6): u.append(("P", hh, ii))
    return u
BARS = ["B0", "B1", "B2"] + [f"C{i}" for i in range(19)]
def c_plan(cfg):
    units = c_units()
    free = [(8, "B0"), (0, "B0"), (1, "B0"), (2, "B1"), (3, "B1"), (4, "B2"), (5, "B2"), (6, "C0"), (7, "C0")]
    items = [("W", j) for j in range(7)]
    for j in range(6, 18):
        if j + 1 < 18: items.append(("W", j + 1))
        items.append(("O", j))
    slot_of, issue = {}, {b: [] for b in BARS}
    pend = {j: [] for j in range(18)}
    done_units = 0
    for it in items:
        while not free:
            for sl in pend[done_units]: free.append((sl, f"C{done_units+1}"))
            done_units += 1
        sl, rel = free.pop(0)
        if it[0] == "O":
            mn = f"C{cfg.poll0}" if units[it[1]][1] == 0 else f"C{cfg.poll1}"
            if BARS.index(rel) < BARS.index(mn): rel = mn
        assert BARS.index(rel) < BARS.index(f"C{it[1]}"), (it, rel)
        slot_of[it] = sl; issue[rel].append(it); pend[it[1]].append(sl)
    return units, slot_of, issue

def loader(S, cfg):
    VXO, VWO, VKV, VKW, VVW, VMO, VEO, VOO, VFL, VN, VZ = 4, 5, 6, 7, 8, 9, 10, 11, 12, 14, 15
    KVR = 64
    sXb, sWb, sCC, sM, sT, sKV0, sKV1, sOff, sA, sB2 = 66, 67, 68, 69, 71, 72, 73, 74, 75, 70
    S(f"""s_lshl_b32 s{sT}, s{S_W}, 2
    v_lshrrev_b32 v2, 3, v1
    v_lshlrev_b32 v2, 4, v2
    v_add_u32 v2, s{sT}, v2
    v_mul_u32_u24 v3, 1152, v2
    v_and_b32 v13, 7, v1
    v_lshl_add_u32 v{VXO}, v13, 4, v3
    s_and_b32 s76, s{S_W}, 1
    s_lshl_b32 s76, s76, 3
    s_lshl_b32 s77, s{S_W}, 1
    s_and_b32 s77, s77, 4
    s_add_u32 s76, s76, s77
    v_lshrrev_b32 v2, 5, v1
    v_lshlrev_b32 v2, 4, v2
    v_add_u32 v2, s76, v2
    v_lshlrev_b32 v2, 13, v2
    v_and_b32 v13, 31, v1
    v_lshl_add_u32 v{VWO}, v13, 4, v2
    s_mul_i32 s{sM}, s{sT}, {PITCH}
    v_add_u32 v{VEO}, 1024, v{VXO}""")
    if cfg.ngrp > 1:
        starts = [round(9 * i / cfg.ngrp) for i in range(cfg.ngrp)]
        S(f"s_add_u32 s76, s{S_B}, s{S_P}\ns_add_u32 s76, s76, s{S_KQ}")
        tab = sum(starts[i % cfg.ngrp] << (4 * i) for i in range(16))
        S(f"s_mov_b32 s{sA}, {tab & 0xffffffff}\ns_mov_b32 s{sA+1}, {tab >> 32}" .replace(f"s{sA+1}", "s77"))
        S(f"s_lshl_b32 s76, s76, 2\ns_cmp_ge_u32 s76, 32\ns_cselect_b32 s{sA}, s77, s{sA}\ns_and_b32 s76, s76, 31\ns_lshr_b32 s{sCC}, s{sA}, s76\ns_and_b32 s{sCC}, s{sCC}, 15")
    else:
        S(f"s_mov_b32 s{sCC}, 0")
    def chunk(c):
        base = (c % 3) * 3 * SLOT
        S(f"""s_mul_i32 s{sXb}, s{S_B}, 147456
        s_lshl_b32 s76, s{sCC}, 7
        s_add_u32 s{sXb}, s{sXb}, s76
        s_lshl_b32 s{sWb}, s{sCC}, 19
        s_lshl_b32 s76, s{S_H0}, 8
        s_add_u32 s{sWb}, s{sWb}, s76""")
        for i in range(4):
            S(f"s_add_u32 m0, s{sM}, {base + i*PITCH}\ns_add_u32 s{sT}, s{sXb}, {i*1152}")
            S(f"buffer_load_dwordx4 v{VXO}, {srd(SX)}, s{sT} offen {cfg.pol_x} lds", tag=f"ch{c}")
        for st in range(2):
            for i in range(4):
                S(f"s_add_u32 m0, s{sM}, {base + SLOT*(1+st) + i*PITCH}\ns_add_u32 s{sT}, s{sWb}, {(32*st+i)*8192}")
                S(f"buffer_load_dwordx4 v{VWO}, {srd(SWQ)}, s{sT} offen {cfg.pol_wq} lds", tag=f"ch{c}")
        S(f"s_add_u32 s{sCC}, s{sCC}, 1\ns_cmp_eq_u32 s{sCC}, 9\ns_cselect_b32 s{sCC}, 0, s{sCC}")
    def kv_load(m, j0=0, j1=8):
        if cfg.nokv: return
        sr = SK if m < 2 else SV
        sb = sKV0 if m % 2 == 0 else sKV1
        for j in range(j0, j1):
            if j == max(4, j0): S(f"s_add_u32 s{sT}, s{sb}, 4096")
            so = sb if j < 4 else sT
            S(f"buffer_load_dwordx4 {vr(KVR+32*m+4*j,4)}, v{VKV}, {srd(sr)}, s{so} offen offset:{(j&3)*1024} {cfg.pol_kv}", tag=f"kv{m}")
    def kv_write(m, slot):
        if m < 2:
            for j in range(8):
                S(f"v_add_u32 v2, {slot*SLOT + j*4*PITCH}, v{VKW}")
                S(f"ds_write2_b64 v2, {vr(KVR+32*m+4*j,2)}, {vr(KVR+32*m+4*j+2,2)} offset0:0 offset1:2")
        else:
            S(f"v_add_u32 v2, {slot*SLOT}, v{VVW}")
            for j in range(8):
                S(f"ds_write_b128 v2, {vr(KVR+32*m+4*j,4)} offset:{j*4*PITCH}")
    chunk(0)
    stamp(S, cfg, 1)
    S(f"""s_lshl_b32 s76, s{S_W}, 13
    v_lshlrev_b32 v2, 4, v1
    v_add_u32 v{VKV}, s76, v2
    s_lshl_b32 s{sKV0}, s{S_B}, 5
    s_add_u32 s{sKV0}, s{sKV0}, s{S_H0}
    s_lshl_b32 s{sKV0}, s{sKV0}, 15
    s_add_u32 s{sKV1}, s{sKV0}, 32768
    v_lshrrev_b32 v2, 4, v1
    v_mul_u32_u24 v13, {PITCH}, v2
    s_lshl_b32 s76, s{S_W}, 8
    v_add_u32 v13, s76, v13
    v_and_b32 v3, 15, v1
    v_lshl_add_u32 v{VVW}, v3, 4, v13
    v_bfe_u32 v3, v1, 2, 2
    v_lshl_add_u32 v13, v3, 6, v13
    v_and_b32 v3, 1, v1
    v_lshl_add_u32 v13, v3, 5, v13
    v_bfe_u32 v3, v1, 1, 1
    v_lshl_add_u32 v{VKW}, v3, 3, v13""")
    S(f"""v_lshlrev_b32 v2, 4, v2
    s_lshl_b32 s76, s{S_W}, 2
    v_add_u32 v2, s76, v2
    v_mul_u32_u24 v2, 1152, v2
    v_lshlrev_b32 v3, 4, v1
    s_lshl_b32 s76, s{S_KQ}, 6
    v_add_u32 v3, s76, v3
    v_and_b32 v3, 0xff, v3
    v_add_u32 v{VMO}, v2, v3
    v_lshlrev_b32 v{VOO}, 4, v1
    v_min_u32 v2, 2, v1
    v_add3_u32 v2, v2, s{S_P}, 1
    v_and_b32 v2, 3, v2
    v_lshlrev_b32 v2, 6, v2
    s_and_b32 s76, s2, 63
    v_add_u32 v2, s76, v2
    v_lshlrev_b32 v2, 2, v2
    v_add_u32 v2, s{S_W}, v2
    v_lshlrev_b32 v{VFL}, 8, v2
    s_mul_i32 s{sOff}, s{S_B}, 3
    s_lshr_b32 s{sOff}, s{sOff}, 2""")
    S.wait_vm(8)
    chunk(1)
    for c in range(9):
        S.wait_vm_tag(f"ch{c}")
        if c == 8: S.wait_lg(0)
        if cfg.adetail: stamp(S, cfg, 2 + c)
        elif c in (0, 1, 2, 8): stamp(S, cfg, {0: 2, 1: 3, 2: 4, 8: 5}[c])
        S("s_barrier")
        if c <= 6:
            k = c - cfg.k0_first
            if cfg.k0_n == 4 and 0 <= k < 4: kv_load(0, 2 * k, 2 * k + 2)
            if cfg.k0_n == 2 and 0 <= k < 2: kv_load(0, 4 * k, 4 * k + 4)
            if cfg.k0_n == 1 and k == 0: kv_load(0)
            if not cfg.nodma: chunk(c + 2)
        if c == 4: nonce_issue(S, VN, VZ)
        if c == 6: kv_load(1)
        if c == 7: kv_write(0, 0); kv_load(2)
    nonce_check(S, VN, VZ, "L_ln")
    if cfg.stop == "A":
        S.wait_vm(0); stamps_store(S, cfg); S("s_branch L_end"); return
    units, slot_of, issue = c_plan(cfg)
    def c_issue(it):
        kind, j = it
        uk, hh, x = units[j]
        sl = slot_of[it] * SLOT
        tag = f"u{j}"
        if uk in ("M", "E"):
            row = hh * 128 + (64 * x if uk == "M" else 0)
            S(f"s_lshl_b32 s{sA}, s{S_H0}, 7\ns_add_u32 s{sA}, s{sA}, {row}\ns_mul_i32 s{sA}, s{sA}, 1152")
            if uk == "M": S(f"s_lshl_b32 s76, s{S_P}, 8\ns_add_u32 s{sA}, s{sA}, s76")
            va = VMO if uk == "M" else VEO
            for i in range(4):
                S(f"s_add_u32 m0, s{sM}, {sl + i*PITCH}\ns_add_u32 s{sT}, s{sA}, {i*1152}")
                S(f"buffer_load_dwordx4 v{va}, {srd(SWO)}, s{sT} offen {cfg.pol_wo} lds", tag=tag)
            return
        S(f"""s_add_u32 s76, s{sOff}, {x}
        s_sub_u32 s77, s76, 6
        s_cmp_ge_u32 s76, 6
        s_cselect_b32 s76, s77, s76
        s_lshr_b32 s77, s76, 1
        s_add_u32 s77, s77, s{S_P}
        s_add_u32 s77, s77, 1
        s_and_b32 s77, s77, 3
        s_and_b32 s76, s76, 1""")
        if kind == "W":
            S(f"""s_lshl_b32 s{sA}, s{S_KQ}, 2
            s_add_u32 s{sA}, s{sA}, s77
            s_lshl_b32 s{sA}, s{sA}, 2
            s_add_u32 s{sA}, s{sA}, s76
            s_add_u32 s{sA}, s{sA}, {2*hh}
            s_mul_i32 s{sA}, s{sA}, {64*1152}
            s_lshl_b32 s76, s{S_P}, 8
            s_add_u32 s{sA}, s{sA}, s76""")
            for i in range(4):
                S(f"s_add_u32 m0, s{sM}, {sl + i*PITCH}\ns_add_u32 s{sT}, s{sA}, {i*1152}")
                S(f"buffer_load_dwordx4 v{VMO}, {srd(SWO)}, s{sT} offen {cfg.pol_wo} lds", tag=tag)
        else:
            S(f"""s_lshl_b32 s77, s77, 6
            s_and_b32 s{sA}, s2, 63
            s_add_u32 s{sA}, s{sA}, s77
            s_lshl_b32 s{sA}, s{sA}, 2
            s_add_u32 s{sA}, s{sA}, s{S_W}
            s_lshl_b32 s{sA}, s{sA}, 2
            s_add_u32 s{sA}, s{sA}, s76
            s_add_u32 s{sA}, s{sA}, {2*hh}
            s_lshl_b32 s{sA}, s{sA}, 12
            s_lshl_b32 s{sB2}, s{S_W}, 12""")
            for i in range(4):
                S(f"s_add_u32 m0, s{sB2}, {sl + i*1024}\ns_add_u32 s{sT}, s{sA}, {WS_O + i*1024}")
                S(f"buffer_load_dwordx4 v{VOO}, {srd(SWS)}, s{sT} offen sc1 lds", tag=tag)
    def poll_issue(hh):
        S(f"s_mov_b32 s76, {WS_FLAG}")
        S(f"buffer_load_dword v{16+hh}, v{VFL}, {srd(SWS)}, s76 offen offset:{128*hh} sc1")
    def poll(hh):
        lab = f"L_poll{hh}"
        S(f"v_cmp_eq_u32 vcc, s{S_NONCE}, v{16+hh}")
        S(f"s_cmp_eq_u64 vcc, -1\ns_cbranch_scc1 {lab}_ok")
        S(f"s_mov_b32 s76, {WS_FLAG}\ns_mov_b32 s77, {SPIN_LIMIT}")
        S.label(lab)
        S.out += _raw(f"""buffer_load_dword v{16+hh}, v{VFL}, {srd(SWS)}, s76 offen offset:{128*hh} sc1
        s_waitcnt vmcnt(0)
        v_cmp_eq_u32 vcc, s{S_NONCE}, v{16+hh}
        s_nop 4
        s_cmp_eq_u64 vcc, -1
        s_cbranch_scc1 {lab}_ok
        s_sub_u32 s77, s77, 1
        s_cmp_lg_u32 s77, 0
        s_cbranch_scc1 {lab}""")
        S.label(f"{lab}_ok")
    kv_write(1, 2)
    kv_load(3)
    S.wait_lg(0)
    stamp(S, cfg, 6)
    S("s_barrier")
    kv_write(2, 4)
    if cfg.stop != "B":
        for it in issue["B0"]: c_issue(it)
    S.wait_lg(0)
    stamp(S, cfg, 12)
    S("s_barrier")
    kv_write(3, 6)
    if cfg.stop != "B":
        for it in issue["B1"]: c_issue(it)
    S.wait_lg(0)
    stamp(S, cfg, 7)
    S("s_barrier")
    if cfg.stop == "B":
        S.wait_vm(0); stamps_store(S, cfg); S("s_branch L_end"); return
    for it in issue["B2"]: c_issue(it)
    S.inC = True
    for i in range(18):
        S.wait_vm_tag(f"u{i}")
        if cfg.cdetail:
            if 0 <= i - (cfg.cdetail - 1) < 12: stamp(S, cfg, 1 + i - (cfg.cdetail - 1))
        elif i in (0, 6, 12, 17): stamp(S, cfg, {0: 8, 6: 9, 12: 10, 17: 11}[i])
        S("s_barrier")
        if i == cfg.poll0 - 1: poll_issue(0)
        if i == cfg.poll1 - 1: poll_issue(1)
        for it in issue[f"C{i}"]:
            if it[0] == "W": c_issue(it)
        if i == cfg.poll0: poll(0)
        if i == cfg.poll1: poll(1)
        for it in issue[f"C{i}"]:
            if it[0] == "O": c_issue(it)
    S(f"s_cmp_lg_u32 s{S_W}, 0\ns_cbranch_scc1 L_lfin")
    R = 64
    S(f"""v_and_b32 v2, 7, v1
    v_bfe_u32 v3, v1, 3, 2
    v_lshl_add_u32 v2, v3, 4, v2
    s_and_b32 s76, s{S_P}, 1
    s_lshl_b32 s76, s76, 3
    v_add_u32 v2, s76, v2
    v_lshlrev_b32 v2, 4, v2
    v_lshrrev_b32 v3, 5, v1
    v_mul_u32_u24 v3, {4*6*1024}, v3
    v_add_u32 v4, v2, v3
    s_lshl_b32 s{sA}, s{S_BLK}, 3
    s_add_u32 s{sA}, s{sA}, s{S_B}
    s_lshl_b32 s{sA}, s{sA}, 6
    s_add_u32 s{sA}, s{sA}, s{S_KQ}
    s_mul_i32 s{sA}, s{sA}, 6144
    s_lshr_b32 s76, s{S_P}, 1
    s_mul_i32 s76, s76, 3072
    s_add_u32 s{sA}, s{sA}, s76
    s_add_u32 s{sA}, s{sA}, {WS_DX}
    s_mov_b32 s77, {SPIN_LIMIT}""")
    S.label("L_dx")
    for r in range(8):
        S(f"s_add_u32 s{sT}, s{sA}, {r*2*4*6*1024}")
        for gm in range(3):
            S(f"buffer_load_dwordx4 {vr(R+12*r+4*gm,4)}, v4, {srd(SWS)}, s{sT} offen offset:{gm*1024} sc1")
    S(f"v_xor_b32 v5, s{S_NONCE}, v{R+3}")
    for i in range(1, 24):
        S(f"v_xor_b32 v6, s{S_NONCE}, v{R+4*i+3}\nv_or_b32 v5, v5, v6")
    S("v_cmp_eq_u32 vcc, 0, v5\ns_cmp_eq_u64 vcc, -1\ns_cbranch_scc1 L_dx_ok")
    S("s_sleep 1\ns_sub_u32 s77, s77, 1\ns_cmp_lg_u32 s77, 0\ns_cbranch_scc1 L_dx")
    S.label("L_dx_ok")
    AC = 16
    pay = [0, 1, 2, 4, 5, 6, 8, 9]
    for r in range(8):
        for d in range(8):
            src = R + 12 * r + pay[d]
            if r == 0:
                S(f"v_lshlrev_b32 v{AC+2*d}, 16, v{src}\nv_and_b32 v{AC+2*d+1}, 0xffff0000, v{src}")
            else:
                S(f"v_lshlrev_b32 v6, 16, v{src}\nv_and_b32 v7, 0xffff0000, v{src}\nv_add_f32 v{AC+2*d}, v{AC+2*d}, v6\nv_add_f32 v{AC+2*d+1}, v{AC+2*d+1}, v7")
    for i in range(8): S(f"v_permlane32_swap_b32 v{AC+i}, v{AC+8+i}")
    for i in range(8): S(f"v_add_f32 v{AC+i}, v{AC+i}, v{AC+8+i}")
    for i in range(4): S(f"v_cvt_pk_bf16_f32 v{32+i}, v{AC+2*i}, v{AC+2*i+1}")
    S(f"""v_and_b32 v2, 7, v1
    s_lshl_b32 s76, s{S_B}, 7
    s_lshl_b32 s77, s{S_KQ}, 5
    s_add_u32 s76, s76, s77
    s_lshl_b32 s77, s{S_P}, 3
    s_add_u32 s76, s76, s77
    v_add_u32 v2, s76, v2
    v_mul_u32_u24 v2, 2304, v2
    v_bfe_u32 v3, v1, 3, 2
    v_lshl_add_u32 v2, v3, 3, v2
    v_lshrrev_b32 v3, 5, v1
    v_lshl_add_u32 v2, v3, 6, v2
    s_mul_i32 s76, s{S_BLK}, 1152
    s_add_u32 s76, s76, 1024
    buffer_store_dwordx2 v[32:33], v2, {srd(SOUT)}, s76 offen
    buffer_store_dwordx2 v[34:35], v2, {srd(SOUT)}, s76 offen offset:32""")
    S.label("L_lfin")
    S("s_waitcnt vmcnt(0)")
    stamps_store(S, cfg)
    S("s_branch L_end")

class Pipe:
    def __init__(self, S, lead):
        self.S, self.lead = S, lead
    def run(self, groups, fill=None, start=0, maxrd=2, tail=None):
        S = self.S
        queue = []
        for gi in range(start, len(groups)):
            g = groups[gi]
            if g.get("epoch"): queue.append((gi, g["epoch"]))
            for r in g.get("pre", []) + g["reads"]: queue.append((gi, r))
        for r in (tail or []): queue.append((len(groups) + 0, r))
        nm = [len(g["mf"]) for g in groups]
        pos = [sum(nm[:i]) for i in range(len(groups) + 1)]
        fl = {}
        for (g0, g1, ins) in (fill or []):
            a, b = pos[g0], pos[g1]
            for k, x in enumerate(ins):
                fl.setdefault(a + (k * (b - a)) // len(ins), []).append(x)
        since_read = 99
        m = 0
        for gi, g in enumerate(groups):
            while queue and queue[0][0] <= gi:
                x = queue.pop(0)[1]
                x() if callable(x) else S(x)
            for mf in g["mf"]:
                S(mf)
                since_read += 1
                n = 0
                while queue and n < maxrd and queue[0][0] <= gi + self.lead:
                    x = queue[0][1]
                    if callable(x):
                        if since_read < 5: break
                        queue.pop(0); x(); n += 1
                        continue
                    behind = queue[0][0] < gi + self.lead
                    if n >= 1 and not behind: break
                    queue.pop(0); S(x); n += 1; since_read = 0
                for x in fl.get(m, []): S(*x) if isinstance(x, tuple) else S(x)
                m += 1
        for _, x in queue:
            x() if callable(x) else S(x)

def compute(S, cfg):
    VX, VW = [4, 5, 6], [7, 8, 9]
    VK0, VK1, VV0, VV1, VOST, VZ, VN = 10, 11, 12, 13, 14, 15, 16
    VM0, VM1, VT, VL0, VL1 = 17, 18, 19, 20, 21
    VRC = [[56, 57], [58, 59]]
    QP = lambda h: 64 + 32 * h
    sC = 47
    S.label("L_compute")
    S(f"v_mov_b32 v{VZ}, 0")
    S(f"s_or_b32 s66, s2, s3\ns_cmp_lg_u32 s66, 0\ns_cbranch_scc1 L_notag")
    S.out += _raw(f"""s_mov_b32 s66, {WS_EPOCH}
    buffer_load_dword v2, v{VZ}, {srd(SWS)}, s66 offen sc1
    s_waitcnt vmcnt(0)
    v_add_u32 v2, 1, v2
    v_max_u32 v2, 1, v2
    buffer_store_dword v2, v{VZ}, {srd(SWS)}, s66 offen sc1
    buffer_store_dword v2, v{VZ}, {srd(SDBG)}, 0 offen sc1
    s_waitcnt vmcnt(0)""")
    S.label("L_notag")
    S(f"""v_and_b32 v22, 15, v1
    v_lshrrev_b32 v23, 4, v1
    v_mul_u32_u24 v2, {PITCH}, v22
    v_lshl_add_u32 v{VK0}, v23, 4, v2
    v_add_u32 v{VK1}, {2*SLOT}, v{VK0}
    s_lshl_b32 s66, s{S_W}, 8
    v_add_u32 v{VX[0]}, s66, v{VK0}
    v_add_u32 v{VX[1]}, {3*SLOT}, v{VX[0]}
    v_add_u32 v{VX[2]}, {6*SLOT}, v{VX[0]}
    v_bfe_u32 v2, v1, 2, 3
    v_mul_u32_u24 v2, {PITCH}, v2
    v_lshrrev_b32 v3, 5, v1
    v_lshl_add_u32 v2, v3, 9, v2
    v_and_b32 v3, 3, v1
    v_lshl_add_u32 v2, v3, 3, v2
    v_add_u32 v{VW[0]}, {SLOT}, v2
    v_add_u32 v{VW[1]}, {4*SLOT}, v2
    v_add_u32 v{VW[2]}, {7*SLOT}, v2
    v_lshrrev_b32 v2, 2, v1
    v_mul_u32_u24 v2, {PITCH}, v2
    v_lshl_add_u32 v2, v3, 3, v2
    v_add_u32 v{VV0}, {4*SLOT}, v2
    v_add_u32 v{VV1}, {6*SLOT}, v2
    s_lshl_b32 s66, s2, 16
    s_lshl_b32 s67, s{S_W}, 14
    s_add_u32 s66, s66, s67
    v_lshlrev_b32 v{VOST}, 4, v1
    v_add_u32 v{VOST}, s66, v{VOST}
    s_mov_b32 s{sC}, {f32(math.log2(math.e) / math.sqrt(128.0))}""")
    def bar(fn=None):
        def f():
            S.wait_lg(0)
            if fn: fn()
            S("s_barrier")
        return f
    ACC = lambda t, u: 128 + 8 * t + 4 * u
    ARING = [96, 104, 112, 120, 56]
    XF = lambda c, s, u: 24 + 16 * (c & 1) + 8 * s + 4 * u
    groups = []
    for c in range(9):
        for t in range(16):
            n = 16 * c + t
            rg = ARING[n % 5]
            g = dict(reads=[f"ds_read_b64_tr_b16 {vr(rg+4*s+2*rd,2)}, v{VW[c%3]} offset:{s*SLOT + rd*8*PITCH + 32*t}" for s in range(2) for rd in range(2)],
                     mf=[mfma(ACC(t, u), rg + 4*s, XF(c, s, u), first=(c == 0 and s == 0)) for u in range(2) for s in range(2)])
            if t == 0:
                g["epoch"] = bar((lambda: stamp(S, cfg, 1)) if c == 0 else None) if c else None
                g["pre"] = [f"ds_read_b128 {vr(XF(c,s,u),4)}, v{VX[c%3]} offset:{128*u + 64*s}" for s in range(2) for u in range(2)]
            groups.append(g)
    KR = lambda i: 24 + 4 * ((i + 4) & 7)
    def k_read(h, i):
        kt, s = i >> 2, i & 3
        return f"ds_read_b128 {vr(KR(i),4)}, v{VK0 if h == 0 else VK1} offset:{(kt&1)*16*PITCH + (kt>>1)*256 + 64*s}"
    def v_reads(h, i):
        dt, j = i >> 2, i & 3
        return [f"ds_read_b64_tr_b16 {vr(KR(i)+2*rd,2)}, v{VV0 if h == 0 else VV1} offset:{rd*16*PITCH + j*256 + 32*dt}" for rd in range(2)]
    def pack(dst, src):
        return [f"v_cvt_pk_bf16_f32 v{dst+8*s+4*u+2*e+x}, v{src+8*(2*s+e)+4*u+2*x}, v{src+8*(2*s+e)+4*u+2*x+1}" for s in range(4) for u in range(2) for e in range(2) for x in range(2)]
    S("s_barrier")
    stamp(S, cfg, 1)
    if cfg.nomfma:
        for g in groups: g['mf'] = ['s_nop 0'] * 4
    if cfg.noread:
        for g in groups[5:]: g['reads'] = []; g['pre'] = []
    P = Pipe(S, 4)
    P.run(groups, fill=[(138, 144, pack(QP(0), 128))], tail=[k_read(0, i) for i in range(4)])
    stamp(S, cfg, 2)
    if cfg.stop == "A":
        for x in pack(QP(1), 192): S(x)
        for i in range(16):
            S(f"s_mov_b32 s66, {i*1024}")
            S(f"buffer_store_dwordx4 {vr(64+4*i,4)}, v{VOST}, {srd(SWS)}, s66 offen")
        S.wait_vm(0); stamps_store(S, cfg); S("s_branch L_end"); return
    SS = lambda h: 128 + 64 * h
    def qk_groups(h):
        return [dict(reads=[k_read(h, 4*kt+s) for s in range(4)],
                     mf=[mfma(SS(h)+8*kt+4*u, KR(4*kt+s), QP(h)+8*s+4*u, first=(s == 0)) for u in range(2) for s in range(4)]) for kt in range(8)]
    def pv_groups(h):
        return [dict(reads=[r for j in range(4) for r in v_reads(h, 4*dt+j)],
                     mf=[mfma(SS(h)+8*dt+4*u, KR(4*dt+j), QP(h)+8*j+4*u, first=(j == 0)) for u in range(2) for j in range(4)]) for dt in range(8)]
    def fold(op, a, b):
        return [f"v_permlane32_swap_b32 v{a}, v{b}", f"{op} v{a}, v{a}, v{b}", f"v_mov_b32 v{b}, v{a}",
                f"v_permlane16_swap_b32 v{a}, v{b}", f"{op} v{a}, v{a}, v{b}", f"v_mov_b32 v{b}, v{a}",
                f"v_permlane32_swap_b32 v{a}, v{b}"]
    def softmax(h):
        s = SS(h)
        el = [[s + 8*kt + 4*u + r for kt in range(8) for r in range(4)] for u in range(2)]
        VM, VL = [VM0, VM1], [VL0, VL1]
        o = []
        for i in range(16):
            for u in range(2):
                e = el[u]
                if i == 0: o.append(f"v_max3_f32 v{VM[u]}, v{e[0]}, v{e[1]}, v{e[2]}")
                elif i < 15: o.append(f"v_max3_f32 v{VM[u]}, v{VM[u]}, v{e[2*i+1]}, v{e[2*i+2]}")
                else: o.append(f"v_max_f32 v{VM[u]}, v{VM[u]}, v{e[31]}")
        o += fold("v_max_f32", VM0, VM1)
        o += [f"v_mul_f32 v{VM0}, s{sC}, v{VM0}", f"v_mul_f32 v{VM1}, s{sC}, v{VM1}"]
        order = [(kt, u, r) for kt in range(8) for u in range(2) for r in range(4)]
        D = 2
        for i in range(64 + 2 * D):
            if i < 64:
                kt, u, r = order[i]; x = s + 8*kt + 4*u + r
                o.append(f"v_fma_f32 v{x}, v{x}, s{sC}, -v{VM[u]}")
            j = i - D
            if 0 <= j < 64:
                kt, u, r = order[j]; x = s + 8*kt + 4*u + r
                o.append(f"v_exp_f32 v{x}, v{x}")
            j = i - 2 * D
            if 0 <= j < 64:
                kt, u, r = order[j]; x = s + 8*kt + 4*u + r
                if kt == 0 and r == 0: pass
                elif kt == 0 and r == 1: o.append(f"v_add_f32 v{VL[u]}, v{x-1}, v{x}")
                else: o.append(f"v_add_f32 v{VL[u]}, v{VL[u]}, v{x}")
                if r & 1: o.append(f"v_cvt_pk_bf16_f32 v{QP(h)+8*(kt>>1)+4*u+2*(kt&1)+(r>>1)}, v{x-1}, v{x}")
        o += fold("v_add_f32", VL0, VL1)
        o += [f"v_rcp_f32 v{VRC[h][0]}, v{VL0}", f"v_rcp_f32 v{VRC[h][1]}, v{VL1}"]
        return o
    def o_pack(h):
        s = SS(h); o = []
        pk = pack(QP(h), s)
        for st in range(4):
            for u in range(2):
                for e in range(2):
                    for r in range(4):
                        x = s + 8*(2*st+e) + 4*u + r
                        o.append(f"v_mul_f32 v{x}, v{x}, v{VRC[h][u]}")
                i = 2 * st + u
                o += pk[4*i:4*i+4]
                so = h * 8192 + i * 1024
                o.append(f"s_mov_b32 s66, {WS_O + (so & ~4095)}")
                o.append((f"buffer_store_dwordx4 {vr(QP(h)+4*i,4)}, v{VOST}, {srd(SWS)}, s66 offen offset:{so & 4095} sc1", f"o{h}"))
        return o
    def flag(h):
        S.wait_vm_tag(f"o{h}")
        S(f"""s_lshl_b32 s68, s2, 2
        s_add_u32 s68, s68, s{S_W}
        s_lshl_b32 s68, s68, 8
        s_add_u32 s68, s68, {WS_FLAG + 128*h}
        v_mov_b32 v{VT}, s{S_NONCE}
        buffer_store_dword v{VT}, v{VZ}, {srd(SWS)}, s68 offen sc1""")
    PB = Pipe(S, 1)
    nonce_issue(S, VN, VZ)
    PB.run(qk_groups(0), fill=[(0, 8, pack(QP(1), 192))], start=1)
    S.wait_lg(0); stamp(S, cfg, 3)
    S("s_barrier")
    if cfg.bdetail: stamp(S, cfg, 8)
    PB.run(qk_groups(1), fill=[(0, 8, softmax(0))])
    S.wait_lg(0); stamp(S, cfg, 4)
    S("s_barrier")
    if cfg.bdetail: stamp(S, cfg, 9)
    PB.run(pv_groups(0), fill=[(0, 8, softmax(1))])
    nonce_check(S, VN, VZ, "L_cn")
    S.wait_lg(0); stamp(S, cfg, 5)
    S("s_barrier")
    if cfg.bdetail: stamp(S, cfg, 10)
    PB.run(pv_groups(1), fill=[(0, 6, o_pack(0))])
    stamp(S, cfg, 6)
    if cfg.stop == "B":
        for x in o_pack(1): S(*x) if isinstance(x, tuple) else S(x)
        S.wait_vm(0); stamp(S, cfg, 7); stamps_store(S, cfg); S("s_branch L_end"); return
    units, slot_of, issue = c_plan(cfg)
    VA, VB = [4, 5, 6], [7, 8, 9]
    S(f"""v_add_u32 v{VA[0]}, {-4*SLOT & 0xffffffff}, v{VV0}
    v_add_u32 v{VA[1]}, {-1*SLOT & 0xffffffff}, v{VV0}
    v_add_u32 v{VA[2]}, {2*SLOT}, v{VV0}
    s_lshl_b32 s66, s{S_W}, 12
    v_lshlrev_b32 v{VB[0]}, 4, v1
    v_add_u32 v{VB[0]}, s66, v{VB[0]}
    v_add_u32 v{VB[1]}, {3*SLOT}, v{VB[0]}
    v_add_u32 v{VB[2]}, {6*SLOT}, v{VB[0]}""")
    MC = lambda nt, u: 128 + 8 * nt + 4 * u
    EC = lambda nt, u: 192 + 8 * nt + 4 * u
    RING_OWN = [24, 32, 40, 48]
    RING_PEER = [224, 232, 240, 248, 96]
    OB = lambda j, s, u: 64 + 16 * (j & 1) + 8 * s + 4 * u
    def cbar(j):
        def fn():
            if j == cfg.flag0: flag(0)
            if j == cfg.flag1: flag(1)
            if cfg.cdetail and 0 <= j - (cfg.cdetail - 1) < 12: stamp(S, cfg, 1 + j - (cfg.cdetail - 1), True)
        return bar(fn)
    own, peer = [], []
    for j, (uk, hh, x) in enumerate(units):
        sl = slot_of[("W", j)]
        va, so = VA[sl // 3], (sl % 3) * SLOT
        lst = own if j < 6 else peer
        ring = RING_OWN if j < 6 else RING_PEER
        if uk == "E":
            for nt in range(4):
                for sp in range(2):
                    rg = ring[len(lst) % len(ring)]
                    g = dict(reads=[f"ds_read_b64_tr_b16 {vr(rg+4*s+2*rd,2)}, v{va} offset:{so + (2*(2*sp+s)+rd)*128 + 32*nt}" for s in range(2) for rd in range(2)],
                             mf=[mfma(EC(nt, u), rg + 4*s, QP(hh) + 8*(2*sp+s) + 4*u, first=(hh == 0 and sp == 0 and s == 0)) for u in range(2) for s in range(2)])
                    if nt == 0 and sp == 0: g["epoch"] = cbar(j)
                    lst.append(g)
        else:
            for nt in range(8):
                rg = ring[len(lst) % len(ring)]
                bf = (lambda s, u: QP(hh) + 8*(2*x+s) + 4*u) if uk == "M" else (lambda s, u: OB(j, s, u))
                g = dict(reads=[f"ds_read_b64_tr_b16 {vr(rg+4*s+2*rd,2)}, v{va} offset:{so + (2*s+rd)*256 + 32*nt}" for s in range(2) for rd in range(2)],
                         mf=[mfma(MC(nt, u), rg + 4*s, bf(s, u), first=(j == 0 and s == 0)) for u in range(2) for s in range(2)])
                if nt == 0:
                    g["epoch"] = cbar(j)
                    if uk == "P":
                        so2 = slot_of[("O", j)]
                        g["pre"] = [f"ds_read_b128 {vr(OB(j,s,u),4)}, v{VB[so2//3]} offset:{(so2%3)*SLOT + (2*s+u)*1024}" for s in range(2) for u in range(2)]
                lst.append(g)

    GX = 24
    dx = []
    for gm in range(6): dx.append(f"v_mov_b32 v{GX+4*gm+3}, s{S_NONCE}")
    pay = [0, 1, 2, 4, 5, 6, 8, 9]
    for u in range(2):
        for nt in range(4):
            for x in range(2):
                dx.append(f"v_cvt_pk_bf16_f32 v{GX+12*u+pay[2*nt+x]}, v{EC(nt,u)+2*x}, v{EC(nt,u)+2*x+1}")
    dx += [f"s_lshl_b32 s66, s{S_BLK}, 3", f"s_add_u32 s66, s66, s{S_B}", "s_lshl_b32 s66, s66, 4", f"s_lshr_b32 s67, s{S_H0}, 1", "s_add_u32 s66, s66, s67",
           "s_lshl_b32 s66, s66, 2", f"s_add_u32 s66, s66, s{S_W}", "s_mul_i32 s66, s66, 6144", f"s_add_u32 s66, s66, {WS_DX}", "s_add_u32 s67, s66, 3072",
           f"v_lshlrev_b32 v{VT}, 4, v1"]
    for gm in range(6):
        dx.append(f"buffer_store_dwordx4 {vr(GX+4*gm,4)}, v{VT}, {srd(SWS)}, s{66 + gm//3} offen offset:{(gm%3)*1024} sc1")
    allg = own + peer
    PC = Pipe(S, 3)
    PC.run(allg, fill=[(1, 15, o_pack(1)), (52, 60, dx)])
    stamp(S, cfg, 7)
    GS, GR = 24, 64
    d = []
    for i in range(9): S(f"v_mov_b32 v{GS+4*i+3}, s{S_NONCE}")
    S(f"""s_and_b32 s68, s2, {~3 & 0xffffffff}
    s_mul_i32 s69, s{S_W}, 9216
    s_add_u32 s69, s69, {WS_D}""")
    for tau in range(1, 4):
        S(f"""s_add_u32 s66, s{S_KQ}, {tau}
        s_and_b32 s66, s66, 3
        s_add_u32 s66, s66, s68
        s_mul_i32 s66, s66, 36864
        s_add_u32 s66, s66, s69
        s_add_u32 s66, s66, {(tau-1)*3072}""")
        for u in range(2):
            for e in range(2):
                for x in range(2):
                    S(f"v_cvt_pk_bf16_f32 v{GS+12*(tau-1)+pay[4*u+2*e+x]}, v{MC(2*tau+e,u)+2*x}, v{MC(2*tau+e,u)+2*x+1}")
        for gm in range(3):
            S(f"buffer_store_dwordx4 {vr(GS+12*(tau-1)+4*gm,4)}, v{VT}, {srd(SWS)}, s66 offen offset:{gm*1024} sc1")
    S(f"s_mul_i32 s66, s2, 36864\ns_add_u32 s66, s66, s69\ns_add_u32 s67, s66, 4096\ns_add_u32 s68, s66, 8192\ns_mov_b32 s77, {SPIN_LIMIT}")
    S(f"""s_lshl_b32 s70, s{S_B}, 2
    s_add_u32 s70, s70, s{S_W}
    s_lshl_b32 s70, s70, 5
    v_add_u32 v2, s70, v22
    v_mul_u32_u24 v2, 2304, v2
    v_and_b32 v3, 1, v23
    v_lshl_add_u32 v2, v3, 5, v2
    v_lshrrev_b32 v3, 1, v23
    v_lshl_add_u32 v2, v3, 4, v2
    s_mul_i32 s70, s{S_BLK}, 1152
    s_lshl_b32 s71, s{S_P}, 8
    s_add_u32 s70, s70, s71
    s_lshl_b32 s71, s{S_KQ}, 6
    s_add_u32 s70, s70, s71
    s_add_u32 s71, s70, {16*2304}""")
    stamp(S, cfg, 8)
    S.label("L_d")
    for i in range(9):
        S(f"buffer_load_dwordx4 {vr(GR+4*i,4)}, v{VT}, {srd(SWS)}, s{66 + i//4} offen offset:{(i%4)*1024} sc1")
    S(f"v_xor_b32 v4, s{S_NONCE}, v{GR+3}")
    for i in range(1, 9):
        S(f"v_xor_b32 v5, s{S_NONCE}, v{GR+4*i+3}\nv_or_b32 v4, v4, v5")
    S("v_cmp_eq_u32 vcc, 0, v4\ns_cmp_eq_u64 vcc, -1\ns_cbranch_scc1 L_d_ok")
    S("s_sub_u32 s77, s77, 1\ns_cmp_lg_u32 s77, 0\ns_cbranch_scc1 L_d")
    S.label("L_d_ok")
    stamp(S, cfg, 9)
    for tau in range(3):
        for u in range(2):
            for e in range(2):
                for x in range(2):
                    src = GR + 12 * tau + pay[4*u+2*e+x]; a = MC(e, u) + 2 * x
                    S(f"v_lshlrev_b32 v4, 16, v{src}\nv_and_b32 v5, 0xffff0000, v{src}\nv_add_f32 v{a}, v{a}, v4\nv_add_f32 v{a+1}, v{a+1}, v5")
    for u in range(2):
        for e in range(2):
            for x in range(2):
                S(f"v_cvt_pk_bf16_f32 v{GS+4*u+2*e+x}, v{MC(e,u)+2*x}, v{MC(e,u)+2*x+1}")
    for u in range(2):
        for x in range(2): S(f"v_permlane16_swap_b32 v{GS+4*u+x}, v{GS+4*u+2+x}")
    for u in range(2):
        S(f"buffer_store_dwordx4 {vr(GS+4*u,4)}, v2, {srd(SOUT)}, s{70+u} offen")
    if cfg.stamps:
        S.wait_vm(0); stamp(S, cfg, 10)
    stamps_store(S, cfg)

def gen(cfg):
    hdr = open(REF).read().split("; Override launch")[0].rstrip("\n")
    launch = [f"; @launch grid=(256,1,1) block=(512,1,1) lds={LDS_BYTES}"]
    if cfg.amp >= 0:
        launch = [f"; @launch kernel={NAME} grid=(256,1,1) block=(512,1,1) lds={LDS_BYTES}", "; @launch kernel=amp_kernel grid=(1,1,1) block=(64,1,1) lds=0"]
        if cfg.amp in (101, 102): launch = ["; @launch kernel=pre_kernel grid=(1,1,1) block=(64,1,1) lds=0"] + launch
    if cfg.pre:
        launch = [f"; @launch kernel=init_kernel grid=({cfg.pre},1,1) block=(256,1,1) lds=0", f"; @launch kernel={NAME} grid=(256,1,1) block=(512,1,1) lds={LDS_BYTES}"]
    L = [hdr] + launch + ['.amdgcn_target "amdgcn-amd-amdhsa--gfx950"',
         ".text", f".globl {NAME}", ".p2align 8", f".type {NAME},@function", f"{NAME}:"]
    P = Stream("pro"); prologue(P, cfg); L += P.finish()
    Ld = Stream("loader"); loader(Ld, cfg); L += Ld.finish()
    L.append(".p2align 6")
    C = Stream("compute"); compute(C, cfg); L += C.finish()
    L += ["L_end:", "    s_endpgm", '.section .rodata,"a"', ".p2align 6", f".amdhsa_kernel {NAME}",
          "  .amdhsa_next_free_vgpr 256", "  .amdhsa_next_free_sgpr 102", "  .amdhsa_accum_offset 256",
          "  .amdhsa_group_segment_fixed_size 0", "  .amdhsa_kernarg_size 104", "  .amdhsa_user_sgpr_count 2",
          "  .amdhsa_user_sgpr_kernarg_segment_ptr 1", "  .amdhsa_system_sgpr_workgroup_id_x 1", ".end_amdhsa_kernel", ""]
    if cfg.amp >= 0:
        Am = Stream("amp")
        Am(f"""s_cmp_ge_u32 s2, 1
        s_cbranch_scc1 amp_end
        s_memrealtime s[24:25]
        s_load_dwordx2 s[4:5], s[0:1], 96
        s_mov_b32 s10, {WS_SIZE}
        s_mov_b32 s11, 0x20000
        s_waitcnt lgkmcnt(0)
        s_mov_b32 s8, s4
        s_and_b32 s9, s5, 0xffff
        v_lshlrev_b32 v1, 9, v0
        s_mov_b32 s12, {WS_STAMP + 64 * cfg.ampw}""")
        for i in range(4):
            Am(f"s_add_u32 s13, s12, {i*64*512}")
            Am(f"buffer_load_dword v{4+i}, v1, s[8:11], s13 offen offset:56")
            Am(f"buffer_load_dword v{8+i}, v1, s[8:11], s13 offen offset:{4*(cfg.amp if cfg.amp < 100 else 15)}")
        Am("v_min_u32 v4, v4, v5\nv_min_u32 v6, v6, v7\nv_min_u32 v4, v4, v6\nv_max_u32 v8, v8, v9\nv_max_u32 v10, v10, v11\nv_max_u32 v8, v8, v10")
        Am("s_mov_b32 s14, -1\ns_mov_b32 s15, 0")
        for l in range(64):
            Am(f"v_readlane_b32 s16, v4, {l}\nv_readlane_b32 s17, v8, {l}\ns_nop 3\ns_min_u32 s14, s14, s16\ns_max_u32 s15, s15, s17")
        if cfg.amp == 100: Am("s_mov_b32 s14, s15\ns_mov_b32 s15, s24")
        if cfg.amp == 101:
            Am(f"s_add_u32 s4, s4, {WS_STAMP - 64}\ns_addc_u32 s5, s5, 0\ns_load_dword s26, s[4:5], 0\ns_waitcnt lgkmcnt(0)\ns_mov_b32 s15, s14\ns_mov_b32 s14, s26")
        if cfg.amp == 102: Am("s_mov_b32 s15, s14")
        Am("s_sub_u32 s14, s15, s14\ns_min_u32 s14, s14, 20000\ns_mul_i32 s14, s14, 10\ns_memrealtime s[18:19]\ns_waitcnt lgkmcnt(0)")
        Am.label("amp_spin")
        Am("s_sleep 2\ns_memrealtime s[20:21]\ns_waitcnt lgkmcnt(0)\ns_sub_u32 s22, s20, s18\ns_cmp_lt_u32 s22, s14\ns_cbranch_scc1 amp_spin")
        Am.label("amp_end")
        Am("s_endpgm")
        L = L[:-1]
        L += [".text", ".globl amp_kernel", ".p2align 8", ".type amp_kernel,@function", "amp_kernel:"] + Am.finish()
        L += [".globl pre_kernel", ".p2align 8", ".type pre_kernel,@function", "pre_kernel:",
              "s_cmp_ge_u32 s2, 1", "s_cbranch_scc1 pre_end", "s_load_dwordx2 s[4:5], s[0:1], 96", f"s_mov_b32 s10, {WS_SIZE}", "s_mov_b32 s11, 0x20000", "s_waitcnt lgkmcnt(0)",
              "s_mov_b32 s8, s4", "s_and_b32 s9, s5, 0xffff", "v_mov_b32 v1, 0", "s_memrealtime s[12:13]", "s_waitcnt lgkmcnt(0)", "v_mov_b32 v2, s12", f"s_mov_b32 s14, {WS_STAMP - 64}",
              "buffer_store_dword v2, v1, s[8:11], s14 offen", "pre_end:", "s_endpgm"]
        L += ['.section .rodata,"a"', ".p2align 6", ".amdhsa_kernel pre_kernel", "  .amdhsa_next_free_vgpr 32", "  .amdhsa_next_free_sgpr 32", "  .amdhsa_accum_offset 32",
              "  .amdhsa_group_segment_fixed_size 0", "  .amdhsa_kernarg_size 104", "  .amdhsa_user_sgpr_count 2",
              "  .amdhsa_user_sgpr_kernarg_segment_ptr 1", "  .amdhsa_system_sgpr_workgroup_id_x 1", ".end_amdhsa_kernel"]
        L += ['.section .rodata,"a"', ".p2align 6", ".amdhsa_kernel amp_kernel", "  .amdhsa_next_free_vgpr 32", "  .amdhsa_next_free_sgpr 32", "  .amdhsa_accum_offset 32",
              "  .amdhsa_group_segment_fixed_size 0", "  .amdhsa_kernarg_size 104", "  .amdhsa_user_sgpr_count 2",
              "  .amdhsa_user_sgpr_kernarg_segment_ptr 1", "  .amdhsa_system_sgpr_workgroup_id_x 1", ".end_amdhsa_kernel", ""]
    if cfg.pre:
        L = L[:-1]
        L += [".text", ".globl init_kernel", ".p2align 8", ".type init_kernel,@function", "init_kernel:",
              f"s_cmp_ge_u32 s2, {cfg.pre}", "s_cbranch_scc1 init_end", "s_load_dwordx2 s[4:5], s[0:1], 96", f"s_mov_b32 s10, {WS_SIZE}", "s_mov_b32 s11, 0x20000", "s_waitcnt lgkmcnt(0)",
              "s_mov_b32 s8, s4", "s_and_b32 s9, s5, 0xffff", "v_lshlrev_b32 v1, 2, v0", "v_mov_b32 v2, 0", "s_lshl_b32 s14, s2, 10", f"s_add_u32 s14, s14, {WS_FLAG}",
              "buffer_store_dword v2, v1, s[8:11], s14 offen", "init_end:", "s_endpgm"]
        L += ['.section .rodata,"a"', ".p2align 6", ".amdhsa_kernel init_kernel", "  .amdhsa_next_free_vgpr 32", "  .amdhsa_next_free_sgpr 32", "  .amdhsa_accum_offset 32",
              "  .amdhsa_group_segment_fixed_size 0", "  .amdhsa_kernarg_size 104", "  .amdhsa_user_sgpr_count 2",
              "  .amdhsa_user_sgpr_kernarg_segment_ptr 1", "  .amdhsa_system_sgpr_workgroup_id_x 1", ".end_amdhsa_kernel", ""]
    nb = lambda s: sum(1 for x in s.out if not isinstance(x, str) and x.op == "s_barrier")
    sys.stderr.write(f"nops: loader {Ld.nops} compute {C.nops}; barriers: loader {nb(Ld)} compute {nb(C)}\n")
    assert nb(Ld) == nb(C)
    return "\n".join(L)

if __name__ == "__main__":
    cfg = Cfg()
    out = sys.argv[1]
    for a in sys.argv[2:]:
        k, val = a.split("=", 1)
        cur = getattr(Cfg, k)
        if isinstance(cur, bool): val = val in ("1", "true", "True")
        elif isinstance(cur, int): val = int(val)
        elif val == "None": val = None
        setattr(cfg, k, val)
    open(out, "w").write(gen(cfg))
```

```python
import re

def _regs(tok):
    tok = tok.strip()
    neg = tok.startswith("-")
    if neg: tok = tok[1:]
    if tok.startswith("abs("): tok = tok[4:-1]
    m = re.fullmatch(r"([vsa])(\d+)", tok)
    if m: return [tok]
    m = re.fullmatch(r"([vsa])\[(\d+):(\d+)\]", tok)
    if m: return [f"{m.group(1)}{i}" for i in range(int(m.group(2)), int(m.group(3)) + 1)]
    if tok in ("vcc", "m0", "exec", "scc"): return [tok]
    return []

TRANS = ("v_exp_f32", "v_log_f32", "v_rcp_f32", "v_rsq_f32", "v_sqrt_f32", "v_sin_f32", "v_cos_f32")

class Ins:
    __slots__ = ("text", "op", "kind", "defs", "uses", "srcc", "ab", "passes", "wide_store")
    def __init__(self, text):
        self.text = text
        t = text.split(";")[0].strip()
        parts = t.split(None, 1)
        op = parts[0]; self.op = op
        ops = [x.strip() for x in parts[1].split(",")] if len(parts) > 1 else []
        toks = []
        for o in ops:
            toks.append(o.split()[0] if o else o)
        mods = t
        self.defs, self.uses, self.srcc, self.ab = [], [], [], []
        self.passes = 0; self.wide_store = False
        if op.startswith("v_mfma"):
            self.kind = "mfma"
            self.defs = _regs(toks[0]); self.ab = _regs(toks[1]) + _regs(toks[2]); self.srcc = _regs(toks[3])
            self.uses = self.ab + self.srcc
            self.passes = 8 if "32x32x16" in op else 4
        elif op.startswith("ds_read") or op.startswith("ds_bpermute") or op.startswith("ds_swizzle"):
            self.kind = "dsr"; self.defs = _regs(toks[0])
            for x in toks[1:]: self.uses += _regs(x)
        elif op.startswith("ds_write") or op.startswith("ds_add"):
            self.kind = "dsw"
            for x in toks: self.uses += _regs(x)
        elif op.startswith("buffer_load") or op.startswith("global_load"):
            if re.search(r"\blds\b", mods) or "_lds_" in op:
                self.kind = "dma"
                for x in toks: self.uses += _regs(x)
                self.uses.append("m0")
            else:
                self.kind = "vml"; self.defs = _regs(toks[0])
                for x in toks[1:]: self.uses += _regs(x)
        elif op.startswith("buffer_store") or op.startswith("global_store") or op.startswith("buffer_atomic") or op.startswith("global_atomic"):
            self.kind = "vms"
            for x in toks: self.uses += _regs(x)
            self.wide_store = op.endswith("x4") or op.endswith("x3")
            if self.wide_store:
                self.ab = _regs(toks[0] if op.startswith("buffer") else toks[1])
        elif op.startswith("v_"):
            self.kind = "valu"
            base = op.replace("_e32", "").replace("_e64", "")
            if base.startswith("v_permlane") and base.endswith("swap_b32"):
                self.defs = _regs(toks[0]) + _regs(toks[1]); self.uses = list(self.defs)
            else:
                self.defs = _regs(toks[0])
                rest = toks[1:]
                if base in ("v_add_co_u32", "v_sub_co_u32", "v_addc_co_u32"):
                    self.defs += _regs(toks[1]); rest = toks[2:]
                for x in rest: self.uses += _regs(x)
                if base.startswith("v_fmac") or base.startswith("v_pk_fmac") or base.startswith("v_dot2c"):
                    self.uses += _regs(toks[0])
        elif op.startswith("s_load") or op.startswith("s_memtime") or op.startswith("s_memrealtime"):
            self.kind = "smem"; self.defs = _regs(toks[0])
            for x in toks[1:]: self.uses += _regs(x)
        elif op in ("s_waitcnt", "s_nop", "s_barrier", "s_endpgm", "s_sleep", "s_setprio", "s_wakeup") or op.startswith("s_cbranch") or op == "s_branch":
            self.kind = "ctl"
        elif op.startswith("s_"):
            self.kind = "salu"
            if op.startswith("s_cmp"):
                for x in toks: self.uses += _regs(x)
            else:
                self.defs = _regs(toks[0])
                for x in toks[1:]: self.uses += _regs(x)
        else:
            raise ValueError("unknown instruction: " + text)

class Stream:
    def __init__(self, name=""):
        self.name = name
        self.out = []
        self.lg = []
        self.vm = []
        self.smem_pending = False
        self.inC = False
        self.cold = []
        self.lgtag = {}
    def label(self, l): self.out.append(l + ":")
    def comment(self, c): self.out.append("; " + c)
    def _vm_keep(self, n):
        keep, cnt = [], 0
        for e in reversed(self.vm):
            if e[2]:
                if cnt == n: break
                cnt += 1
            elif cnt == n: break
            keep.append(e)
        self.vm = keep[::-1]
    def _younger(self, i):
        return sum(1 for e in self.vm[i+1:] if e[2])
    def _wait(self, vm=None, lg=None):
        parts = []
        if vm is not None:
            vm = min(vm, 63)
            before = len(self.vm)
            self._vm_keep(vm)
            if len(self.vm) < before: parts.append(f"vmcnt({vm})")
        if lg is not None:
            lg = min(lg, 15)
            if self.smem_pending: lg = 0
            if lg < len(self.lg) or self.smem_pending:
                parts.append(f"lgkmcnt({lg})"); self.lg = self.lg[len(self.lg) - lg:] if lg else []
                self.smem_pending = False
        if parts: self.out.append(Ins("s_waitcnt " + " ".join(parts)))
    def wait_vm(self, n): self._wait(vm=n)
    def wait_lg(self, n): self._wait(lg=n)
    def wait_lg_tag(self, tag):
        idx = [i for i, d in enumerate(self.lg) if self.lgtag.get(id(d)) == tag]
        if idx: self._wait(lg=len(self.lg) - 1 - max(idx))
    def wait_vm_tag(self, tag):
        idx = [i for i, e in enumerate(self.vm) if e[1] == tag]
        if idx: self._wait(vm=self._younger(max(idx)))
    def phantom(self, regs, tag):
        self.vm.append((set(regs), tag, False))
    def __call__(self, text, tag=None):
        for ln in text.split("\n"):
            ln = ln.strip()
            if not ln: continue
            if ln.endswith(":"): self.out.append(ln); continue
            if ln.startswith(";"): self.out.append(ln); continue
            self._one(Ins(ln), tag)
    def _one(self, I, tag):
        touched = set(I.uses) | set(I.defs)
        need_lg = need_vm = None
        for i, d in enumerate(self.lg):
            if d & touched: need_lg = len(self.lg) - 1 - i
        for i, e in enumerate(self.vm):
            if e[0] & touched: need_vm = self._younger(i)
        if need_lg is not None or need_vm is not None:
            self._wait(vm=need_vm, lg=need_lg)
        if I.op == "s_waitcnt":
            m = re.search(r"vmcnt\((\d+)\)", I.text)
            if m:
                self._vm_keep(int(m.group(1)))
            m = re.search(r"lgkmcnt\((\d+)\)", I.text)
            if m:
                n = int(m.group(1)); self.lg = self.lg[len(self.lg) - n:] if n and n < len(self.lg) else ([] if n == 0 else self.lg)
                if n == 0: self.smem_pending = False
        self.out.append(I)
        if I.kind in ("dsr", "dsw"):
            d = set(I.defs); self.lg.append(d)
            if tag: self.lgtag[id(d)] = tag; self._keep = getattr(self, "_keep", []) + [d]
        elif I.kind == "smem":
            self.lg.append(set(I.defs)); self.smem_pending = True
        elif I.kind in ("vml", "vms", "dma"): self.vm.append((set(I.defs), tag, True))

    def finish(self, mfma_states=1):
        res = []
        pos = 0
        last_valu_w = {}
        last_trans_w = {}
        last_mfma_w = {}
        last_mfma_c = {}
        last_salu_m0 = -100
        last_wstore = {}
        nops = 0
        for it in self.out:
            if isinstance(it, str):
                res.append(it if it.endswith(":") else "    " + it); continue
            I = it
            need = 0
            def req(p, dist):
                nonlocal need
                need = max(need, dist - (pos - p - 1))
            vuses = [r for r in I.uses if r[0] == "v" and r != "vcc"]
            suses = [r for r in I.uses if r[0] == "s" or r == "vcc"]
            if I.kind == "mfma":
                for r in I.uses:
                    if r in last_valu_w: req(last_valu_w[r], 2)
                for r in I.ab:
                    if r in last_mfma_w: req(last_mfma_w[r][0], {8: 12, 4: 8}[last_mfma_w[r][1]])
                for r in I.srcc:
                    if r in last_mfma_w:
                        p, ps, D = last_mfma_w[r]
                        if tuple(I.srcc) == D and ps == I.passes: pass
                        else: req(p, {8: 10, 4: 6}[ps])
                for r in I.defs:
                    if r in last_mfma_w and r not in I.srcc:
                        p, ps, D = last_mfma_w[r]
                        req(p, {8: 10, 4: 6}[ps])
            elif I.kind in ("valu", "dsr", "dsw", "vml", "vms", "dma"):
                for r in list(I.uses) + list(I.defs):
                    if r in last_mfma_w: req(last_mfma_w[r][0], {8: 12, 4: 8}[last_mfma_w[r][1]])
                if I.kind == "valu" or I.kind in ("dsr", "vml"):
                    for r in I.defs:
                        if r in last_mfma_c: req(last_mfma_c[r][0], {8: 7, 4: 3}[last_mfma_c[r][1]])
                        if r in last_wstore: req(last_wstore[r], 2)
                if I.kind == "valu":
                    base = I.op.replace("_e32", "").replace("_e64", "")
                    if base not in TRANS:
                        for r in vuses:
                            if r in last_trans_w: req(last_trans_w[r], 1)
                    if base.startswith("v_permlane") or "dpp" in I.text or "row_" in I.text:
                        for r in vuses:
                            if r in last_valu_w: req(last_valu_w[r], 2)
                    if base in ("v_readfirstlane_b32", "v_readlane_b32"):
                        for r in vuses:
                            if r in last_valu_w: req(last_valu_w[r], 1)
                    for r in suses:
                        if r in last_valu_w: req(last_valu_w[r], 2)
                    if base == "v_cndmask_b32" and "vcc" in last_valu_w and "vcc" in I.text: req(last_valu_w["vcc"], 2)
                if I.kind in ("vml", "vms", "dma"):
                    for r in suses:
                        if r in last_valu_w: req(last_valu_w[r], 5)
                if I.kind == "dma": req(last_salu_m0, 1)
            elif I.kind in ("salu", "smem"):
                for r in suses:
                    if r in last_valu_w: req(last_valu_w[r], 1)
            while need > 0:
                n = min(need, 16)
                res.append(f"    s_nop {n-1}"); pos += n; need -= n; nops += n
            res.append("    " + I.text)
            if I.kind == "valu":
                base = I.op.replace("_e32", "").replace("_e64", "")
                for r in I.defs:
                    last_valu_w[r] = pos
                    if base in TRANS: last_trans_w[r] = pos
                    else: last_trans_w.pop(r, None)
                    last_mfma_w.pop(r, None)
            elif I.kind == "mfma":
                for r in I.defs:
                    last_mfma_w[r] = (pos, I.passes, tuple(I.defs)); last_valu_w.pop(r, None); last_trans_w.pop(r, None)
                for r in I.srcc: last_mfma_c[r] = (pos, I.passes)
            elif I.kind == "salu":
                for r in I.defs:
                    last_valu_w.pop(r, None)
                    if r == "m0": last_salu_m0 = pos
            elif I.kind in ("dsr", "vml"):
                for r in I.defs:
                    last_valu_w.pop(r, None); last_trans_w.pop(r, None); last_mfma_w.pop(r, None)
            if I.kind == "vms" and I.wide_store:
                for r in I.ab: last_wstore[r] = pos
            if I.op == "s_nop": pos += int(I.text.split()[1]) + 1
            elif I.kind == "mfma": pos += mfma_states
            else: pos += 1
        self.nops = nops
        return res
```

```python
import sys, math, struct
from sched import Stream, Ins

NAME = "concat_heads__mha_block_cached__gqa_block_cached__near_ridge_kernel"
REF = "concat_heads__mha_block_cached__gqa_block_cached__near_ridge.s.ref"
SLOT = 17408
PITCH = 1056
LB = 512
LDS_BYTES = LB + 9 * SLOT
def slot(i): return LB + i * SLOT
WS_O, WS_D, WS_DX, WS_FLAG, WS_EPOCH, WS_STAMP = 0, 16 << 20, 32 << 20, 40 << 20, 41 << 20, 48 << 20
WS_SIZE = 64 << 20
SPIN_LIMIT = 1 << 16

def f32(x): return struct.unpack("<I", struct.pack("<f", x))[0]
def vr(n, c=1): return f"v{n}" if c == 1 else f"v[{n}:{n+c-1}]"
def mfma(d, a, b, first=False):
    return f"v_mfma_f32_16x16x32_bf16 {vr(d,4)}, {vr(a,4)}, {vr(b,4)}, {'0' if first else vr(d,4)}"
def _raw(text): return [Ins(l.strip()) if not l.strip().endswith(":") else l.strip() for l in text.split("\n") if l.strip()]
def emit(S, x):
    if callable(x): x()
    elif isinstance(x, tuple): S(*x)
    else: S(x)

SX, SWQ, SK, SV, SWO, SWS, SOUT, SDBG = 8, 12, 16, 20, 24, 28, 32, 36
def srd(n): return f"s[{n}:{n+3}]"
S_BLK, S_KQ, S_B, S_P, S_H0, S_W, S_NONCE, S_C = 40, 41, 42, 43, 44, 45, 46, 47

R_K0, R_K1, R_V0, R_WA, R_V1, R_U = 9, 10, 11, 12, 13, 14
F_QK0, F_QK1, F_PV0, F_O0, F_PV1, F_O1 = 10, 11, 12, 13, 15, 16
F_OI, F_DX = 18, 21
FU = {1: 14, 2: 17, 4: 19, 8: 20}
WSET = {"WA": (0, 1), "WB": (2, 3, 4, 5, 6), "WC": (7, 8), "WD": (9, 10, 11, 12, 13), "WE": (14, 15, 16, 17)}
def c_events(cfg):
    pos = {"WB": 12, "WC": 52, "WD": 68, "WE": 8 * min(14, cfg.merge) - 4}
    for k, x in enumerate(cfg.opos.split(",")): pos[f"OP{k}"] = int(x)
    ev = {n: (R_U + i, pos[n]) for i, n in enumerate(sorted(pos, key=lambda n: pos[n]))}
    ev["WA"] = (R_WA, -12)
    return ev

class Cfg:
    pol_x = ""; pol_wq = ""; pol_kv = "nt"; pol_wo = ""
    stop = None
    stamps = False; real = False; adetail = False; cdetail = 0
    ngrp = 3; rotp = 1; rotk = 3
    k0pos = 1; k0cls = 4; kvwait = 4
    codepf = True
    order = "K1 V0 warm V1 W*"
    flag0 = -5; flag0b = 4; o1pos = 16; flag1 = 44; flag1b = 60; dxpos = 56
    amp = -1; ampw = 0
    probe_ahead = 8
    free_delay = 7
    trace = False
    align = 0
    dxgo = 96
    opos = "26,28,76,92"
    ostep = 2
    pol_o = "sc1"
    pfilter = ""
    o1end = 10
    merge = 15
    dxsleep = 8
    akv = "0:1:4"
    o1len = 30
    ptrace = False
    early0 = 72
    warmpos = -1
    k1pos = -1
    warmrot = 3
    wprio = 0
    bargap = 4
    abar = True
    cbar = 6
    nocheck = False
    nofree = False
    alead = 4
    nodma = False
    lprio = 3
    lsleep = 5
    wake = True
    gwait = True
    early = False
    trace_from = 0

def stamp(S, cfg, idx, det=False):
    if not cfg.stamps: return
    if (cfg.cdetail or cfg.adetail) and idx not in (0, 13) and not det: return
    S(f"{'s_memrealtime' if cfg.real else 's_memtime'} s[78:79]")
    S("s_waitcnt lgkmcnt(0)")
    S(f"s_mov_b32 s{80+idx}, s78")

SITES = []
def trace_raw(cfg, who, ident):
    if not cfg.trace or len(SITES) >= 128: return ""
    if cfg.ptrace and not isinstance(ident, str): return ""
    k = len(SITES); SITES.append(ident)
    return f"{'s_memrealtime' if cfg.real else 's_memtime'} s[78:79]\ns_waitcnt lgkmcnt(0)\nv_writelane_b32 v{250 + (k >> 6)}, s78, {k & 63}\n"
def stamps_store(S, cfg):
    if not cfg.stamps: return
    S("s_memrealtime s[78:79]\ns_waitcnt lgkmcnt(0)\ns_mov_b32 s95, s78")
    stamp(S, cfg, 13)
    S(f"s_lshl_b32 s66, s2, 3\ns_add_u32 s66, s66, s3\ns_lshl_b32 s66, s66, 6\ns_add_u32 s66, s66, {WS_STAMP}")
    S("v_mov_b32 v2, 0")
    S("s_mov_b64 exec, 1")
    for i in range(16):
        S(f"v_mov_b32 v3, s{80+i}")
        S(f"buffer_store_dword v3, v2, {srd(SWS)}, s66 offen offset:{4*i}")
    S("s_mov_b64 exec, -1")

def prologue(S, cfg):
    S(f"""s_cmp_ge_u32 s2, 256
    s_cbranch_scc1 L_end
    s_bfe_u32 s{S_BLK}, s2, 0x10002
    s_mul_i32 s66, s{S_BLK}, 40
    s_add_u32 s4, s0, s66
    s_addc_u32 s5, s1, 0
    s_load_dwordx8 s[48:55], s[4:5], 0
    s_load_dwordx2 s[56:57], s[4:5], 32
    s_load_dwordx4 s[60:63], s[0:1], 80
    s_load_dwordx2 s[64:65], s[0:1], 96
    v_lshrrev_b32 v2, 6, v0
    v_and_b32 v1, 63, v0
    s_and_b32 s{S_KQ}, s2, 3
    v_readfirstlane_b32 s3, v2
    s_bfe_u32 s{S_B}, s2, 0x30003
    s_lshr_b32 s{S_P}, s2, 6
    s_lshl_b32 s{S_H0}, s{S_KQ}, 2
    s_add_u32 s{S_H0}, s{S_H0}, s{S_P}
    s_lshl_b32 s{S_H0}, s{S_H0}, 1
    s_and_b32 s{S_W}, s3, 3""")
    if cfg.stamps:
        for i in range(16): S(f"s_mov_b32 s{80+i}, 0")
        S("s_memrealtime s[78:79]\ns_waitcnt lgkmcnt(0)\ns_mov_b32 s94, s78")
        stamp(S, cfg, 0)
    for d, size in ((SX, 1179648), (SWQ, 4718592), (SK, 8388608), (SV, 8388608), (SWO, 4718592), (SWS, WS_SIZE), (SOUT, 2359296), (SDBG, 256)):
        S(f"s_mov_b32 s{d+2}, {size}\ns_mov_b32 s{d+3}, 0x20000")
    S("s_cmp_lt_u32 s3, 4\ns_cbranch_scc1 L_compute")
def srd_bases(S, which):
    for d, p in ((SX, 48), (SWQ, 54), (SK, 50), (SV, 52), (SWO, 56), (SWS, 64), (SOUT, 60), (SDBG, 62)):
        if d in which: S(f"s_mov_b32 s{d}, s{p}\ns_and_b32 s{d+1}, s{p+1}, 0xffff")

def nonce_issue(S, vt, vz):
    S(f"buffer_load_dword v{vt}, v{vz}, {srd(SDBG)}, 0 offen sc1")
def nonce_check(S, vt, vz, lab):
    S(f"v_readfirstlane_b32 s{S_NONCE}, v{vt}")
    S(f"s_cmp_eq_u32 s{S_NONCE}, 0\ns_cbranch_scc1 {lab}")
    S.label(f"{lab}_ok")
    S.cold += _raw(f"""{lab}:
    s_mov_b32 s77, {SPIN_LIMIT}
    {lab}_spin:
    buffer_load_dword v{vt}, v{vz}, {srd(SDBG)}, 0 offen sc1
    s_waitcnt vmcnt(0)
    v_readfirstlane_b32 s{S_NONCE}, v{vt}
    s_nop 4
    s_cmp_lg_u32 s{S_NONCE}, 0
    s_cbranch_scc1 {lab}_ok
    s_sleep 2
    s_sub_u32 s77, s77, 1
    s_cmp_lg_u32 s77, 0
    s_cbranch_scc1 {lab}_spin
    s_branch {lab}_ok""")

def swar(s, need):
    return [f"s_or_b32 s{s}, s{s}, 0x80808080", f"s_sub_u32 s{s}, s{s}, {need * 0x01010101}", f"s_andn2_b32 s{s}, 0x80808080, s{s}", f"s_cmp_eq_u32 s{s}, 0"]
def spin_block(lab, back, vt, vz, off, sreg, need, sleep):
    return _raw(f"""{lab}:
    s_mov_b32 s77, {SPIN_LIMIT}
    {lab}_spin:
    ds_read_b32 v{vt}, v{vz} offset:{off}
    s_waitcnt lgkmcnt(0)
    v_readfirstlane_b32 s{sreg}, v{vt}
    s_nop 3
    """ + "\n".join(swar(sreg, need)) + f"""
    s_cbranch_scc1 {back}
    {'s_sleep ' + str(sleep) if sleep else ''}
    s_sub_u32 s77, s77, 1
    s_cmp_lg_u32 s77, 0
    s_cbranch_scc1 {lab}_spin
    s_branch {back}""")

def c_units():
    u = [("M", 0, 0), ("M", 0, 1), ("E", 0, 0), ("M", 1, 0), ("M", 1, 1), ("E", 1, 0)]
    for hh in (0, 1):
        for ii in range(6): u.append(("P", hh, ii))
    return u
def c_slots():
    sl = [(0, F_QK0), (1, F_QK0), (8, 9), (2, F_O0), (3, F_O0), (4, F_PV0), (5, F_PV0), (6, F_PV1), (7, F_PV1),
          (0, F_O1), (1, F_O1), (8, FU[2]), (2, FU[4]), (3, FU[4]), (4, FU[8]), (5, FU[8]), (6, FU[8]), (7, FU[8])]
    return {("W", j): sl[j] for j in range(18)}

def pack(dst, src):
    return [f"v_cvt_pk_bf16_f32 v{dst+8*s+4*u+2*e+x}, v{src+8*(2*s+e)+4*u+2*x}, v{src+8*(2*s+e)+4*u+2*x+1}" for s in range(4) for u in range(2) for e in range(2) for x in range(2)]
PAY = [0, 1, 2, 4, 5, 6, 8, 9]

def loader(S, cfg):
    VXO, VWO, VKV, VKW, VVW, VMO, VEO, VOO, VFL, VWW, VN, VZ, VP0, VPA, VT = 4, 5, 6, 7, 8, 9, 10, 11, 12, 13, 14, 15, 16, 18, 19
    KVREG = [24, 56, 88, 120]
    sXb, sWb, sCC, sM, sMo, sT, sKV0, sKV1, sA = 66, 67, 68, 69, 70, 71, 72, 73, 75
    sWP, sOP = [65, 96, 97, 98], [62, 99, 100, 101]
    S(f"""s_lshl_b32 s{sT}, s{S_W}, 2
    v_lshrrev_b32 v2, 3, v1
    v_lshlrev_b32 v2, 4, v2
    v_add_u32 v2, s{sT}, v2
    v_mul_u32_u24 v3, 1152, v2
    v_and_b32 v20, 7, v1
    v_lshl_add_u32 v{VXO}, v20, 4, v3
    s_and_b32 s76, s{S_W}, 1
    s_lshl_b32 s76, s76, 3
    s_lshl_b32 s77, s{S_W}, 1
    s_and_b32 s77, s77, 4
    s_add_u32 s76, s76, s77
    v_lshrrev_b32 v2, 5, v1
    v_lshlrev_b32 v2, 4, v2
    v_add_u32 v2, s76, v2
    v_lshlrev_b32 v2, 13, v2
    v_and_b32 v20, 31, v1
    v_lshl_add_u32 v{VWO}, v20, 4, v2
    s_mul_i32 s{sM}, s{sT}, {PITCH}""")
    if cfg.ngrp > 1:
        starts = [round(9 * i / cfg.ngrp) for i in range(cfg.ngrp)]
        tab = sum(starts[i % cfg.ngrp] << (4 * i) for i in range(16))
        S(f"""s_mul_i32 s76, s{S_P}, {cfg.rotp}
        s_add_u32 s76, s76, s{S_B}
        s_and_b32 s77, s{S_KQ}, {cfg.rotk}
        s_add_u32 s76, s76, s77
        s_lshl_b32 s76, s76, 2
        s_mov_b32 s74, {tab & 0xffffffff}
        s_mov_b32 s75, {tab >> 32}
        s_lshr_b64 s[74:75], s[74:75], s76
        s_and_b32 s{sCC}, s74, 15""")
    else:
        S(f"s_mov_b32 s{sCC}, 0")
    S(f"s_mul_i32 s74, s{S_B}, 147456\ns_lshl_b32 s75, s{S_H0}, 8\ns_waitcnt lgkmcnt(0)")
    srd_bases(S, (SX, SWQ))
    def chunk(c, mid=None):
        base = slot((c % 3) * 3)
        S(f"""s_lshl_b32 s{sXb}, s{sCC}, 7
        s_add_u32 s{sXb}, s{sXb}, s74
        s_lshl_b32 s{sWb}, s{sCC}, 19
        s_add_u32 s{sWb}, s{sWb}, s75""")
        for i in range(4):
            S(f"s_add_u32 m0, s{sM}, {base + i*(PITCH-1152)}")
            if i == 0: S(f"s_add_u32 s{sCC}, s{sCC}, 1")
            elif i == 1: S(f"s_cmp_eq_u32 s{sCC}, 9\ns_cselect_b32 s{sCC}, 0, s{sCC}")
            S(f"buffer_load_dwordx4 v{VXO}, {srd(SX)}, s{sXb} offen offset:{i*1152} {cfg.pol_x} lds", tag=f"ch{c}")
        if mid: mid()
        for st in range(2):
            for i in range(4):
                S(f"s_add_u32 m0, s{sM}, {base + SLOT*(1+st) + i*PITCH}\ns_add_u32 s{sT}, s{sWb}, {(32*st+i)*8192}")
                S(f"buffer_load_dwordx4 v{VWO}, {srd(SWQ)}, s{sT} offen {cfg.pol_wq} lds", tag=f"ch{c}")
    def kv_lines(m):
        sr = SK if m < 2 else SV
        sb = sKV0 if m % 2 == 0 else sKV1
        o = [f"s_add_u32 s{sT}, s{sb}, 4096"]
        for j in range(8):
            o.append((f"buffer_load_dwordx4 {vr(KVREG[m]+4*j,4)}, v{VKV}, {srd(sr)}, s{sb if j < 4 else sT} offen offset:{(j&3)*1024} {cfg.pol_kv}", f"kv{m}"))
        return o
    def kv_load(m):
        for x in kv_lines(m): emit(S, x)
    def cond(lab, cls, mask, lines, pre=""):
        S(f"s_and_b32 s76, s{S_B}, {mask}\ns_cmp_lg_u32 s76, {cls}\ns_cbranch_scc1 {lab}")
        S.out += _raw(pre + "\n".join(x[0] if isinstance(x, tuple) else x for x in lines))
        S.label(lab)
    def kv_load_if(m, cls, ncls, pre=""):
        cond(f"L_kv{m}_{cls}", cls, ncls - 1, kv_lines(m), pre)
        if cls == ncls - 1: S.phantom([f"v{KVREG[m]+i}" for i in range(32)], f"kv{m}")
    def warm_lines():
        return f"""s_lshl_b32 s76, s{S_KQ}, 3
        s_add_u32 s76, s76, s{S_B}
        s_lshl_b32 s76, s76, 2
        s_add_u32 s76, s76, s{S_W}
        s_mul_i32 s76, s76, {32*1152}
        s_lshl_b32 s77, s{S_P}, 8
        s_add_u32 s76, s76, s77
        v_lshrrev_b32 v20, 1, v1
        v_mul_u32_u24 v20, 1152, v20
        v_and_b32 v3, 1, v1
        v_lshl_add_u32 v20, v3, 7, v20
        buffer_load_dword v22, v20, {srd(SWO)}, s76 offen {cfg.pol_wo}
        s_lshl_b32 s76, s{S_B}, 2
        s_add_u32 s76, s76, s{S_W}
        s_mul_i32 s76, s76, {8*1152}
        s_add_u32 s76, s76, s64
        v_and_b32 v21, 7, v1
        v_mul_u32_u24 v21, 1152, v21
        buffer_load_dword v23, v21, {srd(SWO)}, s76 offen offset:1024 {cfg.pol_wo}""".split("\n")
    def kv_write(m, sl):
        S.wait_vm_tag(f"kv{m}")
        S(f"s_setprio {cfg.wprio}")
        if m < 2:
            for j in range(8):
                S(f"v_add_u32 v2, {slot(sl) + j*4*PITCH}, v{VKW}")
                S(f"ds_write2_b64 v2, {vr(KVREG[m]+4*j,2)}, {vr(KVREG[m]+4*j+2,2)} offset0:0 offset1:2")
        else:
            S(f"v_add_u32 v2, {slot(sl)}, v{VVW}")
            for j in range(8):
                S(f"ds_write_b128 v2, {vr(KVREG[m]+4*j,4)} offset:{j*4*PITCH}")
    known = [0]; last_pub = [0]
    def wait_free(f, early=None):
        if f <= known[0]: return
        known[0] = f
        if cfg.nofree:
            S("s_sleep 5"); return
        lab = f"L_wf{f}"
        S.wait_lg(0)
        if cfg.trace and f >= cfg.trace_from: S(trace_raw(cfg, "loader", 100 + f))
        S(f"s_setprio {cfg.lprio}\nds_read_b32 v{VT}, v{VZ} offset:4\nv_readfirstlane_b32 s76, v{VT}")
        for x in swar(76, f): S(x)
        S(f"s_cbranch_scc0 {lab}")
        S.label(lab + "_ok")
        S("s_setprio 0")
        if cfg.trace and f >= cfg.trace_from: S(trace_raw(cfg, "loader", 200 + f))
        blk = spin_block(lab, lab + "_ok", VT, VZ, 4, 76, f, cfg.lsleep)
        if early and cfg.early: blk = blk[:1] + _raw(f"s_waitcnt vmcnt(0)\ns_mov_b32 s63, {early}\nv_mov_b32 v{VT}, {early}\nds_write_b8 v{VPA}, v{VT}\n" + (trace_raw(cfg, "loader", 400 + early) if f >= cfg.trace_from else "")) + blk[1:]
        S.cold += blk
    def publish(r):
        last_pub[0] = r
        S.wait_lg(0)
        S(f"s_setprio {cfg.lprio}\nv_mov_b32 v{VT}, {r}\nds_write_b8 v{VPA}, v{VT}\ns_setprio 0")
        if cfg.trace and known[0] >= cfg.trace_from: S(trace_raw(cfg, "loader", 300 + r))
        if cfg.adetail and r <= 12: stamp(S, cfg, r, True)
        if cfg.cdetail and 0 <= r - R_U < 12: stamp(S, cfg, 1 + r - R_U, True)
    chunk(0)
    stamp(S, cfg, 1)
    srd_bases(S, (SK, SV, SWO, SWS, SOUT, SDBG))
    S("s_mov_b32 s63, 0")
    if cfg.trace: S("s_mov_b32 s92, 0\nv_mov_b32 v250, 0\nv_mov_b32 v251, 0")
    if cfg.codepf:
        S(f"""s_getpc_b64 s[76:77]
        L_pc:
        s_lshr_b32 s{sT}, s2, 3
        s_lshl_b32 s{sT}, s{sT}, 2
        s_add_u32 s{sT}, s{sT}, s{S_W}
        s_mul_i32 s{sT}, s{sT}, 3
        v_min_u32 v2, 2, v1
        v_add_u32 v2, s{sT}, v2
        v_lshlrev_b32 v2, 7, v2
        v_min_u32 v2, L_end-L_pc, v2
        global_load_dword v23, v2, s[76:77]""")
    S(f"""v_mov_b32 v{VZ}, 0
    v_mov_b32 v20, 0
    v_mov_b32 v21, 0
    v_lshlrev_b32 v3, 3, v1
    ds_write_b64 v3, v[20:21]
    v_lshl_add_u32 v{VPA}, v1, 2, 64
    v_writelane_b32 v{VPA}, s{S_W}, 0
    v_add_u32 v{VEO}, 1024, v{VXO}
    s_lshl_b32 s76, s{S_W}, 13
    v_lshlrev_b32 v{VOO}, 4, v1
    v_add_u32 v{VKV}, s76, v{VOO}
    v_add_u32 v{VWW}, s{sM}, v{VOO}
    s_lshl_b32 s{sKV0}, s{S_B}, 5
    s_add_u32 s{sKV0}, s{sKV0}, s{S_H0}
    s_lshl_b32 s{sKV0}, s{sKV0}, 15
    s_add_u32 s{sKV1}, s{sKV0}, 32768
    v_lshrrev_b32 v2, 4, v1
    v_mul_u32_u24 v20, {PITCH}, v2
    s_lshl_b32 s76, s{S_W}, 8
    v_add_u32 v20, s76, v20
    v_and_b32 v3, 15, v1
    v_lshl_add_u32 v{VVW}, v3, 4, v20
    v_bfe_u32 v3, v1, 2, 2
    v_lshl_add_u32 v20, v3, 6, v20
    v_and_b32 v3, 1, v1
    v_lshl_add_u32 v20, v3, 5, v20
    v_bfe_u32 v3, v1, 1, 1
    v_lshl_add_u32 v{VKW}, v3, 3, v20""")
    S.wait_vm(9 if cfg.codepf else 8)
    chunk(1)
    S.wait_vm_tag("ch0"); S.wait_lg(0)
    stamp(S, cfg, 2)
    S("s_barrier")
    def pubch(c):
        S.wait_vm_tag(f"ch{c}"); publish(c)
    chunk(2, None if cfg.abar else (lambda: pubch(1)))
    S(f"""v_lshlrev_b32 v2, 4, v2
    s_lshl_b32 s76, s{S_W}, 2
    v_add_u32 v2, s76, v2
    v_mul_u32_u24 v2, 1152, v2
    s_lshl_b32 s76, s{S_KQ}, 6
    v_add_u32 v3, s76, v{VOO}
    v_and_b32 v3, 0xff, v3
    v_add_u32 v{VMO}, v2, v3
    v_min_u32 v2, 2, v1
    v_add3_u32 v2, v2, s{S_P}, 1
    v_and_b32 v2, 3, v2
    v_lshlrev_b32 v2, 6, v2
    s_and_b32 s76, s2, 63
    v_add_u32 v2, s76, v2
    v_lshlrev_b32 v2, 2, v2
    v_add_u32 v2, s{S_W}, v2
    v_lshlrev_b32 v{VFL}, 8, v2
    s_lshl_b32 s{sMo}, s{S_W}, 12""")
    for pi in range(4):
        d = sWP[pi]
        S(f"""s_add_u32 s76, s{S_P}, {pi}
        s_and_b32 s76, s76, 3
        s_lshl_b32 s77, s{S_KQ}, 2
        s_add_u32 s77, s77, s76
        s_mul_i32 s77, s77, {256*1152}
        s_lshl_b32 s{d}, s{S_P}, 8
        s_add_u32 s{d}, s{d}, s77""")
        if pi == 0: S("s_mov_b32 s64, s77")
        if True:
            S(f"""s_lshl_b32 s76, s76, 6
            s_and_b32 s77, s2, 63
            s_add_u32 s76, s76, s77
            s_lshl_b32 s76, s76, 2
            s_add_u32 s76, s76, s{S_W}
            s_lshl_b32 s{sOP[pi]}, s76, 14""")
    for c in range(1, 7):
        if cfg.abar:
            S.wait_vm_tag(f"ch{c}"); stamp(S, cfg, c, cfg.adetail) if cfg.adetail else None; S("s_barrier"); known[0] = c
        else:
            wait_free(c, c + 1)
            pubch(c + 1)
        if c == 4: nonce_issue(S, VN, VZ)
        if not cfg.nodma: chunk(c + 2)
        for item in cfg.akv.split(","):
            what, first, ncls, rot = (item.split(":") + ["0"])[:4]
            first, ncls, rot = int(first), int(ncls), int(rot)
            if not 0 <= c - first < ncls: continue
            cond(f"L_a{what}_{c}", (c - first + rot) % ncls, ncls - 1, warm_lines() if what == "w" else kv_lines(int(what)), f"s_waitcnt vmcnt({cfg.kvwait})\n")
            if what != "w" and c - first == ncls - 1: S.phantom([f"v{KVREG[int(what)]+i}" for i in range(32)], f"kv{what}")
    nonce_check(S, VN, VZ, "L_ln")
    units, slots = c_units(), c_slots()
    def w_src(j):
        uk, hh, x = units[j]
        if uk == "M": return VMO, 65, (hh * 128 + 64 * x) * 1152
        if uk == "E": return VEO, 64, hh * 128 * 1152
        return VMO, sWP[1 + x % 3], (hh * 128 + 64 * (x // 3)) * 1152
    blocks = [152 + 16 * i for i in range(6)]
    parked = {}
    def w_load(j):
        va, sb, off = w_src(j)
        S(f"s_add_u32 s{sA}, s{sb}, {off}")
        if slots[("W", j)][1] <= known[0] and (j not in (3, 4, 9, 10) or (j > 4) in picked):
            lds_w.add(j)
            for i in range(4):
                S(f"s_add_u32 m0, s{sM}, {slot(slots[('W', j)][0]) + i*(PITCH-1152)}")
                S(f"buffer_load_dwordx4 v{va}, {srd(SWO)}, s{sA} offen offset:{i*1152} {cfg.pol_wo} lds", tag=f"u{j}")
        else:
            parked[j] = blocks.pop(0)
            for i in range(4):
                S(f"buffer_load_dwordx4 {vr(parked[j]+4*i,4)}, v{va}, {srd(SWO)}, s{sA} offen offset:{i*1152} {cfg.pol_wo}", tag=f"u{j}w")
    lds_w = set()
    def w_write(j):
        assert j not in (3, 4, 9, 10) or (j > 4) in picked
        wait_free(slots[("W", j)][1])
        lds_w.add(j)
        S.wait_vm_tag(f"u{j}w")
        S(f"s_setprio {cfg.wprio}\nv_add_u32 v2, {slot(slots[('W', j)][0])}, v{VWW}")
        for i in range(4): S(f"ds_write_b128 v2, {vr(parked[j]+4*i,4)} offset:{i*PITCH}")
        S.wait_lg(0)
        S("s_setprio 0")
        blocks.append(parked.pop(j))
    def warm():
        for x in warm_lines(): S(x)
    issued, polled = set(), set()
    EV = c_events(cfg)
    def poll_issue(hh):
        issued.add(hh)
        S(f"s_mov_b32 s76, {WS_FLAG}")
        S(f"buffer_load_dword v{VP0 + (hh & 1)}, v{VFL}, {srd(SWS)}, s76 offen offset:{64*hh} sc1")
    def poll(hh):
        lab = f"L_poll{hh}"
        polled.add(hh)
        if hh not in issued: poll_issue(hh)
        v = VP0 + (hh & 1)
        S(f"v_cmp_eq_u32 vcc, s{S_NONCE}, v{v}")
        S(f"s_cmp_eq_u64 vcc, -1\ns_cbranch_scc0 {lab}")
        S.label(f"{lab}_ok")
        S.cold += _raw(f"""{lab}:
        s_mov_b32 s76, {WS_FLAG}
        s_mov_b32 s77, {SPIN_LIMIT}
        {lab}_spin:
        buffer_load_dword v{v}, v{VFL}, {srd(SWS)}, s76 offen offset:{64*hh} sc1
        s_waitcnt vmcnt(0)
        v_cmp_eq_u32 vcc, s{S_NONCE}, v{v}
        s_nop 1
        s_cmp_eq_u64 vcc, -1
        s_cbranch_scc1 {lab}_ok
        s_sub_u32 s77, s77, 1
        s_cmp_lg_u32 s77, 0
        s_cbranch_scc1 {lab}_spin
        s_branch {lab}_ok""")
    oreg, picked = {}, set()
    def pickup(h):
        wait_free((F_O0, F_O1)[h])
        S(f"s_setprio {cfg.lprio}\nv_add_u32 v2, {slot(2 - 2*h)}, v{VWW}")
        for x in range(2):
            oreg[2*h + x] = blocks.pop(0)
            for i in range(4): S(f"ds_read_b128 {vr(oreg[2*h+x] + 4*i, 4)}, v2 offset:{x*SLOT + i*1024}")
        S.wait_lg(0)
        S("s_setprio 0")
        picked.add(h)
    def o_store(k):
        S(f"s_add_u32 s{sA}, s{sOP[0]}, {WS_O + k*4096}")
        for i in range(4):
            S(f"buffer_store_dwordx4 {vr(oreg[k] + 4*i, 4)}, v{VOO}, {srd(SWS)}, s{sA} offen offset:{i*1024} sc1", tag=f"o{k}")
    def o_flag(k):
        S.wait_vm_tag(f"o{k}")
        S(f"""s_lshr_b32 s76, s{sOP[0]}, 6
        s_add_u32 s76, s76, {WS_FLAG + 64*k}
        v_mov_b32 v3, s{S_NONCE}
        buffer_store_dword v3, v{VZ}, {srd(SWS)}, s76 offen sc1""")
        blocks.append(oreg.pop(k))
    def kv_duty(m, sl, f, r):
        wait_free(f); kv_write(m, sl); publish(r)
        blocks.extend([KVREG[m], KVREG[m] + 16])
    prog = PROGS[cfg.prog].split()
    if cfg.stop == "A": prog = ["bA7", "bA8"] if cfg.abar else ["p8"]
    if cfg.stop == "B": prog = [x for x in prog if x[0] in "KVpPS" or x[:2] in ("wK", "wV", "bA")]
    for op in prog:
        if cfg.ptrace and (not cfg.pfilter or op in cfg.pfilter.split(",")): S(trace_raw(cfg, "loader", op))
        if op in ("K1", "V0", "V1"): kv_load({"K1": 1, "V0": 2, "V1": 3}[op])
        elif "@" in op: kv_load_if({"K1": 1, "V0": 2, "V1": 3}[op[:2]], int(op[3]), 2)
        elif op == "warm": warm()
        elif op == "p8": S.wait_vm_tag("ch8"); publish(8)
        elif op[0] == "b":
            j = int(op[2:])
            S.wait_vm_tag(f"ch{j}"); known[0] = j
            S.wait_lg(0)
            if cfg.adetail: stamp(S, cfg, j, True)
            S("s_barrier")
        elif op == "wK0": kv_duty(0, 0, 7, R_K0)
        elif op == "wK1": kv_duty(1, 2, 8, R_K1)
        elif op == "wV0": kv_duty(2, 4, 8, R_V0)
        elif op == "wV1": kv_duty(3, 6, 9, R_V1)
        elif op[0] == "W": w_load(int(op[1:]))
        elif op[0] == "w": w_write(int(op[1:]))
        elif op[0] == "f": wait_free(int(op[1:]))
        elif op[0] == "q": poll(int(op[1:]))
        elif op[0] == "Q": poll_issue(int(op[1:]))
        elif op[0] == "P": pickup(int(op[1:]))
        elif op[0] == "S": o_store(int(op[1:]))
        elif op[0] == "G": o_flag(int(op[1:]))
        elif op[0] == "z": S(f"s_sleep {op[1:]}")
        elif op[0] == "R":
            name = op[1:]
            if name in WSET:
                for j in WSET[name]:
                    if j in parked: w_write(j)
                    assert j in lds_w
                    S.wait_vm_tag(f"u{j}")
            else: assert int(name[2]) in polled
            assert EV[name][0] == last_pub[0] + 1, (name, EV, last_pub)
            publish(EV[name][0])
        else: raise ValueError(op)
    stamp(S, cfg, 3)
    if cfg.trace:
        S(f"s_lshl_b32 s66, s2, 2\ns_add_u32 s66, s66, s{S_W}\ns_lshl_b32 s66, s66, 9\ns_add_u32 s66, s66, {WS_STAMP + (1 << 20)}\nv_lshlrev_b32 v2, 2, v1")
        S(f"buffer_store_dword v250, v2, {srd(SWS)}, s66 offen\nbuffer_store_dword v251, v2, {srd(SWS)}, s66 offen offset:256")
    if cfg.stop:
        S.wait_vm(0); stamps_store(S, cfg); S("s_branch L_end"); return
    S(f"s_cmp_lg_u32 s{S_W}, 0\ns_cbranch_scc1 L_lfin")
    R = 64
    S(f"""v_and_b32 v2, 7, v1
    v_bfe_u32 v3, v1, 3, 2
    v_lshl_add_u32 v2, v3, 4, v2
    s_and_b32 s76, s{S_P}, 1
    s_lshl_b32 s76, s76, 3
    v_add_u32 v2, s76, v2
    v_lshlrev_b32 v2, 4, v2
    v_lshrrev_b32 v3, 5, v1
    v_lshl_add_u32 v4, v3, 14, v2
    s_lshl_b32 s{sA}, s{S_BLK}, 3
    s_add_u32 s{sA}, s{sA}, s{S_B}
    s_lshl_b32 s{sA}, s{sA}, 6
    s_add_u32 s{sA}, s{sA}, s{S_KQ}
    s_lshl_b32 s{sA}, s{sA}, 1
    s_lshr_b32 s76, s{S_P}, 1
    s_add_u32 s{sA}, s{sA}, s76
    s_lshl_b32 s{sA}, s{sA}, 11
    s_add_u32 s{sA}, s{sA}, {WS_DX}
    s_and_b32 s72, s{S_NONCE}, 1
    s_lshl_b32 s73, s{S_NONCE}, 15
    s_and_b32 s73, s73, 0x10000
    s_or_b32 s72, s72, s73
    v_mov_b32 v8, 0x10001
""")
    wait_free(F_DX)
    S(f"s_mov_b32 s77, {SPIN_LIMIT}")
    S.label("L_dx")
    for r in range(8):
        S(f"s_add_u32 s{sT}, s{sA}, {r*2*16384}")
        for gm in range(2):
            S(f"buffer_load_dwordx4 {vr(R+8*r+4*gm,4)}, v4, {srd(SWS)}, s{sT} offen offset:{gm*1024} sc1")
    S(f"v_xor_b32 v5, s72, v{R}")
    for i in range(1, 64): S(f"v_bitop3_b32 v5, v5, v{R+i}, s72 bitop3:0xf6")
    S("v_and_b32 v5, v5, v8\nv_cmp_eq_u32 vcc, 0, v5\ns_cmp_eq_u64 vcc, -1\ns_cbranch_scc1 L_dx_ok")
    S("s_sleep 4\ns_sub_u32 s77, s77, 1\ns_cmp_lg_u32 s77, 0\ns_cbranch_scc1 L_dx")
    S.label("L_dx_ok")
    AC = 24
    for r in range(8):
        for d in range(8):
            src = R + 8 * r + d
            if r == 0:
                S(f"v_lshlrev_b32 v{AC+2*d}, 16, v{src}\nv_and_b32 v{AC+2*d+1}, 0xffff0000, v{src}")
            else:
                S(f"v_lshlrev_b32 v6, 16, v{src}\nv_and_b32 v7, 0xffff0000, v{src}\nv_add_f32 v{AC+2*d}, v{AC+2*d}, v6\nv_add_f32 v{AC+2*d+1}, v{AC+2*d+1}, v7")
    for i in range(8): S(f"v_permlane32_swap_b32 v{AC+i}, v{AC+8+i}")
    for i in range(8): S(f"v_add_f32 v{AC+i}, v{AC+i}, v{AC+8+i}")
    for i in range(4): S(f"v_cvt_pk_bf16_f32 v{44+i}, v{AC+2*i}, v{AC+2*i+1}")
    S(f"""v_and_b32 v2, 7, v1
    s_lshl_b32 s76, s{S_B}, 7
    s_lshl_b32 s77, s{S_KQ}, 5
    s_add_u32 s76, s76, s77
    s_lshl_b32 s77, s{S_P}, 3
    s_add_u32 s76, s76, s77
    v_add_u32 v2, s76, v2
    v_mul_u32_u24 v2, 2304, v2
    v_bfe_u32 v3, v1, 3, 2
    v_lshl_add_u32 v2, v3, 3, v2
    v_lshrrev_b32 v3, 5, v1
    v_lshl_add_u32 v2, v3, 6, v2
    s_mul_i32 s76, s{S_BLK}, 1152
    s_add_u32 s76, s76, 1024
    buffer_store_dwordx2 v[44:45], v2, {srd(SOUT)}, s76 offen
    buffer_store_dwordx2 v[46:47], v2, {srd(SOUT)}, s76 offen offset:32""")
    S.label("L_lfin")
    if cfg.stamps: S("s_waitcnt vmcnt(0)")
    stamps_store(S, cfg)
    S("s_branch L_end")

def compute(S, cfg):
    VX, VW = [4, 5, 6], [7, 8, 9]
    VK, VV, VOST, VZ, VN = [10, 11], [12, 13], 14, 15, 16
    VM, VT, VRC, VPR, VFA, VFT, VPR2 = [17, 18], 19, [[20, 21], [22, 23]], 16, 2, 3, 19
    ONES, LS = 56, [60, 4]
    QP = lambda h: 64 + 32 * h
    SS = lambda h: 128 + 64 * h
    PP = 64
    OF = lambda h, s, u: 96 + 8 * s + 4 * u if h == 0 else 192 + 16 * s + 4 * u
    S.label("L_compute")
    S(f"v_mov_b32 v{VZ}, 0\ns_waitcnt lgkmcnt(0)")
    srd_bases(S, (SWS, SOUT, SDBG))
    S(f"s_or_b32 s66, s2, s3\ns_cmp_lg_u32 s66, 0\ns_cbranch_scc1 L_notag")
    S.out += _raw(f"""s_mov_b32 s66, {WS_EPOCH}
    buffer_load_dword v2, v{VZ}, {srd(SWS)}, s66 offen sc1
    s_waitcnt vmcnt(0)
    v_add_u32 v2, 1, v2
    v_max_u32 v2, 1, v2
    buffer_store_dword v2, v{VZ}, {srd(SWS)}, s66 offen sc1
    buffer_store_dword v2, v{VZ}, {srd(SDBG)}, 0 offen sc1
    s_waitcnt vmcnt(0)""")
    S.label("L_notag")
    S(f"""v_and_b32 v22, 15, v1
    v_lshrrev_b32 v23, 4, v1
    v_mul_u32_u24 v2, {PITCH}, v22
    v_lshl_add_u32 v{VK[0]}, v23, 4, v2
    v_add_u32 v{VK[0]}, {LB}, v{VK[0]}
    v_add_u32 v{VK[1]}, {2*SLOT}, v{VK[0]}
    s_lshl_b32 s66, s{S_W}, 8
    v_add_u32 v{VX[0]}, s66, v{VK[0]}
    v_add_u32 v{VX[1]}, {3*SLOT}, v{VX[0]}
    v_add_u32 v{VX[2]}, {6*SLOT}, v{VX[0]}
    v_bfe_u32 v2, v1, 2, 3
    v_mul_u32_u24 v2, {PITCH}, v2
    v_lshrrev_b32 v3, 5, v1
    v_lshl_add_u32 v2, v3, 9, v2
    v_and_b32 v3, 3, v1
    v_lshl_add_u32 v2, v3, 3, v2
    v_add_u32 v{VW[0]}, {slot(1)}, v2
    v_add_u32 v{VW[1]}, {slot(4)}, v2
    v_add_u32 v{VW[2]}, {slot(7)}, v2
    v_lshrrev_b32 v2, 2, v1
    v_mul_u32_u24 v2, {PITCH}, v2
    v_lshl_add_u32 v2, v3, 3, v2
    v_add_u32 v{VV[0]}, {slot(4)}, v2
    v_add_u32 v{VV[1]}, {slot(6)}, v2
    s_mul_i32 s66, s{S_W}, {4*PITCH}
    s_add_u32 s66, s66, {slot(0)}
    v_lshlrev_b32 v{VOST}, 4, v1
    v_add_u32 v{VOST}, s66, v{VOST}
    s_add_u32 s66, s{S_W}, 4
    v_lshl_add_u32 v{VFA}, v1, 2, 64
    v_writelane_b32 v{VFA}, s66, 0
    s_mov_b32 s{S_C}, {f32(math.log2(math.e) / math.sqrt(128.0))}""")
    G = []
    def add(reads, mf, lead, need=None, free=None, gate=None, bar=False):
        G.append(dict(reads=reads, mf=mf, gate=len(G) - lead if gate is None else gate, need=need, free=free, bar=bar))
    ACC = lambda t, u: 128 + 8 * t + 4 * u
    ARING = [96, 104, 112, 120, 56]
    XF = lambda c, s, u: 24 + 16 * (c & 1) + 8 * s + 4 * u
    for c in range(9):
        for t in range(16):
            rg = ARING[len(G) % 5]
            rd = [f"ds_read_b64_tr_b16 {vr(rg+4*s+2*r,2)}, v{VW[c%3]} offset:{s*SLOT + r*8*PITCH + 32*t}" for s in range(2) for r in range(2)]
            if t == 0: rd = [f"ds_read_b128 {vr(XF(c,s,u),4)}, v{VX[c%3]} offset:{128*u + 64*s}" for s in range(2) for u in range(2)] + rd
            add(rd, [mfma(ACC(t, u), rg + 4*s, XF(c, s, u), first=(c == 0 and s == 0)) for u in range(2) for s in range(2)], cfg.alead,
                need=c if t == 0 and c and not cfg.abar else None, free=c + 1 if t == 15 and (c == 8 or not cfg.abar) else None, bar=cfg.abar and t == 0 and c > 0)
    gA = len(G)
    fill = [(gA - 6, gA, pack(QP(0), 128))]
    tail_fill = None
    KR = lambda i: 24 + 4 * ((i + 4) & 7)
    def qk(h):
        for kt in range(8):
            add([f"ds_read_b128 {vr(KR(4*kt+s),4)}, v{VK[h]} offset:{(kt&1)*16*PITCH + (kt>>1)*256 + 64*s}" for s in range(4)],
                [mfma(SS(h)+8*kt+4*u, KR(4*kt+s), QP(h)+8*s+4*u, first=(s == 0)) for u in range(2) for s in range(4)], 1,
                need=R_K0 + h if kt == 0 else None, free=F_QK0 + h if kt == 7 else None, gate=gA - 3 if (h == 0 and kt == 0) else None)
    def pv(h):
        for dt in range(8):
            add([f"ds_read_b64_tr_b16 {vr(KR(4*dt+j)+2*r,2)}, v{VV[h]} offset:{r*16*PITCH + j*256 + 32*dt}" for j in range(4) for r in range(2)],
                ([mfma(LS[u], ONES, PP+8*j+4*u, first=(j == 0)) for u in range(2) for j in range(4)] if dt == 0 else []) +
                [mfma(SS(h)+8*dt+4*u, KR(4*dt+j), PP+8*j+4*u, first=(j == 0)) for u in range(2) for j in range(4)], 1,
                need=(R_V0, R_V1)[h] if dt == 0 else None, free=(F_PV0, F_PV1)[h] if dt == 7 else None, gate=len(G) - 2 if (h == 1 and dt == 0) else None)
    def softmax(h):
        s = SS(h)
        el = [[s + 8*kt + 4*u + r for kt in range(8) for r in range(4)] for u in range(2)]
        o = []
        for i in range(16):
            for u in range(2):
                e = el[u]
                if i == 0: o.append(f"v_max3_f32 v{VM[u]}, v{e[0]}, v{e[1]}, v{e[2]}")
                elif i < 15: o.append(f"v_max3_f32 v{VM[u]}, v{VM[u]}, v{e[2*i+1]}, v{e[2*i+2]}")
                else: o.append(f"v_max_f32 v{VM[u]}, v{VM[u]}, v{e[31]}")
        a, b = VM
        o += [f"v_permlane32_swap_b32 v{a}, v{b}", f"v_max_f32 v{a}, v{a}, v{b}", f"v_mov_b32 v{b}, v{a}",
              f"v_permlane16_swap_b32 v{a}, v{b}", f"v_max_f32 v{a}, v{a}, v{b}", f"v_mul_f32 v{a}, s{S_C}, v{a}", f"v_mov_b32 v{b}, v{a}",
              f"v_permlane32_swap_b32 v{a}, v{b}"]
        order = [(kt, u, r) for kt in range(8) for u in range(2) for r in range(4)]
        D = 2
        for i in range(64 + 2 * D):
            if i < 64:
                kt, u, r = order[i]; x = s + 8*kt + 4*u + r
                o.append(f"v_fma_f32 v{x}, v{x}, s{S_C}, -v{VM[u]}")
            j = i - D
            if 0 <= j < 64:
                kt, u, r = order[j]; x = s + 8*kt + 4*u + r
                o.append(f"v_exp_f32 v{x}, v{x}")
            j = i - 2 * D
            if 0 <= j < 64:
                kt, u, r = order[j]; x = s + 8*kt + 4*u + r
                if r & 1: o.append(f"v_cvt_pk_bf16_f32 v{PP+8*(kt>>1)+4*u+2*(kt&1)+(r>>1)}, v{x-1}, v{x}")
        return o
    sig = [0]
    def signal(f):
        assert f > sig[0], (f, sig[0])
        sig[0] = f
        S(f"v_mov_b32 v{VFT}, {f}\nds_write_b8 v{VFA}, v{VFT}")
    def o_pack(h):
        s = SS(h); o = []
        need = (F_QK1, FU[1])[h]; lab = f"L_st{h}"
        def chk():
            S(f"v_readfirstlane_b32 s64, v{VPR2}")
            for x in swar(64, need): S(x)
            S(f"s_cbranch_scc0 {lab}")
            S.label(lab + "_ok")
            S.cold += spin_block(lab, lab + "_ok", VPR2, VZ, 4, 64, need, 0)
        for st in range(4):
            part = [f"ds_read_b32 v{VPR2}, v{VZ} offset:4"] if st == 0 else []
            for u in range(2):
                for e in range(2):
                    for r in range(4):
                        x = s + 8*(2*st+e) + 4*u + r
                        part.append(f"v_mul_f32 v{x}, v{x}, v{VRC[h][u]}")
                i = 2 * st + u
                part += [f"v_cvt_pk_bf16_f32 v{OF(h,st,u)+2*e+x}, v{s+8*(2*st+e)+4*u+2*x}, v{s+8*(2*st+e)+4*u+2*x+1}" for e in range(2) for x in range(2)]
                if i == 0: part.append(chk)
                part.append((f"ds_write_b128 v{VOST}, {vr(OF(h,st,u),4)} offset:{(2 - 2*h + (i >> 2))*SLOT + (i & 3)*1024}", f"st{h}"))
            o.append(part)
        def done():
            S.wait_lg_tag(f"st{h}"); signal((F_O0, F_O1)[h])
        return o, done
    rcp = lambda h: [f"v_rcp_f32 v{VRC[h][u]}, v{LS[u]}" for u in range(2)]
    st = lambda i: (lambda: stamp(S, cfg, i))
    def pack_fill(h, g0):
        op, done = o_pack(h)
        return [(g0 + 1, g0 + 2, rcp(h)), (g0 + 3, g0 + 5, op[0]), (g0 + 5, g0 + 7, op[1]), (g0 + 7, g0 + 9, op[2]), (g0 + 9, g0 + 11, op[3]), (g0 + 11, g0 + 12, [done, "s_wakeup"])]
    if cfg.stop != "A":
        qk(0); qk(1); pv(0)
        fill += [(gA, gA + 1, [st(2), lambda: nonce_issue(S, VT, VZ)]),
                 (gA, gA + 8, pack(QP(1), 192) + [f"v_mov_b32 v{ONES+i}, 0x3f803f80" for i in range(4)]),
                 (gA + 8, gA + 9, [st(3)]), (gA + 8, gA + 16, softmax(0)),
                 (gA + 14, gA + 15, [lambda: nonce_check(S, VT, VZ, "L_cn")]), (gA + 16, gA + 17, [st(4)])] + pack_fill(0, gA + 16)
    gC0 = len(G)
    units, slots, EV = c_units(), c_slots(), c_events(cfg)
    VA, VL16 = [8, 9, 10], 11
    MC = lambda nt, u: 128 + 8 * nt + 4 * u
    EC = lambda nt, u: 200 + 16 * nt + 4 * u
    CRING = [40, 48, 24, 32, 56]
    OBUF = [(64, 8), (80, 8), (96, 8), (112, 8), (192, 16), (224, 16)]
    OB = lambda j, s, u: OBUF[(j - 6) % 6][0] + OBUF[(j - 6) % 6][1] * s + 4 * u
    sOP = [None, 96, 97, 98]
    if cfg.stop is None:
        setup = [f"v_add_u32 v{VA[0]}, {-6*SLOT & 0xffffffff}, v{VV[1]}", f"v_add_u32 v{VA[1]}, {-3*SLOT & 0xffffffff}, v{VV[1]}", f"v_mov_b32 v{VA[2]}, v{VV[1]}",
                 f"v_lshlrev_b32 v{VL16}, 4, v1"]
        for pi in range(1, 4):
            setup += [f"s_add_u32 s66, s2, {64*pi}", "s_and_b32 s66, s66, 255", "s_lshl_b32 s66, s66, 2", f"s_add_u32 s66, s66, s{S_W}", f"s_lshl_b32 s{sOP[pi]}, s66, 14"]
        fill += [(gA + 17, gA + 19, setup)]
        gC = gC0 + 8
        def cgroup(j, n, **kw):
            uk, hh, x = units[j]
            sl = slots[("W", j)][0]
            va, so = VA[sl // 3], (sl % 3) * SLOT
            k = len(G) - (gC0 if j < 2 else gC)
            rg = CRING[k % 4] if k < 32 else CRING[(k - 32) % 5]
            if uk == "E":
                nt, sp = n >> 1, n & 1
                rd = [f"ds_read_b64_tr_b16 {vr(rg+4*s+2*r,2)}, v{va} offset:{so + (2*(2*sp+s)+r)*128 + 32*nt}" for s in range(2) for r in range(2)]
                mf = [mfma(EC(nt, u), rg + 4*s, OF(hh, 2*sp+s, u), first=(hh == 0 and sp == 0 and s == 0)) for u in range(2) for s in range(2)]
            else:
                bf = (lambda s, u: OF(hh, 2*x+s, u)) if uk == "M" else (lambda s, u: OB(j, s, u))
                rd = [f"ds_read_b64_tr_b16 {vr(rg+4*s+2*r,2)}, v{va} offset:{so + (2*s+r)*256 + 32*n}" for s in range(2) for r in range(2)]
                mf = [mfma(MC(n, u), rg + 4*s, bf(s, u), first=(j == 0 and s == 0)) for u in range(2) for s in range(2)]
            need = None
            for name, us in WSET.items():
                if j in us and name not in seen: need = EV[name][0]; seen.add(name)
            b0 = len(G) - (k & 3)
            add(rd, mf, 3 if k < 36 else 4, gate={0: b0 - 1, 1: b0 - 1, 2: b0, 3: b0}[k & 3] if (k & ~3) in (0, 16) else None, need=need, **kw)
        seen = set()
        for j in range(cfg.merge):
            if j == 2:
                fill += [(gC0, gC0 + 1, [st(5)]), (gC0 + 3, gC0 + 16, softmax(1)), (len(G), len(G) + 1, [st(6)])] + pack_fill(1, len(G))
                pv(1)
            for n in range(8): cgroup(j, n, free=FU.get(j) if n == 7 else None)
        gM = len(G)
        nm_ = 18 - cfg.merge
        for tau in (1, 2, 3, 0):
            for j in range(cfg.merge, 18):
                for e in range(2): cgroup(j, 2 * tau + e)
        def o_loads(j):
            uk, hh, x = units[j]
            return [f"s_add_u32 s{48 + j % 6}, s{sOP[1 + x % 3]}, {WS_O + hh*8192 + (x // 3)*4096}"] + \
                   [f"buffer_load_dwordx4 {vr(OB(j, i >> 1, i & 1), 4)}, v{VL16}, {srd(SWS)}, s{48 + j % 6} offen offset:{i*1024} {cfg.pol_o}" for i in range(4)]
        for k in range(4):
            num, p0 = EV[f"OP{k}"]; lab = f"L_rdy{num}"
            def chk(lab=lab, num=num):
                S(f"v_readfirstlane_b32 s64, v{VPR2}")
                for x in swar(64, num): S(x)
                S(f"s_cbranch_scc0 {lab}")
                S.label(lab + "_ok")
                S.cold += spin_block(lab, lab + "_ok", VPR2, VZ, 0, 64, num, 0)
            fill += [(gC + p0 - 2, gC + p0 - 1, [f"ds_read_b32 v{VPR2}, v{VZ}"]), (gC + p0, gC + p0 + 1, [chk])]
            for i in range(3):
                j = 6 + 3 * k + i
                first = {6: 16, 7: 16, 8: 24, 9: 24, 10: 48, 11: 48}.get(j, 8 * (j - 5))
                a = max(p0 + 1 + cfg.ostep * i, first)
                fill += [(gC + a, gC + a + 2, o_loads(j))]
                if j == 9: fill += [(gC + a + 2, gC + a + 3, [lambda: signal(F_OI), "s_wakeup"])]
        VMASK, GR = 12, 64
        tagprep = [f"s_and_b32 s72, s{S_NONCE}, 1", f"s_lshl_b32 s73, s{S_NONCE}, 15", "s_and_b32 s73, s73, 0x10000", "s_or_b32 s72, s72, s73",
                   f"v_mov_b32 v{VMASK}, 0xfffefffe"]
        def tpack(base, n):
            o = []
            for k in range(n): o += [f"v_cvt_pk_bf16_f32 v{base+k}, v{base+2*k}, v{base+2*k+1}", f"v_and_or_b32 v{base+k}, v{base+k}, v{VMASK}, s72"]
            return o
        dx = list(tagprep)
        for u in range(2):
            for m_ in range(2):
                for k in range(4):
                    d, a = EC(2*m_, u) + k, EC(2*m_ + (k >> 1), u) + 2 * (k & 1)
                    dx += [f"v_cvt_pk_bf16_f32 v{d}, v{a}, v{a+1}", f"v_and_or_b32 v{d}, v{d}, v{VMASK}, s72"]
        dx += [f"s_lshl_b32 s67, s{S_BLK}, 3", f"s_add_u32 s67, s67, s{S_B}", "s_lshl_b32 s67, s67, 4", f"s_lshr_b32 s68, s{S_H0}, 1", "s_add_u32 s67, s67, s68",
               "s_lshl_b32 s67, s67, 2", f"s_add_u32 s67, s67, s{S_W}", "s_lshl_b32 s67, s67, 12", f"s_add_u32 s67, s67, {WS_DX}"]
        for gm in range(4):
            dx.append(f"buffer_store_dwordx4 {vr(EC(2*(gm & 1), gm >> 1),4)}, v{VL16}, {srd(SWS)}, s67 offen offset:{gm*1024} sc1")
        def dsend(tau):
            o = [f"s_add_u32 s67, s{S_KQ}, {tau}", "s_and_b32 s67, s67, 3", f"s_and_b32 s68, s2, {~3 & 0xffffffff}", "s_add_u32 s67, s67, s68", "s_lshl_b32 s67, s67, 2",
                 f"s_add_u32 s67, s67, s{S_W}", "s_mul_i32 s67, s67, 6144", f"s_add_u32 s67, s67, {WS_D + (tau-1)*2048}"]
            tp = tpack(128 + 16*tau, 8)
            for e in range(2):
                o += tp[8*e:8*e+8]
                o.append(f"buffer_store_dwordx4 {vr(128+16*tau+4*e,4)}, v{VL16}, {srd(SWS)}, s67 offen offset:{e*1024} sc1")
            return o
        daddr = ["s_lshl_b32 s74, s2, 2", f"s_add_u32 s74, s74, s{S_W}", "s_mul_i32 s74, s74, 6144", f"s_add_u32 s74, s74, {WS_D}", "s_add_u32 s75, s74, 4096",
                 f"s_lshl_b32 s70, s{S_B}, 2", f"s_add_u32 s70, s70, s{S_W}", "s_lshl_b32 s70, s70, 5", "v_and_b32 v2, 15, v1", "v_add_u32 v2, s70, v2", "v_mul_u32_u24 v2, 2304, v2",
                 "v_bfe_u32 v3, v1, 4, 1", "v_lshl_add_u32 v2, v3, 5, v2", "v_lshrrev_b32 v3, 5, v1", "v_lshl_add_u32 v2, v3, 4, v2", f"s_mul_i32 s70, s{S_BLK}, 1152",
                 f"s_lshl_b32 s71, s{S_P}, 8", "s_add_u32 s70, s70, s71", f"s_lshl_b32 s71, s{S_KQ}, 6", "s_add_u32 s70, s70, s71", f"s_add_u32 s71, s70, {16*2304}"]
        q = 2 * nm_
        w = min(q - 1, 6)
        fill += [(gC + cfg.dxpos, gC + cfg.dxpos + 8, dx),
                 (gC + cfg.dxgo, gC + cfg.dxgo + 1, [lambda: signal(F_DX), "s_wakeup"]), (gM + 1, gM + 6, daddr), (gM + q + 1, gM + q + 1 + w, dsend(1)), (gM + 2*q + 1, gM + 2*q + 1 + w, dsend(2)), (gM + 3*q + 1, gM + 3*q + 1 + w, dsend(3))]
        if cfg.cdetail:
            fill += [((gC if j > 1 else gC0) + 8*j, (gC if j > 1 else gC0) + 8*j + 1, [lambda i=j - (cfg.cdetail - 1): stamp(S, cfg, 1 + i, True)]) for j in range(18) if 0 <= j - (cfg.cdetail - 1) < 12]
    if cfg.adetail:
        fill += [(16*c, 16*c + 1, [lambda c=c: stamp(S, cfg, 1 + c, True)]) for c in range(9)]
        if cfg.stop != "A": fill += [(gA + 8*i, gA + 8*i + 1, [lambda i=i: stamp(S, cfg, 10 + i, True)]) for i in range(3)]
    queue = []
    frees, due = {}, {}
    for gi, g in enumerate(G):
        if g["need"] is not None and not cfg.nocheck:
            lab = f"L_rdy{g['need']}"
            steps = [f"v_readfirstlane_b32 s69, v{VPR}"] + swar(69, g["need"])
            at = max(0, len(queue) - cfg.probe_ahead)
            pg = queue[at][0] if at < len(queue) else g["gate"]
            queue.insert(at, (pg, "r", f"ds_read_b32 v{VPR}, v{VZ}"))
            queue.append((g["gate"], "r", steps[0]))
            queue.append((g["gate"], "gap", None))
            def chk(lab=lab, need=g["need"], steps=steps):
                for x in steps[1:]: S(x)
                S(f"s_cbranch_scc0 {lab}")
                S.label(lab + "_ok")
                S.cold += spin_block(lab, lab + "_ok", VPR, VZ, 0, 69, need, 0)
            queue.append((g["gate"], "c", chk))
        if g["bar"]:
            for _ in range(cfg.bargap): queue.append((g["gate"], "gap", None))
            def br():
                S.wait_lg(0); S("s_barrier")
            queue.append((g["gate"], "c", br))
        for k, r in enumerate(g["reads"]):
            queue.append((g["gate"], "r", (r, f"g{gi}") if k == len(g["reads"]) - 1 else r))
        if g["free"] is not None and not cfg.nofree:
            def fr(gi=gi, f=g["free"]):
                S.wait_lg_tag(f"g{gi}")
                signal(f)
                if cfg.wake: due[m + 2] = lambda: S("s_wakeup")
            frees[f"g{gi}"] = fr
    nm = [len(g["mf"]) for g in G]
    pos = [sum(nm[:i]) for i in range(len(G) + 1)]
    fl = {}
    for (g0, g1, ins) in fill:
        a, b = pos[g0], pos[g1]
        for k, x in enumerate(ins): fl.setdefault(a + (k * (b - a)) // len(ins), []).append(x)
    if tail_fill: fl.setdefault(pos[tail_fill[0]] - 1, []).extend(tail_fill[1])
    S("s_barrier")
    stamp(S, cfg, 1)
    m = 0
    def issue(q):
        emit(S, q[2])
        if isinstance(q[2], tuple) and q[2][1] in frees: due[m + cfg.free_delay] = frees[q[2][1]]
    for gi, g in enumerate(G):
        last_tag = f"g{gi}"
        while any(isinstance(q[2], tuple) and q[2][1] == last_tag for q in queue):
            q = queue.pop(0)
            if q[1] != "gap": issue(q)
        if cfg.gwait: S.wait_lg_tag(last_tag)
        for k, mf in enumerate(g["mf"]):
            S(mf)
            if m in due: due.pop(m)()
            n = 0
            while queue and n < 2 and queue[0][0] <= gi:
                q = queue[0]
                if q[1] == "gap": queue.pop(0); break
                if n >= 1 and q[0] == gi and q[1] == "r": break
                queue.pop(0); issue(q); n += 1
            for x in fl.get(m, []): emit(S, x)
            m += 1
    assert not queue
    while due: due.pop(min(due))()
    if cfg.stop == "A":
        stamp(S, cfg, 2)
        for x in pack(QP(1), 192): S(x)
        S(f"s_lshl_b32 s66, s2, 16\ns_lshl_b32 s67, s{S_W}, 14\ns_add_u32 s66, s66, s67\nv_lshlrev_b32 v{VOST}, 4, v1\nv_add_u32 v{VOST}, s66, v{VOST}")
        for i in range(16):
            S(f"s_mov_b32 s66, {i*1024}")
            S(f"buffer_store_dwordx4 {vr(64+4*i,4)}, v{VOST}, {srd(SWS)}, s66 offen")
        S.wait_vm(0); stamps_store(S, cfg); S("s_branch L_end"); return
    if cfg.stop == "B":
        stamp(S, cfg, 6)
        op1, done1 = o_pack(1)
        for x in op1 + [done1]: emit(S, x)
        S.wait_vm(0); stamp(S, cfg, 7); stamps_store(S, cfg); S("s_branch L_end"); return
    stamp(S, cfg, 7)
    S(f"s_mov_b32 s77, {SPIN_LIMIT}\nv_mov_b32 v6, 0x10001")
    S.label("L_d")
    for i in range(6):
        S(f"buffer_load_dwordx4 {vr(GR+4*i,4)}, v{VL16}, {srd(SWS)}, s{74 + i//4} offen offset:{(i%4)*1024} sc1")
    S(f"v_xor_b32 v4, s72, v{GR}")
    for i in range(1, 24): S(f"v_bitop3_b32 v4, v4, v{GR+i}, s72 bitop3:0xf6")
    S("v_and_b32 v4, v4, v6\nv_cmp_eq_u32 vcc, 0, v4\ns_cmp_eq_u64 vcc, -1\ns_cbranch_scc1 L_d_ok")
    S("s_sub_u32 s77, s77, 1\ns_cmp_lg_u32 s77, 0\ns_cbranch_scc1 L_d")
    S.label("L_d_ok")
    stamp(S, cfg, 9)
    for tau in range(3):
        for u in range(2):
            for e in range(2):
                for x in range(2):
                    src = GR + 8 * tau + 4*e + 2*u + x; a = MC(e, u) + 2 * x
                    S(f"v_lshlrev_b32 v4, 16, v{src}\nv_and_b32 v5, 0xffff0000, v{src}\nv_add_f32 v{a}, v{a}, v4\nv_add_f32 v{a+1}, v{a+1}, v5")
    GS = 48
    for u in range(2):
        for e in range(2):
            for x in range(2):
                S(f"v_cvt_pk_bf16_f32 v{GS+4*u+2*e+x}, v{MC(e,u)+2*x}, v{MC(e,u)+2*x+1}")
    for u in range(2):
        for x in range(2): S(f"v_permlane16_swap_b32 v{GS+4*u+x}, v{GS+4*u+2+x}")
    for u in range(2):
        S(f"buffer_store_dwordx4 {vr(GS+4*u,4)}, v2, {srd(SOUT)}, s{70+u} offen")
    if cfg.stamps:
        S.wait_vm(0); stamp(S, cfg, 10)
    stamps_store(S, cfg)
    S("s_branch L_end")

Cfg.dxwait = 17
H7 = "bA7 wK0 warm bA8 wK1 V1 wV0 W0 W1 W2 RWA W3 W4 W5 wV1 W6 W7 W8 w2 W9 W10 P0 S0 S1 RWB G0 G1 W11 W12 W13 W14 W15 W16 W17 "
H8 = "warm bA7 wK0 bA8 V0 wK1 W0 W1 wV0 V1 RWA W2 W3 W4 W5 W6 wV1 P0 S0 S1 RWB G0 G1 W7 W8 W9 W10 W11 W12 W13 W14 W15 W16 W17 "
H9 = "K1 bA7 wK0 bA8 V0 wK1 warm wV0 V1 W0 W1 RWA W2 W3 W4 W5 W6 wV1 P0 S0 S1 RWB G0 G1 W7 W8 W9 W10 W11 W12 W13 W14 W15 W16 W17 "
TA = "P1 S2 q0 ROP0 q1 ROP1 G2 f18 S3 RWC G3 w9 w10 w11 RWD q2 ROP2 q3 ROP3 RWE"
TB = "P1 S2 S3 q0 ROP0 q1 ROP1 G2 G3 RWC RWD q2 ROP2 q3 ROP3 RWE"
TD = "q0 ROP0 q1 ROP1 P1 S2 S3 RWC G2 G3 w9 w10 w11 RWD q2 ROP2 q3 ROP3 RWE"
TE = "q0 ROP0 q1 ROP1 P1 f18 S2 S3 RWC G2 G3 w9 w10 w11 RWD q2 ROP2 q3 ROP3 RWE"
PROGS = {h + x: H + T for h, H in (("7", H7), ("8", H8), ("9", H9)) for x, T in (("a", TA), ("b", TB), ("d", TD), ("e", TE))}
Cfg.prog = "9b"

def gen(cfg):
    hdr = open(REF).read().split("; Override launch")[0].rstrip("\n")
    launch = [f"; @launch grid=(256,1,1) block=(512,1,1) lds={LDS_BYTES}"]
    L = [hdr] + launch + ['.amdgcn_target "amdgcn-amd-amdhsa--gfx950"',
         ".text", f".globl {NAME}", ".p2align 8", f".type {NAME},@function", f"{NAME}:"]
    P = Stream("pro"); prologue(P, cfg); L += P.finish()
    Ld = Stream("loader"); Ld.smem_pending = True; loader(Ld, cfg); L += Ld.finish()
    L.append(".p2align 6")
    C = Stream("compute"); C.smem_pending = True; compute(C, cfg); L += C.finish()
    L.append("L_cold:")
    for s in (Ld, C):
        L += [x if isinstance(x, str) else "    " + x.text for x in s.cold]
    L += ["L_end:", "    s_endpgm", '.section .rodata,"a"', ".p2align 6", f".amdhsa_kernel {NAME}",
          "  .amdhsa_next_free_vgpr 256", "  .amdhsa_next_free_sgpr 102", "  .amdhsa_accum_offset 256",
          "  .amdhsa_group_segment_fixed_size 0", "  .amdhsa_kernarg_size 104", "  .amdhsa_user_sgpr_count 2",
          "  .amdhsa_user_sgpr_kernarg_segment_ptr 1", "  .amdhsa_system_sgpr_workgroup_id_x 1", ".end_amdhsa_kernel", ""]
    if cfg.align:
        from align import align
        k0 = L.index(f"{NAME}:"); k1 = L.index("L_end:") + 2
        body, nprom, npad = align(L[k0:k1], "L_compute", "L_cold", cfg.align == 2)
        L = L[:k0] + body + L[k1:]
        sys.stderr.write(f"align: promoted {nprom} padded {npad}\n")
    sys.stderr.write(f"nops: loader {Ld.nops} compute {C.nops}\n")
    return "\n".join(L)

if __name__ == "__main__":
    cfg = Cfg()
    out = sys.argv[1]
    for a in sys.argv[2:]:
        k, val = a.split("=", 1)
        cur = getattr(Cfg, k)
        if isinstance(cur, bool): val = val in ("1", "true", "True")
        elif isinstance(cur, int): val = int(val)
        elif val == "None": val = None
        setattr(cfg, k, val)
    open(out, "w").write(gen(cfg))
    open(out + ".sites", "w").write(" ".join(map(str, SITES)))
```

```python
import sys, math, struct
from sched import Stream, Ins

NAME = "concat_heads__mha_block_cached__gqa_block_cached__near_ridge_kernel"
REF = "concat_heads__mha_block_cached__gqa_block_cached__near_ridge.s.ref"
SLOT = 17408
PITCH = 1056
LB = 512
LDS_BYTES = LB + 9 * SLOT
def slot(i): return LB + i * SLOT
WS_O, WS_D, WS_DX, WS_FLAG, WS_EPOCH, WS_STAMP = 0, 16 << 20, 32 << 20, 40 << 20, 41 << 20, 48 << 20
WS_SIZE = 64 << 20
SPIN_LIMIT = 1 << 16

def f32(x): return struct.unpack("<I", struct.pack("<f", x))[0]
def vr(n, c=1): return f"v{n}" if c == 1 else f"v[{n}:{n+c-1}]"
def mfma(d, a, b, first=False):
    return f"v_mfma_f32_16x16x32_bf16 {vr(d,4)}, {vr(a,4)}, {vr(b,4)}, {'0' if first else vr(d,4)}"
def _raw(text): return [Ins(l.strip()) if not l.strip().endswith(":") else l.strip() for l in text.split("\n") if l.strip()]
def emit(S, x):
    if callable(x): x()
    elif isinstance(x, tuple): S(*x)
    else: S(x)

SX, SWQ, SK, SV, SWO, SWS, SOUT, SDBG = 8, 12, 16, 20, 24, 28, 32, 36
def srd(n): return f"s[{n}:{n+3}]"
S_BLK, S_KQ, S_B, S_P, S_H0, S_W, S_NONCE, S_C = 40, 41, 42, 43, 44, 45, 46, 47

R_K0, R_K1, R_V0, R_WA, R_V1, R_U = 9, 10, 11, 12, 13, 14
F_QK0, F_QK1, F_PV0, F_O0, F_PV1, F_O1 = 10, 11, 12, 13, 15, 16
F_OI, F_DX = 18, 21
FU = {1: 14, 2: 17, 4: 19, 8: 20}
WSET = {"WA": (0, 1), "WB": (2, 3, 4, 5, 6), "WC": (7, 8), "WD": (9, 10, 11, 12, 13), "WE": (14, 15, 16, 17)}
def c_events(cfg):
    pos = {"WB": 12, "WC": 52, "WD": 68, "WE": 8 * min(14, cfg.merge) - 4}
    for k, x in enumerate(cfg.opos.split(",")): pos[f"OP{k}"] = int(x)
    ev = {n: (R_U + i, pos[n]) for i, n in enumerate(sorted(pos, key=lambda n: pos[n]))}
    ev["WA"] = (R_WA, -12)
    return ev

class Cfg:
    pol_x = ""; pol_wq = ""; pol_kv = "nt"; pol_wo = ""
    stop = None
    stamps = False; real = False; adetail = False; cdetail = 0
    ngrp = 3; rotp = 1; rotk = 3
    k0pos = 1; k0cls = 4; kvwait = 4
    codepf = True
    order = "K1 V0 warm V1 W*"
    flag0 = -5; flag0b = 4; o1pos = 16; flag1 = 44; flag1b = 60; dxpos = 56
    amp = -1; ampw = 0
    probe_ahead = 8
    free_delay = 7
    trace = False
    pol_out = ""
    pre = 0
    post = 0
    align = 0
    dxgo = 96
    opos = "26,28,76,92"
    ostep = 2
    pol_o = "sc1"
    pfilter = ""
    o1end = 10
    merge = 15
    dxsleep = 8
    akv = "0:1:4"
    o1len = 30
    ptrace = False
    early0 = 72
    warmpos = -1
    k1pos = -1
    warmrot = 3
    wprio = 0
    bargap = 4
    abar = True
    cbar = 6
    nocheck = False
    nofree = False
    alead = 4
    nodma = False
    lprio = 3
    lsleep = 5
    wake = True
    gwait = True
    early = False
    trace_from = 0

def stamp(S, cfg, idx, det=False):
    if not cfg.stamps: return
    if (cfg.cdetail or cfg.adetail) and idx not in (0, 13) and not det: return
    S(f"{'s_memrealtime' if cfg.real else 's_memtime'} s[78:79]")
    S("s_waitcnt lgkmcnt(0)")
    S(f"s_mov_b32 s{80+idx}, s78")

SITES = []
def trace_raw(cfg, who, ident):
    if not cfg.trace or len(SITES) >= 128: return ""
    if cfg.ptrace and not isinstance(ident, str): return ""
    k = len(SITES); SITES.append(ident)
    return f"{'s_memrealtime' if cfg.real else 's_memtime'} s[78:79]\ns_waitcnt lgkmcnt(0)\nv_writelane_b32 v{250 + (k >> 6)}, s78, {k & 63}\n"
def stamps_store(S, cfg):
    if not cfg.stamps: return
    S("s_memrealtime s[78:79]\ns_waitcnt lgkmcnt(0)\ns_mov_b32 s95, s78")
    stamp(S, cfg, 13)
    S(f"s_lshl_b32 s66, s2, 3\ns_add_u32 s66, s66, s3\ns_lshl_b32 s66, s66, 6\ns_add_u32 s66, s66, {WS_STAMP}")
    S("v_mov_b32 v2, 0")
    S("s_mov_b64 exec, 1")
    for i in range(16):
        S(f"v_mov_b32 v3, s{80+i}")
        S(f"buffer_store_dword v3, v2, {srd(SWS)}, s66 offen offset:{4*i}")
    S("s_mov_b64 exec, -1")

def prologue(S, cfg):
    S(f"""s_cmp_ge_u32 s2, 256
    s_cbranch_scc1 L_end
    s_bfe_u32 s{S_BLK}, s2, 0x10002
    s_mul_i32 s66, s{S_BLK}, 40
    s_add_u32 s4, s0, s66
    s_addc_u32 s5, s1, 0
    s_load_dwordx8 s[48:55], s[4:5], 0
    s_load_dwordx2 s[56:57], s[4:5], 32
    s_load_dwordx4 s[60:63], s[0:1], 80
    s_load_dwordx2 s[64:65], s[0:1], 96
    v_lshrrev_b32 v2, 6, v0
    v_and_b32 v1, 63, v0
    s_and_b32 s{S_KQ}, s2, 3
    v_readfirstlane_b32 s3, v2
    s_bfe_u32 s{S_B}, s2, 0x30003
    s_lshr_b32 s{S_P}, s2, 6
    s_lshl_b32 s{S_H0}, s{S_KQ}, 2
    s_add_u32 s{S_H0}, s{S_H0}, s{S_P}
    s_lshl_b32 s{S_H0}, s{S_H0}, 1
    s_and_b32 s{S_W}, s3, 3""")
    if cfg.stamps:
        for i in range(16): S(f"s_mov_b32 s{80+i}, 0")
        S("s_memrealtime s[78:79]\ns_waitcnt lgkmcnt(0)\ns_mov_b32 s94, s78")
        stamp(S, cfg, 0)
    for d, size in ((SX, 1179648), (SWQ, 4718592), (SK, 8388608), (SV, 8388608), (SWO, 4718592), (SWS, WS_SIZE), (SOUT, 2359296), (SDBG, 256)):
        S(f"s_mov_b32 s{d+2}, {size}\ns_mov_b32 s{d+3}, 0x20000")
    S("s_cmp_lt_u32 s3, 4\ns_cbranch_scc1 L_compute")
def srd_bases(S, which):
    for d, p in ((SX, 48), (SWQ, 54), (SK, 50), (SV, 52), (SWO, 56), (SWS, 64), (SOUT, 60), (SDBG, 62)):
        if d in which: S(f"s_mov_b32 s{d}, s{p}\ns_and_b32 s{d+1}, s{p+1}, 0xffff")

def nonce_issue(S, vt, vz):
    S(f"buffer_load_dword v{vt}, v{vz}, {srd(SDBG)}, 0 offen sc1")
def nonce_check(S, vt, vz, lab):
    S(f"v_readfirstlane_b32 s{S_NONCE}, v{vt}")
    S(f"s_cmp_eq_u32 s{S_NONCE}, 0\ns_cbranch_scc1 {lab}")
    S.label(f"{lab}_ok")
    S.cold += _raw(f"""{lab}:
    s_mov_b32 s77, {SPIN_LIMIT}
    {lab}_spin:
    buffer_load_dword v{vt}, v{vz}, {srd(SDBG)}, 0 offen sc1
    s_waitcnt vmcnt(0)
    v_readfirstlane_b32 s{S_NONCE}, v{vt}
    s_nop 4
    s_cmp_lg_u32 s{S_NONCE}, 0
    s_cbranch_scc1 {lab}_ok
    s_sleep 2
    s_sub_u32 s77, s77, 1
    s_cmp_lg_u32 s77, 0
    s_cbranch_scc1 {lab}_spin
    s_branch {lab}_ok""")

def swar(s, need):
    return [f"s_or_b32 s{s}, s{s}, 0x80808080", f"s_sub_u32 s{s}, s{s}, {need * 0x01010101}", f"s_andn2_b32 s{s}, 0x80808080, s{s}", f"s_cmp_eq_u32 s{s}, 0"]
def spin_block(lab, back, vt, vz, off, sreg, need, sleep):
    return _raw(f"""{lab}:
    s_mov_b32 s77, {SPIN_LIMIT}
    {lab}_spin:
    ds_read_b32 v{vt}, v{vz} offset:{off}
    s_waitcnt lgkmcnt(0)
    v_readfirstlane_b32 s{sreg}, v{vt}
    s_nop 3
    """ + "\n".join(swar(sreg, need)) + f"""
    s_cbranch_scc1 {back}
    {'s_sleep ' + str(sleep) if sleep else ''}
    s_sub_u32 s77, s77, 1
    s_cmp_lg_u32 s77, 0
    s_cbranch_scc1 {lab}_spin
    s_branch {back}""")

def c_units():
    u = [("M", 0, 0), ("M", 0, 1), ("E", 0, 0), ("M", 1, 0), ("M", 1, 1), ("E", 1, 0)]
    for hh in (0, 1):
        for ii in range(6): u.append(("P", hh, ii))
    return u
def c_slots():
    sl = [(0, F_QK0), (1, F_QK0), (8, 9), (2, F_O0), (3, F_O0), (4, F_PV0), (5, F_PV0), (6, F_PV1), (7, F_PV1),
          (0, F_O1), (1, F_O1), (8, FU[2]), (2, FU[4]), (3, FU[4]), (4, FU[8]), (5, FU[8]), (6, FU[8]), (7, FU[8])]
    return {("W", j): sl[j] for j in range(18)}

def pack(dst, src):
    return [f"v_cvt_pk_bf16_f32 v{dst+8*s+4*u+2*e+x}, v{src+8*(2*s+e)+4*u+2*x}, v{src+8*(2*s+e)+4*u+2*x+1}" for s in range(4) for u in range(2) for e in range(2) for x in range(2)]
PAY = [0, 1, 2, 4, 5, 6, 8, 9]

def loader(S, cfg):
    VXO, VWO, VKV, VKW, VVW, VMO, VEO, VOO, VFL, VWW, VN, VZ, VP0, VPA, VT = 4, 5, 6, 7, 8, 9, 10, 11, 12, 13, 14, 15, 16, 18, 19
    KVREG = [24, 56, 88, 120]
    sXb, sWb, sCC, sM, sMo, sT, sKV0, sKV1, sA = 66, 67, 68, 69, 70, 71, 72, 73, 75
    sWP, sOP = [65, 96, 97, 98], [62, 99, 100, 101]
    S(f"""s_lshl_b32 s{sT}, s{S_W}, 2
    v_lshrrev_b32 v2, 3, v1
    v_lshlrev_b32 v2, 4, v2
    v_add_u32 v2, s{sT}, v2
    v_mul_u32_u24 v3, 1152, v2
    v_and_b32 v20, 7, v1
    v_lshl_add_u32 v{VXO}, v20, 4, v3
    s_and_b32 s76, s{S_W}, 1
    s_lshl_b32 s76, s76, 3
    s_lshl_b32 s77, s{S_W}, 1
    s_and_b32 s77, s77, 4
    s_add_u32 s76, s76, s77
    v_lshrrev_b32 v2, 5, v1
    v_lshlrev_b32 v2, 4, v2
    v_add_u32 v2, s76, v2
    v_lshlrev_b32 v2, 13, v2
    v_and_b32 v20, 31, v1
    v_lshl_add_u32 v{VWO}, v20, 4, v2
    s_mul_i32 s{sM}, s{sT}, {PITCH}""")
    if cfg.ngrp > 1:
        starts = [round(9 * i / cfg.ngrp) for i in range(cfg.ngrp)]
        tab = sum(starts[i % cfg.ngrp] << (4 * i) for i in range(16))
        S(f"""s_mul_i32 s76, s{S_P}, {cfg.rotp}
        s_add_u32 s76, s76, s{S_B}
        s_and_b32 s77, s{S_KQ}, {cfg.rotk}
        s_add_u32 s76, s76, s77
        s_lshl_b32 s76, s76, 2
        s_mov_b32 s74, {tab & 0xffffffff}
        s_mov_b32 s75, {tab >> 32}
        s_lshr_b64 s[74:75], s[74:75], s76
        s_and_b32 s{sCC}, s74, 15""")
    else:
        S(f"s_mov_b32 s{sCC}, 0")
    S(f"s_mul_i32 s74, s{S_B}, 147456\ns_lshl_b32 s75, s{S_H0}, 8\ns_waitcnt lgkmcnt(0)")
    srd_bases(S, (SX, SWQ))
    def chunk(c, mid=None):
        base = slot((c % 3) * 3)
        S(f"""s_lshl_b32 s{sXb}, s{sCC}, 7
        s_add_u32 s{sXb}, s{sXb}, s74
        s_lshl_b32 s{sWb}, s{sCC}, 19
        s_add_u32 s{sWb}, s{sWb}, s75""")
        for i in range(4):
            S(f"s_add_u32 m0, s{sM}, {base + i*(PITCH-1152)}")
            if i == 0: S(f"s_add_u32 s{sCC}, s{sCC}, 1")
            elif i == 1: S(f"s_cmp_eq_u32 s{sCC}, 9\ns_cselect_b32 s{sCC}, 0, s{sCC}")
            S(f"buffer_load_dwordx4 v{VXO}, {srd(SX)}, s{sXb} offen offset:{i*1152} {cfg.pol_x} lds", tag=f"ch{c}")
        if mid: mid()
        for st in range(2):
            for i in range(4):
                S(f"s_add_u32 m0, s{sM}, {base + SLOT*(1+st) + i*PITCH}\ns_add_u32 s{sT}, s{sWb}, {(32*st+i)*8192}")
                S(f"buffer_load_dwordx4 v{VWO}, {srd(SWQ)}, s{sT} offen {cfg.pol_wq} lds", tag=f"ch{c}")
    def kv_lines(m):
        sr = SK if m < 2 else SV
        sb = sKV0 if m % 2 == 0 else sKV1
        o = [f"s_add_u32 s{sT}, s{sb}, 4096"]
        for j in range(8):
            o.append((f"buffer_load_dwordx4 {vr(KVREG[m]+4*j,4)}, v{VKV}, {srd(sr)}, s{sb if j < 4 else sT} offen offset:{(j&3)*1024} {cfg.pol_kv}", f"kv{m}"))
        return o
    def kv_load(m):
        for x in kv_lines(m): emit(S, x)
    def cond(lab, cls, mask, lines, pre=""):
        S(f"s_and_b32 s76, s{S_B}, {mask}\ns_cmp_lg_u32 s76, {cls}\ns_cbranch_scc1 {lab}")
        S.out += _raw(pre + "\n".join(x[0] if isinstance(x, tuple) else x for x in lines))
        S.label(lab)
    def kv_load_if(m, cls, ncls, pre=""):
        cond(f"L_kv{m}_{cls}", cls, ncls - 1, kv_lines(m), pre)
        if cls == ncls - 1: S.phantom([f"v{KVREG[m]+i}" for i in range(32)], f"kv{m}")
    def warm_lines():
        return f"""s_lshl_b32 s76, s{S_KQ}, 3
        s_add_u32 s76, s76, s{S_B}
        s_lshl_b32 s76, s76, 2
        s_add_u32 s76, s76, s{S_W}
        s_mul_i32 s76, s76, {32*1152}
        s_lshl_b32 s77, s{S_P}, 8
        s_add_u32 s76, s76, s77
        v_lshrrev_b32 v20, 1, v1
        v_mul_u32_u24 v20, 1152, v20
        v_and_b32 v3, 1, v1
        v_lshl_add_u32 v20, v3, 7, v20
        buffer_load_dword v22, v20, {srd(SWO)}, s76 offen {cfg.pol_wo}
        s_lshl_b32 s76, s{S_B}, 2
        s_add_u32 s76, s76, s{S_W}
        s_mul_i32 s76, s76, {8*1152}
        s_add_u32 s76, s76, s64
        v_and_b32 v21, 7, v1
        v_mul_u32_u24 v21, 1152, v21
        buffer_load_dword v23, v21, {srd(SWO)}, s76 offen offset:1024 {cfg.pol_wo}""".split("\n")
    def kv_write(m, sl):
        S.wait_vm_tag(f"kv{m}")
        S(f"s_setprio {cfg.wprio}")
        if m < 2:
            for j in range(8):
                S(f"v_add_u32 v2, {slot(sl) + j*4*PITCH}, v{VKW}")
                S(f"ds_write2_b64 v2, {vr(KVREG[m]+4*j,2)}, {vr(KVREG[m]+4*j+2,2)} offset0:0 offset1:2")
        else:
            S(f"v_add_u32 v2, {slot(sl)}, v{VVW}")
            for j in range(8):
                S(f"ds_write_b128 v2, {vr(KVREG[m]+4*j,4)} offset:{j*4*PITCH}")
    known = [0]; last_pub = [0]
    def wait_free(f, early=None):
        if f <= known[0]: return
        known[0] = f
        if cfg.nofree:
            S("s_sleep 5"); return
        lab = f"L_wf{f}"
        S.wait_lg(0)
        if cfg.trace and f >= cfg.trace_from: S(trace_raw(cfg, "loader", 100 + f))
        S(f"s_setprio {cfg.lprio}\nds_read_b32 v{VT}, v{VZ} offset:4\nv_readfirstlane_b32 s76, v{VT}")
        for x in swar(76, f): S(x)
        S(f"s_cbranch_scc0 {lab}")
        S.label(lab + "_ok")
        S("s_setprio 0")
        if cfg.trace and f >= cfg.trace_from: S(trace_raw(cfg, "loader", 200 + f))
        blk = spin_block(lab, lab + "_ok", VT, VZ, 4, 76, f, cfg.lsleep)
        if early and cfg.early: blk = blk[:1] + _raw(f"s_waitcnt vmcnt(0)\ns_mov_b32 s63, {early}\nv_mov_b32 v{VT}, {early}\nds_write_b8 v{VPA}, v{VT}\n" + (trace_raw(cfg, "loader", 400 + early) if f >= cfg.trace_from else "")) + blk[1:]
        S.cold += blk
    def publish(r):
        last_pub[0] = r
        S.wait_lg(0)
        S(f"s_setprio {cfg.lprio}\nv_mov_b32 v{VT}, {r}\nds_write_b8 v{VPA}, v{VT}\ns_setprio 0")
        if cfg.trace and known[0] >= cfg.trace_from: S(trace_raw(cfg, "loader", 300 + r))
        if cfg.adetail and r <= 12: stamp(S, cfg, r, True)
        if cfg.cdetail and 0 <= r - R_U < 12: stamp(S, cfg, 1 + r - R_U, True)
    chunk(0)
    stamp(S, cfg, 1)
    srd_bases(S, (SK, SV, SWO, SWS, SOUT, SDBG))
    S("s_mov_b32 s63, 0")
    if cfg.trace: S("s_mov_b32 s92, 0\nv_mov_b32 v250, 0\nv_mov_b32 v251, 0")
    if cfg.codepf:
        S(f"""s_getpc_b64 s[76:77]
        L_pc:
        s_lshr_b32 s{sT}, s2, 3
        s_lshl_b32 s{sT}, s{sT}, 2
        s_add_u32 s{sT}, s{sT}, s{S_W}
        s_mul_i32 s{sT}, s{sT}, 3
        v_min_u32 v2, 2, v1
        v_add_u32 v2, s{sT}, v2
        v_lshlrev_b32 v2, 7, v2
        v_min_u32 v2, L_end-L_pc, v2
        global_load_dword v23, v2, s[76:77]""")
    S(f"""v_mov_b32 v{VZ}, 0
    v_mov_b32 v20, 0
    v_mov_b32 v21, 0
    v_lshlrev_b32 v3, 3, v1
    ds_write_b64 v3, v[20:21]
    v_lshl_add_u32 v{VPA}, v1, 2, 64
    v_writelane_b32 v{VPA}, s{S_W}, 0
    v_add_u32 v{VEO}, 1024, v{VXO}
    s_lshl_b32 s76, s{S_W}, 13
    v_lshlrev_b32 v{VOO}, 4, v1
    v_add_u32 v{VKV}, s76, v{VOO}
    v_add_u32 v{VWW}, s{sM}, v{VOO}
    s_lshl_b32 s{sKV0}, s{S_B}, 5
    s_add_u32 s{sKV0}, s{sKV0}, s{S_H0}
    s_lshl_b32 s{sKV0}, s{sKV0}, 15
    s_add_u32 s{sKV1}, s{sKV0}, 32768
    v_lshrrev_b32 v2, 4, v1
    v_mul_u32_u24 v20, {PITCH}, v2
    s_lshl_b32 s76, s{S_W}, 8
    v_add_u32 v20, s76, v20
    v_and_b32 v3, 15, v1
    v_lshl_add_u32 v{VVW}, v3, 4, v20
    v_bfe_u32 v3, v1, 2, 2
    v_lshl_add_u32 v20, v3, 6, v20
    v_and_b32 v3, 1, v1
    v_lshl_add_u32 v20, v3, 5, v20
    v_bfe_u32 v3, v1, 1, 1
    v_lshl_add_u32 v{VKW}, v3, 3, v20""")
    S.wait_vm(9 if cfg.codepf else 8)
    chunk(1)
    S.wait_vm_tag("ch0"); S.wait_lg(0)
    stamp(S, cfg, 2)
    S("s_barrier")
    def pubch(c):
        S.wait_vm_tag(f"ch{c}"); publish(c)
    chunk(2, None if cfg.abar else (lambda: pubch(1)))
    S(f"""v_lshlrev_b32 v2, 4, v2
    s_lshl_b32 s76, s{S_W}, 2
    v_add_u32 v2, s76, v2
    v_mul_u32_u24 v2, 1152, v2
    s_lshl_b32 s76, s{S_KQ}, 6
    v_add_u32 v3, s76, v{VOO}
    v_and_b32 v3, 0xff, v3
    v_add_u32 v{VMO}, v2, v3
    v_min_u32 v2, 2, v1
    v_add3_u32 v2, v2, s{S_P}, 1
    v_and_b32 v2, 3, v2
    v_lshlrev_b32 v2, 6, v2
    s_and_b32 s76, s2, 63
    v_add_u32 v2, s76, v2
    v_lshlrev_b32 v2, 2, v2
    v_add_u32 v2, s{S_W}, v2
    v_lshlrev_b32 v{VFL}, 8, v2
    s_lshl_b32 s{sMo}, s{S_W}, 12""")
    for pi in range(4):
        d = sWP[pi]
        S(f"""s_add_u32 s76, s{S_P}, {pi}
        s_and_b32 s76, s76, 3
        s_lshl_b32 s77, s{S_KQ}, 2
        s_add_u32 s77, s77, s76
        s_mul_i32 s77, s77, {256*1152}
        s_lshl_b32 s{d}, s{S_P}, 8
        s_add_u32 s{d}, s{d}, s77""")
        if pi == 0: S("s_mov_b32 s64, s77")
        if True:
            S(f"""s_lshl_b32 s76, s76, 6
            s_and_b32 s77, s2, 63
            s_add_u32 s76, s76, s77
            s_lshl_b32 s76, s76, 2
            s_add_u32 s76, s76, s{S_W}
            s_lshl_b32 s{sOP[pi]}, s76, 14""")
    for c in range(1, 7):
        if cfg.abar:
            S.wait_vm_tag(f"ch{c}"); stamp(S, cfg, c, cfg.adetail) if cfg.adetail else None; S("s_barrier"); known[0] = c
        else:
            wait_free(c, c + 1)
            pubch(c + 1)
        if c == 4: nonce_issue(S, VN, VZ)
        if not cfg.nodma: chunk(c + 2)
        for item in cfg.akv.split(","):
            what, first, ncls, rot = (item.split(":") + ["0"])[:4]
            first, ncls, rot = int(first), int(ncls), int(rot)
            if not 0 <= c - first < ncls: continue
            cond(f"L_a{what}_{c}", (c - first + rot) % ncls, ncls - 1, warm_lines() if what == "w" else kv_lines(int(what)), f"s_waitcnt vmcnt({cfg.kvwait})\n")
            if what != "w" and c - first == ncls - 1: S.phantom([f"v{KVREG[int(what)]+i}" for i in range(32)], f"kv{what}")
    nonce_check(S, VN, VZ, "L_ln")
    units, slots = c_units(), c_slots()
    def w_src(j):
        uk, hh, x = units[j]
        if uk == "M": return VMO, 65, (hh * 128 + 64 * x) * 1152
        if uk == "E": return VEO, 64, hh * 128 * 1152
        return VMO, sWP[1 + x % 3], (hh * 128 + 64 * (x // 3)) * 1152
    blocks = [152 + 16 * i for i in range(6)]
    parked = {}
    def w_load(j):
        va, sb, off = w_src(j)
        S(f"s_add_u32 s{sA}, s{sb}, {off}")
        if slots[("W", j)][1] <= known[0] and (j not in (3, 4, 9, 10) or (j > 4) in picked):
            lds_w.add(j)
            for i in range(4):
                S(f"s_add_u32 m0, s{sM}, {slot(slots[('W', j)][0]) + i*(PITCH-1152)}")
                S(f"buffer_load_dwordx4 v{va}, {srd(SWO)}, s{sA} offen offset:{i*1152} {cfg.pol_wo} lds", tag=f"u{j}")
        else:
            parked[j] = blocks.pop(0)
            for i in range(4):
                S(f"buffer_load_dwordx4 {vr(parked[j]+4*i,4)}, v{va}, {srd(SWO)}, s{sA} offen offset:{i*1152} {cfg.pol_wo}", tag=f"u{j}w")
    lds_w = set()
    def w_write(j):
        assert j not in (3, 4, 9, 10) or (j > 4) in picked
        wait_free(slots[("W", j)][1])
        lds_w.add(j)
        S.wait_vm_tag(f"u{j}w")
        S(f"s_setprio {cfg.wprio}\nv_add_u32 v2, {slot(slots[('W', j)][0])}, v{VWW}")
        for i in range(4): S(f"ds_write_b128 v2, {vr(parked[j]+4*i,4)} offset:{i*PITCH}")
        S.wait_lg(0)
        S("s_setprio 0")
        blocks.append(parked.pop(j))
    def warm():
        for x in warm_lines(): S(x)
    issued, polled = set(), set()
    EV = c_events(cfg)
    def poll_issue(hh):
        issued.add(hh)
        S(f"s_mov_b32 s76, {WS_FLAG}")
        S(f"buffer_load_dword v{VP0 + (hh & 1)}, v{VFL}, {srd(SWS)}, s76 offen offset:{64*hh} sc1")
    def poll(hh):
        lab = f"L_poll{hh}"
        polled.add(hh)
        if hh not in issued: poll_issue(hh)
        v = VP0 + (hh & 1)
        S(f"v_cmp_eq_u32 vcc, s{S_NONCE}, v{v}")
        S(f"s_cmp_eq_u64 vcc, -1\ns_cbranch_scc0 {lab}")
        S.label(f"{lab}_ok")
        S.cold += _raw(f"""{lab}:
        s_mov_b32 s76, {WS_FLAG}
        s_mov_b32 s77, {SPIN_LIMIT}
        {lab}_spin:
        buffer_load_dword v{v}, v{VFL}, {srd(SWS)}, s76 offen offset:{64*hh} sc1
        s_waitcnt vmcnt(0)
        v_cmp_eq_u32 vcc, s{S_NONCE}, v{v}
        s_nop 1
        s_cmp_eq_u64 vcc, -1
        s_cbranch_scc1 {lab}_ok
        s_sub_u32 s77, s77, 1
        s_cmp_lg_u32 s77, 0
        s_cbranch_scc1 {lab}_spin
        s_branch {lab}_ok""")
    oreg, picked = {}, set()
    def pickup(h):
        wait_free((F_O0, F_O1)[h])
        S(f"s_setprio {cfg.lprio}\nv_add_u32 v2, {slot(2 - 2*h)}, v{VWW}")
        for x in range(2):
            oreg[2*h + x] = blocks.pop(0)
            for i in range(4): S(f"ds_read_b128 {vr(oreg[2*h+x] + 4*i, 4)}, v2 offset:{x*SLOT + i*1024}")
        S.wait_lg(0)
        S("s_setprio 0")
        picked.add(h)
    def o_store(k):
        S(f"s_add_u32 s{sA}, s{sOP[0]}, {WS_O + k*4096}")
        for i in range(4):
            S(f"buffer_store_dwordx4 {vr(oreg[k] + 4*i, 4)}, v{VOO}, {srd(SWS)}, s{sA} offen offset:{i*1024} sc1", tag=f"o{k}")
    def o_flag(k):
        S.wait_vm_tag(f"o{k}")
        S(f"""s_lshr_b32 s76, s{sOP[0]}, 6
        s_add_u32 s76, s76, {WS_FLAG + 64*k}
        v_mov_b32 v3, s{S_NONCE}
        buffer_store_dword v3, v{VZ}, {srd(SWS)}, s76 offen sc1""")
        blocks.append(oreg.pop(k))
    def kv_duty(m, sl, f, r):
        wait_free(f); kv_write(m, sl); publish(r)
        blocks.extend([KVREG[m], KVREG[m] + 16])
    prog = PROGS[cfg.prog].split()
    if cfg.stop == "A": prog = ["bA7", "bA8"] if cfg.abar else ["p8"]
    if cfg.stop == "B": prog = [x for x in prog if x[0] in "KVpPS" or x[:2] in ("wK", "wV", "bA")]
    for op in prog:
        if cfg.ptrace and (not cfg.pfilter or op in cfg.pfilter.split(",")): S(trace_raw(cfg, "loader", op))
        if op in ("K1", "V0", "V1"): kv_load({"K1": 1, "V0": 2, "V1": 3}[op])
        elif "@" in op: kv_load_if({"K1": 1, "V0": 2, "V1": 3}[op[:2]], int(op[3]), 2)
        elif op == "warm": warm()
        elif op == "p8": S.wait_vm_tag("ch8"); publish(8)
        elif op[0] == "b":
            j = int(op[2:])
            S.wait_vm_tag(f"ch{j}"); known[0] = j
            S.wait_lg(0)
            if cfg.adetail: stamp(S, cfg, j, True)
            S("s_barrier")
        elif op == "wK0": kv_duty(0, 0, 7, R_K0)
        elif op == "wK1": kv_duty(1, 2, 8, R_K1)
        elif op == "wV0": kv_duty(2, 4, 8, R_V0)
        elif op == "wV1": kv_duty(3, 6, 9, R_V1)
        elif op[0] == "W": w_load(int(op[1:]))
        elif op[0] == "w": w_write(int(op[1:]))
        elif op[0] == "f": wait_free(int(op[1:]))
        elif op[0] == "q": poll(int(op[1:]))
        elif op[0] == "Q": poll_issue(int(op[1:]))
        elif op[0] == "P": pickup(int(op[1:]))
        elif op[0] == "S": o_store(int(op[1:]))
        elif op[0] == "G": o_flag(int(op[1:]))
        elif op[0] == "z": S(f"s_sleep {op[1:]}")
        elif op[0] == "R":
            name = op[1:]
            if name in WSET:
                for j in WSET[name]:
                    if j in parked: w_write(j)
                    assert j in lds_w
                    S.wait_vm_tag(f"u{j}")
            else: assert int(name[2]) in polled
            assert EV[name][0] == last_pub[0] + 1, (name, EV, last_pub)
            publish(EV[name][0])
        else: raise ValueError(op)
    stamp(S, cfg, 3)
    if cfg.trace:
        S(f"s_lshl_b32 s66, s2, 2\ns_add_u32 s66, s66, s{S_W}\ns_lshl_b32 s66, s66, 9\ns_add_u32 s66, s66, {WS_STAMP + (1 << 20)}\nv_lshlrev_b32 v2, 2, v1")
        S(f"buffer_store_dword v250, v2, {srd(SWS)}, s66 offen\nbuffer_store_dword v251, v2, {srd(SWS)}, s66 offen offset:256")
    if cfg.stop:
        S.wait_vm(0); stamps_store(S, cfg); S("s_branch L_end"); return
    S(f"s_cmp_lg_u32 s{S_W}, 0\ns_cbranch_scc1 L_lfin")
    R = 64
    S(f"""v_and_b32 v2, 7, v1
    v_bfe_u32 v3, v1, 3, 2
    v_lshl_add_u32 v2, v3, 4, v2
    s_and_b32 s76, s{S_P}, 1
    s_lshl_b32 s76, s76, 3
    v_add_u32 v2, s76, v2
    v_lshlrev_b32 v2, 4, v2
    v_lshrrev_b32 v3, 5, v1
    v_lshl_add_u32 v4, v3, 14, v2
    s_lshl_b32 s{sA}, s{S_BLK}, 3
    s_add_u32 s{sA}, s{sA}, s{S_B}
    s_lshl_b32 s{sA}, s{sA}, 6
    s_add_u32 s{sA}, s{sA}, s{S_KQ}
    s_lshl_b32 s{sA}, s{sA}, 1
    s_lshr_b32 s76, s{S_P}, 1
    s_add_u32 s{sA}, s{sA}, s76
    s_lshl_b32 s{sA}, s{sA}, 11
    s_add_u32 s{sA}, s{sA}, {WS_DX}
    s_and_b32 s72, s{S_NONCE}, 1
    s_lshl_b32 s73, s{S_NONCE}, 15
    s_and_b32 s73, s73, 0x10000
    s_or_b32 s72, s72, s73
    v_mov_b32 v8, 0x10001
""")
    wait_free(F_DX)
    S(f"s_mov_b32 s77, {SPIN_LIMIT}")
    S.label("L_dx")
    for r in range(8):
        S(f"s_add_u32 s{sT}, s{sA}, {r*2*16384}")
        for gm in range(2):
            S(f"buffer_load_dwordx4 {vr(R+8*r+4*gm,4)}, v4, {srd(SWS)}, s{sT} offen offset:{gm*1024} sc1")
    S(f"v_xor_b32 v5, s72, v{R}")
    for i in range(1, 64): S(f"v_bitop3_b32 v5, v5, v{R+i}, s72 bitop3:0xf6")
    S("v_and_b32 v5, v5, v8\nv_cmp_eq_u32 vcc, 0, v5\ns_cmp_eq_u64 vcc, -1\ns_cbranch_scc1 L_dx_ok")
    S("s_sleep 4\ns_sub_u32 s77, s77, 1\ns_cmp_lg_u32 s77, 0\ns_cbranch_scc1 L_dx")
    S.label("L_dx_ok")
    AC = 24
    for r in range(8):
        for d in range(8):
            src = R + 8 * r + d
            if r == 0:
                S(f"v_lshlrev_b32 v{AC+2*d}, 16, v{src}\nv_and_b32 v{AC+2*d+1}, 0xffff0000, v{src}")
            else:
                S(f"v_lshlrev_b32 v6, 16, v{src}\nv_and_b32 v7, 0xffff0000, v{src}\nv_add_f32 v{AC+2*d}, v{AC+2*d}, v6\nv_add_f32 v{AC+2*d+1}, v{AC+2*d+1}, v7")
    for i in range(8): S(f"v_permlane32_swap_b32 v{AC+i}, v{AC+8+i}")
    for i in range(8): S(f"v_add_f32 v{AC+i}, v{AC+i}, v{AC+8+i}")
    for i in range(4): S(f"v_cvt_pk_bf16_f32 v{44+i}, v{AC+2*i}, v{AC+2*i+1}")
    S(f"""v_and_b32 v2, 7, v1
    s_lshl_b32 s76, s{S_B}, 7
    s_lshl_b32 s77, s{S_KQ}, 5
    s_add_u32 s76, s76, s77
    s_lshl_b32 s77, s{S_P}, 3
    s_add_u32 s76, s76, s77
    v_add_u32 v2, s76, v2
    v_mul_u32_u24 v2, 2304, v2
    v_bfe_u32 v3, v1, 3, 2
    v_lshl_add_u32 v2, v3, 3, v2
    v_lshrrev_b32 v3, 5, v1
    v_lshl_add_u32 v2, v3, 6, v2
    s_mul_i32 s76, s{S_BLK}, 1152
    s_add_u32 s76, s76, 1024
    buffer_store_dwordx2 v[44:45], v2, {srd(SOUT)}, s76 offen {cfg.pol_out}
    buffer_store_dwordx2 v[46:47], v2, {srd(SOUT)}, s76 offen offset:32 {cfg.pol_out}""")
    S.label("L_lfin")
    if cfg.stamps: S("s_waitcnt vmcnt(0)")
    stamps_store(S, cfg)
    S("s_branch L_end")

def compute(S, cfg):
    VX, VW = [4, 5, 6], [7, 8, 9]
    VK, VV, VOST, VZ, VN = [10, 11], [12, 13], 14, 15, 16
    VM, VT, VRC, VPR, VFA, VFT, VPR2 = [17, 18], 19, [[20, 21], [22, 23]], 16, 2, 3, 19
    ONES, LS = 56, [60, 4]
    QP = lambda h: 64 + 32 * h
    SS = lambda h: 128 + 64 * h
    PP = 64
    OF = lambda h, s, u: 96 + 8 * s + 4 * u if h == 0 else 192 + 16 * s + 4 * u
    S.label("L_compute")
    S(f"v_mov_b32 v{VZ}, 0\ns_waitcnt lgkmcnt(0)")
    srd_bases(S, (SWS, SOUT, SDBG))
    S(f"s_or_b32 s66, s2, s3\ns_cmp_lg_u32 s66, 0\ns_cbranch_scc1 L_notag")
    S.out += _raw(f"""s_mov_b32 s66, {WS_EPOCH}
    buffer_load_dword v2, v{VZ}, {srd(SWS)}, s66 offen sc1
    s_waitcnt vmcnt(0)
    v_add_u32 v2, 1, v2
    v_max_u32 v2, 1, v2
    buffer_store_dword v2, v{VZ}, {srd(SWS)}, s66 offen sc1
    buffer_store_dword v2, v{VZ}, {srd(SDBG)}, 0 offen sc1
    s_waitcnt vmcnt(0)""")
    S.label("L_notag")
    S(f"""v_and_b32 v22, 15, v1
    v_lshrrev_b32 v23, 4, v1
    v_mul_u32_u24 v2, {PITCH}, v22
    v_lshl_add_u32 v{VK[0]}, v23, 4, v2
    v_add_u32 v{VK[0]}, {LB}, v{VK[0]}
    v_add_u32 v{VK[1]}, {2*SLOT}, v{VK[0]}
    s_lshl_b32 s66, s{S_W}, 8
    v_add_u32 v{VX[0]}, s66, v{VK[0]}
    v_add_u32 v{VX[1]}, {3*SLOT}, v{VX[0]}
    v_add_u32 v{VX[2]}, {6*SLOT}, v{VX[0]}
    v_bfe_u32 v2, v1, 2, 3
    v_mul_u32_u24 v2, {PITCH}, v2
    v_lshrrev_b32 v3, 5, v1
    v_lshl_add_u32 v2, v3, 9, v2
    v_and_b32 v3, 3, v1
    v_lshl_add_u32 v2, v3, 3, v2
    v_add_u32 v{VW[0]}, {slot(1)}, v2
    v_add_u32 v{VW[1]}, {slot(4)}, v2
    v_add_u32 v{VW[2]}, {slot(7)}, v2
    v_lshrrev_b32 v2, 2, v1
    v_mul_u32_u24 v2, {PITCH}, v2
    v_lshl_add_u32 v2, v3, 3, v2
    v_add_u32 v{VV[0]}, {slot(4)}, v2
    v_add_u32 v{VV[1]}, {slot(6)}, v2
    s_mul_i32 s66, s{S_W}, {4*PITCH}
    s_add_u32 s66, s66, {slot(0)}
    v_lshlrev_b32 v{VOST}, 4, v1
    v_add_u32 v{VOST}, s66, v{VOST}
    s_add_u32 s66, s{S_W}, 4
    v_lshl_add_u32 v{VFA}, v1, 2, 64
    v_writelane_b32 v{VFA}, s66, 0
    s_mov_b32 s{S_C}, {f32(math.log2(math.e) / math.sqrt(128.0))}""")
    G = []
    def add(reads, mf, lead, need=None, free=None, gate=None, bar=False):
        G.append(dict(reads=reads, mf=mf, gate=len(G) - lead if gate is None else gate, need=need, free=free, bar=bar))
    ACC = lambda t, u: 128 + 8 * t + 4 * u
    ARING = [96, 104, 112, 120, 56]
    XF = lambda c, s, u: 24 + 16 * (c & 1) + 8 * s + 4 * u
    for c in range(9):
        for t in range(16):
            rg = ARING[len(G) % 5]
            rd = [f"ds_read_b64_tr_b16 {vr(rg+4*s+2*r,2)}, v{VW[c%3]} offset:{s*SLOT + r*8*PITCH + 32*t}" for s in range(2) for r in range(2)]
            if t == 0: rd = [f"ds_read_b128 {vr(XF(c,s,u),4)}, v{VX[c%3]} offset:{128*u + 64*s}" for s in range(2) for u in range(2)] + rd
            add(rd, [mfma(ACC(t, u), rg + 4*s, XF(c, s, u), first=(c == 0 and s == 0)) for u in range(2) for s in range(2)], cfg.alead,
                need=c if t == 0 and c and not cfg.abar else None, free=c + 1 if t == 15 and (c == 8 or not cfg.abar) else None, bar=cfg.abar and t == 0 and c > 0)
    gA = len(G)
    fill = [(gA - 6, gA, pack(QP(0), 128))]
    tail_fill = None
    KR = lambda i: 24 + 4 * ((i + 4) & 7)
    def qk(h):
        for kt in range(8):
            add([f"ds_read_b128 {vr(KR(4*kt+s),4)}, v{VK[h]} offset:{(kt&1)*16*PITCH + (kt>>1)*256 + 64*s}" for s in range(4)],
                [mfma(SS(h)+8*kt+4*u, KR(4*kt+s), QP(h)+8*s+4*u, first=(s == 0)) for u in range(2) for s in range(4)], 1,
                need=R_K0 + h if kt == 0 else None, free=F_QK0 + h if kt == 7 else None, gate=gA - 3 if (h == 0 and kt == 0) else None)
    def pv(h):
        for dt in range(8):
            add([f"ds_read_b64_tr_b16 {vr(KR(4*dt+j)+2*r,2)}, v{VV[h]} offset:{r*16*PITCH + j*256 + 32*dt}" for j in range(4) for r in range(2)],
                ([mfma(LS[u], ONES, PP+8*j+4*u, first=(j == 0)) for u in range(2) for j in range(4)] if dt == 0 else []) +
                [mfma(SS(h)+8*dt+4*u, KR(4*dt+j), PP+8*j+4*u, first=(j == 0)) for u in range(2) for j in range(4)], 1,
                need=(R_V0, R_V1)[h] if dt == 0 else None, free=(F_PV0, F_PV1)[h] if dt == 7 else None, gate=len(G) - 2 if (h == 1 and dt == 0) else None)
    def softmax(h):
        s = SS(h)
        el = [[s + 8*kt + 4*u + r for kt in range(8) for r in range(4)] for u in range(2)]
        o = []
        for i in range(16):
            for u in range(2):
                e = el[u]
                if i == 0: o.append(f"v_max3_f32 v{VM[u]}, v{e[0]}, v{e[1]}, v{e[2]}")
                elif i < 15: o.append(f"v_max3_f32 v{VM[u]}, v{VM[u]}, v{e[2*i+1]}, v{e[2*i+2]}")
                else: o.append(f"v_max_f32 v{VM[u]}, v{VM[u]}, v{e[31]}")
        a, b = VM
        o += [f"v_permlane32_swap_b32 v{a}, v{b}", f"v_max_f32 v{a}, v{a}, v{b}", f"v_mov_b32 v{b}, v{a}",
              f"v_permlane16_swap_b32 v{a}, v{b}", f"v_max_f32 v{a}, v{a}, v{b}", f"v_mul_f32 v{a}, s{S_C}, v{a}", f"v_mov_b32 v{b}, v{a}",
              f"v_permlane32_swap_b32 v{a}, v{b}"]
        order = [(kt, u, r) for kt in range(8) for u in range(2) for r in range(4)]
        D = 2
        for i in range(64 + 2 * D):
            if i < 64:
                kt, u, r = order[i]; x = s + 8*kt + 4*u + r
                o.append(f"v_fma_f32 v{x}, v{x}, s{S_C}, -v{VM[u]}")
            j = i - D
            if 0 <= j < 64:
                kt, u, r = order[j]; x = s + 8*kt + 4*u + r
                o.append(f"v_exp_f32 v{x}, v{x}")
            j = i - 2 * D
            if 0 <= j < 64:
                kt, u, r = order[j]; x = s + 8*kt + 4*u + r
                if r & 1: o.append(f"v_cvt_pk_bf16_f32 v{PP+8*(kt>>1)+4*u+2*(kt&1)+(r>>1)}, v{x-1}, v{x}")
        return o
    sig = [0]
    def signal(f):
        assert f > sig[0], (f, sig[0])
        sig[0] = f
        S(f"v_mov_b32 v{VFT}, {f}\nds_write_b8 v{VFA}, v{VFT}")
    def o_pack(h):
        s = SS(h); o = []
        need = (F_QK1, FU[1])[h]; lab = f"L_st{h}"
        def chk():
            S(f"v_readfirstlane_b32 s64, v{VPR2}")
            for x in swar(64, need): S(x)
            S(f"s_cbranch_scc0 {lab}")
            S.label(lab + "_ok")
            S.cold += spin_block(lab, lab + "_ok", VPR2, VZ, 4, 64, need, 0)
        for st in range(4):
            part = [f"ds_read_b32 v{VPR2}, v{VZ} offset:4"] if st == 0 else []
            for u in range(2):
                for e in range(2):
                    for r in range(4):
                        x = s + 8*(2*st+e) + 4*u + r
                        part.append(f"v_mul_f32 v{x}, v{x}, v{VRC[h][u]}")
                i = 2 * st + u
                part += [f"v_cvt_pk_bf16_f32 v{OF(h,st,u)+2*e+x}, v{s+8*(2*st+e)+4*u+2*x}, v{s+8*(2*st+e)+4*u+2*x+1}" for e in range(2) for x in range(2)]
                if i == 0: part.append(chk)
                part.append((f"ds_write_b128 v{VOST}, {vr(OF(h,st,u),4)} offset:{(2 - 2*h + (i >> 2))*SLOT + (i & 3)*1024}", f"st{h}"))
            o.append(part)
        def done():
            S.wait_lg_tag(f"st{h}"); signal((F_O0, F_O1)[h])
        return o, done
    rcp = lambda h: [f"v_rcp_f32 v{VRC[h][u]}, v{LS[u]}" for u in range(2)]
    st = lambda i: (lambda: stamp(S, cfg, i))
    def pack_fill(h, g0):
        op, done = o_pack(h)
        return [(g0 + 1, g0 + 2, rcp(h)), (g0 + 3, g0 + 5, op[0]), (g0 + 5, g0 + 7, op[1]), (g0 + 7, g0 + 9, op[2]), (g0 + 9, g0 + 11, op[3]), (g0 + 11, g0 + 12, [done, "s_wakeup"])]
    if cfg.stop != "A":
        qk(0); qk(1); pv(0)
        fill += [(gA, gA + 1, [st(2), lambda: nonce_issue(S, VT, VZ)]),
                 (gA, gA + 8, pack(QP(1), 192) + [f"v_mov_b32 v{ONES+i}, 0x3f803f80" for i in range(4)]),
                 (gA + 8, gA + 9, [st(3)]), (gA + 8, gA + 16, softmax(0)),
                 (gA + 14, gA + 15, [lambda: nonce_check(S, VT, VZ, "L_cn")]), (gA + 16, gA + 17, [st(4)])] + pack_fill(0, gA + 16)
    gC0 = len(G)
    units, slots, EV = c_units(), c_slots(), c_events(cfg)
    VA, VL16 = [8, 9, 10], 11
    MC = lambda nt, u: 128 + 8 * nt + 4 * u
    EC = lambda nt, u: 200 + 16 * nt + 4 * u
    CRING = [40, 48, 24, 32, 56]
    OBUF = [(64, 8), (80, 8), (96, 8), (112, 8), (192, 16), (224, 16)]
    OB = lambda j, s, u: OBUF[(j - 6) % 6][0] + OBUF[(j - 6) % 6][1] * s + 4 * u
    sOP = [None, 96, 97, 98]
    if cfg.stop is None:
        setup = [f"v_add_u32 v{VA[0]}, {-6*SLOT & 0xffffffff}, v{VV[1]}", f"v_add_u32 v{VA[1]}, {-3*SLOT & 0xffffffff}, v{VV[1]}", f"v_mov_b32 v{VA[2]}, v{VV[1]}",
                 f"v_lshlrev_b32 v{VL16}, 4, v1"]
        for pi in range(1, 4):
            setup += [f"s_add_u32 s66, s2, {64*pi}", "s_and_b32 s66, s66, 255", "s_lshl_b32 s66, s66, 2", f"s_add_u32 s66, s66, s{S_W}", f"s_lshl_b32 s{sOP[pi]}, s66, 14"]
        fill += [(gA + 17, gA + 19, setup)]
        gC = gC0 + 8
        def cgroup(j, n, **kw):
            uk, hh, x = units[j]
            sl = slots[("W", j)][0]
            va, so = VA[sl // 3], (sl % 3) * SLOT
            k = len(G) - (gC0 if j < 2 else gC)
            rg = CRING[k % 4] if k < 32 else CRING[(k - 32) % 5]
            if uk == "E":
                nt, sp = n >> 1, n & 1
                rd = [f"ds_read_b64_tr_b16 {vr(rg+4*s+2*r,2)}, v{va} offset:{so + (2*(2*sp+s)+r)*128 + 32*nt}" for s in range(2) for r in range(2)]
                mf = [mfma(EC(nt, u), rg + 4*s, OF(hh, 2*sp+s, u), first=(hh == 0 and sp == 0 and s == 0)) for u in range(2) for s in range(2)]
            else:
                bf = (lambda s, u: OF(hh, 2*x+s, u)) if uk == "M" else (lambda s, u: OB(j, s, u))
                rd = [f"ds_read_b64_tr_b16 {vr(rg+4*s+2*r,2)}, v{va} offset:{so + (2*s+r)*256 + 32*n}" for s in range(2) for r in range(2)]
                mf = [mfma(MC(n, u), rg + 4*s, bf(s, u), first=(j == 0 and s == 0)) for u in range(2) for s in range(2)]
            need = None
            for name, us in WSET.items():
                if j in us and name not in seen: need = EV[name][0]; seen.add(name)
            b0 = len(G) - (k & 3)
            add(rd, mf, 3 if k < 36 else 4, gate={0: b0 - 1, 1: b0 - 1, 2: b0, 3: b0}[k & 3] if (k & ~3) in (0, 16) else None, need=need, **kw)
        seen = set()
        for j in range(cfg.merge):
            if j == 2:
                fill += [(gC0, gC0 + 1, [st(5)]), (gC0 + 3, gC0 + 16, softmax(1)), (len(G), len(G) + 1, [st(6)])] + pack_fill(1, len(G))
                pv(1)
            for n in range(8): cgroup(j, n, free=FU.get(j) if n == 7 else None)
        gM = len(G)
        nm_ = 18 - cfg.merge
        for tau in (1, 2, 3, 0):
            for j in range(cfg.merge, 18):
                for e in range(2): cgroup(j, 2 * tau + e)
        def o_loads(j):
            uk, hh, x = units[j]
            return [f"s_add_u32 s{48 + j % 6}, s{sOP[1 + x % 3]}, {WS_O + hh*8192 + (x // 3)*4096}"] + \
                   [f"buffer_load_dwordx4 {vr(OB(j, i >> 1, i & 1), 4)}, v{VL16}, {srd(SWS)}, s{48 + j % 6} offen offset:{i*1024} {cfg.pol_o}" for i in range(4)]
        for k in range(4):
            num, p0 = EV[f"OP{k}"]; lab = f"L_rdy{num}"
            def chk(lab=lab, num=num):
                S(f"v_readfirstlane_b32 s64, v{VPR2}")
                for x in swar(64, num): S(x)
                S(f"s_cbranch_scc0 {lab}")
                S.label(lab + "_ok")
                S.cold += spin_block(lab, lab + "_ok", VPR2, VZ, 0, 64, num, 0)
            fill += [(gC + p0 - 2, gC + p0 - 1, [f"ds_read_b32 v{VPR2}, v{VZ}"]), (gC + p0, gC + p0 + 1, [chk])]
            for i in range(3):
                j = 6 + 3 * k + i
                first = {6: 16, 7: 16, 8: 24, 9: 24, 10: 48, 11: 48}.get(j, 8 * (j - 5))
                a = max(p0 + 1 + cfg.ostep * i, first)
                fill += [(gC + a, gC + a + 2, o_loads(j))]
                if j == 9: fill += [(gC + a + 2, gC + a + 3, [lambda: signal(F_OI), "s_wakeup"])]
        VMASK, GR = 12, 64
        tagprep = [f"s_and_b32 s72, s{S_NONCE}, 1", f"s_lshl_b32 s73, s{S_NONCE}, 15", "s_and_b32 s73, s73, 0x10000", "s_or_b32 s72, s72, s73",
                   f"v_mov_b32 v{VMASK}, 0xfffefffe"]
        def tpack(base, n):
            o = []
            for k in range(n): o += [f"v_cvt_pk_bf16_f32 v{base+k}, v{base+2*k}, v{base+2*k+1}", f"v_and_or_b32 v{base+k}, v{base+k}, v{VMASK}, s72"]
            return o
        dx = list(tagprep)
        for u in range(2):
            for m_ in range(2):
                for k in range(4):
                    d, a = EC(2*m_, u) + k, EC(2*m_ + (k >> 1), u) + 2 * (k & 1)
                    dx += [f"v_cvt_pk_bf16_f32 v{d}, v{a}, v{a+1}", f"v_and_or_b32 v{d}, v{d}, v{VMASK}, s72"]
        dx += [f"s_lshl_b32 s67, s{S_BLK}, 3", f"s_add_u32 s67, s67, s{S_B}", "s_lshl_b32 s67, s67, 4", f"s_lshr_b32 s68, s{S_H0}, 1", "s_add_u32 s67, s67, s68",
               "s_lshl_b32 s67, s67, 2", f"s_add_u32 s67, s67, s{S_W}", "s_lshl_b32 s67, s67, 12", f"s_add_u32 s67, s67, {WS_DX}"]
        for gm in range(4):
            dx.append(f"buffer_store_dwordx4 {vr(EC(2*(gm & 1), gm >> 1),4)}, v{VL16}, {srd(SWS)}, s67 offen offset:{gm*1024} sc1")
        def dsend(tau):
            o = [f"s_add_u32 s67, s{S_KQ}, {tau}", "s_and_b32 s67, s67, 3", f"s_and_b32 s68, s2, {~3 & 0xffffffff}", "s_add_u32 s67, s67, s68", "s_lshl_b32 s67, s67, 2",
                 f"s_add_u32 s67, s67, s{S_W}", "s_mul_i32 s67, s67, 6144", f"s_add_u32 s67, s67, {WS_D + (tau-1)*2048}"]
            tp = tpack(128 + 16*tau, 8)
            for e in range(2):
                o += tp[8*e:8*e+8]
                o.append(f"buffer_store_dwordx4 {vr(128+16*tau+4*e,4)}, v{VL16}, {srd(SWS)}, s67 offen offset:{e*1024} sc1")
            return o
        daddr = ["s_lshl_b32 s74, s2, 2", f"s_add_u32 s74, s74, s{S_W}", "s_mul_i32 s74, s74, 6144", f"s_add_u32 s74, s74, {WS_D}", "s_add_u32 s75, s74, 4096",
                 f"s_lshl_b32 s70, s{S_B}, 2", f"s_add_u32 s70, s70, s{S_W}", "s_lshl_b32 s70, s70, 5", "v_and_b32 v2, 15, v1", "v_add_u32 v2, s70, v2", "v_mul_u32_u24 v2, 2304, v2",
                 "v_bfe_u32 v3, v1, 4, 1", "v_lshl_add_u32 v2, v3, 5, v2", "v_lshrrev_b32 v3, 5, v1", "v_lshl_add_u32 v2, v3, 4, v2", f"s_mul_i32 s70, s{S_BLK}, 1152",
                 f"s_lshl_b32 s71, s{S_P}, 8", "s_add_u32 s70, s70, s71", f"s_lshl_b32 s71, s{S_KQ}, 6", "s_add_u32 s70, s70, s71", f"s_add_u32 s71, s70, {16*2304}"]
        q = 2 * nm_
        w = min(q - 1, 6)
        fill += [(gC + cfg.dxpos, gC + cfg.dxpos + 8, dx),
                 (gC + cfg.dxgo, gC + cfg.dxgo + 1, [lambda: signal(F_DX), "s_wakeup"]), (gM + 1, gM + 6, daddr), (gM + q + 1, gM + q + 1 + w, dsend(1)), (gM + 2*q + 1, gM + 2*q + 1 + w, dsend(2)), (gM + 3*q + 1, gM + 3*q + 1 + w, dsend(3))]
        if cfg.cdetail:
            fill += [((gC if j > 1 else gC0) + 8*j, (gC if j > 1 else gC0) + 8*j + 1, [lambda i=j - (cfg.cdetail - 1): stamp(S, cfg, 1 + i, True)]) for j in range(18) if 0 <= j - (cfg.cdetail - 1) < 12]
    if cfg.adetail:
        fill += [(16*c, 16*c + 1, [lambda c=c: stamp(S, cfg, 1 + c, True)]) for c in range(9)]
        if cfg.stop != "A": fill += [(gA + 8*i, gA + 8*i + 1, [lambda i=i: stamp(S, cfg, 10 + i, True)]) for i in range(3)]
    queue = []
    frees, due = {}, {}
    for gi, g in enumerate(G):
        if g["need"] is not None and not cfg.nocheck:
            lab = f"L_rdy{g['need']}"
            steps = [f"v_readfirstlane_b32 s69, v{VPR}"] + swar(69, g["need"])
            at = max(0, len(queue) - cfg.probe_ahead)
            pg = queue[at][0] if at < len(queue) else g["gate"]
            queue.insert(at, (pg, "r", f"ds_read_b32 v{VPR}, v{VZ}"))
            queue.append((g["gate"], "r", steps[0]))
            queue.append((g["gate"], "gap", None))
            def chk(lab=lab, need=g["need"], steps=steps):
                for x in steps[1:]: S(x)
                S(f"s_cbranch_scc0 {lab}")
                S.label(lab + "_ok")
                S.cold += spin_block(lab, lab + "_ok", VPR, VZ, 0, 69, need, 0)
            queue.append((g["gate"], "c", chk))
        if g["bar"]:
            for _ in range(cfg.bargap): queue.append((g["gate"], "gap", None))
            def br():
                S.wait_lg(0); S("s_barrier")
            queue.append((g["gate"], "c", br))
        for k, r in enumerate(g["reads"]):
            queue.append((g["gate"], "r", (r, f"g{gi}") if k == len(g["reads"]) - 1 else r))
        if g["free"] is not None and not cfg.nofree:
            def fr(gi=gi, f=g["free"]):
                S.wait_lg_tag(f"g{gi}")
                signal(f)
                if cfg.wake: due[m + 2] = lambda: S("s_wakeup")
            frees[f"g{gi}"] = fr
    nm = [len(g["mf"]) for g in G]
    pos = [sum(nm[:i]) for i in range(len(G) + 1)]
    fl = {}
    for (g0, g1, ins) in fill:
        a, b = pos[g0], pos[g1]
        for k, x in enumerate(ins): fl.setdefault(a + (k * (b - a)) // len(ins), []).append(x)
    if tail_fill: fl.setdefault(pos[tail_fill[0]] - 1, []).extend(tail_fill[1])
    S("s_barrier")
    stamp(S, cfg, 1)
    m = 0
    def issue(q):
        emit(S, q[2])
        if isinstance(q[2], tuple) and q[2][1] in frees: due[m + cfg.free_delay] = frees[q[2][1]]
    for gi, g in enumerate(G):
        last_tag = f"g{gi}"
        while any(isinstance(q[2], tuple) and q[2][1] == last_tag for q in queue):
            q = queue.pop(0)
            if q[1] != "gap": issue(q)
        if cfg.gwait: S.wait_lg_tag(last_tag)
        for k, mf in enumerate(g["mf"]):
            S(mf)
            if m in due: due.pop(m)()
            n = 0
            while queue and n < 2 and queue[0][0] <= gi:
                q = queue[0]
                if q[1] == "gap": queue.pop(0); break
                if n >= 1 and q[0] == gi and q[1] == "r": break
                queue.pop(0); issue(q); n += 1
            for x in fl.get(m, []): emit(S, x)
            m += 1
    assert not queue
    while due: due.pop(min(due))()
    if cfg.stop == "A":
        stamp(S, cfg, 2)
        for x in pack(QP(1), 192): S(x)
        S(f"s_lshl_b32 s66, s2, 16\ns_lshl_b32 s67, s{S_W}, 14\ns_add_u32 s66, s66, s67\nv_lshlrev_b32 v{VOST}, 4, v1\nv_add_u32 v{VOST}, s66, v{VOST}")
        for i in range(16):
            S(f"s_mov_b32 s66, {i*1024}")
            S(f"buffer_store_dwordx4 {vr(64+4*i,4)}, v{VOST}, {srd(SWS)}, s66 offen")
        S.wait_vm(0); stamps_store(S, cfg); S("s_branch L_end"); return
    if cfg.stop == "B":
        stamp(S, cfg, 6)
        op1, done1 = o_pack(1)
        for x in op1 + [done1]: emit(S, x)
        S.wait_vm(0); stamp(S, cfg, 7); stamps_store(S, cfg); S("s_branch L_end"); return
    stamp(S, cfg, 7)
    S(f"s_mov_b32 s77, {SPIN_LIMIT}\nv_mov_b32 v6, 0x10001")
    S.label("L_d")
    for i in range(6):
        S(f"buffer_load_dwordx4 {vr(GR+4*i,4)}, v{VL16}, {srd(SWS)}, s{74 + i//4} offen offset:{(i%4)*1024} sc1")
    S(f"v_xor_b32 v4, s72, v{GR}")
    for i in range(1, 24): S(f"v_bitop3_b32 v4, v4, v{GR+i}, s72 bitop3:0xf6")
    S("v_and_b32 v4, v4, v6\nv_cmp_eq_u32 vcc, 0, v4\ns_cmp_eq_u64 vcc, -1\ns_cbranch_scc1 L_d_ok")
    S("s_sub_u32 s77, s77, 1\ns_cmp_lg_u32 s77, 0\ns_cbranch_scc1 L_d")
    S.label("L_d_ok")
    stamp(S, cfg, 9)
    for tau in range(3):
        for u in range(2):
            for e in range(2):
                for x in range(2):
                    src = GR + 8 * tau + 4*e + 2*u + x; a = MC(e, u) + 2 * x
                    S(f"v_lshlrev_b32 v4, 16, v{src}\nv_and_b32 v5, 0xffff0000, v{src}\nv_add_f32 v{a}, v{a}, v4\nv_add_f32 v{a+1}, v{a+1}, v5")
    GS = 48
    for u in range(2):
        for e in range(2):
            for x in range(2):
                S(f"v_cvt_pk_bf16_f32 v{GS+4*u+2*e+x}, v{MC(e,u)+2*x}, v{MC(e,u)+2*x+1}")
    for u in range(2):
        for x in range(2): S(f"v_permlane16_swap_b32 v{GS+4*u+x}, v{GS+4*u+2+x}")
    for u in range(2):
        S(f"buffer_store_dwordx4 {vr(GS+4*u,4)}, v2, {srd(SOUT)}, s{70+u} offen {cfg.pol_out}")
    if cfg.stamps:
        S.wait_vm(0); stamp(S, cfg, 10)
    stamps_store(S, cfg)
    S("s_branch L_end")

Cfg.dxwait = 17
H7 = "bA7 wK0 warm bA8 wK1 V1 wV0 W0 W1 W2 RWA W3 W4 W5 wV1 W6 W7 W8 w2 W9 W10 P0 S0 S1 RWB G0 G1 W11 W12 W13 W14 W15 W16 W17 "
H8 = "warm bA7 wK0 bA8 V0 wK1 W0 W1 wV0 V1 RWA W2 W3 W4 W5 W6 wV1 P0 S0 S1 RWB G0 G1 W7 W8 W9 W10 W11 W12 W13 W14 W15 W16 W17 "
H9 = "K1 bA7 wK0 bA8 V0 wK1 warm wV0 V1 W0 W1 RWA W2 W3 W4 W5 W6 wV1 P0 S0 S1 RWB G0 G1 W7 W8 W9 W10 W11 W12 W13 W14 W15 W16 W17 "
TA = "P1 S2 q0 ROP0 q1 ROP1 G2 f18 S3 RWC G3 w9 w10 w11 RWD q2 ROP2 q3 ROP3 RWE"
TB = "P1 S2 S3 q0 ROP0 q1 ROP1 G2 G3 RWC RWD q2 ROP2 q3 ROP3 RWE"
TD = "q0 ROP0 q1 ROP1 P1 S2 S3 RWC G2 G3 w9 w10 w11 RWD q2 ROP2 q3 ROP3 RWE"
TE = "q0 ROP0 q1 ROP1 P1 f18 S2 S3 RWC G2 G3 w9 w10 w11 RWD q2 ROP2 q3 ROP3 RWE"
PROGS = {h + x: H + T for h, H in (("7", H7), ("8", H8), ("9", H9)) for x, T in (("a", TA), ("b", TB), ("d", TD), ("e", TE))}
Cfg.prog = "9b"

def gen(cfg):
    hdr = open(REF).read().split("; Override launch")[0].rstrip("\n")
    launch = [f"; @launch grid=(256,1,1) block=(512,1,1) lds={LDS_BYTES}"]
    if cfg.pre or cfg.post:
        launch = [f"; @launch kernel={NAME} grid=(256,1,1) block=(512,1,1) lds={LDS_BYTES}"]
        if cfg.pre: launch = [f"; @launch kernel=aux_kernel grid=({cfg.pre},1,1) block=(64,1,1) lds=0"] + launch
        if cfg.post: launch += [f"; @launch kernel=aux_kernel grid=({cfg.post},1,1) block=(64,1,1) lds=0"]
    L = [hdr] + launch + ['.amdgcn_target "amdgcn-amd-amdhsa--gfx950"',
         ".text", f".globl {NAME}", ".p2align 8", f".type {NAME},@function", f"{NAME}:"]
    P = Stream("pro"); prologue(P, cfg); L += P.finish()
    Ld = Stream("loader"); Ld.smem_pending = True; loader(Ld, cfg); L += Ld.finish()
    L.append(".p2align 6")
    C = Stream("compute"); C.smem_pending = True; compute(C, cfg); L += C.finish()
    L.append("L_cold:")
    for s in (Ld, C):
        L += [x if isinstance(x, str) else "    " + x.text for x in s.cold]
    L += ["L_end:", "    s_endpgm", '.section .rodata,"a"', ".p2align 6", f".amdhsa_kernel {NAME}",
          "  .amdhsa_next_free_vgpr 256", "  .amdhsa_next_free_sgpr 102", "  .amdhsa_accum_offset 256",
          "  .amdhsa_group_segment_fixed_size 0", "  .amdhsa_kernarg_size 104", "  .amdhsa_user_sgpr_count 2",
          "  .amdhsa_user_sgpr_kernarg_segment_ptr 1", "  .amdhsa_system_sgpr_workgroup_id_x 1", ".end_amdhsa_kernel", ""]
    if cfg.pre or cfg.post:
        L = L[:-1] + [".text", ".globl aux_kernel", ".p2align 8", ".type aux_kernel,@function", "aux_kernel:", "    s_endpgm",
              '.section .rodata,"a"', ".p2align 6", ".amdhsa_kernel aux_kernel", "  .amdhsa_next_free_vgpr 8", "  .amdhsa_next_free_sgpr 16", "  .amdhsa_accum_offset 8",
              "  .amdhsa_group_segment_fixed_size 0", "  .amdhsa_kernarg_size 104", "  .amdhsa_user_sgpr_count 2",
              "  .amdhsa_user_sgpr_kernarg_segment_ptr 1", "  .amdhsa_system_sgpr_workgroup_id_x 1", ".end_amdhsa_kernel", ""]
    if cfg.align:
        from align import align
        k0 = L.index(f"{NAME}:"); k1 = L.index("L_end:") + 2
        body, nprom, npad = align(L[k0:k1], "L_compute", "L_cold", cfg.align == 2)
        L = L[:k0] + body + L[k1:]
        sys.stderr.write(f"align: promoted {nprom} padded {npad}\n")
    sys.stderr.write(f"nops: loader {Ld.nops} compute {C.nops}\n")
    return "\n".join(L)

if __name__ == "__main__":
    cfg = Cfg()
    out = sys.argv[1]
    for a in sys.argv[2:]:
        k, val = a.split("=", 1)
        cur = getattr(Cfg, k)
        if isinstance(cur, bool): val = val in ("1", "true", "True")
        elif isinstance(cur, int): val = int(val)
        elif val == "None": val = None
        setattr(cfg, k, val)
    open(out, "w").write(gen(cfg))
    open(out + ".sites", "w").write(" ".join(map(str, SITES)))
```

```python
import sys, math, struct
from sched import Stream, Ins

NAME = "concat_heads__mha_block_cached__gqa_block_cached__near_ridge_kernel"
REF = "concat_heads__mha_block_cached__gqa_block_cached__near_ridge.s.ref"
SLOT = 17408
PITCH = 1056
LB = 512
LDS_BYTES = LB + 9 * SLOT
def slot(i): return LB + i * SLOT
WS_O, WS_D, WS_DX, WS_FLAG, WS_EPOCH, WS_STAMP = 0, 16 << 20, 32 << 20, 40 << 20, 41 << 20, 48 << 20
WS_SIZE = 64 << 20
SPIN_LIMIT = 1 << 16

def f32(x): return struct.unpack("<I", struct.pack("<f", x))[0]
def vr(n, c=1): return f"v{n}" if c == 1 else f"v[{n}:{n+c-1}]"
def mfma(d, a, b, first=False):
    return f"v_mfma_f32_16x16x32_bf16 {vr(d,4)}, {vr(a,4)}, {vr(b,4)}, {'0' if first else vr(d,4)}"
def _raw(text): return [Ins(l.strip()) if not l.strip().endswith(":") else l.strip() for l in text.split("\n") if l.strip()]
def emit(S, x):
    if callable(x): x()
    elif isinstance(x, tuple): S(*x)
    else: S(x)

SX, SWQ, SK, SV, SWO, SWS, SOUT, SDBG = 8, 12, 16, 20, 24, 28, 32, 36
def srd(n): return f"s[{n}:{n+3}]"
S_BLK, S_KQ, S_B, S_P, S_H0, S_W, S_NONCE, S_C = 40, 41, 42, 43, 44, 45, 46, 47

R_K0, R_K1, R_V0, R_WA, R_V1, R_U = 9, 10, 11, 12, 13, 14
F_QK0, F_QK1, F_PV0, F_O0, F_PV1, F_O1 = 10, 11, 12, 13, 15, 16
F_OI, F_DX = 18, 21
FU = {1: 14, 2: 17, 4: 19, 8: 20}
WSET = {"WA": (0, 1), "WB": (2, 3, 4, 5, 6), "WC": (7, 8), "WD": (9, 10, 11, 12, 13), "WE": (14, 15, 16, 17)}
def c_events(cfg):
    pos = {"WB": 12, "WC": 52, "WD": 68, "WE": 8 * min(14, cfg.merge) - 4}
    for k, x in enumerate(cfg.opos.split(",")): pos[f"OP{k}"] = int(x)
    ev = {n: (R_U + i, pos[n]) for i, n in enumerate(sorted(pos, key=lambda n: pos[n]))}
    ev["WA"] = (R_WA, -12)
    return ev

class Cfg:
    pol_x = ""; pol_wq = ""; pol_kv = "nt"; pol_wo = ""
    stop = None
    stamps = False; real = False; adetail = False; cdetail = 0
    ngrp = 2; rotp = 1; rotk = 3
    k0pos = 1; k0cls = 4; kvwait = 4
    codepf = True
    order = "K1 V0 warm V1 W*"
    flag0 = -5; flag0b = 4; o1pos = 16; flag1 = 44; flag1b = 60; dxpos = 56
    amp = -1; ampw = 0
    probe_ahead = 8
    free_delay = 7
    trace = False
    defer = 12
    dot2 = True
    wprio2 = 0
    dbg = ""
    spoll = True
    blead = 7
    pk = False
    pol_out = ""
    pre = 0
    post = 0
    align = 0
    dxgo = 96
    opos = "22,23,80,92"
    ostep = 2
    pol_o = "sc1"
    pfilter = ""
    o1end = 10
    merge = 15
    dxsleep = 8
    akv = "0:1:4,1:3:4:2"
    o1len = 30
    ptrace = False
    early0 = 72
    warmpos = -1
    k1pos = -1
    warmrot = 3
    wprio = 0
    bargap = 4
    abar = True
    cbar = 6
    nocheck = False
    nofree = False
    alead = 4
    nodma = False
    lprio = 3
    lsleep = 5
    wake = True
    gwait = True
    early = False
    trace_from = 0

def stamp(S, cfg, idx, det=False):
    if not cfg.stamps: return
    if (cfg.cdetail or cfg.adetail) and idx not in (0, 13) and not det: return
    S(f"{'s_memrealtime' if cfg.real else 's_memtime'} s[78:79]")
    S("s_waitcnt lgkmcnt(0)")
    S(f"s_mov_b32 s{80+idx}, s78")

SITES = []
def trace_raw(cfg, who, ident):
    if not cfg.trace or len(SITES) >= 128: return ""
    if cfg.ptrace and not isinstance(ident, str): return ""
    k = len(SITES); SITES.append(ident)
    return f"{'s_memrealtime' if cfg.real else 's_memtime'} s[78:79]\ns_waitcnt lgkmcnt(0)\nv_writelane_b32 v{250 + (k >> 6)}, s78, {k & 63}\n"
def stamps_store(S, cfg):
    if not cfg.stamps: return
    S("s_memrealtime s[78:79]\ns_waitcnt lgkmcnt(0)\ns_mov_b32 s95, s78")
    stamp(S, cfg, 13)
    S(f"s_lshl_b32 s66, s2, 3\ns_add_u32 s66, s66, s3\ns_lshl_b32 s66, s66, 6\ns_add_u32 s66, s66, {WS_STAMP}")
    S("v_mov_b32 v2, 0")
    S("s_mov_b64 exec, 1")
    for i in range(16):
        S(f"v_mov_b32 v3, s{80+i}")
        S(f"buffer_store_dword v3, v2, {srd(SWS)}, s66 offen offset:{4*i}")
    S("s_mov_b64 exec, -1")

def prologue(S, cfg):
    S(f"""s_cmp_ge_u32 s2, 256
    s_cbranch_scc1 L_end
    s_bfe_u32 s{S_BLK}, s2, 0x10002
    s_mul_i32 s66, s{S_BLK}, 40
    s_add_u32 s4, s0, s66
    s_addc_u32 s5, s1, 0
    s_load_dwordx8 s[48:55], s[4:5], 0""")
    if cfg.stamps:
        S(f"s_memrealtime s[6:7]\n{'s_memrealtime' if cfg.real else 's_memtime'} s[92:93]")
    S(f"""v_lshrrev_b32 v2, 6, v0
    v_and_b32 v1, 63, v0
    s_load_dwordx2 s[56:57], s[4:5], 32
    v_readfirstlane_b32 s3, v2
    s_load_dwordx4 s[60:63], s[0:1], 80
    s_load_dwordx2 s[64:65], s[0:1], 96
    s_and_b32 s{S_KQ}, s2, 3
    s_bfe_u32 s{S_B}, s2, 0x30003
    s_lshr_b32 s{S_P}, s2, 6
    s_lshl2_add_u32 s{S_H0}, s{S_KQ}, s{S_P}
    s_lshl_b32 s{S_H0}, s{S_H0}, 1
    s_and_b32 s{S_W}, s3, 3
    s_cmp_lt_u32 s3, 4
    s_cbranch_scc1 L_compute""")
def first_stamps(S, cfg):
    if cfg.stamps:
        S("s_mov_b32 s80, s92\ns_mov_b32 s94, s6")
        for i in range(1, 14): S(f"s_mov_b32 s{80+i}, 0")
SRD_SIZE = {SX: 1179648, SWQ: 4718592, SK: 8388608, SV: 8388608, SWO: 4718592, SWS: WS_SIZE, SOUT: 2359296, SDBG: 256}
def srd_consts(S, which):
    for d in which: S(f"s_mov_b32 s{d+2}, {SRD_SIZE[d]}\ns_mov_b32 s{d+3}, 0x20000")
def srd_bases(S, which):
    for d, p in ((SX, 48), (SWQ, 54), (SK, 50), (SV, 52), (SWO, 56), (SWS, 64), (SOUT, 60), (SDBG, 62)):
        if d in which: S(f"s_mov_b32 s{d}, s{p}\ns_and_b32 s{d+1}, s{p+1}, 0xffff")

def nonce_issue(S, vt, vz):
    S(f"buffer_load_dword v{vt}, v{vz}, {srd(SDBG)}, 0 offen sc1")
def nonce_check(S, vt, vz, lab):
    S(f"v_readfirstlane_b32 s{S_NONCE}, v{vt}")
    S(f"s_cmp_eq_u32 s{S_NONCE}, 0\ns_cbranch_scc1 {lab}")
    S.label(f"{lab}_ok")
    S.cold += _raw(f"""{lab}:
    s_mov_b32 s77, {SPIN_LIMIT}
    {lab}_spin:
    buffer_load_dword v{vt}, v{vz}, {srd(SDBG)}, 0 offen sc1
    s_waitcnt vmcnt(0)
    v_readfirstlane_b32 s{S_NONCE}, v{vt}
    s_nop 4
    s_cmp_lg_u32 s{S_NONCE}, 0
    s_cbranch_scc1 {lab}_ok
    s_sleep 2
    s_sub_u32 s77, s77, 1
    s_cmp_lg_u32 s77, 0
    s_cbranch_scc1 {lab}_spin
    s_branch {lab}_ok""")

def swar(s, need):
    return [f"s_or_b32 s{s}, s{s}, 0x80808080", f"s_sub_u32 s{s}, s{s}, {need * 0x01010101}", f"s_andn2_b32 s{s}, 0x80808080, s{s}", f"s_cmp_eq_u32 s{s}, 0"]
def spin_block(lab, back, vt, vz, off, sreg, need, sleep):
    return _raw(f"""{lab}:
    s_mov_b32 s77, {SPIN_LIMIT}
    {lab}_spin:
    ds_read_b32 v{vt}, v{vz} offset:{off}
    s_waitcnt lgkmcnt(0)
    v_readfirstlane_b32 s{sreg}, v{vt}
    s_nop 3
    """ + "\n".join(swar(sreg, need)) + f"""
    s_cbranch_scc1 {back}
    {'s_sleep ' + str(sleep) if sleep else ''}
    s_sub_u32 s77, s77, 1
    s_cmp_lg_u32 s77, 0
    s_cbranch_scc1 {lab}_spin
    s_branch {back}""")

def c_units():
    u = [("M", 0, 0), ("M", 0, 1), ("E", 0, 0), ("M", 1, 0), ("M", 1, 1), ("E", 1, 0)]
    for hh in (0, 1):
        for ii in range(6): u.append(("P", hh, ii))
    return u
def c_slots():
    sl = [(0, F_QK0), (1, F_QK0), (8, 9), (2, F_O0), (3, F_O0), (4, F_PV0), (5, F_PV0), (6, F_PV1), (7, F_PV1),
          (0, F_O1), (1, F_O1), (8, FU[2]), (2, FU[4]), (3, FU[4]), (4, FU[8]), (5, FU[8]), (6, FU[8]), (7, FU[8])]
    return {("W", j): sl[j] for j in range(18)}

def pack(dst, src):
    return [f"v_cvt_pk_bf16_f32 v{dst+8*s+4*u+2*e+x}, v{src+8*(2*s+e)+4*u+2*x}, v{src+8*(2*s+e)+4*u+2*x+1}" for s in range(4) for u in range(2) for e in range(2) for x in range(2)]
PAY = [0, 1, 2, 4, 5, 6, 8, 9]

def loader(S, cfg):
    VXO, VWO, VKV, VKW, VVW, VMO, VEO, VOO, VFL, VWW, VN, VZ, VP0, VPA, VT = 4, 5, 6, 7, 8, 9, 10, 11, 12, 13, 14, 15, 16, 18, 19
    KVREG = [24, 56, 88, 120]
    sXb, sWb, sCC, sM, sMo, sT, sKV0, sKV1, sA = 66, 67, 68, 69, 70, 71, 72, 73, 75
    sWP, sOP = [65, 96, 97, 98], [62, 99, 100, 101]
    S(f"""s_lshl_b32 s{sT}, s{S_W}, 2
    v_and_b32 v2, 0x38, v1
    v_lshl_add_u32 v2, v2, 1, s{sT}
    v_mul_u32_u24 v3, 1152, v2
    v_and_b32 v20, 7, v1
    v_lshl_add_u32 v{VXO}, v20, 4, v3
    s_lshl_b32 s76, s{S_W}, 3
    s_lshl1_add_u32 s76, s{S_W}, s76
    s_and_b32 s76, s76, 12
    v_and_b32 v2, 32, v1
    v_lshlrev_b32 v2, 12, v2
    v_and_b32 v20, 31, v1
    v_lshl_add_u32 v{VWO}, v20, 4, v2
    s_lshl_b32 s76, s76, 13
    s_mul_i32 s{sM}, s{sT}, {PITCH}
    s_lshl_b32 s75, s{S_H0}, 8
    s_add_u32 s75, s75, s76""")
    if cfg.ngrp > 1:
        starts = [round(9 * i / cfg.ngrp) for i in range(cfg.ngrp)]
        tab = sum(starts[i % cfg.ngrp] << (4 * i) for i in range(16))
        S(f"""s_mul_i32 s76, s{S_P}, {cfg.rotp}
        s_add_u32 s76, s76, s{S_B}
        s_and_b32 s77, s{S_KQ}, {cfg.rotk}
        s_add_u32 s76, s76, s77
        s_lshl_b32 s76, s76, 2
        s_mov_b32 s72, {tab & 0xffffffff}
        s_mov_b32 s73, {tab >> 32}
        s_lshr_b64 s[72:73], s[72:73], s76
        s_and_b32 s{sCC}, s72, 15""")
    else:
        S(f"s_mov_b32 s{sCC}, 0")
    S(f"s_mul_i32 s74, s{S_B}, 147456")
    srd_consts(S, (SX, SWQ))
    S("s_waitcnt lgkmcnt(0)")
    srd_bases(S, (SX, SWQ))
    def chunk(c, mid=None):
        base = slot((c % 3) * 3)
        S(f"""s_lshl_b32 s{sXb}, s{sCC}, 7
        s_add_u32 s{sXb}, s{sXb}, s74
        s_lshl_b32 s{sWb}, s{sCC}, 19
        s_add_u32 s{sWb}, s{sWb}, s75""")
        for i in range(4):
            S(f"s_add_u32 m0, s{sM}, {base + i*(PITCH-1152)}")
            if i == 0: S(f"s_add_u32 s{sCC}, s{sCC}, 1")
            elif i == 1: S(f"s_cmp_eq_u32 s{sCC}, 9\ns_cselect_b32 s{sCC}, 0, s{sCC}")
            S(f"buffer_load_dwordx4 v{VXO}, {srd(SX)}, s{sXb} offen offset:{i*1152} {cfg.pol_x} lds", tag=f"ch{c}")
        if mid: mid()
        for st in range(2):
            for i in range(4):
                S(f"s_add_u32 m0, s{sM}, {base + SLOT*(1+st) + i*PITCH}\ns_add_u32 s{sT}, s{sWb}, {(32*st+i)*8192}")
                S(f"buffer_load_dwordx4 v{VWO}, {srd(SWQ)}, s{sT} offen {cfg.pol_wq} lds", tag=f"ch{c}")
    def kv_lines(m):
        sr = SK if m < 2 else SV
        sb = sKV0 if m % 2 == 0 else sKV1
        o = [f"s_add_u32 s{sT}, s{sb}, 4096"]
        for j in range(8):
            o.append((f"buffer_load_dwordx4 {vr(KVREG[m]+4*j,4)}, v{VKV}, {srd(sr)}, s{sb if j < 4 else sT} offen offset:{(j&3)*1024} {cfg.pol_kv}", f"kv{m}"))
        return o
    def kv_load(m):
        for x in kv_lines(m): emit(S, x)
    def v_dma(m, sl):
        sb = sKV0 if m % 2 == 0 else sKV1
        S(f"""v_lshrrev_b32 v2, 4, v1
        v_lshlrev_b32 v2, 13, v2
        v_and_b32 v3, 15, v1
        v_lshl_add_u32 v2, v3, 4, v2
        s_lshl_b32 s76, s{S_W}, 11
        s_add_u32 s{sT}, s{sb}, s76
        s_lshl_b32 s76, s{sM}, 1""")
        for j in range(8):
            S(f"s_add_u32 m0, s76, {slot(sl) + j*(PITCH-256)}")
            S(f"buffer_load_dwordx4 v2, {srd(SV)}, s{sT} offen offset:{j*256} {cfg.pol_kv} lds", tag=f"kv{m}")
    def cond(lab, cls, mask, lines, pre=""):
        S(f"s_and_b32 s76, s{S_B}, {mask}\ns_cmp_lg_u32 s76, {cls}\ns_cbranch_scc1 {lab}")
        S.out += _raw(pre + "\n".join(x[0] if isinstance(x, tuple) else x for x in lines))
        S.label(lab)
    def kv_load_if(m, cls, ncls, pre=""):
        cond(f"L_kv{m}_{cls}", cls, ncls - 1, kv_lines(m), pre)
        if cls == ncls - 1: S.phantom([f"v{KVREG[m]+i}" for i in range(32)], f"kv{m}")
    def warm_lines():
        return f"""s_lshl_b32 s76, s{S_KQ}, 3
        s_add_u32 s76, s76, s{S_B}
        s_lshl_b32 s76, s76, 2
        s_add_u32 s76, s76, s{S_W}
        s_mul_i32 s76, s76, {32*1152}
        s_lshl_b32 s77, s{S_P}, 8
        s_add_u32 s76, s76, s77
        v_lshrrev_b32 v20, 1, v1
        v_mul_u32_u24 v20, 1152, v20
        v_and_b32 v3, 1, v1
        v_lshl_add_u32 v20, v3, 7, v20
        buffer_load_dword v22, v20, {srd(SWO)}, s76 offen {cfg.pol_wo}
        s_lshl_b32 s76, s{S_B}, 2
        s_add_u32 s76, s76, s{S_W}
        s_mul_i32 s76, s76, {8*1152}
        s_add_u32 s76, s76, s64
        v_and_b32 v21, 7, v1
        v_mul_u32_u24 v21, 1152, v21
        buffer_load_dword v23, v21, {srd(SWO)}, s76 offen offset:1024 {cfg.pol_wo}""".split("\n")
    def kv_write(m, sl):
        S.wait_vm_tag(f"kv{m}")
        S(f"s_setprio {cfg.wprio}")
        if "nolw" in cfg.dbg: return
        if m < 2:
            for j in range(8):
                S(f"v_add_u32 v2, {slot(sl) + j*4*PITCH}, v{VKW}")
                S(f"ds_write2_b64 v2, {vr(KVREG[m]+4*j,2)}, {vr(KVREG[m]+4*j+2,2)} offset0:0 offset1:2")
        else:
            S(f"v_add_u32 v2, {slot(sl)}, v{VVW}")
            for j in range(8):
                S(f"ds_write_b128 v2, {vr(KVREG[m]+4*j,4)} offset:{j*4*PITCH}")
    known = [0]; last_pub = [0]
    def wait_free(f, early=None):
        if f <= known[0]: return
        known[0] = f
        if cfg.nofree:
            S("s_sleep 5"); return
        lab = f"L_wf{f}"
        S.wait_lg(0)
        if cfg.trace and f >= cfg.trace_from: S(trace_raw(cfg, "loader", 100 + f))
        S(f"s_setprio {cfg.lprio}\nds_read_b32 v{VT}, v{VZ} offset:4\nv_readfirstlane_b32 s76, v{VT}")
        for x in swar(76, f): S(x)
        S(f"s_cbranch_scc0 {lab}")
        S.label(lab + "_ok")
        S("s_setprio 0")
        if cfg.trace and f >= cfg.trace_from: S(trace_raw(cfg, "loader", 200 + f))
        blk = spin_block(lab, lab + "_ok", VT, VZ, 4, 76, f, cfg.lsleep)
        if early and cfg.early: blk = blk[:1] + _raw(f"s_waitcnt vmcnt(0)\ns_mov_b32 s63, {early}\nv_mov_b32 v{VT}, {early}\nds_write_b8 v{VPA}, v{VT}\n" + (trace_raw(cfg, "loader", 400 + early) if f >= cfg.trace_from else "")) + blk[1:]
        S.cold += blk
    def publish(r):
        last_pub[0] = r
        S.wait_lg(0)
        S(f"s_setprio {cfg.lprio}\nv_mov_b32 v{VT}, {r}\nds_write_b8 v{VPA}, v{VT}\ns_setprio 0")
        if cfg.trace and known[0] >= cfg.trace_from: S(trace_raw(cfg, "loader", 300 + r))
        if cfg.adetail and r <= 12: stamp(S, cfg, r, True)
        if cfg.cdetail and 0 <= r - R_U < 12: stamp(S, cfg, 1 + r - R_U, True)
    chunk(0)
    first_stamps(S, cfg)
    stamp(S, cfg, 1)
    srd_consts(S, (SK, SV, SWO, SWS, SOUT, SDBG))
    srd_bases(S, (SK, SV, SWO, SWS, SOUT, SDBG))
    S(f"s_add_u32 s50, s64, {WS_FLAG}\ns_addc_u32 s51, s65, 0")
    if cfg.trace: S("s_mov_b32 s92, 0\nv_mov_b32 v250, 0\nv_mov_b32 v251, 0")
    if cfg.codepf:
        S(f"""s_getpc_b64 s[76:77]
        L_pc:
        s_lshr_b32 s{sT}, s2, 3
        s_lshl_b32 s{sT}, s{sT}, 2
        s_add_u32 s{sT}, s{sT}, s{S_W}
        s_mul_i32 s{sT}, s{sT}, 3
        v_min_u32 v2, 2, v1
        v_add_u32 v2, s{sT}, v2
        v_lshlrev_b32 v2, 7, v2
        v_min_u32 v2, L_end-L_pc, v2
        global_load_dword v23, v2, s[76:77]""")
    S(f"""v_mov_b32 v{VZ}, 0
    v_mov_b32 v20, 0
    v_mov_b32 v21, 0
    v_lshlrev_b32 v3, 3, v1
    ds_write_b64 v3, v[20:21]
    v_lshl_add_u32 v{VPA}, v1, 2, 64
    v_writelane_b32 v{VPA}, s{S_W}, 0
    v_add_u32 v{VEO}, 1024, v{VXO}
    s_lshl_b32 s76, s{S_W}, 13
    v_lshlrev_b32 v{VOO}, 4, v1
    v_add_u32 v{VKV}, s76, v{VOO}
    v_add_u32 v{VWW}, s{sM}, v{VOO}
    s_lshl_b32 s{sKV0}, s{S_B}, 5
    s_add_u32 s{sKV0}, s{sKV0}, s{S_H0}
    s_lshl_b32 s{sKV0}, s{sKV0}, 15
    s_add_u32 s{sKV1}, s{sKV0}, 32768
    v_lshrrev_b32 v2, 4, v1
    v_mul_u32_u24 v20, {PITCH}, v2
    s_lshl_b32 s76, s{S_W}, 8
    v_add_u32 v20, s76, v20
    v_and_b32 v3, 15, v1
    v_lshl_add_u32 v{VVW}, v3, 4, v20
    v_bfe_u32 v3, v1, 2, 2
    v_lshl_add_u32 v20, v3, 6, v20
    v_and_b32 v3, 1, v1
    v_lshl_add_u32 v20, v3, 5, v20
    v_bfe_u32 v3, v1, 1, 1
    v_lshl_add_u32 v{VKW}, v3, 3, v20""")
    S.wait_vm(9 if cfg.codepf else 8)
    chunk(1)
    S.wait_vm_tag("ch0"); S.wait_lg(0)
    stamp(S, cfg, 2)
    S("s_barrier")
    def pubch(c):
        S.wait_vm_tag(f"ch{c}"); publish(c)
    chunk(2, None if cfg.abar else (lambda: pubch(1)))
    S(f"""v_lshlrev_b32 v2, 4, v2
    s_lshl_b32 s76, s{S_W}, 2
    v_add_u32 v2, s76, v2
    v_mul_u32_u24 v2, 1152, v2
    s_lshl_b32 s76, s{S_KQ}, 6
    v_add_u32 v3, s76, v{VOO}
    v_and_b32 v3, 0xff, v3
    v_add_u32 v{VMO}, v2, v3
    v_min_u32 v2, 2, v1
    v_add3_u32 v2, v2, s{S_P}, 1
    v_and_b32 v2, 3, v2
    v_lshlrev_b32 v2, 6, v2
    s_and_b32 s76, s2, 63
    v_add_u32 v2, s76, v2
    v_lshlrev_b32 v2, 2, v2
    v_add_u32 v2, s{S_W}, v2
    v_lshlrev_b32 v{VFL}, 8, v2
    s_lshl_b32 s{sMo}, s{S_W}, 12""")
    for pi in range(4):
        d = sWP[pi]
        S(f"""s_add_u32 s76, s{S_P}, {pi}
        s_and_b32 s76, s76, 3
        s_lshl_b32 s77, s{S_KQ}, 2
        s_add_u32 s77, s77, s76
        s_mul_i32 s77, s77, {256*1152}
        s_lshl_b32 s{d}, s{S_P}, 8
        s_add_u32 s{d}, s{d}, s77""")
        if pi == 0: S("s_mov_b32 s64, s77")
        if True:
            S(f"""s_lshl_b32 s76, s76, 6
            s_and_b32 s77, s2, 63
            s_add_u32 s76, s76, s77
            s_lshl_b32 s76, s76, 2
            s_add_u32 s76, s76, s{S_W}
            s_lshl_b32 s{sOP[pi]}, s76, 14""")
            if pi: S(f"s_lshl_b32 s{54+pi}, s76, 8")
    for c in range(1, 7):
        if cfg.abar:
            S.wait_vm_tag(f"ch{c}"); stamp(S, cfg, c, cfg.adetail) if cfg.adetail else None; S("s_barrier"); known[0] = c
        else:
            wait_free(c, c + 1)
            pubch(c + 1)
        if c == 4: nonce_issue(S, VN, VZ)
        if not cfg.nodma: chunk(c + 2)
        for item in cfg.akv.split(","):
            what, first, ncls, rot = (item.split(":") + ["0"])[:4]
            first, ncls, rot = int(first), int(ncls), int(rot)
            if not 0 <= c - first < ncls: continue
            cond(f"L_a{what}_{c}", (c - first + rot) % ncls, ncls - 1, warm_lines() if what == "w" else kv_lines(int(what)), f"s_waitcnt vmcnt({cfg.kvwait})\n")
            if what != "w" and c - first == ncls - 1: S.phantom([f"v{KVREG[int(what)]+i}" for i in range(32)], f"kv{what}")
    nonce_check(S, VN, VZ, "L_ln")
    units, slots = c_units(), c_slots()
    def w_src(j):
        uk, hh, x = units[j]
        if uk == "M": return VMO, 65, (hh * 128 + 64 * x) * 1152
        if uk == "E": return VEO, 64, hh * 128 * 1152
        return VMO, sWP[1 + x % 3], (hh * 128 + 64 * (x // 3)) * 1152
    blocks = [152 + 16 * i for i in range(6)]
    parked = {}
    def w_load(j):
        va, sb, off = w_src(j)
        S(f"s_add_u32 s{sA}, s{sb}, {off}")
        if slots[("W", j)][1] <= known[0] and (j not in (3, 4, 9, 10) or (j > 4) in picked):
            lds_w.add(j)
            for i in range(4):
                S(f"s_add_u32 m0, s{sM}, {slot(slots[('W', j)][0]) + i*(PITCH-1152)}")
                S(f"buffer_load_dwordx4 v{va}, {srd(SWO)}, s{sA} offen offset:{i*1152} {cfg.pol_wo} lds", tag=f"u{j}")
        else:
            parked[j] = blocks.pop(0)
            for i in range(4 if "nopark" not in cfg.dbg else 0):
                S(f"buffer_load_dwordx4 {vr(parked[j]+4*i,4)}, v{va}, {srd(SWO)}, s{sA} offen offset:{i*1152} {cfg.pol_wo}", tag=f"u{j}w")
    lds_w = set()
    def w_write(j):
        assert j not in (3, 4, 9, 10) or (j > 4) in picked
        wait_free(slots[("W", j)][1])
        lds_w.add(j)
        S.wait_vm_tag(f"u{j}w")
        S(f"s_setprio {cfg.wprio if j < 7 else cfg.wprio2}\nv_add_u32 v2, {slot(slots[('W', j)][0])}, v{VWW}")
        for i in range(4 if not ("now" in cfg.dbg and j > 6 or "nolw" in cfg.dbg) else 0): S(f"ds_write_b128 v2, {vr(parked[j]+4*i,4)} offset:{i*PITCH}")
        S.wait_lg(0)
        S("s_setprio 0")
        blocks.append(parked.pop(j))
    def warm():
        for x in warm_lines(): S(x)
    issued, polled = set(), set()
    EV = c_events(cfg)
    def poll_issue(hh):
        issued.add(hh)
        S(f"s_mov_b32 s76, {WS_FLAG}")
        S(f"buffer_load_dword v{VP0 + (hh & 1)}, v{VFL}, {srd(SWS)}, s76 offen offset:{64*hh} sc1")
    def poll(hh):
        lab = f"L_poll{hh}"
        polled.add(hh)
        if "nopoll" in cfg.dbg: return
        if cfg.spoll:
            S.wait_lg(0)
            S(f"s_mov_b32 s77, {SPIN_LIMIT}")
            S.label(lab)
            S.out += _raw("\n".join(f"s_load_dword s{52+i}, s[50:51], s{55+i} offset:{64*hh} glc" for i in range(3)) + f"""
            s_waitcnt lgkmcnt(0)
            s_xor_b32 s52, s52, s{S_NONCE}
            s_xor_b32 s53, s53, s{S_NONCE}
            s_xor_b32 s54, s54, s{S_NONCE}
            s_or_b32 s52, s52, s53
            s_or_b32 s52, s52, s54
            s_cbranch_scc0 {lab}_ok
            s_sub_u32 s77, s77, 1
            s_cmp_lg_u32 s77, 0
            s_cbranch_scc1 {lab}""")
            S.label(f"{lab}_ok")
            return
        if hh not in issued: poll_issue(hh)
        v = VP0 + (hh & 1)
        S(f"v_cmp_eq_u32 vcc, s{S_NONCE}, v{v}")
        S(f"s_cmp_eq_u64 vcc, -1\ns_cbranch_scc0 {lab}")
        S.label(f"{lab}_ok")
        S.cold += _raw(f"""{lab}:
        s_mov_b32 s76, {WS_FLAG}
        s_mov_b32 s77, {SPIN_LIMIT}
        {lab}_spin:
        buffer_load_dword v{v}, v{VFL}, {srd(SWS)}, s76 offen offset:{64*hh} sc1
        s_waitcnt vmcnt(0)
        v_cmp_eq_u32 vcc, s{S_NONCE}, v{v}
        s_nop 1
        s_cmp_eq_u64 vcc, -1
        s_cbranch_scc1 {lab}_ok
        s_sub_u32 s77, s77, 1
        s_cmp_lg_u32 s77, 0
        s_cbranch_scc1 {lab}_spin
        s_branch {lab}_ok""")
    oreg, picked = {}, set()
    def pickup(h):
        wait_free((F_O0, F_O1)[h])
        S(f"s_setprio {cfg.lprio}\nv_add_u32 v2, {slot(2 - 2*h)}, v{VWW}")
        for x in range(2):
            oreg[2*h + x] = blocks.pop(0)
            for i in range(4): S(f"ds_read_b128 {vr(oreg[2*h+x] + 4*i, 4)}, v2 offset:{x*SLOT + i*1024}")
        S.wait_lg(0)
        S("s_setprio 0")
        picked.add(h)
    def o_store(k):
        if "nost" in cfg.dbg: return
        S(f"s_add_u32 s{sA}, s{sOP[0]}, {WS_O + k*4096}")
        for i in range(4):
            S(f"buffer_store_dwordx4 {vr(oreg[k] + 4*i, 4)}, v{VOO}, {srd(SWS)}, s{sA} offen offset:{i*1024} sc1", tag=f"o{k}")
    def o_flag(k):
        S.wait_vm_tag(f"o{k}")
        S(f"""s_lshr_b32 s76, s{sOP[0]}, 6
        s_add_u32 s76, s76, {WS_FLAG + 64*k}
        v_mov_b32 v3, s{S_NONCE}
        buffer_store_dword v3, v{VZ}, {srd(SWS)}, s76 offen sc1""")
        blocks.append(oreg.pop(k))
    def kv_duty(m, sl, f, r):
        wait_free(f); kv_write(m, sl); publish(r)
        blocks.extend([KVREG[m], KVREG[m] + 16])
    prog = PROGS[cfg.prog].split()
    if cfg.stop == "A": prog = ["bA7", "bA8"] if cfg.abar else ["p8"]
    if cfg.stop == "B": prog = [x for x in prog if x[0] in "KVpPS" or x[:2] in ("wK", "wV", "bA")]
    for op in prog:
        if cfg.ptrace and (not cfg.pfilter or op in cfg.pfilter.split(",")): S(trace_raw(cfg, "loader", op))
        if op in ("K1", "V0", "V1"): kv_load({"K1": 1, "V0": 2, "V1": 3}[op])
        elif "@" in op: kv_load_if({"K1": 1, "V0": 2, "V1": 3}[op[:2]], int(op[3]), 2)
        elif op in ("D0", "D1"):
            m = 2 + int(op[1]); wait_free(8 + int(op[1])); v_dma(m, 4 + 2 * int(op[1])); blocks.extend([KVREG[m], KVREG[m] + 16])
        elif op in ("pV0", "pV1"):
            S.wait_vm_tag(f"kv{2 + int(op[2])}"); publish((R_V0, R_V1)[int(op[2])])
        elif op == "warm": warm()
        elif op == "p8": S.wait_vm_tag("ch8"); publish(8)
        elif op[0] == "b":
            j = int(op[2:])
            S.wait_vm_tag(f"ch{j}"); known[0] = j
            S.wait_lg(0)
            if cfg.adetail: stamp(S, cfg, j, True)
            S("s_barrier")
        elif op == "wK0": kv_duty(0, 0, 7, R_K0)
        elif op == "wK1": kv_duty(1, 2, 8, R_K1)
        elif op == "wV0": kv_duty(2, 4, 8, R_V0)
        elif op == "wV1": kv_duty(3, 6, 9, R_V1)
        elif op[0] == "W": w_load(int(op[1:]))
        elif op[0] == "w": w_write(int(op[1:]))
        elif op[0] == "f": wait_free(int(op[1:]))
        elif op[0] == "q": poll(int(op[1:]))
        elif op[0] == "Q": poll_issue(int(op[1:]))
        elif op[0] == "P": pickup(int(op[1:]))
        elif op[0] == "S": o_store(int(op[1:]))
        elif op[0] == "G": o_flag(int(op[1:]))
        elif op[0] == "z": S(f"s_sleep {op[1:]}")
        elif op[0] == "R":
            name = op[1:]
            if name in WSET:
                for j in WSET[name]:
                    if j in parked: w_write(j)
                    assert j in lds_w
                    S.wait_vm_tag(f"u{j}")
            else: assert int(name[2]) in polled
            assert EV[name][0] == last_pub[0] + 1, (name, EV, last_pub)
            publish(EV[name][0])
        else: raise ValueError(op)
    stamp(S, cfg, 3)
    if cfg.trace:
        S(f"s_lshl_b32 s66, s2, 2\ns_add_u32 s66, s66, s{S_W}\ns_lshl_b32 s66, s66, 9\ns_add_u32 s66, s66, {WS_STAMP + (1 << 20)}\nv_lshlrev_b32 v2, 2, v1")
        S(f"buffer_store_dword v250, v2, {srd(SWS)}, s66 offen\nbuffer_store_dword v251, v2, {srd(SWS)}, s66 offen offset:256")
    if cfg.stop:
        S.wait_vm(0); stamps_store(S, cfg); S("s_branch L_end"); return
    S(f"s_cmp_lg_u32 s{S_W}, 0\ns_cbranch_scc1 L_lfin")
    R = 64
    S(f"""v_and_b32 v2, 7, v1
    v_bfe_u32 v3, v1, 3, 2
    v_lshl_add_u32 v2, v3, 4, v2
    s_and_b32 s76, s{S_P}, 1
    s_lshl_b32 s76, s76, 3
    v_add_u32 v2, s76, v2
    v_lshlrev_b32 v2, 4, v2
    v_lshrrev_b32 v3, 5, v1
    v_lshl_add_u32 v4, v3, 14, v2
    s_lshl_b32 s{sA}, s{S_BLK}, 3
    s_add_u32 s{sA}, s{sA}, s{S_B}
    s_lshl_b32 s{sA}, s{sA}, 6
    s_add_u32 s{sA}, s{sA}, s{S_KQ}
    s_lshl_b32 s{sA}, s{sA}, 1
    s_lshr_b32 s76, s{S_P}, 1
    s_add_u32 s{sA}, s{sA}, s76
    s_lshl_b32 s{sA}, s{sA}, 11
    s_add_u32 s{sA}, s{sA}, {WS_DX}
    s_and_b32 s72, s{S_NONCE}, 1
    s_lshl_b32 s73, s{S_NONCE}, 15
    s_and_b32 s73, s73, 0x10000
    s_or_b32 s72, s72, s73
    v_mov_b32 v8, 0x10001
""")
    wait_free(F_DX)
    S(f"s_mov_b32 s77, {SPIN_LIMIT}")
    S.label("L_dx")
    for r in range(8):
        S(f"s_add_u32 s{sT}, s{sA}, {r*2*16384}")
        for gm in range(2):
            S(f"buffer_load_dwordx4 {vr(R+8*r+4*gm,4)}, v4, {srd(SWS)}, s{sT} offen offset:{gm*1024} sc1")
    S(f"v_xor_b32 v5, s72, v{R}")
    for i in range(1, 64): S(f"v_bitop3_b32 v5, v5, v{R+i}, s72 bitop3:0xf6")
    S("v_and_b32 v5, v5, v8\nv_cmp_eq_u32 vcc, 0, v5\ns_cmp_eq_u64 vcc, -1\ns_cbranch_scc1 L_dx_ok")
    S("s_sleep 4\ns_sub_u32 s77, s77, 1\ns_cmp_lg_u32 s77, 0\ns_cbranch_scc1 L_dx")
    S.label("L_dx_ok")
    AC = 24
    for r in range(8):
        for d in range(8):
            src = R + 8 * r + d
            if r == 0:
                S(f"v_lshlrev_b32 v{AC+2*d}, 16, v{src}\nv_and_b32 v{AC+2*d+1}, 0xffff0000, v{src}")
            else:
                S(f"v_lshlrev_b32 v6, 16, v{src}\nv_and_b32 v7, 0xffff0000, v{src}\nv_add_f32 v{AC+2*d}, v{AC+2*d}, v6\nv_add_f32 v{AC+2*d+1}, v{AC+2*d+1}, v7")
    for i in range(8): S(f"v_permlane32_swap_b32 v{AC+i}, v{AC+8+i}")
    for i in range(8): S(f"v_add_f32 v{AC+i}, v{AC+i}, v{AC+8+i}")
    for i in range(4): S(f"v_cvt_pk_bf16_f32 v{44+i}, v{AC+2*i}, v{AC+2*i+1}")
    S(f"""v_and_b32 v2, 7, v1
    s_lshl_b32 s76, s{S_B}, 7
    s_lshl_b32 s77, s{S_KQ}, 5
    s_add_u32 s76, s76, s77
    s_lshl_b32 s77, s{S_P}, 3
    s_add_u32 s76, s76, s77
    v_add_u32 v2, s76, v2
    v_mul_u32_u24 v2, 2304, v2
    v_bfe_u32 v3, v1, 3, 2
    v_lshl_add_u32 v2, v3, 3, v2
    v_lshrrev_b32 v3, 5, v1
    v_lshl_add_u32 v2, v3, 6, v2
    s_mul_i32 s76, s{S_BLK}, 1152
    s_add_u32 s76, s76, 1024
    buffer_store_dwordx2 v[44:45], v2, {srd(SOUT)}, s76 offen {cfg.pol_out}
    buffer_store_dwordx2 v[46:47], v2, {srd(SOUT)}, s76 offen offset:32 {cfg.pol_out}""")
    S.label("L_lfin")
    if cfg.stamps: S("s_waitcnt vmcnt(0)")
    stamps_store(S, cfg)
    S("s_branch L_end")

def compute(S, cfg):
    VX, VW = [4, 5, 6], [7, 8, 9]
    VK, VV, VOST, VZ, VN = [10, 11], [12, 13], 14, 15, 16
    VM, VT, VRC, VPR, VFA, VFT, VPR2 = [16, 17], 19, [[20, 21], [22, 23]], 18, 2, 3, 19
    ONES, LS = 56, [60, 4]
    QP = lambda h: 64 + 32 * h
    SS = lambda h: 128 + 64 * h
    PP = 64
    OF = lambda h, s, u: 96 + 8 * s + 4 * u if h == 0 else 192 + 16 * s + 4 * u
    S.label("L_compute")
    S(f"v_mov_b32 v{VZ}, 0")
    srd_consts(S, (SWS, SOUT, SDBG))
    S("s_waitcnt lgkmcnt(0)")
    first_stamps(S, cfg)
    srd_bases(S, (SWS, SOUT, SDBG))
    S(f"s_or_b32 s66, s2, s3\ns_cmp_lg_u32 s66, 0\ns_cbranch_scc1 L_notag")
    S.out += _raw(f"""s_mov_b32 s66, {WS_EPOCH}
    buffer_load_dword v2, v{VZ}, {srd(SWS)}, s66 offen sc1
    s_waitcnt vmcnt(0)
    v_add_u32 v2, 1, v2
    v_max_u32 v2, 1, v2
    buffer_store_dword v2, v{VZ}, {srd(SWS)}, s66 offen sc1
    buffer_store_dword v2, v{VZ}, {srd(SDBG)}, 0 offen sc1
    s_waitcnt vmcnt(0)""")
    S.label("L_notag")
    S(f"""v_and_b32 v22, 15, v1
    v_lshrrev_b32 v23, 4, v1
    v_mul_u32_u24 v2, {PITCH}, v22
    v_lshl_add_u32 v{VK[0]}, v23, 4, v2
    v_add_u32 v{VK[0]}, {LB}, v{VK[0]}
    v_add_u32 v{VK[1]}, {2*SLOT}, v{VK[0]}
    s_lshl_b32 s66, s{S_W}, 8
    v_add_u32 v{VX[0]}, s66, v{VK[0]}
    v_add_u32 v{VX[1]}, {3*SLOT}, v{VX[0]}
    v_add_u32 v{VX[2]}, {6*SLOT}, v{VX[0]}
    v_bfe_u32 v2, v1, 2, 3
    v_mul_u32_u24 v2, {PITCH}, v2
    v_lshrrev_b32 v3, 5, v1
    v_lshl_add_u32 v2, v3, 9, v2
    v_and_b32 v3, 3, v1
    v_lshl_add_u32 v2, v3, 3, v2
    v_add_u32 v{VW[0]}, {slot(1)}, v2
    v_add_u32 v{VW[1]}, {slot(4)}, v2
    v_add_u32 v{VW[2]}, {slot(7)}, v2
    v_lshrrev_b32 v2, 2, v1
    v_mul_u32_u24 v2, {PITCH}, v2
    v_lshl_add_u32 v2, v3, 3, v2
    v_add_u32 v{VV[0]}, {slot(4)}, v2
    v_add_u32 v{VV[1]}, {slot(6)}, v2
    s_mul_i32 s66, s{S_W}, {4*PITCH}
    s_add_u32 s66, s66, {slot(0)}
    v_lshlrev_b32 v{VOST}, 4, v1
    v_add_u32 v{VOST}, s66, v{VOST}
    s_add_u32 s66, s{S_W}, 4
    v_lshl_add_u32 v{VFA}, v1, 2, 64
    v_writelane_b32 v{VFA}, s66, 0
    s_mov_b32 s{S_C}, {f32(math.log2(math.e) / math.sqrt(128.0))}
    s_mov_b32 s58, s{S_C}
    s_mov_b32 s59, s{S_C}""")
    for pi in range(1, 4):
        S(f"s_add_u32 s66, s2, {64*pi}\ns_and_b32 s66, s66, 255\ns_lshl2_add_u32 s66, s66, s{S_W}\ns_lshl_b32 s{95+pi}, s66, 14")
        S(f"s_add_u32 s66, s{S_KQ}, {pi}\ns_and_b32 s66, s66, 3\ns_andn2_b32 s67, s2, 3\ns_add_u32 s66, s66, s67\ns_lshl2_add_u32 s66, s66, s{S_W}\ns_mul_i32 s66, s66, 6144\ns_add_u32 s{(100, 101, 57)[pi-1]}, s66, {WS_D + (pi-1)*2048}")
    S(f"""s_lshl3_add_u32 s66, s{S_BLK}, s{S_B}
    s_lshr_b32 s67, s{S_H0}, 1
    s_lshl4_add_u32 s66, s66, s67
    s_lshl2_add_u32 s66, s66, s{S_W}
    s_lshl_b32 s66, s66, 12
    s_add_u32 s99, s66, {WS_DX}
    s_lshl2_add_u32 s74, s2, s{S_W}
    s_mul_i32 s74, s74, 6144
    s_add_u32 s74, s74, {WS_D}
    s_add_u32 s75, s74, 4096
    s_lshl2_add_u32 s70, s{S_B}, s{S_W}
    s_mul_i32 s70, s70, {32*2304}
    s_mul_i32 s71, s{S_BLK}, 1152
    s_add_u32 s70, s70, s71
    s_lshl2_add_u32 s71, s{S_P}, s{S_KQ}
    s_lshl_b32 s71, s71, 6
    s_add_u32 s70, s70, s71
    s_add_u32 s71, s70, {16*2304}""")
    G = []
    def add(reads, mf, lead, need=None, free=None, gate=None, bar=False):
        G.append(dict(reads=reads, mf=mf, gate=len(G) - lead if gate is None else gate, need=need, free=free, bar=bar))
    ACC = lambda t, u: 128 + 8 * t + 4 * u
    ARING = [96, 104, 112, 120, 56]
    XF = lambda c, s, u: 24 + 16 * (c & 1) + 8 * s + 4 * u
    for c in range(9):
        for t in range(16):
            rg = ARING[len(G) % 5]
            rd = [f"ds_read_b64_tr_b16 {vr(rg+4*s+2*r,2)}, v{VW[c%3]} offset:{s*SLOT + r*8*PITCH + 32*t}" for s in range(2) for r in range(2)]
            if t == 0: rd = [f"ds_read_b128 {vr(XF(c,s,u),4)}, v{VX[c%3]} offset:{128*u + 64*s}" for s in range(2) for u in range(2)] + rd
            add(rd, [mfma(ACC(t, u), rg + 4*s, XF(c, s, u), first=(c == 0 and s == 0)) for u in range(2) for s in range(2)], cfg.alead,
                need=c if t == 0 and c and not cfg.abar else None, free=c + 1 if t == 15 and (c == 8 or not cfg.abar) else None, bar=cfg.abar and t == 0 and c > 0)
    gA = len(G)
    fill = [(gA - 6, gA, pack(QP(0), 128))]
    tail_fill = None
    KR = lambda i: 24 + 4 * ((i + 4) & 7)
    def qk(h):
        for i in range(32):
            kt, s = i >> 2, i & 3
            add([f"ds_read_b128 {vr(KR(i),4)}, v{VK[h]} offset:{(kt&1)*16*PITCH + (kt>>1)*256 + 64*s}"],
                [mfma(SS(h)+8*kt+4*u, KR(i), QP(h)+8*s+4*u, first=(s == 0)) for u in range(2)], cfg.blead,
                need=R_K0 + h if i == 0 else None, free=F_QK0 + h if i == 31 else None,
                gate=(gA - 3 if i < 4 else max(gA, len(G) - cfg.blead)) if h == 0 else None)
            G[-1]["wait4"] = (i & 3) == 0
    def pv(h):
        g0 = len(G)
        for i in range(32):
            dt, j = i >> 2, i & 3
            add([f"ds_read_b64_tr_b16 {vr(KR(i)+2*r,2)}, v{VV[h]} offset:{r*16*PITCH + j*256 + 32*dt}" for r in range(2)],
                ([mfma(LS[u], ONES, PP+8*jj+4*u, first=(jj == 0)) for u in range(2) for jj in range(4)] if i == 0 else []) +
                [mfma(SS(h)+8*dt+4*u, KR(i), PP+8*j+4*u, first=(j == 0)) for u in range(2)], cfg.blead,
                need=(R_V0, R_V1)[h] if i == 0 else None, free=(F_PV0, F_PV1)[h] if i == 31 else None,
                gate=max(len(G) - cfg.blead, g0 - (3, 3, 2, 2, 1, 1, 0, 0)[i]) if (h == 1 and i < 8) else None)
            G[-1]["wait4"] = (i & 3) == 0
    def softmax(h):
        s = SS(h)
        el = [[s + 8*kt + 4*u + r for kt in range(8) for r in range(4)] for u in range(2)]
        o = []
        for i in range(16):
            for u in range(2):
                e = el[u]
                if i == 0: o.append(f"v_max3_f32 v{VM[u]}, v{e[0]}, v{e[1]}, v{e[2]}")
                elif i < 15: o.append(f"v_max3_f32 v{VM[u]}, v{VM[u]}, v{e[2*i+1]}, v{e[2*i+2]}")
                else: o.append(f"v_max_f32 v{VM[u]}, v{VM[u]}, v{e[31]}")
        a, b = VM
        o += [f"v_permlane32_swap_b32 v{a}, v{b}", f"v_max_f32 v{a}, v{a}, v{b}", f"v_mov_b32 v{b}, v{a}",
              f"v_permlane16_swap_b32 v{a}, v{b}", f"v_max_f32 v{a}, v{a}, v{b}", f"v_mul_f32 v{a}, s{S_C}, v{a}", f"v_mov_b32 v{b}, v{a}",
              f"v_permlane32_swap_b32 v{a}, v{b}"]
        order = [(kt, u, r) for kt in range(8) for u in range(2) for r in range(4)]
        D = 2
        for i in range(64 + 2 * D):
            if i < 64:
                kt, u, r = order[i]; x = s + 8*kt + 4*u + r
                if not cfg.pk: o.append(f"v_fma_f32 v{x}, v{x}, s{S_C}, -v{VM[u]}")
                elif r % 2 == 0: o.append(f"v_pk_fma_f32 {vr(x,2)}, {vr(x,2)}, s[58:59], {vr(VM[0],2)} op_sel:[0,0,{u}] op_sel_hi:[1,1,{u}] neg_lo:[0,0,1] neg_hi:[0,0,1]")
            j = i - D
            if 0 <= j < 64:
                kt, u, r = order[j]; x = s + 8*kt + 4*u + r
                o.append(f"v_exp_f32 v{x}, v{x}")
            j = i - 2 * D
            if 0 <= j < 64:
                kt, u, r = order[j]; x = s + 8*kt + 4*u + r
                if r & 1: o.append(f"v_cvt_pk_bf16_f32 v{PP+8*(kt>>1)+4*u+2*(kt&1)+(r>>1)}, v{x-1}, v{x}")
        return o
    sig = [0]
    def signal(f):
        assert f > sig[0], (f, sig[0])
        sig[0] = f
        S(f"v_mov_b32 v{VFT}, {f}\nds_write_b8 v{VFA}, v{VFT}")
    def o_pack(h):
        s = SS(h); o = []
        need = (F_QK1, FU[1])[h]; lab = f"L_st{h}"
        def chk():
            S(f"v_readfirstlane_b32 s64, v{VPR2}")
            for x in swar(64, need): S(x)
            S(f"s_cbranch_scc0 {lab}")
            S.label(lab + "_ok")
            S.cold += spin_block(lab, lab + "_ok", VPR2, VZ, 4, 64, need, 0)
        for st in range(4):
            part = [f"ds_read_b32 v{VPR2}, v{VZ} offset:4"] if st == 0 else []
            for u in range(2):
                for e in range(2):
                    for r in range(4):
                        x = s + 8*(2*st+e) + 4*u + r
                        if not cfg.pk: part.append(f"v_mul_f32 v{x}, v{x}, v{VRC[h][u]}")
                        elif r % 2 == 0: part.append(f"v_pk_mul_f32 {vr(x,2)}, {vr(x,2)}, {vr(VRC[h][0],2)} op_sel:[0,{u}] op_sel_hi:[1,{u}]")
                i = 2 * st + u
                part += [f"v_cvt_pk_bf16_f32 v{OF(h,st,u)+2*e+x}, v{s+8*(2*st+e)+4*u+2*x}, v{s+8*(2*st+e)+4*u+2*x+1}" for e in range(2) for x in range(2)]
                if i == 0: part.append(chk)
                part.append((f"ds_write_b128 v{VOST}, {vr(OF(h,st,u),4)} offset:{(2 - 2*h + (i >> 2))*SLOT + (i & 3)*1024}", f"st{h}"))
            o.append(part)
        def done():
            S.wait_lg_tag(f"st{h}"); signal((F_O0, F_O1)[h])
        return o, done
    rcp = lambda h: [f"v_rcp_f32 v{VRC[h][u]}, v{LS[u]}" for u in range(2)]
    st = lambda i: (lambda: stamp(S, cfg, i))
    def pack_fill(h, g0):
        op, done = o_pack(h)
        return [(g0 + 4, g0 + 5, rcp(h)), (g0 + 10, g0 + 18, op[0]), (g0 + 18, g0 + 26, op[1]), (g0 + 26, g0 + 33, op[2]), (g0 + 33, g0 + 35, op[3]), (g0 + 35, g0 + 36, [done, "s_wakeup"])]
    if cfg.stop != "A":
        qk(0); qk(1); pv(0)
        fill += [(gA, gA + 1, [st(2), lambda: nonce_issue(S, VT, VZ)]),
                 (gA, gA + 32, pack(QP(1), 192) + [f"v_mov_b32 v{ONES+i}, 0x3f803f80" for i in range(4)]),
                 (gA + 32, gA + 33, [st(3)]), (gA + 33, gA + 64, softmax(0)),
                 (gA + 56, gA + 57, [lambda: nonce_check(S, VT, VZ, "L_cn")]), (gA + 64, gA + 65, [st(4)])] + pack_fill(0, gA + 64)
    gC0 = len(G)
    units, slots, EV = c_units(), c_slots(), c_events(cfg)
    VA, VL16 = [8, 9, 10], 11
    MC = lambda nt, u: 128 + 8 * nt + 4 * u
    EC = lambda nt, u: 200 + 16 * nt + 4 * u
    CRING = [40, 48, 24, 32, 56]
    OBUF = [(64, 8), (80, 8), (96, 8), (112, 8), (192, 16), (224, 16)]
    OB = lambda j, s, u: OBUF[(j - 6) % 6][0] + OBUF[(j - 6) % 6][1] * s + 4 * u
    sOP = [None, 96, 97, 98]
    if cfg.stop is None:
        setup = [f"v_add_u32 v{VA[0]}, {-6*SLOT & 0xffffffff}, v{VV[1]}", f"v_add_u32 v{VA[1]}, {-3*SLOT & 0xffffffff}, v{VV[1]}", f"v_mov_b32 v{VA[2]}, v{VV[1]}",
                 f"v_lshlrev_b32 v{VL16}, 4, v1"]
        fill += [(gA + 65, gA + 69, setup)]
        gC = gC0 + 32
        def cgroup(j, n, **kw):
            uk, hh, x = units[j]
            sl = slots[("W", j)][0]
            va, so = VA[sl // 3], (sl % 3) * SLOT
            k = len(G) - (gC0 if j < 2 else gC)
            rg = CRING[k % 4] if k < 32 else CRING[(k - 32) % 5]
            if uk == "E":
                nt, sp = n >> 1, n & 1
                rd = [f"ds_read_b64_tr_b16 {vr(rg+4*s+2*r,2)}, v{va} offset:{so + (2*(2*sp+s)+r)*128 + 32*nt}" for s in range(2) for r in range(2)]
                mf = [mfma(EC(nt, u), rg + 4*s, OF(hh, 2*sp+s, u), first=(hh == 0 and sp == 0 and s == 0)) for u in range(2) for s in range(2)]
            else:
                bf = (lambda s, u: OF(hh, 2*x+s, u)) if uk == "M" else (lambda s, u: OB(j, s, u))
                rd = [f"ds_read_b64_tr_b16 {vr(rg+4*s+2*r,2)}, v{va} offset:{so + (2*s+r)*256 + 32*n}" for s in range(2) for r in range(2)]
                mf = [mfma(MC(n, u), rg + 4*s, bf(s, u), first=(j == 0 and s == 0)) for u in range(2) for s in range(2)]
            need = None
            for name, us in WSET.items():
                if j in us and name not in seen: need = EV[name][0]; seen.add(name)
            b0 = len(G) - (k & 3)
            add(rd, mf, 3 if k < 36 else 4, gate={0: b0 - 6, 1: b0 - 4, 2: b0 - 2, 3: b0}[k & 3] if (k & ~3) in (0, 16) else None, need=need, **kw)
        seen = set(); gU = {}
        for j in range(cfg.merge):
            if j == 2:
                fill += [(gC0, gC0 + 1, [st(5)]), (gC0 + 3, gC0 + 16, softmax(1)), (len(G), len(G) + 1, [st(6)])] + pack_fill(1, len(G))
                pv(1)
            gU[j] = len(G)
            for n in range(2 if j >= cfg.defer else 0, 8): cgroup(j, n, free=FU.get(j) if n == 7 else None)
        gM = len(G)
        nm_ = 18 - cfg.merge
        for tau in (1, 2, 3):
            for j in range(cfg.merge, 18):
                for e in range(2): cgroup(j, 2 * tau + e)
        for j in range(min(cfg.defer, cfg.merge), 18):
            for e in range(2): cgroup(j, e)
        def o_loads(j):
            uk, hh, x = units[j]
            return [f"s_add_u32 s{48 + j % 6}, s{sOP[1 + x % 3]}, {WS_O + hh*8192 + (x // 3)*4096}"] + \
                   [f"buffer_load_dwordx4 {vr(OB(j, i >> 1, i & 1), 4)}, v{VL16}, {srd(SWS)}, s{48 + j % 6} offen offset:{i*1024} {cfg.pol_o}" for i in range(4)]
        for k in range(4):
            num, p0 = EV[f"OP{k}"]; lab = f"L_rdy{num}"
            def chk(lab=lab, num=num):
                S(f"v_readfirstlane_b32 s64, v{VPR2}")
                for x in swar(64, num): S(x)
                S(f"s_cbranch_scc0 {lab}")
                S.label(lab + "_ok")
                S.cold += spin_block(lab, lab + "_ok", VPR2, VZ, 0, 64, num, 0)
            fill += [(gC + p0 - 2, gC + p0 - 1, [f"ds_read_b32 v{VPR2}, v{VZ}"]), (gC + p0, gC + p0 + 1, [chk])]
            for i in range(3):
                j = 6 + 3 * k + i
                first = {6: 16, 7: 16, 8: 24, 9: 24, 10: 48, 11: 48}.get(j, 8 * (j - 5))
                a = max(p0 + 1 + cfg.ostep * i, first)
                fill += [(gC + a, gC + a + 2, o_loads(j) if "noold" not in cfg.dbg else ["s_nop 0"])]
                if j == 9: fill += [(gC + a + 2, gC + a + 3, [lambda: signal(F_OI), "s_wakeup"])]
        VMASK, GR = 12, 64
        tagprep = [f"s_and_b32 s72, s{S_NONCE}, 1", f"s_lshl_b32 s73, s{S_NONCE}, 15", "s_and_b32 s73, s73, 0x10000", "s_or_b32 s72, s72, s73",
                   f"v_mov_b32 v{VMASK}, 0xfffefffe"]
        def tpack(base, n):
            o = []
            for k in range(n): o += [f"v_cvt_pk_bf16_f32 v{base+k}, v{base+2*k}, v{base+2*k+1}", f"v_and_or_b32 v{base+k}, v{base+k}, v{VMASK}, s72"]
            return o
        dx = list(tagprep)
        for u in range(2):
            for m_ in range(2):
                for k in range(4):
                    d, a = EC(2*m_, u) + k, EC(2*m_ + (k >> 1), u) + 2 * (k & 1)
                    dx += [f"v_cvt_pk_bf16_f32 v{d}, v{a}, v{a+1}", f"v_and_or_b32 v{d}, v{d}, v{VMASK}, s72"]
        for gm in range(4):
            dx.append(f"buffer_store_dwordx4 {vr(EC(2*(gm & 1), gm >> 1),4)}, v{VL16}, {srd(SWS)}, s99 offen offset:{gm*1024} sc1")
        def dsend(tau):
            o = []
            tp = tpack(128 + 16*tau, 8)
            for e in range(2):
                o += tp[8*e:8*e+8]
                o.append(f"buffer_store_dwordx4 {vr(128+16*tau+4*e,4)}, v{VL16}, {srd(SWS)}, s{(100, 101, 57)[tau-1]} offen offset:{e*1024} sc1")
            return o
        daddr = [f"v_and_b32 v2, 15, v1", "v_mul_u32_u24 v2, 2304, v2", "v_bfe_u32 v3, v1, 4, 1", "v_lshl_add_u32 v2, v3, 5, v2", "v_lshrrev_b32 v3, 5, v1", "v_lshl_add_u32 v2, v3, 4, v2",
                 "v_mov_b32 v6, 0x10001", "v_mov_b32 v4, 0x3f80", "v_mov_b32 v5, 0x3f800000"]
        q = 2 * nm_
        w = min(q - 1, 6)
        fill += [(gC + cfg.dxpos, gC + cfg.dxpos + 8, dx),
                 (gC + cfg.dxgo, gC + cfg.dxgo + 1, [lambda: signal(F_DX), "s_wakeup"]), (gM + 1, gM + 6, daddr), (gM + q + 1, gM + q + 1 + w, dsend(1)), (gM + 2*q + 1, gM + 2*q + 1 + w, dsend(2)), (gM + 3*q + 1, gM + 3*q + 1 + w, dsend(3))]
        if cfg.cdetail:
            fill += [((gC if j > 1 else gC0) + 8*j, (gC if j > 1 else gC0) + 8*j + 1, [lambda i=j - (cfg.cdetail - 1): stamp(S, cfg, 1 + i, True)]) for j in range(18) if 0 <= j - (cfg.cdetail - 1) < 12]
    if cfg.adetail:
        fill += [(16*c, 16*c + 1, [lambda c=c: stamp(S, cfg, 1 + c, True)]) for c in range(9)]
        if cfg.stop != "A": fill += [(gA + 32*i, gA + 32*i + 1, [lambda i=i: stamp(S, cfg, 10 + i, True)]) for i in range(3)]
    queue = []
    frees, due = {}, {}
    for gi, g in enumerate(G):
        if g["need"] is not None and not cfg.nocheck:
            lab = f"L_rdy{g['need']}"
            steps = [f"v_readfirstlane_b32 s69, v{VPR}"] + swar(69, g["need"])
            at = max(0, len(queue) - cfg.probe_ahead)
            pg = queue[at][0] if at < len(queue) else g["gate"]
            queue.insert(at, (pg, "r", f"ds_read_b32 v{VPR}, v{VZ}"))
            queue.append((g["gate"], "r", steps[0]))
            queue.append((g["gate"], "gap", None))
            def chk(lab=lab, need=g["need"], steps=steps):
                for x in steps[1:]: S(x)
                S(f"s_cbranch_scc0 {lab}")
                S.label(lab + "_ok")
                S.cold += spin_block(lab, lab + "_ok", VPR, VZ, 0, 69, need, 0)
            queue.append((g["gate"], "c", chk))
        if g["bar"]:
            for _ in range(cfg.bargap): queue.append((g["gate"], "gap", None))
            def br():
                S.wait_lg(0); S("s_barrier")
            queue.append((g["gate"], "c", br))
        for k, r in enumerate(g["reads"]):
            queue.append((g["gate"], "r", (r, f"g{gi}") if k == len(g["reads"]) - 1 else r))
        if g["free"] is not None and not cfg.nofree:
            def fr(gi=gi, f=g["free"]):
                S.wait_lg_tag(f"g{gi}")
                signal(f)
                if cfg.wake: due[m + 2] = lambda: S("s_wakeup")
            frees[f"g{gi}"] = fr
    nm = [len(g["mf"]) for g in G]
    pos = [sum(nm[:i]) for i in range(len(G) + 1)]
    fl = {}
    for (g0, g1, ins) in fill:
        a, b = pos[g0], pos[g1]
        for k, x in enumerate(ins): fl.setdefault(a + (k * (b - a)) // len(ins), []).append(x)
    if tail_fill: fl.setdefault(pos[tail_fill[0]] - 1, []).extend(tail_fill[1])
    S("s_barrier")
    stamp(S, cfg, 1)
    m = 0
    def issue(q):
        emit(S, q[2])
        if isinstance(q[2], tuple) and q[2][1] in frees: due[m + cfg.free_delay] = frees[q[2][1]]
    for gi, g in enumerate(G):
        last_tag = f"g{gi}"
        while any(isinstance(q[2], tuple) and q[2][1] == last_tag for q in queue):
            q = queue.pop(0)
            if q[1] != "gap": issue(q)
        if g.get("wait4"): S.wait_lg_tag(f"g{gi+3}")
        if cfg.gwait: S.wait_lg_tag(last_tag)
        for k, mf in enumerate(g["mf"]):
            S(mf)
            if m in due: due.pop(m)()
            n = 0
            while queue and n < 2 and queue[0][0] <= gi:
                q = queue[0]
                if q[1] == "gap": queue.pop(0); break
                if n >= 1 and q[0] == gi and q[1] == "r": break
                queue.pop(0); issue(q); n += 1
            for x in fl.get(m, []): emit(S, x)
            m += 1
    assert not queue
    while due: due.pop(min(due))()
    if cfg.stop == "A":
        stamp(S, cfg, 2)
        for x in pack(QP(1), 192): S(x)
        S(f"s_lshl_b32 s66, s2, 16\ns_lshl_b32 s67, s{S_W}, 14\ns_add_u32 s66, s66, s67\nv_lshlrev_b32 v{VOST}, 4, v1\nv_add_u32 v{VOST}, s66, v{VOST}")
        for i in range(16):
            S(f"s_mov_b32 s66, {i*1024}")
            S(f"buffer_store_dwordx4 {vr(64+4*i,4)}, v{VOST}, {srd(SWS)}, s66 offen")
        S.wait_vm(0); stamps_store(S, cfg); S("s_branch L_end"); return
    if cfg.stop == "B":
        stamp(S, cfg, 6)
        op1, done1 = o_pack(1)
        for x in op1 + [done1]: emit(S, x)
        S.wait_vm(0); stamp(S, cfg, 7); stamps_store(S, cfg); S("s_branch L_end"); return
    stamp(S, cfg, 7)
    S(f"s_mov_b32 s77, {SPIN_LIMIT}")
    S.label("L_d")
    for i in range(6):
        S(f"buffer_load_dwordx4 {vr(GR+4*i,4)}, v{VL16}, {srd(SWS)}, s{74 + i//4} offen offset:{(i%4)*1024} sc1")
    S(f"v_xor_b32 v7, s72, v{GR}")
    for i in range(1, 24): S(f"v_bitop3_b32 v7, v7, v{GR+i}, s72 bitop3:0xf6")
    S("v_and_b32 v7, v7, v6\nv_cmp_eq_u32 vcc, 0, v7\ns_cmp_eq_u64 vcc, -1\ns_cbranch_scc1 L_d_ok")
    S("s_sub_u32 s77, s77, 1\ns_cmp_lg_u32 s77, 0\ns_cbranch_scc1 L_d")
    S.label("L_d_ok")
    stamp(S, cfg, 9)
    for tau in range(3):
        for u in range(2):
            for e in range(2):
                for x in range(2):
                    src = GR + 8 * tau + 4*e + 2*u + x; a = MC(e, u) + 2 * x
                    if cfg.dot2: S(f"v_dot2c_f32_bf16 v{a}, v{src}, v4\nv_dot2c_f32_bf16 v{a+1}, v{src}, v5")
                    else: S(f"v_lshlrev_b32 v8, 16, v{src}\nv_and_b32 v9, 0xffff0000, v{src}\nv_add_f32 v{a}, v{a}, v8\nv_add_f32 v{a+1}, v{a+1}, v9")
    if cfg.dot2: S("s_nop 2")
    GS = 48
    for u in range(2):
        for e in range(2):
            for x in range(2):
                S(f"v_cvt_pk_bf16_f32 v{GS+4*u+2*e+x}, v{MC(e,u)+2*x}, v{MC(e,u)+2*x+1}")
    for u in range(2):
        for x in range(2): S(f"v_permlane16_swap_b32 v{GS+4*u+x}, v{GS+4*u+2+x}")
    for u in range(2):
        S(f"buffer_store_dwordx4 {vr(GS+4*u,4)}, v2, {srd(SOUT)}, s{70+u} offen {cfg.pol_out}")
    if cfg.stamps:
        S.wait_vm(0); stamp(S, cfg, 10)
    stamps_store(S, cfg)
    S("s_branch L_end")

Cfg.dxwait = 17
H7 = "bA7 wK0 warm bA8 wK1 V1 wV0 W0 W1 W2 RWA W3 W4 W5 wV1 W6 W7 W8 w2 W9 W10 P0 S0 S1 RWB G0 G1 W11 W12 W13 W14 W15 W16 W17 "
H8 = "warm bA7 wK0 bA8 V0 wK1 W0 W1 wV0 V1 RWA W2 W3 W4 W5 W6 wV1 P0 S0 S1 RWB G0 G1 W7 W8 W9 W10 W11 W12 W13 W14 W15 W16 W17 "
H9 = "K1 bA7 wK0 bA8 V0 wK1 warm wV0 V1 W0 W1 RWA W2 W3 W4 W5 W6 wV1 P0 S0 S1 RWB G0 G1 W7 W8 W9 W10 W11 W12 W13 W14 W15 W16 W17 "
TA = "P1 S2 q0 ROP0 q1 ROP1 G2 f18 S3 RWC G3 w9 w10 w11 RWD q2 ROP2 q3 ROP3 RWE"
TB = "P1 S2 S3 q0 ROP0 q1 ROP1 G2 G3 RWC RWD q2 ROP2 q3 ROP3 RWE"
TD = "q0 ROP0 q1 ROP1 P1 S2 S3 RWC G2 G3 w9 w10 w11 RWD q2 ROP2 q3 ROP3 RWE"
TE = "q0 ROP0 q1 ROP1 P1 f18 S2 S3 RWC G2 G3 w9 w10 w11 RWD q2 ROP2 q3 ROP3 RWE"
HA = "bA7 wK0 warm bA8 wK1 V1 wV0 W0 W1 W2 RWA W3 W4 W5 wV1 W6 W7 W8 w2 W9 W10 W11 W12 P0 S0 S1 RWB W13 W14 W15 W16 W17 G0 G1 "
HB = "K1 bA7 wK0 bA8 V0 wK1 warm wV0 V1 W0 W1 RWA W2 W3 W4 W5 W6 wV1 P0 S0 S1 W7 W8 W9 W10 RWB G0 G1 "
TF = "q0 ROP0 q1 ROP1 P1 f18 S2 S3 W11 W12 W13 RWC G2 G3 W14 W15 W16 W17 w9 w10 w11 RWD q2 ROP2 q3 ROP3 RWE"
TG = "P1 q0 ROP0 q1 ROP1 f18 S2 S3 RWC G2 G3 w9 w10 w11 RWD q2 ROP2 q3 ROP3 RWE"
PROGS = {h + x: H + T for h, H in (("7", H7), ("8", H8), ("9", H9), ("A", HA)) for x, T in (("a", TA), ("b", TB), ("d", TD), ("e", TE), ("g", TG))}
HC = "bA7 wK0 warm bA8 wK1 V1 wV0 W0 W1 W2 RWA W3 W4 W5 wV1 W6 W7 W8 w2 W9 W10 W11 W12 P0 S0 S1 RWB G0 G1 W13 W14 W15 W16 W17 "
HD = "K1 bA7 wK0 bA8 V0 wK1 warm wV0 V1 W0 W1 RWA W2 W3 W4 W5 W6 wV1 W7 W8 P0 S0 S1 RWB G0 G1 W9 W10 W11 W12 W13 W14 W15 W16 W17 "
HE = "warm bA7 wK0 bA8 V0 wK1 W0 W1 wV0 V1 RWA W2 W3 W4 W5 W6 wV1 W7 W8 W9 W10 P0 S0 S1 RWB G0 G1 W11 W12 W13 W14 W15 W16 W17 "
TH = "q0 ROP0 q1 ROP1 w7 w8 P1 w9 w10 f18 S2 S3 RWC w11 RWD G2 G3 q2 ROP2 q3 ROP3 RWE"
TI = "q0 ROP0 q1 ROP1 P1 f18 S2 S3 RWC w9 w10 w11 G2 G3 RWD q2 ROP2 q3 ROP3 RWE"
TJ = "q0 ROP0 q1 ROP1 w7 w8 P1 S2 w9 w10 f18 S3 RWC G2 w11 RWD G3 q2 ROP2 q3 ROP3 RWE"
HF = "bA7 wK0 warm bA8 wK1 V1 wV0 f10 W0 W1 W2 RWA wV1 f12 W5 W6 P0 S0 S1 W3 W4 G0 G1 RWB "
HG = "warm bA7 wK0 bA8 V0 wK1 wV0 V1 f10 W0 W1 W2 RWA wV1 f12 W5 W6 P0 S0 S1 W3 W4 G0 G1 RWB "
HH = "K1 bA7 wK0 bA8 V0 wK1 warm wV0 V1 f10 W0 W1 W2 RWA wV1 f12 W5 W6 P0 S0 S1 W3 W4 G0 G1 RWB "
TK = "q0 ROP0 q1 ROP1 f15 W7 W8 P1 W9 W10 f18 W11 S2 S3 RWC f19 W12 W13 G2 G3 RWD q2 ROP2 q3 ROP3 f20 W14 W15 W16 W17 RWE"
TL = "q0 ROP0 q1 ROP1 f15 W7 W8 P1 S2 W9 W10 f18 W11 S3 RWC G2 f19 W12 W13 G3 RWD q2 ROP2 f20 W14 W15 W16 W17 q3 ROP3 RWE"
TM = "q0 ROP0 q1 ROP1 f15 W7 W8 P1 S2 S3 W9 W10 f17 W11 RWC G2 G3 f19 W12 W13 RWD q2 ROP2 f20 W14 W15 W16 W17 q3 ROP3 RWE"
for h, H in (("F", HF), ("G", HG), ("H", HH)):
    for x, T in (("k", TK), ("l", TL), ("m", TM)): PROGS[h + x] = H + T
HI = "warm bA7 wK0 bA8 D0 wK1 W3 W4 W5 W6 D1 pV0 f10 W0 W1 W2 W11 W12 W13 RWA pV1 W14 W15 W16 W17 P0 S0 S1 RWB G0 G1 "
HJ = "warm bA7 wK0 bA8 D0 wK1 W3 W4 W5 W6 D1 pV0 f10 W0 W1 W2 W7 W8 W9 RWA pV1 W10 W11 W12 W13 P0 S0 S1 RWB G0 G1 W14 W15 W16 W17 "
TN = "q0 ROP0 q1 ROP1 f15 W7 W8 P1 W9 W10 f18 S2 S3 RWC w11 RWD G2 G3 q2 ROP2 q3 ROP3 RWE"
TO = "q0 ROP0 q1 ROP1 f15 W7 W8 P1 S2 W9 W10 f18 S3 RWC G2 w11 RWD G3 q2 ROP2 q3 ROP3 RWE"
PROGS["In"] = HI + TN; PROGS["Io"] = HI + TO; PROGS["Jh"] = HJ + TH; PROGS["Jj"] = HJ + TJ
PROGS["Kn"] = PROGS["In"].replace("warm bA7 wK0 bA8 D0 wK1", "K1 bA7 wK0 bA8 D0 wK1 warm")
HL = "warm bA7 wK0 bA8 D0 wK1 D1 pV0 f10 W0 W1 W2 W3 W4 W5 W6 RWA pV1 W7 W8 W9 W10 W11 W12 W13 P0 S0 S1 RWB G0 G1 W14 W15 W16 W17 "
HM = "warm bA7 wK0 bA8 D0 wK1 W3 W4 D1 pV0 f10 W0 W1 W2 W5 W6 RWA W7 W8 pV1 W9 W10 W11 W12 P0 S0 S1 RWB G0 G1 W13 W14 W15 W16 W17 "
PROGS["Lh"] = HL + TH; PROGS["Mh"] = HM + TH; PROGS["Lj"] = HL + TJ
for h, H in (("C", HC), ("D", HD), ("E", HE)):
    for x, T in (("h", TH), ("i", TI), ("j", TJ)): PROGS[h + x] = H + T
Cfg.prog = "Eh"

def gen(cfg):
    hdr = open(REF).read().split("; Override launch")[0].rstrip("\n")
    launch = [f"; @launch grid=(256,1,1) block=(512,1,1) lds={LDS_BYTES}"]
    if cfg.pre or cfg.post:
        launch = [f"; @launch kernel={NAME} grid=(256,1,1) block=(512,1,1) lds={LDS_BYTES}"]
        if cfg.pre: launch = [f"; @launch kernel=aux_kernel grid=({cfg.pre},1,1) block=(64,1,1) lds=0"] + launch
        if cfg.post: launch += [f"; @launch kernel=aux_kernel grid=({cfg.post},1,1) block=(64,1,1) lds=0"]
    L = [hdr] + launch + ['.amdgcn_target "amdgcn-amd-amdhsa--gfx950"',
         ".text", f".globl {NAME}", ".p2align 8", f".type {NAME},@function", f"{NAME}:"]
    P = Stream("pro"); prologue(P, cfg); L += P.finish()
    Ld = Stream("loader"); Ld.smem_pending = True; loader(Ld, cfg); L += Ld.finish()
    L.append(".p2align 6")
    C = Stream("compute"); C.smem_pending = True; compute(C, cfg); L += C.finish()
    L.append("L_cold:")
    for s in (Ld, C):
        L += [x if isinstance(x, str) else "    " + x.text for x in s.cold]
    L += ["L_end:", "    s_endpgm", '.section .rodata,"a"', ".p2align 6", f".amdhsa_kernel {NAME}",
          "  .amdhsa_next_free_vgpr 256", "  .amdhsa_next_free_sgpr 102", "  .amdhsa_accum_offset 256",
          "  .amdhsa_group_segment_fixed_size 0", "  .amdhsa_kernarg_size 104", "  .amdhsa_user_sgpr_count 2",
          "  .amdhsa_user_sgpr_kernarg_segment_ptr 1", "  .amdhsa_system_sgpr_workgroup_id_x 1", ".end_amdhsa_kernel", ""]
    if cfg.pre or cfg.post:
        L = L[:-1] + [".text", ".globl aux_kernel", ".p2align 8", ".type aux_kernel,@function", "aux_kernel:", "    s_endpgm",
              '.section .rodata,"a"', ".p2align 6", ".amdhsa_kernel aux_kernel", "  .amdhsa_next_free_vgpr 8", "  .amdhsa_next_free_sgpr 16", "  .amdhsa_accum_offset 8",
              "  .amdhsa_group_segment_fixed_size 0", "  .amdhsa_kernarg_size 104", "  .amdhsa_user_sgpr_count 2",
              "  .amdhsa_user_sgpr_kernarg_segment_ptr 1", "  .amdhsa_system_sgpr_workgroup_id_x 1", ".end_amdhsa_kernel", ""]
    if cfg.align:
        from align import align
        k0 = L.index(f"{NAME}:"); k1 = L.index("L_end:") + 2
        body, nprom, npad = align(L[k0:k1], "L_compute", "L_cold", cfg.align == 2)
        L = L[:k0] + body + L[k1:]
        sys.stderr.write(f"align: promoted {nprom} padded {npad}\n")
    sys.stderr.write(f"nops: loader {Ld.nops} compute {C.nops}\n")
    return "\n".join(L)

if __name__ == "__main__":
    cfg = Cfg()
    out = sys.argv[1]
    for a in sys.argv[2:]:
        k, val = a.split("=", 1)
        cur = getattr(Cfg, k)
        if isinstance(cur, bool): val = val in ("1", "true", "True")
        elif isinstance(cur, int): val = int(val)
        elif val == "None": val = None
        setattr(cfg, k, val)
    open(out, "w").write(gen(cfg))
    open(out + ".sites", "w").write(" ".join(map(str, SITES)))
```

```python
import sys, math, struct
from sched import Stream, Ins

NAME = "concat_heads__mha_block_cached__gqa_block_cached__near_ridge_kernel"
REF = "concat_heads__mha_block_cached__gqa_block_cached__near_ridge.s.ref"
SLOT = 17408
PITCH = 1056
LB = 512
LDS_BYTES = LB + 9 * SLOT
def slot(i): return LB + i * SLOT
WS_O, WS_D, WS_DX, WS_FLAG, WS_EPOCH, WS_STAMP = 0, 16 << 20, 32 << 20, 40 << 20, 41 << 20, 48 << 20
WS_SIZE = 64 << 20
SPIN_LIMIT = 1 << 16

def f32(x): return struct.unpack("<I", struct.pack("<f", x))[0]
def vr(n, c=1): return f"v{n}" if c == 1 else f"v[{n}:{n+c-1}]"
def mfma(d, a, b, first=False):
    return f"v_mfma_f32_16x16x32_bf16 {vr(d,4)}, {vr(a,4)}, {vr(b,4)}, {'0' if first else vr(d,4)}"
def _raw(text): return [Ins(l.strip()) if not l.strip().endswith(":") else l.strip() for l in text.split("\n") if l.strip()]
def emit(S, x):
    if callable(x): x()
    elif isinstance(x, tuple): S(*x)
    else: S(x)

SX, SWQ, SK, SV, SWO, SWS, SOUT, SDBG = 8, 12, 16, 20, 24, 28, 32, 36
def srd(n): return f"s[{n}:{n+3}]"
S_BLK, S_KQ, S_B, S_P, S_H0, S_W, S_NONCE, S_C = 40, 41, 42, 43, 44, 45, 46, 47

R_K0, R_K1, R_V0, R_WA, R_V1, R_U = 9, 10, 11, 12, 13, 14
F_QK0, F_QK1, F_PV0, F_O0, F_PV1, F_O1 = 10, 11, 12, 13, 15, 16
F_OI, F_DX = 18, 21
FU = {1: 14, 2: 17, 4: 19, 8: 20}
WSET = {"WA": (0, 1), "WB": (2, 3, 4, 5, 6), "WC": (7, 8), "WD": (9, 10, 11, 12, 13), "WE": (14, 15, 16, 17)}
def c_events(cfg):
    pos = {"WB": 12, "WC": 52, "WD": 68, "WE": 8 * min(14, cfg.merge) - 4}
    for k, x in enumerate(cfg.opos.split(",")): pos[f"OP{k}"] = int(x)
    ev = {n: (R_U + i, pos[n]) for i, n in enumerate(sorted(pos, key=lambda n: pos[n]))}
    ev["WA"] = (R_WA, -12)
    return ev

class Cfg:
    pol_x = ""; pol_wq = ""; pol_kv = "nt"; pol_wo = ""
    stop = None
    stamps = False; real = False; adetail = False; cdetail = 0
    ngrp = 3; rotp = 1; rotk = 3
    k0pos = 1; k0cls = 4; kvwait = 4
    codepf = True
    order = "blk"
    flag0 = -5; flag0b = 4; o1pos = 34; flag1 = 44; flag1b = 60; dxpos = 56
    amp = -1; ampw = 0
    probe_ahead = 8
    free_delay = 7
    trace = False
    fpos = "11,15,62,68"
    mst = ""
    prog2 = ""
    defer = 12
    dot2 = True
    wprio2 = 0
    dbg = ""
    spoll = True
    blead = 7
    pk = False
    pol_out = ""
    pre = 0
    post = 0
    align = 0
    dxgo = 96
    opos = "26,27,86,98"
    ostep = 2
    pol_o = "sc1"
    pfilter = ""
    o1end = 10
    merge = 15
    dxsleep = 8
    akv = "0:1:4,1:3:4:2"
    o1len = 12
    ptrace = False
    early0 = 72
    warmpos = -1
    k1pos = -1
    warmrot = 3
    wprio = 0
    bargap = 4
    abar = True
    cbar = 6
    nocheck = False
    nofree = False
    alead = 4
    nodma = False
    lprio = 3
    lsleep = 5
    wake = True
    gwait = True
    early = False
    trace_from = 0

def stamp(S, cfg, idx, det=False):
    if not cfg.stamps: return
    if (cfg.cdetail or cfg.adetail) and idx not in (0, 13) and not det: return
    S(f"{'s_memrealtime' if cfg.real else 's_memtime'} s[78:79]")
    S("s_waitcnt lgkmcnt(0)")
    S(f"s_mov_b32 s{80+idx}, s78")

SITES = []
def trace_raw(cfg, who, ident):
    if not cfg.trace or len(SITES) >= 128: return ""
    if cfg.ptrace and not isinstance(ident, str): return ""
    k = len(SITES); SITES.append(ident)
    return f"{'s_memrealtime' if cfg.real else 's_memtime'} s[78:79]\ns_waitcnt lgkmcnt(0)\nv_writelane_b32 v{250 + (k >> 6)}, s78, {k & 63}\n"
def stamps_store(S, cfg):
    if not cfg.stamps: return
    S("s_memrealtime s[78:79]\ns_waitcnt lgkmcnt(0)\ns_mov_b32 s95, s78")
    stamp(S, cfg, 13)
    S(f"s_lshl_b32 s66, s2, 3\ns_add_u32 s66, s66, s3\ns_lshl_b32 s66, s66, 6\ns_add_u32 s66, s66, {WS_STAMP}")
    S("v_mov_b32 v2, 0")
    S("s_mov_b64 exec, 1")
    for i in range(16):
        S(f"v_mov_b32 v3, s{80+i}")
        S(f"buffer_store_dword v3, v2, {srd(SWS)}, s66 offen offset:{4*i}")
    S("s_mov_b64 exec, -1")

def prologue(S, cfg):
    S(f"""s_cmp_ge_u32 s2, 256
    s_cbranch_scc1 L_end
    s_bfe_u32 s{S_BLK}, s2, 0x10002
    s_mul_i32 s66, s{S_BLK}, 40
    s_add_u32 s4, s0, s66
    s_addc_u32 s5, s1, 0
    s_load_dwordx8 s[48:55], s[4:5], 0""")
    if cfg.stamps:
        S(f"s_memrealtime s[6:7]\n{'s_memrealtime' if cfg.real else 's_memtime'} s[92:93]")
    S(f"""v_lshrrev_b32 v2, 6, v0
    v_and_b32 v1, 63, v0
    s_load_dwordx2 s[56:57], s[4:5], 32
    v_readfirstlane_b32 s3, v2
    s_load_dwordx4 s[60:63], s[0:1], 80
    s_load_dwordx2 s[64:65], s[0:1], 96
    s_and_b32 s{S_KQ}, s2, 3
    s_bfe_u32 s{S_B}, s2, 0x30003
    s_lshr_b32 s{S_P}, s2, 6
    s_lshl2_add_u32 s{S_H0}, s{S_KQ}, s{S_P}
    s_lshl_b32 s{S_H0}, s{S_H0}, 1
    s_and_b32 s{S_W}, s3, 3
    s_cmp_lt_u32 s3, 4
    s_cbranch_scc1 L_compute""")
def first_stamps(S, cfg):
    if cfg.stamps:
        S("s_mov_b32 s80, s92\ns_mov_b32 s94, s6")
        for i in range(1, 14): S(f"s_mov_b32 s{80+i}, 0")
SRD_SIZE = {SX: 1179648, SWQ: 4718592, SK: 8388608, SV: 8388608, SWO: 4718592, SWS: WS_SIZE, SOUT: 2359296, SDBG: 256}
def srd_consts(S, which):
    for d in which: S(f"s_mov_b32 s{d+2}, {SRD_SIZE[d]}\ns_mov_b32 s{d+3}, 0x20000")
def srd_bases(S, which):
    for d, p in ((SX, 48), (SWQ, 54), (SK, 50), (SV, 52), (SWO, 56), (SWS, 64), (SOUT, 60), (SDBG, 62)):
        if d in which: S(f"s_mov_b32 s{d}, s{p}\ns_and_b32 s{d+1}, s{p+1}, 0xffff")

def nonce_issue(S, vt, vz):
    S(f"buffer_load_dword v{vt}, v{vz}, {srd(SDBG)}, 0 offen sc1")
def nonce_check(S, vt, vz, lab):
    S(f"v_readfirstlane_b32 s{S_NONCE}, v{vt}")
    S(f"s_cmp_eq_u32 s{S_NONCE}, 0\ns_cbranch_scc1 {lab}")
    S.label(f"{lab}_ok")
    S.cold += _raw(f"""{lab}:
    s_mov_b32 s77, {SPIN_LIMIT}
    {lab}_spin:
    buffer_load_dword v{vt}, v{vz}, {srd(SDBG)}, 0 offen sc1
    s_waitcnt vmcnt(0)
    v_readfirstlane_b32 s{S_NONCE}, v{vt}
    s_nop 4
    s_cmp_lg_u32 s{S_NONCE}, 0
    s_cbranch_scc1 {lab}_ok
    s_sleep 2
    s_sub_u32 s77, s77, 1
    s_cmp_lg_u32 s77, 0
    s_cbranch_scc1 {lab}_spin
    s_branch {lab}_ok""")

def swar(s, need):
    return [f"s_or_b32 s{s}, s{s}, 0x80808080", f"s_sub_u32 s{s}, s{s}, {need * 0x01010101}", f"s_andn2_b32 s{s}, 0x80808080, s{s}", f"s_cmp_eq_u32 s{s}, 0"]
def spin_block(lab, back, vt, vz, off, sreg, need, sleep):
    return _raw(f"""{lab}:
    s_mov_b32 s77, {SPIN_LIMIT}
    {lab}_spin:
    ds_read_b32 v{vt}, v{vz} offset:{off}
    s_waitcnt lgkmcnt(0)
    v_readfirstlane_b32 s{sreg}, v{vt}
    s_nop 3
    """ + "\n".join(swar(sreg, need)) + f"""
    s_cbranch_scc1 {back}
    {'s_sleep ' + str(sleep) if sleep else ''}
    s_sub_u32 s77, s77, 1
    s_cmp_lg_u32 s77, 0
    s_cbranch_scc1 {lab}_spin
    s_branch {back}""")

def c_units():
    u = [("M", 0, 0), ("M", 0, 1), ("E", 0, 0), ("M", 1, 0), ("M", 1, 1), ("E", 1, 0)]
    for hh in (0, 1):
        for ii in range(6): u.append(("P", hh, ii))
    return u
def c_slots():
    sl = [(0, F_QK0), (1, F_QK0), (8, 9), (2, F_QK1), (3, F_QK1), (4, F_PV0), (5, F_PV0), (0, FU[1]), (1, FU[1]),
          (6, F_PV1), (7, F_PV1), (8, FU[2]), (2, FU[4]), (3, FU[4]), (4, FU[8]), (5, FU[8]), (0, FU[8]), (1, FU[8])]
    return {("W", j): sl[j] for j in range(18)}

def pack(dst, src):
    return [f"v_cvt_pk_bf16_f32 v{dst+8*s+4*u+2*e+x}, v{src+8*(2*s+e)+4*u+2*x}, v{src+8*(2*s+e)+4*u+2*x+1}" for s in range(4) for u in range(2) for e in range(2) for x in range(2)]
PAY = [0, 1, 2, 4, 5, 6, 8, 9]

def loader(S, cfg):
    VXO, VWO, VKV, VKW, VVW, VMO, VEO, VOO, VFL, VWW, VN, VZ, VP0, VPA, VT = 4, 5, 6, 7, 8, 9, 10, 11, 12, 13, 14, 15, 16, 18, 19
    KVREG = [24, 56, 88, 120]
    sXb, sWb, sCC, sM, sMo, sT, sKV0, sKV1, sA = 66, 67, 68, 69, 70, 71, 72, 73, 75
    sWP, sOP = [65, 96, 97, 98], [62, 99, 100, 101]
    S(f"""s_lshl_b32 s{sT}, s{S_W}, 2
    v_and_b32 v2, 0x38, v1
    v_lshl_add_u32 v2, v2, 1, s{sT}
    v_mul_u32_u24 v3, 1152, v2
    v_and_b32 v20, 7, v1
    v_lshl_add_u32 v{VXO}, v20, 4, v3
    s_lshl_b32 s76, s{S_W}, 3
    s_lshl1_add_u32 s76, s{S_W}, s76
    s_and_b32 s76, s76, 12
    v_and_b32 v2, 32, v1
    v_lshlrev_b32 v2, 12, v2
    v_and_b32 v20, 31, v1
    v_lshl_add_u32 v{VWO}, v20, 4, v2
    s_lshl_b32 s76, s76, 13
    s_mul_i32 s{sM}, s{sT}, {PITCH}
    s_lshl_b32 s75, s{S_H0}, 8
    s_add_u32 s75, s75, s76""")
    n = cfg.ngrp
    if cfg.order == "rot": orders = [[(round(9 * g / n) + c) % 9 for c in range(9)] for g in range(n)]
    else: orders = [[(c // n) * n + (c + g) % n if (c // n + 1) * n <= 9 else c for c in range(9)] for g in range(n)]
    tabs = [sum(x << (4 * i) for i, x in enumerate(o)) for o in orders]
    gtab = sum((i % n) << (2 * i) for i in range(16))
    S(f"""s_mul_i32 s76, s{S_P}, {cfg.rotp}
    s_add_u32 s76, s76, s{S_B}
    s_and_b32 s77, s{S_KQ}, {cfg.rotk}
    s_add_u32 s76, s76, s77
    s_lshl_b32 s76, s76, 1
    s_lshr_b32 s76, {gtab}, s76
    s_and_b32 s76, s76, 3
    s_mov_b32 s58, {tabs[0] & 0xffffffff}
    s_mov_b32 s59, {tabs[0] >> 32}""")
    for g in range(1, n):
        S(f"s_cmp_eq_u32 s76, {g}\ns_cselect_b32 s58, {tabs[g] & 0xffffffff}, s58\ns_cselect_b32 s59, {tabs[g] >> 32}, s59")
    S(f"s_mul_i32 s74, s{S_B}, 147456")
    srd_consts(S, (SX, SWQ))
    S("s_waitcnt lgkmcnt(0)")
    srd_bases(S, (SX, SWQ))
    def chunk(c, mid=None):
        base = slot((c % 3) * 3)
        S(f"""s_and_b32 s{sCC}, s58, 15
        s_lshr_b64 s[58:59], s[58:59], 4
        s_lshl_b32 s{sXb}, s{sCC}, 7
        s_add_u32 s{sXb}, s{sXb}, s74
        s_lshl_b32 s{sWb}, s{sCC}, 19
        s_add_u32 s{sWb}, s{sWb}, s75""")
        for i in range(4):
            S(f"s_add_u32 m0, s{sM}, {base + i*(PITCH-1152)}")
            S(f"buffer_load_dwordx4 v{VXO}, {srd(SX)}, s{sXb} offen offset:{i*1152} {cfg.pol_x} lds", tag=f"ch{c}")
        if mid: mid()
        for st in range(2):
            for i in range(4):
                S(f"s_add_u32 m0, s{sM}, {base + SLOT*(1+st) + i*PITCH}\ns_add_u32 s{sT}, s{sWb}, {(32*st+i)*8192}")
                S(f"buffer_load_dwordx4 v{VWO}, {srd(SWQ)}, s{sT} offen {cfg.pol_wq} lds", tag=f"ch{c}")
    def kv_lines(m):
        sr = SK if m < 2 else SV
        sb = sKV0 if m % 2 == 0 else sKV1
        o = [f"s_add_u32 s{sT}, s{sb}, 4096"]
        for j in range(8):
            o.append((f"buffer_load_dwordx4 {vr(KVREG[m]+4*j,4)}, v{VKV}, {srd(sr)}, s{sb if j < 4 else sT} offen offset:{(j&3)*1024} {cfg.pol_kv}", f"kv{m}"))
        return o
    def kv_load(m):
        for x in kv_lines(m): emit(S, x)
    def v_dma(m, sl):
        sb = sKV0 if m % 2 == 0 else sKV1
        S(f"""v_lshrrev_b32 v2, 4, v1
        v_lshlrev_b32 v2, 13, v2
        v_and_b32 v3, 15, v1
        v_lshl_add_u32 v2, v3, 4, v2
        s_lshl_b32 s76, s{S_W}, 11
        s_add_u32 s{sT}, s{sb}, s76
        s_lshl_b32 s76, s{sM}, 1""")
        for j in range(8):
            S(f"s_add_u32 m0, s76, {slot(sl) + j*(PITCH-256)}")
            S(f"buffer_load_dwordx4 v2, {srd(SV)}, s{sT} offen offset:{j*256} {cfg.pol_kv} lds", tag=f"kv{m}")
    def cond(lab, cls, mask, lines, pre=""):
        S(f"s_and_b32 s76, s{S_B}, {mask}\ns_cmp_lg_u32 s76, {cls}\ns_cbranch_scc1 {lab}")
        S.out += _raw(pre + "\n".join(x[0] if isinstance(x, tuple) else x for x in lines))
        S.label(lab)
    def kv_load_if(m, cls, ncls, pre=""):
        cond(f"L_kv{m}_{cls}", cls, ncls - 1, kv_lines(m), pre)
        if cls == ncls - 1: S.phantom([f"v{KVREG[m]+i}" for i in range(32)], f"kv{m}")
    def warm_lines():
        return f"""s_lshl_b32 s76, s{S_KQ}, 3
        s_add_u32 s76, s76, s{S_B}
        s_lshl_b32 s76, s76, 2
        s_add_u32 s76, s76, s{S_W}
        s_mul_i32 s76, s76, {32*1152}
        s_lshl_b32 s77, s{S_P}, 8
        s_add_u32 s76, s76, s77
        v_lshrrev_b32 v20, 1, v1
        v_mul_u32_u24 v20, 1152, v20
        v_and_b32 v3, 1, v1
        v_lshl_add_u32 v20, v3, 7, v20
        buffer_load_dword v22, v20, {srd(SWO)}, s76 offen {cfg.pol_wo}
        s_lshl_b32 s76, s{S_B}, 2
        s_add_u32 s76, s76, s{S_W}
        s_mul_i32 s76, s76, {8*1152}
        s_add_u32 s76, s76, s64
        v_and_b32 v21, 7, v1
        v_mul_u32_u24 v21, 1152, v21
        buffer_load_dword v23, v21, {srd(SWO)}, s76 offen offset:1024 {cfg.pol_wo}""".split("\n")
    def kv_write(m, sl):
        S.wait_vm_tag(f"kv{m}")
        S(f"s_setprio {cfg.wprio}")
        if "nolw" in cfg.dbg: return
        if m < 2:
            for j in range(8):
                S(f"v_add_u32 v2, {slot(sl) + j*4*PITCH}, v{VKW}")
                S(f"ds_write2_b64 v2, {vr(KVREG[m]+4*j,2)}, {vr(KVREG[m]+4*j+2,2)} offset0:0 offset1:2")
        else:
            S(f"v_add_u32 v2, {slot(sl)}, v{VVW}")
            for j in range(8):
                S(f"ds_write_b128 v2, {vr(KVREG[m]+4*j,4)} offset:{j*4*PITCH}")
    known = [0]; last_pub = [0]
    def wait_free(f, early=None):
        if f <= known[0]: return
        known[0] = f
        if cfg.nofree:
            S("s_sleep 5"); return
        lab = f"L_wf{f}"
        S.wait_lg(0)
        if cfg.trace and f >= cfg.trace_from: S(trace_raw(cfg, "loader", 100 + f))
        S(f"s_setprio {cfg.lprio}\nds_read_b32 v{VT}, v{VZ} offset:4\nv_readfirstlane_b32 s76, v{VT}")
        for x in swar(76, f): S(x)
        S(f"s_cbranch_scc0 {lab}")
        S.label(lab + "_ok")
        S("s_setprio 0")
        if cfg.trace and f >= cfg.trace_from: S(trace_raw(cfg, "loader", 200 + f))
        blk = spin_block(lab, lab + "_ok", VT, VZ, 4, 76, f, cfg.lsleep)
        if early and cfg.early: blk = blk[:1] + _raw(f"s_waitcnt vmcnt(0)\ns_mov_b32 s63, {early}\nv_mov_b32 v{VT}, {early}\nds_write_b8 v{VPA}, v{VT}\n" + (trace_raw(cfg, "loader", 400 + early) if f >= cfg.trace_from else "")) + blk[1:]
        S.cold += blk
    def publish(r):
        last_pub[0] = r
        S.wait_lg(0)
        S(f"s_setprio {cfg.lprio}\nv_mov_b32 v{VT}, {r}\nds_write_b8 v{VPA}, v{VT}\ns_setprio 0")
        if cfg.trace and known[0] >= cfg.trace_from: S(trace_raw(cfg, "loader", 300 + r))
        if cfg.adetail and r <= 12: stamp(S, cfg, r, True)
        if cfg.cdetail > 0 and 0 <= r - R_U < 12: stamp(S, cfg, 1 + r - R_U, True)
    chunk(0)
    first_stamps(S, cfg)
    stamp(S, cfg, 1)
    srd_consts(S, (SK, SV, SWO, SWS, SOUT, SDBG))
    srd_bases(S, (SK, SV, SWO, SWS, SOUT, SDBG))
    S(f"s_add_u32 s50, s64, {WS_FLAG}\ns_addc_u32 s51, s65, 0")
    if cfg.trace: S("s_mov_b32 s92, 0\nv_mov_b32 v250, 0\nv_mov_b32 v251, 0")
    if cfg.codepf:
        S(f"""s_getpc_b64 s[76:77]
        L_pc:
        s_lshr_b32 s{sT}, s2, 3
        s_lshl_b32 s{sT}, s{sT}, 2
        s_add_u32 s{sT}, s{sT}, s{S_W}
        s_mul_i32 s{sT}, s{sT}, 3
        v_min_u32 v2, 2, v1
        v_add_u32 v2, s{sT}, v2
        v_lshlrev_b32 v2, 7, v2
        v_min_u32 v2, L_end-L_pc, v2
        global_load_dword v23, v2, s[76:77]""")
    S(f"""v_mov_b32 v{VZ}, 0
    v_mov_b32 v20, 0
    v_mov_b32 v21, 0
    v_lshlrev_b32 v3, 3, v1
    ds_write_b64 v3, v[20:21]
    v_lshl_add_u32 v{VPA}, v1, 2, 64
    v_writelane_b32 v{VPA}, s{S_W}, 0
    v_add_u32 v{VEO}, 1024, v{VXO}
    s_lshl_b32 s76, s{S_W}, 13
    v_lshlrev_b32 v{VOO}, 4, v1
    v_add_u32 v{VKV}, s76, v{VOO}
    v_add_u32 v{VWW}, s{sM}, v{VOO}
    s_lshl_b32 s{sKV0}, s{S_B}, 5
    s_add_u32 s{sKV0}, s{sKV0}, s{S_H0}
    s_lshl_b32 s{sKV0}, s{sKV0}, 15
    s_add_u32 s{sKV1}, s{sKV0}, 32768
    v_lshrrev_b32 v2, 4, v1
    v_mul_u32_u24 v20, {PITCH}, v2
    s_lshl_b32 s76, s{S_W}, 8
    v_add_u32 v20, s76, v20
    v_and_b32 v3, 15, v1
    v_lshl_add_u32 v{VVW}, v3, 4, v20
    v_bfe_u32 v3, v1, 2, 2
    v_lshl_add_u32 v20, v3, 6, v20
    v_and_b32 v3, 1, v1
    v_lshl_add_u32 v20, v3, 5, v20
    v_bfe_u32 v3, v1, 1, 1
    v_lshl_add_u32 v{VKW}, v3, 3, v20""")
    S.wait_vm(9 if cfg.codepf else 8)
    chunk(1)
    S.wait_vm_tag("ch0"); S.wait_lg(0)
    stamp(S, cfg, 2)
    S("s_barrier")
    def pubch(c):
        S.wait_vm_tag(f"ch{c}"); publish(c)
    chunk(2, None if cfg.abar else (lambda: pubch(1)))
    S(f"""v_lshlrev_b32 v2, 4, v2
    s_lshl_b32 s76, s{S_W}, 2
    v_add_u32 v2, s76, v2
    v_mul_u32_u24 v2, 1152, v2
    s_lshl_b32 s76, s{S_KQ}, 6
    v_add_u32 v3, s76, v{VOO}
    v_and_b32 v3, 0xff, v3
    v_add_u32 v{VMO}, v2, v3
    v_min_u32 v2, 2, v1
    v_add3_u32 v2, v2, s{S_P}, 1
    v_and_b32 v2, 3, v2
    v_lshlrev_b32 v2, 6, v2
    s_and_b32 s76, s2, 63
    v_add_u32 v2, s76, v2
    v_lshlrev_b32 v2, 2, v2
    v_add_u32 v2, s{S_W}, v2
    v_lshlrev_b32 v{VFL}, 8, v2
    s_lshl_b32 s{sMo}, s{S_W}, 12""")
    for pi in range(4):
        d = sWP[pi]
        S(f"""s_add_u32 s76, s{S_P}, {pi}
        s_and_b32 s76, s76, 3
        s_lshl_b32 s77, s{S_KQ}, 2
        s_add_u32 s77, s77, s76
        s_mul_i32 s77, s77, {256*1152}
        s_lshl_b32 s{d}, s{S_P}, 8
        s_add_u32 s{d}, s{d}, s77""")
        if pi == 0: S("s_mov_b32 s64, s77")
        if True:
            S(f"""s_lshl_b32 s76, s76, 6
            s_and_b32 s77, s2, 63
            s_add_u32 s76, s76, s77
            s_lshl_b32 s76, s76, 2
            s_add_u32 s76, s76, s{S_W}
            s_lshl_b32 s{sOP[pi]}, s76, 14""")
            if pi: S(f"s_lshl_b32 s{54+pi}, s76, 8")
    for c in range(1, 7):
        if cfg.abar:
            S.wait_vm_tag(f"ch{c}"); stamp(S, cfg, c, cfg.adetail) if cfg.adetail else None; S("s_barrier"); known[0] = c
        else:
            wait_free(c, c + 1)
            pubch(c + 1)
        if c == 4: nonce_issue(S, VN, VZ)
        if not cfg.nodma: chunk(c + 2)
        for item in cfg.akv.split(","):
            what, first, ncls, rot = (item.split(":") + ["0"])[:4]
            first, ncls, rot = int(first), int(ncls), int(rot)
            if not 0 <= c - first < ncls: continue
            cond(f"L_a{what}_{c}", (c - first + rot) % ncls, ncls - 1, warm_lines() if what == "w" else kv_lines(int(what)), f"s_waitcnt vmcnt({cfg.kvwait})\n")
            if what != "w" and c - first == ncls - 1: S.phantom([f"v{KVREG[int(what)]+i}" for i in range(32)], f"kv{what}")
    nonce_check(S, VN, VZ, "L_ln")
    units, slots = c_units(), c_slots()
    def w_src(j):
        uk, hh, x = units[j]
        if uk == "M": return VMO, 65, (hh * 128 + 64 * x) * 1152
        if uk == "E": return VEO, 64, hh * 128 * 1152
        return VMO, sWP[1 + x % 3], (hh * 128 + 64 * (x // 3)) * 1152
    blocks = [152 + 16 * i for i in range(6)]
    parked = {}
    def w_load(j):
        va, sb, off = w_src(j)
        S(f"s_add_u32 s{sA}, s{sb}, {off}")
        if slots[("W", j)][1] <= known[0]:
            lds_w.add(j)
            for i in range(4):
                S(f"s_add_u32 m0, s{sM}, {slot(slots[('W', j)][0]) + i*(PITCH-1152)}")
                S(f"buffer_load_dwordx4 v{va}, {srd(SWO)}, s{sA} offen offset:{i*1152} {cfg.pol_wo} lds", tag=f"u{j}")
        else:
            parked[j] = blocks.pop(0)
            for i in range(4 if "nopark" not in cfg.dbg else 0):
                S(f"buffer_load_dwordx4 {vr(parked[j]+4*i,4)}, v{va}, {srd(SWO)}, s{sA} offen offset:{i*1152} {cfg.pol_wo}", tag=f"u{j}w")
    lds_w = set()
    def w_write(j):
        wait_free(slots[("W", j)][1])
        lds_w.add(j)
        S.wait_vm_tag(f"u{j}w")
        S(f"s_setprio {cfg.wprio if j < 7 else cfg.wprio2}\nv_add_u32 v2, {slot(slots[('W', j)][0])}, v{VWW}")
        for i in range(4 if not ("now" in cfg.dbg and j > 6 or "nolw" in cfg.dbg) else 0): S(f"ds_write_b128 v2, {vr(parked[j]+4*i,4)} offset:{i*PITCH}")
        S.wait_lg(0)
        S("s_setprio 0")
        blocks.append(parked.pop(j))
    def warm():
        for x in warm_lines(): S(x)
    issued, polled = set(), set()
    EV = c_events(cfg)
    def poll_issue(hh):
        issued.add(hh)
        S(f"s_mov_b32 s76, {WS_FLAG}")
        S(f"buffer_load_dword v{VP0 + (hh & 1)}, v{VFL}, {srd(SWS)}, s76 offen offset:{64*hh} sc1")
    def poll(hh):
        lab = f"L_poll{hh}"
        polled.add(hh)
        if "nopoll" in cfg.dbg: return
        if cfg.spoll:
            S.wait_lg(0)
            S(f"s_mov_b32 s77, {SPIN_LIMIT}")
            S.label(lab)
            S.out += _raw("\n".join(f"s_load_dword s{52+i}, s[50:51], s{55+i} offset:{64*hh} glc" for i in range(3)) + f"""
            s_waitcnt lgkmcnt(0)
            s_xor_b32 s52, s52, s{S_NONCE}
            s_xor_b32 s53, s53, s{S_NONCE}
            s_xor_b32 s54, s54, s{S_NONCE}
            s_or_b32 s52, s52, s53
            s_or_b32 s52, s52, s54
            s_cbranch_scc0 {lab}_ok
            s_sub_u32 s77, s77, 1
            s_cmp_lg_u32 s77, 0
            s_cbranch_scc1 {lab}""")
            S.label(f"{lab}_ok")
            return
        if hh not in issued: poll_issue(hh)
        v = VP0 + (hh & 1)
        S(f"v_cmp_eq_u32 vcc, s{S_NONCE}, v{v}")
        S(f"s_cmp_eq_u64 vcc, -1\ns_cbranch_scc0 {lab}")
        S.label(f"{lab}_ok")
        S.cold += _raw(f"""{lab}:
        s_mov_b32 s76, {WS_FLAG}
        s_mov_b32 s77, {SPIN_LIMIT}
        {lab}_spin:
        buffer_load_dword v{v}, v{VFL}, {srd(SWS)}, s76 offen offset:{64*hh} sc1
        s_waitcnt vmcnt(0)
        v_cmp_eq_u32 vcc, s{S_NONCE}, v{v}
        s_nop 1
        s_cmp_eq_u64 vcc, -1
        s_cbranch_scc1 {lab}_ok
        s_sub_u32 s77, s77, 1
        s_cmp_lg_u32 s77, 0
        s_cbranch_scc1 {lab}_spin
        s_branch {lab}_ok""")
    oreg, picked = {}, set()
    def pickup(h):
        wait_free((F_O0, F_O1)[h])
        S(f"s_setprio {cfg.lprio}\nv_add_u32 v2, {slot(2 - 2*h)}, v{VWW}")
        for x in range(2):
            oreg[2*h + x] = blocks.pop(0)
            for i in range(4): S(f"ds_read_b128 {vr(oreg[2*h+x] + 4*i, 4)}, v2 offset:{x*SLOT + i*1024}")
        S.wait_lg(0)
        S("s_setprio 0")
        picked.add(h)
    def o_store(k):
        if "nost" in cfg.dbg: return
        S(f"s_add_u32 s{sA}, s{sOP[0]}, {WS_O + k*4096}")
        for i in range(4):
            S(f"buffer_store_dwordx4 {vr(oreg[k] + 4*i, 4)}, v{VOO}, {srd(SWS)}, s{sA} offen offset:{i*1024} sc1", tag=f"o{k}")
    def o_flag(k):
        S.wait_vm_tag(f"o{k}")
        S(f"""s_lshr_b32 s76, s{sOP[0]}, 6
        s_add_u32 s76, s76, {WS_FLAG + 64*k}
        v_mov_b32 v3, s{S_NONCE}
        buffer_store_dword v3, v{VZ}, {srd(SWS)}, s76 offen sc1""")
        blocks.append(oreg.pop(k))
    def kv_duty(m, sl, f, r):
        wait_free(f); kv_write(m, sl); publish(r)
        blocks.extend([KVREG[m], KVREG[m] + 16])
    if cfg.prog2:
        S(f"s_and_b32 s76, s{S_B}, 1\ns_cmp_lg_u32 s76, 0\ns_cbranch_scc1 L_fork_c1")
        S.label("L_fork")
        S.ncold = len(S.cold)
    prog = PROGS[S.progname].split()
    if cfg.stop == "A": prog = ["bA7", "bA8"] if cfg.abar else ["p8"]
    if cfg.stop == "B": prog = [x for x in prog if x[0] in "KVpPS" or x[:2] in ("wK", "wV", "bA")]
    for op in prog:
        if cfg.ptrace and (not cfg.pfilter or op in cfg.pfilter.split(",")): S(trace_raw(cfg, "loader", op))
        if op in ("K1", "V0", "V1"): kv_load({"K1": 1, "V0": 2, "V1": 3}[op])
        elif "@" in op: kv_load_if({"K1": 1, "V0": 2, "V1": 3}[op[:2]], int(op[3]), 2)
        elif op in ("D0", "D1"):
            m = 2 + int(op[1]); wait_free(8 + int(op[1])); v_dma(m, 4 + 2 * int(op[1])); blocks.extend([KVREG[m], KVREG[m] + 16])
        elif op in ("pV0", "pV1"):
            S.wait_vm_tag(f"kv{2 + int(op[2])}"); publish((R_V0, R_V1)[int(op[2])])
        elif op == "warm": warm()
        elif op == "p8": S.wait_vm_tag("ch8"); publish(8)
        elif op[0] == "b":
            j = int(op[2:])
            S.wait_vm_tag(f"ch{j}"); known[0] = j
            S.wait_lg(0)
            if cfg.adetail: stamp(S, cfg, j, True)
            S("s_barrier")
        elif op == "wK0": kv_duty(0, 0, 7, R_K0)
        elif op == "wK1": kv_duty(1, 2, 8, R_K1)
        elif op == "wV0": kv_duty(2, 4, 8, R_V0)
        elif op == "wV1": kv_duty(3, 6, 9, R_V1)
        elif op[0] == "W": w_load(int(op[1:]))
        elif op[0] == "w": w_write(int(op[1:]))
        elif op[0] == "f": wait_free(int(op[1:]))
        elif op[0] == "q": poll(int(op[1:]))
        elif op[0] == "Q": poll_issue(int(op[1:]))
        elif op[0] == "P": pickup(int(op[1:]))
        elif op[0] == "S": o_store(int(op[1:]))
        elif op[0] == "G": o_flag(int(op[1:]))
        elif op[0] == "z": S(f"s_sleep {op[1:]}")
        elif op[0] == "R":
            name = op[1:]
            if name in WSET:
                for j in WSET[name]:
                    if j in parked: w_write(j)
                    assert j in lds_w
                    S.wait_vm_tag(f"u{j}")
            else: assert int(name[2]) in polled
            assert EV[name][0] == last_pub[0] + 1, (name, EV, last_pub)
            publish(EV[name][0])
        else: raise ValueError(op)
    stamp(S, cfg, 3)
    if cfg.trace:
        S(f"s_lshl_b32 s66, s2, 2\ns_add_u32 s66, s66, s{S_W}\ns_lshl_b32 s66, s66, 9\ns_add_u32 s66, s66, {WS_STAMP + (1 << 20)}\nv_lshlrev_b32 v2, 2, v1")
        S(f"buffer_store_dword v250, v2, {srd(SWS)}, s66 offen\nbuffer_store_dword v251, v2, {srd(SWS)}, s66 offen offset:256")
    if cfg.stop:
        S.wait_vm(0); stamps_store(S, cfg); S("s_branch L_end"); return
    S(f"s_cmp_lg_u32 s{S_W}, 0\ns_cbranch_scc1 L_lfin")
    R = 64
    S(f"""v_and_b32 v2, 7, v1
    v_bfe_u32 v3, v1, 3, 2
    v_lshl_add_u32 v2, v3, 4, v2
    s_and_b32 s76, s{S_P}, 1
    s_lshl_b32 s76, s76, 3
    v_add_u32 v2, s76, v2
    v_lshlrev_b32 v2, 4, v2
    v_lshrrev_b32 v3, 5, v1
    v_lshl_add_u32 v4, v3, 14, v2
    s_lshl_b32 s{sA}, s{S_BLK}, 3
    s_add_u32 s{sA}, s{sA}, s{S_B}
    s_lshl_b32 s{sA}, s{sA}, 6
    s_add_u32 s{sA}, s{sA}, s{S_KQ}
    s_lshl_b32 s{sA}, s{sA}, 1
    s_lshr_b32 s76, s{S_P}, 1
    s_add_u32 s{sA}, s{sA}, s76
    s_lshl_b32 s{sA}, s{sA}, 11
    s_add_u32 s{sA}, s{sA}, {WS_DX}
    s_and_b32 s72, s{S_NONCE}, 1
    s_lshl_b32 s73, s{S_NONCE}, 15
    s_and_b32 s73, s73, 0x10000
    s_or_b32 s72, s72, s73
    v_mov_b32 v8, 0x10001
""")
    wait_free(F_DX)
    S(f"s_mov_b32 s77, {SPIN_LIMIT}")
    S.label("L_dx")
    for r in range(8):
        S(f"s_add_u32 s{sT}, s{sA}, {r*2*16384}")
        for gm in range(2):
            S(f"buffer_load_dwordx4 {vr(R+8*r+4*gm,4)}, v4, {srd(SWS)}, s{sT} offen offset:{gm*1024} sc1")
    S(f"v_xor_b32 v5, s72, v{R}")
    for i in range(1, 64): S(f"v_bitop3_b32 v5, v5, v{R+i}, s72 bitop3:0xf6")
    S("v_and_b32 v5, v5, v8\nv_cmp_eq_u32 vcc, 0, v5\ns_cmp_eq_u64 vcc, -1\ns_cbranch_scc1 L_dx_ok")
    S("s_sleep 4\ns_sub_u32 s77, s77, 1\ns_cmp_lg_u32 s77, 0\ns_cbranch_scc1 L_dx")
    S.label("L_dx_ok")
    AC = 24
    for r in range(8):
        for d in range(8):
            src = R + 8 * r + d
            if r == 0:
                S(f"v_lshlrev_b32 v{AC+2*d}, 16, v{src}\nv_and_b32 v{AC+2*d+1}, 0xffff0000, v{src}")
            else:
                S(f"v_lshlrev_b32 v6, 16, v{src}\nv_and_b32 v7, 0xffff0000, v{src}\nv_add_f32 v{AC+2*d}, v{AC+2*d}, v6\nv_add_f32 v{AC+2*d+1}, v{AC+2*d+1}, v7")
    for i in range(8): S(f"v_permlane32_swap_b32 v{AC+i}, v{AC+8+i}")
    for i in range(8): S(f"v_add_f32 v{AC+i}, v{AC+i}, v{AC+8+i}")
    for i in range(4): S(f"v_cvt_pk_bf16_f32 v{44+i}, v{AC+2*i}, v{AC+2*i+1}")
    S(f"""v_and_b32 v2, 7, v1
    s_lshl_b32 s76, s{S_B}, 7
    s_lshl_b32 s77, s{S_KQ}, 5
    s_add_u32 s76, s76, s77
    s_lshl_b32 s77, s{S_P}, 3
    s_add_u32 s76, s76, s77
    v_add_u32 v2, s76, v2
    v_mul_u32_u24 v2, 2304, v2
    v_bfe_u32 v3, v1, 3, 2
    v_lshl_add_u32 v2, v3, 3, v2
    v_lshrrev_b32 v3, 5, v1
    v_lshl_add_u32 v2, v3, 6, v2
    s_mul_i32 s76, s{S_BLK}, 1152
    s_add_u32 s76, s76, 1024
    buffer_store_dwordx2 v[44:45], v2, {srd(SOUT)}, s76 offen {cfg.pol_out}
    buffer_store_dwordx2 v[46:47], v2, {srd(SOUT)}, s76 offen offset:32 {cfg.pol_out}""")
    S.label("L_lfin")
    if cfg.stamps: S("s_waitcnt vmcnt(0)")
    stamps_store(S, cfg)
    S("s_branch L_end")

def compute(S, cfg):
    VX, VW = [4, 5, 6], [7, 8, 9]
    VK, VV, VOST, VZ, VN = [10, 11], [12, 13], 14, 15, 16
    VM, VT, VRC, VPR, VFA, VFT, VPR2 = [16, 17], 19, [[20, 21], [22, 23]], 18, 2, 3, 19
    ONES, LS = 56, [60, 4]
    QP = lambda h: 64 + 32 * h
    SS = lambda h: 128 + 64 * h
    PP = 64
    OF = lambda h, s, u: 96 + 8 * s + 4 * u if h == 0 else 192 + 16 * s + 4 * u
    S.label("L_compute")
    S(f"v_mov_b32 v{VZ}, 0")
    srd_consts(S, (SWS, SOUT, SDBG))
    S("s_waitcnt lgkmcnt(0)")
    first_stamps(S, cfg)
    srd_bases(S, (SWS, SOUT, SDBG))
    S(f"s_or_b32 s66, s2, s3\ns_cmp_lg_u32 s66, 0\ns_cbranch_scc1 L_notag")
    S.out += _raw(f"""s_mov_b32 s66, {WS_EPOCH}
    buffer_load_dword v2, v{VZ}, {srd(SWS)}, s66 offen sc1
    s_waitcnt vmcnt(0)
    v_add_u32 v2, 1, v2
    v_max_u32 v2, 1, v2
    buffer_store_dword v2, v{VZ}, {srd(SWS)}, s66 offen sc1
    buffer_store_dword v2, v{VZ}, {srd(SDBG)}, 0 offen sc1
    s_waitcnt vmcnt(0)""")
    S.label("L_notag")
    S(f"""v_and_b32 v22, 15, v1
    v_lshrrev_b32 v23, 4, v1
    v_mul_u32_u24 v2, {PITCH}, v22
    v_lshl_add_u32 v{VK[0]}, v23, 4, v2
    v_add_u32 v{VK[0]}, {LB}, v{VK[0]}
    v_add_u32 v{VK[1]}, {2*SLOT}, v{VK[0]}
    s_lshl_b32 s66, s{S_W}, 8
    v_add_u32 v{VX[0]}, s66, v{VK[0]}
    v_add_u32 v{VX[1]}, {3*SLOT}, v{VX[0]}
    v_add_u32 v{VX[2]}, {6*SLOT}, v{VX[0]}
    v_bfe_u32 v2, v1, 2, 3
    v_mul_u32_u24 v2, {PITCH}, v2
    v_lshrrev_b32 v3, 5, v1
    v_lshl_add_u32 v2, v3, 9, v2
    v_and_b32 v3, 3, v1
    v_lshl_add_u32 v2, v3, 3, v2
    v_add_u32 v{VW[0]}, {slot(1)}, v2
    v_add_u32 v{VW[1]}, {slot(4)}, v2
    v_add_u32 v{VW[2]}, {slot(7)}, v2
    v_lshrrev_b32 v2, 2, v1
    v_mul_u32_u24 v2, {PITCH}, v2
    v_lshl_add_u32 v2, v3, 3, v2
    v_add_u32 v{VV[0]}, {slot(4)}, v2
    v_add_u32 v{VV[1]}, {slot(6)}, v2
    s_lshl2_add_u32 s66, s2, s{S_W}
    s_lshl_b32 s56, s66, 8
    s_add_u32 s56, s56, {WS_FLAG}
    s_lshl_b32 s66, s66, 14
    v_lshlrev_b32 v{VOST}, 4, v1
    v_add_u32 v{VOST}, s66, v{VOST}
    s_add_u32 s66, s{S_W}, 4
    v_lshl_add_u32 v{VFA}, v1, 2, 64
    v_writelane_b32 v{VFA}, s66, 0
    s_mov_b32 s{S_C}, {f32(math.log2(math.e) / math.sqrt(128.0))}
    s_mov_b32 s58, s{S_C}
    s_mov_b32 s59, s{S_C}""")
    for pi in range(1, 4):
        S(f"s_add_u32 s66, s2, {64*pi}\ns_and_b32 s66, s66, 255\ns_lshl2_add_u32 s66, s66, s{S_W}\ns_lshl_b32 s{95+pi}, s66, 14")
        S(f"s_add_u32 s66, s{S_KQ}, {pi}\ns_and_b32 s66, s66, 3\ns_andn2_b32 s67, s2, 3\ns_add_u32 s66, s66, s67\ns_lshl2_add_u32 s66, s66, s{S_W}\ns_mul_i32 s66, s66, 6144\ns_add_u32 s{(100, 101, 57)[pi-1]}, s66, {WS_D + (pi-1)*2048}")
    S(f"""s_lshl3_add_u32 s66, s{S_BLK}, s{S_B}
    s_lshr_b32 s67, s{S_H0}, 1
    s_lshl4_add_u32 s66, s66, s67
    s_lshl2_add_u32 s66, s66, s{S_W}
    s_lshl_b32 s66, s66, 12
    s_add_u32 s99, s66, {WS_DX}
    s_lshl2_add_u32 s74, s2, s{S_W}
    s_mul_i32 s74, s74, 6144
    s_add_u32 s74, s74, {WS_D}
    s_add_u32 s75, s74, 4096
    s_lshl2_add_u32 s70, s{S_B}, s{S_W}
    s_mul_i32 s70, s70, {32*2304}
    s_mul_i32 s71, s{S_BLK}, 1152
    s_add_u32 s70, s70, s71
    s_lshl2_add_u32 s71, s{S_P}, s{S_KQ}
    s_lshl_b32 s71, s71, 6
    s_add_u32 s70, s70, s71
    s_add_u32 s71, s70, {16*2304}""")
    G = []
    def add(reads, mf, lead, need=None, free=None, gate=None, bar=False):
        G.append(dict(reads=reads, mf=mf, gate=len(G) - lead if gate is None else gate, need=need, free=free, bar=bar))
    ACC = lambda t, u: 128 + 8 * t + 4 * u
    ARING = [96, 104, 112, 120, 56]
    XF = lambda c, s, u: 24 + 16 * (c & 1) + 8 * s + 4 * u
    for c in range(9):
        for t in range(16):
            rg = ARING[len(G) % 5]
            rd = [f"ds_read_b64_tr_b16 {vr(rg+4*s+2*r,2)}, v{VW[c%3]} offset:{s*SLOT + r*8*PITCH + 32*t}" for s in range(2) for r in range(2)]
            if t == 0: rd = [f"ds_read_b128 {vr(XF(c,s,u),4)}, v{VX[c%3]} offset:{128*u + 64*s}" for s in range(2) for u in range(2)] + rd
            add(rd, [mfma(ACC(t, u), rg + 4*s, XF(c, s, u), first=(c == 0 and s == 0)) for u in range(2) for s in range(2)], cfg.alead,
                need=c if t == 0 and c and not cfg.abar else None, free=c + 1 if t == 15 and (c == 8 or not cfg.abar) else None, bar=cfg.abar and t == 0 and c > 0)
    gA = len(G)
    fill = [(gA - 6, gA, pack(QP(0), 128))]
    tail_fill = None
    KR = lambda i: 24 + 4 * ((i + 4) & 7)
    def qk(h):
        for i in range(32):
            kt, s = i >> 2, i & 3
            add([f"ds_read_b128 {vr(KR(i),4)}, v{VK[h]} offset:{(kt&1)*16*PITCH + (kt>>1)*256 + 64*s}"],
                [mfma(SS(h)+8*kt+4*u, KR(i), QP(h)+8*s+4*u, first=(s == 0)) for u in range(2)], cfg.blead,
                need=R_K0 + h if i == 0 else None, free=F_QK0 + h if i == 31 else None,
                gate=(gA - 3 if i < 4 else max(gA, len(G) - cfg.blead)) if h == 0 else None)
            G[-1]["wait4"] = (i & 3) == 0
    def pv(h):
        g0 = len(G)
        for i in range(32):
            dt, j = i >> 2, i & 3
            add([f"ds_read_b64_tr_b16 {vr(KR(i)+2*r,2)}, v{VV[h]} offset:{r*16*PITCH + j*256 + 32*dt}" for r in range(2)],
                ([mfma(LS[u], ONES, PP+8*jj+4*u, first=(jj == 0)) for u in range(2) for jj in range(4)] if i == 0 else []) +
                [mfma(SS(h)+8*dt+4*u, KR(i), PP+8*j+4*u, first=(j == 0)) for u in range(2)], cfg.blead,
                need=(R_V0, R_V1)[h] if i == 0 else None, free=(F_PV0, F_PV1)[h] if i == 31 else None,
                gate=max(len(G) - cfg.blead, g0 - (3, 3, 2, 2, 1, 1, 0, 0)[i]) if (h == 1 and i < 8) else None)
            G[-1]["wait4"] = (i & 3) == 0
    def softmax(h):
        s = SS(h)
        el = [[s + 8*kt + 4*u + r for kt in range(8) for r in range(4)] for u in range(2)]
        o = []
        for i in range(16):
            for u in range(2):
                e = el[u]
                if i == 0: o.append(f"v_max3_f32 v{VM[u]}, v{e[0]}, v{e[1]}, v{e[2]}")
                elif i < 15: o.append(f"v_max3_f32 v{VM[u]}, v{VM[u]}, v{e[2*i+1]}, v{e[2*i+2]}")
                else: o.append(f"v_max_f32 v{VM[u]}, v{VM[u]}, v{e[31]}")
        a, b = VM
        o += [f"v_permlane32_swap_b32 v{a}, v{b}", f"v_max_f32 v{a}, v{a}, v{b}", f"v_mov_b32 v{b}, v{a}",
              f"v_permlane16_swap_b32 v{a}, v{b}", f"v_max_f32 v{a}, v{a}, v{b}", f"v_mul_f32 v{a}, s{S_C}, v{a}", f"v_mov_b32 v{b}, v{a}",
              f"v_permlane32_swap_b32 v{a}, v{b}"]
        order = [(kt, u, r) for kt in range(8) for u in range(2) for r in range(4)]
        D = 2
        for i in range(64 + 2 * D):
            if i < 64:
                kt, u, r = order[i]; x = s + 8*kt + 4*u + r
                if not cfg.pk: o.append(f"v_fma_f32 v{x}, v{x}, s{S_C}, -v{VM[u]}")
                elif r % 2 == 0: o.append(f"v_pk_fma_f32 {vr(x,2)}, {vr(x,2)}, s[58:59], {vr(VM[0],2)} op_sel:[0,0,{u}] op_sel_hi:[1,1,{u}] neg_lo:[0,0,1] neg_hi:[0,0,1]")
            j = i - D
            if 0 <= j < 64:
                kt, u, r = order[j]; x = s + 8*kt + 4*u + r
                o.append(f"v_exp_f32 v{x}, v{x}")
            j = i - 2 * D
            if 0 <= j < 64:
                kt, u, r = order[j]; x = s + 8*kt + 4*u + r
                if r & 1: o.append(f"v_cvt_pk_bf16_f32 v{PP+8*(kt>>1)+4*u+2*(kt&1)+(r>>1)}, v{x-1}, v{x}")
        return o
    sig = [0]
    def signal(f):
        assert f > sig[0], (f, sig[0])
        sig[0] = f
        S(f"v_mov_b32 v{VFT}, {f}\nds_write_b8 v{VFA}, v{VFT}")
    def o_store(h, i):
        return (f"buffer_store_dwordx4 {vr(OF(h, i >> 1, i & 1),4)}, v{VOST}, {srd(SWS)}, s{54 + (i >> 2)} offen offset:{(i & 3)*1024} sc1", f"o{2*h + (i >> 2)}")
    def o_base(h): return [f"s_mov_b32 s54, {WS_O + h*8192}", f"s_mov_b32 s55, {WS_O + h*8192 + 4096}"]
    def flag(k):
        S.wait_vm_tag(f"o{k}")
        S(f"v_mov_b32 v{VFT}, s{S_NONCE}\nbuffer_store_dword v{VFT}, v{VZ}, {srd(SWS)}, s56 offen offset:{64*k} sc1")
    def o_pack(h):
        s = SS(h); o = []
        for st in range(4):
            part = o_base(0) if (h == 0 and st == 0) else []
            for u in range(2):
                for e in range(2):
                    for r in range(4):
                        x = s + 8*(2*st+e) + 4*u + r
                        part.append(f"v_mul_f32 v{x}, v{x}, v{VRC[h][u]}")
                part += [f"v_cvt_pk_bf16_f32 v{OF(h,st,u)+2*e+x}, v{s+8*(2*st+e)+4*u+2*x}, v{s+8*(2*st+e)+4*u+2*x+1}" for e in range(2) for x in range(2)]
                if h == 0: part.append(o_store(h, 2 * st + u))
            o.append(part)
        return o
    rcp = lambda h: [f"v_rcp_f32 v{VRC[h][u]}, v{LS[u]}" for u in range(2)]
    st = lambda i: (lambda: stamp(S, cfg, i))
    def pack_fill(h, g0):
        op = o_pack(h)
        return [(g0 + 4, g0 + 5, rcp(h)), (g0 + 10, g0 + 18, op[0]), (g0 + 18, g0 + 26, op[1]), (g0 + 26, g0 + 33, op[2]), (g0 + 33, g0 + 35, op[3])]
    if cfg.stop != "A":
        qk(0); qk(1); pv(0)
        fill += [(gA, gA + 1, [st(2), lambda: nonce_issue(S, VT, VZ)]),
                 (gA, gA + 32, pack(QP(1), 192) + [f"v_mov_b32 v{ONES+i}, 0x3f803f80" for i in range(4)]),
                 (gA + 32, gA + 33, [st(3)]), (gA + 33, gA + 64, softmax(0)),
                 (gA + 56, gA + 57, [lambda: nonce_check(S, VT, VZ, "L_cn")]), (gA + 64, gA + 65, [st(4)])] + pack_fill(0, gA + 64)
    gC0 = len(G)
    units, slots, EV = c_units(), c_slots(), c_events(cfg)
    VA, VL16 = [8, 9, 10], 11
    MC = lambda nt, u: 128 + 8 * nt + 4 * u
    EC = lambda nt, u: 200 + 16 * nt + 4 * u
    CRING = [40, 48, 24, 32, 56]
    OBUF = [(64, 8), (80, 8), (96, 8), (112, 8), (192, 16), (224, 16)]
    OB = lambda j, s, u: OBUF[(j - 6) % 6][0] + OBUF[(j - 6) % 6][1] * s + 4 * u
    sOP = [None, 96, 97, 98]
    if cfg.stop is None:
        setup = [f"v_add_u32 v{VA[0]}, {-6*SLOT & 0xffffffff}, v{VV[1]}", f"v_add_u32 v{VA[1]}, {-3*SLOT & 0xffffffff}, v{VV[1]}", f"v_mov_b32 v{VA[2]}, v{VV[1]}",
                 f"v_lshlrev_b32 v{VL16}, 4, v1"]
        fill += [(gA + 65, gA + 69, setup)]
        gC = gC0 + 32
        def cgroup(j, n, **kw):
            uk, hh, x = units[j]
            sl = slots[("W", j)][0]
            va, so = VA[sl // 3], (sl % 3) * SLOT
            k = len(G) - (gC0 if j < 2 else gC)
            rg = CRING[k % 4] if k < 32 else CRING[(k - 32) % 5]
            if uk == "E":
                nt, sp = n >> 1, n & 1
                rd = [f"ds_read_b64_tr_b16 {vr(rg+4*s+2*r,2)}, v{va} offset:{so + (2*(2*sp+s)+r)*128 + 32*nt}" for s in range(2) for r in range(2)]
                mf = [mfma(EC(nt, u), rg + 4*s, OF(hh, 2*sp+s, u), first=(hh == 0 and sp == 0 and s == 0)) for u in range(2) for s in range(2)]
            else:
                bf = (lambda s, u: OF(hh, 2*x+s, u)) if uk == "M" else (lambda s, u: OB(j, s, u))
                rd = [f"ds_read_b64_tr_b16 {vr(rg+4*s+2*r,2)}, v{va} offset:{so + (2*s+r)*256 + 32*n}" for s in range(2) for r in range(2)]
                mf = [mfma(MC(n, u), rg + 4*s, bf(s, u), first=(j == 0 and s == 0)) for u in range(2) for s in range(2)]
            need = None
            for name, us in WSET.items():
                if j in us and name not in seen: need = EV[name][0]; seen.add(name)
            b0 = len(G) - (k & 3)
            add(rd, mf, 3 if k < 36 else 4, gate={0: b0 - 6, 1: b0 - 4, 2: b0 - 2, 3: b0}[k & 3] if (k & ~3) in (0, 16) else None, need=need, **kw)
        seen = set(); gU = {}
        for j in range(cfg.merge):
            if j == 2:
                fill += [(gC0, gC0 + 1, [st(5)]), (gC0 + 3, gC0 + 16, softmax(1)), (len(G), len(G) + 1, [st(6)])] + pack_fill(1, len(G))
                pv(1)
            gU[j] = len(G)
            for n in range(2 if j >= cfg.defer else 0, 8): cgroup(j, n, free=FU.get(j) if n == 7 else None)
        gM = len(G)
        nm_ = 18 - cfg.merge
        for tau in (1, 2, 3):
            for j in range(cfg.merge, 18):
                for e in range(2): cgroup(j, 2 * tau + e)
        for j in range(min(cfg.defer, cfg.merge), 18):
            for e in range(2): cgroup(j, e)
        def o_loads(j):
            uk, hh, x = units[j]
            return [f"s_add_u32 s{48 + j % 6}, s{sOP[1 + x % 3]}, {WS_O + hh*8192 + (x // 3)*4096}"] + \
                   [f"buffer_load_dwordx4 {vr(OB(j, i >> 1, i & 1), 4)}, v{VL16}, {srd(SWS)}, s{48 + j % 6} offen offset:{i*1024} {cfg.pol_o}" for i in range(4)]
        for k in range(4):
            num, p0 = EV[f"OP{k}"]; lab = f"L_rdy{num}"
            def chk(lab=lab, num=num):
                S(f"v_readfirstlane_b32 s64, v{VPR2}")
                for x in swar(64, num): S(x)
                S(f"s_cbranch_scc0 {lab}")
                S.label(lab + "_ok")
                S.cold += spin_block(lab, lab + "_ok", VPR2, VZ, 0, 64, num, 0)
            fill += [(gC + p0 - 2, gC + p0 - 1, [f"ds_read_b32 v{VPR2}, v{VZ}"]), (gC + p0, gC + p0 + 1, [chk])]
            for i in range(3):
                j = 6 + 3 * k + i
                first = {6: 16, 7: 16, 8: 24, 9: 24, 10: 48, 11: 48}.get(j, 8 * (j - 5))
                a = max(p0 + 1 + cfg.ostep * i, first)
                fill += [(gC + a, gC + a + 2, o_loads(j) if "noold" not in cfg.dbg else ["s_nop 0"])]
        VMASK, GR = 12, 64
        tagprep = [f"s_and_b32 s72, s{S_NONCE}, 1", f"s_lshl_b32 s73, s{S_NONCE}, 15", "s_and_b32 s73, s73, 0x10000", "s_or_b32 s72, s72, s73",
                   f"v_mov_b32 v{VMASK}, 0xfffefffe"]
        def tpack(base, n):
            o = []
            for k in range(n): o += [f"v_cvt_pk_bf16_f32 v{base+k}, v{base+2*k}, v{base+2*k+1}", f"v_and_or_b32 v{base+k}, v{base+k}, v{VMASK}, s72"]
            return o
        dx = list(tagprep)
        for u in range(2):
            for m_ in range(2):
                for k in range(4):
                    d, a = EC(2*m_, u) + k, EC(2*m_ + (k >> 1), u) + 2 * (k & 1)
                    dx += [f"v_cvt_pk_bf16_f32 v{d}, v{a}, v{a+1}", f"v_and_or_b32 v{d}, v{d}, v{VMASK}, s72"]
        for gm in range(4):
            dx.append(f"buffer_store_dwordx4 {vr(EC(2*(gm & 1), gm >> 1),4)}, v{VL16}, {srd(SWS)}, s99 offen offset:{gm*1024} sc1")
        def dsend(tau):
            o = []
            tp = tpack(128 + 16*tau, 8)
            for e in range(2):
                o += tp[8*e:8*e+8]
                o.append(f"buffer_store_dwordx4 {vr(128+16*tau+4*e,4)}, v{VL16}, {srd(SWS)}, s{(100, 101, 57)[tau-1]} offen offset:{e*1024} sc1")
            return o
        daddr = [f"v_and_b32 v2, 15, v1", "v_mul_u32_u24 v2, 2304, v2", "v_bfe_u32 v3, v1, 4, 1", "v_lshl_add_u32 v2, v3, 5, v2", "v_lshrrev_b32 v3, 5, v1", "v_lshl_add_u32 v2, v3, 4, v2",
                 "v_mov_b32 v6, 0x10001", "v_mov_b32 v4, 0x3f80", "v_mov_b32 v5, 0x3f800000"]
        q = 2 * nm_
        w = min(q - 1, 6)
        gp = lambda k: gC0 + k if k < 16 else gC + k if k < 1000 else gC0 + 16 + (k - 1000)
        fp = [int(x) for x in cfg.fpos.split(",")]
        fill += [(gp(fp[k]), gp(fp[k]) + 1, [lambda k=k: flag(k)]) for k in range(4)]
        fill += [(gC + cfg.o1pos, gC + cfg.o1pos + cfg.o1len, o_base(1) + [o_store(1, i) for i in range(8)])]
        VMASK_NOTE = None
        fill += [(gC + cfg.dxpos, gC + cfg.dxpos + 8, dx),
                 (gC + cfg.dxgo, gC + cfg.dxgo + 1, [lambda: signal(F_DX), "s_wakeup"]), (gM + 1, gM + 6, daddr), (gM + q + 1, gM + q + 1 + w, dsend(1)), (gM + 2*q + 1, gM + 2*q + 1 + w, dsend(2)), (gM + 3*q + 1, gM + 3*q + 1 + w, dsend(3))]
        if cfg.mst:
            fill += [(gC + int(x), gC + int(x) + 1, [lambda i=i: stamp(S, cfg, 1 + i, True)]) for i, x in enumerate(cfg.mst.split(","))]
        if cfg.cdetail > 0:
            fill += [((gC if j > 1 else gC0) + 8*j, (gC if j > 1 else gC0) + 8*j + 1, [lambda i=j - (cfg.cdetail - 1): stamp(S, cfg, 1 + i, True)]) for j in range(18) if 0 <= j - (cfg.cdetail - 1) < 12]
    if cfg.adetail:
        fill += [(16*c, 16*c + 1, [lambda c=c: stamp(S, cfg, 1 + c, True)]) for c in range(9)]
        if cfg.stop != "A": fill += [(gA + 32*i, gA + 32*i + 1, [lambda i=i: stamp(S, cfg, 10 + i, True)]) for i in range(3)]
    queue = []
    frees, due = {}, {}
    for gi, g in enumerate(G):
        if g["need"] is not None and not cfg.nocheck:
            lab = f"L_rdy{g['need']}"
            steps = [f"v_readfirstlane_b32 s69, v{VPR}"] + swar(69, g["need"])
            at = max(0, len(queue) - cfg.probe_ahead)
            pg = queue[at][0] if at < len(queue) else g["gate"]
            queue.insert(at, (pg, "r", f"ds_read_b32 v{VPR}, v{VZ}"))
            queue.append((g["gate"], "r", steps[0]))
            queue.append((g["gate"], "gap", None))
            def chk(lab=lab, need=g["need"], steps=steps):
                for x in steps[1:]: S(x)
                S(f"s_cbranch_scc0 {lab}")
                S.label(lab + "_ok")
                S.cold += spin_block(lab, lab + "_ok", VPR, VZ, 0, 69, need, 0)
            queue.append((g["gate"], "c", chk))
        if g["bar"]:
            for _ in range(cfg.bargap): queue.append((g["gate"], "gap", None))
            def br():
                S.wait_lg(0); S("s_barrier")
            queue.append((g["gate"], "c", br))
        for k, r in enumerate(g["reads"]):
            queue.append((g["gate"], "r", (r, f"g{gi}") if k == len(g["reads"]) - 1 else r))
        if g["free"] is not None and not cfg.nofree:
            def fr(gi=gi, f=g["free"]):
                S.wait_lg_tag(f"g{gi}")
                signal(f)
                if cfg.wake: due[m + 2] = lambda: S("s_wakeup")
            frees[f"g{gi}"] = fr
    nm = [len(g["mf"]) for g in G]
    pos = [sum(nm[:i]) for i in range(len(G) + 1)]
    fl = {}
    for (g0, g1, ins) in fill:
        a, b = pos[g0], pos[g1]
        for k, x in enumerate(ins): fl.setdefault(a + (k * (b - a)) // len(ins), []).append(x)
    if tail_fill: fl.setdefault(pos[tail_fill[0]] - 1, []).extend(tail_fill[1])
    S("s_barrier")
    stamp(S, cfg, 1)
    m = 0
    def issue(q):
        emit(S, q[2])
        if isinstance(q[2], tuple) and q[2][1] in frees: due[m + cfg.free_delay] = frees[q[2][1]]
    for gi, g in enumerate(G):
        last_tag = f"g{gi}"
        while any(isinstance(q[2], tuple) and q[2][1] == last_tag for q in queue):
            q = queue.pop(0)
            if q[1] != "gap": issue(q)
        if g.get("wait4"): S.wait_lg_tag(f"g{gi+3}")
        if cfg.gwait: S.wait_lg_tag(last_tag)
        for k, mf in enumerate(g["mf"]):
            S(mf)
            if m in due: due.pop(m)()
            n = 0
            while queue and n < 2 and queue[0][0] <= gi:
                q = queue[0]
                if q[1] == "gap": queue.pop(0); break
                if n >= 1 and q[0] == gi and q[1] == "r": break
                queue.pop(0); issue(q); n += 1
            for x in fl.get(m, []): emit(S, x)
            m += 1
    assert not queue
    while due: due.pop(min(due))()
    if cfg.stop == "A":
        stamp(S, cfg, 2)
        for x in pack(QP(1), 192): S(x)
        S(f"s_lshl_b32 s66, s2, 16\ns_lshl_b32 s67, s{S_W}, 14\ns_add_u32 s66, s66, s67\nv_lshlrev_b32 v{VOST}, 4, v1\nv_add_u32 v{VOST}, s66, v{VOST}")
        for i in range(16):
            S(f"s_mov_b32 s66, {i*1024}")
            S(f"buffer_store_dwordx4 {vr(64+4*i,4)}, v{VOST}, {srd(SWS)}, s66 offen")
        S.wait_vm(0); stamps_store(S, cfg); S("s_branch L_end"); return
    if cfg.stop == "B":
        stamp(S, cfg, 6)
        op1, done1 = o_pack(1)
        for x in op1 + [done1]: emit(S, x)
        S.wait_vm(0); stamp(S, cfg, 7); stamps_store(S, cfg); S("s_branch L_end"); return
    stamp(S, cfg, 7)
    S(f"s_mov_b32 s77, {SPIN_LIMIT}")
    S.label("L_d")
    for i in range(6):
        S(f"buffer_load_dwordx4 {vr(GR+4*i,4)}, v{VL16}, {srd(SWS)}, s{74 + i//4} offen offset:{(i%4)*1024} sc1")
    S(f"v_xor_b32 v7, s72, v{GR}")
    for i in range(1, 24): S(f"v_bitop3_b32 v7, v7, v{GR+i}, s72 bitop3:0xf6")
    S("v_and_b32 v7, v7, v6\nv_cmp_eq_u32 vcc, 0, v7\ns_cmp_eq_u64 vcc, -1\ns_cbranch_scc1 L_d_ok")
    S("s_sub_u32 s77, s77, 1\ns_cmp_lg_u32 s77, 0\ns_cbranch_scc1 L_d")
    S.label("L_d_ok")
    stamp(S, cfg, 9)
    for tau in range(3):
        for u in range(2):
            for e in range(2):
                for x in range(2):
                    src = GR + 8 * tau + 4*e + 2*u + x; a = MC(e, u) + 2 * x
                    if cfg.dot2: S(f"v_dot2c_f32_bf16 v{a}, v{src}, v4\nv_dot2c_f32_bf16 v{a+1}, v{src}, v5")
                    else: S(f"v_lshlrev_b32 v8, 16, v{src}\nv_and_b32 v9, 0xffff0000, v{src}\nv_add_f32 v{a}, v{a}, v8\nv_add_f32 v{a+1}, v{a+1}, v9")
    if cfg.dot2: S("s_nop 2")
    GS = 48
    for u in range(2):
        for e in range(2):
            for x in range(2):
                S(f"v_cvt_pk_bf16_f32 v{GS+4*u+2*e+x}, v{MC(e,u)+2*x}, v{MC(e,u)+2*x+1}")
    for u in range(2):
        for x in range(2): S(f"v_permlane16_swap_b32 v{GS+4*u+x}, v{GS+4*u+2+x}")
    for u in range(2):
        S(f"buffer_store_dwordx4 {vr(GS+4*u,4)}, v2, {srd(SOUT)}, s{70+u} offen {cfg.pol_out}")
    if cfg.stamps:
        S.wait_vm(0); stamp(S, cfg, 10)
    stamps_store(S, cfg)
    S("s_branch L_end")

Cfg.dxwait = 17
PROGS = {
 "a": "warm bA7 wK0 bA8 V0 wK1 W0 W1 wV0 V1 RWA W2 W3 W4 W5 W6 W7 W8 wV1 RWB W9 W10 W11 W12 W13 W14 W15 W16 W17 w7 w8 q0 ROP0 q1 ROP1 RWC w9 w10 w11 RWD q2 ROP2 q3 ROP3 RWE",
 "b": "warm bA7 wK0 bA8 D0 wK1 D1 pV0 f11 W0 W1 W2 W3 W4 RWA pV1 W9 W10 W11 W12 W13 f12 W5 W6 f14 W7 W8 RWB W14 W15 W16 W17 q0 ROP0 q1 ROP1 RWC w9 w10 w11 RWD q2 ROP2 q3 ROP3 RWE",
 "c": "warm bA7 wK0 bA8 V0 wK1 W0 W1 wV0 V1 RWA W2 W3 W4 W5 W6 W7 W8 W9 W10 wV1 RWB f14 W11 W12 W13 W14 W15 W16 W17 w7 w8 q0 ROP0 q1 ROP1 RWC w9 w10 w11 RWD q2 ROP2 q3 ROP3 RWE",
}
Cfg.prog = "a"

def gen(cfg):
    hdr = open(REF).read().split("; Override launch")[0].rstrip("\n")
    launch = [f"; @launch grid=(256,1,1) block=(512,1,1) lds={LDS_BYTES}"]
    if cfg.pre or cfg.post:
        launch = [f"; @launch kernel={NAME} grid=(256,1,1) block=(512,1,1) lds={LDS_BYTES}"]
        if cfg.pre: launch = [f"; @launch kernel=aux_kernel grid=({cfg.pre},1,1) block=(64,1,1) lds=0"] + launch
        if cfg.post: launch += [f"; @launch kernel=aux_kernel grid=({cfg.post},1,1) block=(64,1,1) lds=0"]
    L = [hdr] + launch + ['.amdgcn_target "amdgcn-amd-amdhsa--gfx950"',
         ".text", f".globl {NAME}", ".p2align 8", f".type {NAME},@function", f"{NAME}:"]
    P = Stream("pro"); prologue(P, cfg); L += P.finish()
    Ld = Stream("loader"); Ld.smem_pending = True; Ld.progname = cfg.prog; loader(Ld, cfg); L += Ld.finish()
    if cfg.prog2:
        import re
        n0 = len(SITES)
        L2 = Stream("loader2"); L2.smem_pending = True; L2.progname = cfg.prog2; loader(L2, cfg)
        body = L2.finish(); body = body[body.index("L_fork:"):]
        ren = lambda x: re.sub(r"\b(L_(?!end\b)\w+)", r"\1_c1", x)
        L += [ren(x) for x in body]
        Ld.cold += [ren(x if isinstance(x, str) else "    " + x.text) for x in L2.cold[L2.ncold:]]
    L.append(".p2align 6")
    C = Stream("compute"); C.smem_pending = True; compute(C, cfg); L += C.finish()
    L.append("L_cold:")
    for s in (Ld, C):
        L += [x if isinstance(x, str) else "    " + x.text for x in s.cold]
    L += ["L_end:", "    s_endpgm", '.section .rodata,"a"', ".p2align 6", f".amdhsa_kernel {NAME}",
          "  .amdhsa_next_free_vgpr 256", "  .amdhsa_next_free_sgpr 102", "  .amdhsa_accum_offset 256",
          "  .amdhsa_group_segment_fixed_size 0", "  .amdhsa_kernarg_size 104", "  .amdhsa_user_sgpr_count 2",
          "  .amdhsa_user_sgpr_kernarg_segment_ptr 1", "  .amdhsa_system_sgpr_workgroup_id_x 1", ".end_amdhsa_kernel", ""]
    if cfg.pre or cfg.post:
        L = L[:-1] + [".text", ".globl aux_kernel", ".p2align 8", ".type aux_kernel,@function", "aux_kernel:", "    s_endpgm",
              '.section .rodata,"a"', ".p2align 6", ".amdhsa_kernel aux_kernel", "  .amdhsa_next_free_vgpr 8", "  .amdhsa_next_free_sgpr 16", "  .amdhsa_accum_offset 8",
              "  .amdhsa_group_segment_fixed_size 0", "  .amdhsa_kernarg_size 104", "  .amdhsa_user_sgpr_count 2",
              "  .amdhsa_user_sgpr_kernarg_segment_ptr 1", "  .amdhsa_system_sgpr_workgroup_id_x 1", ".end_amdhsa_kernel", ""]
    if cfg.align:
        from align import align
        k0 = L.index(f"{NAME}:"); k1 = L.index("L_end:") + 2
        body, nprom, npad = align(L[k0:k1], "L_compute", "L_cold", cfg.align == 2)
        L = L[:k0] + body + L[k1:]
        sys.stderr.write(f"align: promoted {nprom} padded {npad}\n")
    sys.stderr.write(f"nops: loader {Ld.nops} compute {C.nops}\n")
    return "\n".join(L)

if __name__ == "__main__":
    cfg = Cfg()
    out = sys.argv[1]
    for a in sys.argv[2:]:
        k, val = a.split("=", 1)
        cur = getattr(Cfg, k)
        if isinstance(cur, bool): val = val in ("1", "true", "True")
        elif isinstance(cur, int): val = int(val)
        elif val == "None": val = None
        setattr(cfg, k, val)
    open(out, "w").write(gen(cfg))
    open(out + ".sites", "w").write(" ".join(map(str, SITES)))
```

```python
import sys, math, struct
from sched import Stream, Ins

NAME = "concat_heads__mha_block_cached__gqa_block_cached__near_ridge_kernel"
REF = "concat_heads__mha_block_cached__gqa_block_cached__near_ridge.s.ref"
SLOT = 17408
PITCH = 1056
LB = 512
LDS_BYTES = LB + 9 * SLOT
def slot(i): return LB + i * SLOT
WS_O, WS_D, WS_DX, WS_FLAG, WS_EPOCH, WS_STAMP = 0, 16 << 20, 32 << 20, 40 << 20, 41 << 20, 48 << 20
WS_SIZE = 64 << 20
SPIN_LIMIT = 1 << 16

def f32(x): return struct.unpack("<I", struct.pack("<f", x))[0]
def vr(n, c=1): return f"v{n}" if c == 1 else f"v[{n}:{n+c-1}]"
def mfma(d, a, b, first=False):
    return f"v_mfma_f32_16x16x32_bf16 {vr(d,4)}, {vr(a,4)}, {vr(b,4)}, {'0' if first else vr(d,4)}"
def _raw(text): return [Ins(l.strip()) if not l.strip().endswith(":") else l.strip() for l in text.split("\n") if l.strip()]
def emit(S, x):
    if callable(x): x()
    elif isinstance(x, tuple): S(*x)
    else: S(x)

SX, SWQ, SK, SV, SWO, SWS, SOUT, SDBG = 8, 12, 16, 20, 24, 28, 32, 36
def srd(n): return f"s[{n}:{n+3}]"
S_BLK, S_KQ, S_B, S_P, S_H0, S_W, S_NONCE, S_C = 40, 41, 42, 43, 44, 45, 46, 47

R_K0, R_K1, R_V0, R_WA, R_V1, R_U = 9, 10, 11, 12, 13, 14
F_QK0, F_QK1, F_PV0, F_O0, F_PV1, F_O1 = 10, 11, 12, 13, 15, 16
F_OI, F_DX = 18, 21
FU = {1: 14, 2: 17, 4: 19, 8: 20}
WSET = {"WA": (0, 1), "WB": (2, 3, 4, 5, 6), "WC": (7, 8), "WD": (9, 10, 11, 12, 13), "WE": (14, 15, 16, 17)}
def c_events(cfg):
    pos = {"WB": 12, "WC": 52, "WD": 68, "WE": 8 * min(14, cfg.merge) - 4}
    for k, x in enumerate(cfg.opos.split(",")): pos[f"OP{k}"] = int(x)
    ev = {n: (R_U + i, pos[n]) for i, n in enumerate(sorted(pos, key=lambda n: pos[n]))}
    ev["WA"] = (R_WA, -12)
    return ev

class Cfg:
    pol_x = ""; pol_wq = ""; pol_kv = "nt"; pol_wo = ""
    stop = None
    stamps = False; real = False; adetail = False; cdetail = 0
    ngrp = 3; rotp = 1; rotk = 3
    k0pos = 1; k0cls = 4; kvwait = 4
    codepf = True
    order = "blk"
    flag0 = -5; flag0b = 4; o1pos = 16; flag1 = 44; flag1b = 60; dxpos = 56
    amp = -1; ampw = 0
    probe_ahead = 8
    free_delay = 7
    trace = False
    mst = ""
    prog2 = ""
    defer = 12
    dot2 = True
    wprio2 = 0
    dbg = ""
    spoll = True
    blead = 7
    pk = False
    pol_out = ""
    pre = 0
    post = 0
    align = 0
    dxgo = 96
    opos = "26,27,86,98"
    ostep = 2
    pol_o = "sc1"
    pfilter = ""
    o1end = 10
    merge = 15
    dxsleep = 8
    akv = "0:1:4,1:3:4:2"
    o1len = 30
    ptrace = False
    early0 = 72
    warmpos = -1
    k1pos = -1
    warmrot = 3
    wprio = 0
    bargap = 4
    abar = True
    cbar = 6
    nocheck = False
    nofree = False
    alead = 4
    nodma = False
    lprio = 3
    lsleep = 5
    wake = True
    gwait = True
    early = False
    trace_from = 0

def stamp(S, cfg, idx, det=False):
    if not cfg.stamps: return
    if (cfg.cdetail or cfg.adetail) and idx not in (0, 13) and not det: return
    S(f"{'s_memrealtime' if cfg.real else 's_memtime'} s[78:79]")
    S("s_waitcnt lgkmcnt(0)")
    S(f"s_mov_b32 s{80+idx}, s78")

SITES = []
def trace_raw(cfg, who, ident):
    if not cfg.trace or len(SITES) >= 128: return ""
    if cfg.ptrace and not isinstance(ident, str): return ""
    k = len(SITES); SITES.append(ident)
    return f"{'s_memrealtime' if cfg.real else 's_memtime'} s[78:79]\ns_waitcnt lgkmcnt(0)\nv_writelane_b32 v{250 + (k >> 6)}, s78, {k & 63}\n"
def stamps_store(S, cfg):
    if not cfg.stamps: return
    S("s_memrealtime s[78:79]\ns_waitcnt lgkmcnt(0)\ns_mov_b32 s95, s78")
    stamp(S, cfg, 13)
    S(f"s_lshl_b32 s66, s2, 3\ns_add_u32 s66, s66, s3\ns_lshl_b32 s66, s66, 6\ns_add_u32 s66, s66, {WS_STAMP}")
    S("v_mov_b32 v2, 0")
    S("s_mov_b64 exec, 1")
    for i in range(16):
        S(f"v_mov_b32 v3, s{80+i}")
        S(f"buffer_store_dword v3, v2, {srd(SWS)}, s66 offen offset:{4*i}")
    S("s_mov_b64 exec, -1")

def prologue(S, cfg):
    S(f"""s_cmp_ge_u32 s2, 256
    s_cbranch_scc1 L_end
    s_bfe_u32 s{S_BLK}, s2, 0x10002
    s_mul_i32 s66, s{S_BLK}, 40
    s_add_u32 s4, s0, s66
    s_addc_u32 s5, s1, 0
    s_load_dwordx8 s[48:55], s[4:5], 0""")
    if cfg.stamps:
        S(f"s_memrealtime s[6:7]\n{'s_memrealtime' if cfg.real else 's_memtime'} s[92:93]")
    S(f"""v_lshrrev_b32 v2, 6, v0
    v_and_b32 v1, 63, v0
    s_load_dwordx2 s[56:57], s[4:5], 32
    v_readfirstlane_b32 s3, v2
    s_load_dwordx4 s[60:63], s[0:1], 80
    s_load_dwordx2 s[64:65], s[0:1], 96
    s_and_b32 s{S_KQ}, s2, 3
    s_bfe_u32 s{S_B}, s2, 0x30003
    s_lshr_b32 s{S_P}, s2, 6
    s_lshl2_add_u32 s{S_H0}, s{S_KQ}, s{S_P}
    s_lshl_b32 s{S_H0}, s{S_H0}, 1
    s_and_b32 s{S_W}, s3, 3
    s_cmp_lt_u32 s3, 4
    s_cbranch_scc1 L_compute""")
def first_stamps(S, cfg):
    if cfg.stamps:
        S("s_mov_b32 s80, s92\ns_mov_b32 s94, s6")
        for i in range(1, 14): S(f"s_mov_b32 s{80+i}, 0")
SRD_SIZE = {SX: 1179648, SWQ: 4718592, SK: 8388608, SV: 8388608, SWO: 4718592, SWS: WS_SIZE, SOUT: 2359296, SDBG: 256}
def srd_consts(S, which):
    for d in which: S(f"s_mov_b32 s{d+2}, {SRD_SIZE[d]}\ns_mov_b32 s{d+3}, 0x20000")
def srd_bases(S, which):
    for d, p in ((SX, 48), (SWQ, 54), (SK, 50), (SV, 52), (SWO, 56), (SWS, 64), (SOUT, 60), (SDBG, 62)):
        if d in which: S(f"s_mov_b32 s{d}, s{p}\ns_and_b32 s{d+1}, s{p+1}, 0xffff")

def nonce_issue(S, vt, vz):
    S(f"buffer_load_dword v{vt}, v{vz}, {srd(SDBG)}, 0 offen sc1")
def nonce_check(S, vt, vz, lab):
    S(f"v_readfirstlane_b32 s{S_NONCE}, v{vt}")
    S(f"s_cmp_eq_u32 s{S_NONCE}, 0\ns_cbranch_scc1 {lab}")
    S.label(f"{lab}_ok")
    S.cold += _raw(f"""{lab}:
    s_mov_b32 s77, {SPIN_LIMIT}
    {lab}_spin:
    buffer_load_dword v{vt}, v{vz}, {srd(SDBG)}, 0 offen sc1
    s_waitcnt vmcnt(0)
    v_readfirstlane_b32 s{S_NONCE}, v{vt}
    s_nop 4
    s_cmp_lg_u32 s{S_NONCE}, 0
    s_cbranch_scc1 {lab}_ok
    s_sleep 2
    s_sub_u32 s77, s77, 1
    s_cmp_lg_u32 s77, 0
    s_cbranch_scc1 {lab}_spin
    s_branch {lab}_ok""")

def swar(s, need):
    return [f"s_or_b32 s{s}, s{s}, 0x80808080", f"s_sub_u32 s{s}, s{s}, {need * 0x01010101}", f"s_andn2_b32 s{s}, 0x80808080, s{s}", f"s_cmp_eq_u32 s{s}, 0"]
def spin_block(lab, back, vt, vz, off, sreg, need, sleep):
    return _raw(f"""{lab}:
    s_mov_b32 s77, {SPIN_LIMIT}
    {lab}_spin:
    ds_read_b32 v{vt}, v{vz} offset:{off}
    s_waitcnt lgkmcnt(0)
    v_readfirstlane_b32 s{sreg}, v{vt}
    s_nop 3
    """ + "\n".join(swar(sreg, need)) + f"""
    s_cbranch_scc1 {back}
    {'s_sleep ' + str(sleep) if sleep else ''}
    s_sub_u32 s77, s77, 1
    s_cmp_lg_u32 s77, 0
    s_cbranch_scc1 {lab}_spin
    s_branch {back}""")

def c_units():
    u = [("M", 0, 0), ("M", 0, 1), ("E", 0, 0), ("M", 1, 0), ("M", 1, 1), ("E", 1, 0)]
    for hh in (0, 1):
        for ii in range(6): u.append(("P", hh, ii))
    return u
def c_slots():
    sl = [(0, F_QK0), (1, F_QK0), (8, 9), (2, F_O0), (3, F_O0), (4, F_PV0), (5, F_PV0), (6, F_PV1), (7, F_PV1),
          (0, F_O1), (1, F_O1), (8, FU[2]), (2, FU[4]), (3, FU[4]), (4, FU[8]), (5, FU[8]), (6, FU[8]), (7, FU[8])]
    return {("W", j): sl[j] for j in range(18)}

def pack(dst, src):
    return [f"v_cvt_pk_bf16_f32 v{dst+8*s+4*u+2*e+x}, v{src+8*(2*s+e)+4*u+2*x}, v{src+8*(2*s+e)+4*u+2*x+1}" for s in range(4) for u in range(2) for e in range(2) for x in range(2)]
PAY = [0, 1, 2, 4, 5, 6, 8, 9]

def loader(S, cfg):
    VXO, VWO, VKV, VKW, VVW, VMO, VEO, VOO, VFL, VWW, VN, VZ, VP0, VPA, VT = 4, 5, 6, 7, 8, 9, 10, 11, 12, 13, 14, 15, 16, 18, 19
    KVREG = [24, 56, 88, 120]
    sXb, sWb, sCC, sM, sMo, sT, sKV0, sKV1, sA = 66, 67, 68, 69, 70, 71, 72, 73, 75
    sWP, sOP = [65, 96, 97, 98], [62, 99, 100, 101]
    S(f"""s_lshl_b32 s{sT}, s{S_W}, 2
    v_and_b32 v2, 0x38, v1
    v_lshl_add_u32 v2, v2, 1, s{sT}
    v_mul_u32_u24 v3, 1152, v2
    v_and_b32 v20, 7, v1
    v_lshl_add_u32 v{VXO}, v20, 4, v3
    s_lshl_b32 s76, s{S_W}, 3
    s_lshl1_add_u32 s76, s{S_W}, s76
    s_and_b32 s76, s76, 12
    v_and_b32 v2, 32, v1
    v_lshlrev_b32 v2, 12, v2
    v_and_b32 v20, 31, v1
    v_lshl_add_u32 v{VWO}, v20, 4, v2
    s_lshl_b32 s76, s76, 13
    s_mul_i32 s{sM}, s{sT}, {PITCH}
    s_lshl_b32 s75, s{S_H0}, 8
    s_add_u32 s75, s75, s76""")
    n = cfg.ngrp
    if cfg.order == "rot": orders = [[(round(9 * g / n) + c) % 9 for c in range(9)] for g in range(n)]
    else: orders = [[(c // n) * n + (c + g) % n if (c // n + 1) * n <= 9 else c for c in range(9)] for g in range(n)]
    tabs = [sum(x << (4 * i) for i, x in enumerate(o)) for o in orders]
    gtab = sum((i % n) << (2 * i) for i in range(16))
    S(f"""s_mul_i32 s76, s{S_P}, {cfg.rotp}
    s_add_u32 s76, s76, s{S_B}
    s_and_b32 s77, s{S_KQ}, {cfg.rotk}
    s_add_u32 s76, s76, s77
    s_lshl_b32 s76, s76, 1
    s_lshr_b32 s76, {gtab}, s76
    s_and_b32 s76, s76, 3
    s_mov_b32 s58, {tabs[0] & 0xffffffff}
    s_mov_b32 s59, {tabs[0] >> 32}""")
    for g in range(1, n):
        S(f"s_cmp_eq_u32 s76, {g}\ns_cselect_b32 s58, {tabs[g] & 0xffffffff}, s58\ns_cselect_b32 s59, {tabs[g] >> 32}, s59")
    S(f"s_mul_i32 s74, s{S_B}, 147456")
    srd_consts(S, (SX, SWQ))
    S("s_waitcnt lgkmcnt(0)")
    srd_bases(S, (SX, SWQ))
    def chunk(c, mid=None):
        base = slot((c % 3) * 3)
        S(f"""s_and_b32 s{sCC}, s58, 15
        s_lshr_b64 s[58:59], s[58:59], 4
        s_lshl_b32 s{sXb}, s{sCC}, 7
        s_add_u32 s{sXb}, s{sXb}, s74
        s_lshl_b32 s{sWb}, s{sCC}, 19
        s_add_u32 s{sWb}, s{sWb}, s75""")
        for i in range(4):
            S(f"s_add_u32 m0, s{sM}, {base + i*(PITCH-1152)}")
            S(f"buffer_load_dwordx4 v{VXO}, {srd(SX)}, s{sXb} offen offset:{i*1152} {cfg.pol_x} lds", tag=f"ch{c}")
        if mid: mid()
        for st in range(2):
            for i in range(4):
                S(f"s_add_u32 m0, s{sM}, {base + SLOT*(1+st) + i*PITCH}\ns_add_u32 s{sT}, s{sWb}, {(32*st+i)*8192}")
                S(f"buffer_load_dwordx4 v{VWO}, {srd(SWQ)}, s{sT} offen {cfg.pol_wq} lds", tag=f"ch{c}")
    def kv_lines(m):
        sr = SK if m < 2 else SV
        sb = sKV0 if m % 2 == 0 else sKV1
        o = [f"s_add_u32 s{sT}, s{sb}, 4096"]
        for j in range(8):
            o.append((f"buffer_load_dwordx4 {vr(KVREG[m]+4*j,4)}, v{VKV}, {srd(sr)}, s{sb if j < 4 else sT} offen offset:{(j&3)*1024} {cfg.pol_kv}", f"kv{m}"))
        return o
    def kv_load(m):
        for x in kv_lines(m): emit(S, x)
    def v_dma(m, sl):
        sb = sKV0 if m % 2 == 0 else sKV1
        S(f"""v_lshrrev_b32 v2, 4, v1
        v_lshlrev_b32 v2, 13, v2
        v_and_b32 v3, 15, v1
        v_lshl_add_u32 v2, v3, 4, v2
        s_lshl_b32 s76, s{S_W}, 11
        s_add_u32 s{sT}, s{sb}, s76
        s_lshl_b32 s76, s{sM}, 1""")
        for j in range(8):
            S(f"s_add_u32 m0, s76, {slot(sl) + j*(PITCH-256)}")
            S(f"buffer_load_dwordx4 v2, {srd(SV)}, s{sT} offen offset:{j*256} {cfg.pol_kv} lds", tag=f"kv{m}")
    def cond(lab, cls, mask, lines, pre=""):
        S(f"s_and_b32 s76, s{S_B}, {mask}\ns_cmp_lg_u32 s76, {cls}\ns_cbranch_scc1 {lab}")
        S.out += _raw(pre + "\n".join(x[0] if isinstance(x, tuple) else x for x in lines))
        S.label(lab)
    def kv_load_if(m, cls, ncls, pre=""):
        cond(f"L_kv{m}_{cls}", cls, ncls - 1, kv_lines(m), pre)
        if cls == ncls - 1: S.phantom([f"v{KVREG[m]+i}" for i in range(32)], f"kv{m}")
    def warm_lines():
        return f"""s_lshl_b32 s76, s{S_KQ}, 3
        s_add_u32 s76, s76, s{S_B}
        s_lshl_b32 s76, s76, 2
        s_add_u32 s76, s76, s{S_W}
        s_mul_i32 s76, s76, {32*1152}
        s_lshl_b32 s77, s{S_P}, 8
        s_add_u32 s76, s76, s77
        v_lshrrev_b32 v20, 1, v1
        v_mul_u32_u24 v20, 1152, v20
        v_and_b32 v3, 1, v1
        v_lshl_add_u32 v20, v3, 7, v20
        buffer_load_dword v22, v20, {srd(SWO)}, s76 offen {cfg.pol_wo}
        s_lshl_b32 s76, s{S_B}, 2
        s_add_u32 s76, s76, s{S_W}
        s_mul_i32 s76, s76, {8*1152}
        s_add_u32 s76, s76, s64
        v_and_b32 v21, 7, v1
        v_mul_u32_u24 v21, 1152, v21
        buffer_load_dword v23, v21, {srd(SWO)}, s76 offen offset:1024 {cfg.pol_wo}""".split("\n")
    def kv_write(m, sl):
        S.wait_vm_tag(f"kv{m}")
        S(f"s_setprio {cfg.wprio}")
        if "nolw" in cfg.dbg: return
        if m < 2:
            for j in range(8):
                S(f"v_add_u32 v2, {slot(sl) + j*4*PITCH}, v{VKW}")
                S(f"ds_write2_b64 v2, {vr(KVREG[m]+4*j,2)}, {vr(KVREG[m]+4*j+2,2)} offset0:0 offset1:2")
        else:
            S(f"v_add_u32 v2, {slot(sl)}, v{VVW}")
            for j in range(8):
                S(f"ds_write_b128 v2, {vr(KVREG[m]+4*j,4)} offset:{j*4*PITCH}")
    known = [0]; last_pub = [0]
    def wait_free(f, early=None):
        if f <= known[0]: return
        known[0] = f
        if cfg.nofree:
            S("s_sleep 5"); return
        lab = f"L_wf{f}"
        S.wait_lg(0)
        if cfg.trace and f >= cfg.trace_from: S(trace_raw(cfg, "loader", 100 + f))
        S(f"s_setprio {cfg.lprio}\nds_read_b32 v{VT}, v{VZ} offset:4\nv_readfirstlane_b32 s76, v{VT}")
        for x in swar(76, f): S(x)
        S(f"s_cbranch_scc0 {lab}")
        S.label(lab + "_ok")
        S("s_setprio 0")
        if cfg.trace and f >= cfg.trace_from: S(trace_raw(cfg, "loader", 200 + f))
        blk = spin_block(lab, lab + "_ok", VT, VZ, 4, 76, f, cfg.lsleep)
        if early and cfg.early: blk = blk[:1] + _raw(f"s_waitcnt vmcnt(0)\ns_mov_b32 s63, {early}\nv_mov_b32 v{VT}, {early}\nds_write_b8 v{VPA}, v{VT}\n" + (trace_raw(cfg, "loader", 400 + early) if f >= cfg.trace_from else "")) + blk[1:]
        S.cold += blk
    def publish(r):
        last_pub[0] = r
        S.wait_lg(0)
        S(f"s_setprio {cfg.lprio}\nv_mov_b32 v{VT}, {r}\nds_write_b8 v{VPA}, v{VT}\ns_setprio 0")
        if cfg.trace and known[0] >= cfg.trace_from: S(trace_raw(cfg, "loader", 300 + r))
        if cfg.adetail and r <= 12: stamp(S, cfg, r, True)
        if cfg.cdetail > 0 and 0 <= r - R_U < 12: stamp(S, cfg, 1 + r - R_U, True)
    chunk(0)
    first_stamps(S, cfg)
    stamp(S, cfg, 1)
    srd_consts(S, (SK, SV, SWO, SWS, SOUT, SDBG))
    srd_bases(S, (SK, SV, SWO, SWS, SOUT, SDBG))
    S(f"s_add_u32 s50, s64, {WS_FLAG}\ns_addc_u32 s51, s65, 0")
    if cfg.trace: S("s_mov_b32 s92, 0\nv_mov_b32 v250, 0\nv_mov_b32 v251, 0")
    if cfg.codepf:
        S(f"""s_getpc_b64 s[76:77]
        L_pc:
        s_lshr_b32 s{sT}, s2, 3
        s_lshl_b32 s{sT}, s{sT}, 2
        s_add_u32 s{sT}, s{sT}, s{S_W}
        s_mul_i32 s{sT}, s{sT}, 3
        v_min_u32 v2, 2, v1
        v_add_u32 v2, s{sT}, v2
        v_lshlrev_b32 v2, 7, v2
        v_min_u32 v2, L_end-L_pc, v2
        global_load_dword v23, v2, s[76:77]""")
    S(f"""v_mov_b32 v{VZ}, 0
    v_mov_b32 v20, 0
    v_mov_b32 v21, 0
    v_lshlrev_b32 v3, 3, v1
    ds_write_b64 v3, v[20:21]
    v_lshl_add_u32 v{VPA}, v1, 2, 64
    v_writelane_b32 v{VPA}, s{S_W}, 0
    v_add_u32 v{VEO}, 1024, v{VXO}
    s_lshl_b32 s76, s{S_W}, 13
    v_lshlrev_b32 v{VOO}, 4, v1
    v_add_u32 v{VKV}, s76, v{VOO}
    v_add_u32 v{VWW}, s{sM}, v{VOO}
    s_lshl_b32 s{sKV0}, s{S_B}, 5
    s_add_u32 s{sKV0}, s{sKV0}, s{S_H0}
    s_lshl_b32 s{sKV0}, s{sKV0}, 15
    s_add_u32 s{sKV1}, s{sKV0}, 32768
    v_lshrrev_b32 v2, 4, v1
    v_mul_u32_u24 v20, {PITCH}, v2
    s_lshl_b32 s76, s{S_W}, 8
    v_add_u32 v20, s76, v20
    v_and_b32 v3, 15, v1
    v_lshl_add_u32 v{VVW}, v3, 4, v20
    v_bfe_u32 v3, v1, 2, 2
    v_lshl_add_u32 v20, v3, 6, v20
    v_and_b32 v3, 1, v1
    v_lshl_add_u32 v20, v3, 5, v20
    v_bfe_u32 v3, v1, 1, 1
    v_lshl_add_u32 v{VKW}, v3, 3, v20""")
    S.wait_vm(9 if cfg.codepf else 8)
    chunk(1)
    S.wait_vm_tag("ch0"); S.wait_lg(0)
    stamp(S, cfg, 2)
    S("s_barrier")
    def pubch(c):
        S.wait_vm_tag(f"ch{c}"); publish(c)
    chunk(2, None if cfg.abar else (lambda: pubch(1)))
    S(f"""v_lshlrev_b32 v2, 4, v2
    s_lshl_b32 s76, s{S_W}, 2
    v_add_u32 v2, s76, v2
    v_mul_u32_u24 v2, 1152, v2
    s_lshl_b32 s76, s{S_KQ}, 6
    v_add_u32 v3, s76, v{VOO}
    v_and_b32 v3, 0xff, v3
    v_add_u32 v{VMO}, v2, v3
    v_min_u32 v2, 2, v1
    v_add3_u32 v2, v2, s{S_P}, 1
    v_and_b32 v2, 3, v2
    v_lshlrev_b32 v2, 6, v2
    s_and_b32 s76, s2, 63
    v_add_u32 v2, s76, v2
    v_lshlrev_b32 v2, 2, v2
    v_add_u32 v2, s{S_W}, v2
    v_lshlrev_b32 v{VFL}, 8, v2
    s_lshl_b32 s{sMo}, s{S_W}, 12""")
    for pi in range(4):
        d = sWP[pi]
        S(f"""s_add_u32 s76, s{S_P}, {pi}
        s_and_b32 s76, s76, 3
        s_lshl_b32 s77, s{S_KQ}, 2
        s_add_u32 s77, s77, s76
        s_mul_i32 s77, s77, {256*1152}
        s_lshl_b32 s{d}, s{S_P}, 8
        s_add_u32 s{d}, s{d}, s77""")
        if pi == 0: S("s_mov_b32 s64, s77")
        if True:
            S(f"""s_lshl_b32 s76, s76, 6
            s_and_b32 s77, s2, 63
            s_add_u32 s76, s76, s77
            s_lshl_b32 s76, s76, 2
            s_add_u32 s76, s76, s{S_W}
            s_lshl_b32 s{sOP[pi]}, s76, 14""")
            if pi: S(f"s_lshl_b32 s{54+pi}, s76, 8")
    for c in range(1, 7):
        if cfg.abar:
            S.wait_vm_tag(f"ch{c}"); stamp(S, cfg, c, cfg.adetail) if cfg.adetail else None; S("s_barrier"); known[0] = c
        else:
            wait_free(c, c + 1)
            pubch(c + 1)
        if c == 4: nonce_issue(S, VN, VZ)
        if not cfg.nodma: chunk(c + 2)
        for item in cfg.akv.split(","):
            what, first, ncls, rot = (item.split(":") + ["0"])[:4]
            first, ncls, rot = int(first), int(ncls), int(rot)
            if not 0 <= c - first < ncls: continue
            cond(f"L_a{what}_{c}", (c - first + rot) % ncls, ncls - 1, warm_lines() if what == "w" else kv_lines(int(what)), f"s_waitcnt vmcnt({cfg.kvwait})\n")
            if what != "w" and c - first == ncls - 1: S.phantom([f"v{KVREG[int(what)]+i}" for i in range(32)], f"kv{what}")
    nonce_check(S, VN, VZ, "L_ln")
    units, slots = c_units(), c_slots()
    def w_src(j):
        uk, hh, x = units[j]
        if uk == "M": return VMO, 65, (hh * 128 + 64 * x) * 1152
        if uk == "E": return VEO, 64, hh * 128 * 1152
        return VMO, sWP[1 + x % 3], (hh * 128 + 64 * (x // 3)) * 1152
    blocks = [152 + 16 * i for i in range(6)]
    parked = {}
    def w_load(j):
        va, sb, off = w_src(j)
        S(f"s_add_u32 s{sA}, s{sb}, {off}")
        if slots[("W", j)][1] <= known[0] and (j not in (3, 4, 9, 10) or (j > 4) in picked):
            lds_w.add(j)
            for i in range(4):
                S(f"s_add_u32 m0, s{sM}, {slot(slots[('W', j)][0]) + i*(PITCH-1152)}")
                S(f"buffer_load_dwordx4 v{va}, {srd(SWO)}, s{sA} offen offset:{i*1152} {cfg.pol_wo} lds", tag=f"u{j}")
        else:
            parked[j] = blocks.pop(0)
            for i in range(4 if "nopark" not in cfg.dbg else 0):
                S(f"buffer_load_dwordx4 {vr(parked[j]+4*i,4)}, v{va}, {srd(SWO)}, s{sA} offen offset:{i*1152} {cfg.pol_wo}", tag=f"u{j}w")
    lds_w = set()
    def w_write(j):
        assert j not in (3, 4, 9, 10) or (j > 4) in picked
        wait_free(slots[("W", j)][1])
        lds_w.add(j)
        S.wait_vm_tag(f"u{j}w")
        S(f"s_setprio {cfg.wprio if j < 7 else cfg.wprio2}\nv_add_u32 v2, {slot(slots[('W', j)][0])}, v{VWW}")
        for i in range(4 if not ("now" in cfg.dbg and j > 6 or "nolw" in cfg.dbg) else 0): S(f"ds_write_b128 v2, {vr(parked[j]+4*i,4)} offset:{i*PITCH}")
        S.wait_lg(0)
        S("s_setprio 0")
        blocks.append(parked.pop(j))
    def warm():
        for x in warm_lines(): S(x)
    issued, polled = set(), set()
    EV = c_events(cfg)
    def poll_issue(hh):
        issued.add(hh)
        S(f"s_mov_b32 s76, {WS_FLAG}")
        S(f"buffer_load_dword v{VP0 + (hh & 1)}, v{VFL}, {srd(SWS)}, s76 offen offset:{64*hh} sc1")
    def poll(hh):
        lab = f"L_poll{hh}"
        polled.add(hh)
        if "nopoll" in cfg.dbg: return
        if cfg.spoll:
            S.wait_lg(0)
            S(f"s_mov_b32 s77, {SPIN_LIMIT}")
            S.label(lab)
            S.out += _raw("\n".join(f"s_load_dword s{52+i}, s[50:51], s{55+i} offset:{64*hh} glc" for i in range(3)) + f"""
            s_waitcnt lgkmcnt(0)
            s_xor_b32 s52, s52, s{S_NONCE}
            s_xor_b32 s53, s53, s{S_NONCE}
            s_xor_b32 s54, s54, s{S_NONCE}
            s_or_b32 s52, s52, s53
            s_or_b32 s52, s52, s54
            s_cbranch_scc0 {lab}_ok
            s_sub_u32 s77, s77, 1
            s_cmp_lg_u32 s77, 0
            s_cbranch_scc1 {lab}""")
            S.label(f"{lab}_ok")
            return
        if hh not in issued: poll_issue(hh)
        v = VP0 + (hh & 1)
        S(f"v_cmp_eq_u32 vcc, s{S_NONCE}, v{v}")
        S(f"s_cmp_eq_u64 vcc, -1\ns_cbranch_scc0 {lab}")
        S.label(f"{lab}_ok")
        S.cold += _raw(f"""{lab}:
        s_mov_b32 s76, {WS_FLAG}
        s_mov_b32 s77, {SPIN_LIMIT}
        {lab}_spin:
        buffer_load_dword v{v}, v{VFL}, {srd(SWS)}, s76 offen offset:{64*hh} sc1
        s_waitcnt vmcnt(0)
        v_cmp_eq_u32 vcc, s{S_NONCE}, v{v}
        s_nop 1
        s_cmp_eq_u64 vcc, -1
        s_cbranch_scc1 {lab}_ok
        s_sub_u32 s77, s77, 1
        s_cmp_lg_u32 s77, 0
        s_cbranch_scc1 {lab}_spin
        s_branch {lab}_ok""")
    oreg, picked = {}, set()
    def pickup(h):
        wait_free((F_O0, F_O1)[h])
        S(f"s_setprio {cfg.lprio}\nv_add_u32 v2, {slot(2 - 2*h)}, v{VWW}")
        for x in range(2):
            oreg[2*h + x] = blocks.pop(0)
            for i in range(4): S(f"ds_read_b128 {vr(oreg[2*h+x] + 4*i, 4)}, v2 offset:{x*SLOT + i*1024}")
        S.wait_lg(0)
        S("s_setprio 0")
        picked.add(h)
    def o_store(k):
        if "nost" in cfg.dbg: return
        S(f"s_add_u32 s{sA}, s{sOP[0]}, {WS_O + k*4096}")
        for i in range(4):
            S(f"buffer_store_dwordx4 {vr(oreg[k] + 4*i, 4)}, v{VOO}, {srd(SWS)}, s{sA} offen offset:{i*1024} sc1", tag=f"o{k}")
    def o_flag(k):
        S.wait_vm_tag(f"o{k}")
        S(f"""s_lshr_b32 s76, s{sOP[0]}, 6
        s_add_u32 s76, s76, {WS_FLAG + 64*k}
        v_mov_b32 v3, s{S_NONCE}
        buffer_store_dword v3, v{VZ}, {srd(SWS)}, s76 offen sc1""")
        blocks.append(oreg.pop(k))
    def kv_duty(m, sl, f, r):
        wait_free(f); kv_write(m, sl); publish(r)
        blocks.extend([KVREG[m], KVREG[m] + 16])
    if cfg.prog2:
        S(f"s_and_b32 s76, s{S_B}, 1\ns_cmp_lg_u32 s76, 0\ns_cbranch_scc1 L_fork_c1")
        S.label("L_fork")
        S.ncold = len(S.cold)
    prog = PROGS[S.progname].split()
    if cfg.stop == "A": prog = ["bA7", "bA8"] if cfg.abar else ["p8"]
    if cfg.stop == "B": prog = [x for x in prog if x[0] in "KVpPS" or x[:2] in ("wK", "wV", "bA")]
    for op in prog:
        if cfg.ptrace and (not cfg.pfilter or op in cfg.pfilter.split(",")): S(trace_raw(cfg, "loader", op))
        if op in ("K1", "V0", "V1"): kv_load({"K1": 1, "V0": 2, "V1": 3}[op])
        elif "@" in op: kv_load_if({"K1": 1, "V0": 2, "V1": 3}[op[:2]], int(op[3]), 2)
        elif op in ("D0", "D1"):
            m = 2 + int(op[1]); wait_free(8 + int(op[1])); v_dma(m, 4 + 2 * int(op[1])); blocks.extend([KVREG[m], KVREG[m] + 16])
        elif op in ("pV0", "pV1"):
            S.wait_vm_tag(f"kv{2 + int(op[2])}"); publish((R_V0, R_V1)[int(op[2])])
        elif op == "warm": warm()
        elif op == "p8": S.wait_vm_tag("ch8"); publish(8)
        elif op[0] == "b":
            j = int(op[2:])
            S.wait_vm_tag(f"ch{j}"); known[0] = j
            S.wait_lg(0)
            if cfg.adetail: stamp(S, cfg, j, True)
            S("s_barrier")
        elif op == "wK0": kv_duty(0, 0, 7, R_K0)
        elif op == "wK1": kv_duty(1, 2, 8, R_K1)
        elif op == "wV0": kv_duty(2, 4, 8, R_V0)
        elif op == "wV1": kv_duty(3, 6, 9, R_V1)
        elif op[0] == "W": w_load(int(op[1:]))
        elif op[0] == "w": w_write(int(op[1:]))
        elif op[0] == "f": wait_free(int(op[1:]))
        elif op[0] == "q": poll(int(op[1:]))
        elif op[0] == "Q": poll_issue(int(op[1:]))
        elif op[0] == "P": pickup(int(op[1:]))
        elif op[0] == "S": o_store(int(op[1:]))
        elif op[0] == "G": o_flag(int(op[1:]))
        elif op[0] == "z": S(f"s_sleep {op[1:]}")
        elif op[0] == "R":
            name = op[1:]
            if name in WSET:
                for j in WSET[name]:
                    if j in parked: w_write(j)
                    assert j in lds_w
                    S.wait_vm_tag(f"u{j}")
            else: assert int(name[2]) in polled
            assert EV[name][0] == last_pub[0] + 1, (name, EV, last_pub)
            publish(EV[name][0])
        else: raise ValueError(op)
    stamp(S, cfg, 3)
    if cfg.trace:
        S(f"s_lshl_b32 s66, s2, 2\ns_add_u32 s66, s66, s{S_W}\ns_lshl_b32 s66, s66, 9\ns_add_u32 s66, s66, {WS_STAMP + (1 << 20)}\nv_lshlrev_b32 v2, 2, v1")
        S(f"buffer_store_dword v250, v2, {srd(SWS)}, s66 offen\nbuffer_store_dword v251, v2, {srd(SWS)}, s66 offen offset:256")
    if cfg.stop:
        S.wait_vm(0); stamps_store(S, cfg); S("s_branch L_end"); return
    S(f"s_cmp_lg_u32 s{S_W}, 0\ns_cbranch_scc1 L_lfin")
    R = 64
    S(f"""v_and_b32 v2, 7, v1
    v_bfe_u32 v3, v1, 3, 2
    v_lshl_add_u32 v2, v3, 4, v2
    s_and_b32 s76, s{S_P}, 1
    s_lshl_b32 s76, s76, 3
    v_add_u32 v2, s76, v2
    v_lshlrev_b32 v2, 4, v2
    v_lshrrev_b32 v3, 5, v1
    v_lshl_add_u32 v4, v3, 14, v2
    s_lshl_b32 s{sA}, s{S_BLK}, 3
    s_add_u32 s{sA}, s{sA}, s{S_B}
    s_lshl_b32 s{sA}, s{sA}, 6
    s_add_u32 s{sA}, s{sA}, s{S_KQ}
    s_lshl_b32 s{sA}, s{sA}, 1
    s_lshr_b32 s76, s{S_P}, 1
    s_add_u32 s{sA}, s{sA}, s76
    s_lshl_b32 s{sA}, s{sA}, 11
    s_add_u32 s{sA}, s{sA}, {WS_DX}
    s_and_b32 s72, s{S_NONCE}, 1
    s_lshl_b32 s73, s{S_NONCE}, 15
    s_and_b32 s73, s73, 0x10000
    s_or_b32 s72, s72, s73
    v_mov_b32 v8, 0x10001
""")
    wait_free(F_DX)
    S(f"s_mov_b32 s77, {SPIN_LIMIT}")
    S.label("L_dx")
    for r in range(8):
        S(f"s_add_u32 s{sT}, s{sA}, {r*2*16384}")
        for gm in range(2):
            S(f"buffer_load_dwordx4 {vr(R+8*r+4*gm,4)}, v4, {srd(SWS)}, s{sT} offen offset:{gm*1024} sc1")
    S(f"v_xor_b32 v5, s72, v{R}")
    for i in range(1, 64): S(f"v_bitop3_b32 v5, v5, v{R+i}, s72 bitop3:0xf6")
    S("v_and_b32 v5, v5, v8\nv_cmp_eq_u32 vcc, 0, v5\ns_cmp_eq_u64 vcc, -1\ns_cbranch_scc1 L_dx_ok")
    S("s_sleep 4\ns_sub_u32 s77, s77, 1\ns_cmp_lg_u32 s77, 0\ns_cbranch_scc1 L_dx")
    S.label("L_dx_ok")
    AC = 24
    for r in range(8):
        for d in range(8):
            src = R + 8 * r + d
            if r == 0:
                S(f"v_lshlrev_b32 v{AC+2*d}, 16, v{src}\nv_and_b32 v{AC+2*d+1}, 0xffff0000, v{src}")
            else:
                S(f"v_lshlrev_b32 v6, 16, v{src}\nv_and_b32 v7, 0xffff0000, v{src}\nv_add_f32 v{AC+2*d}, v{AC+2*d}, v6\nv_add_f32 v{AC+2*d+1}, v{AC+2*d+1}, v7")
    for i in range(8): S(f"v_permlane32_swap_b32 v{AC+i}, v{AC+8+i}")
    for i in range(8): S(f"v_add_f32 v{AC+i}, v{AC+i}, v{AC+8+i}")
    for i in range(4): S(f"v_cvt_pk_bf16_f32 v{44+i}, v{AC+2*i}, v{AC+2*i+1}")
    S(f"""v_and_b32 v2, 7, v1
    s_lshl_b32 s76, s{S_B}, 7
    s_lshl_b32 s77, s{S_KQ}, 5
    s_add_u32 s76, s76, s77
    s_lshl_b32 s77, s{S_P}, 3
    s_add_u32 s76, s76, s77
    v_add_u32 v2, s76, v2
    v_mul_u32_u24 v2, 2304, v2
    v_bfe_u32 v3, v1, 3, 2
    v_lshl_add_u32 v2, v3, 3, v2
    v_lshrrev_b32 v3, 5, v1
    v_lshl_add_u32 v2, v3, 6, v2
    s_mul_i32 s76, s{S_BLK}, 1152
    s_add_u32 s76, s76, 1024
    buffer_store_dwordx2 v[44:45], v2, {srd(SOUT)}, s76 offen {cfg.pol_out}
    buffer_store_dwordx2 v[46:47], v2, {srd(SOUT)}, s76 offen offset:32 {cfg.pol_out}""")
    S.label("L_lfin")
    if cfg.stamps: S("s_waitcnt vmcnt(0)")
    stamps_store(S, cfg)
    S("s_branch L_end")

def compute(S, cfg):
    VX, VW = [4, 5, 6], [7, 8, 9]
    VK, VV, VOST, VZ, VN = [10, 11], [12, 13], 14, 15, 16
    VM, VT, VRC, VPR, VFA, VFT, VPR2 = [16, 17], 19, [[20, 21], [22, 23]], 18, 2, 3, 19
    ONES, LS = 56, [60, 4]
    QP = lambda h: 64 + 32 * h
    SS = lambda h: 128 + 64 * h
    PP = 64
    OF = lambda h, s, u: 96 + 8 * s + 4 * u if h == 0 else 192 + 16 * s + 4 * u
    S.label("L_compute")
    S(f"v_mov_b32 v{VZ}, 0")
    srd_consts(S, (SWS, SOUT, SDBG))
    S("s_waitcnt lgkmcnt(0)")
    first_stamps(S, cfg)
    srd_bases(S, (SWS, SOUT, SDBG))
    S(f"s_or_b32 s66, s2, s3\ns_cmp_lg_u32 s66, 0\ns_cbranch_scc1 L_notag")
    S.out += _raw(f"""s_mov_b32 s66, {WS_EPOCH}
    buffer_load_dword v2, v{VZ}, {srd(SWS)}, s66 offen sc1
    s_waitcnt vmcnt(0)
    v_add_u32 v2, 1, v2
    v_max_u32 v2, 1, v2
    buffer_store_dword v2, v{VZ}, {srd(SWS)}, s66 offen sc1
    buffer_store_dword v2, v{VZ}, {srd(SDBG)}, 0 offen sc1
    s_waitcnt vmcnt(0)""")
    S.label("L_notag")
    S(f"""v_and_b32 v22, 15, v1
    v_lshrrev_b32 v23, 4, v1
    v_mul_u32_u24 v2, {PITCH}, v22
    v_lshl_add_u32 v{VK[0]}, v23, 4, v2
    v_add_u32 v{VK[0]}, {LB}, v{VK[0]}
    v_add_u32 v{VK[1]}, {2*SLOT}, v{VK[0]}
    s_lshl_b32 s66, s{S_W}, 8
    v_add_u32 v{VX[0]}, s66, v{VK[0]}
    v_add_u32 v{VX[1]}, {3*SLOT}, v{VX[0]}
    v_add_u32 v{VX[2]}, {6*SLOT}, v{VX[0]}
    v_bfe_u32 v2, v1, 2, 3
    v_mul_u32_u24 v2, {PITCH}, v2
    v_lshrrev_b32 v3, 5, v1
    v_lshl_add_u32 v2, v3, 9, v2
    v_and_b32 v3, 3, v1
    v_lshl_add_u32 v2, v3, 3, v2
    v_add_u32 v{VW[0]}, {slot(1)}, v2
    v_add_u32 v{VW[1]}, {slot(4)}, v2
    v_add_u32 v{VW[2]}, {slot(7)}, v2
    v_lshrrev_b32 v2, 2, v1
    v_mul_u32_u24 v2, {PITCH}, v2
    v_lshl_add_u32 v2, v3, 3, v2
    v_add_u32 v{VV[0]}, {slot(4)}, v2
    v_add_u32 v{VV[1]}, {slot(6)}, v2
    s_mul_i32 s66, s{S_W}, {4*PITCH}
    s_add_u32 s66, s66, {slot(0)}
    v_lshlrev_b32 v{VOST}, 4, v1
    v_add_u32 v{VOST}, s66, v{VOST}
    s_add_u32 s66, s{S_W}, 4
    v_lshl_add_u32 v{VFA}, v1, 2, 64
    v_writelane_b32 v{VFA}, s66, 0
    s_mov_b32 s{S_C}, {f32(math.log2(math.e) / math.sqrt(128.0))}
    s_mov_b32 s58, s{S_C}
    s_mov_b32 s59, s{S_C}""")
    for pi in range(1, 4):
        S(f"s_add_u32 s66, s2, {64*pi}\ns_and_b32 s66, s66, 255\ns_lshl2_add_u32 s66, s66, s{S_W}\ns_lshl_b32 s{95+pi}, s66, 14")
        S(f"s_add_u32 s66, s{S_KQ}, {pi}\ns_and_b32 s66, s66, 3\ns_andn2_b32 s67, s2, 3\ns_add_u32 s66, s66, s67\ns_lshl2_add_u32 s66, s66, s{S_W}\ns_mul_i32 s66, s66, 6144\ns_add_u32 s{(100, 101, 57)[pi-1]}, s66, {WS_D + (pi-1)*2048}")
    S(f"""s_lshl3_add_u32 s66, s{S_BLK}, s{S_B}
    s_lshr_b32 s67, s{S_H0}, 1
    s_lshl4_add_u32 s66, s66, s67
    s_lshl2_add_u32 s66, s66, s{S_W}
    s_lshl_b32 s66, s66, 12
    s_add_u32 s99, s66, {WS_DX}
    s_lshl2_add_u32 s74, s2, s{S_W}
    s_mul_i32 s74, s74, 6144
    s_add_u32 s74, s74, {WS_D}
    s_add_u32 s75, s74, 4096
    s_lshl2_add_u32 s70, s{S_B}, s{S_W}
    s_mul_i32 s70, s70, {32*2304}
    s_mul_i32 s71, s{S_BLK}, 1152
    s_add_u32 s70, s70, s71
    s_lshl2_add_u32 s71, s{S_P}, s{S_KQ}
    s_lshl_b32 s71, s71, 6
    s_add_u32 s70, s70, s71
    s_add_u32 s71, s70, {16*2304}""")
    G = []
    def add(reads, mf, lead, need=None, free=None, gate=None, bar=False):
        G.append(dict(reads=reads, mf=mf, gate=len(G) - lead if gate is None else gate, need=need, free=free, bar=bar))
    ACC = lambda t, u: 128 + 8 * t + 4 * u
    ARING = [96, 104, 112, 120, 56]
    XF = lambda c, s, u: 24 + 16 * (c & 1) + 8 * s + 4 * u
    for c in range(9):
        for t in range(16):
            rg = ARING[len(G) % 5]
            rd = [f"ds_read_b64_tr_b16 {vr(rg+4*s+2*r,2)}, v{VW[c%3]} offset:{s*SLOT + r*8*PITCH + 32*t}" for s in range(2) for r in range(2)]
            if t == 0: rd = [f"ds_read_b128 {vr(XF(c,s,u),4)}, v{VX[c%3]} offset:{128*u + 64*s}" for s in range(2) for u in range(2)] + rd
            add(rd, [mfma(ACC(t, u), rg + 4*s, XF(c, s, u), first=(c == 0 and s == 0)) for u in range(2) for s in range(2)], cfg.alead,
                need=c if t == 0 and c and not cfg.abar else None, free=c + 1 if t == 15 and (c == 8 or not cfg.abar) else None, bar=cfg.abar and t == 0 and c > 0)
    gA = len(G)
    fill = [(gA - 6, gA, pack(QP(0), 128))]
    tail_fill = None
    KR = lambda i: 24 + 4 * ((i + 4) & 7)
    def qk(h):
        for i in range(32):
            kt, s = i >> 2, i & 3
            add([f"ds_read_b128 {vr(KR(i),4)}, v{VK[h]} offset:{(kt&1)*16*PITCH + (kt>>1)*256 + 64*s}"],
                [mfma(SS(h)+8*kt+4*u, KR(i), QP(h)+8*s+4*u, first=(s == 0)) for u in range(2)], cfg.blead,
                need=R_K0 + h if i == 0 else None, free=F_QK0 + h if i == 31 else None,
                gate=(gA - 3 if i < 4 else max(gA, len(G) - cfg.blead)) if h == 0 else None)
            G[-1]["wait4"] = (i & 3) == 0
    def pv(h):
        g0 = len(G)
        for i in range(32):
            dt, j = i >> 2, i & 3
            add([f"ds_read_b64_tr_b16 {vr(KR(i)+2*r,2)}, v{VV[h]} offset:{r*16*PITCH + j*256 + 32*dt}" for r in range(2)],
                ([mfma(LS[u], ONES, PP+8*jj+4*u, first=(jj == 0)) for u in range(2) for jj in range(4)] if i == 0 else []) +
                [mfma(SS(h)+8*dt+4*u, KR(i), PP+8*j+4*u, first=(j == 0)) for u in range(2)], cfg.blead,
                need=(R_V0, R_V1)[h] if i == 0 else None, free=(F_PV0, F_PV1)[h] if i == 31 else None,
                gate=max(len(G) - cfg.blead, g0 - (3, 3, 2, 2, 1, 1, 0, 0)[i]) if (h == 1 and i < 8) else None)
            G[-1]["wait4"] = (i & 3) == 0
    def softmax(h):
        s = SS(h)
        el = [[s + 8*kt + 4*u + r for kt in range(8) for r in range(4)] for u in range(2)]
        o = []
        for i in range(16):
            for u in range(2):
                e = el[u]
                if i == 0: o.append(f"v_max3_f32 v{VM[u]}, v{e[0]}, v{e[1]}, v{e[2]}")
                elif i < 15: o.append(f"v_max3_f32 v{VM[u]}, v{VM[u]}, v{e[2*i+1]}, v{e[2*i+2]}")
                else: o.append(f"v_max_f32 v{VM[u]}, v{VM[u]}, v{e[31]}")
        a, b = VM
        o += [f"v_permlane32_swap_b32 v{a}, v{b}", f"v_max_f32 v{a}, v{a}, v{b}", f"v_mov_b32 v{b}, v{a}",
              f"v_permlane16_swap_b32 v{a}, v{b}", f"v_max_f32 v{a}, v{a}, v{b}", f"v_mul_f32 v{a}, s{S_C}, v{a}", f"v_mov_b32 v{b}, v{a}",
              f"v_permlane32_swap_b32 v{a}, v{b}"]
        order = [(kt, u, r) for kt in range(8) for u in range(2) for r in range(4)]
        D = 2
        for i in range(64 + 2 * D):
            if i < 64:
                kt, u, r = order[i]; x = s + 8*kt + 4*u + r
                if not cfg.pk: o.append(f"v_fma_f32 v{x}, v{x}, s{S_C}, -v{VM[u]}")
                elif r % 2 == 0: o.append(f"v_pk_fma_f32 {vr(x,2)}, {vr(x,2)}, s[58:59], {vr(VM[0],2)} op_sel:[0,0,{u}] op_sel_hi:[1,1,{u}] neg_lo:[0,0,1] neg_hi:[0,0,1]")
            j = i - D
            if 0 <= j < 64:
                kt, u, r = order[j]; x = s + 8*kt + 4*u + r
                o.append(f"v_exp_f32 v{x}, v{x}")
            j = i - 2 * D
            if 0 <= j < 64:
                kt, u, r = order[j]; x = s + 8*kt + 4*u + r
                if r & 1: o.append(f"v_cvt_pk_bf16_f32 v{PP+8*(kt>>1)+4*u+2*(kt&1)+(r>>1)}, v{x-1}, v{x}")
        return o
    sig = [0]
    def signal(f):
        assert f > sig[0], (f, sig[0])
        sig[0] = f
        S(f"v_mov_b32 v{VFT}, {f}\nds_write_b8 v{VFA}, v{VFT}")
    def o_pack(h):
        s = SS(h); o = []
        need = (F_QK1, FU[1])[h]; lab = f"L_st{h}"
        def chk():
            S(f"v_readfirstlane_b32 s64, v{VPR2}")
            for x in swar(64, need): S(x)
            S(f"s_cbranch_scc0 {lab}")
            S.label(lab + "_ok")
            S.cold += spin_block(lab, lab + "_ok", VPR2, VZ, 4, 64, need, 0)
        for st in range(4):
            part = [f"ds_read_b32 v{VPR2}, v{VZ} offset:4"] if st == 0 else []
            for u in range(2):
                for e in range(2):
                    for r in range(4):
                        x = s + 8*(2*st+e) + 4*u + r
                        if not cfg.pk: part.append(f"v_mul_f32 v{x}, v{x}, v{VRC[h][u]}")
                        elif r % 2 == 0: part.append(f"v_pk_mul_f32 {vr(x,2)}, {vr(x,2)}, {vr(VRC[h][0],2)} op_sel:[0,{u}] op_sel_hi:[1,{u}]")
                i = 2 * st + u
                part += [f"v_cvt_pk_bf16_f32 v{OF(h,st,u)+2*e+x}, v{s+8*(2*st+e)+4*u+2*x}, v{s+8*(2*st+e)+4*u+2*x+1}" for e in range(2) for x in range(2)]
                if i == 0: part.append(chk)
                part.append((f"ds_write_b128 v{VOST}, {vr(OF(h,st,u),4)} offset:{(2 - 2*h + (i >> 2))*SLOT + (i & 3)*1024}", f"st{h}"))
            o.append(part)
        def done():
            S.wait_lg_tag(f"st{h}"); signal((F_O0, F_O1)[h])
        return o, done
    rcp = lambda h: [f"v_rcp_f32 v{VRC[h][u]}, v{LS[u]}" for u in range(2)]
    st = lambda i: (lambda: stamp(S, cfg, i))
    def pack_fill(h, g0):
        op, done = o_pack(h)
        return [(g0 + 4, g0 + 5, rcp(h)), (g0 + 10, g0 + 18, op[0]), (g0 + 18, g0 + 26, op[1]), (g0 + 26, g0 + 33, op[2]), (g0 + 33, g0 + 35, op[3]), (g0 + 35, g0 + 36, [done, "s_wakeup"])]
    if cfg.stop != "A":
        qk(0); qk(1); pv(0)
        fill += [(gA, gA + 1, [st(2), lambda: nonce_issue(S, VT, VZ)]),
                 (gA, gA + 32, pack(QP(1), 192) + [f"v_mov_b32 v{ONES+i}, 0x3f803f80" for i in range(4)]),
                 (gA + 32, gA + 33, [st(3)]), (gA + 33, gA + 64, softmax(0)),
                 (gA + 56, gA + 57, [lambda: nonce_check(S, VT, VZ, "L_cn")]), (gA + 64, gA + 65, [st(4)])] + pack_fill(0, gA + 64)
    gC0 = len(G)
    units, slots, EV = c_units(), c_slots(), c_events(cfg)
    VA, VL16 = [8, 9, 10], 11
    MC = lambda nt, u: 128 + 8 * nt + 4 * u
    EC = lambda nt, u: 200 + 16 * nt + 4 * u
    CRING = [40, 48, 24, 32, 56]
    OBUF = [(64, 8), (80, 8), (96, 8), (112, 8), (192, 16), (224, 16)]
    OB = lambda j, s, u: OBUF[(j - 6) % 6][0] + OBUF[(j - 6) % 6][1] * s + 4 * u
    sOP = [None, 96, 97, 98]
    if cfg.stop is None:
        setup = [f"v_add_u32 v{VA[0]}, {-6*SLOT & 0xffffffff}, v{VV[1]}", f"v_add_u32 v{VA[1]}, {-3*SLOT & 0xffffffff}, v{VV[1]}", f"v_mov_b32 v{VA[2]}, v{VV[1]}",
                 f"v_lshlrev_b32 v{VL16}, 4, v1"]
        fill += [(gA + 65, gA + 69, setup)]
        gC = gC0 + 32
        def cgroup(j, n, **kw):
            uk, hh, x = units[j]
            sl = slots[("W", j)][0]
            va, so = VA[sl // 3], (sl % 3) * SLOT
            k = len(G) - (gC0 if j < 2 else gC)
            rg = CRING[k % 4] if k < 32 else CRING[(k - 32) % 5]
            if uk == "E":
                nt, sp = n >> 1, n & 1
                rd = [f"ds_read_b64_tr_b16 {vr(rg+4*s+2*r,2)}, v{va} offset:{so + (2*(2*sp+s)+r)*128 + 32*nt}" for s in range(2) for r in range(2)]
                mf = [mfma(EC(nt, u), rg + 4*s, OF(hh, 2*sp+s, u), first=(hh == 0 and sp == 0 and s == 0)) for u in range(2) for s in range(2)]
            else:
                bf = (lambda s, u: OF(hh, 2*x+s, u)) if uk == "M" else (lambda s, u: OB(j, s, u))
                rd = [f"ds_read_b64_tr_b16 {vr(rg+4*s+2*r,2)}, v{va} offset:{so + (2*s+r)*256 + 32*n}" for s in range(2) for r in range(2)]
                mf = [mfma(MC(n, u), rg + 4*s, bf(s, u), first=(j == 0 and s == 0)) for u in range(2) for s in range(2)]
            need = None
            for name, us in WSET.items():
                if j in us and name not in seen: need = EV[name][0]; seen.add(name)
            b0 = len(G) - (k & 3)
            add(rd, mf, 3 if k < 36 else 4, gate={0: b0 - 6, 1: b0 - 4, 2: b0 - 2, 3: b0}[k & 3] if (k & ~3) in (0, 16) else None, need=need, **kw)
        seen = set(); gU = {}
        for j in range(cfg.merge):
            if j == 2:
                fill += [(gC0, gC0 + 1, [st(5)]), (gC0 + 3, gC0 + 16, softmax(1)), (len(G), len(G) + 1, [st(6)])] + pack_fill(1, len(G))
                pv(1)
            gU[j] = len(G)
            for n in range(2 if j >= cfg.defer else 0, 8): cgroup(j, n, free=FU.get(j) if n == 7 else None)
        gM = len(G)
        nm_ = 18 - cfg.merge
        for tau in (1, 2, 3):
            for j in range(cfg.merge, 18):
                for e in range(2): cgroup(j, 2 * tau + e)
        for j in range(min(cfg.defer, cfg.merge), 18):
            for e in range(2): cgroup(j, e)
        def o_loads(j):
            uk, hh, x = units[j]
            return [f"s_add_u32 s{48 + j % 6}, s{sOP[1 + x % 3]}, {WS_O + hh*8192 + (x // 3)*4096}"] + \
                   [f"buffer_load_dwordx4 {vr(OB(j, i >> 1, i & 1), 4)}, v{VL16}, {srd(SWS)}, s{48 + j % 6} offen offset:{i*1024} {cfg.pol_o}" for i in range(4)]
        for k in range(4):
            num, p0 = EV[f"OP{k}"]; lab = f"L_rdy{num}"
            def chk(lab=lab, num=num):
                S(f"v_readfirstlane_b32 s64, v{VPR2}")
                for x in swar(64, num): S(x)
                S(f"s_cbranch_scc0 {lab}")
                S.label(lab + "_ok")
                S.cold += spin_block(lab, lab + "_ok", VPR2, VZ, 0, 64, num, 0)
            fill += [(gC + p0 - 2, gC + p0 - 1, [f"ds_read_b32 v{VPR2}, v{VZ}"]), (gC + p0, gC + p0 + 1, [chk])]
            for i in range(3):
                j = 6 + 3 * k + i
                first = {6: 16, 7: 16, 8: 24, 9: 24, 10: 48, 11: 48}.get(j, 8 * (j - 5))
                a = max(p0 + 1 + cfg.ostep * i, first)
                fill += [(gC + a, gC + a + 2, o_loads(j) if "noold" not in cfg.dbg else ["s_nop 0"])]
                if j == 9: fill += [(gC + a + 2, gC + a + 3, [lambda: signal(F_OI), "s_wakeup"])]
        VMASK, GR = 12, 64
        tagprep = [f"s_and_b32 s72, s{S_NONCE}, 1", f"s_lshl_b32 s73, s{S_NONCE}, 15", "s_and_b32 s73, s73, 0x10000", "s_or_b32 s72, s72, s73",
                   f"v_mov_b32 v{VMASK}, 0xfffefffe"]
        def tpack(base, n):
            o = []
            for k in range(n): o += [f"v_cvt_pk_bf16_f32 v{base+k}, v{base+2*k}, v{base+2*k+1}", f"v_and_or_b32 v{base+k}, v{base+k}, v{VMASK}, s72"]
            return o
        dx = list(tagprep)
        for u in range(2):
            for m_ in range(2):
                for k in range(4):
                    d, a = EC(2*m_, u) + k, EC(2*m_ + (k >> 1), u) + 2 * (k & 1)
                    dx += [f"v_cvt_pk_bf16_f32 v{d}, v{a}, v{a+1}", f"v_and_or_b32 v{d}, v{d}, v{VMASK}, s72"]
        for gm in range(4):
            dx.append(f"buffer_store_dwordx4 {vr(EC(2*(gm & 1), gm >> 1),4)}, v{VL16}, {srd(SWS)}, s99 offen offset:{gm*1024} sc1")
        def dsend(tau):
            o = []
            tp = tpack(128 + 16*tau, 8)
            for e in range(2):
                o += tp[8*e:8*e+8]
                o.append(f"buffer_store_dwordx4 {vr(128+16*tau+4*e,4)}, v{VL16}, {srd(SWS)}, s{(100, 101, 57)[tau-1]} offen offset:{e*1024} sc1")
            return o
        daddr = [f"v_and_b32 v2, 15, v1", "v_mul_u32_u24 v2, 2304, v2", "v_bfe_u32 v3, v1, 4, 1", "v_lshl_add_u32 v2, v3, 5, v2", "v_lshrrev_b32 v3, 5, v1", "v_lshl_add_u32 v2, v3, 4, v2",
                 "v_mov_b32 v6, 0x10001", "v_mov_b32 v4, 0x3f80", "v_mov_b32 v5, 0x3f800000"]
        q = 2 * nm_
        w = min(q - 1, 6)
        fill += [(gC + cfg.dxpos, gC + cfg.dxpos + 8, dx),
                 (gC + cfg.dxgo, gC + cfg.dxgo + 1, [lambda: signal(F_DX), "s_wakeup"]), (gM + 1, gM + 6, daddr), (gM + q + 1, gM + q + 1 + w, dsend(1)), (gM + 2*q + 1, gM + 2*q + 1 + w, dsend(2)), (gM + 3*q + 1, gM + 3*q + 1 + w, dsend(3))]
        if cfg.mst:
            fill += [(gC + int(x), gC + int(x) + 1, [lambda i=i: stamp(S, cfg, 1 + i, True)]) for i, x in enumerate(cfg.mst.split(","))]
        if cfg.cdetail > 0:
            fill += [((gC if j > 1 else gC0) + 8*j, (gC if j > 1 else gC0) + 8*j + 1, [lambda i=j - (cfg.cdetail - 1): stamp(S, cfg, 1 + i, True)]) for j in range(18) if 0 <= j - (cfg.cdetail - 1) < 12]
    if cfg.adetail:
        fill += [(16*c, 16*c + 1, [lambda c=c: stamp(S, cfg, 1 + c, True)]) for c in range(9)]
        if cfg.stop != "A": fill += [(gA + 32*i, gA + 32*i + 1, [lambda i=i: stamp(S, cfg, 10 + i, True)]) for i in range(3)]
    queue = []
    frees, due = {}, {}
    for gi, g in enumerate(G):
        if g["need"] is not None and not cfg.nocheck:
            lab = f"L_rdy{g['need']}"
            steps = [f"v_readfirstlane_b32 s69, v{VPR}"] + swar(69, g["need"])
            at = max(0, len(queue) - cfg.probe_ahead)
            pg = queue[at][0] if at < len(queue) else g["gate"]
            queue.insert(at, (pg, "r", f"ds_read_b32 v{VPR}, v{VZ}"))
            queue.append((g["gate"], "r", steps[0]))
            queue.append((g["gate"], "gap", None))
            def chk(lab=lab, need=g["need"], steps=steps):
                for x in steps[1:]: S(x)
                S(f"s_cbranch_scc0 {lab}")
                S.label(lab + "_ok")
                S.cold += spin_block(lab, lab + "_ok", VPR, VZ, 0, 69, need, 0)
            queue.append((g["gate"], "c", chk))
        if g["bar"]:
            for _ in range(cfg.bargap): queue.append((g["gate"], "gap", None))
            def br():
                S.wait_lg(0); S("s_barrier")
            queue.append((g["gate"], "c", br))
        for k, r in enumerate(g["reads"]):
            queue.append((g["gate"], "r", (r, f"g{gi}") if k == len(g["reads"]) - 1 else r))
        if g["free"] is not None and not cfg.nofree:
            def fr(gi=gi, f=g["free"]):
                S.wait_lg_tag(f"g{gi}")
                signal(f)
                if cfg.wake: due[m + 2] = lambda: S("s_wakeup")
            frees[f"g{gi}"] = fr
    nm = [len(g["mf"]) for g in G]
    pos = [sum(nm[:i]) for i in range(len(G) + 1)]
    fl = {}
    for (g0, g1, ins) in fill:
        a, b = pos[g0], pos[g1]
        for k, x in enumerate(ins): fl.setdefault(a + (k * (b - a)) // len(ins), []).append(x)
    if tail_fill: fl.setdefault(pos[tail_fill[0]] - 1, []).extend(tail_fill[1])
    S("s_barrier")
    stamp(S, cfg, 1)
    m = 0
    def issue(q):
        emit(S, q[2])
        if isinstance(q[2], tuple) and q[2][1] in frees: due[m + cfg.free_delay] = frees[q[2][1]]
    for gi, g in enumerate(G):
        last_tag = f"g{gi}"
        while any(isinstance(q[2], tuple) and q[2][1] == last_tag for q in queue):
            q = queue.pop(0)
            if q[1] != "gap": issue(q)
        if g.get("wait4"): S.wait_lg_tag(f"g{gi+3}")
        if cfg.gwait: S.wait_lg_tag(last_tag)
        for k, mf in enumerate(g["mf"]):
            S(mf)
            if m in due: due.pop(m)()
            n = 0
            while queue and n < 2 and queue[0][0] <= gi:
                q = queue[0]
                if q[1] == "gap": queue.pop(0); break
                if n >= 1 and q[0] == gi and q[1] == "r": break
                queue.pop(0); issue(q); n += 1
            for x in fl.get(m, []): emit(S, x)
            m += 1
    assert not queue
    while due: due.pop(min(due))()
    if cfg.stop == "A":
        stamp(S, cfg, 2)
        for x in pack(QP(1), 192): S(x)
        S(f"s_lshl_b32 s66, s2, 16\ns_lshl_b32 s67, s{S_W}, 14\ns_add_u32 s66, s66, s67\nv_lshlrev_b32 v{VOST}, 4, v1\nv_add_u32 v{VOST}, s66, v{VOST}")
        for i in range(16):
            S(f"s_mov_b32 s66, {i*1024}")
            S(f"buffer_store_dwordx4 {vr(64+4*i,4)}, v{VOST}, {srd(SWS)}, s66 offen")
        S.wait_vm(0); stamps_store(S, cfg); S("s_branch L_end"); return
    if cfg.stop == "B":
        stamp(S, cfg, 6)
        op1, done1 = o_pack(1)
        for x in op1 + [done1]: emit(S, x)
        S.wait_vm(0); stamp(S, cfg, 7); stamps_store(S, cfg); S("s_branch L_end"); return
    stamp(S, cfg, 7)
    S(f"s_mov_b32 s77, {SPIN_LIMIT}")
    S.label("L_d")
    for i in range(6):
        S(f"buffer_load_dwordx4 {vr(GR+4*i,4)}, v{VL16}, {srd(SWS)}, s{74 + i//4} offen offset:{(i%4)*1024} sc1")
    S(f"v_xor_b32 v7, s72, v{GR}")
    for i in range(1, 24): S(f"v_bitop3_b32 v7, v7, v{GR+i}, s72 bitop3:0xf6")
    S("v_and_b32 v7, v7, v6\nv_cmp_eq_u32 vcc, 0, v7\ns_cmp_eq_u64 vcc, -1\ns_cbranch_scc1 L_d_ok")
    S("s_sub_u32 s77, s77, 1\ns_cmp_lg_u32 s77, 0\ns_cbranch_scc1 L_d")
    S.label("L_d_ok")
    stamp(S, cfg, 9)
    for tau in range(3):
        for u in range(2):
            for e in range(2):
                for x in range(2):
                    src = GR + 8 * tau + 4*e + 2*u + x; a = MC(e, u) + 2 * x
                    if cfg.dot2: S(f"v_dot2c_f32_bf16 v{a}, v{src}, v4\nv_dot2c_f32_bf16 v{a+1}, v{src}, v5")
                    else: S(f"v_lshlrev_b32 v8, 16, v{src}\nv_and_b32 v9, 0xffff0000, v{src}\nv_add_f32 v{a}, v{a}, v8\nv_add_f32 v{a+1}, v{a+1}, v9")
    if cfg.dot2: S("s_nop 2")
    GS = 48
    for u in range(2):
        for e in range(2):
            for x in range(2):
                S(f"v_cvt_pk_bf16_f32 v{GS+4*u+2*e+x}, v{MC(e,u)+2*x}, v{MC(e,u)+2*x+1}")
    for u in range(2):
        for x in range(2): S(f"v_permlane16_swap_b32 v{GS+4*u+x}, v{GS+4*u+2+x}")
    for u in range(2):
        S(f"buffer_store_dwordx4 {vr(GS+4*u,4)}, v2, {srd(SOUT)}, s{70+u} offen {cfg.pol_out}")
    if cfg.stamps:
        S.wait_vm(0); stamp(S, cfg, 10)
    stamps_store(S, cfg)
    S("s_branch L_end")

Cfg.dxwait = 17
H7 = "bA7 wK0 warm bA8 wK1 V1 wV0 W0 W1 W2 RWA W3 W4 W5 wV1 W6 W7 W8 w2 W9 W10 P0 S0 S1 RWB G0 G1 W11 W12 W13 W14 W15 W16 W17 "
H8 = "warm bA7 wK0 bA8 V0 wK1 W0 W1 wV0 V1 RWA W2 W3 W4 W5 W6 wV1 P0 S0 S1 RWB G0 G1 W7 W8 W9 W10 W11 W12 W13 W14 W15 W16 W17 "
H9 = "K1 bA7 wK0 bA8 V0 wK1 warm wV0 V1 W0 W1 RWA W2 W3 W4 W5 W6 wV1 P0 S0 S1 RWB G0 G1 W7 W8 W9 W10 W11 W12 W13 W14 W15 W16 W17 "
TA = "P1 S2 q0 ROP0 q1 ROP1 G2 f18 S3 RWC G3 w9 w10 w11 RWD q2 ROP2 q3 ROP3 RWE"
TB = "P1 S2 S3 q0 ROP0 q1 ROP1 G2 G3 RWC RWD q2 ROP2 q3 ROP3 RWE"
TD = "q0 ROP0 q1 ROP1 P1 S2 S3 RWC G2 G3 w9 w10 w11 RWD q2 ROP2 q3 ROP3 RWE"
TE = "q0 ROP0 q1 ROP1 P1 f18 S2 S3 RWC G2 G3 w9 w10 w11 RWD q2 ROP2 q3 ROP3 RWE"
HA = "bA7 wK0 warm bA8 wK1 V1 wV0 W0 W1 W2 RWA W3 W4 W5 wV1 W6 W7 W8 w2 W9 W10 W11 W12 P0 S0 S1 RWB W13 W14 W15 W16 W17 G0 G1 "
HB = "K1 bA7 wK0 bA8 V0 wK1 warm wV0 V1 W0 W1 RWA W2 W3 W4 W5 W6 wV1 P0 S0 S1 W7 W8 W9 W10 RWB G0 G1 "
TF = "q0 ROP0 q1 ROP1 P1 f18 S2 S3 W11 W12 W13 RWC G2 G3 W14 W15 W16 W17 w9 w10 w11 RWD q2 ROP2 q3 ROP3 RWE"
TG = "P1 q0 ROP0 q1 ROP1 f18 S2 S3 RWC G2 G3 w9 w10 w11 RWD q2 ROP2 q3 ROP3 RWE"
PROGS = {h + x: H + T for h, H in (("7", H7), ("8", H8), ("9", H9), ("A", HA)) for x, T in (("a", TA), ("b", TB), ("d", TD), ("e", TE), ("g", TG))}
HC = "bA7 wK0 warm bA8 wK1 V1 wV0 W0 W1 W2 RWA W3 W4 W5 wV1 W6 W7 W8 w2 W9 W10 W11 W12 P0 S0 S1 RWB G0 G1 W13 W14 W15 W16 W17 "
HD = "K1 bA7 wK0 bA8 V0 wK1 warm wV0 V1 W0 W1 RWA W2 W3 W4 W5 W6 wV1 W7 W8 P0 S0 S1 RWB G0 G1 W9 W10 W11 W12 W13 W14 W15 W16 W17 "
HE = "warm bA7 wK0 bA8 V0 wK1 W0 W1 wV0 V1 RWA W2 W3 W4 W5 W6 wV1 W7 W8 W9 W10 P0 S0 S1 RWB G0 G1 W11 W12 W13 W14 W15 W16 W17 "
TH = "q0 ROP0 q1 ROP1 w7 w8 P1 w9 w10 f18 S2 S3 RWC w11 RWD G2 G3 q2 ROP2 q3 ROP3 RWE"
TI = "q0 ROP0 q1 ROP1 P1 f18 S2 S3 RWC w9 w10 w11 G2 G3 RWD q2 ROP2 q3 ROP3 RWE"
TJ = "q0 ROP0 q1 ROP1 w7 w8 P1 S2 w9 w10 f18 S3 RWC G2 w11 RWD G3 q2 ROP2 q3 ROP3 RWE"
HF = "bA7 wK0 warm bA8 wK1 V1 wV0 f10 W0 W1 W2 RWA wV1 f12 W5 W6 P0 S0 S1 W3 W4 G0 G1 RWB "
HG = "warm bA7 wK0 bA8 V0 wK1 wV0 V1 f10 W0 W1 W2 RWA wV1 f12 W5 W6 P0 S0 S1 W3 W4 G0 G1 RWB "
HH = "K1 bA7 wK0 bA8 V0 wK1 warm wV0 V1 f10 W0 W1 W2 RWA wV1 f12 W5 W6 P0 S0 S1 W3 W4 G0 G1 RWB "
TK = "q0 ROP0 q1 ROP1 f15 W7 W8 P1 W9 W10 f18 W11 S2 S3 RWC f19 W12 W13 G2 G3 RWD q2 ROP2 q3 ROP3 f20 W14 W15 W16 W17 RWE"
TL = "q0 ROP0 q1 ROP1 f15 W7 W8 P1 S2 W9 W10 f18 W11 S3 RWC G2 f19 W12 W13 G3 RWD q2 ROP2 f20 W14 W15 W16 W17 q3 ROP3 RWE"
TM = "q0 ROP0 q1 ROP1 f15 W7 W8 P1 S2 S3 W9 W10 f17 W11 RWC G2 G3 f19 W12 W13 RWD q2 ROP2 f20 W14 W15 W16 W17 q3 ROP3 RWE"
for h, H in (("F", HF), ("G", HG), ("H", HH)):
    for x, T in (("k", TK), ("l", TL), ("m", TM)): PROGS[h + x] = H + T
HI = "warm bA7 wK0 bA8 D0 wK1 W3 W4 W5 W6 D1 pV0 f10 W0 W1 W2 W11 W12 W13 RWA pV1 W14 W15 W16 W17 P0 S0 S1 RWB G0 G1 "
HJ = "warm bA7 wK0 bA8 D0 wK1 W3 W4 W5 W6 D1 pV0 f10 W0 W1 W2 W7 W8 W9 RWA pV1 W10 W11 W12 W13 P0 S0 S1 RWB G0 G1 W14 W15 W16 W17 "
TN = "q0 ROP0 q1 ROP1 f15 W7 W8 P1 W9 W10 f18 S2 S3 RWC w11 RWD G2 G3 q2 ROP2 q3 ROP3 RWE"
TO = "q0 ROP0 q1 ROP1 f15 W7 W8 P1 S2 W9 W10 f18 S3 RWC G2 w11 RWD G3 q2 ROP2 q3 ROP3 RWE"
PROGS["In"] = HI + TN; PROGS["Io"] = HI + TO; PROGS["Jh"] = HJ + TH; PROGS["Jj"] = HJ + TJ
PROGS["Kn"] = PROGS["In"].replace("warm bA7 wK0 bA8 D0 wK1", "K1 bA7 wK0 bA8 D0 wK1 warm")
HL = "warm bA7 wK0 bA8 D0 wK1 D1 pV0 f10 W0 W1 W2 W3 W4 W5 W6 RWA pV1 W7 W8 W9 W10 W11 W12 W13 P0 S0 S1 RWB G0 G1 W14 W15 W16 W17 "
HM = "warm bA7 wK0 bA8 D0 wK1 W3 W4 D1 pV0 f10 W0 W1 W2 W5 W6 RWA W7 W8 pV1 W9 W10 W11 W12 P0 S0 S1 RWB G0 G1 W13 W14 W15 W16 W17 "
PROGS["Lh"] = HL + TH; PROGS["Mh"] = HM + TH; PROGS["Lj"] = HL + TJ
HN = "warm bA7 wK0 bA8 D0 wK1 D1 pV0 f10 W0 W1 W2 W9 W10 W11 RWA W12 W13 pV1 W14 W15 W16 W17 f12 W5 W6 P0 S0 S1 W3 W4 G0 G1 RWB "
PROGS["N1"] = HN + "q0 ROP0 q1 ROP1 f15 W7 W8 P1 w9 w10 f18 S2 S3 RWC w11 RWD G2 G3 q2 ROP2 q3 ROP3 RWE"
PROGS["N2"] = HN.replace("W9 W10 ", "") + "q0 ROP0 q1 ROP1 f15 W7 W8 P1 W9 W10 f18 S2 S3 RWC w11 RWD G2 G3 q2 ROP2 q3 ROP3 RWE"
PROGS["N3"] = HN.replace("W14 W15 W16 W17 ", "") + "q0 ROP0 q1 ROP1 f15 W7 W8 P1 w9 w10 f18 S2 S3 RWC w11 RWD G2 G3 q2 ROP2 f20 W14 W15 W16 W17 q3 ROP3 RWE"
PROGS["N4"] = HN + "q0 ROP0 q1 ROP1 f15 W7 W8 P1 f18 S2 S3 RWC w9 w10 w11 G2 G3 RWD q2 ROP2 q3 ROP3 RWE"
PROGS["S0"] = ("warm bA7 wK0 bA8 V0 wK1 W0 W1 W2 W3 wV0 V1 W4 W5 RWA W6 W7 W8 wV1 W9 W10 P0 S0 S1 RWB G0 G1 W11 W12 W13 W14 W15 W16 W17 " + TH)
PROGS["S1"] = ("warm bA7 wK0 bA8 W0 W1 W2 W3 wK1 V0 W4 W5 wV0 RWA W6 W7 V1 W8 W9 W10 wV1 P0 W11 W12 S0 S1 RWB G0 G1 W13 W14 W15 W16 W17 " + TH)
PROGS["S2"] = ("warm bA7 wK0 bA8 W0 W1 W2 W3 wK1 V0 W4 W5 wV0 RWA W6 W7 V1 W8 W9 W10 wV1 P0 S0 S1 RWB G0 G1 W11 W12 W13 W14 W15 W16 W17 " + TH)
PROGS["S3"] = ("warm bA7 wK0 bA8 V0 wK1 W0 W1 W2 W3 wV0 V1 W4 W5 RWA W6 W7 W8 wV1 W9 W10 P0 S0 S1 RWB G0 G1 W11 W12 W13 W14 W15 W16 W17 " + TJ.replace("P1 S2 w9 w10 f18 S3", "P1 S2 S3 w9 w10"))
for h, H in (("C", HC), ("D", HD), ("E", HE)):
    for x, T in (("h", TH), ("i", TI), ("j", TJ)): PROGS[h + x] = H + T
Cfg.prog = "Eh"

def gen(cfg):
    hdr = open(REF).read().split("; Override launch")[0].rstrip("\n")
    launch = [f"; @launch grid=(256,1,1) block=(512,1,1) lds={LDS_BYTES}"]
    if cfg.amp >= 0:
        launch = [f"; @launch kernel={NAME} grid=(256,1,1) block=(512,1,1) lds={LDS_BYTES}", "; @launch kernel=amp_kernel grid=(1,1,1) block=(64,1,1) lds=0"]
    if cfg.pre or cfg.post:
        launch = [f"; @launch kernel={NAME} grid=(256,1,1) block=(512,1,1) lds={LDS_BYTES}"]
        if cfg.pre: launch = [f"; @launch kernel=aux_kernel grid=({cfg.pre},1,1) block=(64,1,1) lds=0"] + launch
        if cfg.post: launch += [f"; @launch kernel=aux_kernel grid=({cfg.post},1,1) block=(64,1,1) lds=0"]
    L = [hdr] + launch + ['.amdgcn_target "amdgcn-amd-amdhsa--gfx950"',
         ".text", f".globl {NAME}", ".p2align 8", f".type {NAME},@function", f"{NAME}:"]
    P = Stream("pro"); prologue(P, cfg); L += P.finish()
    Ld = Stream("loader"); Ld.smem_pending = True; Ld.progname = cfg.prog; loader(Ld, cfg); L += Ld.finish()
    if cfg.prog2:
        import re
        n0 = len(SITES)
        L2 = Stream("loader2"); L2.smem_pending = True; L2.progname = cfg.prog2; loader(L2, cfg)
        body = L2.finish(); body = body[body.index("L_fork:"):]
        ren = lambda x: re.sub(r"\b(L_(?!end\b)\w+)", r"\1_c1", x)
        L += [ren(x) for x in body]
        Ld.cold += [ren(x if isinstance(x, str) else "    " + x.text) for x in L2.cold[L2.ncold:]]
    L.append(".p2align 6")
    C = Stream("compute"); C.smem_pending = True; compute(C, cfg); L += C.finish()
    L.append("L_cold:")
    for s in (Ld, C):
        L += [x if isinstance(x, str) else "    " + x.text for x in s.cold]
    L += ["L_end:", "    s_endpgm", '.section .rodata,"a"', ".p2align 6", f".amdhsa_kernel {NAME}",
          "  .amdhsa_next_free_vgpr 256", "  .amdhsa_next_free_sgpr 102", "  .amdhsa_accum_offset 256",
          "  .amdhsa_group_segment_fixed_size 0", "  .amdhsa_kernarg_size 104", "  .amdhsa_user_sgpr_count 2",
          "  .amdhsa_user_sgpr_kernarg_segment_ptr 1", "  .amdhsa_system_sgpr_workgroup_id_x 1", ".end_amdhsa_kernel", ""]
    if cfg.pre or cfg.post:
        L = L[:-1] + [".text", ".globl aux_kernel", ".p2align 8", ".type aux_kernel,@function", "aux_kernel:", "    s_endpgm",
              '.section .rodata,"a"', ".p2align 6", ".amdhsa_kernel aux_kernel", "  .amdhsa_next_free_vgpr 8", "  .amdhsa_next_free_sgpr 16", "  .amdhsa_accum_offset 8",
              "  .amdhsa_group_segment_fixed_size 0", "  .amdhsa_kernarg_size 104", "  .amdhsa_user_sgpr_count 2",
              "  .amdhsa_user_sgpr_kernarg_segment_ptr 1", "  .amdhsa_system_sgpr_workgroup_id_x 1", ".end_amdhsa_kernel", ""]
    if cfg.amp >= 0:
        Am = Stream("amp")
        Am(f"""s_cmp_ge_u32 s2, 1
        s_cbranch_scc1 amp_end
        s_memrealtime s[24:25]
        s_load_dwordx2 s[4:5], s[0:1], 96
        s_mov_b32 s10, {WS_SIZE}
        s_mov_b32 s11, 0x20000
        s_waitcnt lgkmcnt(0)
        s_mov_b32 s8, s4
        s_and_b32 s9, s5, 0xffff
        v_lshlrev_b32 v1, 9, v0
        s_mov_b32 s12, {WS_STAMP + 64 * cfg.ampw}""")
        for i in range(4):
            Am(f"s_add_u32 s13, s12, {i*64*512}")
            Am(f"buffer_load_dword v{4+i}, v1, s[8:11], s13 offen offset:56")
            Am(f"buffer_load_dword v{8+i}, v1, s[8:11], s13 offen offset:{4*(cfg.amp if cfg.amp < 100 else 15)}")
        Am("v_min_u32 v4, v4, v5\nv_min_u32 v6, v6, v7\nv_min_u32 v4, v4, v6\nv_max_u32 v8, v8, v9\nv_max_u32 v10, v10, v11\nv_max_u32 v8, v8, v10")
        Am("s_mov_b32 s14, -1\ns_mov_b32 s15, 0")
        for l in range(64):
            Am(f"v_readlane_b32 s16, v4, {l}\nv_readlane_b32 s17, v8, {l}\ns_nop 3\ns_min_u32 s14, s14, s16\ns_max_u32 s15, s15, s17")
        if cfg.amp == 100: Am("s_mov_b32 s14, s15\ns_mov_b32 s15, s24")
        if cfg.amp == 101:
            Am(f"s_add_u32 s4, s4, {WS_STAMP - 64}\ns_addc_u32 s5, s5, 0\ns_load_dword s26, s[4:5], 0\ns_waitcnt lgkmcnt(0)\ns_mov_b32 s15, s14\ns_mov_b32 s14, s26")
        if cfg.amp == 102: Am("s_mov_b32 s15, s14")
        Am("s_sub_u32 s14, s15, s14\ns_min_u32 s14, s14, 20000\ns_mul_i32 s14, s14, 10\ns_memrealtime s[18:19]\ns_waitcnt lgkmcnt(0)")
        Am.label("amp_spin")
        Am("s_sleep 2\ns_memrealtime s[20:21]\ns_waitcnt lgkmcnt(0)\ns_sub_u32 s22, s20, s18\ns_cmp_lt_u32 s22, s14\ns_cbranch_scc1 amp_spin")
        Am.label("amp_end")
        Am("s_endpgm")
        L = L[:-1]
        L += [".text", ".globl amp_kernel", ".p2align 8", ".type amp_kernel,@function", "amp_kernel:"] + Am.finish()
        L += [".globl pre_kernel", ".p2align 8", ".type pre_kernel,@function", "pre_kernel:",
              "s_cmp_ge_u32 s2, 1", "s_cbranch_scc1 pre_end", "s_load_dwordx2 s[4:5], s[0:1], 96", f"s_mov_b32 s10, {WS_SIZE}", "s_mov_b32 s11, 0x20000", "s_waitcnt lgkmcnt(0)",
              "s_mov_b32 s8, s4", "s_and_b32 s9, s5, 0xffff", "v_mov_b32 v1, 0", "s_memrealtime s[12:13]", "s_waitcnt lgkmcnt(0)", "v_mov_b32 v2, s12", f"s_mov_b32 s14, {WS_STAMP - 64}",
              "buffer_store_dword v2, v1, s[8:11], s14 offen", "pre_end:", "s_endpgm"]
        L += ['.section .rodata,"a"', ".p2align 6", ".amdhsa_kernel pre_kernel", "  .amdhsa_next_free_vgpr 32", "  .amdhsa_next_free_sgpr 32", "  .amdhsa_accum_offset 32",
              "  .amdhsa_group_segment_fixed_size 0", "  .amdhsa_kernarg_size 104", "  .amdhsa_user_sgpr_count 2",
              "  .amdhsa_user_sgpr_kernarg_segment_ptr 1", "  .amdhsa_system_sgpr_workgroup_id_x 1", ".end_amdhsa_kernel"]
        L += ['.section .rodata,"a"', ".p2align 6", ".amdhsa_kernel amp_kernel", "  .amdhsa_next_free_vgpr 32", "  .amdhsa_next_free_sgpr 32", "  .amdhsa_accum_offset 32",
              "  .amdhsa_group_segment_fixed_size 0", "  .amdhsa_kernarg_size 104", "  .amdhsa_user_sgpr_count 2",
              "  .amdhsa_user_sgpr_kernarg_segment_ptr 1", "  .amdhsa_system_sgpr_workgroup_id_x 1", ".end_amdhsa_kernel", ""]
    if cfg.align:
        from align import align
        k0 = L.index(f"{NAME}:"); k1 = L.index("L_end:") + 2
        body, nprom, npad = align(L[k0:k1], "L_compute", "L_cold", cfg.align == 2)
        L = L[:k0] + body + L[k1:]
        sys.stderr.write(f"align: promoted {nprom} padded {npad}\n")
    sys.stderr.write(f"nops: loader {Ld.nops} compute {C.nops}\n")
    return "\n".join(L)

if __name__ == "__main__":
    cfg = Cfg()
    out = sys.argv[1]
    for a in sys.argv[2:]:
        k, val = a.split("=", 1)
        cur = getattr(Cfg, k)
        if isinstance(cur, bool): val = val in ("1", "true", "True")
        elif isinstance(cur, int): val = int(val)
        elif val == "None": val = None
        setattr(cfg, k, val)
    open(out, "w").write(gen(cfg))
    open(out + ".sites", "w").write(" ".join(map(str, SITES)))
```

```python
import sys, math, struct
from sched import Stream, Ins

NAME = "concat_heads__mha_block_cached__gqa_block_cached__near_ridge_kernel"
REF = "concat_heads__mha_block_cached__gqa_block_cached__near_ridge.s.ref"
SLOT = 17408
PITCH = 1056
LB = 512
LDS_BYTES = LB + 9 * SLOT
def slot(i): return LB + i * SLOT
WS_O, WS_D, WS_DX, WS_FLAG, WS_EPOCH, WS_STAMP = 0, 16 << 20, 32 << 20, 40 << 20, 41 << 20, 48 << 20
WS_SIZE = 64 << 20
SPIN_LIMIT = 1 << 18

def f32(x): return struct.unpack("<I", struct.pack("<f", x))[0]
def vr(n, c=1): return f"v{n}" if c == 1 else f"v[{n}:{n+c-1}]"
def mfma(d, a, b, first=False):
    return f"v_mfma_f32_16x16x32_bf16 {vr(d,4)}, {vr(a,4)}, {vr(b,4)}, {'0' if first else vr(d,4)}"
def _raw(text): return [Ins(l.strip()) if not l.strip().endswith(":") else l.strip() for l in text.split("\n") if l.strip()]
def emit(S, x):
    if callable(x): x()
    elif isinstance(x, tuple): S(*x)
    else: S(x)

SX, SWQ, SK, SV, SWO, SWS, SOUT, SDBG = 8, 12, 16, 20, 24, 28, 32, 36
def srd(n): return f"s[{n}:{n+3}]"
S_BLK, S_KQ, S_B, S_P, S_H0, S_W, S_NONCE, S_C = 40, 41, 42, 43, 44, 45, 46, 47

R_K0, R_K1, R_V0, R_WA, R_V1, R_U = 9, 10, 11, 12, 13, 14
F_QK0, F_QK1, F_PV0, F_O0, F_PV1, F_O1 = 10, 11, 12, 13, 15, 16
F_OI, F_DX = 18, 21
FU = {1: 14, 2: 17, 4: 19, 8: 20}
WSET = {"WA": (0, 1), "WB": (2, 3, 4, 5, 6), "WC": (7, 8), "WD": (9, 10, 11, 12, 13), "WE": (14, 15, 16, 17)}
def c_events(cfg):
    pos = {"WB": 12, "WC": 52, "WD": 68, "WE": 8 * min(14, cfg.merge) - 4}
    for k, x in enumerate(cfg.opos.split(",")): pos[f"OP{k}"] = int(x)
    ev = {n: (R_U + i, pos[n]) for i, n in enumerate(sorted(pos, key=lambda n: pos[n]))}
    ev["WA"] = (R_WA, -12)
    return ev

class Cfg:
    pol_x = ""; pol_wq = ""; pol_kv = "nt"; pol_wo = ""
    stop = None
    stamps = False; real = False; adetail = False; cdetail = 0
    ngrp = 3; rotp = 1; rotk = 3
    k0pos = 1; k0cls = 4; kvwait = 4
    codepf = True
    order = "blk"
    flag0 = -5; flag0b = 4; o1pos = 16; flag1 = 44; flag1b = 60; dxpos = 56
    amp = -1; ampw = 0
    probe_ahead = 8
    free_delay = 7
    trace = False
    gwait2 = False
    mst = ""
    prog2 = ""
    defer = 12
    dot2 = True
    wprio2 = 0
    dbg = ""
    spoll = True
    blead = 7
    pk = False
    pol_out = ""
    pre = 0
    post = 0
    align = 0
    dxgo = 96
    opos = "26,27,86,98"
    ostep = 2
    pol_o = "sc1"
    pfilter = ""
    o1end = 10
    merge = 15
    dxsleep = 8
    akv = "0:1:4,1:3:4:2"
    o1len = 30
    ptrace = False
    early0 = 72
    warmpos = -1
    k1pos = -1
    warmrot = 3
    wprio = 0
    bargap = 4
    abar = True
    cbar = 6
    nocheck = False
    nofree = False
    alead = 4
    nodma = False
    lprio = 3
    lsleep = 5
    wake = True
    gwait = True
    early = False
    trace_from = 0

def stamp(S, cfg, idx, det=False):
    if not cfg.stamps: return
    if (cfg.cdetail or cfg.adetail) and idx not in (0, 13) and not det: return
    S(f"{'s_memrealtime' if cfg.real else 's_memtime'} s[78:79]")
    S("s_waitcnt lgkmcnt(0)")
    S(f"s_mov_b32 s{80+idx}, s78")

SITES = []
def trace_raw(cfg, who, ident):
    if not cfg.trace or len(SITES) >= 128: return ""
    if cfg.ptrace and not isinstance(ident, str): return ""
    k = len(SITES); SITES.append(ident)
    return f"{'s_memrealtime' if cfg.real else 's_memtime'} s[78:79]\ns_waitcnt lgkmcnt(0)\nv_writelane_b32 v{250 + (k >> 6)}, s78, {k & 63}\n"
def stamps_store(S, cfg):
    if not cfg.stamps: return
    S("s_memrealtime s[78:79]\ns_waitcnt lgkmcnt(0)\ns_mov_b32 s95, s78")
    stamp(S, cfg, 13)
    S(f"s_lshl_b32 s66, s2, 3\ns_add_u32 s66, s66, s3\ns_lshl_b32 s66, s66, 6\ns_add_u32 s66, s66, {WS_STAMP}")
    S("v_mov_b32 v2, 0")
    S("s_mov_b64 exec, 1")
    for i in range(16):
        S(f"v_mov_b32 v3, s{80+i}")
        S(f"buffer_store_dword v3, v2, {srd(SWS)}, s66 offen offset:{4*i}")
    S("s_mov_b64 exec, -1")

def prologue(S, cfg):
    S(f"""s_cmp_ge_u32 s2, 256
    s_cbranch_scc1 L_end
    s_bfe_u32 s{S_BLK}, s2, 0x10002
    s_mul_i32 s66, s{S_BLK}, 40
    s_add_u32 s4, s0, s66
    s_addc_u32 s5, s1, 0
    s_load_dwordx8 s[48:55], s[4:5], 0""")
    if cfg.stamps:
        S(f"s_memrealtime s[6:7]\n{'s_memrealtime' if cfg.real else 's_memtime'} s[92:93]")
    S(f"""v_lshrrev_b32 v2, 6, v0
    v_and_b32 v1, 63, v0
    s_load_dwordx2 s[56:57], s[4:5], 32
    v_readfirstlane_b32 s3, v2
    s_load_dwordx4 s[60:63], s[0:1], 80
    s_load_dwordx2 s[64:65], s[0:1], 96
    s_and_b32 s{S_KQ}, s2, 3
    s_bfe_u32 s{S_B}, s2, 0x30003
    s_lshr_b32 s{S_P}, s2, 6
    s_lshl2_add_u32 s{S_H0}, s{S_KQ}, s{S_P}
    s_lshl_b32 s{S_H0}, s{S_H0}, 1
    s_and_b32 s{S_W}, s3, 3
    s_cmp_lt_u32 s3, 4
    s_cbranch_scc1 L_compute""")
def first_stamps(S, cfg):
    if cfg.stamps:
        S("s_mov_b32 s80, s92\ns_mov_b32 s94, s6")
        for i in range(1, 14): S(f"s_mov_b32 s{80+i}, 0")
SRD_SIZE = {SX: 1179648, SWQ: 4718592, SK: 8388608, SV: 8388608, SWO: 4718592, SWS: WS_SIZE, SOUT: 2359296, SDBG: 256}
def srd_consts(S, which):
    for d in which: S(f"s_mov_b32 s{d+2}, {SRD_SIZE[d]}\ns_mov_b32 s{d+3}, 0x20000")
def srd_bases(S, which):
    for d, p in ((SX, 48), (SWQ, 54), (SK, 50), (SV, 52), (SWO, 56), (SWS, 64), (SOUT, 60), (SDBG, 62)):
        if d in which: S(f"s_mov_b32 s{d}, s{p}\ns_and_b32 s{d+1}, s{p+1}, 0xffff")

def nonce_issue(S, vt, vz):
    S(f"buffer_load_dword v{vt}, v{vz}, {srd(SDBG)}, 0 offen sc1")
def nonce_check(S, vt, vz, lab):
    S(f"v_readfirstlane_b32 s{S_NONCE}, v{vt}")
    S(f"s_cmp_eq_u32 s{S_NONCE}, 0\ns_cbranch_scc1 {lab}")
    S.label(f"{lab}_ok")
    S.cold += _raw(f"""{lab}:
    s_mov_b32 s77, {SPIN_LIMIT}
    {lab}_spin:
    buffer_load_dword v{vt}, v{vz}, {srd(SDBG)}, 0 offen sc1
    s_waitcnt vmcnt(0)
    v_readfirstlane_b32 s{S_NONCE}, v{vt}
    s_nop 4
    s_cmp_lg_u32 s{S_NONCE}, 0
    s_cbranch_scc1 {lab}_ok
    s_sleep 2
    s_sub_u32 s77, s77, 1
    s_cmp_lg_u32 s77, 0
    s_cbranch_scc1 {lab}_spin
    s_branch {lab}_ok""")

def swar(s, need):
    return [f"s_or_b32 s{s}, s{s}, 0x80808080", f"s_sub_u32 s{s}, s{s}, {need * 0x01010101}", f"s_andn2_b32 s{s}, 0x80808080, s{s}", f"s_cmp_eq_u32 s{s}, 0"]
def spin_block(lab, back, vt, vz, off, sreg, need, sleep):
    return _raw(f"""{lab}:
    s_mov_b32 s77, {SPIN_LIMIT}
    {lab}_spin:
    ds_read_b32 v{vt}, v{vz} offset:{off}
    s_waitcnt lgkmcnt(0)
    v_readfirstlane_b32 s{sreg}, v{vt}
    s_nop 3
    """ + "\n".join(swar(sreg, need)) + f"""
    s_cbranch_scc1 {back}
    {'s_sleep ' + str(sleep) if sleep else ''}
    s_sub_u32 s77, s77, 1
    s_cmp_lg_u32 s77, 0
    s_cbranch_scc1 {lab}_spin
    s_branch {back}""")

def c_units():
    u = [("M", 0, 0), ("M", 0, 1), ("E", 0, 0), ("M", 1, 0), ("M", 1, 1), ("E", 1, 0)]
    for hh in (0, 1):
        for ii in range(6): u.append(("P", hh, ii))
    return u
def c_slots():
    sl = [(0, F_QK0), (1, F_QK0), (8, 9), (2, F_O0), (3, F_O0), (4, F_PV0), (5, F_PV0), (6, F_PV1), (7, F_PV1),
          (0, F_O1), (1, F_O1), (8, FU[2]), (2, FU[4]), (3, FU[4]), (4, FU[8]), (5, FU[8]), (6, FU[8]), (7, FU[8])]
    return {("W", j): sl[j] for j in range(18)}

def pack(dst, src):
    return [f"v_cvt_pk_bf16_f32 v{dst+8*s+4*u+2*e+x}, v{src+8*(2*s+e)+4*u+2*x}, v{src+8*(2*s+e)+4*u+2*x+1}" for s in range(4) for u in range(2) for e in range(2) for x in range(2)]
PAY = [0, 1, 2, 4, 5, 6, 8, 9]

def loader(S, cfg):
    VXO, VWO, VKV, VKW, VVW, VMO, VEO, VOO, VFL, VWW, VN, VZ, VP0, VPA, VT = 4, 5, 6, 7, 8, 9, 10, 11, 12, 13, 14, 15, 16, 18, 19
    KVREG = [24, 56, 88, 120]
    sXb, sWb, sCC, sM, sMo, sT, sKV0, sKV1, sA = 66, 67, 68, 69, 70, 71, 72, 73, 75
    sWP, sOP = [65, 96, 97, 98], [62, 99, 100, 101]
    S(f"""s_lshl_b32 s{sT}, s{S_W}, 2
    v_and_b32 v2, 0x38, v1
    v_lshl_add_u32 v2, v2, 1, s{sT}
    v_mul_u32_u24 v3, 1152, v2
    v_and_b32 v20, 7, v1
    v_lshl_add_u32 v{VXO}, v20, 4, v3
    s_lshl_b32 s76, s{S_W}, 3
    s_lshl1_add_u32 s76, s{S_W}, s76
    s_and_b32 s76, s76, 12
    v_and_b32 v2, 32, v1
    v_lshlrev_b32 v2, 12, v2
    v_and_b32 v20, 31, v1
    v_lshl_add_u32 v{VWO}, v20, 4, v2
    s_lshl_b32 s76, s76, 13
    s_mul_i32 s{sM}, s{sT}, {PITCH}
    s_lshl_b32 s75, s{S_H0}, 8
    s_add_u32 s75, s75, s76""")
    n = cfg.ngrp
    if cfg.order == "rot": orders = [[(round(9 * g / n) + c) % 9 for c in range(9)] for g in range(n)]
    else: orders = [[(c // n) * n + (c + g) % n if (c // n + 1) * n <= 9 else c for c in range(9)] for g in range(n)]
    tabs = [sum(x << (4 * i) for i, x in enumerate(o)) for o in orders]
    gtab = sum((i % n) << (2 * i) for i in range(16))
    S(f"""s_mul_i32 s76, s{S_P}, {cfg.rotp}
    s_add_u32 s76, s76, s{S_B}
    s_and_b32 s77, s{S_KQ}, {cfg.rotk}
    s_add_u32 s76, s76, s77
    s_lshl_b32 s76, s76, 1
    s_lshr_b32 s76, {gtab}, s76
    s_and_b32 s76, s76, 3
    s_mov_b32 s58, {tabs[0] & 0xffffffff}
    s_mov_b32 s59, {tabs[0] >> 32}""")
    for g in range(1, n):
        S(f"s_cmp_eq_u32 s76, {g}\ns_cselect_b32 s58, {tabs[g] & 0xffffffff}, s58\ns_cselect_b32 s59, {tabs[g] >> 32}, s59")
    S(f"s_mul_i32 s74, s{S_B}, 147456")
    srd_consts(S, (SX, SWQ))
    S("s_waitcnt lgkmcnt(0)")
    srd_bases(S, (SX, SWQ))
    def chunk(c, mid=None):
        base = slot((c % 3) * 3)
        S(f"""s_and_b32 s{sCC}, s58, 15
        s_lshr_b64 s[58:59], s[58:59], 4
        s_lshl_b32 s{sXb}, s{sCC}, 7
        s_add_u32 s{sXb}, s{sXb}, s74
        s_lshl_b32 s{sWb}, s{sCC}, 19
        s_add_u32 s{sWb}, s{sWb}, s75""")
        for i in range(4):
            S(f"s_add_u32 m0, s{sM}, {base + i*(PITCH-1152)}")
            S(f"buffer_load_dwordx4 v{VXO}, {srd(SX)}, s{sXb} offen offset:{i*1152} {cfg.pol_x} lds", tag=f"ch{c}")
        if mid: mid()
        for st in range(2):
            for i in range(4):
                S(f"s_add_u32 m0, s{sM}, {base + SLOT*(1+st) + i*PITCH}\ns_add_u32 s{sT}, s{sWb}, {(32*st+i)*8192}")
                S(f"buffer_load_dwordx4 v{VWO}, {srd(SWQ)}, s{sT} offen {cfg.pol_wq} lds", tag=f"ch{c}")
    def kv_lines(m):
        sr = SK if m < 2 else SV
        sb = sKV0 if m % 2 == 0 else sKV1
        o = [f"s_add_u32 s{sT}, s{sb}, 4096"]
        for j in range(8):
            o.append((f"buffer_load_dwordx4 {vr(KVREG[m]+4*j,4)}, v{VKV}, {srd(sr)}, s{sb if j < 4 else sT} offen offset:{(j&3)*1024} {cfg.pol_kv}", f"kv{m}"))
        return o
    def kv_load(m):
        for x in kv_lines(m): emit(S, x)
    def v_dma(m, sl):
        sb = sKV0 if m % 2 == 0 else sKV1
        S(f"""v_lshrrev_b32 v2, 4, v1
        v_lshlrev_b32 v2, 13, v2
        v_and_b32 v3, 15, v1
        v_lshl_add_u32 v2, v3, 4, v2
        s_lshl_b32 s76, s{S_W}, 11
        s_add_u32 s{sT}, s{sb}, s76
        s_lshl_b32 s76, s{sM}, 1""")
        for j in range(8):
            S(f"s_add_u32 m0, s76, {slot(sl) + j*(PITCH-256)}")
            S(f"buffer_load_dwordx4 v2, {srd(SV)}, s{sT} offen offset:{j*256} {cfg.pol_kv} lds", tag=f"kv{m}")
    def cond(lab, cls, mask, lines, pre=""):
        S(f"s_and_b32 s76, s{S_B}, {mask}\ns_cmp_lg_u32 s76, {cls}\ns_cbranch_scc1 {lab}")
        S.out += _raw(pre + "\n".join(x[0] if isinstance(x, tuple) else x for x in lines))
        S.label(lab)
    def kv_load_if(m, cls, ncls, pre=""):
        cond(f"L_kv{m}_{cls}", cls, ncls - 1, kv_lines(m), pre)
        if cls == ncls - 1: S.phantom([f"v{KVREG[m]+i}" for i in range(32)], f"kv{m}")
    def warm_lines():
        return f"""s_lshl_b32 s76, s{S_KQ}, 3
        s_add_u32 s76, s76, s{S_B}
        s_lshl_b32 s76, s76, 2
        s_add_u32 s76, s76, s{S_W}
        s_mul_i32 s76, s76, {32*1152}
        s_lshl_b32 s77, s{S_P}, 8
        s_add_u32 s76, s76, s77
        v_lshrrev_b32 v20, 1, v1
        v_mul_u32_u24 v20, 1152, v20
        v_and_b32 v3, 1, v1
        v_lshl_add_u32 v20, v3, 7, v20
        buffer_load_dword v22, v20, {srd(SWO)}, s76 offen {cfg.pol_wo}
        s_lshl_b32 s76, s{S_B}, 2
        s_add_u32 s76, s76, s{S_W}
        s_mul_i32 s76, s76, {8*1152}
        s_add_u32 s76, s76, s64
        v_and_b32 v21, 7, v1
        v_mul_u32_u24 v21, 1152, v21
        buffer_load_dword v23, v21, {srd(SWO)}, s76 offen offset:1024 {cfg.pol_wo}""".split("\n")
    def kv_write(m, sl):
        S.wait_vm_tag(f"kv{m}")
        S(f"s_setprio {cfg.wprio}")
        if "nolw" in cfg.dbg: return
        if m < 2:
            for j in range(8):
                S(f"v_add_u32 v2, {slot(sl) + j*4*PITCH}, v{VKW}")
                S(f"ds_write2_b64 v2, {vr(KVREG[m]+4*j,2)}, {vr(KVREG[m]+4*j+2,2)} offset0:0 offset1:2")
        else:
            S(f"v_add_u32 v2, {slot(sl)}, v{VVW}")
            for j in range(8):
                S(f"ds_write_b128 v2, {vr(KVREG[m]+4*j,4)} offset:{j*4*PITCH}")
    known = [0]; last_pub = [0]
    def wait_free(f, early=None):
        if f <= known[0]: return
        known[0] = f
        if cfg.nofree:
            S("s_sleep 5"); return
        lab = f"L_wf{f}"
        S.wait_lg(0)
        if cfg.trace and f >= cfg.trace_from: S(trace_raw(cfg, "loader", 100 + f))
        S(f"s_setprio {cfg.lprio}\nds_read_b32 v{VT}, v{VZ} offset:4\nv_readfirstlane_b32 s76, v{VT}")
        for x in swar(76, f): S(x)
        S(f"s_cbranch_scc0 {lab}")
        S.label(lab + "_ok")
        S("s_setprio 0")
        if cfg.trace and f >= cfg.trace_from: S(trace_raw(cfg, "loader", 200 + f))
        blk = spin_block(lab, lab + "_ok", VT, VZ, 4, 76, f, cfg.lsleep)
        if early and cfg.early: blk = blk[:1] + _raw(f"s_waitcnt vmcnt(0)\ns_mov_b32 s63, {early}\nv_mov_b32 v{VT}, {early}\nds_write_b8 v{VPA}, v{VT}\n" + (trace_raw(cfg, "loader", 400 + early) if f >= cfg.trace_from else "")) + blk[1:]
        S.cold += blk
    def publish(r):
        last_pub[0] = r
        S.wait_lg(0)
        S(f"s_setprio {cfg.lprio}\nv_mov_b32 v{VT}, {r}\nds_write_b8 v{VPA}, v{VT}\ns_setprio 0")
        if cfg.trace and known[0] >= cfg.trace_from: S(trace_raw(cfg, "loader", 300 + r))
        if cfg.adetail and r <= 12: stamp(S, cfg, r, True)
        if cfg.cdetail > 0 and 0 <= r - R_U < 12: stamp(S, cfg, 1 + r - R_U, True)
    chunk(0)
    first_stamps(S, cfg)
    stamp(S, cfg, 1)
    srd_consts(S, (SK, SV, SWO, SWS, SOUT, SDBG))
    srd_bases(S, (SK, SV, SWO, SWS, SOUT, SDBG))
    S(f"s_add_u32 s50, s64, {WS_FLAG}\ns_addc_u32 s51, s65, 0")
    if cfg.trace: S("s_mov_b32 s92, 0\nv_mov_b32 v250, 0\nv_mov_b32 v251, 0")
    if cfg.codepf:
        S(f"""s_getpc_b64 s[76:77]
        L_pc:
        s_lshr_b32 s{sT}, s2, 3
        s_lshl_b32 s{sT}, s{sT}, 2
        s_add_u32 s{sT}, s{sT}, s{S_W}
        s_mul_i32 s{sT}, s{sT}, 3
        v_min_u32 v2, 2, v1
        v_add_u32 v2, s{sT}, v2
        v_lshlrev_b32 v2, 7, v2
        v_min_u32 v2, L_end-L_pc, v2
        global_load_dword v23, v2, s[76:77]""")
    S(f"""v_mov_b32 v{VZ}, 0
    v_mov_b32 v20, 0
    v_mov_b32 v21, 0
    v_lshlrev_b32 v3, 3, v1
    ds_write_b64 v3, v[20:21]
    v_lshl_add_u32 v{VPA}, v1, 2, 64
    v_writelane_b32 v{VPA}, s{S_W}, 0
    v_add_u32 v{VEO}, 1024, v{VXO}
    s_lshl_b32 s76, s{S_W}, 13
    v_lshlrev_b32 v{VOO}, 4, v1
    v_add_u32 v{VKV}, s76, v{VOO}
    v_add_u32 v{VWW}, s{sM}, v{VOO}
    s_lshl_b32 s{sKV0}, s{S_B}, 5
    s_add_u32 s{sKV0}, s{sKV0}, s{S_H0}
    s_lshl_b32 s{sKV0}, s{sKV0}, 15
    s_add_u32 s{sKV1}, s{sKV0}, 32768
    v_lshrrev_b32 v2, 4, v1
    v_mul_u32_u24 v20, {PITCH}, v2
    s_lshl_b32 s76, s{S_W}, 8
    v_add_u32 v20, s76, v20
    v_and_b32 v3, 15, v1
    v_lshl_add_u32 v{VVW}, v3, 4, v20
    v_bfe_u32 v3, v1, 2, 2
    v_lshl_add_u32 v20, v3, 6, v20
    v_and_b32 v3, 1, v1
    v_lshl_add_u32 v20, v3, 5, v20
    v_bfe_u32 v3, v1, 1, 1
    v_lshl_add_u32 v{VKW}, v3, 3, v20""")
    S.wait_vm(9 if cfg.codepf else 8)
    chunk(1)
    S.wait_vm_tag("ch0"); S.wait_lg(0)
    stamp(S, cfg, 2)
    S("s_barrier")
    def pubch(c):
        S.wait_vm_tag(f"ch{c}"); publish(c)
    chunk(2, None if cfg.abar else (lambda: pubch(1)))
    S(f"""v_lshlrev_b32 v2, 4, v2
    s_lshl_b32 s76, s{S_W}, 2
    v_add_u32 v2, s76, v2
    v_mul_u32_u24 v2, 1152, v2
    s_lshl_b32 s76, s{S_KQ}, 6
    v_add_u32 v3, s76, v{VOO}
    v_and_b32 v3, 0xff, v3
    v_add_u32 v{VMO}, v2, v3
    v_min_u32 v2, 2, v1
    v_add3_u32 v2, v2, s{S_P}, 1
    v_and_b32 v2, 3, v2
    v_lshlrev_b32 v2, 6, v2
    s_and_b32 s76, s2, 63
    v_add_u32 v2, s76, v2
    v_lshlrev_b32 v2, 2, v2
    v_add_u32 v2, s{S_W}, v2
    v_lshlrev_b32 v{VFL}, 8, v2
    s_lshl_b32 s{sMo}, s{S_W}, 12""")
    for pi in range(4):
        d = sWP[pi]
        S(f"""s_add_u32 s76, s{S_P}, {pi}
        s_and_b32 s76, s76, 3
        s_lshl_b32 s77, s{S_KQ}, 2
        s_add_u32 s77, s77, s76
        s_mul_i32 s77, s77, {256*1152}
        s_lshl_b32 s{d}, s{S_P}, 8
        s_add_u32 s{d}, s{d}, s77""")
        if pi == 0: S("s_mov_b32 s64, s77")
        if True:
            S(f"""s_lshl_b32 s76, s76, 6
            s_and_b32 s77, s2, 63
            s_add_u32 s76, s76, s77
            s_lshl_b32 s76, s76, 2
            s_add_u32 s76, s76, s{S_W}
            s_lshl_b32 s{sOP[pi]}, s76, 14""")
            if pi: S(f"s_lshl_b32 s{54+pi}, s76, 8")
    for c in range(1, 7):
        if cfg.abar:
            S.wait_vm_tag(f"ch{c}"); stamp(S, cfg, c, cfg.adetail) if cfg.adetail else None; S("s_barrier"); known[0] = c
        else:
            wait_free(c, c + 1)
            pubch(c + 1)
        if c == 4: nonce_issue(S, VN, VZ)
        if not cfg.nodma: chunk(c + 2)
        for item in cfg.akv.split(","):
            what, first, ncls, rot = (item.split(":") + ["0"])[:4]
            first, ncls, rot = int(first), int(ncls), int(rot)
            if not 0 <= c - first < ncls: continue
            cond(f"L_a{what}_{c}", (c - first + rot) % ncls, ncls - 1, warm_lines() if what == "w" else kv_lines(int(what)), f"s_waitcnt vmcnt({cfg.kvwait})\n")
            if what != "w" and c - first == ncls - 1: S.phantom([f"v{KVREG[int(what)]+i}" for i in range(32)], f"kv{what}")
    nonce_check(S, VN, VZ, "L_ln")
    units, slots = c_units(), c_slots()
    def w_src(j):
        uk, hh, x = units[j]
        if uk == "M": return VMO, 65, (hh * 128 + 64 * x) * 1152
        if uk == "E": return VEO, 64, hh * 128 * 1152
        return VMO, sWP[1 + x % 3], (hh * 128 + 64 * (x // 3)) * 1152
    blocks = [152 + 16 * i for i in range(6)]
    parked = {}
    def w_load(j):
        va, sb, off = w_src(j)
        S(f"s_add_u32 s{sA}, s{sb}, {off}")
        if slots[("W", j)][1] <= known[0] and (j not in (3, 4, 9, 10) or (j > 4) in picked):
            lds_w.add(j)
            for i in range(4):
                S(f"s_add_u32 m0, s{sM}, {slot(slots[('W', j)][0]) + i*(PITCH-1152)}")
                S(f"buffer_load_dwordx4 v{va}, {srd(SWO)}, s{sA} offen offset:{i*1152} {cfg.pol_wo} lds", tag=f"u{j}")
        else:
            parked[j] = blocks.pop(0)
            for i in range(4 if "nopark" not in cfg.dbg else 0):
                S(f"buffer_load_dwordx4 {vr(parked[j]+4*i,4)}, v{va}, {srd(SWO)}, s{sA} offen offset:{i*1152} {cfg.pol_wo}", tag=f"u{j}w")
    lds_w = set()
    def w_write(j):
        assert j not in (3, 4, 9, 10) or (j > 4) in picked
        wait_free(slots[("W", j)][1])
        lds_w.add(j)
        S.wait_vm_tag(f"u{j}w")
        S(f"s_setprio {cfg.wprio if j < 7 else cfg.wprio2}\nv_add_u32 v2, {slot(slots[('W', j)][0])}, v{VWW}")
        for i in range(4 if not ("now" in cfg.dbg and j > 6 or "nolw" in cfg.dbg) else 0): S(f"ds_write_b128 v2, {vr(parked[j]+4*i,4)} offset:{i*PITCH}")
        S.wait_lg(0)
        S("s_setprio 0")
        blocks.append(parked.pop(j))
    def warm():
        for x in warm_lines(): S(x)
    issued, polled = set(), set()
    EV = c_events(cfg)
    def poll_issue(hh):
        issued.add(hh)
        S(f"s_mov_b32 s76, {WS_FLAG}")
        S(f"buffer_load_dword v{VP0 + (hh & 1)}, v{VFL}, {srd(SWS)}, s76 offen offset:{64*hh} sc1")
    def poll(hh):
        lab = f"L_poll{hh}"
        polled.add(hh)
        if "nopoll" in cfg.dbg: return
        if cfg.spoll:
            S.wait_lg(0)
            S(f"s_mov_b32 s77, {SPIN_LIMIT}")
            S.label(lab)
            S.out += _raw("\n".join(f"s_load_dword s{52+i}, s[50:51], s{55+i} offset:{64*hh} glc" for i in range(3)) + f"""
            s_waitcnt lgkmcnt(0)
            s_xor_b32 s52, s52, s{S_NONCE}
            s_xor_b32 s53, s53, s{S_NONCE}
            s_xor_b32 s54, s54, s{S_NONCE}
            s_or_b32 s52, s52, s53
            s_or_b32 s52, s52, s54
            s_cbranch_scc0 {lab}_ok
            s_sub_u32 s77, s77, 1
            s_cmp_lg_u32 s77, 0
            s_cbranch_scc1 {lab}""")
            S.label(f"{lab}_ok")
            return
        if hh not in issued: poll_issue(hh)
        v = VP0 + (hh & 1)
        S(f"v_cmp_eq_u32 vcc, s{S_NONCE}, v{v}")
        S(f"s_cmp_eq_u64 vcc, -1\ns_cbranch_scc0 {lab}")
        S.label(f"{lab}_ok")
        S.cold += _raw(f"""{lab}:
        s_mov_b32 s76, {WS_FLAG}
        s_mov_b32 s77, {SPIN_LIMIT}
        {lab}_spin:
        buffer_load_dword v{v}, v{VFL}, {srd(SWS)}, s76 offen offset:{64*hh} sc1
        s_waitcnt vmcnt(0)
        v_cmp_eq_u32 vcc, s{S_NONCE}, v{v}
        s_nop 1
        s_cmp_eq_u64 vcc, -1
        s_cbranch_scc1 {lab}_ok
        s_sub_u32 s77, s77, 1
        s_cmp_lg_u32 s77, 0
        s_cbranch_scc1 {lab}_spin
        s_branch {lab}_ok""")
    oreg, picked = {}, set()
    def pickup(h):
        wait_free((F_O0, F_O1)[h])
        S(f"s_setprio {cfg.lprio}\nv_add_u32 v2, {slot(2 - 2*h)}, v{VWW}")
        for x in range(2):
            oreg[2*h + x] = blocks.pop(0)
            for i in range(4): S(f"ds_read_b128 {vr(oreg[2*h+x] + 4*i, 4)}, v2 offset:{x*SLOT + i*1024}")
        S.wait_lg(0)
        S("s_setprio 0")
        picked.add(h)
    def o_store(k):
        if "nost" in cfg.dbg: return
        S(f"s_add_u32 s{sA}, s{sOP[0]}, {WS_O + k*4096}")
        for i in range(4):
            S(f"buffer_store_dwordx4 {vr(oreg[k] + 4*i, 4)}, v{VOO}, {srd(SWS)}, s{sA} offen offset:{i*1024} sc1", tag=f"o{k}")
    def o_flag(k):
        S.wait_vm_tag(f"o{k}")
        S(f"""s_lshr_b32 s76, s{sOP[0]}, 6
        s_add_u32 s76, s76, {WS_FLAG + 64*k}
        v_mov_b32 v3, s{S_NONCE}
        buffer_store_dword v3, v{VZ}, {srd(SWS)}, s76 offen sc1""")
        blocks.append(oreg.pop(k))
    def kv_duty(m, sl, f, r):
        wait_free(f); kv_write(m, sl); publish(r)
        blocks.extend([KVREG[m], KVREG[m] + 16])
    if cfg.prog2:
        S(f"s_and_b32 s76, s{S_B}, 1\ns_cmp_lg_u32 s76, 0\ns_cbranch_scc1 L_fork_c1")
        S.label("L_fork")
        S.ncold = len(S.cold)
    prog = PROGS[S.progname].split()
    if cfg.stop == "A": prog = ["bA7", "bA8"] if cfg.abar else ["p8"]
    if cfg.stop == "B": prog = [x for x in prog if x[0] in "KVpPS" or x[:2] in ("wK", "wV", "bA")]
    for op in prog:
        if cfg.ptrace and (not cfg.pfilter or op in cfg.pfilter.split(",")): S(trace_raw(cfg, "loader", op))
        if op in ("K1", "V0", "V1"): kv_load({"K1": 1, "V0": 2, "V1": 3}[op])
        elif "@" in op: kv_load_if({"K1": 1, "V0": 2, "V1": 3}[op[:2]], int(op[3]), 2)
        elif op in ("D0", "D1"):
            m = 2 + int(op[1]); wait_free(8 + int(op[1])); v_dma(m, 4 + 2 * int(op[1])); blocks.extend([KVREG[m], KVREG[m] + 16])
        elif op in ("pV0", "pV1"):
            S.wait_vm_tag(f"kv{2 + int(op[2])}"); publish((R_V0, R_V1)[int(op[2])])
        elif op == "warm": warm()
        elif op == "p8": S.wait_vm_tag("ch8"); publish(8)
        elif op[0] == "b":
            j = int(op[2:])
            S.wait_vm_tag(f"ch{j}"); known[0] = j
            S.wait_lg(0)
            if cfg.adetail: stamp(S, cfg, j, True)
            S("s_barrier")
        elif op == "wK0": kv_duty(0, 0, 7, R_K0)
        elif op == "wK1": kv_duty(1, 2, 8, R_K1)
        elif op == "wV0": kv_duty(2, 4, 8, R_V0)
        elif op == "wV1": kv_duty(3, 6, 9, R_V1)
        elif op[0] == "W": w_load(int(op[1:]))
        elif op[0] == "w": w_write(int(op[1:]))
        elif op[0] == "f": wait_free(int(op[1:]))
        elif op[0] == "q": poll(int(op[1:]))
        elif op[0] == "Q": poll_issue(int(op[1:]))
        elif op[0] == "P": pickup(int(op[1:]))
        elif op[0] == "S": o_store(int(op[1:]))
        elif op[0] == "G": o_flag(int(op[1:]))
        elif op[0] == "z": S(f"s_sleep {op[1:]}")
        elif op[0] == "R":
            name = op[1:]
            if name in WSET:
                for j in WSET[name]:
                    if j in parked: w_write(j)
                    assert j in lds_w
                    S.wait_vm_tag(f"u{j}")
            else: assert int(name[2]) in polled
            assert EV[name][0] == last_pub[0] + 1, (name, EV, last_pub)
            publish(EV[name][0])
        else: raise ValueError(op)
    stamp(S, cfg, 3)
    if cfg.trace:
        S(f"s_lshl_b32 s66, s2, 2\ns_add_u32 s66, s66, s{S_W}\ns_lshl_b32 s66, s66, 9\ns_add_u32 s66, s66, {WS_STAMP + (1 << 20)}\nv_lshlrev_b32 v2, 2, v1")
        S(f"buffer_store_dword v250, v2, {srd(SWS)}, s66 offen\nbuffer_store_dword v251, v2, {srd(SWS)}, s66 offen offset:256")
    if cfg.stop:
        S.wait_vm(0); stamps_store(S, cfg); S("s_branch L_end"); return
    S(f"s_cmp_lg_u32 s{S_W}, 0\ns_cbranch_scc1 L_lfin")
    R = 64
    S(f"""v_and_b32 v2, 7, v1
    v_bfe_u32 v3, v1, 3, 2
    v_lshl_add_u32 v2, v3, 4, v2
    s_and_b32 s76, s{S_P}, 1
    s_lshl_b32 s76, s76, 3
    v_add_u32 v2, s76, v2
    v_lshlrev_b32 v2, 4, v2
    v_lshrrev_b32 v3, 5, v1
    v_lshl_add_u32 v4, v3, 14, v2
    s_lshl_b32 s{sA}, s{S_BLK}, 3
    s_add_u32 s{sA}, s{sA}, s{S_B}
    s_lshl_b32 s{sA}, s{sA}, 6
    s_add_u32 s{sA}, s{sA}, s{S_KQ}
    s_lshl_b32 s{sA}, s{sA}, 1
    s_lshr_b32 s76, s{S_P}, 1
    s_add_u32 s{sA}, s{sA}, s76
    s_lshl_b32 s{sA}, s{sA}, 11
    s_add_u32 s{sA}, s{sA}, {WS_DX}
    s_and_b32 s72, s{S_NONCE}, 1
    s_lshl_b32 s73, s{S_NONCE}, 15
    s_and_b32 s73, s73, 0x10000
    s_or_b32 s72, s72, s73
    v_mov_b32 v8, 0x10001
""")
    wait_free(F_DX)
    S(f"s_mov_b32 s77, {SPIN_LIMIT}")
    S.label("L_dx")
    for r in range(8):
        S(f"s_add_u32 s{sT}, s{sA}, {r*2*16384}")
        for gm in range(2):
            S(f"buffer_load_dwordx4 {vr(R+8*r+4*gm,4)}, v4, {srd(SWS)}, s{sT} offen offset:{gm*1024} sc1")
    S(f"v_xor_b32 v5, s72, v{R}")
    for i in range(1, 64): S(f"v_bitop3_b32 v5, v5, v{R+i}, s72 bitop3:0xf6")
    S("v_and_b32 v5, v5, v8\nv_cmp_eq_u32 vcc, 0, v5\ns_cmp_eq_u64 vcc, -1\ns_cbranch_scc1 L_dx_ok")
    S("s_sleep 4\ns_sub_u32 s77, s77, 1\ns_cmp_lg_u32 s77, 0\ns_cbranch_scc1 L_dx")
    S.label("L_dx_ok")
    AC = 24
    S("v_mov_b32 v9, 0xfffefffe")
    for i in range(64): S(f"v_and_b32 v{R+i}, v9, v{R+i}")
    for r in range(8):
        for d in range(8):
            src = R + 8 * r + d
            if r == 0:
                S(f"v_lshlrev_b32 v{AC+2*d}, 16, v{src}\nv_and_b32 v{AC+2*d+1}, 0xffff0000, v{src}")
            else:
                S(f"v_lshlrev_b32 v6, 16, v{src}\nv_and_b32 v7, 0xffff0000, v{src}\nv_add_f32 v{AC+2*d}, v{AC+2*d}, v6\nv_add_f32 v{AC+2*d+1}, v{AC+2*d+1}, v7")
    for i in range(8): S(f"v_permlane32_swap_b32 v{AC+i}, v{AC+8+i}")
    for i in range(8): S(f"v_add_f32 v{AC+i}, v{AC+i}, v{AC+8+i}")
    for i in range(4): S(f"v_cvt_pk_bf16_f32 v{44+i}, v{AC+2*i}, v{AC+2*i+1}")
    S(f"""v_and_b32 v2, 7, v1
    s_lshl_b32 s76, s{S_B}, 7
    s_lshl_b32 s77, s{S_KQ}, 5
    s_add_u32 s76, s76, s77
    s_lshl_b32 s77, s{S_P}, 3
    s_add_u32 s76, s76, s77
    v_add_u32 v2, s76, v2
    v_mul_u32_u24 v2, 2304, v2
    v_bfe_u32 v3, v1, 3, 2
    v_lshl_add_u32 v2, v3, 3, v2
    v_lshrrev_b32 v3, 5, v1
    v_lshl_add_u32 v2, v3, 6, v2
    s_mul_i32 s76, s{S_BLK}, 1152
    s_add_u32 s76, s76, 1024
    buffer_store_dwordx2 v[44:45], v2, {srd(SOUT)}, s76 offen {cfg.pol_out}
    buffer_store_dwordx2 v[46:47], v2, {srd(SOUT)}, s76 offen offset:32 {cfg.pol_out}""")
    S.label("L_lfin")
    if cfg.stamps: S("s_waitcnt vmcnt(0)")
    stamps_store(S, cfg)
    S("s_branch L_end")

def compute(S, cfg):
    VX, VW = [4, 5, 6], [7, 8, 9]
    VK, VV, VOST, VZ, VN = [10, 11], [12, 13], 14, 15, 16
    VM, VT, VRC, VPR, VFA, VFT, VPR2 = [16, 17], 19, [[20, 21], [22, 23]], 18, 2, 3, 19
    ONES, LS = 56, [60, 4]
    QP = lambda h: 64 + 32 * h
    SS = lambda h: 128 + 64 * h
    PP = 64
    OF = lambda h, s, u: 96 + 8 * s + 4 * u if h == 0 else 192 + 16 * s + 4 * u
    S.label("L_compute")
    S(f"v_mov_b32 v{VZ}, 0")
    srd_consts(S, (SWS, SOUT, SDBG))
    S("s_waitcnt lgkmcnt(0)")
    first_stamps(S, cfg)
    srd_bases(S, (SWS, SOUT, SDBG))
    S(f"s_or_b32 s66, s2, s3\ns_cmp_lg_u32 s66, 0\ns_cbranch_scc1 L_notag")
    S.out += _raw(f"""s_mov_b32 s66, {WS_EPOCH}
    buffer_load_dword v2, v{VZ}, {srd(SWS)}, s66 offen sc1
    s_waitcnt vmcnt(0)
    v_add_u32 v2, 1, v2
    v_max_u32 v2, 1, v2
    buffer_store_dword v2, v{VZ}, {srd(SWS)}, s66 offen sc1
    buffer_store_dword v2, v{VZ}, {srd(SDBG)}, 0 offen sc1
    s_waitcnt vmcnt(0)""")
    S.label("L_notag")
    S(f"""v_and_b32 v22, 15, v1
    v_lshrrev_b32 v23, 4, v1
    v_mul_u32_u24 v2, {PITCH}, v22
    v_lshl_add_u32 v{VK[0]}, v23, 4, v2
    v_add_u32 v{VK[0]}, {LB}, v{VK[0]}
    v_add_u32 v{VK[1]}, {2*SLOT}, v{VK[0]}
    s_lshl_b32 s66, s{S_W}, 8
    v_add_u32 v{VX[0]}, s66, v{VK[0]}
    v_add_u32 v{VX[1]}, {3*SLOT}, v{VX[0]}
    v_add_u32 v{VX[2]}, {6*SLOT}, v{VX[0]}
    v_bfe_u32 v2, v1, 2, 3
    v_mul_u32_u24 v2, {PITCH}, v2
    v_lshrrev_b32 v3, 5, v1
    v_lshl_add_u32 v2, v3, 9, v2
    v_and_b32 v3, 3, v1
    v_lshl_add_u32 v2, v3, 3, v2
    v_add_u32 v{VW[0]}, {slot(1)}, v2
    v_add_u32 v{VW[1]}, {slot(4)}, v2
    v_add_u32 v{VW[2]}, {slot(7)}, v2
    v_lshrrev_b32 v2, 2, v1
    v_mul_u32_u24 v2, {PITCH}, v2
    v_lshl_add_u32 v2, v3, 3, v2
    v_add_u32 v{VV[0]}, {slot(4)}, v2
    v_add_u32 v{VV[1]}, {slot(6)}, v2
    s_mul_i32 s66, s{S_W}, {4*PITCH}
    s_add_u32 s66, s66, {slot(0)}
    v_lshlrev_b32 v{VOST}, 4, v1
    v_add_u32 v{VOST}, s66, v{VOST}
    s_add_u32 s66, s{S_W}, 4
    v_lshl_add_u32 v{VFA}, v1, 2, 64
    v_writelane_b32 v{VFA}, s66, 0
    s_mov_b32 s{S_C}, {f32(math.log2(math.e) / math.sqrt(128.0))}
    s_mov_b32 s58, s{S_C}
    s_mov_b32 s59, s{S_C}""")
    for pi in range(1, 4):
        S(f"s_add_u32 s66, s2, {64*pi}\ns_and_b32 s66, s66, 255\ns_lshl2_add_u32 s66, s66, s{S_W}\ns_lshl_b32 s{95+pi}, s66, 14")
        S(f"s_add_u32 s66, s{S_KQ}, {pi}\ns_and_b32 s66, s66, 3\ns_andn2_b32 s67, s2, 3\ns_add_u32 s66, s66, s67\ns_lshl2_add_u32 s66, s66, s{S_W}\ns_mul_i32 s66, s66, 6144\ns_add_u32 s{(100, 101, 57)[pi-1]}, s66, {WS_D + (pi-1)*2048}")
    S(f"""s_lshl3_add_u32 s66, s{S_BLK}, s{S_B}
    s_lshr_b32 s67, s{S_H0}, 1
    s_lshl4_add_u32 s66, s66, s67
    s_lshl2_add_u32 s66, s66, s{S_W}
    s_lshl_b32 s66, s66, 12
    s_add_u32 s99, s66, {WS_DX}
    s_lshl2_add_u32 s74, s2, s{S_W}
    s_mul_i32 s74, s74, 6144
    s_add_u32 s74, s74, {WS_D}
    s_add_u32 s75, s74, 4096
    s_lshl2_add_u32 s70, s{S_B}, s{S_W}
    s_mul_i32 s70, s70, {32*2304}
    s_mul_i32 s71, s{S_BLK}, 1152
    s_add_u32 s70, s70, s71
    s_lshl2_add_u32 s71, s{S_P}, s{S_KQ}
    s_lshl_b32 s71, s71, 6
    s_add_u32 s70, s70, s71
    s_add_u32 s71, s70, {16*2304}""")
    G = []
    def add(reads, mf, lead, need=None, free=None, gate=None, bar=False):
        G.append(dict(reads=reads, mf=mf, gate=len(G) - lead if gate is None else gate, need=need, free=free, bar=bar))
    ACC = lambda t, u: 128 + 8 * t + 4 * u
    ARING = [96, 104, 112, 120, 56]
    XF = lambda c, s, u: 24 + 16 * (c & 1) + 8 * s + 4 * u
    for c in range(9):
        for t in range(16):
            rg = ARING[len(G) % 5]
            rd = [f"ds_read_b64_tr_b16 {vr(rg+4*s+2*r,2)}, v{VW[c%3]} offset:{s*SLOT + r*8*PITCH + 32*t}" for s in range(2) for r in range(2)]
            if t == 0: rd = [f"ds_read_b128 {vr(XF(c,s,u),4)}, v{VX[c%3]} offset:{128*u + 64*s}" for s in range(2) for u in range(2)] + rd
            add(rd, [mfma(ACC(t, u), rg + 4*s, XF(c, s, u), first=(c == 0 and s == 0)) for u in range(2) for s in range(2)], cfg.alead,
                need=c if t == 0 and c and not cfg.abar else None, free=c + 1 if t == 15 and (c == 8 or not cfg.abar) else None, bar=cfg.abar and t == 0 and c > 0)
    gA = len(G)
    fill = [(gA - 6, gA, pack(QP(0), 128))]
    tail_fill = None
    KR = lambda i: 24 + 4 * ((i + 4) & 7)
    def qk(h):
        for i in range(32):
            kt, s = i >> 2, i & 3
            add([f"ds_read_b128 {vr(KR(i),4)}, v{VK[h]} offset:{(kt&1)*16*PITCH + (kt>>1)*256 + 64*s}"],
                [mfma(SS(h)+8*kt+4*u, KR(i), QP(h)+8*s+4*u, first=(s == 0)) for u in range(2)], cfg.blead,
                need=R_K0 + h if i == 0 else None, free=F_QK0 + h if i == 31 else None,
                gate=(gA - 3 if i < 4 else max(gA, len(G) - cfg.blead)) if h == 0 else None)
            G[-1]["wait4"] = (i & 3) == 0
    def pv(h):
        g0 = len(G)
        for i in range(32):
            dt, j = i >> 2, i & 3
            add([f"ds_read_b64_tr_b16 {vr(KR(i)+2*r,2)}, v{VV[h]} offset:{r*16*PITCH + j*256 + 32*dt}" for r in range(2)],
                ([mfma(LS[u], ONES, PP+8*jj+4*u, first=(jj == 0)) for u in range(2) for jj in range(4)] if i == 0 else []) +
                [mfma(SS(h)+8*dt+4*u, KR(i), PP+8*j+4*u, first=(j == 0)) for u in range(2)], cfg.blead,
                need=(R_V0, R_V1)[h] if i == 0 else None, free=(F_PV0, F_PV1)[h] if i == 31 else None,
                gate=max(len(G) - cfg.blead, g0 - (3, 3, 2, 2, 1, 1, 0, 0)[i]) if (h == 1 and i < 8) else None)
            G[-1]["wait4"] = (i & 3) == 0
    def softmax(h):
        s = SS(h)
        el = [[s + 8*kt + 4*u + r for kt in range(8) for r in range(4)] for u in range(2)]
        o = []
        for i in range(16):
            for u in range(2):
                e = el[u]
                if i == 0: o.append(f"v_max3_f32 v{VM[u]}, v{e[0]}, v{e[1]}, v{e[2]}")
                elif i < 15: o.append(f"v_max3_f32 v{VM[u]}, v{VM[u]}, v{e[2*i+1]}, v{e[2*i+2]}")
                else: o.append(f"v_max_f32 v{VM[u]}, v{VM[u]}, v{e[31]}")
        a, b = VM
        o += [f"v_permlane32_swap_b32 v{a}, v{b}", f"v_max_f32 v{a}, v{a}, v{b}", f"v_mov_b32 v{b}, v{a}",
              f"v_permlane16_swap_b32 v{a}, v{b}", f"v_max_f32 v{a}, v{a}, v{b}", f"v_mul_f32 v{a}, s{S_C}, v{a}", f"v_mov_b32 v{b}, v{a}",
              f"v_permlane32_swap_b32 v{a}, v{b}"]
        order = [(kt, u, r) for kt in range(8) for u in range(2) for r in range(4)]
        D = 2
        for i in range(64 + 2 * D):
            if i < 64:
                kt, u, r = order[i]; x = s + 8*kt + 4*u + r
                if not cfg.pk: o.append(f"v_fma_f32 v{x}, v{x}, s{S_C}, -v{VM[u]}")
                elif r % 2 == 0: o.append(f"v_pk_fma_f32 {vr(x,2)}, {vr(x,2)}, s[58:59], {vr(VM[0],2)} op_sel:[0,0,{u}] op_sel_hi:[1,1,{u}] neg_lo:[0,0,1] neg_hi:[0,0,1]")
            j = i - D
            if 0 <= j < 64:
                kt, u, r = order[j]; x = s + 8*kt + 4*u + r
                o.append(f"v_exp_f32 v{x}, v{x}")
            j = i - 2 * D
            if 0 <= j < 64:
                kt, u, r = order[j]; x = s + 8*kt + 4*u + r
                if r & 1: o.append(f"v_cvt_pk_bf16_f32 v{PP+8*(kt>>1)+4*u+2*(kt&1)+(r>>1)}, v{x-1}, v{x}")
        return o
    sig = [0]
    def signal(f):
        assert f > sig[0], (f, sig[0])
        sig[0] = f
        S(f"v_mov_b32 v{VFT}, {f}\nds_write_b8 v{VFA}, v{VFT}")
    def o_pack(h):
        s = SS(h); o = []
        need = (F_QK1, FU[1])[h]; lab = f"L_st{h}"
        def chk():
            S(f"v_readfirstlane_b32 s64, v{VPR2}")
            for x in swar(64, need): S(x)
            S(f"s_cbranch_scc0 {lab}")
            S.label(lab + "_ok")
            S.cold += spin_block(lab, lab + "_ok", VPR2, VZ, 4, 64, need, 0)
        for st in range(4):
            part = [f"ds_read_b32 v{VPR2}, v{VZ} offset:4"] if st == 0 else []
            for u in range(2):
                for e in range(2):
                    for r in range(4):
                        x = s + 8*(2*st+e) + 4*u + r
                        if not cfg.pk: part.append(f"v_mul_f32 v{x}, v{x}, v{VRC[h][u]}")
                        elif r % 2 == 0: part.append(f"v_pk_mul_f32 {vr(x,2)}, {vr(x,2)}, {vr(VRC[h][0],2)} op_sel:[0,{u}] op_sel_hi:[1,{u}]")
                i = 2 * st + u
                part += [f"v_cvt_pk_bf16_f32 v{OF(h,st,u)+2*e+x}, v{s+8*(2*st+e)+4*u+2*x}, v{s+8*(2*st+e)+4*u+2*x+1}" for e in range(2) for x in range(2)]
                if i == 0: part.append(chk)
                part.append((f"ds_write_b128 v{VOST}, {vr(OF(h,st,u),4)} offset:{(2 - 2*h + (i >> 2))*SLOT + (i & 3)*1024}", f"st{h}"))
            o.append(part)
        def done():
            S.wait_lg_tag(f"st{h}"); signal((F_O0, F_O1)[h])
        return o, done
    rcp = lambda h: [f"v_rcp_f32 v{VRC[h][u]}, v{LS[u]}" for u in range(2)]
    st = lambda i: (lambda: stamp(S, cfg, i))
    def pack_fill(h, g0):
        op, done = o_pack(h)
        return [(g0 + 4, g0 + 5, rcp(h)), (g0 + 10, g0 + 18, op[0]), (g0 + 18, g0 + 26, op[1]), (g0 + 26, g0 + 33, op[2]), (g0 + 33, g0 + 35, op[3]), (g0 + 35, g0 + 36, [done, "s_wakeup"])]
    if cfg.stop != "A":
        qk(0); qk(1); pv(0)
        fill += [(gA, gA + 1, [st(2), lambda: nonce_issue(S, VT, VZ)]),
                 (gA, gA + 32, pack(QP(1), 192) + [f"v_mov_b32 v{ONES+i}, 0x3f803f80" for i in range(4)]),
                 (gA + 32, gA + 33, [st(3)]), (gA + 33, gA + 64, softmax(0)),
                 (gA + 56, gA + 57, [lambda: nonce_check(S, VT, VZ, "L_cn")]), (gA + 64, gA + 65, [st(4)])] + pack_fill(0, gA + 64)
    gC0 = len(G)
    units, slots, EV = c_units(), c_slots(), c_events(cfg)
    VA, VL16 = [8, 9, 10], 11
    MC = lambda nt, u: 128 + 8 * nt + 4 * u
    EC = lambda nt, u: 200 + 16 * nt + 4 * u
    CRING = [40, 48, 24, 32, 56]
    OBUF = [(64, 8), (80, 8), (96, 8), (112, 8), (192, 16), (224, 16)]
    OB = lambda j, s, u: OBUF[(j - 6) % 6][0] + OBUF[(j - 6) % 6][1] * s + 4 * u
    sOP = [None, 96, 97, 98]
    if cfg.stop is None:
        setup = [f"v_add_u32 v{VA[0]}, {-6*SLOT & 0xffffffff}, v{VV[1]}", f"v_add_u32 v{VA[1]}, {-3*SLOT & 0xffffffff}, v{VV[1]}", f"v_mov_b32 v{VA[2]}, v{VV[1]}",
                 f"v_lshlrev_b32 v{VL16}, 4, v1"]
        fill += [(gA + 65, gA + 69, setup)]
        gC = gC0 + 32
        def cgroup(j, n, **kw):
            uk, hh, x = units[j]
            sl = slots[("W", j)][0]
            va, so = VA[sl // 3], (sl % 3) * SLOT
            k = len(G) - (gC0 if j < 2 else gC)
            rg = CRING[k % 4] if k < 32 else CRING[(k - 32) % 5]
            if uk == "E":
                nt, sp = n >> 1, n & 1
                rd = [f"ds_read_b64_tr_b16 {vr(rg+4*s+2*r,2)}, v{va} offset:{so + (2*(2*sp+s)+r)*128 + 32*nt}" for s in range(2) for r in range(2)]
                mf = [mfma(EC(nt, u), rg + 4*s, OF(hh, 2*sp+s, u), first=(hh == 0 and sp == 0 and s == 0)) for u in range(2) for s in range(2)]
            else:
                bf = (lambda s, u: OF(hh, 2*x+s, u)) if uk == "M" else (lambda s, u: OB(j, s, u))
                rd = [f"ds_read_b64_tr_b16 {vr(rg+4*s+2*r,2)}, v{va} offset:{so + (2*s+r)*256 + 32*n}" for s in range(2) for r in range(2)]
                mf = [mfma(MC(n, u), rg + 4*s, bf(s, u), first=(j == 0 and s == 0)) for u in range(2) for s in range(2)]
            need = None
            for name, us in WSET.items():
                if j in us and name not in seen: need = EV[name][0]; seen.add(name)
            b0 = len(G) - (k & 3)
            add(rd, mf, 3 if k < 36 else 4, gate={0: b0 - 6, 1: b0 - 4, 2: b0 - 2, 3: b0}[k & 3] if (k & ~3) in (0, 16) else None, need=need, **kw)
        seen = set(); gU = {}
        for j in range(cfg.merge):
            if j == 2:
                fill += [(gC0, gC0 + 1, [st(5)]), (gC0 + 3, gC0 + 16, softmax(1)), (len(G), len(G) + 1, [st(6)])] + pack_fill(1, len(G))
                pv(1)
            gU[j] = len(G)
            for n in range(2 if j >= cfg.defer else 0, 8): cgroup(j, n, free=FU.get(j) if n == 7 else None)
        gM = len(G)
        nm_ = 18 - cfg.merge
        for tau in (1, 2, 3):
            for j in range(cfg.merge, 18):
                for e in range(2): cgroup(j, 2 * tau + e)
        for j in range(min(cfg.defer, cfg.merge), 18):
            for e in range(2): cgroup(j, e)
        def o_loads(j):
            uk, hh, x = units[j]
            return [f"s_add_u32 s{48 + j % 6}, s{sOP[1 + x % 3]}, {WS_O + hh*8192 + (x // 3)*4096}"] + \
                   [f"buffer_load_dwordx4 {vr(OB(j, i >> 1, i & 1), 4)}, v{VL16}, {srd(SWS)}, s{48 + j % 6} offen offset:{i*1024} {cfg.pol_o}" for i in range(4)]
        for k in range(4):
            num, p0 = EV[f"OP{k}"]; lab = f"L_rdy{num}"
            def chk(lab=lab, num=num):
                S(f"v_readfirstlane_b32 s64, v{VPR2}")
                for x in swar(64, num): S(x)
                S(f"s_cbranch_scc0 {lab}")
                S.label(lab + "_ok")
                S.cold += spin_block(lab, lab + "_ok", VPR2, VZ, 0, 64, num, 0)
            fill += [(gC + p0 - 2, gC + p0 - 1, [f"ds_read_b32 v{VPR2}, v{VZ}"]), (gC + p0, gC + p0 + 1, [chk])]
            for i in range(3):
                j = 6 + 3 * k + i
                first = {6: 16, 7: 16, 8: 24, 9: 24, 10: 48, 11: 48}.get(j, 8 * (j - 5))
                a = max(p0 + 1 + cfg.ostep * i, first)
                fill += [(gC + a, gC + a + 2, o_loads(j) if "noold" not in cfg.dbg else ["s_nop 0"])]
                if j == 9: fill += [(gC + a + 2, gC + a + 3, [lambda: signal(F_OI), "s_wakeup"])]
        VMASK, GR = 12, 64
        tagprep = [f"s_and_b32 s72, s{S_NONCE}, 1", f"s_lshl_b32 s73, s{S_NONCE}, 15", "s_and_b32 s73, s73, 0x10000", "s_or_b32 s72, s72, s73",
                   f"v_mov_b32 v{VMASK}, 0xfffefffe"]
        def tpack(base, n):
            o = []
            for k in range(n): o += [f"v_cvt_pk_bf16_f32 v{base+k}, v{base+2*k}, v{base+2*k+1}", f"v_and_or_b32 v{base+k}, v{base+k}, v{VMASK}, s72"]
            return o
        dx = list(tagprep)
        for u in range(2):
            for m_ in range(2):
                for k in range(4):
                    d, a = EC(2*m_, u) + k, EC(2*m_ + (k >> 1), u) + 2 * (k & 1)
                    dx += [f"v_cvt_pk_bf16_f32 v{d}, v{a}, v{a+1}", f"v_and_or_b32 v{d}, v{d}, v{VMASK}, s72"]
        for gm in range(4):
            dx.append(f"buffer_store_dwordx4 {vr(EC(2*(gm & 1), gm >> 1),4)}, v{VL16}, {srd(SWS)}, s99 offen offset:{gm*1024} sc1")
        def dsend(tau):
            o = []
            tp = tpack(128 + 16*tau, 8)
            for e in range(2):
                o += tp[8*e:8*e+8]
                o.append(f"buffer_store_dwordx4 {vr(128+16*tau+4*e,4)}, v{VL16}, {srd(SWS)}, s{(100, 101, 57)[tau-1]} offen offset:{e*1024} sc1")
            return o
        daddr = [f"v_and_b32 v2, 15, v1", "v_mul_u32_u24 v2, 2304, v2", "v_bfe_u32 v3, v1, 4, 1", "v_lshl_add_u32 v2, v3, 5, v2", "v_lshrrev_b32 v3, 5, v1", "v_lshl_add_u32 v2, v3, 4, v2",
                 "v_mov_b32 v6, 0x10001", "v_mov_b32 v4, 0x3f80", "v_mov_b32 v5, 0x3f800000"]
        q = 2 * nm_
        w = min(q - 1, 6)
        fill += [(gC + cfg.dxpos, gC + cfg.dxpos + 8, dx),
                 (gC + cfg.dxgo, gC + cfg.dxgo + 1, [lambda: signal(F_DX), "s_wakeup"]), (gM + 1, gM + 6, daddr), (gM + q + 1, gM + q + 1 + w, dsend(1)), (gM + 2*q + 1, gM + 2*q + 1 + w, dsend(2)), (gM + 3*q + 1, gM + 3*q + 1 + w, dsend(3))]
        if cfg.mst:
            fill += [(gC + int(x), gC + int(x) + 1, [lambda i=i: stamp(S, cfg, 1 + i, True)]) for i, x in enumerate(cfg.mst.split(","))]
        if cfg.cdetail > 0:
            fill += [((gC if j > 1 else gC0) + 8*j, (gC if j > 1 else gC0) + 8*j + 1, [lambda i=j - (cfg.cdetail - 1): stamp(S, cfg, 1 + i, True)]) for j in range(18) if 0 <= j - (cfg.cdetail - 1) < 12]
    if cfg.adetail:
        fill += [(16*c, 16*c + 1, [lambda c=c: stamp(S, cfg, 1 + c, True)]) for c in range(9)]
        if cfg.stop != "A": fill += [(gA + 32*i, gA + 32*i + 1, [lambda i=i: stamp(S, cfg, 10 + i, True)]) for i in range(3)]
    queue = []
    frees, due = {}, {}
    for gi, g in enumerate(G):
        if g["need"] is not None and not cfg.nocheck:
            lab = f"L_rdy{g['need']}"
            steps = [f"v_readfirstlane_b32 s69, v{VPR}"] + swar(69, g["need"])
            at = max(0, len(queue) - cfg.probe_ahead)
            pg = queue[at][0] if at < len(queue) else g["gate"]
            queue.insert(at, (pg, "r", f"ds_read_b32 v{VPR}, v{VZ}"))
            queue.append((g["gate"], "r", steps[0]))
            queue.append((g["gate"], "gap", None))
            def chk(lab=lab, need=g["need"], steps=steps):
                for x in steps[1:]: S(x)
                S(f"s_cbranch_scc0 {lab}")
                S.label(lab + "_ok")
                S.cold += spin_block(lab, lab + "_ok", VPR, VZ, 0, 69, need, 0)
            queue.append((g["gate"], "c", chk))
        if g["bar"]:
            for _ in range(cfg.bargap): queue.append((g["gate"], "gap", None))
            def br():
                S.wait_lg(0); S("s_barrier")
            queue.append((g["gate"], "c", br))
        for k, r in enumerate(g["reads"]):
            queue.append((g["gate"], "r", (r, f"g{gi}") if k == len(g["reads"]) - 1 else r))
        if g["free"] is not None and not cfg.nofree:
            def fr(gi=gi, f=g["free"]):
                S.wait_lg_tag(f"g{gi}")
                signal(f)
                if cfg.wake: due[m + 2] = lambda: S("s_wakeup")
            frees[f"g{gi}"] = fr
    nm = [len(g["mf"]) for g in G]
    pos = [sum(nm[:i]) for i in range(len(G) + 1)]
    fl = {}
    for (g0, g1, ins) in fill:
        a, b = pos[g0], pos[g1]
        for k, x in enumerate(ins): fl.setdefault(a + (k * (b - a)) // len(ins), []).append(x)
    if tail_fill: fl.setdefault(pos[tail_fill[0]] - 1, []).extend(tail_fill[1])
    S("s_barrier")
    stamp(S, cfg, 1)
    m = 0
    def issue(q):
        emit(S, q[2])
        if isinstance(q[2], tuple) and q[2][1] in frees: due[m + cfg.free_delay] = frees[q[2][1]]
    for gi, g in enumerate(G):
        last_tag = f"g{gi}"
        while any(isinstance(q[2], tuple) and q[2][1] == last_tag for q in queue):
            q = queue.pop(0)
            if q[1] != "gap": issue(q)
        if g.get("wait4"): S.wait_lg_tag(f"g{gi+3}")
        if cfg.gwait2 and "wait4" not in g and gi % 2 == 0: S.wait_lg_tag(f"g{gi+1}")
        if cfg.gwait: S.wait_lg_tag(last_tag)
        for k, mf in enumerate(g["mf"]):
            S(mf)
            if m in due: due.pop(m)()
            n = 0
            while queue and n < 2 and queue[0][0] <= gi:
                q = queue[0]
                if q[1] == "gap": queue.pop(0); break
                if n >= 1 and q[0] == gi and q[1] == "r": break
                queue.pop(0); issue(q); n += 1
            for x in fl.get(m, []): emit(S, x)
            m += 1
    assert not queue
    while due: due.pop(min(due))()
    if cfg.stop == "A":
        stamp(S, cfg, 2)
        for x in pack(QP(1), 192): S(x)
        S(f"s_lshl_b32 s66, s2, 16\ns_lshl_b32 s67, s{S_W}, 14\ns_add_u32 s66, s66, s67\nv_lshlrev_b32 v{VOST}, 4, v1\nv_add_u32 v{VOST}, s66, v{VOST}")
        for i in range(16):
            S(f"s_mov_b32 s66, {i*1024}")
            S(f"buffer_store_dwordx4 {vr(64+4*i,4)}, v{VOST}, {srd(SWS)}, s66 offen")
        S.wait_vm(0); stamps_store(S, cfg); S("s_branch L_end"); return
    if cfg.stop == "B":
        stamp(S, cfg, 6)
        op1, done1 = o_pack(1)
        for x in op1 + [done1]: emit(S, x)
        S.wait_vm(0); stamp(S, cfg, 7); stamps_store(S, cfg); S("s_branch L_end"); return
    stamp(S, cfg, 7)
    S(f"s_mov_b32 s77, {SPIN_LIMIT}")
    S.label("L_d")
    for i in range(6):
        S(f"buffer_load_dwordx4 {vr(GR+4*i,4)}, v{VL16}, {srd(SWS)}, s{74 + i//4} offen offset:{(i%4)*1024} sc1")
    S(f"v_xor_b32 v7, s72, v{GR}")
    for i in range(1, 24): S(f"v_bitop3_b32 v7, v7, v{GR+i}, s72 bitop3:0xf6")
    S("v_and_b32 v7, v7, v6\nv_cmp_eq_u32 vcc, 0, v7\ns_cmp_eq_u64 vcc, -1\ns_cbranch_scc1 L_d_ok")
    S("s_sub_u32 s77, s77, 1\ns_cmp_lg_u32 s77, 0\ns_cbranch_scc1 L_d")
    S.label("L_d_ok")
    stamp(S, cfg, 9)
    for i in range(24): S(f"v_and_b32 v{GR+i}, v{VMASK}, v{GR+i}")
    for tau in range(3):
        for u in range(2):
            for e in range(2):
                for x in range(2):
                    src = GR + 8 * tau + 4*e + 2*u + x; a = MC(e, u) + 2 * x
                    if cfg.dot2: S(f"v_dot2c_f32_bf16 v{a}, v{src}, v4\nv_dot2c_f32_bf16 v{a+1}, v{src}, v5")
                    else: S(f"v_lshlrev_b32 v8, 16, v{src}\nv_and_b32 v9, 0xffff0000, v{src}\nv_add_f32 v{a}, v{a}, v8\nv_add_f32 v{a+1}, v{a+1}, v9")
    if cfg.dot2: S("s_nop 2")
    GS = 48
    for u in range(2):
        for e in range(2):
            for x in range(2):
                S(f"v_cvt_pk_bf16_f32 v{GS+4*u+2*e+x}, v{MC(e,u)+2*x}, v{MC(e,u)+2*x+1}")
    for u in range(2):
        for x in range(2): S(f"v_permlane16_swap_b32 v{GS+4*u+x}, v{GS+4*u+2+x}")
    for u in range(2):
        S(f"buffer_store_dwordx4 {vr(GS+4*u,4)}, v2, {srd(SOUT)}, s{70+u} offen {cfg.pol_out}")
    if cfg.stamps:
        S.wait_vm(0); stamp(S, cfg, 10)
    stamps_store(S, cfg)
    S("s_branch L_end")

Cfg.dxwait = 17
H7 = "bA7 wK0 warm bA8 wK1 V1 wV0 W0 W1 W2 RWA W3 W4 W5 wV1 W6 W7 W8 w2 W9 W10 P0 S0 S1 RWB G0 G1 W11 W12 W13 W14 W15 W16 W17 "
H8 = "warm bA7 wK0 bA8 V0 wK1 W0 W1 wV0 V1 RWA W2 W3 W4 W5 W6 wV1 P0 S0 S1 RWB G0 G1 W7 W8 W9 W10 W11 W12 W13 W14 W15 W16 W17 "
H9 = "K1 bA7 wK0 bA8 V0 wK1 warm wV0 V1 W0 W1 RWA W2 W3 W4 W5 W6 wV1 P0 S0 S1 RWB G0 G1 W7 W8 W9 W10 W11 W12 W13 W14 W15 W16 W17 "
TA = "P1 S2 q0 ROP0 q1 ROP1 G2 f18 S3 RWC G3 w9 w10 w11 RWD q2 ROP2 q3 ROP3 RWE"
TB = "P1 S2 S3 q0 ROP0 q1 ROP1 G2 G3 RWC RWD q2 ROP2 q3 ROP3 RWE"
TD = "q0 ROP0 q1 ROP1 P1 S2 S3 RWC G2 G3 w9 w10 w11 RWD q2 ROP2 q3 ROP3 RWE"
TE = "q0 ROP0 q1 ROP1 P1 f18 S2 S3 RWC G2 G3 w9 w10 w11 RWD q2 ROP2 q3 ROP3 RWE"
HA = "bA7 wK0 warm bA8 wK1 V1 wV0 W0 W1 W2 RWA W3 W4 W5 wV1 W6 W7 W8 w2 W9 W10 W11 W12 P0 S0 S1 RWB W13 W14 W15 W16 W17 G0 G1 "
HB = "K1 bA7 wK0 bA8 V0 wK1 warm wV0 V1 W0 W1 RWA W2 W3 W4 W5 W6 wV1 P0 S0 S1 W7 W8 W9 W10 RWB G0 G1 "
TF = "q0 ROP0 q1 ROP1 P1 f18 S2 S3 W11 W12 W13 RWC G2 G3 W14 W15 W16 W17 w9 w10 w11 RWD q2 ROP2 q3 ROP3 RWE"
TG = "P1 q0 ROP0 q1 ROP1 f18 S2 S3 RWC G2 G3 w9 w10 w11 RWD q2 ROP2 q3 ROP3 RWE"
PROGS = {h + x: H + T for h, H in (("7", H7), ("8", H8), ("9", H9), ("A", HA)) for x, T in (("a", TA), ("b", TB), ("d", TD), ("e", TE), ("g", TG))}
HC = "bA7 wK0 warm bA8 wK1 V1 wV0 W0 W1 W2 RWA W3 W4 W5 wV1 W6 W7 W8 w2 W9 W10 W11 W12 P0 S0 S1 RWB G0 G1 W13 W14 W15 W16 W17 "
HD = "K1 bA7 wK0 bA8 V0 wK1 warm wV0 V1 W0 W1 RWA W2 W3 W4 W5 W6 wV1 W7 W8 P0 S0 S1 RWB G0 G1 W9 W10 W11 W12 W13 W14 W15 W16 W17 "
HE = "warm bA7 wK0 bA8 V0 wK1 W0 W1 wV0 V1 RWA W2 W3 W4 W5 W6 wV1 W7 W8 W9 W10 P0 S0 S1 RWB G0 G1 W11 W12 W13 W14 W15 W16 W17 "
TH = "q0 ROP0 q1 ROP1 w7 w8 P1 w9 w10 f18 S2 S3 RWC w11 RWD G2 G3 q2 ROP2 q3 ROP3 RWE"
TI = "q0 ROP0 q1 ROP1 P1 f18 S2 S3 RWC w9 w10 w11 G2 G3 RWD q2 ROP2 q3 ROP3 RWE"
TJ = "q0 ROP0 q1 ROP1 w7 w8 P1 S2 w9 w10 f18 S3 RWC G2 w11 RWD G3 q2 ROP2 q3 ROP3 RWE"
HF = "bA7 wK0 warm bA8 wK1 V1 wV0 f10 W0 W1 W2 RWA wV1 f12 W5 W6 P0 S0 S1 W3 W4 G0 G1 RWB "
HG = "warm bA7 wK0 bA8 V0 wK1 wV0 V1 f10 W0 W1 W2 RWA wV1 f12 W5 W6 P0 S0 S1 W3 W4 G0 G1 RWB "
HH = "K1 bA7 wK0 bA8 V0 wK1 warm wV0 V1 f10 W0 W1 W2 RWA wV1 f12 W5 W6 P0 S0 S1 W3 W4 G0 G1 RWB "
TK = "q0 ROP0 q1 ROP1 f15 W7 W8 P1 W9 W10 f18 W11 S2 S3 RWC f19 W12 W13 G2 G3 RWD q2 ROP2 q3 ROP3 f20 W14 W15 W16 W17 RWE"
TL = "q0 ROP0 q1 ROP1 f15 W7 W8 P1 S2 W9 W10 f18 W11 S3 RWC G2 f19 W12 W13 G3 RWD q2 ROP2 f20 W14 W15 W16 W17 q3 ROP3 RWE"
TM = "q0 ROP0 q1 ROP1 f15 W7 W8 P1 S2 S3 W9 W10 f17 W11 RWC G2 G3 f19 W12 W13 RWD q2 ROP2 f20 W14 W15 W16 W17 q3 ROP3 RWE"
for h, H in (("F", HF), ("G", HG), ("H", HH)):
    for x, T in (("k", TK), ("l", TL), ("m", TM)): PROGS[h + x] = H + T
HI = "warm bA7 wK0 bA8 D0 wK1 W3 W4 W5 W6 D1 pV0 f10 W0 W1 W2 W11 W12 W13 RWA pV1 W14 W15 W16 W17 P0 S0 S1 RWB G0 G1 "
HJ = "warm bA7 wK0 bA8 D0 wK1 W3 W4 W5 W6 D1 pV0 f10 W0 W1 W2 W7 W8 W9 RWA pV1 W10 W11 W12 W13 P0 S0 S1 RWB G0 G1 W14 W15 W16 W17 "
TN = "q0 ROP0 q1 ROP1 f15 W7 W8 P1 W9 W10 f18 S2 S3 RWC w11 RWD G2 G3 q2 ROP2 q3 ROP3 RWE"
TO = "q0 ROP0 q1 ROP1 f15 W7 W8 P1 S2 W9 W10 f18 S3 RWC G2 w11 RWD G3 q2 ROP2 q3 ROP3 RWE"
PROGS["In"] = HI + TN; PROGS["Io"] = HI + TO; PROGS["Jh"] = HJ + TH; PROGS["Jj"] = HJ + TJ
PROGS["Kn"] = PROGS["In"].replace("warm bA7 wK0 bA8 D0 wK1", "K1 bA7 wK0 bA8 D0 wK1 warm")
HL = "warm bA7 wK0 bA8 D0 wK1 D1 pV0 f10 W0 W1 W2 W3 W4 W5 W6 RWA pV1 W7 W8 W9 W10 W11 W12 W13 P0 S0 S1 RWB G0 G1 W14 W15 W16 W17 "
HM = "warm bA7 wK0 bA8 D0 wK1 W3 W4 D1 pV0 f10 W0 W1 W2 W5 W6 RWA W7 W8 pV1 W9 W10 W11 W12 P0 S0 S1 RWB G0 G1 W13 W14 W15 W16 W17 "
PROGS["Lh"] = HL + TH; PROGS["Mh"] = HM + TH; PROGS["Lj"] = HL + TJ
HN = "warm bA7 wK0 bA8 D0 wK1 D1 pV0 f10 W0 W1 W2 W9 W10 W11 RWA W12 W13 pV1 W14 W15 W16 W17 f12 W5 W6 P0 S0 S1 W3 W4 G0 G1 RWB "
PROGS["N1"] = HN + "q0 ROP0 q1 ROP1 f15 W7 W8 P1 w9 w10 f18 S2 S3 RWC w11 RWD G2 G3 q2 ROP2 q3 ROP3 RWE"
PROGS["N2"] = HN.replace("W9 W10 ", "") + "q0 ROP0 q1 ROP1 f15 W7 W8 P1 W9 W10 f18 S2 S3 RWC w11 RWD G2 G3 q2 ROP2 q3 ROP3 RWE"
PROGS["N3"] = HN.replace("W14 W15 W16 W17 ", "") + "q0 ROP0 q1 ROP1 f15 W7 W8 P1 w9 w10 f18 S2 S3 RWC w11 RWD G2 G3 q2 ROP2 f20 W14 W15 W16 W17 q3 ROP3 RWE"
PROGS["N4"] = HN + "q0 ROP0 q1 ROP1 f15 W7 W8 P1 f18 S2 S3 RWC w9 w10 w11 G2 G3 RWD q2 ROP2 q3 ROP3 RWE"
PROGS["E2"] = PROGS_E2 = None
PROGS["S0"] = ("warm bA7 wK0 bA8 V0 wK1 W0 W1 W2 W3 wV0 V1 W4 W5 RWA W6 W7 W8 wV1 W9 W10 P0 S0 S1 RWB G0 G1 W11 W12 W13 W14 W15 W16 W17 " + TH)
PROGS["S1"] = ("warm bA7 wK0 bA8 W0 W1 W2 W3 wK1 V0 W4 W5 wV0 RWA W6 W7 V1 W8 W9 W10 wV1 P0 W11 W12 S0 S1 RWB G0 G1 W13 W14 W15 W16 W17 " + TH)
PROGS["S2"] = ("warm bA7 wK0 bA8 W0 W1 W2 W3 wK1 V0 W4 W5 wV0 RWA W6 W7 V1 W8 W9 W10 wV1 P0 S0 S1 RWB G0 G1 W11 W12 W13 W14 W15 W16 W17 " + TH)
PROGS["S3"] = ("warm bA7 wK0 bA8 V0 wK1 W0 W1 W2 W3 wV0 V1 W4 W5 RWA W6 W7 W8 wV1 W9 W10 P0 S0 S1 RWB G0 G1 W11 W12 W13 W14 W15 W16 W17 " + TJ.replace("P1 S2 w9 w10 f18 S3", "P1 S2 S3 w9 w10"))
for h, H in (("C", HC), ("D", HD), ("E", HE)):
    for x, T in (("h", TH), ("i", TI), ("j", TJ)): PROGS[h + x] = H + T
PROGS["E2"] = PROGS["Eh"].replace("warm bA7 wK0 bA8 V0 wK1", "warm bA7 V0 bA8 wK0 wK1")
PROGS["E3"] = PROGS["Eh"].replace("warm bA7 wK0 bA8 V0 wK1", "bA7 wK0 bA8 V0 warm wK1")
PROGS["E4"] = PROGS["Eh"].replace("warm bA7 wK0 bA8 V0 wK1 W0 W1 wV0 V1", "V0 bA7 wK0 bA8 warm wK1 wV0 V1 W0 W1")
Cfg.prog = "Eh"

def gen(cfg):
    hdr = open(REF).read().split("; Override launch")[0].rstrip("\n")
    launch = [f"; @launch grid=(256,1,1) block=(512,1,1) lds={LDS_BYTES}"]
    if cfg.amp >= 0:
        launch = [f"; @launch kernel={NAME} grid=(256,1,1) block=(512,1,1) lds={LDS_BYTES}", "; @launch kernel=amp_kernel grid=(1,1,1) block=(64,1,1) lds=0"]
    if cfg.pre or cfg.post:
        launch = [f"; @launch kernel={NAME} grid=(256,1,1) block=(512,1,1) lds={LDS_BYTES}"]
        if cfg.pre: launch = [f"; @launch kernel=aux_kernel grid=({cfg.pre},1,1) block=(64,1,1) lds=0"] + launch
        if cfg.post: launch += [f"; @launch kernel=aux_kernel grid=({cfg.post},1,1) block=(64,1,1) lds=0"]
    L = [hdr] + launch + ['.amdgcn_target "amdgcn-amd-amdhsa--gfx950"',
         ".text", f".globl {NAME}", ".p2align 8", f".type {NAME},@function", f"{NAME}:"]
    P = Stream("pro"); prologue(P, cfg); L += P.finish()
    Ld = Stream("loader"); Ld.smem_pending = True; Ld.progname = cfg.prog; loader(Ld, cfg); L += Ld.finish()
    if cfg.prog2:
        import re
        n0 = len(SITES)
        L2 = Stream("loader2"); L2.smem_pending = True; L2.progname = cfg.prog2; loader(L2, cfg)
        body = L2.finish(); body = body[body.index("L_fork:"):]
        ren = lambda x: re.sub(r"\b(L_(?!end\b)\w+)", r"\1_c1", x)
        L += [ren(x) for x in body]
        Ld.cold += [ren(x if isinstance(x, str) else "    " + x.text) for x in L2.cold[L2.ncold:]]
    L.append(".p2align 6")
    C = Stream("compute"); C.smem_pending = True; compute(C, cfg); L += C.finish()
    L.append("L_cold:")
    for s in (Ld, C):
        L += [x if isinstance(x, str) else "    " + x.text for x in s.cold]
    L += ["L_end:", "    s_endpgm", '.section .rodata,"a"', ".p2align 6", f".amdhsa_kernel {NAME}",
          "  .amdhsa_next_free_vgpr 256", "  .amdhsa_next_free_sgpr 102", "  .amdhsa_accum_offset 256",
          "  .amdhsa_group_segment_fixed_size 0", "  .amdhsa_kernarg_size 104", "  .amdhsa_user_sgpr_count 2",
          "  .amdhsa_user_sgpr_kernarg_segment_ptr 1", "  .amdhsa_system_sgpr_workgroup_id_x 1", ".end_amdhsa_kernel", ""]
    if cfg.pre or cfg.post:
        L = L[:-1] + [".text", ".globl aux_kernel", ".p2align 8", ".type aux_kernel,@function", "aux_kernel:", "    s_endpgm",
              '.section .rodata,"a"', ".p2align 6", ".amdhsa_kernel aux_kernel", "  .amdhsa_next_free_vgpr 8", "  .amdhsa_next_free_sgpr 16", "  .amdhsa_accum_offset 8",
              "  .amdhsa_group_segment_fixed_size 0", "  .amdhsa_kernarg_size 104", "  .amdhsa_user_sgpr_count 2",
              "  .amdhsa_user_sgpr_kernarg_segment_ptr 1", "  .amdhsa_system_sgpr_workgroup_id_x 1", ".end_amdhsa_kernel", ""]
    if cfg.amp >= 0:
        Am = Stream("amp")
        Am(f"""s_cmp_ge_u32 s2, 1
        s_cbranch_scc1 amp_end
        s_memrealtime s[24:25]
        s_load_dwordx2 s[4:5], s[0:1], 96
        s_mov_b32 s10, {WS_SIZE}
        s_mov_b32 s11, 0x20000
        s_waitcnt lgkmcnt(0)
        s_mov_b32 s8, s4
        s_and_b32 s9, s5, 0xffff
        v_lshlrev_b32 v1, 9, v0
        s_mov_b32 s12, {WS_STAMP + 64 * cfg.ampw}""")
        for i in range(4):
            Am(f"s_add_u32 s13, s12, {i*64*512}")
            Am(f"buffer_load_dword v{4+i}, v1, s[8:11], s13 offen offset:56")
            Am(f"buffer_load_dword v{8+i}, v1, s[8:11], s13 offen offset:{4*(cfg.amp if cfg.amp < 100 else 15)}")
        Am("v_min_u32 v4, v4, v5\nv_min_u32 v6, v6, v7\nv_min_u32 v4, v4, v6\nv_max_u32 v8, v8, v9\nv_max_u32 v10, v10, v11\nv_max_u32 v8, v8, v10")
        Am("s_mov_b32 s14, -1\ns_mov_b32 s15, 0")
        for l in range(64):
            Am(f"v_readlane_b32 s16, v4, {l}\nv_readlane_b32 s17, v8, {l}\ns_nop 3\ns_min_u32 s14, s14, s16\ns_max_u32 s15, s15, s17")
        if cfg.amp == 100: Am("s_mov_b32 s14, s15\ns_mov_b32 s15, s24")
        if cfg.amp == 101:
            Am(f"s_add_u32 s4, s4, {WS_STAMP - 64}\ns_addc_u32 s5, s5, 0\ns_load_dword s26, s[4:5], 0\ns_waitcnt lgkmcnt(0)\ns_mov_b32 s15, s14\ns_mov_b32 s14, s26")
        if cfg.amp == 102: Am("s_mov_b32 s15, s14")
        Am("s_sub_u32 s14, s15, s14\ns_min_u32 s14, s14, 20000\ns_mul_i32 s14, s14, 10\ns_memrealtime s[18:19]\ns_waitcnt lgkmcnt(0)")
        Am.label("amp_spin")
        Am("s_sleep 2\ns_memrealtime s[20:21]\ns_waitcnt lgkmcnt(0)\ns_sub_u32 s22, s20, s18\ns_cmp_lt_u32 s22, s14\ns_cbranch_scc1 amp_spin")
        Am.label("amp_end")
        Am("s_endpgm")
        L = L[:-1]
        L += [".text", ".globl amp_kernel", ".p2align 8", ".type amp_kernel,@function", "amp_kernel:"] + Am.finish()
        L += [".globl pre_kernel", ".p2align 8", ".type pre_kernel,@function", "pre_kernel:",
              "s_cmp_ge_u32 s2, 1", "s_cbranch_scc1 pre_end", "s_load_dwordx2 s[4:5], s[0:1], 96", f"s_mov_b32 s10, {WS_SIZE}", "s_mov_b32 s11, 0x20000", "s_waitcnt lgkmcnt(0)",
              "s_mov_b32 s8, s4", "s_and_b32 s9, s5, 0xffff", "v_mov_b32 v1, 0", "s_memrealtime s[12:13]", "s_waitcnt lgkmcnt(0)", "v_mov_b32 v2, s12", f"s_mov_b32 s14, {WS_STAMP - 64}",
              "buffer_store_dword v2, v1, s[8:11], s14 offen", "pre_end:", "s_endpgm"]
        L += ['.section .rodata,"a"', ".p2align 6", ".amdhsa_kernel pre_kernel", "  .amdhsa_next_free_vgpr 32", "  .amdhsa_next_free_sgpr 32", "  .amdhsa_accum_offset 32",
              "  .amdhsa_group_segment_fixed_size 0", "  .amdhsa_kernarg_size 104", "  .amdhsa_user_sgpr_count 2",
              "  .amdhsa_user_sgpr_kernarg_segment_ptr 1", "  .amdhsa_system_sgpr_workgroup_id_x 1", ".end_amdhsa_kernel"]
        L += ['.section .rodata,"a"', ".p2align 6", ".amdhsa_kernel amp_kernel", "  .amdhsa_next_free_vgpr 32", "  .amdhsa_next_free_sgpr 32", "  .amdhsa_accum_offset 32",
              "  .amdhsa_group_segment_fixed_size 0", "  .amdhsa_kernarg_size 104", "  .amdhsa_user_sgpr_count 2",
              "  .amdhsa_user_sgpr_kernarg_segment_ptr 1", "  .amdhsa_system_sgpr_workgroup_id_x 1", ".end_amdhsa_kernel", ""]
    if cfg.align:
        from align import align
        k0 = L.index(f"{NAME}:"); k1 = L.index("L_end:") + 2
        body, nprom, npad = align(L[k0:k1], "L_compute", "L_cold", cfg.align == 2)
        L = L[:k0] + body + L[k1:]
        sys.stderr.write(f"align: promoted {nprom} padded {npad}\n")
    sys.stderr.write(f"nops: loader {Ld.nops} compute {C.nops}\n")
    return "\n".join(L)

if __name__ == "__main__":
    cfg = Cfg()
    out = sys.argv[1]
    for a in sys.argv[2:]:
        k, val = a.split("=", 1)
        cur = getattr(Cfg, k)
        if isinstance(cur, bool): val = val in ("1", "true", "True")
        elif isinstance(cur, int): val = int(val)
        elif val == "None": val = None
        setattr(cfg, k, val)
    open(out, "w").write(gen(cfg))
    open(out + ".sites", "w").write(" ".join(map(str, SITES)))
```

```python
import sys, math, struct
from sched import Stream, Ins

NAME = "concat_heads__mha_block_cached__gqa_block_cached__near_ridge_kernel"
REF = "concat_heads__mha_block_cached__gqa_block_cached__near_ridge.s.ref"
SLOT = 17408
PITCH = 1056
LB = 512
LDS_BYTES = LB + 9 * SLOT
def slot(i): return LB + i * SLOT
WS_O, WS_D, WS_DX, WS_FLAG, WS_EPOCH, WS_STAMP = 0, 16 << 20, 32 << 20, 40 << 20, 41 << 20, 48 << 20
WS_SIZE = 64 << 20
SPIN_LIMIT = 1 << 18

def f32(x): return struct.unpack("<I", struct.pack("<f", x))[0]
def vr(n, c=1): return f"v{n}" if c == 1 else f"v[{n}:{n+c-1}]"
def mfma(d, a, b, first=False):
    return f"v_mfma_f32_16x16x32_bf16 {vr(d,4)}, {vr(a,4)}, {vr(b,4)}, {'0' if first else vr(d,4)}"
def _raw(text): return [Ins(l.strip()) if not l.strip().endswith(":") else l.strip() for l in text.split("\n") if l.strip()]
def emit(S, x):
    if callable(x): x()
    elif isinstance(x, tuple): S(*x)
    else: S(x)

SX, SWQ, SK, SV, SWO, SWS, SOUT, SDBG = 8, 12, 16, 20, 24, 28, 32, 36
def srd(n): return f"s[{n}:{n+3}]"
S_BLK, S_KQ, S_B, S_P, S_H0, S_W, S_NONCE, S_C = 40, 41, 42, 43, 44, 45, 46, 47

R_K0, R_K1, R_V0, R_WA, R_V1, R_U = 9, 10, 11, 12, 13, 14
F_QK0, F_QK1, F_PV0, F_O0, F_PV1, F_O1 = 10, 11, 12, 13, 15, 16
F_OI, F_DX = 18, 21
FU = {1: 14, 2: 17, 4: 19, 8: 20}
WSET = {"WA": (0, 1), "WB": (2, 3, 4, 5, 6), "WC": (7, 8), "WD": (9, 10, 11, 12, 13), "WE": (14, 15, 16, 17)}
def c_events(cfg):
    pos = {"WB": 12, "WC": 52, "WD": 68, "WE": 8 * min(14, cfg.merge) - 4}
    for k, x in enumerate(cfg.opos.split(",")): pos[f"OP{k}"] = int(x)
    ev = {n: (R_U + i, pos[n]) for i, n in enumerate(sorted(pos, key=lambda n: pos[n]))}
    ev["WA"] = (R_WA, -12)
    return ev

class Cfg:
    pol_x = ""; pol_wq = ""; pol_kv = "nt"; pol_wo = ""
    stop = None
    stamps = False; real = False; adetail = False; cdetail = 0
    ngrp = 3; rotp = 1; rotk = 3
    k0pos = 1; k0cls = 4; kvwait = 8
    codepf = True
    order = "blk"
    flag0 = -5; flag0b = 4; o1pos = 16; flag1 = 44; flag1b = 60; dxpos = 56
    amp = -1; ampw = 0
    probe_ahead = 8
    free_delay = 7
    trace = False
    pol_st = "sc1"
    pol_sd = "sc1"
    gwait2 = False
    mst = ""
    prog2 = ""
    defer = 12
    dot2 = True
    wprio2 = 0
    dbg = ""
    spoll = True
    blead = 7
    pk = False
    pol_out = ""
    pre = 0
    post = 0
    align = 0
    dxgo = 96
    opos = "28,29,86,93"
    ostep = 2
    pol_o = "sc1"
    pfilter = ""
    o1end = 10
    merge = 14
    dxsleep = 8
    akv = "0:1:4,1:2:4:3"
    o1len = 30
    ptrace = False
    early0 = 72
    warmpos = -1
    k1pos = -1
    warmrot = 3
    wprio = 0
    bargap = 4
    abar = True
    cbar = 6
    nocheck = False
    nofree = False
    alead = 4
    nodma = False
    lprio = 3
    lsleep = 5
    wake = True
    gwait = True
    early = False
    trace_from = 0

def stamp(S, cfg, idx, det=False):
    if not cfg.stamps: return
    if (cfg.cdetail or cfg.adetail) and idx not in (0, 13) and not det: return
    S(f"{'s_memrealtime' if cfg.real else 's_memtime'} s[78:79]")
    S("s_waitcnt lgkmcnt(0)")
    S(f"s_mov_b32 s{80+idx}, s78")

SITES = []
def trace_raw(cfg, who, ident):
    if not cfg.trace or len(SITES) >= 128: return ""
    if cfg.ptrace and not isinstance(ident, str): return ""
    k = len(SITES); SITES.append(ident)
    return f"{'s_memrealtime' if cfg.real else 's_memtime'} s[78:79]\ns_waitcnt lgkmcnt(0)\nv_writelane_b32 v{250 + (k >> 6)}, s78, {k & 63}\n"
def stamps_store(S, cfg):
    if not cfg.stamps: return
    S("s_memrealtime s[78:79]\ns_waitcnt lgkmcnt(0)\ns_mov_b32 s95, s78")
    stamp(S, cfg, 13)
    S(f"s_lshl_b32 s66, s2, 3\ns_add_u32 s66, s66, s3\ns_lshl_b32 s66, s66, 6\ns_add_u32 s66, s66, {WS_STAMP}")
    S("v_mov_b32 v2, 0")
    S("s_mov_b64 exec, 1")
    for i in range(16):
        S(f"v_mov_b32 v3, s{80+i}")
        S(f"buffer_store_dword v3, v2, {srd(SWS)}, s66 offen offset:{4*i}")
    S("s_mov_b64 exec, -1")

def prologue(S, cfg):
    S(f"""s_cmp_ge_u32 s2, 256
    s_cbranch_scc1 L_end
    s_bfe_u32 s{S_BLK}, s2, 0x10002
    s_mul_i32 s66, s{S_BLK}, 40
    s_add_u32 s4, s0, s66
    s_addc_u32 s5, s1, 0
    s_load_dwordx8 s[48:55], s[4:5], 0""")
    if cfg.stamps:
        S(f"s_memrealtime s[6:7]\n{'s_memrealtime' if cfg.real else 's_memtime'} s[92:93]")
    S(f"""v_lshrrev_b32 v2, 6, v0
    v_and_b32 v1, 63, v0
    s_load_dwordx2 s[56:57], s[4:5], 32
    v_readfirstlane_b32 s3, v2
    s_load_dwordx4 s[60:63], s[0:1], 80
    s_load_dwordx2 s[64:65], s[0:1], 96
    s_and_b32 s{S_KQ}, s2, 3
    s_bfe_u32 s{S_B}, s2, 0x30003
    s_lshr_b32 s{S_P}, s2, 6
    s_lshl2_add_u32 s{S_H0}, s{S_KQ}, s{S_P}
    s_lshl_b32 s{S_H0}, s{S_H0}, 1
    s_and_b32 s{S_W}, s3, 3
    s_cmp_lt_u32 s3, 4
    s_cbranch_scc1 L_compute""")
def first_stamps(S, cfg):
    if cfg.stamps:
        S("s_mov_b32 s80, s92\ns_mov_b32 s94, s6")
        for i in range(1, 14): S(f"s_mov_b32 s{80+i}, 0")
SRD_SIZE = {SX: 1179648, SWQ: 4718592, SK: 8388608, SV: 8388608, SWO: 4718592, SWS: WS_SIZE, SOUT: 2359296, SDBG: 256}
def srd_consts(S, which):
    for d in which: S(f"s_mov_b32 s{d+2}, {SRD_SIZE[d]}\ns_mov_b32 s{d+3}, 0x20000")
def srd_bases(S, which):
    for d, p in ((SX, 48), (SWQ, 54), (SK, 50), (SV, 52), (SWO, 56), (SWS, 64), (SOUT, 60), (SDBG, 62)):
        if d in which: S(f"s_mov_b32 s{d}, s{p}\ns_and_b32 s{d+1}, s{p+1}, 0xffff")

def nonce_issue(S, vt, vz):
    S(f"buffer_load_dword v{vt}, v{vz}, {srd(SDBG)}, 0 offen sc1")
def nonce_check(S, vt, vz, lab):
    S(f"v_readfirstlane_b32 s{S_NONCE}, v{vt}")
    S(f"s_cmp_eq_u32 s{S_NONCE}, 0\ns_cbranch_scc1 {lab}")
    S.label(f"{lab}_ok")
    S.cold += _raw(f"""{lab}:
    s_mov_b32 s77, {SPIN_LIMIT}
    {lab}_spin:
    buffer_load_dword v{vt}, v{vz}, {srd(SDBG)}, 0 offen sc1
    s_waitcnt vmcnt(0)
    v_readfirstlane_b32 s{S_NONCE}, v{vt}
    s_nop 4
    s_cmp_lg_u32 s{S_NONCE}, 0
    s_cbranch_scc1 {lab}_ok
    s_sleep 2
    s_sub_u32 s77, s77, 1
    s_cmp_lg_u32 s77, 0
    s_cbranch_scc1 {lab}_spin
    s_branch {lab}_ok""")

def swar(s, need):
    return [f"s_or_b32 s{s}, s{s}, 0x80808080", f"s_sub_u32 s{s}, s{s}, {need * 0x01010101}", f"s_andn2_b32 s{s}, 0x80808080, s{s}", f"s_cmp_eq_u32 s{s}, 0"]
def spin_block(lab, back, vt, vz, off, sreg, need, sleep):
    return _raw(f"""{lab}:
    s_mov_b32 s77, {SPIN_LIMIT}
    {lab}_spin:
    ds_read_b32 v{vt}, v{vz} offset:{off}
    s_waitcnt lgkmcnt(0)
    v_readfirstlane_b32 s{sreg}, v{vt}
    s_nop 3
    """ + "\n".join(swar(sreg, need)) + f"""
    s_cbranch_scc1 {back}
    {'s_sleep ' + str(sleep) if sleep else ''}
    s_sub_u32 s77, s77, 1
    s_cmp_lg_u32 s77, 0
    s_cbranch_scc1 {lab}_spin
    s_branch {back}""")

def c_units():
    u = [("M", 0, 0), ("M", 0, 1), ("E", 0, 0), ("M", 1, 0), ("M", 1, 1), ("E", 1, 0)]
    for hh in (0, 1):
        for ii in range(6): u.append(("P", hh, ii))
    return u
def c_slots():
    sl = [(0, F_QK0), (1, F_QK0), (8, 9), (2, F_O0), (3, F_O0), (4, F_PV0), (5, F_PV0), (6, F_PV1), (7, F_PV1),
          (0, F_O1), (1, F_O1), (8, FU[2]), (2, FU[4]), (3, FU[4]), (4, FU[8]), (5, FU[8]), (6, FU[8]), (7, FU[8])]
    return {("W", j): sl[j] for j in range(18)}

def pack(dst, src):
    return [f"v_cvt_pk_bf16_f32 v{dst+8*s+4*u+2*e+x}, v{src+8*(2*s+e)+4*u+2*x}, v{src+8*(2*s+e)+4*u+2*x+1}" for s in range(4) for u in range(2) for e in range(2) for x in range(2)]
PAY = [0, 1, 2, 4, 5, 6, 8, 9]

def loader(S, cfg):
    VXO, VWO, VKV, VKW, VVW, VMO, VEO, VOO, VFL, VWW, VN, VZ, VP0, VPA, VT = 4, 5, 6, 7, 8, 9, 10, 11, 12, 13, 14, 15, 16, 18, 19
    KVREG = [24, 56, 88, 120]
    sXb, sWb, sCC, sM, sMo, sT, sKV0, sKV1, sA = 66, 67, 68, 69, 70, 71, 72, 73, 75
    sWP, sOP = [65, 96, 97, 98], [62, 99, 100, 101]
    S(f"""s_lshl_b32 s{sT}, s{S_W}, 2
    v_and_b32 v2, 0x38, v1
    v_lshl_add_u32 v2, v2, 1, s{sT}
    v_mul_u32_u24 v3, 1152, v2
    v_and_b32 v20, 7, v1
    v_lshl_add_u32 v{VXO}, v20, 4, v3
    s_lshl_b32 s76, s{S_W}, 3
    s_lshl1_add_u32 s76, s{S_W}, s76
    s_and_b32 s76, s76, 12
    v_and_b32 v2, 32, v1
    v_lshlrev_b32 v2, 12, v2
    v_and_b32 v20, 31, v1
    v_lshl_add_u32 v{VWO}, v20, 4, v2
    s_lshl_b32 s76, s76, 13
    s_mul_i32 s{sM}, s{sT}, {PITCH}
    s_lshl_b32 s75, s{S_H0}, 8
    s_add_u32 s75, s75, s76""")
    n = cfg.ngrp
    if cfg.order == "rot": orders = [[(round(9 * g / n) + c) % 9 for c in range(9)] for g in range(n)]
    else: orders = [[(c // n) * n + (c + g) % n if (c // n + 1) * n <= 9 else c for c in range(9)] for g in range(n)]
    tabs = [sum(x << (4 * i) for i, x in enumerate(o)) for o in orders]
    gtab = sum((i % n) << (2 * i) for i in range(16))
    S(f"""s_mul_i32 s76, s{S_P}, {cfg.rotp}
    s_add_u32 s76, s76, s{S_B}
    s_and_b32 s77, s{S_KQ}, {cfg.rotk}
    s_add_u32 s76, s76, s77
    s_lshl_b32 s76, s76, 1
    s_lshr_b32 s76, {gtab}, s76
    s_and_b32 s76, s76, 3
    s_mov_b32 s58, {tabs[0] & 0xffffffff}
    s_mov_b32 s59, {tabs[0] >> 32}""")
    for g in range(1, n):
        S(f"s_cmp_eq_u32 s76, {g}\ns_cselect_b32 s58, {tabs[g] & 0xffffffff}, s58\ns_cselect_b32 s59, {tabs[g] >> 32}, s59")
    S(f"s_mul_i32 s74, s{S_B}, 147456")
    srd_consts(S, (SX, SWQ))
    S("s_waitcnt lgkmcnt(0)")
    srd_bases(S, (SX, SWQ))
    def chunk(c, mid=None):
        base = slot((c % 3) * 3)
        S(f"""s_and_b32 s{sCC}, s58, 15
        s_lshr_b64 s[58:59], s[58:59], 4
        s_lshl_b32 s{sXb}, s{sCC}, 7
        s_add_u32 s{sXb}, s{sXb}, s74
        s_lshl_b32 s{sWb}, s{sCC}, 19
        s_add_u32 s{sWb}, s{sWb}, s75""")
        for i in range(4):
            S(f"s_add_u32 m0, s{sM}, {base + i*(PITCH-1152)}")
            S(f"buffer_load_dwordx4 v{VXO}, {srd(SX)}, s{sXb} offen offset:{i*1152} {cfg.pol_x} lds", tag=f"ch{c}")
        if mid: mid()
        for st in range(2):
            for i in range(4):
                S(f"s_add_u32 m0, s{sM}, {base + SLOT*(1+st) + i*PITCH}\ns_add_u32 s{sT}, s{sWb}, {(32*st+i)*8192}")
                S(f"buffer_load_dwordx4 v{VWO}, {srd(SWQ)}, s{sT} offen {cfg.pol_wq} lds", tag=f"ch{c}")
    def kv_lines(m):
        sr = SK if m < 2 else SV
        sb = sKV0 if m % 2 == 0 else sKV1
        o = [f"s_add_u32 s{sT}, s{sb}, 4096"]
        for j in range(8):
            o.append((f"buffer_load_dwordx4 {vr(KVREG[m]+4*j,4)}, v{VKV}, {srd(sr)}, s{sb if j < 4 else sT} offen offset:{(j&3)*1024} {cfg.pol_kv}", f"kv{m}"))
        return o
    def kv_load(m):
        for x in kv_lines(m): emit(S, x)
    def v_dma(m, sl):
        sb = sKV0 if m % 2 == 0 else sKV1
        S(f"""v_lshrrev_b32 v2, 4, v1
        v_lshlrev_b32 v2, 13, v2
        v_and_b32 v3, 15, v1
        v_lshl_add_u32 v2, v3, 4, v2
        s_lshl_b32 s76, s{S_W}, 11
        s_add_u32 s{sT}, s{sb}, s76
        s_lshl_b32 s76, s{sM}, 1""")
        for j in range(8):
            S(f"s_add_u32 m0, s76, {slot(sl) + j*(PITCH-256)}")
            S(f"buffer_load_dwordx4 v2, {srd(SV)}, s{sT} offen offset:{j*256} {cfg.pol_kv} lds", tag=f"kv{m}")
    def cond(lab, cls, mask, lines, pre=""):
        S(f"s_and_b32 s76, s{S_B}, {mask}\ns_cmp_lg_u32 s76, {cls}\ns_cbranch_scc1 {lab}")
        S.out += _raw(pre + "\n".join(x[0] if isinstance(x, tuple) else x for x in lines))
        S.label(lab)
    def kv_load_if(m, cls, ncls, pre=""):
        cond(f"L_kv{m}_{cls}", cls, ncls - 1, kv_lines(m), pre)
        if cls == ncls - 1: S.phantom([f"v{KVREG[m]+i}" for i in range(32)], f"kv{m}")
    def warm_lines():
        return f"""s_lshl_b32 s76, s{S_KQ}, 3
        s_add_u32 s76, s76, s{S_B}
        s_lshl_b32 s76, s76, 2
        s_add_u32 s76, s76, s{S_W}
        s_mul_i32 s76, s76, {32*1152}
        s_lshl_b32 s77, s{S_P}, 8
        s_add_u32 s76, s76, s77
        v_lshrrev_b32 v20, 1, v1
        v_mul_u32_u24 v20, 1152, v20
        v_and_b32 v3, 1, v1
        v_lshl_add_u32 v20, v3, 7, v20
        buffer_load_dword v22, v20, {srd(SWO)}, s76 offen {cfg.pol_wo}
        s_lshl_b32 s76, s{S_B}, 2
        s_add_u32 s76, s76, s{S_W}
        s_mul_i32 s76, s76, {8*1152}
        s_add_u32 s76, s76, s64
        v_and_b32 v21, 7, v1
        v_mul_u32_u24 v21, 1152, v21
        buffer_load_dword v23, v21, {srd(SWO)}, s76 offen offset:1024 {cfg.pol_wo}""".split("\n")
    def kv_write(m, sl):
        S.wait_vm_tag(f"kv{m}")
        S(f"s_setprio {cfg.wprio}")
        if "nolw" in cfg.dbg: return
        if m < 2:
            for j in range(8):
                S(f"v_add_u32 v2, {slot(sl) + j*4*PITCH}, v{VKW}")
                S(f"ds_write2_b64 v2, {vr(KVREG[m]+4*j,2)}, {vr(KVREG[m]+4*j+2,2)} offset0:0 offset1:2")
        else:
            S(f"v_add_u32 v2, {slot(sl)}, v{VVW}")
            for j in range(8):
                S(f"ds_write_b128 v2, {vr(KVREG[m]+4*j,4)} offset:{j*4*PITCH}")
    known = [0]; last_pub = [0]
    def wait_free(f, early=None):
        if f <= known[0]: return
        known[0] = f
        if cfg.nofree:
            S("s_sleep 5"); return
        lab = f"L_wf{f}"
        S.wait_lg(0)
        if cfg.trace and f >= cfg.trace_from: S(trace_raw(cfg, "loader", 100 + f))
        S(f"s_setprio {cfg.lprio}\nds_read_b32 v{VT}, v{VZ} offset:4\nv_readfirstlane_b32 s76, v{VT}")
        for x in swar(76, f): S(x)
        S(f"s_cbranch_scc0 {lab}")
        S.label(lab + "_ok")
        S("s_setprio 0")
        if cfg.trace and f >= cfg.trace_from: S(trace_raw(cfg, "loader", 200 + f))
        blk = spin_block(lab, lab + "_ok", VT, VZ, 4, 76, f, cfg.lsleep)
        if early and cfg.early: blk = blk[:1] + _raw(f"s_waitcnt vmcnt(0)\ns_mov_b32 s63, {early}\nv_mov_b32 v{VT}, {early}\nds_write_b8 v{VPA}, v{VT}\n" + (trace_raw(cfg, "loader", 400 + early) if f >= cfg.trace_from else "")) + blk[1:]
        S.cold += blk
    def publish(r):
        last_pub[0] = r
        S.wait_lg(0)
        S(f"s_setprio {cfg.lprio}\nv_mov_b32 v{VT}, {r}\nds_write_b8 v{VPA}, v{VT}\ns_setprio 0")
        if cfg.trace and known[0] >= cfg.trace_from: S(trace_raw(cfg, "loader", 300 + r))
        if cfg.adetail and r <= 12: stamp(S, cfg, r, True)
        if cfg.cdetail > 0 and 0 <= r - R_U < 12: stamp(S, cfg, 1 + r - R_U, True)
    chunk(0)
    first_stamps(S, cfg)
    stamp(S, cfg, 1)
    srd_consts(S, (SK, SV, SWO, SWS, SOUT, SDBG))
    srd_bases(S, (SK, SV, SWO, SWS, SOUT, SDBG))
    S(f"s_add_u32 s50, s64, {WS_FLAG}\ns_addc_u32 s51, s65, 0")
    if cfg.trace: S("s_mov_b32 s92, 0\nv_mov_b32 v250, 0\nv_mov_b32 v251, 0")
    if cfg.codepf:
        S(f"""s_getpc_b64 s[76:77]
        L_pc:
        s_lshr_b32 s{sT}, s2, 3
        s_lshl_b32 s{sT}, s{sT}, 2
        s_add_u32 s{sT}, s{sT}, s{S_W}
        s_mul_i32 s{sT}, s{sT}, 3
        v_min_u32 v2, 2, v1
        v_add_u32 v2, s{sT}, v2
        v_lshlrev_b32 v2, 7, v2
        v_min_u32 v2, L_end-L_pc, v2
        global_load_dword v23, v2, s[76:77]""")
    S(f"""v_mov_b32 v{VZ}, 0
    v_mov_b32 v20, 0
    v_mov_b32 v21, 0
    v_lshlrev_b32 v3, 3, v1
    ds_write_b64 v3, v[20:21]
    v_lshl_add_u32 v{VPA}, v1, 2, 64
    v_writelane_b32 v{VPA}, s{S_W}, 0
    v_add_u32 v{VEO}, 1024, v{VXO}
    s_lshl_b32 s76, s{S_W}, 13
    v_lshlrev_b32 v{VOO}, 4, v1
    v_add_u32 v{VKV}, s76, v{VOO}
    v_add_u32 v{VWW}, s{sM}, v{VOO}
    s_lshl_b32 s{sKV0}, s{S_B}, 5
    s_add_u32 s{sKV0}, s{sKV0}, s{S_H0}
    s_lshl_b32 s{sKV0}, s{sKV0}, 15
    s_add_u32 s{sKV1}, s{sKV0}, 32768
    v_lshrrev_b32 v2, 4, v1
    v_mul_u32_u24 v20, {PITCH}, v2
    s_lshl_b32 s76, s{S_W}, 8
    v_add_u32 v20, s76, v20
    v_and_b32 v3, 15, v1
    v_lshl_add_u32 v{VVW}, v3, 4, v20
    v_bfe_u32 v3, v1, 2, 2
    v_lshl_add_u32 v20, v3, 6, v20
    v_and_b32 v3, 1, v1
    v_lshl_add_u32 v20, v3, 5, v20
    v_bfe_u32 v3, v1, 1, 1
    v_lshl_add_u32 v{VKW}, v3, 3, v20""")
    S.wait_vm(9 if cfg.codepf else 8)
    chunk(1)
    S.wait_vm_tag("ch0"); S.wait_lg(0)
    stamp(S, cfg, 2)
    S("s_barrier")
    def pubch(c):
        S.wait_vm_tag(f"ch{c}"); publish(c)
    chunk(2, None if cfg.abar else (lambda: pubch(1)))
    S(f"""v_lshlrev_b32 v2, 4, v2
    s_lshl_b32 s76, s{S_W}, 2
    v_add_u32 v2, s76, v2
    v_mul_u32_u24 v2, 1152, v2
    s_lshl_b32 s76, s{S_KQ}, 6
    v_add_u32 v3, s76, v{VOO}
    v_and_b32 v3, 0xff, v3
    v_add_u32 v{VMO}, v2, v3
    v_min_u32 v2, 2, v1
    v_add3_u32 v2, v2, s{S_P}, 1
    v_and_b32 v2, 3, v2
    v_lshlrev_b32 v2, 6, v2
    s_and_b32 s76, s2, 63
    v_add_u32 v2, s76, v2
    v_lshlrev_b32 v2, 2, v2
    v_add_u32 v2, s{S_W}, v2
    v_lshlrev_b32 v{VFL}, 8, v2
    s_lshl_b32 s{sMo}, s{S_W}, 12""")
    for pi in range(4):
        d = sWP[pi]
        S(f"""s_add_u32 s76, s{S_P}, {pi}
        s_and_b32 s76, s76, 3
        s_lshl_b32 s77, s{S_KQ}, 2
        s_add_u32 s77, s77, s76
        s_mul_i32 s77, s77, {256*1152}
        s_lshl_b32 s{d}, s{S_P}, 8
        s_add_u32 s{d}, s{d}, s77""")
        if pi == 0: S("s_mov_b32 s64, s77")
        if True:
            S(f"""s_lshl_b32 s76, s76, 6
            s_and_b32 s77, s2, 63
            s_add_u32 s76, s76, s77
            s_lshl_b32 s76, s76, 2
            s_add_u32 s76, s76, s{S_W}
            s_lshl_b32 s{sOP[pi]}, s76, 14""")
            if pi: S(f"s_lshl_b32 s{54+pi}, s76, 8")
    for c in range(1, 7):
        if cfg.abar:
            S.wait_vm_tag(f"ch{c}"); stamp(S, cfg, c, cfg.adetail) if cfg.adetail else None; S("s_barrier"); known[0] = c
        else:
            wait_free(c, c + 1)
            pubch(c + 1)
        if c == 4: nonce_issue(S, VN, VZ)
        if not cfg.nodma: chunk(c + 2)
        for item in cfg.akv.split(","):
            what, first, ncls, rot = (item.split(":") + ["0"])[:4]
            first, ncls, rot = int(first), int(ncls), int(rot)
            if not 0 <= c - first < ncls: continue
            cond(f"L_a{what}_{c}", (c - first + rot) % ncls, ncls - 1, warm_lines() if what == "w" else kv_lines(int(what)), f"s_waitcnt vmcnt({cfg.kvwait})\n")
            if what != "w" and c - first == ncls - 1: S.phantom([f"v{KVREG[int(what)]+i}" for i in range(32)], f"kv{what}")
    nonce_check(S, VN, VZ, "L_ln")
    units, slots = c_units(), c_slots()
    def w_src(j):
        uk, hh, x = units[j]
        if uk == "M": return VMO, 65, (hh * 128 + 64 * x) * 1152
        if uk == "E": return VEO, 64, hh * 128 * 1152
        return VMO, sWP[1 + x % 3], (hh * 128 + 64 * (x // 3)) * 1152
    blocks = [152 + 16 * i for i in range(6)]
    parked = {}
    def w_load(j):
        va, sb, off = w_src(j)
        S(f"s_add_u32 s{sA}, s{sb}, {off}")
        if slots[("W", j)][1] <= known[0] and (j not in (3, 4, 9, 10) or (j > 4) in picked):
            lds_w.add(j)
            for i in range(4):
                S(f"s_add_u32 m0, s{sM}, {slot(slots[('W', j)][0]) + i*(PITCH-1152)}")
                S(f"buffer_load_dwordx4 v{va}, {srd(SWO)}, s{sA} offen offset:{i*1152} {cfg.pol_wo} lds", tag=f"u{j}")
        else:
            parked[j] = blocks.pop(0)
            for i in range(4 if "nopark" not in cfg.dbg else 0):
                S(f"buffer_load_dwordx4 {vr(parked[j]+4*i,4)}, v{va}, {srd(SWO)}, s{sA} offen offset:{i*1152} {cfg.pol_wo}", tag=f"u{j}w")
    lds_w = set()
    def w_write(j):
        assert j not in (3, 4, 9, 10) or (j > 4) in picked
        wait_free(slots[("W", j)][1])
        lds_w.add(j)
        S.wait_vm_tag(f"u{j}w")
        S(f"s_setprio {cfg.wprio if j < 7 else cfg.wprio2}\nv_add_u32 v2, {slot(slots[('W', j)][0])}, v{VWW}")
        for i in range(4 if not ("now" in cfg.dbg and j > 6 or "nolw" in cfg.dbg) else 0): S(f"ds_write_b128 v2, {vr(parked[j]+4*i,4)} offset:{i*PITCH}")
        S.wait_lg(0)
        S("s_setprio 0")
        blocks.append(parked.pop(j))
    def warm():
        for x in warm_lines(): S(x)
    issued, polled = set(), set()
    EV = c_events(cfg)
    def poll_issue(hh):
        issued.add(hh)
        S(f"s_mov_b32 s76, {WS_FLAG}")
        S(f"buffer_load_dword v{VP0 + (hh & 1)}, v{VFL}, {srd(SWS)}, s76 offen offset:{64*hh} sc1")
    def poll(hh):
        lab = f"L_poll{hh}"
        polled.add(hh)
        if "nopoll" in cfg.dbg: return
        if cfg.spoll:
            S.wait_lg(0)
            S(f"s_mov_b32 s77, {SPIN_LIMIT}")
            S.label(lab)
            S.out += _raw("\n".join(f"s_load_dword s{52+i}, s[50:51], s{55+i} offset:{64*hh} glc" for i in range(3)) + f"""
            s_waitcnt lgkmcnt(0)
            s_xor_b32 s52, s52, s{S_NONCE}
            s_xor_b32 s53, s53, s{S_NONCE}
            s_xor_b32 s54, s54, s{S_NONCE}
            s_or_b32 s52, s52, s53
            s_or_b32 s52, s52, s54
            s_cbranch_scc0 {lab}_ok
            s_sub_u32 s77, s77, 1
            s_cmp_lg_u32 s77, 0
            s_cbranch_scc1 {lab}""")
            S.label(f"{lab}_ok")
            return
        if hh not in issued: poll_issue(hh)
        v = VP0 + (hh & 1)
        S(f"v_cmp_eq_u32 vcc, s{S_NONCE}, v{v}")
        S(f"s_cmp_eq_u64 vcc, -1\ns_cbranch_scc0 {lab}")
        S.label(f"{lab}_ok")
        S.cold += _raw(f"""{lab}:
        s_mov_b32 s76, {WS_FLAG}
        s_mov_b32 s77, {SPIN_LIMIT}
        {lab}_spin:
        buffer_load_dword v{v}, v{VFL}, {srd(SWS)}, s76 offen offset:{64*hh} sc1
        s_waitcnt vmcnt(0)
        v_cmp_eq_u32 vcc, s{S_NONCE}, v{v}
        s_nop 1
        s_cmp_eq_u64 vcc, -1
        s_cbranch_scc1 {lab}_ok
        s_sub_u32 s77, s77, 1
        s_cmp_lg_u32 s77, 0
        s_cbranch_scc1 {lab}_spin
        s_branch {lab}_ok""")
    oreg, picked = {}, set()
    def pickup(h):
        wait_free((F_O0, F_O1)[h])
        S(f"s_setprio {cfg.lprio}\nv_add_u32 v2, {slot(2 - 2*h)}, v{VWW}")
        for x in range(2):
            oreg[2*h + x] = blocks.pop(0)
            for i in range(4): S(f"ds_read_b128 {vr(oreg[2*h+x] + 4*i, 4)}, v2 offset:{x*SLOT + i*1024}")
        S.wait_lg(0)
        S("s_setprio 0")
        picked.add(h)
    def o_store(k):
        if "nost" in cfg.dbg: return
        S(f"s_add_u32 s{sA}, s{sOP[0]}, {WS_O + k*4096}")
        for i in range(4):
            S(f"buffer_store_dwordx4 {vr(oreg[k] + 4*i, 4)}, v{VOO}, {srd(SWS)}, s{sA} offen offset:{i*1024} {cfg.pol_st}", tag=f"o{k}")
    def o_flag(k):
        S.wait_vm_tag(f"o{k}")
        S(f"""s_lshr_b32 s76, s{sOP[0]}, 6
        s_add_u32 s76, s76, {WS_FLAG + 64*k}
        v_mov_b32 v3, s{S_NONCE}
        buffer_store_dword v3, v{VZ}, {srd(SWS)}, s76 offen sc1""")
        blocks.append(oreg.pop(k))
    def kv_duty(m, sl, f, r):
        wait_free(f); kv_write(m, sl); publish(r)
        blocks.extend([KVREG[m], KVREG[m] + 16])
    if cfg.prog2:
        S(f"s_and_b32 s76, s{S_B}, 1\ns_cmp_lg_u32 s76, 0\ns_cbranch_scc1 L_fork_c1")
        S.label("L_fork")
        S.ncold = len(S.cold)
    prog = PROGS[S.progname].split()
    if cfg.stop == "A": prog = ["bA7", "bA8"] if cfg.abar else ["p8"]
    if cfg.stop == "B": prog = [x for x in prog if x[0] in "KVpPS" or x[:2] in ("wK", "wV", "bA")]
    for op in prog:
        if cfg.ptrace and (not cfg.pfilter or op in cfg.pfilter.split(",")): S(trace_raw(cfg, "loader", op))
        if op in ("K1", "V0", "V1"): kv_load({"K1": 1, "V0": 2, "V1": 3}[op])
        elif "@" in op: kv_load_if({"K1": 1, "V0": 2, "V1": 3}[op[:2]], int(op[3]), 2)
        elif op in ("D0", "D1"):
            m = 2 + int(op[1]); wait_free(8 + int(op[1])); v_dma(m, 4 + 2 * int(op[1])); blocks.extend([KVREG[m], KVREG[m] + 16])
        elif op in ("pV0", "pV1"):
            S.wait_vm_tag(f"kv{2 + int(op[2])}"); publish((R_V0, R_V1)[int(op[2])])
        elif op == "warm": warm()
        elif op == "p8": S.wait_vm_tag("ch8"); publish(8)
        elif op[0] == "b":
            j = int(op[2:])
            S.wait_vm_tag(f"ch{j}"); known[0] = j
            S.wait_lg(0)
            if cfg.adetail: stamp(S, cfg, j, True)
            S("s_barrier")
        elif op == "wK0": kv_duty(0, 0, 7, R_K0)
        elif op == "wK1": kv_duty(1, 2, 8, R_K1)
        elif op == "wV0": kv_duty(2, 4, 8, R_V0)
        elif op == "wV1": kv_duty(3, 6, 9, R_V1)
        elif op[0] == "W": w_load(int(op[1:]))
        elif op[0] == "w": w_write(int(op[1:]))
        elif op[0] == "f": wait_free(int(op[1:]))
        elif op[0] == "q": poll(int(op[1:]))
        elif op[0] == "Q": poll_issue(int(op[1:]))
        elif op[0] == "P": pickup(int(op[1:]))
        elif op[0] == "S": o_store(int(op[1:]))
        elif op[0] == "G": o_flag(int(op[1:]))
        elif op[0] == "z": S(f"s_sleep {op[1:]}")
        elif op[0] == "R":
            name = op[1:]
            if name in WSET:
                for j in WSET[name]:
                    if j in parked: w_write(j)
                    assert j in lds_w
                    S.wait_vm_tag(f"u{j}")
            else: assert int(name[2]) in polled
            assert EV[name][0] == last_pub[0] + 1, (name, EV, last_pub)
            publish(EV[name][0])
        else: raise ValueError(op)
    stamp(S, cfg, 3)
    if cfg.trace:
        S(f"s_lshl_b32 s66, s2, 2\ns_add_u32 s66, s66, s{S_W}\ns_lshl_b32 s66, s66, 9\ns_add_u32 s66, s66, {WS_STAMP + (1 << 20)}\nv_lshlrev_b32 v2, 2, v1")
        S(f"buffer_store_dword v250, v2, {srd(SWS)}, s66 offen\nbuffer_store_dword v251, v2, {srd(SWS)}, s66 offen offset:256")
    if cfg.stop:
        S.wait_vm(0); stamps_store(S, cfg); S("s_branch L_end"); return
    S(f"s_cmp_lg_u32 s{S_W}, 0\ns_cbranch_scc1 L_lfin")
    R = 64
    S(f"""v_and_b32 v2, 7, v1
    v_bfe_u32 v3, v1, 3, 2
    v_lshl_add_u32 v2, v3, 4, v2
    s_and_b32 s76, s{S_P}, 1
    s_lshl_b32 s76, s76, 3
    v_add_u32 v2, s76, v2
    v_lshlrev_b32 v2, 4, v2
    v_lshrrev_b32 v3, 5, v1
    v_lshl_add_u32 v4, v3, 14, v2
    s_lshl_b32 s{sA}, s{S_BLK}, 3
    s_add_u32 s{sA}, s{sA}, s{S_B}
    s_lshl_b32 s{sA}, s{sA}, 6
    s_add_u32 s{sA}, s{sA}, s{S_KQ}
    s_lshl_b32 s{sA}, s{sA}, 1
    s_lshr_b32 s76, s{S_P}, 1
    s_add_u32 s{sA}, s{sA}, s76
    s_lshl_b32 s{sA}, s{sA}, 11
    s_add_u32 s{sA}, s{sA}, {WS_DX}
    s_and_b32 s72, s{S_NONCE}, 1
    s_lshl_b32 s73, s{S_NONCE}, 15
    s_and_b32 s73, s73, 0x10000
    s_or_b32 s72, s72, s73
    v_mov_b32 v8, 0x10001
""")
    wait_free(F_DX)
    S(f"s_mov_b32 s77, {SPIN_LIMIT}")
    S.label("L_dx")
    for r in range(8):
        S(f"s_add_u32 s{sT}, s{sA}, {r*2*16384}")
        for gm in range(2):
            S(f"buffer_load_dwordx4 {vr(R+8*r+4*gm,4)}, v4, {srd(SWS)}, s{sT} offen offset:{gm*1024} sc1")
    S(f"v_xor_b32 v5, s72, v{R}")
    for i in range(1, 64): S(f"v_bitop3_b32 v5, v5, v{R+i}, s72 bitop3:0xf6")
    S("v_and_b32 v5, v5, v8\nv_cmp_eq_u32 vcc, 0, v5\ns_cmp_eq_u64 vcc, -1\ns_cbranch_scc1 L_dx_ok")
    S("s_sleep 4\ns_sub_u32 s77, s77, 1\ns_cmp_lg_u32 s77, 0\ns_cbranch_scc1 L_dx")
    S.label("L_dx_ok")
    AC = 24
    S("v_mov_b32 v9, 0xfffefffe")
    for i in range(64): S(f"v_and_b32 v{R+i}, v9, v{R+i}")
    for r in range(8):
        for d in range(8):
            src = R + 8 * r + d
            if r == 0:
                S(f"v_lshlrev_b32 v{AC+2*d}, 16, v{src}\nv_and_b32 v{AC+2*d+1}, 0xffff0000, v{src}")
            else:
                S(f"v_lshlrev_b32 v6, 16, v{src}\nv_and_b32 v7, 0xffff0000, v{src}\nv_add_f32 v{AC+2*d}, v{AC+2*d}, v6\nv_add_f32 v{AC+2*d+1}, v{AC+2*d+1}, v7")
    for i in range(8): S(f"v_permlane32_swap_b32 v{AC+i}, v{AC+8+i}")
    for i in range(8): S(f"v_add_f32 v{AC+i}, v{AC+i}, v{AC+8+i}")
    for i in range(4): S(f"v_cvt_pk_bf16_f32 v{44+i}, v{AC+2*i}, v{AC+2*i+1}")
    S(f"""v_and_b32 v2, 7, v1
    s_lshl_b32 s76, s{S_B}, 7
    s_lshl_b32 s77, s{S_KQ}, 5
    s_add_u32 s76, s76, s77
    s_lshl_b32 s77, s{S_P}, 3
    s_add_u32 s76, s76, s77
    v_add_u32 v2, s76, v2
    v_mul_u32_u24 v2, 2304, v2
    v_bfe_u32 v3, v1, 3, 2
    v_lshl_add_u32 v2, v3, 3, v2
    v_lshrrev_b32 v3, 5, v1
    v_lshl_add_u32 v2, v3, 6, v2
    s_mul_i32 s76, s{S_BLK}, 1152
    s_add_u32 s76, s76, 1024
    buffer_store_dwordx2 v[44:45], v2, {srd(SOUT)}, s76 offen {cfg.pol_out}
    buffer_store_dwordx2 v[46:47], v2, {srd(SOUT)}, s76 offen offset:32 {cfg.pol_out}""")
    S.label("L_lfin")
    if cfg.stamps: S("s_waitcnt vmcnt(0)")
    stamps_store(S, cfg)
    S("s_branch L_end")

def compute(S, cfg):
    VX, VW = [4, 5, 6], [7, 8, 9]
    VK, VV, VOST, VZ, VN = [10, 11], [12, 13], 14, 15, 16
    VM, VT, VRC, VPR, VFA, VFT, VPR2 = [16, 17], 19, [[20, 21], [22, 23]], 18, 2, 3, 19
    ONES, LS = 56, [60, 4]
    QP = lambda h: 64 + 32 * h
    SS = lambda h: 128 + 64 * h
    PP = 64
    OF = lambda h, s, u: 96 + 8 * s + 4 * u if h == 0 else 192 + 16 * s + 4 * u
    S.label("L_compute")
    S(f"v_mov_b32 v{VZ}, 0")
    srd_consts(S, (SWS, SOUT, SDBG))
    S("s_waitcnt lgkmcnt(0)")
    first_stamps(S, cfg)
    srd_bases(S, (SWS, SOUT, SDBG))
    S(f"s_or_b32 s66, s2, s3\ns_cmp_lg_u32 s66, 0\ns_cbranch_scc1 L_notag")
    S.out += _raw(f"""s_mov_b32 s66, {WS_EPOCH}
    buffer_load_dword v2, v{VZ}, {srd(SWS)}, s66 offen sc1
    s_waitcnt vmcnt(0)
    v_add_u32 v2, 1, v2
    v_max_u32 v2, 1, v2
    buffer_store_dword v2, v{VZ}, {srd(SWS)}, s66 offen sc1
    buffer_store_dword v2, v{VZ}, {srd(SDBG)}, 0 offen sc1
    s_waitcnt vmcnt(0)""")
    S.label("L_notag")
    S(f"""v_and_b32 v22, 15, v1
    v_lshrrev_b32 v23, 4, v1
    v_mul_u32_u24 v2, {PITCH}, v22
    v_lshl_add_u32 v{VK[0]}, v23, 4, v2
    v_add_u32 v{VK[0]}, {LB}, v{VK[0]}
    v_add_u32 v{VK[1]}, {2*SLOT}, v{VK[0]}
    s_lshl_b32 s66, s{S_W}, 8
    v_add_u32 v{VX[0]}, s66, v{VK[0]}
    v_add_u32 v{VX[1]}, {3*SLOT}, v{VX[0]}
    v_add_u32 v{VX[2]}, {6*SLOT}, v{VX[0]}
    v_bfe_u32 v2, v1, 2, 3
    v_mul_u32_u24 v2, {PITCH}, v2
    v_lshrrev_b32 v3, 5, v1
    v_lshl_add_u32 v2, v3, 9, v2
    v_and_b32 v3, 3, v1
    v_lshl_add_u32 v2, v3, 3, v2
    v_add_u32 v{VW[0]}, {slot(1)}, v2
    v_add_u32 v{VW[1]}, {slot(4)}, v2
    v_add_u32 v{VW[2]}, {slot(7)}, v2
    v_lshrrev_b32 v2, 2, v1
    v_mul_u32_u24 v2, {PITCH}, v2
    v_lshl_add_u32 v2, v3, 3, v2
    v_add_u32 v{VV[0]}, {slot(4)}, v2
    v_add_u32 v{VV[1]}, {slot(6)}, v2
    s_mul_i32 s66, s{S_W}, {4*PITCH}
    s_add_u32 s66, s66, {slot(0)}
    v_lshlrev_b32 v{VOST}, 4, v1
    v_add_u32 v{VOST}, s66, v{VOST}
    s_add_u32 s66, s{S_W}, 4
    v_lshl_add_u32 v{VFA}, v1, 2, 64
    v_writelane_b32 v{VFA}, s66, 0
    s_mov_b32 s{S_C}, {f32(math.log2(math.e) / math.sqrt(128.0))}
    s_mov_b32 s58, s{S_C}
    s_mov_b32 s59, s{S_C}""")
    for pi in range(1, 4):
        S(f"s_add_u32 s66, s2, {64*pi}\ns_and_b32 s66, s66, 255\ns_lshl2_add_u32 s66, s66, s{S_W}\ns_lshl_b32 s{95+pi}, s66, 14")
        S(f"s_add_u32 s66, s{S_KQ}, {pi}\ns_and_b32 s66, s66, 3\ns_andn2_b32 s67, s2, 3\ns_add_u32 s66, s66, s67\ns_lshl2_add_u32 s66, s66, s{S_W}\ns_mul_i32 s66, s66, 6144\ns_add_u32 s{(100, 101, 57)[pi-1]}, s66, {WS_D + (pi-1)*2048}")
    S(f"""s_lshl3_add_u32 s66, s{S_BLK}, s{S_B}
    s_lshr_b32 s67, s{S_H0}, 1
    s_lshl4_add_u32 s66, s66, s67
    s_lshl2_add_u32 s66, s66, s{S_W}
    s_lshl_b32 s66, s66, 12
    s_add_u32 s99, s66, {WS_DX}
    s_lshl2_add_u32 s74, s2, s{S_W}
    s_mul_i32 s74, s74, 6144
    s_add_u32 s74, s74, {WS_D}
    s_add_u32 s75, s74, 4096
    s_lshl2_add_u32 s70, s{S_B}, s{S_W}
    s_mul_i32 s70, s70, {32*2304}
    s_mul_i32 s71, s{S_BLK}, 1152
    s_add_u32 s70, s70, s71
    s_lshl2_add_u32 s71, s{S_P}, s{S_KQ}
    s_lshl_b32 s71, s71, 6
    s_add_u32 s70, s70, s71
    s_add_u32 s71, s70, {16*2304}""")
    G = []
    def add(reads, mf, lead, need=None, free=None, gate=None, bar=False):
        G.append(dict(reads=reads, mf=mf, gate=len(G) - lead if gate is None else gate, need=need, free=free, bar=bar))
    ACC = lambda t, u: 128 + 8 * t + 4 * u
    ARING = [96, 104, 112, 120, 56]
    XF = lambda c, s, u: 24 + 16 * (c & 1) + 8 * s + 4 * u
    for c in range(9):
        for t in range(16):
            rg = ARING[len(G) % 5]
            rd = [f"ds_read_b64_tr_b16 {vr(rg+4*s+2*r,2)}, v{VW[c%3]} offset:{s*SLOT + r*8*PITCH + 32*t}" for s in range(2) for r in range(2)]
            if t == 0: rd = [f"ds_read_b128 {vr(XF(c,s,u),4)}, v{VX[c%3]} offset:{128*u + 64*s}" for s in range(2) for u in range(2)] + rd
            add(rd, [mfma(ACC(t, u), rg + 4*s, XF(c, s, u), first=(c == 0 and s == 0)) for u in range(2) for s in range(2)], cfg.alead,
                need=c if t == 0 and c and not cfg.abar else None, free=c + 1 if t == 15 and (c == 8 or not cfg.abar) else None, bar=cfg.abar and t == 0 and c > 0)
    gA = len(G)
    fill = [(gA - 6, gA, pack(QP(0), 128))]
    tail_fill = None
    KR = lambda i: 24 + 4 * ((i + 4) & 7)
    def qk(h):
        for i in range(32):
            kt, s = i >> 2, i & 3
            add([f"ds_read_b128 {vr(KR(i),4)}, v{VK[h]} offset:{(kt&1)*16*PITCH + (kt>>1)*256 + 64*s}"],
                [mfma(SS(h)+8*kt+4*u, KR(i), QP(h)+8*s+4*u, first=(s == 0)) for u in range(2)], cfg.blead,
                need=R_K0 + h if i == 0 else None, free=F_QK0 + h if i == 31 else None,
                gate=(gA - 3 if i < 4 else max(gA, len(G) - cfg.blead)) if h == 0 else None)
            G[-1]["wait4"] = (i & 3) == 0
    def pv(h):
        g0 = len(G)
        for i in range(32):
            dt, j = i >> 2, i & 3
            add([f"ds_read_b64_tr_b16 {vr(KR(i)+2*r,2)}, v{VV[h]} offset:{r*16*PITCH + j*256 + 32*dt}" for r in range(2)],
                ([mfma(LS[u], ONES, PP+8*jj+4*u, first=(jj == 0)) for u in range(2) for jj in range(4)] if i == 0 else []) +
                [mfma(SS(h)+8*dt+4*u, KR(i), PP+8*j+4*u, first=(j == 0)) for u in range(2)], cfg.blead,
                need=(R_V0, R_V1)[h] if i == 0 else None, free=(F_PV0, F_PV1)[h] if i == 31 else None,
                gate=max(len(G) - cfg.blead, g0 - (3, 3, 2, 2, 1, 1, 0, 0)[i]) if (h == 1 and i < 8) else None)
            G[-1]["wait4"] = (i & 3) == 0
    def softmax(h):
        s = SS(h)
        el = [[s + 8*kt + 4*u + r for kt in range(8) for r in range(4)] for u in range(2)]
        o = []
        for i in range(16):
            for u in range(2):
                e = el[u]
                if i == 0: o.append(f"v_max3_f32 v{VM[u]}, v{e[0]}, v{e[1]}, v{e[2]}")
                elif i < 15: o.append(f"v_max3_f32 v{VM[u]}, v{VM[u]}, v{e[2*i+1]}, v{e[2*i+2]}")
                else: o.append(f"v_max_f32 v{VM[u]}, v{VM[u]}, v{e[31]}")
        a, b = VM
        o += [f"v_permlane32_swap_b32 v{a}, v{b}", f"v_max_f32 v{a}, v{a}, v{b}", f"v_mov_b32 v{b}, v{a}",
              f"v_permlane16_swap_b32 v{a}, v{b}", f"v_max_f32 v{a}, v{a}, v{b}", f"v_mul_f32 v{a}, s{S_C}, v{a}", f"v_mov_b32 v{b}, v{a}",
              f"v_permlane32_swap_b32 v{a}, v{b}"]
        order = [(kt, u, r) for kt in range(8) for u in range(2) for r in range(4)]
        D = 2
        for i in range(64 + 2 * D):
            if i < 64:
                kt, u, r = order[i]; x = s + 8*kt + 4*u + r
                if not cfg.pk: o.append(f"v_fma_f32 v{x}, v{x}, s{S_C}, -v{VM[u]}")
                elif r % 2 == 0: o.append(f"v_pk_fma_f32 {vr(x,2)}, {vr(x,2)}, s[58:59], {vr(VM[0],2)} op_sel:[0,0,{u}] op_sel_hi:[1,1,{u}] neg_lo:[0,0,1] neg_hi:[0,0,1]")
            j = i - D
            if 0 <= j < 64:
                kt, u, r = order[j]; x = s + 8*kt + 4*u + r
                o.append(f"v_exp_f32 v{x}, v{x}")
            j = i - 2 * D
            if 0 <= j < 64:
                kt, u, r = order[j]; x = s + 8*kt + 4*u + r
                if r & 1: o.append(f"v_cvt_pk_bf16_f32 v{PP+8*(kt>>1)+4*u+2*(kt&1)+(r>>1)}, v{x-1}, v{x}")
        return o
    sig = [0]
    def signal(f):
        assert f > sig[0], (f, sig[0])
        sig[0] = f
        S(f"v_mov_b32 v{VFT}, {f}\nds_write_b8 v{VFA}, v{VFT}")
    def o_pack(h):
        s = SS(h); o = []
        need = (F_QK1, FU[1])[h]; lab = f"L_st{h}"
        def chk():
            S(f"v_readfirstlane_b32 s64, v{VPR2}")
            for x in swar(64, need): S(x)
            S(f"s_cbranch_scc0 {lab}")
            S.label(lab + "_ok")
            S.cold += spin_block(lab, lab + "_ok", VPR2, VZ, 4, 64, need, 0)
        for st in range(4):
            part = [f"ds_read_b32 v{VPR2}, v{VZ} offset:4"] if st == 0 else []
            for u in range(2):
                for e in range(2):
                    for r in range(4):
                        x = s + 8*(2*st+e) + 4*u + r
                        if not cfg.pk: part.append(f"v_mul_f32 v{x}, v{x}, v{VRC[h][u]}")
                        elif r % 2 == 0: part.append(f"v_pk_mul_f32 {vr(x,2)}, {vr(x,2)}, {vr(VRC[h][0],2)} op_sel:[0,{u}] op_sel_hi:[1,{u}]")
                i = 2 * st + u
                part += [f"v_cvt_pk_bf16_f32 v{OF(h,st,u)+2*e+x}, v{s+8*(2*st+e)+4*u+2*x}, v{s+8*(2*st+e)+4*u+2*x+1}" for e in range(2) for x in range(2)]
                if i == 0: part.append(chk)
                part.append((f"ds_write_b128 v{VOST}, {vr(OF(h,st,u),4)} offset:{(2 - 2*h + (i >> 2))*SLOT + (i & 3)*1024}", f"st{h}"))
            o.append(part)
        def done():
            S.wait_lg_tag(f"st{h}"); signal((F_O0, F_O1)[h])
        return o, done
    rcp = lambda h: [f"v_rcp_f32 v{VRC[h][u]}, v{LS[u]}" for u in range(2)]
    st = lambda i: (lambda: stamp(S, cfg, i))
    def pack_fill(h, g0):
        op, done = o_pack(h)
        return [(g0 + 4, g0 + 5, rcp(h)), (g0 + 10, g0 + 18, op[0]), (g0 + 18, g0 + 26, op[1]), (g0 + 26, g0 + 33, op[2]), (g0 + 33, g0 + 35, op[3]), (g0 + 35, g0 + 36, [done, "s_wakeup"])]
    if cfg.stop != "A":
        qk(0); qk(1); pv(0)
        fill += [(gA, gA + 1, [st(2), lambda: nonce_issue(S, VT, VZ)]),
                 (gA, gA + 32, pack(QP(1), 192) + [f"v_mov_b32 v{ONES+i}, 0x3f803f80" for i in range(4)]),
                 (gA + 32, gA + 33, [st(3)]), (gA + 33, gA + 64, softmax(0)),
                 (gA + 56, gA + 57, [lambda: nonce_check(S, VT, VZ, "L_cn")]), (gA + 64, gA + 65, [st(4)])] + pack_fill(0, gA + 64)
    gC0 = len(G)
    units, slots, EV = c_units(), c_slots(), c_events(cfg)
    VA, VL16 = [8, 9, 10], 11
    MC = lambda nt, u: 128 + 8 * nt + 4 * u
    EC = lambda nt, u: 200 + 16 * nt + 4 * u
    CRING = [40, 48, 24, 32, 56]
    OBUF = [(64, 8), (80, 8), (96, 8), (112, 8), (192, 16), (224, 16)]
    OB = lambda j, s, u: OBUF[(j - 6) % 6][0] + OBUF[(j - 6) % 6][1] * s + 4 * u
    sOP = [None, 96, 97, 98]
    if cfg.stop is None:
        setup = [f"v_add_u32 v{VA[0]}, {-6*SLOT & 0xffffffff}, v{VV[1]}", f"v_add_u32 v{VA[1]}, {-3*SLOT & 0xffffffff}, v{VV[1]}", f"v_mov_b32 v{VA[2]}, v{VV[1]}",
                 f"v_lshlrev_b32 v{VL16}, 4, v1"]
        fill += [(gA + 65, gA + 69, setup)]
        gC = gC0 + 32
        def cgroup(j, n, **kw):
            uk, hh, x = units[j]
            sl = slots[("W", j)][0]
            va, so = VA[sl // 3], (sl % 3) * SLOT
            k = len(G) - (gC0 if j < 2 else gC)
            rg = CRING[k % 4] if k < 32 else CRING[(k - 32) % 5]
            if uk == "E":
                nt, sp = n >> 1, n & 1
                rd = [f"ds_read_b64_tr_b16 {vr(rg+4*s+2*r,2)}, v{va} offset:{so + (2*(2*sp+s)+r)*128 + 32*nt}" for s in range(2) for r in range(2)]
                mf = [mfma(EC(nt, u), rg + 4*s, OF(hh, 2*sp+s, u), first=(hh == 0 and sp == 0 and s == 0)) for u in range(2) for s in range(2)]
            else:
                bf = (lambda s, u: OF(hh, 2*x+s, u)) if uk == "M" else (lambda s, u: OB(j, s, u))
                rd = [f"ds_read_b64_tr_b16 {vr(rg+4*s+2*r,2)}, v{va} offset:{so + (2*s+r)*256 + 32*n}" for s in range(2) for r in range(2)]
                mf = [mfma(MC(n, u), rg + 4*s, bf(s, u), first=(j == 0 and s == 0)) for u in range(2) for s in range(2)]
            need = None
            for name, us in WSET.items():
                if j in us and name not in seen: need = EV[name][0]; seen.add(name)
            b0 = len(G) - (k & 3)
            add(rd, mf, 3 if k < 36 else 4, gate={0: b0 - 6, 1: b0 - 4, 2: b0 - 2, 3: b0}[k & 3] if (k & ~3) in (0, 16) else None, need=need, **kw)
        seen = set(); gU = {}
        for j in range(cfg.merge):
            if j == 2:
                fill += [(gC0, gC0 + 1, [st(5)]), (gC0 + 3, gC0 + 16, softmax(1)), (len(G), len(G) + 1, [st(6)])] + pack_fill(1, len(G))
                pv(1)
            gU[j] = len(G)
            for n in range(2 if j >= cfg.defer else 0, 8): cgroup(j, n, free=FU.get(j) if n == 7 else None)
        gM = len(G)
        nm_ = 18 - cfg.merge
        for tau in (1, 2, 3):
            for j in range(cfg.merge, 18):
                for e in range(2): cgroup(j, 2 * tau + e)
        for j in range(min(cfg.defer, cfg.merge), 18):
            for e in range(2): cgroup(j, e)
        def o_loads(j):
            uk, hh, x = units[j]
            return [f"s_add_u32 s{48 + j % 6}, s{sOP[1 + x % 3]}, {WS_O + hh*8192 + (x // 3)*4096}"] + \
                   [f"buffer_load_dwordx4 {vr(OB(j, i >> 1, i & 1), 4)}, v{VL16}, {srd(SWS)}, s{48 + j % 6} offen offset:{i*1024} {cfg.pol_o}" for i in range(4)]
        for k in range(4):
            num, p0 = EV[f"OP{k}"]; lab = f"L_rdy{num}"
            def chk(lab=lab, num=num):
                S(f"v_readfirstlane_b32 s64, v{VPR2}")
                for x in swar(64, num): S(x)
                S(f"s_cbranch_scc0 {lab}")
                S.label(lab + "_ok")
                S.cold += spin_block(lab, lab + "_ok", VPR2, VZ, 0, 64, num, 0)
            fill += [(gC + p0 - 2, gC + p0 - 1, [f"ds_read_b32 v{VPR2}, v{VZ}"]), (gC + p0, gC + p0 + 1, [chk])]
            for i in range(3):
                j = 6 + 3 * k + i
                first = {6: 16, 7: 16, 8: 24, 9: 24, 10: 48, 11: 48}.get(j, 8 * (j - 5))
                a = max(p0 + 1 + cfg.ostep * i, first)
                fill += [(gC + a, gC + a + 2, o_loads(j) if "noold" not in cfg.dbg else ["s_nop 0"])]
                if j == 9: fill += [(gC + a + 2, gC + a + 3, [lambda: signal(F_OI), "s_wakeup"])]
        VMASK, GR = 12, 64
        tagprep = [f"s_and_b32 s72, s{S_NONCE}, 1", f"s_lshl_b32 s73, s{S_NONCE}, 15", "s_and_b32 s73, s73, 0x10000", "s_or_b32 s72, s72, s73",
                   f"v_mov_b32 v{VMASK}, 0xfffefffe"]
        def tpack(base, n):
            o = []
            for k in range(n): o += [f"v_cvt_pk_bf16_f32 v{base+k}, v{base+2*k}, v{base+2*k+1}", f"v_and_or_b32 v{base+k}, v{base+k}, v{VMASK}, s72"]
            return o
        dx = list(tagprep)
        for u in range(2):
            for m_ in range(2):
                for k in range(4):
                    d, a = EC(2*m_, u) + k, EC(2*m_ + (k >> 1), u) + 2 * (k & 1)
                    dx += [f"v_cvt_pk_bf16_f32 v{d}, v{a}, v{a+1}", f"v_and_or_b32 v{d}, v{d}, v{VMASK}, s72"]
        for gm in range(4):
            dx.append(f"buffer_store_dwordx4 {vr(EC(2*(gm & 1), gm >> 1),4)}, v{VL16}, {srd(SWS)}, s99 offen offset:{gm*1024} {cfg.pol_sd}")
        def dsend(tau):
            o = []
            tp = tpack(128 + 16*tau, 8)
            for e in range(2):
                o += tp[8*e:8*e+8]
                o.append(f"buffer_store_dwordx4 {vr(128+16*tau+4*e,4)}, v{VL16}, {srd(SWS)}, s{(100, 101, 57)[tau-1]} offen offset:{e*1024} {cfg.pol_sd}")
            return o
        daddr = [f"v_and_b32 v2, 15, v1", "v_mul_u32_u24 v2, 2304, v2", "v_bfe_u32 v3, v1, 4, 1", "v_lshl_add_u32 v2, v3, 5, v2", "v_lshrrev_b32 v3, 5, v1", "v_lshl_add_u32 v2, v3, 4, v2",
                 "v_mov_b32 v6, 0x10001", "v_mov_b32 v4, 0x3f80", "v_mov_b32 v5, 0x3f800000"]
        q = 2 * nm_
        w = min(q - 1, 6)
        fill += [(gC + cfg.dxpos, gC + cfg.dxpos + 8, dx),
                 (gC + cfg.dxgo, gC + cfg.dxgo + 1, [lambda: signal(F_DX), "s_wakeup"]), (gM + 1, gM + 6, daddr), (gM + q + 1, gM + q + 1 + w, dsend(1)), (gM + 2*q + 1, gM + 2*q + 1 + w, dsend(2)), (gM + 3*q + 1, gM + 3*q + 1 + w, dsend(3))]
        if cfg.mst:
            fill += [(gC + int(x), gC + int(x) + 1, [lambda i=i: stamp(S, cfg, 1 + i, True)]) for i, x in enumerate(cfg.mst.split(","))]
        if cfg.cdetail > 0:
            fill += [((gC if j > 1 else gC0) + 8*j, (gC if j > 1 else gC0) + 8*j + 1, [lambda i=j - (cfg.cdetail - 1): stamp(S, cfg, 1 + i, True)]) for j in range(18) if 0 <= j - (cfg.cdetail - 1) < 12]
    if cfg.adetail:
        fill += [(16*c, 16*c + 1, [lambda c=c: stamp(S, cfg, 1 + c, True)]) for c in range(9)]
        if cfg.stop != "A": fill += [(gA + 32*i, gA + 32*i + 1, [lambda i=i: stamp(S, cfg, 10 + i, True)]) for i in range(3)]
    queue = []
    frees, due = {}, {}
    for gi, g in enumerate(G):
        if g["need"] is not None and not cfg.nocheck:
            lab = f"L_rdy{g['need']}"
            steps = [f"v_readfirstlane_b32 s69, v{VPR}"] + swar(69, g["need"])
            at = max(0, len(queue) - cfg.probe_ahead)
            pg = queue[at][0] if at < len(queue) else g["gate"]
            queue.insert(at, (pg, "r", f"ds_read_b32 v{VPR}, v{VZ}"))
            queue.append((g["gate"], "r", steps[0]))
            queue.append((g["gate"], "gap", None))
            def chk(lab=lab, need=g["need"], steps=steps):
                for x in steps[1:]: S(x)
                S(f"s_cbranch_scc0 {lab}")
                S.label(lab + "_ok")
                S.cold += spin_block(lab, lab + "_ok", VPR, VZ, 0, 69, need, 0)
            queue.append((g["gate"], "c", chk))
        if g["bar"]:
            for _ in range(cfg.bargap): queue.append((g["gate"], "gap", None))
            def br():
                S.wait_lg(0); S("s_barrier")
            queue.append((g["gate"], "c", br))
        for k, r in enumerate(g["reads"]):
            queue.append((g["gate"], "r", (r, f"g{gi}") if k == len(g["reads"]) - 1 else r))
        if g["free"] is not None and not cfg.nofree:
            def fr(gi=gi, f=g["free"]):
                S.wait_lg_tag(f"g{gi}")
                signal(f)
                if cfg.wake: due[m + 2] = lambda: S("s_wakeup")
            frees[f"g{gi}"] = fr
    nm = [len(g["mf"]) for g in G]
    pos = [sum(nm[:i]) for i in range(len(G) + 1)]
    fl = {}
    for (g0, g1, ins) in fill:
        a, b = pos[g0], pos[g1]
        for k, x in enumerate(ins): fl.setdefault(a + (k * (b - a)) // len(ins), []).append(x)
    if tail_fill: fl.setdefault(pos[tail_fill[0]] - 1, []).extend(tail_fill[1])
    S("s_barrier")
    stamp(S, cfg, 1)
    m = 0
    def issue(q):
        emit(S, q[2])
        if isinstance(q[2], tuple) and q[2][1] in frees: due[m + cfg.free_delay] = frees[q[2][1]]
    for gi, g in enumerate(G):
        last_tag = f"g{gi}"
        while any(isinstance(q[2], tuple) and q[2][1] == last_tag for q in queue):
            q = queue.pop(0)
            if q[1] != "gap": issue(q)
        if g.get("wait4"): S.wait_lg_tag(f"g{gi+3}")
        if cfg.gwait2 and "wait4" not in g and gi % 2 == 0: S.wait_lg_tag(f"g{gi+1}")
        if cfg.gwait: S.wait_lg_tag(last_tag)
        for k, mf in enumerate(g["mf"]):
            S(mf)
            if m in due: due.pop(m)()
            n = 0
            while queue and n < 2 and queue[0][0] <= gi:
                q = queue[0]
                if q[1] == "gap": queue.pop(0); break
                if n >= 1 and q[0] == gi and q[1] == "r": break
                queue.pop(0); issue(q); n += 1
            for x in fl.get(m, []): emit(S, x)
            m += 1
    assert not queue
    while due: due.pop(min(due))()
    if cfg.stop == "A":
        stamp(S, cfg, 2)
        for x in pack(QP(1), 192): S(x)
        S(f"s_lshl_b32 s66, s2, 16\ns_lshl_b32 s67, s{S_W}, 14\ns_add_u32 s66, s66, s67\nv_lshlrev_b32 v{VOST}, 4, v1\nv_add_u32 v{VOST}, s66, v{VOST}")
        for i in range(16):
            S(f"s_mov_b32 s66, {i*1024}")
            S(f"buffer_store_dwordx4 {vr(64+4*i,4)}, v{VOST}, {srd(SWS)}, s66 offen")
        S.wait_vm(0); stamps_store(S, cfg); S("s_branch L_end"); return
    if cfg.stop == "B":
        stamp(S, cfg, 6)
        op1, done1 = o_pack(1)
        for x in op1 + [done1]: emit(S, x)
        S.wait_vm(0); stamp(S, cfg, 7); stamps_store(S, cfg); S("s_branch L_end"); return
    stamp(S, cfg, 7)
    S(f"s_mov_b32 s77, {SPIN_LIMIT}")
    S.label("L_d")
    for i in range(6):
        S(f"buffer_load_dwordx4 {vr(GR+4*i,4)}, v{VL16}, {srd(SWS)}, s{74 + i//4} offen offset:{(i%4)*1024} sc1")
    S(f"v_xor_b32 v7, s72, v{GR}")
    for i in range(1, 24): S(f"v_bitop3_b32 v7, v7, v{GR+i}, s72 bitop3:0xf6")
    S("v_and_b32 v7, v7, v6\nv_cmp_eq_u32 vcc, 0, v7\ns_cmp_eq_u64 vcc, -1\ns_cbranch_scc1 L_d_ok")
    S("s_sub_u32 s77, s77, 1\ns_cmp_lg_u32 s77, 0\ns_cbranch_scc1 L_d")
    S.label("L_d_ok")
    stamp(S, cfg, 9)
    for i in range(24): S(f"v_and_b32 v{GR+i}, v{VMASK}, v{GR+i}")
    for tau in range(3):
        for u in range(2):
            for e in range(2):
                for x in range(2):
                    src = GR + 8 * tau + 4*e + 2*u + x; a = MC(e, u) + 2 * x
                    if cfg.dot2: S(f"v_dot2c_f32_bf16 v{a}, v{src}, v4\nv_dot2c_f32_bf16 v{a+1}, v{src}, v5")
                    else: S(f"v_lshlrev_b32 v8, 16, v{src}\nv_and_b32 v9, 0xffff0000, v{src}\nv_add_f32 v{a}, v{a}, v8\nv_add_f32 v{a+1}, v{a+1}, v9")
    if cfg.dot2: S("s_nop 2")
    GS = 48
    for u in range(2):
        for e in range(2):
            for x in range(2):
                S(f"v_cvt_pk_bf16_f32 v{GS+4*u+2*e+x}, v{MC(e,u)+2*x}, v{MC(e,u)+2*x+1}")
    for u in range(2):
        for x in range(2): S(f"v_permlane16_swap_b32 v{GS+4*u+x}, v{GS+4*u+2+x}")
    for u in range(2):
        S(f"buffer_store_dwordx4 {vr(GS+4*u,4)}, v2, {srd(SOUT)}, s{70+u} offen {cfg.pol_out}")
    if cfg.stamps:
        S.wait_vm(0); stamp(S, cfg, 10)
    stamps_store(S, cfg)
    S("s_branch L_end")

Cfg.dxwait = 17
H7 = "bA7 wK0 warm bA8 wK1 V1 wV0 W0 W1 W2 RWA W3 W4 W5 wV1 W6 W7 W8 w2 W9 W10 P0 S0 S1 RWB G0 G1 W11 W12 W13 W14 W15 W16 W17 "
H8 = "warm bA7 wK0 bA8 V0 wK1 W0 W1 wV0 V1 RWA W2 W3 W4 W5 W6 wV1 P0 S0 S1 RWB G0 G1 W7 W8 W9 W10 W11 W12 W13 W14 W15 W16 W17 "
H9 = "K1 bA7 wK0 bA8 V0 wK1 warm wV0 V1 W0 W1 RWA W2 W3 W4 W5 W6 wV1 P0 S0 S1 RWB G0 G1 W7 W8 W9 W10 W11 W12 W13 W14 W15 W16 W17 "
TA = "P1 S2 q0 ROP0 q1 ROP1 G2 f18 S3 RWC G3 w9 w10 w11 RWD q2 ROP2 q3 ROP3 RWE"
TB = "P1 S2 S3 q0 ROP0 q1 ROP1 G2 G3 RWC RWD q2 ROP2 q3 ROP3 RWE"
TD = "q0 ROP0 q1 ROP1 P1 S2 S3 RWC G2 G3 w9 w10 w11 RWD q2 ROP2 q3 ROP3 RWE"
TE = "q0 ROP0 q1 ROP1 P1 f18 S2 S3 RWC G2 G3 w9 w10 w11 RWD q2 ROP2 q3 ROP3 RWE"
HA = "bA7 wK0 warm bA8 wK1 V1 wV0 W0 W1 W2 RWA W3 W4 W5 wV1 W6 W7 W8 w2 W9 W10 W11 W12 P0 S0 S1 RWB W13 W14 W15 W16 W17 G0 G1 "
HB = "K1 bA7 wK0 bA8 V0 wK1 warm wV0 V1 W0 W1 RWA W2 W3 W4 W5 W6 wV1 P0 S0 S1 W7 W8 W9 W10 RWB G0 G1 "
TF = "q0 ROP0 q1 ROP1 P1 f18 S2 S3 W11 W12 W13 RWC G2 G3 W14 W15 W16 W17 w9 w10 w11 RWD q2 ROP2 q3 ROP3 RWE"
TG = "P1 q0 ROP0 q1 ROP1 f18 S2 S3 RWC G2 G3 w9 w10 w11 RWD q2 ROP2 q3 ROP3 RWE"
PROGS = {h + x: H + T for h, H in (("7", H7), ("8", H8), ("9", H9), ("A", HA)) for x, T in (("a", TA), ("b", TB), ("d", TD), ("e", TE), ("g", TG))}
HC = "bA7 wK0 warm bA8 wK1 V1 wV0 W0 W1 W2 RWA W3 W4 W5 wV1 W6 W7 W8 w2 W9 W10 W11 W12 P0 S0 S1 RWB G0 G1 W13 W14 W15 W16 W17 "
HD = "K1 bA7 wK0 bA8 V0 wK1 warm wV0 V1 W0 W1 RWA W2 W3 W4 W5 W6 wV1 W7 W8 P0 S0 S1 RWB G0 G1 W9 W10 W11 W12 W13 W14 W15 W16 W17 "
HE = "warm bA7 wK0 bA8 V0 wK1 W0 W1 wV0 V1 RWA W2 W3 W4 W5 W6 wV1 W7 W8 W9 W10 P0 S0 S1 RWB G0 G1 W11 W12 W13 W14 W15 W16 W17 "
TH = "q0 ROP0 q1 ROP1 w7 w8 P1 w9 w10 f18 S2 S3 RWC w11 RWD G2 G3 q2 ROP2 q3 ROP3 RWE"
TI = "q0 ROP0 q1 ROP1 P1 f18 S2 S3 RWC w9 w10 w11 G2 G3 RWD q2 ROP2 q3 ROP3 RWE"
TJ = "q0 ROP0 q1 ROP1 w7 w8 P1 S2 w9 w10 f18 S3 RWC G2 w11 RWD G3 q2 ROP2 q3 ROP3 RWE"
HF = "bA7 wK0 warm bA8 wK1 V1 wV0 f10 W0 W1 W2 RWA wV1 f12 W5 W6 P0 S0 S1 W3 W4 G0 G1 RWB "
HG = "warm bA7 wK0 bA8 V0 wK1 wV0 V1 f10 W0 W1 W2 RWA wV1 f12 W5 W6 P0 S0 S1 W3 W4 G0 G1 RWB "
HH = "K1 bA7 wK0 bA8 V0 wK1 warm wV0 V1 f10 W0 W1 W2 RWA wV1 f12 W5 W6 P0 S0 S1 W3 W4 G0 G1 RWB "
TK = "q0 ROP0 q1 ROP1 f15 W7 W8 P1 W9 W10 f18 W11 S2 S3 RWC f19 W12 W13 G2 G3 RWD q2 ROP2 q3 ROP3 f20 W14 W15 W16 W17 RWE"
TL = "q0 ROP0 q1 ROP1 f15 W7 W8 P1 S2 W9 W10 f18 W11 S3 RWC G2 f19 W12 W13 G3 RWD q2 ROP2 f20 W14 W15 W16 W17 q3 ROP3 RWE"
TM = "q0 ROP0 q1 ROP1 f15 W7 W8 P1 S2 S3 W9 W10 f17 W11 RWC G2 G3 f19 W12 W13 RWD q2 ROP2 f20 W14 W15 W16 W17 q3 ROP3 RWE"
for h, H in (("F", HF), ("G", HG), ("H", HH)):
    for x, T in (("k", TK), ("l", TL), ("m", TM)): PROGS[h + x] = H + T
HI = "warm bA7 wK0 bA8 D0 wK1 W3 W4 W5 W6 D1 pV0 f10 W0 W1 W2 W11 W12 W13 RWA pV1 W14 W15 W16 W17 P0 S0 S1 RWB G0 G1 "
HJ = "warm bA7 wK0 bA8 D0 wK1 W3 W4 W5 W6 D1 pV0 f10 W0 W1 W2 W7 W8 W9 RWA pV1 W10 W11 W12 W13 P0 S0 S1 RWB G0 G1 W14 W15 W16 W17 "
TN = "q0 ROP0 q1 ROP1 f15 W7 W8 P1 W9 W10 f18 S2 S3 RWC w11 RWD G2 G3 q2 ROP2 q3 ROP3 RWE"
TO = "q0 ROP0 q1 ROP1 f15 W7 W8 P1 S2 W9 W10 f18 S3 RWC G2 w11 RWD G3 q2 ROP2 q3 ROP3 RWE"
PROGS["In"] = HI + TN; PROGS["Io"] = HI + TO; PROGS["Jh"] = HJ + TH; PROGS["Jj"] = HJ + TJ
PROGS["Kn"] = PROGS["In"].replace("warm bA7 wK0 bA8 D0 wK1", "K1 bA7 wK0 bA8 D0 wK1 warm")
HL = "warm bA7 wK0 bA8 D0 wK1 D1 pV0 f10 W0 W1 W2 W3 W4 W5 W6 RWA pV1 W7 W8 W9 W10 W11 W12 W13 P0 S0 S1 RWB G0 G1 W14 W15 W16 W17 "
HM = "warm bA7 wK0 bA8 D0 wK1 W3 W4 D1 pV0 f10 W0 W1 W2 W5 W6 RWA W7 W8 pV1 W9 W10 W11 W12 P0 S0 S1 RWB G0 G1 W13 W14 W15 W16 W17 "
PROGS["Lh"] = HL + TH; PROGS["Mh"] = HM + TH; PROGS["Lj"] = HL + TJ
HN = "warm bA7 wK0 bA8 D0 wK1 D1 pV0 f10 W0 W1 W2 W9 W10 W11 RWA W12 W13 pV1 W14 W15 W16 W17 f12 W5 W6 P0 S0 S1 W3 W4 G0 G1 RWB "
PROGS["N1"] = HN + "q0 ROP0 q1 ROP1 f15 W7 W8 P1 w9 w10 f18 S2 S3 RWC w11 RWD G2 G3 q2 ROP2 q3 ROP3 RWE"
PROGS["N2"] = HN.replace("W9 W10 ", "") + "q0 ROP0 q1 ROP1 f15 W7 W8 P1 W9 W10 f18 S2 S3 RWC w11 RWD G2 G3 q2 ROP2 q3 ROP3 RWE"
PROGS["N3"] = HN.replace("W14 W15 W16 W17 ", "") + "q0 ROP0 q1 ROP1 f15 W7 W8 P1 w9 w10 f18 S2 S3 RWC w11 RWD G2 G3 q2 ROP2 f20 W14 W15 W16 W17 q3 ROP3 RWE"
PROGS["N4"] = HN + "q0 ROP0 q1 ROP1 f15 W7 W8 P1 f18 S2 S3 RWC w9 w10 w11 G2 G3 RWD q2 ROP2 q3 ROP3 RWE"
PROGS["E2"] = PROGS_E2 = None
PROGS["S0"] = ("warm bA7 wK0 bA8 V0 wK1 W0 W1 W2 W3 wV0 V1 W4 W5 RWA W6 W7 W8 wV1 W9 W10 P0 S0 S1 RWB G0 G1 W11 W12 W13 W14 W15 W16 W17 " + TH)
PROGS["S1"] = ("warm bA7 wK0 bA8 W0 W1 W2 W3 wK1 V0 W4 W5 wV0 RWA W6 W7 V1 W8 W9 W10 wV1 P0 W11 W12 S0 S1 RWB G0 G1 W13 W14 W15 W16 W17 " + TH)
PROGS["S2"] = ("warm bA7 wK0 bA8 W0 W1 W2 W3 wK1 V0 W4 W5 wV0 RWA W6 W7 V1 W8 W9 W10 wV1 P0 S0 S1 RWB G0 G1 W11 W12 W13 W14 W15 W16 W17 " + TH)
PROGS["S3"] = ("warm bA7 wK0 bA8 V0 wK1 W0 W1 W2 W3 wV0 V1 W4 W5 RWA W6 W7 W8 wV1 W9 W10 P0 S0 S1 RWB G0 G1 W11 W12 W13 W14 W15 W16 W17 " + TJ.replace("P1 S2 w9 w10 f18 S3", "P1 S2 S3 w9 w10"))
for h, H in (("C", HC), ("D", HD), ("E", HE)):
    for x, T in (("h", TH), ("i", TI), ("j", TJ)): PROGS[h + x] = H + T
PROGS["E2"] = PROGS["Eh"].replace("warm bA7 wK0 bA8 V0 wK1", "warm bA7 V0 bA8 wK0 wK1")
PROGS["E3"] = PROGS["Eh"].replace("warm bA7 wK0 bA8 V0 wK1", "bA7 wK0 bA8 V0 warm wK1")
PROGS["E5"] = PROGS["Eh"].replace("warm bA7 wK0 bA8 V0 wK1 W0 W1 wV0 V1", "warm bA7 wK0 bA8 V1 wK1 W0 W1 wV0")
PROGS["E6"] = PROGS["Eh"].replace("warm bA7 wK0 bA8 V0 wK1 W0 W1 wV0 V1", "bA7 wK0 bA8 V0 wK1 W0 W1 wV0 V1")
PROGS["E7"] = PROGS["Eh"].replace("P0 S0 S1 RWB G0 G1 W11", "P0 S0 S1 G0 G1 RWB W11")
PROGS["E8"] = PROGS["Eh"].replace("W7 W8 W9 W10 P0 S0 S1 RWB G0 G1 W11 W12 W13 W14", "W7 W8 W9 W10 W11 W12 P0 S0 S1 RWB G0 G1 W13 W14")
PROGS["F1"] = PROGS["Eh"].replace("q0 ROP0 q1 ROP1 w7 w8 P1 w9 w10 f18 S2 S3 RWC w11 RWD G2 G3", "w7 w8 q0 ROP0 q1 ROP1 P1 w9 w10 f18 S2 S3 RWC w11 RWD G2 G3")
PROGS["F2"] = PROGS["Eh"].replace("f18 S2 S3 RWC w11 RWD G2 G3", "f18 S2 S3 RWC w11 G2 G3 RWD")
PROGS["F3"] = PROGS["Eh"].replace("P1 w9 w10 f18 S2 S3 RWC w11 RWD G2 G3", "P1 w9 f18 S2 S3 RWC w10 w11 G2 RWD G3")
PROGS["F4"] = PROGS["Eh"].replace("q2 ROP2 q3 ROP3 RWE", "q2 ROP2 w14 w15 q3 ROP3 RWE")
PROGS["G1"] = PROGS["F2"].replace("q2 ROP2 q3 ROP3 RWE", "q2 ROP2 w14 w15 q3 ROP3 RWE")
PROGS["G2"] = PROGS["F2"].replace("RWD q2 ROP2 q3 ROP3 RWE", "RWD w14 w15 q2 ROP2 w16 w17 q3 ROP3 RWE")
PROGS["G3"] = PROGS["G1"].replace("f18 S2 S3 RWC w11 G2 G3 RWD", "f18 S2 S3 RWC G2 G3 w11 RWD")
PROGS["G4"] = PROGS["G1"].replace("w7 w8 P1 w9 w10 f18 S2 S3 RWC w11", "w7 P1 w8 w9 f18 S2 S3 RWC w10 w11")
PROGS["G5"] = PROGS["G1"].replace("G0 G1 W11 W12 W13 W14 W15 W16 W17 q0 ROP0 q1 ROP1", "G0 G1 W11 W12 W13 W14 q0 ROP0 q1 ROP1 W15 W16 W17")
PROGS["E4"] = PROGS["Eh"].replace("warm bA7 wK0 bA8 V0 wK1 W0 W1 wV0 V1", "V0 bA7 wK0 bA8 warm wK1 wV0 V1 W0 W1")
Cfg.prog = "F2"

def gen(cfg):
    hdr = open(REF).read().split("; Override launch")[0].rstrip("\n")
    launch = [f"; @launch grid=(256,1,1) block=(512,1,1) lds={LDS_BYTES}"]
    if cfg.amp >= 0:
        launch = [f"; @launch kernel={NAME} grid=(256,1,1) block=(512,1,1) lds={LDS_BYTES}", "; @launch kernel=amp_kernel grid=(1,1,1) block=(64,1,1) lds=0"]
    if cfg.pre or cfg.post:
        launch = [f"; @launch kernel={NAME} grid=(256,1,1) block=(512,1,1) lds={LDS_BYTES}"]
        if cfg.pre: launch = [f"; @launch kernel=aux_kernel grid=({cfg.pre},1,1) block=(64,1,1) lds=0"] + launch
        if cfg.post: launch += [f"; @launch kernel=aux_kernel grid=({cfg.post},1,1) block=(64,1,1) lds=0"]
    doc = """; One launch, 256 workgroups (one per CU), 8 waves: waves 0-3 compute (32 query rows each), waves 4-7 move data.
; Workgroup g: block = g>>2&1, K quarter kq = g&3, batch = g>>3&7, p = g>>6; heads 8kq+2p, 8kq+2p+1.
;  A  Q^T = wq^T x^T (two heads, k in nine 64-deep chunks through a 3-slot LDS ring, barriers)
;  B  S^T = K Q^T, softmax with the true row maximum, O^T = V^T P^T (row sums by an MFMA with a matrix of ones)
;  C  out^T partial over the quarter's 8 heads: 128 columns per workgroup, O of the three other head pairs comes through d_ws
;     (write-through stores, then a flag carrying this launch's tag); the last 64 columns are done on the own heads only
;  D  partial sums are exchanged as bf16 through d_ws and added in fp32; their lowest bits carry the launch tag and are dropped
; Waves of a workgroup signal each other with progress bytes in LDS words 0 (data ready) and 1 (LDS space free).
; The launch tag is (word found in d_ws) + 1, handed out through d_debug by workgroup 0. All waits are bounded.""".split("\n")
    L = [hdr] + launch + doc + ['.amdgcn_target "amdgcn-amd-amdhsa--gfx950"',
         ".text", f".globl {NAME}", ".p2align 8", f".type {NAME},@function", f"{NAME}:"]
    P = Stream("pro"); prologue(P, cfg); L += P.finish()
    Ld = Stream("loader"); Ld.smem_pending = True; Ld.progname = cfg.prog; loader(Ld, cfg); L += Ld.finish()
    if cfg.prog2:
        import re
        n0 = len(SITES)
        L2 = Stream("loader2"); L2.smem_pending = True; L2.progname = cfg.prog2; loader(L2, cfg)
        body = L2.finish(); body = body[body.index("L_fork:"):]
        ren = lambda x: re.sub(r"\b(L_(?!end\b)\w+)", r"\1_c1", x)
        L += [ren(x) for x in body]
        Ld.cold += [ren(x if isinstance(x, str) else "    " + x.text) for x in L2.cold[L2.ncold:]]
    L.append(".p2align 6")
    C = Stream("compute"); C.smem_pending = True; compute(C, cfg); L += C.finish()
    L.append("L_cold:")
    for s in (Ld, C):
        L += [x if isinstance(x, str) else "    " + x.text for x in s.cold]
    L += ["L_end:", "    s_endpgm", '.section .rodata,"a"', ".p2align 6", f".amdhsa_kernel {NAME}",
          "  .amdhsa_next_free_vgpr 256", "  .amdhsa_next_free_sgpr 102", "  .amdhsa_accum_offset 256",
          "  .amdhsa_group_segment_fixed_size 0", "  .amdhsa_kernarg_size 104", "  .amdhsa_user_sgpr_count 2",
          "  .amdhsa_user_sgpr_kernarg_segment_ptr 1", "  .amdhsa_system_sgpr_workgroup_id_x 1", ".end_amdhsa_kernel", ""]
    if cfg.pre or cfg.post:
        L = L[:-1] + [".text", ".globl aux_kernel", ".p2align 8", ".type aux_kernel,@function", "aux_kernel:", "    s_endpgm",
              '.section .rodata,"a"', ".p2align 6", ".amdhsa_kernel aux_kernel", "  .amdhsa_next_free_vgpr 8", "  .amdhsa_next_free_sgpr 16", "  .amdhsa_accum_offset 8",
              "  .amdhsa_group_segment_fixed_size 0", "  .amdhsa_kernarg_size 104", "  .amdhsa_user_sgpr_count 2",
              "  .amdhsa_user_sgpr_kernarg_segment_ptr 1", "  .amdhsa_system_sgpr_workgroup_id_x 1", ".end_amdhsa_kernel", ""]
    if cfg.amp >= 0:
        Am = Stream("amp")
        Am(f"""s_cmp_ge_u32 s2, 1
        s_cbranch_scc1 amp_end
        s_memrealtime s[24:25]
        s_load_dwordx2 s[4:5], s[0:1], 96
        s_mov_b32 s10, {WS_SIZE}
        s_mov_b32 s11, 0x20000
        s_waitcnt lgkmcnt(0)
        s_mov_b32 s8, s4
        s_and_b32 s9, s5, 0xffff
        v_lshlrev_b32 v1, 9, v0
        s_mov_b32 s12, {WS_STAMP + 64 * cfg.ampw}""")
        for i in range(4):
            Am(f"s_add_u32 s13, s12, {i*64*512}")
            Am(f"buffer_load_dword v{4+i}, v1, s[8:11], s13 offen offset:56")
            Am(f"buffer_load_dword v{8+i}, v1, s[8:11], s13 offen offset:{4*(cfg.amp if cfg.amp < 100 else 15)}")
        Am("v_min_u32 v4, v4, v5\nv_min_u32 v6, v6, v7\nv_min_u32 v4, v4, v6\nv_max_u32 v8, v8, v9\nv_max_u32 v10, v10, v11\nv_max_u32 v8, v8, v10")
        Am("s_mov_b32 s14, -1\ns_mov_b32 s15, 0")
        for l in range(64):
            Am(f"v_readlane_b32 s16, v4, {l}\nv_readlane_b32 s17, v8, {l}\ns_nop 3\ns_min_u32 s14, s14, s16\ns_max_u32 s15, s15, s17")
        if cfg.amp == 100: Am("s_mov_b32 s14, s15\ns_mov_b32 s15, s24")
        if cfg.amp == 101:
            Am(f"s_add_u32 s4, s4, {WS_STAMP - 64}\ns_addc_u32 s5, s5, 0\ns_load_dword s26, s[4:5], 0\ns_waitcnt lgkmcnt(0)\ns_mov_b32 s15, s14\ns_mov_b32 s14, s26")
        if cfg.amp == 102: Am("s_mov_b32 s15, s14")
        Am("s_sub_u32 s14, s15, s14\ns_min_u32 s14, s14, 20000\ns_mul_i32 s14, s14, 10\ns_memrealtime s[18:19]\ns_waitcnt lgkmcnt(0)")
        Am.label("amp_spin")
        Am("s_sleep 2\ns_memrealtime s[20:21]\ns_waitcnt lgkmcnt(0)\ns_sub_u32 s22, s20, s18\ns_cmp_lt_u32 s22, s14\ns_cbranch_scc1 amp_spin")
        Am.label("amp_end")
        Am("s_endpgm")
        L = L[:-1]
        L += [".text", ".globl amp_kernel", ".p2align 8", ".type amp_kernel,@function", "amp_kernel:"] + Am.finish()
        L += [".globl pre_kernel", ".p2align 8", ".type pre_kernel,@function", "pre_kernel:",
              "s_cmp_ge_u32 s2, 1", "s_cbranch_scc1 pre_end", "s_load_dwordx2 s[4:5], s[0:1], 96", f"s_mov_b32 s10, {WS_SIZE}", "s_mov_b32 s11, 0x20000", "s_waitcnt lgkmcnt(0)",
              "s_mov_b32 s8, s4", "s_and_b32 s9, s5, 0xffff", "v_mov_b32 v1, 0", "s_memrealtime s[12:13]", "s_waitcnt lgkmcnt(0)", "v_mov_b32 v2, s12", f"s_mov_b32 s14, {WS_STAMP - 64}",
              "buffer_store_dword v2, v1, s[8:11], s14 offen", "pre_end:", "s_endpgm"]
        L += ['.section .rodata,"a"', ".p2align 6", ".amdhsa_kernel pre_kernel", "  .amdhsa_next_free_vgpr 32", "  .amdhsa_next_free_sgpr 32", "  .amdhsa_accum_offset 32",
              "  .amdhsa_group_segment_fixed_size 0", "  .amdhsa_kernarg_size 104", "  .amdhsa_user_sgpr_count 2",
              "  .amdhsa_user_sgpr_kernarg_segment_ptr 1", "  .amdhsa_system_sgpr_workgroup_id_x 1", ".end_amdhsa_kernel"]
        L += ['.section .rodata,"a"', ".p2align 6", ".amdhsa_kernel amp_kernel", "  .amdhsa_next_free_vgpr 32", "  .amdhsa_next_free_sgpr 32", "  .amdhsa_accum_offset 32",
              "  .amdhsa_group_segment_fixed_size 0", "  .amdhsa_kernarg_size 104", "  .amdhsa_user_sgpr_count 2",
              "  .amdhsa_user_sgpr_kernarg_segment_ptr 1", "  .amdhsa_system_sgpr_workgroup_id_x 1", ".end_amdhsa_kernel", ""]
    if cfg.align:
        from align import align
        k0 = L.index(f"{NAME}:"); k1 = L.index("L_end:") + 2
        body, nprom, npad = align(L[k0:k1], "L_compute", "L_cold", cfg.align == 2)
        L = L[:k0] + body + L[k1:]
        sys.stderr.write(f"align: promoted {nprom} padded {npad}\n")
    sys.stderr.write(f"nops: loader {Ld.nops} compute {C.nops}\n")
    return "\n".join(L)

if __name__ == "__main__":
    cfg = Cfg()
    out = sys.argv[1]
    for a in sys.argv[2:]:
        k, val = a.split("=", 1)
        cur = getattr(Cfg, k)
        if isinstance(cur, bool): val = val in ("1", "true", "True")
        elif isinstance(cur, int): val = int(val)
        elif val == "None": val = None
        if k.startswith("pol_"): val = val.replace("+", " ")
        setattr(cfg, k, val)
    open(out, "w").write(gen(cfg))
    open(out + ".sites", "w").write(" ".join(map(str, SITES)))
```

```python
import sys, math, struct
from sched import Stream, Ins

NAME = "concat_heads__mha_block_cached__gqa_block_cached__near_ridge_kernel"
REF = "concat_heads__mha_block_cached__gqa_block_cached__near_ridge.s.ref"
SLOT = 17408
PITCH = 1056
LB = 512
LDS_BYTES = LB + 9 * SLOT
def slot(i): return LB + i * SLOT
WS_O, WS_D, WS_DX, WS_FLAG, WS_EPOCH, WS_STAMP = 0, 16 << 20, 32 << 20, 40 << 20, 41 << 20, 48 << 20
WS_SIZE = 64 << 20
SPIN_LIMIT = 1 << 18

def f32(x): return struct.unpack("<I", struct.pack("<f", x))[0]
def vr(n, c=1): return f"v{n}" if c == 1 else f"v[{n}:{n+c-1}]"
def mfma(d, a, b, first=False):
    return f"v_mfma_f32_16x16x32_bf16 {vr(d,4)}, {vr(a,4)}, {vr(b,4)}, {'0' if first else vr(d,4)}"
def _raw(text): return [Ins(l.strip()) if not l.strip().endswith(":") else l.strip() for l in text.split("\n") if l.strip()]
def emit(S, x):
    if callable(x): x()
    elif isinstance(x, tuple): S(*x)
    else: S(x)

SX, SWQ, SK, SV, SWO, SWS, SOUT, SDBG = 8, 12, 16, 20, 24, 28, 32, 36
def srd(n): return f"s[{n}:{n+3}]"
S_BLK, S_KQ, S_B, S_P, S_H0, S_W, S_NONCE, S_C = 40, 41, 42, 43, 44, 45, 46, 47

R_K0, R_K1, R_V0, R_WA, R_V1, R_U = 9, 10, 11, 12, 13, 14
F_QK0, F_QK1, F_PV0, F_O0, F_PV1, F_O1 = 10, 11, 12, 13, 15, 16
F_OI, F_DX = 18, 21
FU = {1: 14, 2: 17, 4: 19, 8: 20}
WSET = {"WA": (0, 1), "WB": (2, 3, 4, 5, 6), "WC": (7, 8), "WD": (9, 10, 11, 12, 13), "WE": (14, 15, 16, 17)}
def c_events(cfg):
    pos = {"WB": 12, "WC": 52, "WD": 68, "WE": 8 * min(14, cfg.merge) - 4}
    for k, x in enumerate(cfg.opos.split(",")): pos[f"OP{k}"] = int(x)
    ev = {n: (R_U + i, pos[n]) for i, n in enumerate(sorted(pos, key=lambda n: pos[n]))}
    ev["WA"] = (R_WA, -12)
    return ev

class Cfg:
    pol_x = ""; pol_wq = ""; pol_kv = "nt"; pol_wo = ""
    stop = None
    stamps = False; real = False; adetail = False; cdetail = 0
    ngrp = 3; rotp = 1; rotk = 3
    k0pos = 1; k0cls = 4; kvwait = 8
    codepf = True
    order = "blk"
    flag0 = -5; flag0b = 4; o1pos = 16; flag1 = 44; flag1b = 60; dxpos = 56
    amp = -1; ampw = 0
    probe_ahead = 8
    free_delay = 7
    trace = False
    tlb = 255
    tlbpos = 0
    tlbwo = 5
    tlboff = 0
    pol_st = "sc1"
    pol_sd = "sc1"
    gwait2 = False
    mst = ""
    prog2 = ""
    defer = 12
    dot2 = True
    wprio2 = 0
    dbg = ""
    spoll = True
    blead = 7
    pk = False
    pol_out = ""
    pre = 0
    post = 0
    align = 0
    dxgo = 96
    opos = "28,29,86,93"
    ostep = 2
    pol_o = "sc1"
    pfilter = ""
    o1end = 10
    merge = 14
    dxsleep = 8
    akv = "0:1:4,1:2:4:3"
    o1len = 30
    ptrace = False
    early0 = 72
    warmpos = -1
    k1pos = -1
    warmrot = 3
    wprio = 0
    bargap = 4
    abar = True
    cbar = 6
    nocheck = False
    nofree = False
    alead = 4
    nodma = False
    lprio = 3
    lsleep = 5
    wake = True
    gwait = True
    early = False
    trace_from = 0

def stamp(S, cfg, idx, det=False):
    if not cfg.stamps: return
    if (cfg.cdetail or cfg.adetail) and idx not in (0, 13) and not det: return
    S(f"{'s_memrealtime' if cfg.real else 's_memtime'} s[78:79]")
    S("s_waitcnt lgkmcnt(0)")
    S(f"s_mov_b32 s{80+idx}, s78")

SITES = []
def trace_raw(cfg, who, ident):
    if not cfg.trace or len(SITES) >= 128: return ""
    if cfg.ptrace and not isinstance(ident, str): return ""
    k = len(SITES); SITES.append(ident)
    return f"{'s_memrealtime' if cfg.real else 's_memtime'} s[78:79]\ns_waitcnt lgkmcnt(0)\nv_writelane_b32 v{250 + (k >> 6)}, s78, {k & 63}\n"
def stamps_store(S, cfg):
    if not cfg.stamps: return
    S("s_memrealtime s[78:79]\ns_waitcnt lgkmcnt(0)\ns_mov_b32 s95, s78")
    stamp(S, cfg, 13)
    S(f"s_lshl_b32 s66, s2, 3\ns_add_u32 s66, s66, s3\ns_lshl_b32 s66, s66, 6\ns_add_u32 s66, s66, {WS_STAMP}")
    S("v_mov_b32 v2, 0")
    S("s_mov_b64 exec, 1")
    for i in range(16):
        S(f"v_mov_b32 v3, s{80+i}")
        S(f"buffer_store_dword v3, v2, {srd(SWS)}, s66 offen offset:{4*i}")
    S("s_mov_b64 exec, -1")

def prologue(S, cfg):
    S(f"""s_cmp_ge_u32 s2, 256
    s_cbranch_scc1 L_end
    s_bfe_u32 s{S_BLK}, s2, 0x10002
    s_mul_i32 s66, s{S_BLK}, 40
    s_add_u32 s4, s0, s66
    s_addc_u32 s5, s1, 0
    s_load_dwordx8 s[48:55], s[4:5], 0""")
    if cfg.stamps:
        S(f"s_memrealtime s[6:7]\n{'s_memrealtime' if cfg.real else 's_memtime'} s[92:93]")
    S(f"""v_lshrrev_b32 v2, 6, v0
    v_and_b32 v1, 63, v0
    s_load_dwordx2 s[56:57], s[4:5], 32
    v_readfirstlane_b32 s3, v2
    s_load_dwordx4 s[60:63], s[0:1], 80
    s_load_dwordx2 s[64:65], s[0:1], 96
    s_and_b32 s{S_KQ}, s2, 3
    s_bfe_u32 s{S_B}, s2, 0x30003
    s_lshr_b32 s{S_P}, s2, 6
    s_lshl2_add_u32 s{S_H0}, s{S_KQ}, s{S_P}
    s_lshl_b32 s{S_H0}, s{S_H0}, 1
    s_and_b32 s{S_W}, s3, 3
    s_cmp_lt_u32 s3, 4
    s_cbranch_scc1 L_compute""")
def first_stamps(S, cfg):
    if cfg.stamps:
        S("s_mov_b32 s80, s92\ns_mov_b32 s94, s6")
        for i in range(1, 14): S(f"s_mov_b32 s{80+i}, 0")
SRD_SIZE = {SX: 1179648, SWQ: 4718592, SK: 8388608, SV: 8388608, SWO: 4718592, SWS: WS_SIZE, SOUT: 2359296, SDBG: 256}
def srd_consts(S, which):
    for d in which: S(f"s_mov_b32 s{d+2}, {SRD_SIZE[d]}\ns_mov_b32 s{d+3}, 0x20000")
def srd_bases(S, which):
    for d, p in ((SX, 48), (SWQ, 54), (SK, 50), (SV, 52), (SWO, 56), (SWS, 64), (SOUT, 60), (SDBG, 62)):
        if d in which: S(f"s_mov_b32 s{d}, s{p}\ns_and_b32 s{d+1}, s{p+1}, 0xffff")

def nonce_issue(S, vt, vz):
    S(f"buffer_load_dword v{vt}, v{vz}, {srd(SDBG)}, 0 offen sc1")
def nonce_check(S, vt, vz, lab):
    S(f"v_readfirstlane_b32 s{S_NONCE}, v{vt}")
    S(f"s_cmp_eq_u32 s{S_NONCE}, 0\ns_cbranch_scc1 {lab}")
    S.label(f"{lab}_ok")
    S.cold += _raw(f"""{lab}:
    s_mov_b32 s77, {SPIN_LIMIT}
    {lab}_spin:
    buffer_load_dword v{vt}, v{vz}, {srd(SDBG)}, 0 offen sc1
    s_waitcnt vmcnt(0)
    v_readfirstlane_b32 s{S_NONCE}, v{vt}
    s_nop 4
    s_cmp_lg_u32 s{S_NONCE}, 0
    s_cbranch_scc1 {lab}_ok
    s_sleep 2
    s_sub_u32 s77, s77, 1
    s_cmp_lg_u32 s77, 0
    s_cbranch_scc1 {lab}_spin
    s_branch {lab}_ok""")

def swar(s, need):
    return [f"s_or_b32 s{s}, s{s}, 0x80808080", f"s_sub_u32 s{s}, s{s}, {need * 0x01010101}", f"s_andn2_b32 s{s}, 0x80808080, s{s}", f"s_cmp_eq_u32 s{s}, 0"]
def spin_block(lab, back, vt, vz, off, sreg, need, sleep):
    return _raw(f"""{lab}:
    s_mov_b32 s77, {SPIN_LIMIT}
    {lab}_spin:
    ds_read_b32 v{vt}, v{vz} offset:{off}
    s_waitcnt lgkmcnt(0)
    v_readfirstlane_b32 s{sreg}, v{vt}
    s_nop 3
    """ + "\n".join(swar(sreg, need)) + f"""
    s_cbranch_scc1 {back}
    {'s_sleep ' + str(sleep) if sleep else ''}
    s_sub_u32 s77, s77, 1
    s_cmp_lg_u32 s77, 0
    s_cbranch_scc1 {lab}_spin
    s_branch {back}""")

def c_units():
    u = [("M", 0, 0), ("M", 0, 1), ("E", 0, 0), ("M", 1, 0), ("M", 1, 1), ("E", 1, 0)]
    for hh in (0, 1):
        for ii in range(6): u.append(("P", hh, ii))
    return u
def c_slots():
    sl = [(0, F_QK0), (1, F_QK0), (8, 9), (2, F_O0), (3, F_O0), (4, F_PV0), (5, F_PV0), (6, F_PV1), (7, F_PV1),
          (0, F_O1), (1, F_O1), (8, FU[2]), (2, FU[4]), (3, FU[4]), (4, FU[8]), (5, FU[8]), (6, FU[8]), (7, FU[8])]
    return {("W", j): sl[j] for j in range(18)}

def pack(dst, src):
    return [f"v_cvt_pk_bf16_f32 v{dst+8*s+4*u+2*e+x}, v{src+8*(2*s+e)+4*u+2*x}, v{src+8*(2*s+e)+4*u+2*x+1}" for s in range(4) for u in range(2) for e in range(2) for x in range(2)]
PAY = [0, 1, 2, 4, 5, 6, 8, 9]

def loader(S, cfg):
    VXO, VWO, VKV, VKW, VVW, VMO, VEO, VOO, VFL, VWW, VN, VZ, VP0, VPA, VT = 4, 5, 6, 7, 8, 9, 10, 11, 12, 13, 14, 15, 16, 18, 19
    KVREG = [24, 56, 88, 120]
    sXb, sWb, sCC, sM, sMo, sT, sKV0, sKV1, sA = 66, 67, 68, 69, 70, 71, 72, 73, 75
    sWP, sOP = [65, 96, 97, 98], [62, 99, 100, 101]
    S(f"""s_lshl_b32 s{sT}, s{S_W}, 2
    v_and_b32 v2, 0x38, v1
    v_lshl_add_u32 v2, v2, 1, s{sT}
    v_mul_u32_u24 v3, 1152, v2
    v_and_b32 v20, 7, v1
    v_lshl_add_u32 v{VXO}, v20, 4, v3
    s_lshl_b32 s76, s{S_W}, 3
    s_lshl1_add_u32 s76, s{S_W}, s76
    s_and_b32 s76, s76, 12
    v_and_b32 v2, 32, v1
    v_lshlrev_b32 v2, 12, v2
    v_and_b32 v20, 31, v1
    v_lshl_add_u32 v{VWO}, v20, 4, v2
    s_lshl_b32 s76, s76, 13
    s_mul_i32 s{sM}, s{sT}, {PITCH}
    s_lshl_b32 s75, s{S_H0}, 8
    s_add_u32 s75, s75, s76""")
    n = cfg.ngrp
    if cfg.order == "rot": orders = [[(round(9 * g / n) + c) % 9 for c in range(9)] for g in range(n)]
    else: orders = [[(c // n) * n + (c + g) % n if (c // n + 1) * n <= 9 else c for c in range(9)] for g in range(n)]
    tabs = [sum(x << (4 * i) for i, x in enumerate(o)) for o in orders]
    gtab = sum((i % n) << (2 * i) for i in range(16))
    S(f"""s_mul_i32 s76, s{S_P}, {cfg.rotp}
    s_add_u32 s76, s76, s{S_B}
    s_and_b32 s77, s{S_KQ}, {cfg.rotk}
    s_add_u32 s76, s76, s77
    s_lshl_b32 s76, s76, 1
    s_lshr_b32 s76, {gtab}, s76
    s_and_b32 s76, s76, 3
    s_mov_b32 s58, {tabs[0] & 0xffffffff}
    s_mov_b32 s59, {tabs[0] >> 32}""")
    for g in range(1, n):
        S(f"s_cmp_eq_u32 s76, {g}\ns_cselect_b32 s58, {tabs[g] & 0xffffffff}, s58\ns_cselect_b32 s59, {tabs[g] >> 32}, s59")
    S(f"s_mul_i32 s74, s{S_B}, 147456")
    srd_consts(S, (SX, SWQ))
    S("s_waitcnt lgkmcnt(0)")
    srd_bases(S, (SX, SWQ))
    def chunk(c, mid=None):
        base = slot((c % 3) * 3)
        S(f"""s_and_b32 s{sCC}, s58, 15
        s_lshr_b64 s[58:59], s[58:59], 4
        s_lshl_b32 s{sXb}, s{sCC}, 7
        s_add_u32 s{sXb}, s{sXb}, s74
        s_lshl_b32 s{sWb}, s{sCC}, 19
        s_add_u32 s{sWb}, s{sWb}, s75""")
        for i in range(4):
            S(f"s_add_u32 m0, s{sM}, {base + i*(PITCH-1152)}")
            S(f"buffer_load_dwordx4 v{VXO}, {srd(SX)}, s{sXb} offen offset:{i*1152} {cfg.pol_x} lds", tag=f"ch{c}")
        if mid: mid()
        for st in range(2):
            for i in range(4):
                S(f"s_add_u32 m0, s{sM}, {base + SLOT*(1+st) + i*PITCH}\ns_add_u32 s{sT}, s{sWb}, {(32*st+i)*8192}")
                S(f"buffer_load_dwordx4 v{VWO}, {srd(SWQ)}, s{sT} offen {cfg.pol_wq} lds", tag=f"ch{c}")
    def kv_lines(m):
        sr = SK if m < 2 else SV
        sb = sKV0 if m % 2 == 0 else sKV1
        o = [f"s_add_u32 s{sT}, s{sb}, 4096"]
        for j in range(8):
            o.append((f"buffer_load_dwordx4 {vr(KVREG[m]+4*j,4)}, v{VKV}, {srd(sr)}, s{sb if j < 4 else sT} offen offset:{(j&3)*1024} {cfg.pol_kv}", f"kv{m}"))
        return o
    def kv_load(m):
        for x in kv_lines(m): emit(S, x)
    def v_dma(m, sl):
        sb = sKV0 if m % 2 == 0 else sKV1
        S(f"""v_lshrrev_b32 v2, 4, v1
        v_lshlrev_b32 v2, 13, v2
        v_and_b32 v3, 15, v1
        v_lshl_add_u32 v2, v3, 4, v2
        s_lshl_b32 s76, s{S_W}, 11
        s_add_u32 s{sT}, s{sb}, s76
        s_lshl_b32 s76, s{sM}, 1""")
        for j in range(8):
            S(f"s_add_u32 m0, s76, {slot(sl) + j*(PITCH-256)}")
            S(f"buffer_load_dwordx4 v2, {srd(SV)}, s{sT} offen offset:{j*256} {cfg.pol_kv} lds", tag=f"kv{m}")
    def cond(lab, cls, mask, lines, pre=""):
        S(f"s_and_b32 s76, s{S_B}, {mask}\ns_cmp_lg_u32 s76, {cls}\ns_cbranch_scc1 {lab}")
        S.out += _raw(pre + "\n".join(x[0] if isinstance(x, tuple) else x for x in lines))
        S.label(lab)
    def kv_load_if(m, cls, ncls, pre=""):
        cond(f"L_kv{m}_{cls}", cls, ncls - 1, kv_lines(m), pre)
        if cls == ncls - 1: S.phantom([f"v{KVREG[m]+i}" for i in range(32)], f"kv{m}")
    def warm_lines():
        return f"""s_lshl_b32 s76, s{S_KQ}, 3
        s_add_u32 s76, s76, s{S_B}
        s_lshl_b32 s76, s76, 2
        s_add_u32 s76, s76, s{S_W}
        s_mul_i32 s76, s76, {32*1152}
        s_lshl_b32 s77, s{S_P}, 8
        s_add_u32 s76, s76, s77
        v_lshrrev_b32 v20, 1, v1
        v_mul_u32_u24 v20, 1152, v20
        v_and_b32 v3, 1, v1
        v_lshl_add_u32 v20, v3, 7, v20
        buffer_load_dword v22, v20, {srd(SWO)}, s76 offen {cfg.pol_wo}
        s_lshl_b32 s76, s{S_B}, 2
        s_add_u32 s76, s76, s{S_W}
        s_mul_i32 s76, s76, {8*1152}
        s_add_u32 s76, s76, s64
        v_and_b32 v21, 7, v1
        v_mul_u32_u24 v21, 1152, v21
        buffer_load_dword v23, v21, {srd(SWO)}, s76 offen offset:1024 {cfg.pol_wo}""".split("\n")
    def kv_write(m, sl):
        S.wait_vm_tag(f"kv{m}")
        S(f"s_setprio {cfg.wprio}")
        if "nolw" in cfg.dbg: return
        if m < 2:
            for j in range(8):
                S(f"v_add_u32 v2, {slot(sl) + j*4*PITCH}, v{VKW}")
                S(f"ds_write2_b64 v2, {vr(KVREG[m]+4*j,2)}, {vr(KVREG[m]+4*j+2,2)} offset0:0 offset1:2")
        else:
            S(f"v_add_u32 v2, {slot(sl)}, v{VVW}")
            for j in range(8):
                S(f"ds_write_b128 v2, {vr(KVREG[m]+4*j,4)} offset:{j*4*PITCH}")
    known = [0]; last_pub = [0]
    def wait_free(f, early=None):
        if f <= known[0]: return
        known[0] = f
        if cfg.nofree:
            S("s_sleep 5"); return
        lab = f"L_wf{f}"
        S.wait_lg(0)
        if cfg.trace and f >= cfg.trace_from: S(trace_raw(cfg, "loader", 100 + f))
        S(f"s_setprio {cfg.lprio}\nds_read_b32 v{VT}, v{VZ} offset:4\nv_readfirstlane_b32 s76, v{VT}")
        for x in swar(76, f): S(x)
        S(f"s_cbranch_scc0 {lab}")
        S.label(lab + "_ok")
        S("s_setprio 0")
        if cfg.trace and f >= cfg.trace_from: S(trace_raw(cfg, "loader", 200 + f))
        blk = spin_block(lab, lab + "_ok", VT, VZ, 4, 76, f, cfg.lsleep)
        if early and cfg.early: blk = blk[:1] + _raw(f"s_waitcnt vmcnt(0)\ns_mov_b32 s63, {early}\nv_mov_b32 v{VT}, {early}\nds_write_b8 v{VPA}, v{VT}\n" + (trace_raw(cfg, "loader", 400 + early) if f >= cfg.trace_from else "")) + blk[1:]
        S.cold += blk
    def publish(r):
        last_pub[0] = r
        S.wait_lg(0)
        S(f"s_setprio {cfg.lprio}\nv_mov_b32 v{VT}, {r}\nds_write_b8 v{VPA}, v{VT}\ns_setprio 0")
        if cfg.trace and known[0] >= cfg.trace_from: S(trace_raw(cfg, "loader", 300 + r))
        if cfg.adetail and r <= 12: stamp(S, cfg, r, True)
        if cfg.cdetail > 0 and 0 <= r - R_U < 12: stamp(S, cfg, 1 + r - R_U, True)
    chunk(0)
    first_stamps(S, cfg)
    stamp(S, cfg, 1)
    srd_consts(S, (SK, SV, SWO, SWS, SOUT, SDBG))
    srd_bases(S, (SK, SV, SWO, SWS, SOUT, SDBG))
    S(f"s_add_u32 s50, s64, {WS_FLAG}\ns_addc_u32 s51, s65, 0")
    if cfg.trace: S("s_mov_b32 s92, 0\nv_mov_b32 v250, 0\nv_mov_b32 v251, 0")
    if cfg.codepf:
        S(f"""s_getpc_b64 s[76:77]
        L_pc:
        s_lshr_b32 s{sT}, s2, 3
        s_lshl_b32 s{sT}, s{sT}, 2
        s_add_u32 s{sT}, s{sT}, s{S_W}
        s_mul_i32 s{sT}, s{sT}, 3
        v_min_u32 v2, 2, v1
        v_add_u32 v2, s{sT}, v2
        v_lshlrev_b32 v2, 7, v2
        v_min_u32 v2, L_end-L_pc, v2
        global_load_dword v23, v2, s[76:77]""")
    S(f"""v_mov_b32 v{VZ}, 0
    v_mov_b32 v20, 0
    v_mov_b32 v21, 0
    v_lshlrev_b32 v3, 3, v1
    ds_write_b64 v3, v[20:21]
    v_lshl_add_u32 v{VPA}, v1, 2, 64
    v_writelane_b32 v{VPA}, s{S_W}, 0
    v_add_u32 v{VEO}, 1024, v{VXO}
    s_lshl_b32 s76, s{S_W}, 13
    v_lshlrev_b32 v{VOO}, 4, v1
    v_add_u32 v{VKV}, s76, v{VOO}
    v_add_u32 v{VWW}, s{sM}, v{VOO}
    s_lshl_b32 s{sKV0}, s{S_B}, 5
    s_add_u32 s{sKV0}, s{sKV0}, s{S_H0}
    s_lshl_b32 s{sKV0}, s{sKV0}, 15
    s_add_u32 s{sKV1}, s{sKV0}, 32768
    v_lshrrev_b32 v2, 4, v1
    v_mul_u32_u24 v20, {PITCH}, v2
    s_lshl_b32 s76, s{S_W}, 8
    v_add_u32 v20, s76, v20
    v_and_b32 v3, 15, v1
    v_lshl_add_u32 v{VVW}, v3, 4, v20
    v_bfe_u32 v3, v1, 2, 2
    v_lshl_add_u32 v20, v3, 6, v20
    v_and_b32 v3, 1, v1
    v_lshl_add_u32 v20, v3, 5, v20
    v_bfe_u32 v3, v1, 1, 1
    v_lshl_add_u32 v{VKW}, v3, 3, v20""")
    S.wait_vm(9 if cfg.codepf else 8)
    chunk(1)
    S.wait_vm_tag("ch0"); S.wait_lg(0)
    stamp(S, cfg, 2)
    S("s_barrier")
    def pubch(c):
        S.wait_vm_tag(f"ch{c}"); publish(c)
    chunk(2, None if cfg.abar else (lambda: pubch(1)))
    S(f"""v_lshlrev_b32 v2, 4, v2
    s_lshl_b32 s76, s{S_W}, 2
    v_add_u32 v2, s76, v2
    v_mul_u32_u24 v2, 1152, v2
    s_lshl_b32 s76, s{S_KQ}, 6
    v_add_u32 v3, s76, v{VOO}
    v_and_b32 v3, 0xff, v3
    v_add_u32 v{VMO}, v2, v3
    v_min_u32 v2, 2, v1
    v_add3_u32 v2, v2, s{S_P}, 1
    v_and_b32 v2, 3, v2
    v_lshlrev_b32 v2, 6, v2
    s_and_b32 s76, s2, 63
    v_add_u32 v2, s76, v2
    v_lshlrev_b32 v2, 2, v2
    v_add_u32 v2, s{S_W}, v2
    v_lshlrev_b32 v{VFL}, 8, v2
    s_lshl_b32 s{sMo}, s{S_W}, 12""")
    for pi in range(4):
        d = sWP[pi]
        S(f"""s_add_u32 s76, s{S_P}, {pi}
        s_and_b32 s76, s76, 3
        s_lshl_b32 s77, s{S_KQ}, 2
        s_add_u32 s77, s77, s76
        s_mul_i32 s77, s77, {256*1152}
        s_lshl_b32 s{d}, s{S_P}, 8
        s_add_u32 s{d}, s{d}, s77""")
        if pi == 0: S("s_mov_b32 s64, s77")
        if True:
            S(f"""s_lshl_b32 s76, s76, 6
            s_and_b32 s77, s2, 63
            s_add_u32 s76, s76, s77
            s_lshl_b32 s76, s76, 2
            s_add_u32 s76, s76, s{S_W}
            s_lshl_b32 s{sOP[pi]}, s76, 14""")
            if pi: S(f"s_lshl_b32 s{54+pi}, s76, 8")
    def tlb_touch():
        def touch(bit, base, lines):
            if cfg.tlb & bit: S.out += _raw(lines + f"\ns_load_dword s60, s[{base}:{base+1}], s76")
        touch(1, SV, f"s_lshl_b32 s76, s{S_W}, 14\ns_add_u32 s76, s76, s{sKV0}")
        touch(2, SK, f"s_lshl_b32 s76, s{S_W}, 14\ns_add_u32 s76, s76, s{sKV0}")
        for i in range(cfg.tlbwo):
            touch(4, SWO, f"s_mul_i32 s76, s{S_KQ}, {1024*1152}\ns_mul_i32 s77, s{S_W}, {1179648 // (4 * cfg.tlbwo)}\ns_add_u32 s76, s76, s77\ns_add_u32 s76, s76, {i * 1179648 // cfg.tlbwo}")
        for pi in range(4): touch(8, SWS, f"s_add_u32 s76, s{sOP[pi]}, {cfg.tlboff}")
        touch(16, SWS, f"s_mov_b32 s76, {WS_FLAG + (1 << 19)}")
        touch(32, SWS, f"s_andn2_b32 s76, s2, 3\ns_add_u32 s76, s76, s{S_W}\ns_mul_i32 s76, s76, {4*6144}\ns_add_u32 s76, s76, {WS_D}")
        touch(64, SWS, f"s_lshl3_add_u32 s76, s{S_BLK}, s{S_B}\ns_lshl2_add_u32 s76, s76, s{S_W}\ns_lshl_b32 s76, s76, 16\ns_add_u32 s76, s76, {WS_DX}")
        touch(128, SOUT, f"s_lshl2_add_u32 s76, s{S_B}, s{S_W}\ns_mul_i32 s76, s76, {32*2304}")
        S.smem_pending = True; S.lg.append(set())
    if cfg.tlb and cfg.tlbpos == 0: tlb_touch()
    for c in range(1, 7):
        if cfg.abar:
            S.wait_vm_tag(f"ch{c}"); stamp(S, cfg, c, cfg.adetail) if cfg.adetail else None; S("s_barrier"); known[0] = c
        else:
            wait_free(c, c + 1)
            pubch(c + 1)
        if c == 4: nonce_issue(S, VN, VZ)
        if not cfg.nodma: chunk(c + 2)
        if cfg.tlb and cfg.tlbpos == c: tlb_touch()
        for item in cfg.akv.split(","):
            what, first, ncls, rot = (item.split(":") + ["0"])[:4]
            first, ncls, rot = int(first), int(ncls), int(rot)
            if not 0 <= c - first < ncls: continue
            cond(f"L_a{what}_{c}", (c - first + rot) % ncls, ncls - 1, warm_lines() if what == "w" else kv_lines(int(what)), f"s_waitcnt vmcnt({cfg.kvwait})\n")
            if what != "w" and c - first == ncls - 1: S.phantom([f"v{KVREG[int(what)]+i}" for i in range(32)], f"kv{what}")
    nonce_check(S, VN, VZ, "L_ln")
    units, slots = c_units(), c_slots()
    def w_src(j):
        uk, hh, x = units[j]
        if uk == "M": return VMO, 65, (hh * 128 + 64 * x) * 1152
        if uk == "E": return VEO, 64, hh * 128 * 1152
        return VMO, sWP[1 + x % 3], (hh * 128 + 64 * (x // 3)) * 1152
    blocks = [152 + 16 * i for i in range(6)]
    parked = {}
    def w_load(j):
        va, sb, off = w_src(j)
        S(f"s_add_u32 s{sA}, s{sb}, {off}")
        if slots[("W", j)][1] <= known[0] and (j not in (3, 4, 9, 10) or (j > 4) in picked):
            lds_w.add(j)
            for i in range(4):
                S(f"s_add_u32 m0, s{sM}, {slot(slots[('W', j)][0]) + i*(PITCH-1152)}")
                S(f"buffer_load_dwordx4 v{va}, {srd(SWO)}, s{sA} offen offset:{i*1152} {cfg.pol_wo} lds", tag=f"u{j}")
        else:
            parked[j] = blocks.pop(0)
            for i in range(4 if "nopark" not in cfg.dbg else 0):
                S(f"buffer_load_dwordx4 {vr(parked[j]+4*i,4)}, v{va}, {srd(SWO)}, s{sA} offen offset:{i*1152} {cfg.pol_wo}", tag=f"u{j}w")
    lds_w = set()
    def w_write(j):
        assert j not in (3, 4, 9, 10) or (j > 4) in picked
        wait_free(slots[("W", j)][1])
        lds_w.add(j)
        S.wait_vm_tag(f"u{j}w")
        S(f"s_setprio {cfg.wprio if j < 7 else cfg.wprio2}\nv_add_u32 v2, {slot(slots[('W', j)][0])}, v{VWW}")
        for i in range(4 if not ("now" in cfg.dbg and j > 6 or "nolw" in cfg.dbg) else 0): S(f"ds_write_b128 v2, {vr(parked[j]+4*i,4)} offset:{i*PITCH}")
        S.wait_lg(0)
        S("s_setprio 0")
        blocks.append(parked.pop(j))
    def warm():
        for x in warm_lines(): S(x)
    issued, polled = set(), set()
    EV = c_events(cfg)
    def poll_issue(hh):
        issued.add(hh)
        S(f"s_mov_b32 s76, {WS_FLAG}")
        S(f"buffer_load_dword v{VP0 + (hh & 1)}, v{VFL}, {srd(SWS)}, s76 offen offset:{64*hh} sc1")
    def poll(hh):
        lab = f"L_poll{hh}"
        polled.add(hh)
        if "nopoll" in cfg.dbg: return
        if cfg.spoll:
            S.wait_lg(0)
            S(f"s_mov_b32 s77, {SPIN_LIMIT}")
            S.label(lab)
            S.out += _raw("\n".join(f"s_load_dword s{52+i}, s[50:51], s{55+i} offset:{64*hh} glc" for i in range(3)) + f"""
            s_waitcnt lgkmcnt(0)
            s_xor_b32 s52, s52, s{S_NONCE}
            s_xor_b32 s53, s53, s{S_NONCE}
            s_xor_b32 s54, s54, s{S_NONCE}
            s_or_b32 s52, s52, s53
            s_or_b32 s52, s52, s54
            s_cbranch_scc0 {lab}_ok
            s_sub_u32 s77, s77, 1
            s_cmp_lg_u32 s77, 0
            s_cbranch_scc1 {lab}""")
            S.label(f"{lab}_ok")
            return
        if hh not in issued: poll_issue(hh)
        v = VP0 + (hh & 1)
        S(f"v_cmp_eq_u32 vcc, s{S_NONCE}, v{v}")
        S(f"s_cmp_eq_u64 vcc, -1\ns_cbranch_scc0 {lab}")
        S.label(f"{lab}_ok")
        S.cold += _raw(f"""{lab}:
        s_mov_b32 s76, {WS_FLAG}
        s_mov_b32 s77, {SPIN_LIMIT}
        {lab}_spin:
        buffer_load_dword v{v}, v{VFL}, {srd(SWS)}, s76 offen offset:{64*hh} sc1
        s_waitcnt vmcnt(0)
        v_cmp_eq_u32 vcc, s{S_NONCE}, v{v}
        s_nop 1
        s_cmp_eq_u64 vcc, -1
        s_cbranch_scc1 {lab}_ok
        s_sub_u32 s77, s77, 1
        s_cmp_lg_u32 s77, 0
        s_cbranch_scc1 {lab}_spin
        s_branch {lab}_ok""")
    oreg, picked = {}, set()
    def pickup(h):
        wait_free((F_O0, F_O1)[h])
        S(f"s_setprio {cfg.lprio}\nv_add_u32 v2, {slot(2 - 2*h)}, v{VWW}")
        for x in range(2):
            oreg[2*h + x] = blocks.pop(0)
            for i in range(4): S(f"ds_read_b128 {vr(oreg[2*h+x] + 4*i, 4)}, v2 offset:{x*SLOT + i*1024}")
        S.wait_lg(0)
        S("s_setprio 0")
        picked.add(h)
    def o_store(k):
        if "nost" in cfg.dbg: return
        S(f"s_add_u32 s{sA}, s{sOP[0]}, {WS_O + k*4096}")
        for i in range(4):
            S(f"buffer_store_dwordx4 {vr(oreg[k] + 4*i, 4)}, v{VOO}, {srd(SWS)}, s{sA} offen offset:{i*1024} {cfg.pol_st}", tag=f"o{k}")
    def o_flag(k):
        S.wait_vm_tag(f"o{k}")
        S(f"""s_lshr_b32 s76, s{sOP[0]}, 6
        s_add_u32 s76, s76, {WS_FLAG + 64*k}
        v_mov_b32 v3, s{S_NONCE}
        buffer_store_dword v3, v{VZ}, {srd(SWS)}, s76 offen sc1""")
        blocks.append(oreg.pop(k))
    def kv_duty(m, sl, f, r):
        wait_free(f); kv_write(m, sl); publish(r)
        blocks.extend([KVREG[m], KVREG[m] + 16])
    if cfg.prog2:
        S(f"s_and_b32 s76, s{S_B}, 1\ns_cmp_lg_u32 s76, 0\ns_cbranch_scc1 L_fork_c1")
        S.label("L_fork")
        S.ncold = len(S.cold)
    prog = PROGS[S.progname].split()
    if cfg.stop == "A": prog = ["bA7", "bA8"] if cfg.abar else ["p8"]
    if cfg.stop == "B": prog = [x for x in prog if x[0] in "KVpPS" or x[:2] in ("wK", "wV", "bA")]
    for op in prog:
        if cfg.ptrace and (not cfg.pfilter or op in cfg.pfilter.split(",")): S(trace_raw(cfg, "loader", op))
        if op in ("K1", "V0", "V1"): kv_load({"K1": 1, "V0": 2, "V1": 3}[op])
        elif "@" in op: kv_load_if({"K1": 1, "V0": 2, "V1": 3}[op[:2]], int(op[3]), 2)
        elif op in ("D0", "D1"):
            m = 2 + int(op[1]); wait_free(8 + int(op[1])); v_dma(m, 4 + 2 * int(op[1])); blocks.extend([KVREG[m], KVREG[m] + 16])
        elif op in ("pV0", "pV1"):
            S.wait_vm_tag(f"kv{2 + int(op[2])}"); publish((R_V0, R_V1)[int(op[2])])
        elif op == "warm": warm()
        elif op == "p8": S.wait_vm_tag("ch8"); publish(8)
        elif op[0] == "b":
            j = int(op[2:])
            S.wait_vm_tag(f"ch{j}"); known[0] = j
            S.wait_lg(0)
            if cfg.adetail: stamp(S, cfg, j, True)
            S("s_barrier")
        elif op == "wK0": kv_duty(0, 0, 7, R_K0)
        elif op == "wK1": kv_duty(1, 2, 8, R_K1)
        elif op == "wV0": kv_duty(2, 4, 8, R_V0)
        elif op == "wV1": kv_duty(3, 6, 9, R_V1)
        elif op[0] == "W": w_load(int(op[1:]))
        elif op[0] == "w": w_write(int(op[1:]))
        elif op[0] == "f": wait_free(int(op[1:]))
        elif op[0] == "q": poll(int(op[1:]))
        elif op[0] == "Q": poll_issue(int(op[1:]))
        elif op[0] == "P": pickup(int(op[1:]))
        elif op[0] == "S": o_store(int(op[1:]))
        elif op[0] == "G": o_flag(int(op[1:]))
        elif op[0] == "z": S(f"s_sleep {op[1:]}")
        elif op[0] == "R":
            name = op[1:]
            if name in WSET:
                for j in WSET[name]:
                    if j in parked: w_write(j)
                    assert j in lds_w
                    S.wait_vm_tag(f"u{j}")
            else: assert int(name[2]) in polled
            assert EV[name][0] == last_pub[0] + 1, (name, EV, last_pub)
            publish(EV[name][0])
        else: raise ValueError(op)
    stamp(S, cfg, 3)
    if cfg.trace:
        S(f"s_lshl_b32 s66, s2, 2\ns_add_u32 s66, s66, s{S_W}\ns_lshl_b32 s66, s66, 9\ns_add_u32 s66, s66, {WS_STAMP + (1 << 20)}\nv_lshlrev_b32 v2, 2, v1")
        S(f"buffer_store_dword v250, v2, {srd(SWS)}, s66 offen\nbuffer_store_dword v251, v2, {srd(SWS)}, s66 offen offset:256")
    if cfg.stop:
        S.wait_vm(0); stamps_store(S, cfg); S("s_branch L_end"); return
    S(f"s_cmp_lg_u32 s{S_W}, 0\ns_cbranch_scc1 L_lfin")
    R = 64
    S(f"""v_and_b32 v2, 7, v1
    v_bfe_u32 v3, v1, 3, 2
    v_lshl_add_u32 v2, v3, 4, v2
    s_and_b32 s76, s{S_P}, 1
    s_lshl_b32 s76, s76, 3
    v_add_u32 v2, s76, v2
    v_lshlrev_b32 v2, 4, v2
    v_lshrrev_b32 v3, 5, v1
    v_lshl_add_u32 v4, v3, 14, v2
    s_lshl_b32 s{sA}, s{S_BLK}, 3
    s_add_u32 s{sA}, s{sA}, s{S_B}
    s_lshl_b32 s{sA}, s{sA}, 6
    s_add_u32 s{sA}, s{sA}, s{S_KQ}
    s_lshl_b32 s{sA}, s{sA}, 1
    s_lshr_b32 s76, s{S_P}, 1
    s_add_u32 s{sA}, s{sA}, s76
    s_lshl_b32 s{sA}, s{sA}, 11
    s_add_u32 s{sA}, s{sA}, {WS_DX}
    s_and_b32 s72, s{S_NONCE}, 1
    s_lshl_b32 s73, s{S_NONCE}, 15
    s_and_b32 s73, s73, 0x10000
    s_or_b32 s72, s72, s73
    v_mov_b32 v8, 0x10001
""")
    wait_free(F_DX)
    S(f"s_mov_b32 s77, {SPIN_LIMIT}")
    S.label("L_dx")
    for r in range(8):
        S(f"s_add_u32 s{sT}, s{sA}, {r*2*16384}")
        for gm in range(2):
            S(f"buffer_load_dwordx4 {vr(R+8*r+4*gm,4)}, v4, {srd(SWS)}, s{sT} offen offset:{gm*1024} sc1")
    S(f"v_xor_b32 v5, s72, v{R}")
    for i in range(1, 64): S(f"v_bitop3_b32 v5, v5, v{R+i}, s72 bitop3:0xf6")
    S("v_and_b32 v5, v5, v8\nv_cmp_eq_u32 vcc, 0, v5\ns_cmp_eq_u64 vcc, -1\ns_cbranch_scc1 L_dx_ok")
    S("s_sleep 4\ns_sub_u32 s77, s77, 1\ns_cmp_lg_u32 s77, 0\ns_cbranch_scc1 L_dx")
    S.label("L_dx_ok")
    AC = 24
    S("v_mov_b32 v9, 0xfffefffe")
    for i in range(64): S(f"v_and_b32 v{R+i}, v9, v{R+i}")
    for r in range(8):
        for d in range(8):
            src = R + 8 * r + d
            if r == 0:
                S(f"v_lshlrev_b32 v{AC+2*d}, 16, v{src}\nv_and_b32 v{AC+2*d+1}, 0xffff0000, v{src}")
            else:
                S(f"v_lshlrev_b32 v6, 16, v{src}\nv_and_b32 v7, 0xffff0000, v{src}\nv_add_f32 v{AC+2*d}, v{AC+2*d}, v6\nv_add_f32 v{AC+2*d+1}, v{AC+2*d+1}, v7")
    for i in range(8): S(f"v_permlane32_swap_b32 v{AC+i}, v{AC+8+i}")
    for i in range(8): S(f"v_add_f32 v{AC+i}, v{AC+i}, v{AC+8+i}")
    for i in range(4): S(f"v_cvt_pk_bf16_f32 v{44+i}, v{AC+2*i}, v{AC+2*i+1}")
    S(f"""v_and_b32 v2, 7, v1
    s_lshl_b32 s76, s{S_B}, 7
    s_lshl_b32 s77, s{S_KQ}, 5
    s_add_u32 s76, s76, s77
    s_lshl_b32 s77, s{S_P}, 3
    s_add_u32 s76, s76, s77
    v_add_u32 v2, s76, v2
    v_mul_u32_u24 v2, 2304, v2
    v_bfe_u32 v3, v1, 3, 2
    v_lshl_add_u32 v2, v3, 3, v2
    v_lshrrev_b32 v3, 5, v1
    v_lshl_add_u32 v2, v3, 6, v2
    s_mul_i32 s76, s{S_BLK}, 1152
    s_add_u32 s76, s76, 1024
    buffer_store_dwordx2 v[44:45], v2, {srd(SOUT)}, s76 offen {cfg.pol_out}
    buffer_store_dwordx2 v[46:47], v2, {srd(SOUT)}, s76 offen offset:32 {cfg.pol_out}""")
    S.label("L_lfin")
    if cfg.stamps: S("s_waitcnt vmcnt(0)")
    stamps_store(S, cfg)
    S("s_branch L_end")

def compute(S, cfg):
    VX, VW = [4, 5, 6], [7, 8, 9]
    VK, VV, VOST, VZ, VN = [10, 11], [12, 13], 14, 15, 16
    VM, VT, VRC, VPR, VFA, VFT, VPR2 = [16, 17], 19, [[20, 21], [22, 23]], 18, 2, 3, 19
    ONES, LS = 56, [60, 4]
    QP = lambda h: 64 + 32 * h
    SS = lambda h: 128 + 64 * h
    PP = 64
    OF = lambda h, s, u: 96 + 8 * s + 4 * u if h == 0 else 192 + 16 * s + 4 * u
    S.label("L_compute")
    S(f"v_mov_b32 v{VZ}, 0")
    srd_consts(S, (SWS, SOUT, SDBG))
    S("s_waitcnt lgkmcnt(0)")
    first_stamps(S, cfg)
    srd_bases(S, (SWS, SOUT, SDBG))
    S(f"s_or_b32 s66, s2, s3\ns_cmp_lg_u32 s66, 0\ns_cbranch_scc1 L_notag")
    S.out += _raw(f"""s_mov_b32 s66, {WS_EPOCH}
    buffer_load_dword v2, v{VZ}, {srd(SWS)}, s66 offen sc1
    s_waitcnt vmcnt(0)
    v_add_u32 v2, 1, v2
    v_max_u32 v2, 1, v2
    buffer_store_dword v2, v{VZ}, {srd(SWS)}, s66 offen sc1
    buffer_store_dword v2, v{VZ}, {srd(SDBG)}, 0 offen sc1
    s_waitcnt vmcnt(0)""")
    S.label("L_notag")
    S(f"""v_and_b32 v22, 15, v1
    v_lshrrev_b32 v23, 4, v1
    v_mul_u32_u24 v2, {PITCH}, v22
    v_lshl_add_u32 v{VK[0]}, v23, 4, v2
    v_add_u32 v{VK[0]}, {LB}, v{VK[0]}
    v_add_u32 v{VK[1]}, {2*SLOT}, v{VK[0]}
    s_lshl_b32 s66, s{S_W}, 8
    v_add_u32 v{VX[0]}, s66, v{VK[0]}
    v_add_u32 v{VX[1]}, {3*SLOT}, v{VX[0]}
    v_add_u32 v{VX[2]}, {6*SLOT}, v{VX[0]}
    v_bfe_u32 v2, v1, 2, 3
    v_mul_u32_u24 v2, {PITCH}, v2
    v_lshrrev_b32 v3, 5, v1
    v_lshl_add_u32 v2, v3, 9, v2
    v_and_b32 v3, 3, v1
    v_lshl_add_u32 v2, v3, 3, v2
    v_add_u32 v{VW[0]}, {slot(1)}, v2
    v_add_u32 v{VW[1]}, {slot(4)}, v2
    v_add_u32 v{VW[2]}, {slot(7)}, v2
    v_lshrrev_b32 v2, 2, v1
    v_mul_u32_u24 v2, {PITCH}, v2
    v_lshl_add_u32 v2, v3, 3, v2
    v_add_u32 v{VV[0]}, {slot(4)}, v2
    v_add_u32 v{VV[1]}, {slot(6)}, v2
    s_mul_i32 s66, s{S_W}, {4*PITCH}
    s_add_u32 s66, s66, {slot(0)}
    v_lshlrev_b32 v{VOST}, 4, v1
    v_add_u32 v{VOST}, s66, v{VOST}
    s_add_u32 s66, s{S_W}, 4
    v_lshl_add_u32 v{VFA}, v1, 2, 64
    v_writelane_b32 v{VFA}, s66, 0
    s_mov_b32 s{S_C}, {f32(math.log2(math.e) / math.sqrt(128.0))}
    s_mov_b32 s58, s{S_C}
    s_mov_b32 s59, s{S_C}""")
    for pi in range(1, 4):
        S(f"s_add_u32 s66, s2, {64*pi}\ns_and_b32 s66, s66, 255\ns_lshl2_add_u32 s66, s66, s{S_W}\ns_lshl_b32 s{95+pi}, s66, 14")
        S(f"s_add_u32 s66, s{S_KQ}, {pi}\ns_and_b32 s66, s66, 3\ns_andn2_b32 s67, s2, 3\ns_add_u32 s66, s66, s67\ns_lshl2_add_u32 s66, s66, s{S_W}\ns_mul_i32 s66, s66, 6144\ns_add_u32 s{(100, 101, 57)[pi-1]}, s66, {WS_D + (pi-1)*2048}")
    S(f"""s_lshl3_add_u32 s66, s{S_BLK}, s{S_B}
    s_lshr_b32 s67, s{S_H0}, 1
    s_lshl4_add_u32 s66, s66, s67
    s_lshl2_add_u32 s66, s66, s{S_W}
    s_lshl_b32 s66, s66, 12
    s_add_u32 s99, s66, {WS_DX}
    s_lshl2_add_u32 s74, s2, s{S_W}
    s_mul_i32 s74, s74, 6144
    s_add_u32 s74, s74, {WS_D}
    s_add_u32 s75, s74, 4096
    s_lshl2_add_u32 s70, s{S_B}, s{S_W}
    s_mul_i32 s70, s70, {32*2304}
    s_mul_i32 s71, s{S_BLK}, 1152
    s_add_u32 s70, s70, s71
    s_lshl2_add_u32 s71, s{S_P}, s{S_KQ}
    s_lshl_b32 s71, s71, 6
    s_add_u32 s70, s70, s71
    s_add_u32 s71, s70, {16*2304}""")
    G = []
    def add(reads, mf, lead, need=None, free=None, gate=None, bar=False):
        G.append(dict(reads=reads, mf=mf, gate=len(G) - lead if gate is None else gate, need=need, free=free, bar=bar))
    ACC = lambda t, u: 128 + 8 * t + 4 * u
    ARING = [96, 104, 112, 120, 56]
    XF = lambda c, s, u: 24 + 16 * (c & 1) + 8 * s + 4 * u
    for c in range(9):
        for t in range(16):
            rg = ARING[len(G) % 5]
            rd = [f"ds_read_b64_tr_b16 {vr(rg+4*s+2*r,2)}, v{VW[c%3]} offset:{s*SLOT + r*8*PITCH + 32*t}" for s in range(2) for r in range(2)]
            if t == 0: rd = [f"ds_read_b128 {vr(XF(c,s,u),4)}, v{VX[c%3]} offset:{128*u + 64*s}" for s in range(2) for u in range(2)] + rd
            add(rd, [mfma(ACC(t, u), rg + 4*s, XF(c, s, u), first=(c == 0 and s == 0)) for u in range(2) for s in range(2)], cfg.alead,
                need=c if t == 0 and c and not cfg.abar else None, free=c + 1 if t == 15 and (c == 8 or not cfg.abar) else None, bar=cfg.abar and t == 0 and c > 0)
    gA = len(G)
    fill = [(gA - 6, gA, pack(QP(0), 128))]
    tail_fill = None
    KR = lambda i: 24 + 4 * ((i + 4) & 7)
    def qk(h):
        for i in range(32):
            kt, s = i >> 2, i & 3
            add([f"ds_read_b128 {vr(KR(i),4)}, v{VK[h]} offset:{(kt&1)*16*PITCH + (kt>>1)*256 + 64*s}"],
                [mfma(SS(h)+8*kt+4*u, KR(i), QP(h)+8*s+4*u, first=(s == 0)) for u in range(2)], cfg.blead,
                need=R_K0 + h if i == 0 else None, free=F_QK0 + h if i == 31 else None,
                gate=(gA - 3 if i < 4 else max(gA, len(G) - cfg.blead)) if h == 0 else None)
            G[-1]["wait4"] = (i & 3) == 0
    def pv(h):
        g0 = len(G)
        for i in range(32):
            dt, j = i >> 2, i & 3
            add([f"ds_read_b64_tr_b16 {vr(KR(i)+2*r,2)}, v{VV[h]} offset:{r*16*PITCH + j*256 + 32*dt}" for r in range(2)],
                ([mfma(LS[u], ONES, PP+8*jj+4*u, first=(jj == 0)) for u in range(2) for jj in range(4)] if i == 0 else []) +
                [mfma(SS(h)+8*dt+4*u, KR(i), PP+8*j+4*u, first=(j == 0)) for u in range(2)], cfg.blead,
                need=(R_V0, R_V1)[h] if i == 0 else None, free=(F_PV0, F_PV1)[h] if i == 31 else None,
                gate=max(len(G) - cfg.blead, g0 - (3, 3, 2, 2, 1, 1, 0, 0)[i]) if (h == 1 and i < 8) else None)
            G[-1]["wait4"] = (i & 3) == 0
    def softmax(h):
        s = SS(h)
        el = [[s + 8*kt + 4*u + r for kt in range(8) for r in range(4)] for u in range(2)]
        o = []
        for i in range(16):
            for u in range(2):
                e = el[u]
                if i == 0: o.append(f"v_max3_f32 v{VM[u]}, v{e[0]}, v{e[1]}, v{e[2]}")
                elif i < 15: o.append(f"v_max3_f32 v{VM[u]}, v{VM[u]}, v{e[2*i+1]}, v{e[2*i+2]}")
                else: o.append(f"v_max_f32 v{VM[u]}, v{VM[u]}, v{e[31]}")
        a, b = VM
        o += [f"v_permlane32_swap_b32 v{a}, v{b}", f"v_max_f32 v{a}, v{a}, v{b}", f"v_mov_b32 v{b}, v{a}",
              f"v_permlane16_swap_b32 v{a}, v{b}", f"v_max_f32 v{a}, v{a}, v{b}", f"v_mul_f32 v{a}, s{S_C}, v{a}", f"v_mov_b32 v{b}, v{a}",
              f"v_permlane32_swap_b32 v{a}, v{b}"]
        order = [(kt, u, r) for kt in range(8) for u in range(2) for r in range(4)]
        D = 2
        for i in range(64 + 2 * D):
            if i < 64:
                kt, u, r = order[i]; x = s + 8*kt + 4*u + r
                if not cfg.pk: o.append(f"v_fma_f32 v{x}, v{x}, s{S_C}, -v{VM[u]}")
                elif r % 2 == 0: o.append(f"v_pk_fma_f32 {vr(x,2)}, {vr(x,2)}, s[58:59], {vr(VM[0],2)} op_sel:[0,0,{u}] op_sel_hi:[1,1,{u}] neg_lo:[0,0,1] neg_hi:[0,0,1]")
            j = i - D
            if 0 <= j < 64:
                kt, u, r = order[j]; x = s + 8*kt + 4*u + r
                o.append(f"v_exp_f32 v{x}, v{x}")
            j = i - 2 * D
            if 0 <= j < 64:
                kt, u, r = order[j]; x = s + 8*kt + 4*u + r
                if r & 1: o.append(f"v_cvt_pk_bf16_f32 v{PP+8*(kt>>1)+4*u+2*(kt&1)+(r>>1)}, v{x-1}, v{x}")
        return o
    sig = [0]
    def signal(f):
        assert f > sig[0], (f, sig[0])
        sig[0] = f
        S(f"v_mov_b32 v{VFT}, {f}\nds_write_b8 v{VFA}, v{VFT}")
    def o_pack(h):
        s = SS(h); o = []
        need = (F_QK1, FU[1])[h]; lab = f"L_st{h}"
        def chk():
            S(f"v_readfirstlane_b32 s64, v{VPR2}")
            for x in swar(64, need): S(x)
            S(f"s_cbranch_scc0 {lab}")
            S.label(lab + "_ok")
            S.cold += spin_block(lab, lab + "_ok", VPR2, VZ, 4, 64, need, 0)
        for st in range(4):
            part = [f"ds_read_b32 v{VPR2}, v{VZ} offset:4"] if st == 0 else []
            for u in range(2):
                for e in range(2):
                    for r in range(4):
                        x = s + 8*(2*st+e) + 4*u + r
                        if not cfg.pk: part.append(f"v_mul_f32 v{x}, v{x}, v{VRC[h][u]}")
                        elif r % 2 == 0: part.append(f"v_pk_mul_f32 {vr(x,2)}, {vr(x,2)}, {vr(VRC[h][0],2)} op_sel:[0,{u}] op_sel_hi:[1,{u}]")
                i = 2 * st + u
                part += [f"v_cvt_pk_bf16_f32 v{OF(h,st,u)+2*e+x}, v{s+8*(2*st+e)+4*u+2*x}, v{s+8*(2*st+e)+4*u+2*x+1}" for e in range(2) for x in range(2)]
                if i == 0: part.append(chk)
                part.append((f"ds_write_b128 v{VOST}, {vr(OF(h,st,u),4)} offset:{(2 - 2*h + (i >> 2))*SLOT + (i & 3)*1024}", f"st{h}"))
            o.append(part)
        def done():
            S.wait_lg_tag(f"st{h}"); signal((F_O0, F_O1)[h])
        return o, done
    rcp = lambda h: [f"v_rcp_f32 v{VRC[h][u]}, v{LS[u]}" for u in range(2)]
    st = lambda i: (lambda: stamp(S, cfg, i))
    def pack_fill(h, g0):
        op, done = o_pack(h)
        return [(g0 + 4, g0 + 5, rcp(h)), (g0 + 10, g0 + 18, op[0]), (g0 + 18, g0 + 26, op[1]), (g0 + 26, g0 + 33, op[2]), (g0 + 33, g0 + 35, op[3]), (g0 + 35, g0 + 36, [done, "s_wakeup"])]
    if cfg.stop != "A":
        qk(0); qk(1); pv(0)
        fill += [(gA, gA + 1, [st(2), lambda: nonce_issue(S, VT, VZ)]),
                 (gA, gA + 32, pack(QP(1), 192) + [f"v_mov_b32 v{ONES+i}, 0x3f803f80" for i in range(4)]),
                 (gA + 32, gA + 33, [st(3)]), (gA + 33, gA + 64, softmax(0)),
                 (gA + 56, gA + 57, [lambda: nonce_check(S, VT, VZ, "L_cn")]), (gA + 64, gA + 65, [st(4)])] + pack_fill(0, gA + 64)
    gC0 = len(G)
    units, slots, EV = c_units(), c_slots(), c_events(cfg)
    VA, VL16 = [8, 9, 10], 11
    MC = lambda nt, u: 128 + 8 * nt + 4 * u
    EC = lambda nt, u: 200 + 16 * nt + 4 * u
    CRING = [40, 48, 24, 32, 56]
    OBUF = [(64, 8), (80, 8), (96, 8), (112, 8), (192, 16), (224, 16)]
    OB = lambda j, s, u: OBUF[(j - 6) % 6][0] + OBUF[(j - 6) % 6][1] * s + 4 * u
    sOP = [None, 96, 97, 98]
    if cfg.stop is None:
        setup = [f"v_add_u32 v{VA[0]}, {-6*SLOT & 0xffffffff}, v{VV[1]}", f"v_add_u32 v{VA[1]}, {-3*SLOT & 0xffffffff}, v{VV[1]}", f"v_mov_b32 v{VA[2]}, v{VV[1]}",
                 f"v_lshlrev_b32 v{VL16}, 4, v1"]
        fill += [(gA + 65, gA + 69, setup)]
        gC = gC0 + 32
        def cgroup(j, n, **kw):
            uk, hh, x = units[j]
            sl = slots[("W", j)][0]
            va, so = VA[sl // 3], (sl % 3) * SLOT
            k = len(G) - (gC0 if j < 2 else gC)
            rg = CRING[k % 4] if k < 32 else CRING[(k - 32) % 5]
            if uk == "E":
                nt, sp = n >> 1, n & 1
                rd = [f"ds_read_b64_tr_b16 {vr(rg+4*s+2*r,2)}, v{va} offset:{so + (2*(2*sp+s)+r)*128 + 32*nt}" for s in range(2) for r in range(2)]
                mf = [mfma(EC(nt, u), rg + 4*s, OF(hh, 2*sp+s, u), first=(hh == 0 and sp == 0 and s == 0)) for u in range(2) for s in range(2)]
            else:
                bf = (lambda s, u: OF(hh, 2*x+s, u)) if uk == "M" else (lambda s, u: OB(j, s, u))
                rd = [f"ds_read_b64_tr_b16 {vr(rg+4*s+2*r,2)}, v{va} offset:{so + (2*s+r)*256 + 32*n}" for s in range(2) for r in range(2)]
                mf = [mfma(MC(n, u), rg + 4*s, bf(s, u), first=(j == 0 and s == 0)) for u in range(2) for s in range(2)]
            need = None
            for name, us in WSET.items():
                if j in us and name not in seen: need = EV[name][0]; seen.add(name)
            b0 = len(G) - (k & 3)
            add(rd, mf, 3 if k < 36 else 4, gate={0: b0 - 6, 1: b0 - 4, 2: b0 - 2, 3: b0}[k & 3] if (k & ~3) in (0, 16) else None, need=need, **kw)
        seen = set(); gU = {}
        for j in range(cfg.merge):
            if j == 2:
                fill += [(gC0, gC0 + 1, [st(5)]), (gC0 + 3, gC0 + 16, softmax(1)), (len(G), len(G) + 1, [st(6)])] + pack_fill(1, len(G))
                pv(1)
            gU[j] = len(G)
            for n in range(2 if j >= cfg.defer else 0, 8): cgroup(j, n, free=FU.get(j) if n == 7 else None)
        gM = len(G)
        nm_ = 18 - cfg.merge
        for tau in (1, 2, 3):
            for j in range(cfg.merge, 18):
                for e in range(2): cgroup(j, 2 * tau + e)
        for j in range(min(cfg.defer, cfg.merge), 18):
            for e in range(2): cgroup(j, e)
        def o_loads(j):
            uk, hh, x = units[j]
            return [f"s_add_u32 s{48 + j % 6}, s{sOP[1 + x % 3]}, {WS_O + hh*8192 + (x // 3)*4096}"] + \
                   [f"buffer_load_dwordx4 {vr(OB(j, i >> 1, i & 1), 4)}, v{VL16}, {srd(SWS)}, s{48 + j % 6} offen offset:{i*1024} {cfg.pol_o}" for i in range(4)]
        for k in range(4):
            num, p0 = EV[f"OP{k}"]; lab = f"L_rdy{num}"
            def chk(lab=lab, num=num):
                S(f"v_readfirstlane_b32 s64, v{VPR2}")
                for x in swar(64, num): S(x)
                S(f"s_cbranch_scc0 {lab}")
                S.label(lab + "_ok")
                S.cold += spin_block(lab, lab + "_ok", VPR2, VZ, 0, 64, num, 0)
            fill += [(gC + p0 - 2, gC + p0 - 1, [f"ds_read_b32 v{VPR2}, v{VZ}"]), (gC + p0, gC + p0 + 1, [chk])]
            for i in range(3):
                j = 6 + 3 * k + i
                first = {6: 16, 7: 16, 8: 24, 9: 24, 10: 48, 11: 48}.get(j, 8 * (j - 5))
                a = max(p0 + 1 + cfg.ostep * i, first)
                fill += [(gC + a, gC + a + 2, o_loads(j) if "noold" not in cfg.dbg else ["s_nop 0"])]
                if j == 9: fill += [(gC + a + 2, gC + a + 3, [lambda: signal(F_OI), "s_wakeup"])]
        VMASK, GR = 12, 64
        tagprep = [f"s_and_b32 s72, s{S_NONCE}, 1", f"s_lshl_b32 s73, s{S_NONCE}, 15", "s_and_b32 s73, s73, 0x10000", "s_or_b32 s72, s72, s73",
                   f"v_mov_b32 v{VMASK}, 0xfffefffe"]
        def tpack(base, n):
            o = []
            for k in range(n): o += [f"v_cvt_pk_bf16_f32 v{base+k}, v{base+2*k}, v{base+2*k+1}", f"v_and_or_b32 v{base+k}, v{base+k}, v{VMASK}, s72"]
            return o
        dx = list(tagprep)
        for u in range(2):
            for m_ in range(2):
                for k in range(4):
                    d, a = EC(2*m_, u) + k, EC(2*m_ + (k >> 1), u) + 2 * (k & 1)
                    dx += [f"v_cvt_pk_bf16_f32 v{d}, v{a}, v{a+1}", f"v_and_or_b32 v{d}, v{d}, v{VMASK}, s72"]
        for gm in range(4):
            dx.append(f"buffer_store_dwordx4 {vr(EC(2*(gm & 1), gm >> 1),4)}, v{VL16}, {srd(SWS)}, s99 offen offset:{gm*1024} {cfg.pol_sd}")
        def dsend(tau):
            o = []
            tp = tpack(128 + 16*tau, 8)
            for e in range(2):
                o += tp[8*e:8*e+8]
                o.append(f"buffer_store_dwordx4 {vr(128+16*tau+4*e,4)}, v{VL16}, {srd(SWS)}, s{(100, 101, 57)[tau-1]} offen offset:{e*1024} {cfg.pol_sd}")
            return o
        daddr = [f"v_and_b32 v2, 15, v1", "v_mul_u32_u24 v2, 2304, v2", "v_bfe_u32 v3, v1, 4, 1", "v_lshl_add_u32 v2, v3, 5, v2", "v_lshrrev_b32 v3, 5, v1", "v_lshl_add_u32 v2, v3, 4, v2",
                 "v_mov_b32 v6, 0x10001", "v_mov_b32 v4, 0x3f80", "v_mov_b32 v5, 0x3f800000"]
        q = 2 * nm_
        w = min(q - 1, 6)
        fill += [(gC + cfg.dxpos, gC + cfg.dxpos + 8, dx),
                 (gC + cfg.dxgo, gC + cfg.dxgo + 1, [lambda: signal(F_DX), "s_wakeup"]), (gM + 1, gM + 6, daddr), (gM + q + 1, gM + q + 1 + w, dsend(1)), (gM + 2*q + 1, gM + 2*q + 1 + w, dsend(2)), (gM + 3*q + 1, gM + 3*q + 1 + w, dsend(3))]
        if cfg.mst:
            fill += [(gC + int(x), gC + int(x) + 1, [lambda i=i: stamp(S, cfg, 1 + i, True)]) for i, x in enumerate(cfg.mst.split(","))]
        if cfg.cdetail > 0:
            fill += [((gC if j > 1 else gC0) + 8*j, (gC if j > 1 else gC0) + 8*j + 1, [lambda i=j - (cfg.cdetail - 1): stamp(S, cfg, 1 + i, True)]) for j in range(18) if 0 <= j - (cfg.cdetail - 1) < 12]
    if cfg.adetail:
        fill += [(16*c, 16*c + 1, [lambda c=c: stamp(S, cfg, 1 + c, True)]) for c in range(9)]
        if cfg.stop != "A": fill += [(gA + 32*i, gA + 32*i + 1, [lambda i=i: stamp(S, cfg, 10 + i, True)]) for i in range(3)]
    queue = []
    frees, due = {}, {}
    for gi, g in enumerate(G):
        if g["need"] is not None and not cfg.nocheck:
            lab = f"L_rdy{g['need']}"
            steps = [f"v_readfirstlane_b32 s69, v{VPR}"] + swar(69, g["need"])
            at = max(0, len(queue) - cfg.probe_ahead)
            pg = queue[at][0] if at < len(queue) else g["gate"]
            queue.insert(at, (pg, "r", f"ds_read_b32 v{VPR}, v{VZ}"))
            queue.append((g["gate"], "r", steps[0]))
            queue.append((g["gate"], "gap", None))
            def chk(lab=lab, need=g["need"], steps=steps):
                for x in steps[1:]: S(x)
                S(f"s_cbranch_scc0 {lab}")
                S.label(lab + "_ok")
                S.cold += spin_block(lab, lab + "_ok", VPR, VZ, 0, 69, need, 0)
            queue.append((g["gate"], "c", chk))
        if g["bar"]:
            for _ in range(cfg.bargap): queue.append((g["gate"], "gap", None))
            def br():
                S.wait_lg(0); S("s_barrier")
            queue.append((g["gate"], "c", br))
        for k, r in enumerate(g["reads"]):
            queue.append((g["gate"], "r", (r, f"g{gi}") if k == len(g["reads"]) - 1 else r))
        if g["free"] is not None and not cfg.nofree:
            def fr(gi=gi, f=g["free"]):
                S.wait_lg_tag(f"g{gi}")
                signal(f)
                if cfg.wake: due[m + 2] = lambda: S("s_wakeup")
            frees[f"g{gi}"] = fr
    nm = [len(g["mf"]) for g in G]
    pos = [sum(nm[:i]) for i in range(len(G) + 1)]
    fl = {}
    for (g0, g1, ins) in fill:
        a, b = pos[g0], pos[g1]
        for k, x in enumerate(ins): fl.setdefault(a + (k * (b - a)) // len(ins), []).append(x)
    if tail_fill: fl.setdefault(pos[tail_fill[0]] - 1, []).extend(tail_fill[1])
    S("s_barrier")
    stamp(S, cfg, 1)
    m = 0
    def issue(q):
        emit(S, q[2])
        if isinstance(q[2], tuple) and q[2][1] in frees: due[m + cfg.free_delay] = frees[q[2][1]]
    for gi, g in enumerate(G):
        last_tag = f"g{gi}"
        while any(isinstance(q[2], tuple) and q[2][1] == last_tag for q in queue):
            q = queue.pop(0)
            if q[1] != "gap": issue(q)
        if g.get("wait4"): S.wait_lg_tag(f"g{gi+3}")
        if cfg.gwait2 and "wait4" not in g and gi % 2 == 0: S.wait_lg_tag(f"g{gi+1}")
        if cfg.gwait: S.wait_lg_tag(last_tag)
        for k, mf in enumerate(g["mf"]):
            S(mf)
            if m in due: due.pop(m)()
            n = 0
            while queue and n < 2 and queue[0][0] <= gi:
                q = queue[0]
                if q[1] == "gap": queue.pop(0); break
                if n >= 1 and q[0] == gi and q[1] == "r": break
                queue.pop(0); issue(q); n += 1
            for x in fl.get(m, []): emit(S, x)
            m += 1
    assert not queue
    while due: due.pop(min(due))()
    if cfg.stop == "A":
        stamp(S, cfg, 2)
        for x in pack(QP(1), 192): S(x)
        S(f"s_lshl_b32 s66, s2, 16\ns_lshl_b32 s67, s{S_W}, 14\ns_add_u32 s66, s66, s67\nv_lshlrev_b32 v{VOST}, 4, v1\nv_add_u32 v{VOST}, s66, v{VOST}")
        for i in range(16):
            S(f"s_mov_b32 s66, {i*1024}")
            S(f"buffer_store_dwordx4 {vr(64+4*i,4)}, v{VOST}, {srd(SWS)}, s66 offen")
        S.wait_vm(0); stamps_store(S, cfg); S("s_branch L_end"); return
    if cfg.stop == "B":
        stamp(S, cfg, 6)
        op1, done1 = o_pack(1)
        for x in op1 + [done1]: emit(S, x)
        S.wait_vm(0); stamp(S, cfg, 7); stamps_store(S, cfg); S("s_branch L_end"); return
    stamp(S, cfg, 7)
    S(f"s_mov_b32 s77, {SPIN_LIMIT}")
    S.label("L_d")
    for i in range(6):
        S(f"buffer_load_dwordx4 {vr(GR+4*i,4)}, v{VL16}, {srd(SWS)}, s{74 + i//4} offen offset:{(i%4)*1024} sc1")
    S(f"v_xor_b32 v7, s72, v{GR}")
    for i in range(1, 24): S(f"v_bitop3_b32 v7, v7, v{GR+i}, s72 bitop3:0xf6")
    S("v_and_b32 v7, v7, v6\nv_cmp_eq_u32 vcc, 0, v7\ns_cmp_eq_u64 vcc, -1\ns_cbranch_scc1 L_d_ok")
    S("s_sub_u32 s77, s77, 1\ns_cmp_lg_u32 s77, 0\ns_cbranch_scc1 L_d")
    S.label("L_d_ok")
    stamp(S, cfg, 9)
    for i in range(24): S(f"v_and_b32 v{GR+i}, v{VMASK}, v{GR+i}")
    for tau in range(3):
        for u in range(2):
            for e in range(2):
                for x in range(2):
                    src = GR + 8 * tau + 4*e + 2*u + x; a = MC(e, u) + 2 * x
                    if cfg.dot2: S(f"v_dot2c_f32_bf16 v{a}, v{src}, v4\nv_dot2c_f32_bf16 v{a+1}, v{src}, v5")
                    else: S(f"v_lshlrev_b32 v8, 16, v{src}\nv_and_b32 v9, 0xffff0000, v{src}\nv_add_f32 v{a}, v{a}, v8\nv_add_f32 v{a+1}, v{a+1}, v9")
    if cfg.dot2: S("s_nop 2")
    GS = 48
    for u in range(2):
        for e in range(2):
            for x in range(2):
                S(f"v_cvt_pk_bf16_f32 v{GS+4*u+2*e+x}, v{MC(e,u)+2*x}, v{MC(e,u)+2*x+1}")
    for u in range(2):
        for x in range(2): S(f"v_permlane16_swap_b32 v{GS+4*u+x}, v{GS+4*u+2+x}")
    for u in range(2):
        S(f"buffer_store_dwordx4 {vr(GS+4*u,4)}, v2, {srd(SOUT)}, s{70+u} offen {cfg.pol_out}")
    if cfg.stamps:
        S.wait_vm(0); stamp(S, cfg, 10)
    stamps_store(S, cfg)
    S("s_branch L_end")

Cfg.dxwait = 17
H7 = "bA7 wK0 warm bA8 wK1 V1 wV0 W0 W1 W2 RWA W3 W4 W5 wV1 W6 W7 W8 w2 W9 W10 P0 S0 S1 RWB G0 G1 W11 W12 W13 W14 W15 W16 W17 "
H8 = "warm bA7 wK0 bA8 V0 wK1 W0 W1 wV0 V1 RWA W2 W3 W4 W5 W6 wV1 P0 S0 S1 RWB G0 G1 W7 W8 W9 W10 W11 W12 W13 W14 W15 W16 W17 "
H9 = "K1 bA7 wK0 bA8 V0 wK1 warm wV0 V1 W0 W1 RWA W2 W3 W4 W5 W6 wV1 P0 S0 S1 RWB G0 G1 W7 W8 W9 W10 W11 W12 W13 W14 W15 W16 W17 "
TA = "P1 S2 q0 ROP0 q1 ROP1 G2 f18 S3 RWC G3 w9 w10 w11 RWD q2 ROP2 q3 ROP3 RWE"
TB = "P1 S2 S3 q0 ROP0 q1 ROP1 G2 G3 RWC RWD q2 ROP2 q3 ROP3 RWE"
TD = "q0 ROP0 q1 ROP1 P1 S2 S3 RWC G2 G3 w9 w10 w11 RWD q2 ROP2 q3 ROP3 RWE"
TE = "q0 ROP0 q1 ROP1 P1 f18 S2 S3 RWC G2 G3 w9 w10 w11 RWD q2 ROP2 q3 ROP3 RWE"
HA = "bA7 wK0 warm bA8 wK1 V1 wV0 W0 W1 W2 RWA W3 W4 W5 wV1 W6 W7 W8 w2 W9 W10 W11 W12 P0 S0 S1 RWB W13 W14 W15 W16 W17 G0 G1 "
HB = "K1 bA7 wK0 bA8 V0 wK1 warm wV0 V1 W0 W1 RWA W2 W3 W4 W5 W6 wV1 P0 S0 S1 W7 W8 W9 W10 RWB G0 G1 "
TF = "q0 ROP0 q1 ROP1 P1 f18 S2 S3 W11 W12 W13 RWC G2 G3 W14 W15 W16 W17 w9 w10 w11 RWD q2 ROP2 q3 ROP3 RWE"
TG = "P1 q0 ROP0 q1 ROP1 f18 S2 S3 RWC G2 G3 w9 w10 w11 RWD q2 ROP2 q3 ROP3 RWE"
PROGS = {h + x: H + T for h, H in (("7", H7), ("8", H8), ("9", H9), ("A", HA)) for x, T in (("a", TA), ("b", TB), ("d", TD), ("e", TE), ("g", TG))}
HC = "bA7 wK0 warm bA8 wK1 V1 wV0 W0 W1 W2 RWA W3 W4 W5 wV1 W6 W7 W8 w2 W9 W10 W11 W12 P0 S0 S1 RWB G0 G1 W13 W14 W15 W16 W17 "
HD = "K1 bA7 wK0 bA8 V0 wK1 warm wV0 V1 W0 W1 RWA W2 W3 W4 W5 W6 wV1 W7 W8 P0 S0 S1 RWB G0 G1 W9 W10 W11 W12 W13 W14 W15 W16 W17 "
HE = "warm bA7 wK0 bA8 V0 wK1 W0 W1 wV0 V1 RWA W2 W3 W4 W5 W6 wV1 W7 W8 W9 W10 P0 S0 S1 RWB G0 G1 W11 W12 W13 W14 W15 W16 W17 "
TH = "q0 ROP0 q1 ROP1 w7 w8 P1 w9 w10 f18 S2 S3 RWC w11 RWD G2 G3 q2 ROP2 q3 ROP3 RWE"
TI = "q0 ROP0 q1 ROP1 P1 f18 S2 S3 RWC w9 w10 w11 G2 G3 RWD q2 ROP2 q3 ROP3 RWE"
TJ = "q0 ROP0 q1 ROP1 w7 w8 P1 S2 w9 w10 f18 S3 RWC G2 w11 RWD G3 q2 ROP2 q3 ROP3 RWE"
HF = "bA7 wK0 warm bA8 wK1 V1 wV0 f10 W0 W1 W2 RWA wV1 f12 W5 W6 P0 S0 S1 W3 W4 G0 G1 RWB "
HG = "warm bA7 wK0 bA8 V0 wK1 wV0 V1 f10 W0 W1 W2 RWA wV1 f12 W5 W6 P0 S0 S1 W3 W4 G0 G1 RWB "
HH = "K1 bA7 wK0 bA8 V0 wK1 warm wV0 V1 f10 W0 W1 W2 RWA wV1 f12 W5 W6 P0 S0 S1 W3 W4 G0 G1 RWB "
TK = "q0 ROP0 q1 ROP1 f15 W7 W8 P1 W9 W10 f18 W11 S2 S3 RWC f19 W12 W13 G2 G3 RWD q2 ROP2 q3 ROP3 f20 W14 W15 W16 W17 RWE"
TL = "q0 ROP0 q1 ROP1 f15 W7 W8 P1 S2 W9 W10 f18 W11 S3 RWC G2 f19 W12 W13 G3 RWD q2 ROP2 f20 W14 W15 W16 W17 q3 ROP3 RWE"
TM = "q0 ROP0 q1 ROP1 f15 W7 W8 P1 S2 S3 W9 W10 f17 W11 RWC G2 G3 f19 W12 W13 RWD q2 ROP2 f20 W14 W15 W16 W17 q3 ROP3 RWE"
for h, H in (("F", HF), ("G", HG), ("H", HH)):
    for x, T in (("k", TK), ("l", TL), ("m", TM)): PROGS[h + x] = H + T
HI = "warm bA7 wK0 bA8 D0 wK1 W3 W4 W5 W6 D1 pV0 f10 W0 W1 W2 W11 W12 W13 RWA pV1 W14 W15 W16 W17 P0 S0 S1 RWB G0 G1 "
HJ = "warm bA7 wK0 bA8 D0 wK1 W3 W4 W5 W6 D1 pV0 f10 W0 W1 W2 W7 W8 W9 RWA pV1 W10 W11 W12 W13 P0 S0 S1 RWB G0 G1 W14 W15 W16 W17 "
TN = "q0 ROP0 q1 ROP1 f15 W7 W8 P1 W9 W10 f18 S2 S3 RWC w11 RWD G2 G3 q2 ROP2 q3 ROP3 RWE"
TO = "q0 ROP0 q1 ROP1 f15 W7 W8 P1 S2 W9 W10 f18 S3 RWC G2 w11 RWD G3 q2 ROP2 q3 ROP3 RWE"
PROGS["In"] = HI + TN; PROGS["Io"] = HI + TO; PROGS["Jh"] = HJ + TH; PROGS["Jj"] = HJ + TJ
PROGS["Kn"] = PROGS["In"].replace("warm bA7 wK0 bA8 D0 wK1", "K1 bA7 wK0 bA8 D0 wK1 warm")
HL = "warm bA7 wK0 bA8 D0 wK1 D1 pV0 f10 W0 W1 W2 W3 W4 W5 W6 RWA pV1 W7 W8 W9 W10 W11 W12 W13 P0 S0 S1 RWB G0 G1 W14 W15 W16 W17 "
HM = "warm bA7 wK0 bA8 D0 wK1 W3 W4 D1 pV0 f10 W0 W1 W2 W5 W6 RWA W7 W8 pV1 W9 W10 W11 W12 P0 S0 S1 RWB G0 G1 W13 W14 W15 W16 W17 "
PROGS["Lh"] = HL + TH; PROGS["Mh"] = HM + TH; PROGS["Lj"] = HL + TJ
HN = "warm bA7 wK0 bA8 D0 wK1 D1 pV0 f10 W0 W1 W2 W9 W10 W11 RWA W12 W13 pV1 W14 W15 W16 W17 f12 W5 W6 P0 S0 S1 W3 W4 G0 G1 RWB "
PROGS["N1"] = HN + "q0 ROP0 q1 ROP1 f15 W7 W8 P1 w9 w10 f18 S2 S3 RWC w11 RWD G2 G3 q2 ROP2 q3 ROP3 RWE"
PROGS["N2"] = HN.replace("W9 W10 ", "") + "q0 ROP0 q1 ROP1 f15 W7 W8 P1 W9 W10 f18 S2 S3 RWC w11 RWD G2 G3 q2 ROP2 q3 ROP3 RWE"
PROGS["N3"] = HN.replace("W14 W15 W16 W17 ", "") + "q0 ROP0 q1 ROP1 f15 W7 W8 P1 w9 w10 f18 S2 S3 RWC w11 RWD G2 G3 q2 ROP2 f20 W14 W15 W16 W17 q3 ROP3 RWE"
PROGS["N4"] = HN + "q0 ROP0 q1 ROP1 f15 W7 W8 P1 f18 S2 S3 RWC w9 w10 w11 G2 G3 RWD q2 ROP2 q3 ROP3 RWE"
PROGS["E2"] = PROGS_E2 = None
PROGS["S0"] = ("warm bA7 wK0 bA8 V0 wK1 W0 W1 W2 W3 wV0 V1 W4 W5 RWA W6 W7 W8 wV1 W9 W10 P0 S0 S1 RWB G0 G1 W11 W12 W13 W14 W15 W16 W17 " + TH)
PROGS["S1"] = ("warm bA7 wK0 bA8 W0 W1 W2 W3 wK1 V0 W4 W5 wV0 RWA W6 W7 V1 W8 W9 W10 wV1 P0 W11 W12 S0 S1 RWB G0 G1 W13 W14 W15 W16 W17 " + TH)
PROGS["S2"] = ("warm bA7 wK0 bA8 W0 W1 W2 W3 wK1 V0 W4 W5 wV0 RWA W6 W7 V1 W8 W9 W10 wV1 P0 S0 S1 RWB G0 G1 W11 W12 W13 W14 W15 W16 W17 " + TH)
PROGS["S3"] = ("warm bA7 wK0 bA8 V0 wK1 W0 W1 W2 W3 wV0 V1 W4 W5 RWA W6 W7 W8 wV1 W9 W10 P0 S0 S1 RWB G0 G1 W11 W12 W13 W14 W15 W16 W17 " + TJ.replace("P1 S2 w9 w10 f18 S3", "P1 S2 S3 w9 w10"))
for h, H in (("C", HC), ("D", HD), ("E", HE)):
    for x, T in (("h", TH), ("i", TI), ("j", TJ)): PROGS[h + x] = H + T
PROGS["E2"] = PROGS["Eh"].replace("warm bA7 wK0 bA8 V0 wK1", "warm bA7 V0 bA8 wK0 wK1")
PROGS["E3"] = PROGS["Eh"].replace("warm bA7 wK0 bA8 V0 wK1", "bA7 wK0 bA8 V0 warm wK1")
PROGS["E5"] = PROGS["Eh"].replace("warm bA7 wK0 bA8 V0 wK1 W0 W1 wV0 V1", "warm bA7 wK0 bA8 V1 wK1 W0 W1 wV0")
PROGS["E6"] = PROGS["Eh"].replace("warm bA7 wK0 bA8 V0 wK1 W0 W1 wV0 V1", "bA7 wK0 bA8 V0 wK1 W0 W1 wV0 V1")
PROGS["E7"] = PROGS["Eh"].replace("P0 S0 S1 RWB G0 G1 W11", "P0 S0 S1 G0 G1 RWB W11")
PROGS["E8"] = PROGS["Eh"].replace("W7 W8 W9 W10 P0 S0 S1 RWB G0 G1 W11 W12 W13 W14", "W7 W8 W9 W10 W11 W12 P0 S0 S1 RWB G0 G1 W13 W14")
PROGS["F1"] = PROGS["Eh"].replace("q0 ROP0 q1 ROP1 w7 w8 P1 w9 w10 f18 S2 S3 RWC w11 RWD G2 G3", "w7 w8 q0 ROP0 q1 ROP1 P1 w9 w10 f18 S2 S3 RWC w11 RWD G2 G3")
PROGS["F2"] = PROGS["Eh"].replace("f18 S2 S3 RWC w11 RWD G2 G3", "f18 S2 S3 RWC w11 G2 G3 RWD")
PROGS["F3"] = PROGS["Eh"].replace("P1 w9 w10 f18 S2 S3 RWC w11 RWD G2 G3", "P1 w9 f18 S2 S3 RWC w10 w11 G2 RWD G3")
PROGS["F4"] = PROGS["Eh"].replace("q2 ROP2 q3 ROP3 RWE", "q2 ROP2 w14 w15 q3 ROP3 RWE")
PROGS["G1"] = PROGS["F2"].replace("q2 ROP2 q3 ROP3 RWE", "q2 ROP2 w14 w15 q3 ROP3 RWE")
PROGS["G2"] = PROGS["F2"].replace("RWD q2 ROP2 q3 ROP3 RWE", "RWD w14 w15 q2 ROP2 w16 w17 q3 ROP3 RWE")
PROGS["G3"] = PROGS["G1"].replace("f18 S2 S3 RWC w11 G2 G3 RWD", "f18 S2 S3 RWC G2 G3 w11 RWD")
PROGS["G4"] = PROGS["G1"].replace("w7 w8 P1 w9 w10 f18 S2 S3 RWC w11", "w7 P1 w8 w9 f18 S2 S3 RWC w10 w11")
PROGS["G5"] = PROGS["G1"].replace("G0 G1 W11 W12 W13 W14 W15 W16 W17 q0 ROP0 q1 ROP1", "G0 G1 W11 W12 W13 W14 q0 ROP0 q1 ROP1 W15 W16 W17")
PROGS["E4"] = PROGS["Eh"].replace("warm bA7 wK0 bA8 V0 wK1 W0 W1 wV0 V1", "V0 bA7 wK0 bA8 warm wK1 wV0 V1 W0 W1")
Cfg.prog = "F2"

def gen(cfg):
    hdr = open(REF).read().split("; Override launch")[0].rstrip("\n")
    launch = [f"; @launch grid=(256,1,1) block=(512,1,1) lds={LDS_BYTES}"]
    if cfg.amp >= 0:
        launch = [f"; @launch kernel={NAME} grid=(256,1,1) block=(512,1,1) lds={LDS_BYTES}", "; @launch kernel=amp_kernel grid=(1,1,1) block=(64,1,1) lds=0"]
    if cfg.pre or cfg.post:
        launch = [f"; @launch kernel={NAME} grid=(256,1,1) block=(512,1,1) lds={LDS_BYTES}"]
        if cfg.pre: launch = [f"; @launch kernel=aux_kernel grid=({cfg.pre},1,1) block=(64,1,1) lds=0"] + launch
        if cfg.post: launch += [f"; @launch kernel=aux_kernel grid=({cfg.post},1,1) block=(64,1,1) lds=0"]
    doc = """; One launch, 256 workgroups (one per CU), 8 waves: waves 0-3 compute (32 query rows each), waves 4-7 move data.
; Workgroup g: block = g>>2&1, K quarter kq = g&3, batch = g>>3&7, p = g>>6; heads 8kq+2p, 8kq+2p+1.
;  A  Q^T = wq^T x^T (two heads, k in nine 64-deep chunks through a 3-slot LDS ring, barriers)
;  B  S^T = K Q^T, softmax with the true row maximum, O^T = V^T P^T (row sums by an MFMA with a matrix of ones)
;  C  out^T partial over the quarter's 8 heads: 128 columns per workgroup, O of the three other head pairs comes through d_ws
;     (write-through stores, then a flag carrying this launch's tag); the last 64 columns are done on the own heads only
;  D  partial sums are exchanged as bf16 through d_ws and added in fp32; their lowest bits carry the launch tag and are dropped
; Waves of a workgroup signal each other with progress bytes in LDS words 0 (data ready) and 1 (LDS space free).
; The launch tag is (word found in d_ws) + 1, handed out through d_debug by workgroup 0. All waits are bounded.""".split("\n")
    L = [hdr] + launch + doc + ['.amdgcn_target "amdgcn-amd-amdhsa--gfx950"',
         ".text", f".globl {NAME}", ".p2align 8", f".type {NAME},@function", f"{NAME}:"]
    P = Stream("pro"); prologue(P, cfg); L += P.finish()
    Ld = Stream("loader"); Ld.smem_pending = True; Ld.progname = cfg.prog; loader(Ld, cfg); L += Ld.finish()
    if cfg.prog2:
        import re
        n0 = len(SITES)
        L2 = Stream("loader2"); L2.smem_pending = True; L2.progname = cfg.prog2; loader(L2, cfg)
        body = L2.finish(); body = body[body.index("L_fork:"):]
        ren = lambda x: re.sub(r"\b(L_(?!end\b)\w+)", r"\1_c1", x)
        L += [ren(x) for x in body]
        Ld.cold += [ren(x if isinstance(x, str) else "    " + x.text) for x in L2.cold[L2.ncold:]]
    L.append(".p2align 6")
    C = Stream("compute"); C.smem_pending = True; compute(C, cfg); L += C.finish()
    L.append("L_cold:")
    for s in (Ld, C):
        L += [x if isinstance(x, str) else "    " + x.text for x in s.cold]
    L += ["L_end:", "    s_endpgm", '.section .rodata,"a"', ".p2align 6", f".amdhsa_kernel {NAME}",
          "  .amdhsa_next_free_vgpr 256", "  .amdhsa_next_free_sgpr 102", "  .amdhsa_accum_offset 256",
          "  .amdhsa_group_segment_fixed_size 0", "  .amdhsa_kernarg_size 104", "  .amdhsa_user_sgpr_count 2",
          "  .amdhsa_user_sgpr_kernarg_segment_ptr 1", "  .amdhsa_system_sgpr_workgroup_id_x 1", ".end_amdhsa_kernel", ""]
    if cfg.pre or cfg.post:
        L = L[:-1] + [".text", ".globl aux_kernel", ".p2align 8", ".type aux_kernel,@function", "aux_kernel:", "    s_endpgm",
              '.section .rodata,"a"', ".p2align 6", ".amdhsa_kernel aux_kernel", "  .amdhsa_next_free_vgpr 8", "  .amdhsa_next_free_sgpr 16", "  .amdhsa_accum_offset 8",
              "  .amdhsa_group_segment_fixed_size 0", "  .amdhsa_kernarg_size 104", "  .amdhsa_user_sgpr_count 2",
              "  .amdhsa_user_sgpr_kernarg_segment_ptr 1", "  .amdhsa_system_sgpr_workgroup_id_x 1", ".end_amdhsa_kernel", ""]
    if cfg.amp >= 0:
        Am = Stream("amp")
        Am(f"""s_cmp_ge_u32 s2, 1
        s_cbranch_scc1 amp_end
        s_memrealtime s[24:25]
        s_load_dwordx2 s[4:5], s[0:1], 96
        s_mov_b32 s10, {WS_SIZE}
        s_mov_b32 s11, 0x20000
        s_waitcnt lgkmcnt(0)
        s_mov_b32 s8, s4
        s_and_b32 s9, s5, 0xffff
        v_lshlrev_b32 v1, 9, v0
        s_mov_b32 s12, {WS_STAMP + 64 * cfg.ampw}""")
        for i in range(4):
            Am(f"s_add_u32 s13, s12, {i*64*512}")
            Am(f"buffer_load_dword v{4+i}, v1, s[8:11], s13 offen offset:56")
            Am(f"buffer_load_dword v{8+i}, v1, s[8:11], s13 offen offset:{4*(cfg.amp if cfg.amp < 100 else 15)}")
        Am("v_min_u32 v4, v4, v5\nv_min_u32 v6, v6, v7\nv_min_u32 v4, v4, v6\nv_max_u32 v8, v8, v9\nv_max_u32 v10, v10, v11\nv_max_u32 v8, v8, v10")
        Am("s_mov_b32 s14, -1\ns_mov_b32 s15, 0")
        for l in range(64):
            Am(f"v_readlane_b32 s16, v4, {l}\nv_readlane_b32 s17, v8, {l}\ns_nop 3\ns_min_u32 s14, s14, s16\ns_max_u32 s15, s15, s17")
        if cfg.amp == 100: Am("s_mov_b32 s14, s15\ns_mov_b32 s15, s24")
        if cfg.amp == 101:
            Am(f"s_add_u32 s4, s4, {WS_STAMP - 64}\ns_addc_u32 s5, s5, 0\ns_load_dword s26, s[4:5], 0\ns_waitcnt lgkmcnt(0)\ns_mov_b32 s15, s14\ns_mov_b32 s14, s26")
        if cfg.amp == 102: Am("s_mov_b32 s15, s14")
        Am("s_sub_u32 s14, s15, s14\ns_min_u32 s14, s14, 20000\ns_mul_i32 s14, s14, 10\ns_memrealtime s[18:19]\ns_waitcnt lgkmcnt(0)")
        Am.label("amp_spin")
        Am("s_sleep 2\ns_memrealtime s[20:21]\ns_waitcnt lgkmcnt(0)\ns_sub_u32 s22, s20, s18\ns_cmp_lt_u32 s22, s14\ns_cbranch_scc1 amp_spin")
        Am.label("amp_end")
        Am("s_endpgm")
        L = L[:-1]
        L += [".text", ".globl amp_kernel", ".p2align 8", ".type amp_kernel,@function", "amp_kernel:"] + Am.finish()
        L += [".globl pre_kernel", ".p2align 8", ".type pre_kernel,@function", "pre_kernel:",
              "s_cmp_ge_u32 s2, 1", "s_cbranch_scc1 pre_end", "s_load_dwordx2 s[4:5], s[0:1], 96", f"s_mov_b32 s10, {WS_SIZE}", "s_mov_b32 s11, 0x20000", "s_waitcnt lgkmcnt(0)",
              "s_mov_b32 s8, s4", "s_and_b32 s9, s5, 0xffff", "v_mov_b32 v1, 0", "s_memrealtime s[12:13]", "s_waitcnt lgkmcnt(0)", "v_mov_b32 v2, s12", f"s_mov_b32 s14, {WS_STAMP - 64}",
              "buffer_store_dword v2, v1, s[8:11], s14 offen", "pre_end:", "s_endpgm"]
        L += ['.section .rodata,"a"', ".p2align 6", ".amdhsa_kernel pre_kernel", "  .amdhsa_next_free_vgpr 32", "  .amdhsa_next_free_sgpr 32", "  .amdhsa_accum_offset 32",
              "  .amdhsa_group_segment_fixed_size 0", "  .amdhsa_kernarg_size 104", "  .amdhsa_user_sgpr_count 2",
              "  .amdhsa_user_sgpr_kernarg_segment_ptr 1", "  .amdhsa_system_sgpr_workgroup_id_x 1", ".end_amdhsa_kernel"]
        L += ['.section .rodata,"a"', ".p2align 6", ".amdhsa_kernel amp_kernel", "  .amdhsa_next_free_vgpr 32", "  .amdhsa_next_free_sgpr 32", "  .amdhsa_accum_offset 32",
              "  .amdhsa_group_segment_fixed_size 0", "  .amdhsa_kernarg_size 104", "  .amdhsa_user_sgpr_count 2",
              "  .amdhsa_user_sgpr_kernarg_segment_ptr 1", "  .amdhsa_system_sgpr_workgroup_id_x 1", ".end_amdhsa_kernel", ""]
    if cfg.align:
        from align import align
        k0 = L.index(f"{NAME}:"); k1 = L.index("L_end:") + 2
        body, nprom, npad = align(L[k0:k1], "L_compute", "L_cold", cfg.align == 2)
        L = L[:k0] + body + L[k1:]
        sys.stderr.write(f"align: promoted {nprom} padded {npad}\n")
    sys.stderr.write(f"nops: loader {Ld.nops} compute {C.nops}\n")
    return "\n".join(L)

if __name__ == "__main__":
    cfg = Cfg()
    out = sys.argv[1]
    for a in sys.argv[2:]:
        k, val = a.split("=", 1)
        cur = getattr(Cfg, k)
        if isinstance(cur, bool): val = val in ("1", "true", "True")
        elif isinstance(cur, int): val = int(val)
        elif val == "None": val = None
        if k.startswith("pol_"): val = val.replace("+", " ")
        setattr(cfg, k, val)
    open(out, "w").write(gen(cfg))
    open(out + ".sites", "w").write(" ".join(map(str, SITES)))
```

```python
import sys, math, struct
from sched import Stream, Ins

NAME = "concat_heads__mha_block_cached__gqa_block_cached__near_ridge_kernel"
REF = "concat_heads__mha_block_cached__gqa_block_cached__near_ridge.s.ref"
SLOT = 17408
PITCH = 1056
LB = 512
LDS_BYTES = LB + 9 * SLOT
def slot(i): return LB + i * SLOT
WS_O, WS_D, WS_DX, WS_FLAG, WS_EPOCH, WS_STAMP = 0, 16 << 20, 32 << 20, 40 << 20, 41 << 20, 48 << 20
WS_SIZE = 64 << 20
SPIN_LIMIT = 1 << 18

def f32(x): return struct.unpack("<I", struct.pack("<f", x))[0]
def vr(n, c=1): return f"v{n}" if c == 1 else f"v[{n}:{n+c-1}]"
def mfma(d, a, b, first=False):
    return f"v_mfma_f32_16x16x32_bf16 {vr(d,4)}, {vr(a,4)}, {vr(b,4)}, {'0' if first else vr(d,4)}"
def _raw(text): return [Ins(l.strip()) if not l.strip().endswith(":") else l.strip() for l in text.split("\n") if l.strip()]
def emit(S, x):
    if callable(x): x()
    elif isinstance(x, tuple): S(*x)
    else: S(x)

SX, SWQ, SK, SV, SWO, SWS, SOUT, SDBG = 8, 12, 16, 20, 24, 28, 32, 36
def srd(n): return f"s[{n}:{n+3}]"
S_BLK, S_KQ, S_B, S_P, S_H0, S_W, S_NONCE, S_C = 40, 41, 42, 43, 44, 45, 46, 47

R_K0, R_K1, R_V0, R_WA, R_V1, R_U = 9, 10, 11, 12, 13, 14
F_QK0, F_QK1, F_PV0, F_O0, F_PV1, F_O1 = 10, 11, 12, 13, 15, 16
F_OI, F_DX = 18, 21
FU = {1: 14, 2: 17, 4: 19, 8: 20}
WSET = {"WA": (0, 1), "WB": (2, 3, 4, 5, 6), "WC": (7, 8), "WD": (9, 10, 11, 12, 13), "WE": (14, 15, 16, 17)}
def c_events(cfg):
    pos = {"WB": 12, "WC": 52, "WD": 68, "WE": 8 * min(14, cfg.merge) - 4}
    for k, x in enumerate(cfg.opos.split(",")): pos[f"OP{k}"] = int(x)
    ev = {n: (R_U + i, pos[n]) for i, n in enumerate(sorted(pos, key=lambda n: pos[n]))}
    ev["WA"] = (R_WA, -12)
    return ev

class Cfg:
    pol_x = ""; pol_wq = ""; pol_kv = "nt"; pol_wo = ""
    stop = None
    stamps = False; real = False; adetail = False; cdetail = 0
    ngrp = 3; rotp = 1; rotk = 3
    k0pos = 1; k0cls = 4; kvwait = 4
    codepf = True
    order = "blk"
    flag0 = -5; flag0b = 4; o1pos = 16; flag1 = 44; flag1b = 60; dxpos = 56
    amp = -1; ampw = 0
    probe_ahead = 8
    free_delay = 7
    trace = False
    tlb = 255
    cpf = "5"
    cpfop = ""
    tlbpos = 1
    tlbmode = "dense"
    tlbpos2 = 3
    diagsleep = 0
    tlbwo = 1
    tlboff = 0
    pol_st = "sc1"
    pol_sd = "sc1"
    gwait2 = False
    mst = ""
    prog2 = ""
    defer = 12
    dot2 = True
    wprio2 = 0
    dbg = ""
    spoll = True
    blead = 7
    pk = False
    pol_out = ""
    pre = 0
    post = 0
    align = 0
    dxgo = 96
    opos = "28,29,86,93"
    ostep = 2
    pol_o = "sc1"
    pfilter = ""
    o1end = 10
    merge = 14
    dxsleep = 8
    akv = "0:1:4,1:2:4:3"
    o1len = 30
    ptrace = False
    early0 = 72
    warmpos = -1
    k1pos = -1
    warmrot = 3
    wprio = 0
    bargap = 4
    abar = True
    cbar = 6
    nocheck = False
    nofree = False
    alead = 4
    nodma = False
    lprio = 3
    lsleep = 5
    wake = True
    gwait = True
    early = False
    trace_from = 0

def stamp(S, cfg, idx, det=False):
    if not cfg.stamps: return
    if (cfg.cdetail or cfg.adetail) and idx not in (0, 13) and not det: return
    S(f"{'s_memrealtime' if cfg.real else 's_memtime'} s[78:79]")
    S("s_waitcnt lgkmcnt(0)")
    S(f"s_mov_b32 s{80+idx}, s78")

SITES = []
def trace_raw(cfg, who, ident):
    if not cfg.trace or len(SITES) >= 128: return ""
    if cfg.ptrace and not isinstance(ident, str): return ""
    k = len(SITES); SITES.append(ident)
    return f"{'s_memrealtime' if cfg.real else 's_memtime'} s[78:79]\ns_waitcnt lgkmcnt(0)\nv_writelane_b32 v{250 + (k >> 6)}, s78, {k & 63}\n"
def stamps_store(S, cfg):
    if not cfg.stamps: return
    S("s_memrealtime s[78:79]\ns_waitcnt lgkmcnt(0)\ns_mov_b32 s95, s78")
    stamp(S, cfg, 13)
    S(f"s_lshl_b32 s66, s2, 3\ns_add_u32 s66, s66, s3\ns_lshl_b32 s66, s66, 6\ns_add_u32 s66, s66, {WS_STAMP}")
    S("v_mov_b32 v2, 0")
    S("s_mov_b64 exec, 1")
    for i in range(16):
        S(f"v_mov_b32 v3, s{80+i}")
        S(f"buffer_store_dword v3, v2, {srd(SWS)}, s66 offen offset:{4*i}")
    S("s_mov_b64 exec, -1")

def prologue(S, cfg):
    S(f"""s_cmp_ge_u32 s2, 256
    s_cbranch_scc1 L_end
    s_bfe_u32 s{S_BLK}, s2, 0x10002
    s_mul_i32 s66, s{S_BLK}, 40
    s_add_u32 s4, s0, s66
    s_addc_u32 s5, s1, 0
    s_load_dwordx8 s[48:55], s[4:5], 0""")
    if cfg.stamps:
        S(f"s_memrealtime s[6:7]\n{'s_memrealtime' if cfg.real else 's_memtime'} s[92:93]")
    S(f"""v_lshrrev_b32 v2, 6, v0
    v_and_b32 v1, 63, v0
    s_load_dwordx2 s[56:57], s[4:5], 32
    v_readfirstlane_b32 s3, v2
    s_load_dwordx4 s[60:63], s[0:1], 80
    s_load_dwordx2 s[64:65], s[0:1], 96
    s_and_b32 s{S_KQ}, s2, 3
    s_bfe_u32 s{S_B}, s2, 0x30003
    s_lshr_b32 s{S_P}, s2, 6
    s_lshl2_add_u32 s{S_H0}, s{S_KQ}, s{S_P}
    s_lshl_b32 s{S_H0}, s{S_H0}, 1
    s_and_b32 s{S_W}, s3, 3
    s_cmp_lt_u32 s3, 4
    s_cbranch_scc1 L_compute""")
def first_stamps(S, cfg):
    if cfg.stamps:
        S("s_mov_b32 s80, s92\ns_mov_b32 s94, s6")
        for i in range(1, 14): S(f"s_mov_b32 s{80+i}, 0")
SRD_SIZE = {SX: 1179648, SWQ: 4718592, SK: 8388608, SV: 8388608, SWO: 4718592, SWS: WS_SIZE, SOUT: 2359296, SDBG: 256}
def srd_consts(S, which):
    for d in which: S(f"s_mov_b32 s{d+2}, {SRD_SIZE[d]}\ns_mov_b32 s{d+3}, 0x20000")
def srd_bases(S, which):
    for d, p in ((SX, 48), (SWQ, 54), (SK, 50), (SV, 52), (SWO, 56), (SWS, 64), (SOUT, 60), (SDBG, 62)):
        if d in which: S(f"s_mov_b32 s{d}, s{p}\ns_and_b32 s{d+1}, s{p+1}, 0xffff")

def nonce_issue(S, vt, vz):
    S(f"buffer_load_dword v{vt}, v{vz}, {srd(SDBG)}, 0 offen sc1")
def nonce_check(S, vt, vz, lab):
    S(f"v_readfirstlane_b32 s{S_NONCE}, v{vt}")
    S(f"s_cmp_eq_u32 s{S_NONCE}, 0\ns_cbranch_scc1 {lab}")
    S.label(f"{lab}_ok")
    S.cold += _raw(f"""{lab}:
    s_mov_b32 s77, {SPIN_LIMIT}
    {lab}_spin:
    buffer_load_dword v{vt}, v{vz}, {srd(SDBG)}, 0 offen sc1
    s_waitcnt vmcnt(0)
    v_readfirstlane_b32 s{S_NONCE}, v{vt}
    s_nop 4
    s_cmp_lg_u32 s{S_NONCE}, 0
    s_cbranch_scc1 {lab}_ok
    s_sleep 2
    s_sub_u32 s77, s77, 1
    s_cmp_lg_u32 s77, 0
    s_cbranch_scc1 {lab}_spin
    s_branch {lab}_ok""")

def swar(s, need):
    return [f"s_or_b32 s{s}, s{s}, 0x80808080", f"s_sub_u32 s{s}, s{s}, {need * 0x01010101}", f"s_andn2_b32 s{s}, 0x80808080, s{s}", f"s_cmp_eq_u32 s{s}, 0"]
def spin_block(lab, back, vt, vz, off, sreg, need, sleep):
    return _raw(f"""{lab}:
    s_mov_b32 s77, {SPIN_LIMIT}
    {lab}_spin:
    ds_read_b32 v{vt}, v{vz} offset:{off}
    s_waitcnt lgkmcnt(0)
    v_readfirstlane_b32 s{sreg}, v{vt}
    s_nop 3
    """ + "\n".join(swar(sreg, need)) + f"""
    s_cbranch_scc1 {back}
    {'s_sleep ' + str(sleep) if sleep else ''}
    s_sub_u32 s77, s77, 1
    s_cmp_lg_u32 s77, 0
    s_cbranch_scc1 {lab}_spin
    s_branch {back}""")

def c_units():
    u = [("M", 0, 0), ("M", 0, 1), ("E", 0, 0), ("M", 1, 0), ("M", 1, 1), ("E", 1, 0)]
    for hh in (0, 1):
        for ii in range(6): u.append(("P", hh, ii))
    return u
def c_slots():
    sl = [(0, F_QK0), (1, F_QK0), (8, 9), (2, F_O0), (3, F_O0), (4, F_PV0), (5, F_PV0), (6, F_PV1), (7, F_PV1),
          (0, F_O1), (1, F_O1), (8, FU[2]), (2, FU[4]), (3, FU[4]), (4, FU[8]), (5, FU[8]), (6, FU[8]), (7, FU[8])]
    return {("W", j): sl[j] for j in range(18)}

def pack(dst, src):
    return [f"v_cvt_pk_bf16_f32 v{dst+8*s+4*u+2*e+x}, v{src+8*(2*s+e)+4*u+2*x}, v{src+8*(2*s+e)+4*u+2*x+1}" for s in range(4) for u in range(2) for e in range(2) for x in range(2)]
PAY = [0, 1, 2, 4, 5, 6, 8, 9]

def loader(S, cfg):
    VXO, VWO, VKV, VKW, VVW, VMO, VEO, VOO, VFL, VWW, VN, VZ, VP0, VPA, VT = 4, 5, 6, 7, 8, 9, 10, 11, 12, 13, 14, 15, 16, 18, 19
    KVREG = [24, 56, 88, 120]
    sXb, sWb, sCC, sM, sMo, sT, sKV0, sKV1, sA = 66, 67, 68, 69, 70, 71, 72, 73, 75
    sWP, sOP = [65, 96, 97, 98], [62, 99, 100, 101]
    S(f"""s_lshl_b32 s{sT}, s{S_W}, 2
    v_and_b32 v2, 0x38, v1
    v_lshl_add_u32 v2, v2, 1, s{sT}
    v_mul_u32_u24 v3, 1152, v2
    v_and_b32 v20, 7, v1
    v_lshl_add_u32 v{VXO}, v20, 4, v3
    s_lshl_b32 s76, s{S_W}, 3
    s_lshl1_add_u32 s76, s{S_W}, s76
    s_and_b32 s76, s76, 12
    v_and_b32 v2, 32, v1
    v_lshlrev_b32 v2, 12, v2
    v_and_b32 v20, 31, v1
    v_lshl_add_u32 v{VWO}, v20, 4, v2
    s_lshl_b32 s76, s76, 13
    s_mul_i32 s{sM}, s{sT}, {PITCH}
    s_lshl_b32 s75, s{S_H0}, 8
    s_add_u32 s75, s75, s76""")
    n = cfg.ngrp
    if cfg.order == "rot": orders = [[(round(9 * g / n) + c) % 9 for c in range(9)] for g in range(n)]
    else: orders = [[(c // n) * n + (c + g) % n if (c // n + 1) * n <= 9 else c for c in range(9)] for g in range(n)]
    tabs = [sum(x << (4 * i) for i, x in enumerate(o)) for o in orders]
    gtab = sum((i % n) << (2 * i) for i in range(16))
    S(f"""s_mul_i32 s76, s{S_P}, {cfg.rotp}
    s_add_u32 s76, s76, s{S_B}
    s_and_b32 s77, s{S_KQ}, {cfg.rotk}
    s_add_u32 s76, s76, s77
    s_lshl_b32 s76, s76, 1
    s_lshr_b32 s76, {gtab}, s76
    s_and_b32 s76, s76, 3
    s_mov_b32 s58, {tabs[0] & 0xffffffff}
    s_mov_b32 s59, {tabs[0] >> 32}""")
    for g in range(1, n):
        S(f"s_cmp_eq_u32 s76, {g}\ns_cselect_b32 s58, {tabs[g] & 0xffffffff}, s58\ns_cselect_b32 s59, {tabs[g] >> 32}, s59")
    S(f"s_mul_i32 s74, s{S_B}, 147456")
    srd_consts(S, (SX, SWQ))
    S("s_waitcnt lgkmcnt(0)")
    srd_bases(S, (SX, SWQ))
    def chunk(c, mid=None):
        base = slot((c % 3) * 3)
        S(f"""s_and_b32 s{sCC}, s58, 15
        s_lshr_b64 s[58:59], s[58:59], 4
        s_lshl_b32 s{sXb}, s{sCC}, 7
        s_add_u32 s{sXb}, s{sXb}, s74
        s_lshl_b32 s{sWb}, s{sCC}, 19
        s_add_u32 s{sWb}, s{sWb}, s75""")
        for i in range(4):
            S(f"s_add_u32 m0, s{sM}, {base + i*(PITCH-1152)}")
            S(f"buffer_load_dwordx4 v{VXO}, {srd(SX)}, s{sXb} offen offset:{i*1152} {cfg.pol_x} lds", tag=f"ch{c}")
        if mid: mid()
        for st in range(2):
            for i in range(4):
                S(f"s_add_u32 m0, s{sM}, {base + SLOT*(1+st) + i*PITCH}\ns_add_u32 s{sT}, s{sWb}, {(32*st+i)*8192}")
                S(f"buffer_load_dwordx4 v{VWO}, {srd(SWQ)}, s{sT} offen {cfg.pol_wq} lds", tag=f"ch{c}")
    def kv_lines(m):
        sr = SK if m < 2 else SV
        sb = sKV0 if m % 2 == 0 else sKV1
        o = [f"s_add_u32 s{sT}, s{sb}, 4096"]
        for j in range(8):
            o.append((f"buffer_load_dwordx4 {vr(KVREG[m]+4*j,4)}, v{VKV}, {srd(sr)}, s{sb if j < 4 else sT} offen offset:{(j&3)*1024} {cfg.pol_kv}", f"kv{m}"))
        return o
    def kv_load(m):
        for x in kv_lines(m): emit(S, x)
    def v_dma(m, sl):
        sb = sKV0 if m % 2 == 0 else sKV1
        S(f"""v_lshrrev_b32 v2, 4, v1
        v_lshlrev_b32 v2, 13, v2
        v_and_b32 v3, 15, v1
        v_lshl_add_u32 v2, v3, 4, v2
        s_lshl_b32 s76, s{S_W}, 11
        s_add_u32 s{sT}, s{sb}, s76
        s_lshl_b32 s76, s{sM}, 1""")
        for j in range(8):
            S(f"s_add_u32 m0, s76, {slot(sl) + j*(PITCH-256)}")
            S(f"buffer_load_dwordx4 v2, {srd(SV)}, s{sT} offen offset:{j*256} {cfg.pol_kv} lds", tag=f"kv{m}")
    def cond(lab, cls, mask, lines, pre=""):
        S(f"s_and_b32 s76, s{S_B}, {mask}\ns_cmp_lg_u32 s76, {cls}\ns_cbranch_scc1 {lab}")
        S.out += _raw(pre + "\n".join(x[0] if isinstance(x, tuple) else x for x in lines))
        S.label(lab)
    def kv_load_if(m, cls, ncls, pre=""):
        cond(f"L_kv{m}_{cls}", cls, ncls - 1, kv_lines(m), pre)
        if cls == ncls - 1: S.phantom([f"v{KVREG[m]+i}" for i in range(32)], f"kv{m}")
    def warm_lines():
        return f"""s_lshl_b32 s76, s{S_KQ}, 3
        s_add_u32 s76, s76, s{S_B}
        s_lshl_b32 s76, s76, 2
        s_add_u32 s76, s76, s{S_W}
        s_mul_i32 s76, s76, {32*1152}
        s_lshl_b32 s77, s{S_P}, 8
        s_add_u32 s76, s76, s77
        v_lshrrev_b32 v20, 1, v1
        v_mul_u32_u24 v20, 1152, v20
        v_and_b32 v3, 1, v1
        v_lshl_add_u32 v20, v3, 7, v20
        buffer_load_dword v22, v20, {srd(SWO)}, s76 offen {cfg.pol_wo}
        s_lshl_b32 s76, s{S_B}, 2
        s_add_u32 s76, s76, s{S_W}
        s_mul_i32 s76, s76, {8*1152}
        s_add_u32 s76, s76, s64
        v_and_b32 v21, 7, v1
        v_mul_u32_u24 v21, 1152, v21
        buffer_load_dword v23, v21, {srd(SWO)}, s76 offen offset:1024 {cfg.pol_wo}""".split("\n")
    def kv_write(m, sl):
        S.wait_vm_tag(f"kv{m}")
        S(f"s_setprio {cfg.wprio}")
        if "nolw" in cfg.dbg: return
        if m < 2:
            for j in range(8):
                S(f"v_add_u32 v2, {slot(sl) + j*4*PITCH}, v{VKW}")
                S(f"ds_write2_b64 v2, {vr(KVREG[m]+4*j,2)}, {vr(KVREG[m]+4*j+2,2)} offset0:0 offset1:2")
        else:
            S(f"v_add_u32 v2, {slot(sl)}, v{VVW}")
            for j in range(8):
                S(f"ds_write_b128 v2, {vr(KVREG[m]+4*j,4)} offset:{j*4*PITCH}")
    known = [0]; last_pub = [0]
    def wait_free(f, early=None):
        if f <= known[0]: return
        known[0] = f
        if cfg.nofree:
            S("s_sleep 5"); return
        lab = f"L_wf{f}"
        S.wait_lg(0)
        if cfg.trace and f >= cfg.trace_from: S(trace_raw(cfg, "loader", 100 + f))
        S(f"s_setprio {cfg.lprio}\nds_read_b32 v{VT}, v{VZ} offset:4\nv_readfirstlane_b32 s76, v{VT}")
        for x in swar(76, f): S(x)
        S(f"s_cbranch_scc0 {lab}")
        S.label(lab + "_ok")
        S("s_setprio 0")
        if cfg.trace and f >= cfg.trace_from: S(trace_raw(cfg, "loader", 200 + f))
        blk = spin_block(lab, lab + "_ok", VT, VZ, 4, 76, f, cfg.lsleep)
        if early and cfg.early: blk = blk[:1] + _raw(f"s_waitcnt vmcnt(0)\ns_mov_b32 s63, {early}\nv_mov_b32 v{VT}, {early}\nds_write_b8 v{VPA}, v{VT}\n" + (trace_raw(cfg, "loader", 400 + early) if f >= cfg.trace_from else "")) + blk[1:]
        S.cold += blk
    def publish(r):
        last_pub[0] = r
        S.wait_lg(0)
        S(f"s_setprio {cfg.lprio}\nv_mov_b32 v{VT}, {r}\nds_write_b8 v{VPA}, v{VT}\ns_setprio 0")
        if cfg.trace and known[0] >= cfg.trace_from: S(trace_raw(cfg, "loader", 300 + r))
        if cfg.adetail and r <= 12: stamp(S, cfg, r, True)
        if cfg.cdetail > 0 and 0 <= r - R_U < 12: stamp(S, cfg, 1 + r - R_U, True)
    chunk(0)
    first_stamps(S, cfg)
    stamp(S, cfg, 1)
    srd_consts(S, (SK, SV, SWO, SWS, SOUT, SDBG))
    srd_bases(S, (SK, SV, SWO, SWS, SOUT, SDBG))
    S(f"s_add_u32 s50, s64, {WS_FLAG}\ns_addc_u32 s51, s65, 0")
    if cfg.trace: S("s_mov_b32 s92, 0\nv_mov_b32 v250, 0\nv_mov_b32 v251, 0")
    if cfg.codepf:
        S(f"""s_getpc_b64 s[76:77]
        L_pc:
        s_lshr_b32 s{sT}, s2, 3
        s_lshl_b32 s{sT}, s{sT}, 2
        s_add_u32 s{sT}, s{sT}, s{S_W}
        s_mul_i32 s{sT}, s{sT}, 3
        v_min_u32 v2, 2, v1
        v_add_u32 v2, s{sT}, v2
        v_lshlrev_b32 v2, 7, v2
        v_min_u32 v2, L_end-L_pc, v2
        global_load_dword v23, v2, s[76:77]""")
    S(f"""v_mov_b32 v{VZ}, 0
    v_lshl_add_u32 v{VPA}, v1, 2, 64
    v_writelane_b32 v{VPA}, s{S_W}, 0
    v_add_u32 v{VEO}, 1024, v{VXO}
    s_lshl_b32 s76, s{S_W}, 13
    v_lshlrev_b32 v{VOO}, 4, v1
    v_add_u32 v{VKV}, s76, v{VOO}
    v_add_u32 v{VWW}, s{sM}, v{VOO}
    s_lshl_b32 s{sKV0}, s{S_B}, 5
    s_add_u32 s{sKV0}, s{sKV0}, s{S_H0}
    s_lshl_b32 s{sKV0}, s{sKV0}, 15
    s_add_u32 s{sKV1}, s{sKV0}, 32768
    v_lshrrev_b32 v2, 4, v1
    v_mul_u32_u24 v20, {PITCH}, v2
    s_lshl_b32 s76, s{S_W}, 8
    v_add_u32 v20, s76, v20
    v_and_b32 v3, 15, v1
    v_lshl_add_u32 v{VVW}, v3, 4, v20
    v_bfe_u32 v3, v1, 2, 2
    v_lshl_add_u32 v20, v3, 6, v20
    v_and_b32 v3, 1, v1
    v_lshl_add_u32 v20, v3, 5, v20
    v_bfe_u32 v3, v1, 1, 1
    v_lshl_add_u32 v{VKW}, v3, 3, v20""")
    for pi in range(4):
        d = sWP[pi]
        S(f"""s_add_u32 s76, s{S_P}, {pi}
        s_and_b32 s76, s76, 3
        s_lshl_b32 s77, s{S_KQ}, 2
        s_add_u32 s77, s77, s76
        s_mul_i32 s77, s77, {256*1152}
        s_lshl_b32 s{d}, s{S_P}, 8
        s_add_u32 s{d}, s{d}, s77""")
        if pi == 0: S("s_mov_b32 s64, s77")
        if True:
            S(f"""s_lshl_b32 s76, s76, 6
            s_and_b32 s77, s2, 63
            s_add_u32 s76, s76, s77
            s_lshl_b32 s76, s76, 2
            s_add_u32 s76, s76, s{S_W}
            s_lshl_b32 s{sOP[pi]}, s76, 14""")
            if pi: S(f"s_lshl_b32 s{54+pi}, s76, 8")
    npf = [0]
    def code_touch():
        npf[0] += 1
        lab = f"L_pc{npf[0]}"
        S.out += _raw(f"""s_getpc_b64 s[52:53]
        {lab}:
        s_sub_u32 s52, s52, {lab}-L_pc
        s_subb_u32 s53, s53, 0
        s_lshr_b32 s76, s2, 3
        s_lshl2_add_u32 s76, s76, s{S_W}
        s_lshl_b32 s76, s76, 6""")
        for i in range(6):
            S.out += _raw(f"s_min_u32 s77, s76, L_end-L_pc\ns_load_dword s61, s[52:53], s77\ns_add_u32 s76, s76, 8192")
        S.smem_pending = True; S.lg.append(set())
    def tlb_touch(batch=0):
        def touch(bit, base, lines):
            if cfg.tlb & bit: S.out += _raw(lines + f"\ns_load_dword s60, s[{base}:{base+1}], s76")
        mode = cfg.tlbmode
        if batch == 0:
            touch(1, SV, f"s_lshl_b32 s76, s{S_W}, 14\ns_add_u32 s76, s76, s{sKV0}")
            touch(2, SK, f"s_lshl_b32 s76, s{S_W}, 14\ns_add_u32 s76, s76, s{sKV0}")
            if mode == "v1":
                for i in range(5):
                    touch(4, SWO, f"s_mul_i32 s76, s{S_KQ}, {1024*1152}\ns_lshl_b32 s77, s{S_W}, 16\ns_add_u32 s76, s76, s77\ns_add_u32 s76, s76, {i << 18}\ns_min_u32 s76, s76, {4718592 - 4}")
            else:
                touch(4, SWO, f"s_lshr_b32 s77, s2, 3\ns_lshl2_add_u32 s77, s77, s{S_W}\ns_mul_i32 s77, s77, {1179648 // 128}\ns_mul_i32 s76, s{S_KQ}, {1024*1152}\ns_add_u32 s76, s76, s77")
            if mode == "lite":
                touch(8, SWS, f"s_lshl_b32 s77, s{S_W}, 6\ns_add_u32 s77, s77, s2\ns_and_b32 s77, s77, 255\ns_lshl_b32 s76, s77, 16")
                touch(16, SWS, f"s_lshl_b32 s76, s77, 10\ns_add_u32 s76, s76, {WS_FLAG + 128}")
            else:
                for pi in range(4): touch(8, SWS, f"s_mov_b32 s76, s{sOP[pi]}")
                touch(16, SWS, f"s_lshr_b32 s76, s{sOP[0]}, 6\ns_add_u32 s76, s76, {WS_FLAG}")
            touch(32, SWS, f"s_andn2_b32 s76, s2, 3\ns_add_u32 s76, s76, s{S_W}\ns_mul_i32 s76, s76, {4*6144}\ns_add_u32 s76, s76, {WS_D}")
            touch(64, SWS, f"s_lshl3_add_u32 s76, s{S_BLK}, s{S_B}\ns_lshl2_add_u32 s76, s76, s{S_W}\ns_lshl_b32 s76, s76, 16\ns_add_u32 s76, s76, {WS_DX}")
            touch(128, SOUT, f"s_lshl2_add_u32 s76, s{S_B}, s{S_W}\ns_mul_i32 s76, s76, {32*2304}")
            if mode == "dense":
                for i in range(1, 4):
                    touch(64, SWS, f"s_lshl3_add_u32 s76, s{S_BLK}, s{S_B}\ns_lshl2_add_u32 s76, s76, s{S_W}\ns_lshl_b32 s76, s76, 16\ns_add_u32 s76, s76, {WS_DX + i*16384}")
        else:
            for i in range(1, 4): touch(128, SOUT, f"s_lshl2_add_u32 s76, s{S_B}, s{S_W}\ns_mul_i32 s76, s76, {32*2304}\ns_add_u32 s76, s76, {i*8*2304}")
            for pi in range(1, 4): touch(16, SWS, f"s_lshr_b32 s76, s{sOP[pi]}, 6\ns_add_u32 s76, s76, {WS_FLAG + 128}")
            for i in range(1, 3): touch(32, SWS, f"s_andn2_b32 s76, s2, 3\ns_add_u32 s76, s76, s{S_W}\ns_mul_i32 s76, s76, {4*6144}\ns_add_u32 s76, s76, {WS_D + i*8192}")
            for i in range(1, 4):
                touch(1, SV, f"s_lshl_b32 s76, s{S_W}, 14\ns_add_u32 s76, s76, s{sKV0}\ns_add_u32 s76, s76, {i*4096}")
                touch(8, SWS, f"s_add_u32 s76, s{sOP[0]}, {i*4096}")
        S.smem_pending = True; S.lg.append(set())
    if cfg.tlb and cfg.tlbpos == -1: tlb_touch()
    S.wait_vm(9 if cfg.codepf else 8)
    chunk(1)
    S.wait_vm_tag("ch0")
    stamp(S, cfg, 2)
    S("s_barrier")
    def pubch(c):
        S.wait_vm_tag(f"ch{c}"); publish(c)
    chunk(2, None if cfg.abar else (lambda: pubch(1)))
    S(f"""v_lshlrev_b32 v2, 4, v2
    s_lshl_b32 s76, s{S_W}, 2
    v_add_u32 v2, s76, v2
    v_mul_u32_u24 v2, 1152, v2
    s_lshl_b32 s76, s{S_KQ}, 6
    v_add_u32 v3, s76, v{VOO}
    v_and_b32 v3, 0xff, v3
    v_add_u32 v{VMO}, v2, v3
    v_min_u32 v2, 2, v1
    v_add3_u32 v2, v2, s{S_P}, 1
    v_and_b32 v2, 3, v2
    v_lshlrev_b32 v2, 6, v2
    s_and_b32 s76, s2, 63
    v_add_u32 v2, s76, v2
    v_lshlrev_b32 v2, 2, v2
    v_add_u32 v2, s{S_W}, v2
    v_lshlrev_b32 v{VFL}, 8, v2
    s_lshl_b32 s{sMo}, s{S_W}, 12""")
    if cfg.tlb and cfg.tlbpos == 0: tlb_touch()
    if cfg.diagsleep: S(f"s_sleep {cfg.diagsleep}")
    for c in range(1, 7):
        if cfg.abar:
            S.wait_vm_tag(f"ch{c}"); stamp(S, cfg, c, cfg.adetail) if cfg.adetail else None; S("s_barrier"); known[0] = c
        else:
            wait_free(c, c + 1)
            pubch(c + 1)
        if c == 4: nonce_issue(S, VN, VZ)
        if not cfg.nodma: chunk(c + 2)
        if str(c) in cfg.cpf.split(","): code_touch()
        if cfg.tlb and cfg.tlbpos == c: tlb_touch()
        if cfg.tlb and cfg.tlbmode == "dense" and c == cfg.tlbpos2: tlb_touch(1)
        for item in cfg.akv.split(","):
            what, first, ncls, rot = (item.split(":") + ["0"])[:4]
            first, ncls, rot = int(first), int(ncls), int(rot)
            if not 0 <= c - first < ncls: continue
            cond(f"L_a{what}_{c}", (c - first + rot) % ncls, ncls - 1, warm_lines() if what == "w" else kv_lines(int(what)), f"s_waitcnt vmcnt({cfg.kvwait})\n")
            if what != "w" and c - first == ncls - 1: S.phantom([f"v{KVREG[int(what)]+i}" for i in range(32)], f"kv{what}")
    nonce_check(S, VN, VZ, "L_ln")
    units, slots = c_units(), c_slots()
    def w_src(j):
        uk, hh, x = units[j]
        if uk == "M": return VMO, 65, (hh * 128 + 64 * x) * 1152
        if uk == "E": return VEO, 64, hh * 128 * 1152
        return VMO, sWP[1 + x % 3], (hh * 128 + 64 * (x // 3)) * 1152
    blocks = [152 + 16 * i for i in range(6)]
    parked = {}
    def w_load(j):
        va, sb, off = w_src(j)
        S(f"s_add_u32 s{sA}, s{sb}, {off}")
        if slots[("W", j)][1] <= known[0] and (j not in (3, 4, 9, 10) or (j > 4) in picked):
            lds_w.add(j)
            for i in range(4):
                S(f"s_add_u32 m0, s{sM}, {slot(slots[('W', j)][0]) + i*(PITCH-1152)}")
                S(f"buffer_load_dwordx4 v{va}, {srd(SWO)}, s{sA} offen offset:{i*1152} {cfg.pol_wo} lds", tag=f"u{j}")
        else:
            parked[j] = blocks.pop(0)
            for i in range(4 if "nopark" not in cfg.dbg else 0):
                S(f"buffer_load_dwordx4 {vr(parked[j]+4*i,4)}, v{va}, {srd(SWO)}, s{sA} offen offset:{i*1152} {cfg.pol_wo}", tag=f"u{j}w")
    lds_w = set()
    def w_write(j):
        assert j not in (3, 4, 9, 10) or (j > 4) in picked
        wait_free(slots[("W", j)][1])
        lds_w.add(j)
        S.wait_vm_tag(f"u{j}w")
        S(f"s_setprio {cfg.wprio if j < 7 else cfg.wprio2}\nv_add_u32 v2, {slot(slots[('W', j)][0])}, v{VWW}")
        for i in range(4 if not ("now" in cfg.dbg and j > 6 or "nolw" in cfg.dbg) else 0): S(f"ds_write_b128 v2, {vr(parked[j]+4*i,4)} offset:{i*PITCH}")
        S.wait_lg(0)
        S("s_setprio 0")
        blocks.append(parked.pop(j))
    def warm():
        for x in warm_lines(): S(x)
    issued, polled = set(), set()
    EV = c_events(cfg)
    def poll_issue(hh):
        issued.add(hh)
        S(f"s_mov_b32 s76, {WS_FLAG}")
        S(f"buffer_load_dword v{VP0 + (hh & 1)}, v{VFL}, {srd(SWS)}, s76 offen offset:{64*hh} sc1")
    def poll(hh):
        lab = f"L_poll{hh}"
        polled.add(hh)
        if "nopoll" in cfg.dbg: return
        if cfg.spoll:
            S.wait_lg(0)
            S(f"s_mov_b32 s77, {SPIN_LIMIT}")
            S.label(lab)
            S.out += _raw("\n".join(f"s_load_dword s{52+i}, s[50:51], s{55+i} offset:{64*hh} glc" for i in range(3)) + f"""
            s_waitcnt lgkmcnt(0)
            s_xor_b32 s52, s52, s{S_NONCE}
            s_xor_b32 s53, s53, s{S_NONCE}
            s_xor_b32 s54, s54, s{S_NONCE}
            s_or_b32 s52, s52, s53
            s_or_b32 s52, s52, s54
            s_cbranch_scc0 {lab}_ok
            s_sub_u32 s77, s77, 1
            s_cmp_lg_u32 s77, 0
            s_cbranch_scc1 {lab}""")
            S.label(f"{lab}_ok")
            return
        if hh not in issued: poll_issue(hh)
        v = VP0 + (hh & 1)
        S(f"v_cmp_eq_u32 vcc, s{S_NONCE}, v{v}")
        S(f"s_cmp_eq_u64 vcc, -1\ns_cbranch_scc0 {lab}")
        S.label(f"{lab}_ok")
        S.cold += _raw(f"""{lab}:
        s_mov_b32 s76, {WS_FLAG}
        s_mov_b32 s77, {SPIN_LIMIT}
        {lab}_spin:
        buffer_load_dword v{v}, v{VFL}, {srd(SWS)}, s76 offen offset:{64*hh} sc1
        s_waitcnt vmcnt(0)
        v_cmp_eq_u32 vcc, s{S_NONCE}, v{v}
        s_nop 1
        s_cmp_eq_u64 vcc, -1
        s_cbranch_scc1 {lab}_ok
        s_sub_u32 s77, s77, 1
        s_cmp_lg_u32 s77, 0
        s_cbranch_scc1 {lab}_spin
        s_branch {lab}_ok""")
    oreg, picked = {}, set()
    def pickup(h):
        wait_free((F_O0, F_O1)[h])
        S(f"s_setprio {cfg.lprio}\nv_add_u32 v2, {slot(2 - 2*h)}, v{VWW}")
        for x in range(2):
            oreg[2*h + x] = blocks.pop(0)
            for i in range(4): S(f"ds_read_b128 {vr(oreg[2*h+x] + 4*i, 4)}, v2 offset:{x*SLOT + i*1024}")
        S.wait_lg(0)
        S("s_setprio 0")
        picked.add(h)
    def o_store(k):
        if "nost" in cfg.dbg: return
        S(f"s_add_u32 s{sA}, s{sOP[0]}, {WS_O + k*4096}")
        for i in range(4):
            S(f"buffer_store_dwordx4 {vr(oreg[k] + 4*i, 4)}, v{VOO}, {srd(SWS)}, s{sA} offen offset:{i*1024} {cfg.pol_st}", tag=f"o{k}")
    def o_flag(k):
        S.wait_vm_tag(f"o{k}")
        S(f"""s_lshr_b32 s76, s{sOP[0]}, 6
        s_add_u32 s76, s76, {WS_FLAG + 64*k}
        v_mov_b32 v3, s{S_NONCE}
        buffer_store_dword v3, v{VZ}, {srd(SWS)}, s76 offen sc1""")
        blocks.append(oreg.pop(k))
    def kv_duty(m, sl, f, r):
        wait_free(f); kv_write(m, sl); publish(r)
        blocks.extend([KVREG[m], KVREG[m] + 16])
    if cfg.prog2:
        S(f"s_and_b32 s76, s{S_B}, 1\ns_cmp_lg_u32 s76, 0\ns_cbranch_scc1 L_fork_c1")
        S.label("L_fork")
        S.ncold = len(S.cold)
    prog = PROGS[S.progname].split()
    for after in cfg.cpfop.split(","):
        if after: prog.insert(prog.index(after) + 1, "cpf")
    if cfg.stop == "A": prog = ["bA7", "bA8"] if cfg.abar else ["p8"]
    if cfg.stop == "B": prog = [x for x in prog if x[0] in "KVpPS" or x[:2] in ("wK", "wV", "bA")]
    for op in prog:
        if cfg.ptrace and (not cfg.pfilter or op in cfg.pfilter.split(",")): S(trace_raw(cfg, "loader", op))
        if op in ("K1", "V0", "V1"): kv_load({"K1": 1, "V0": 2, "V1": 3}[op])
        elif "@" in op: kv_load_if({"K1": 1, "V0": 2, "V1": 3}[op[:2]], int(op[3]), 2)
        elif op in ("D0", "D1"):
            m = 2 + int(op[1]); wait_free(8 + int(op[1])); v_dma(m, 4 + 2 * int(op[1])); blocks.extend([KVREG[m], KVREG[m] + 16])
        elif op in ("pV0", "pV1"):
            S.wait_vm_tag(f"kv{2 + int(op[2])}"); publish((R_V0, R_V1)[int(op[2])])
        elif op == "warm": warm()
        elif op == "p8": S.wait_vm_tag("ch8"); publish(8)
        elif op[0] == "b":
            j = int(op[2:])
            S.wait_vm_tag(f"ch{j}"); known[0] = j
            S.wait_lg(0)
            if cfg.adetail: stamp(S, cfg, j, True)
            S("s_barrier")
        elif op == "wK0": kv_duty(0, 0, 7, R_K0)
        elif op == "wK1": kv_duty(1, 2, 8, R_K1)
        elif op == "wV0": kv_duty(2, 4, 8, R_V0)
        elif op == "wV1": kv_duty(3, 6, 9, R_V1)
        elif op[0] == "W": w_load(int(op[1:]))
        elif op[0] == "w": w_write(int(op[1:]))
        elif op[0] == "f": wait_free(int(op[1:]))
        elif op[0] == "q": poll(int(op[1:]))
        elif op[0] == "Q": poll_issue(int(op[1:]))
        elif op[0] == "P": pickup(int(op[1:]))
        elif op[0] == "S": o_store(int(op[1:]))
        elif op[0] == "G": o_flag(int(op[1:]))
        elif op == "cpf": code_touch()
        elif op[0] == "z": S(f"s_sleep {op[1:]}")
        elif op[0] == "R":
            name = op[1:]
            if name in WSET:
                for j in WSET[name]:
                    if j in parked: w_write(j)
                    assert j in lds_w
                    S.wait_vm_tag(f"u{j}")
            else: assert int(name[2]) in polled
            assert EV[name][0] == last_pub[0] + 1, (name, EV, last_pub)
            publish(EV[name][0])
        else: raise ValueError(op)
    stamp(S, cfg, 3)
    if cfg.trace:
        S(f"s_lshl_b32 s66, s2, 2\ns_add_u32 s66, s66, s{S_W}\ns_lshl_b32 s66, s66, 9\ns_add_u32 s66, s66, {WS_STAMP + (1 << 20)}\nv_lshlrev_b32 v2, 2, v1")
        S(f"buffer_store_dword v250, v2, {srd(SWS)}, s66 offen\nbuffer_store_dword v251, v2, {srd(SWS)}, s66 offen offset:256")
    if cfg.stop:
        S.wait_vm(0); stamps_store(S, cfg); S("s_branch L_end"); return
    S(f"s_cmp_lg_u32 s{S_W}, 0\ns_cbranch_scc1 L_lfin")
    R = 64
    S(f"""v_and_b32 v2, 7, v1
    v_bfe_u32 v3, v1, 3, 2
    v_lshl_add_u32 v2, v3, 4, v2
    s_and_b32 s76, s{S_P}, 1
    s_lshl_b32 s76, s76, 3
    v_add_u32 v2, s76, v2
    v_lshlrev_b32 v2, 4, v2
    v_lshrrev_b32 v3, 5, v1
    v_lshl_add_u32 v4, v3, 14, v2
    s_lshl_b32 s{sA}, s{S_BLK}, 3
    s_add_u32 s{sA}, s{sA}, s{S_B}
    s_lshl_b32 s{sA}, s{sA}, 6
    s_add_u32 s{sA}, s{sA}, s{S_KQ}
    s_lshl_b32 s{sA}, s{sA}, 1
    s_lshr_b32 s76, s{S_P}, 1
    s_add_u32 s{sA}, s{sA}, s76
    s_lshl_b32 s{sA}, s{sA}, 11
    s_add_u32 s{sA}, s{sA}, {WS_DX}
    s_and_b32 s72, s{S_NONCE}, 1
    s_lshl_b32 s73, s{S_NONCE}, 15
    s_and_b32 s73, s73, 0x10000
    s_or_b32 s72, s72, s73
    v_mov_b32 v8, 0x10001
""")
    wait_free(F_DX)
    S(f"s_mov_b32 s77, {SPIN_LIMIT}")
    S.label("L_dx")
    for r in range(8):
        S(f"s_add_u32 s{sT}, s{sA}, {r*2*16384}")
        for gm in range(2):
            S(f"buffer_load_dwordx4 {vr(R+8*r+4*gm,4)}, v4, {srd(SWS)}, s{sT} offen offset:{gm*1024} sc1")
    S(f"v_xor_b32 v5, s72, v{R}")
    for i in range(1, 64): S(f"v_bitop3_b32 v5, v5, v{R+i}, s72 bitop3:0xf6")
    S("v_and_b32 v5, v5, v8\nv_cmp_eq_u32 vcc, 0, v5\ns_cmp_eq_u64 vcc, -1\ns_cbranch_scc1 L_dx_ok")
    S("s_sleep 4\ns_sub_u32 s77, s77, 1\ns_cmp_lg_u32 s77, 0\ns_cbranch_scc1 L_dx")
    S.label("L_dx_ok")
    AC = 24
    S("v_mov_b32 v9, 0xfffefffe")
    for i in range(64): S(f"v_and_b32 v{R+i}, v9, v{R+i}")
    for r in range(8):
        for d in range(8):
            src = R + 8 * r + d
            if r == 0:
                S(f"v_lshlrev_b32 v{AC+2*d}, 16, v{src}\nv_and_b32 v{AC+2*d+1}, 0xffff0000, v{src}")
            else:
                S(f"v_lshlrev_b32 v6, 16, v{src}\nv_and_b32 v7, 0xffff0000, v{src}\nv_add_f32 v{AC+2*d}, v{AC+2*d}, v6\nv_add_f32 v{AC+2*d+1}, v{AC+2*d+1}, v7")
    for i in range(8): S(f"v_permlane32_swap_b32 v{AC+i}, v{AC+8+i}")
    for i in range(8): S(f"v_add_f32 v{AC+i}, v{AC+i}, v{AC+8+i}")
    for i in range(4): S(f"v_cvt_pk_bf16_f32 v{44+i}, v{AC+2*i}, v{AC+2*i+1}")
    S(f"""v_and_b32 v2, 7, v1
    s_lshl_b32 s76, s{S_B}, 7
    s_lshl_b32 s77, s{S_KQ}, 5
    s_add_u32 s76, s76, s77
    s_lshl_b32 s77, s{S_P}, 3
    s_add_u32 s76, s76, s77
    v_add_u32 v2, s76, v2
    v_mul_u32_u24 v2, 2304, v2
    v_bfe_u32 v3, v1, 3, 2
    v_lshl_add_u32 v2, v3, 3, v2
    v_lshrrev_b32 v3, 5, v1
    v_lshl_add_u32 v2, v3, 6, v2
    s_mul_i32 s76, s{S_BLK}, 1152
    s_add_u32 s76, s76, 1024
    buffer_store_dwordx2 v[44:45], v2, {srd(SOUT)}, s76 offen {cfg.pol_out}
    buffer_store_dwordx2 v[46:47], v2, {srd(SOUT)}, s76 offen offset:32 {cfg.pol_out}""")
    S.label("L_lfin")
    if cfg.stamps: S("s_waitcnt vmcnt(0)")
    stamps_store(S, cfg)
    S("s_branch L_end")

def compute(S, cfg):
    VX, VW = [4, 5, 6], [7, 8, 9]
    VK, VV, VOST, VZ, VN = [10, 11], [12, 13], 14, 15, 16
    VM, VT, VRC, VPR, VFA, VFT, VPR2 = [16, 17], 19, [[20, 21], [22, 23]], 18, 2, 3, 19
    ONES, LS = 56, [60, 4]
    QP = lambda h: 64 + 32 * h
    SS = lambda h: 128 + 64 * h
    PP = 64
    OF = lambda h, s, u: 96 + 8 * s + 4 * u if h == 0 else 192 + 16 * s + 4 * u
    S.label("L_compute")
    S(f"v_mov_b32 v{VZ}, 0")
    srd_consts(S, (SWS, SOUT, SDBG))
    S("s_waitcnt lgkmcnt(0)")
    first_stamps(S, cfg)
    srd_bases(S, (SWS, SOUT, SDBG))
    S(f"s_or_b32 s66, s2, s3\ns_cmp_lg_u32 s66, 0\ns_cbranch_scc1 L_notag")
    S.out += _raw(f"""s_mov_b32 s66, {WS_EPOCH}
    buffer_load_dword v2, v{VZ}, {srd(SWS)}, s66 offen sc1
    s_waitcnt vmcnt(0)
    v_add_u32 v2, 1, v2
    v_max_u32 v2, 1, v2
    buffer_store_dword v2, v{VZ}, {srd(SWS)}, s66 offen sc1
    buffer_store_dword v2, v{VZ}, {srd(SDBG)}, 0 offen sc1
    s_waitcnt vmcnt(0)""")
    S.label("L_notag")
    S(f"""v_and_b32 v22, 15, v1
    v_lshrrev_b32 v23, 4, v1
    v_mul_u32_u24 v2, {PITCH}, v22
    v_lshl_add_u32 v{VK[0]}, v23, 4, v2
    v_add_u32 v{VK[0]}, {LB}, v{VK[0]}
    v_add_u32 v{VK[1]}, {2*SLOT}, v{VK[0]}
    s_lshl_b32 s66, s{S_W}, 8
    v_add_u32 v{VX[0]}, s66, v{VK[0]}
    v_add_u32 v{VX[1]}, {3*SLOT}, v{VX[0]}
    v_add_u32 v{VX[2]}, {6*SLOT}, v{VX[0]}
    v_bfe_u32 v2, v1, 2, 3
    v_mul_u32_u24 v2, {PITCH}, v2
    v_lshrrev_b32 v3, 5, v1
    v_lshl_add_u32 v2, v3, 9, v2
    v_and_b32 v3, 3, v1
    v_lshl_add_u32 v2, v3, 3, v2
    v_add_u32 v{VW[0]}, {slot(1)}, v2
    v_add_u32 v{VW[1]}, {slot(4)}, v2
    v_add_u32 v{VW[2]}, {slot(7)}, v2
    v_lshrrev_b32 v2, 2, v1
    v_mul_u32_u24 v2, {PITCH}, v2
    v_lshl_add_u32 v2, v3, 3, v2
    v_add_u32 v{VV[0]}, {slot(4)}, v2
    v_add_u32 v{VV[1]}, {slot(6)}, v2
    s_mul_i32 s66, s{S_W}, {4*PITCH}
    s_add_u32 s66, s66, {slot(0)}
    v_lshlrev_b32 v{VOST}, 4, v1
    v_add_u32 v{VOST}, s66, v{VOST}
    s_add_u32 s66, s{S_W}, 4
    v_lshl_add_u32 v{VFA}, v1, 2, 64
    v_writelane_b32 v{VFA}, s66, 0
    s_mov_b32 s{S_C}, {f32(math.log2(math.e) / math.sqrt(128.0))}
    s_mov_b32 s58, s{S_C}
    s_mov_b32 s59, s{S_C}""")
    for pi in range(1, 4):
        S(f"s_add_u32 s66, s2, {64*pi}\ns_and_b32 s66, s66, 255\ns_lshl2_add_u32 s66, s66, s{S_W}\ns_lshl_b32 s{95+pi}, s66, 14")
        S(f"s_add_u32 s66, s{S_KQ}, {pi}\ns_and_b32 s66, s66, 3\ns_andn2_b32 s67, s2, 3\ns_add_u32 s66, s66, s67\ns_lshl2_add_u32 s66, s66, s{S_W}\ns_mul_i32 s66, s66, 6144\ns_add_u32 s{(100, 101, 57)[pi-1]}, s66, {WS_D + (pi-1)*2048}")
    S(f"""s_lshl3_add_u32 s66, s{S_BLK}, s{S_B}
    s_lshr_b32 s67, s{S_H0}, 1
    s_lshl4_add_u32 s66, s66, s67
    s_lshl2_add_u32 s66, s66, s{S_W}
    s_lshl_b32 s66, s66, 12
    s_add_u32 s99, s66, {WS_DX}
    s_lshl2_add_u32 s74, s2, s{S_W}
    s_mul_i32 s74, s74, 6144
    s_add_u32 s74, s74, {WS_D}
    s_add_u32 s75, s74, 4096
    s_lshl2_add_u32 s70, s{S_B}, s{S_W}
    s_mul_i32 s70, s70, {32*2304}
    s_mul_i32 s71, s{S_BLK}, 1152
    s_add_u32 s70, s70, s71
    s_lshl2_add_u32 s71, s{S_P}, s{S_KQ}
    s_lshl_b32 s71, s71, 6
    s_add_u32 s70, s70, s71
    s_add_u32 s71, s70, {16*2304}""")
    G = []
    def add(reads, mf, lead, need=None, free=None, gate=None, bar=False):
        G.append(dict(reads=reads, mf=mf, gate=len(G) - lead if gate is None else gate, need=need, free=free, bar=bar))
    ACC = lambda t, u: 128 + 8 * t + 4 * u
    ARING = [96, 104, 112, 120, 56]
    XF = lambda c, s, u: 24 + 16 * (c & 1) + 8 * s + 4 * u
    for c in range(9):
        for t in range(16):
            rg = ARING[len(G) % 5]
            rd = [f"ds_read_b64_tr_b16 {vr(rg+4*s+2*r,2)}, v{VW[c%3]} offset:{s*SLOT + r*8*PITCH + 32*t}" for s in range(2) for r in range(2)]
            if t == 0: rd = [f"ds_read_b128 {vr(XF(c,s,u),4)}, v{VX[c%3]} offset:{128*u + 64*s}" for s in range(2) for u in range(2)] + rd
            add(rd, [mfma(ACC(t, u), rg + 4*s, XF(c, s, u), first=(c == 0 and s == 0)) for u in range(2) for s in range(2)], cfg.alead,
                need=c if t == 0 and c and not cfg.abar else None, free=c + 1 if t == 15 and (c == 8 or not cfg.abar) else None, bar=cfg.abar and t == 0 and c > 0)
    gA = len(G)
    fill = [(gA - 6, gA, pack(QP(0), 128))]
    tail_fill = None
    KR = lambda i: 24 + 4 * ((i + 4) & 7)
    def qk(h):
        for i in range(32):
            kt, s = i >> 2, i & 3
            add([f"ds_read_b128 {vr(KR(i),4)}, v{VK[h]} offset:{(kt&1)*16*PITCH + (kt>>1)*256 + 64*s}"],
                [mfma(SS(h)+8*kt+4*u, KR(i), QP(h)+8*s+4*u, first=(s == 0)) for u in range(2)], cfg.blead,
                need=R_K0 + h if i == 0 else None, free=F_QK0 + h if i == 31 else None,
                gate=(gA - 3 if i < 4 else max(gA, len(G) - cfg.blead)) if h == 0 else None)
            G[-1]["wait4"] = (i & 3) == 0
    def pv(h):
        g0 = len(G)
        for i in range(32):
            dt, j = i >> 2, i & 3
            add([f"ds_read_b64_tr_b16 {vr(KR(i)+2*r,2)}, v{VV[h]} offset:{r*16*PITCH + j*256 + 32*dt}" for r in range(2)],
                ([mfma(LS[u], ONES, PP+8*jj+4*u, first=(jj == 0)) for u in range(2) for jj in range(4)] if i == 0 else []) +
                [mfma(SS(h)+8*dt+4*u, KR(i), PP+8*j+4*u, first=(j == 0)) for u in range(2)], cfg.blead,
                need=(R_V0, R_V1)[h] if i == 0 else None, free=(F_PV0, F_PV1)[h] if i == 31 else None,
                gate=max(len(G) - cfg.blead, g0 - (3, 3, 2, 2, 1, 1, 0, 0)[i]) if (h == 1 and i < 8) else None)
            G[-1]["wait4"] = (i & 3) == 0
    def softmax(h):
        s = SS(h)
        el = [[s + 8*kt + 4*u + r for kt in range(8) for r in range(4)] for u in range(2)]
        o = []
        for i in range(16):
            for u in range(2):
                e = el[u]
                if i == 0: o.append(f"v_max3_f32 v{VM[u]}, v{e[0]}, v{e[1]}, v{e[2]}")
                elif i < 15: o.append(f"v_max3_f32 v{VM[u]}, v{VM[u]}, v{e[2*i+1]}, v{e[2*i+2]}")
                else: o.append(f"v_max_f32 v{VM[u]}, v{VM[u]}, v{e[31]}")
        a, b = VM
        o += [f"v_permlane32_swap_b32 v{a}, v{b}", f"v_max_f32 v{a}, v{a}, v{b}", f"v_mov_b32 v{b}, v{a}",
              f"v_permlane16_swap_b32 v{a}, v{b}", f"v_max_f32 v{a}, v{a}, v{b}", f"v_mul_f32 v{a}, s{S_C}, v{a}", f"v_mov_b32 v{b}, v{a}",
              f"v_permlane32_swap_b32 v{a}, v{b}"]
        order = [(kt, u, r) for kt in range(8) for u in range(2) for r in range(4)]
        D = 2
        for i in range(64 + 2 * D):
            if i < 64:
                kt, u, r = order[i]; x = s + 8*kt + 4*u + r
                if not cfg.pk: o.append(f"v_fma_f32 v{x}, v{x}, s{S_C}, -v{VM[u]}")
                elif r % 2 == 0: o.append(f"v_pk_fma_f32 {vr(x,2)}, {vr(x,2)}, s[58:59], {vr(VM[0],2)} op_sel:[0,0,{u}] op_sel_hi:[1,1,{u}] neg_lo:[0,0,1] neg_hi:[0,0,1]")
            j = i - D
            if 0 <= j < 64:
                kt, u, r = order[j]; x = s + 8*kt + 4*u + r
                o.append(f"v_exp_f32 v{x}, v{x}")
            j = i - 2 * D
            if 0 <= j < 64:
                kt, u, r = order[j]; x = s + 8*kt + 4*u + r
                if r & 1: o.append(f"v_cvt_pk_bf16_f32 v{PP+8*(kt>>1)+4*u+2*(kt&1)+(r>>1)}, v{x-1}, v{x}")
        return o
    sig = [0]
    def signal(f):
        assert f > sig[0], (f, sig[0])
        sig[0] = f
        S(f"v_mov_b32 v{VFT}, {f}\nds_write_b8 v{VFA}, v{VFT}")
    def o_pack(h):
        s = SS(h); o = []
        need = (F_QK1, FU[1])[h]; lab = f"L_st{h}"
        def chk():
            S(f"v_readfirstlane_b32 s64, v{VPR2}")
            for x in swar(64, need): S(x)
            S(f"s_cbranch_scc0 {lab}")
            S.label(lab + "_ok")
            S.cold += spin_block(lab, lab + "_ok", VPR2, VZ, 4, 64, need, 0)
        for st in range(4):
            part = [f"ds_read_b32 v{VPR2}, v{VZ} offset:4"] if st == 0 else []
            for u in range(2):
                for e in range(2):
                    for r in range(4):
                        x = s + 8*(2*st+e) + 4*u + r
                        if not cfg.pk: part.append(f"v_mul_f32 v{x}, v{x}, v{VRC[h][u]}")
                        elif r % 2 == 0: part.append(f"v_pk_mul_f32 {vr(x,2)}, {vr(x,2)}, {vr(VRC[h][0],2)} op_sel:[0,{u}] op_sel_hi:[1,{u}]")
                i = 2 * st + u
                part += [f"v_cvt_pk_bf16_f32 v{OF(h,st,u)+2*e+x}, v{s+8*(2*st+e)+4*u+2*x}, v{s+8*(2*st+e)+4*u+2*x+1}" for e in range(2) for x in range(2)]
                if i == 0: part.append(chk)
                part.append((f"ds_write_b128 v{VOST}, {vr(OF(h,st,u),4)} offset:{(2 - 2*h + (i >> 2))*SLOT + (i & 3)*1024}", f"st{h}"))
            o.append(part)
        def done():
            S.wait_lg_tag(f"st{h}"); signal((F_O0, F_O1)[h])
        return o, done
    rcp = lambda h: [f"v_rcp_f32 v{VRC[h][u]}, v{LS[u]}" for u in range(2)]
    st = lambda i: (lambda: stamp(S, cfg, i))
    def pack_fill(h, g0):
        op, done = o_pack(h)
        return [(g0 + 4, g0 + 5, rcp(h)), (g0 + 10, g0 + 18, op[0]), (g0 + 18, g0 + 26, op[1]), (g0 + 26, g0 + 33, op[2]), (g0 + 33, g0 + 35, op[3]), (g0 + 35, g0 + 36, [done, "s_wakeup"])]
    if cfg.stop != "A":
        qk(0); qk(1); pv(0)
        fill += [(gA, gA + 1, [st(2), lambda: nonce_issue(S, VT, VZ)]),
                 (gA, gA + 32, pack(QP(1), 192) + [f"v_mov_b32 v{ONES+i}, 0x3f803f80" for i in range(4)]),
                 (gA + 32, gA + 33, [st(3)]), (gA + 33, gA + 64, softmax(0)),
                 (gA + 56, gA + 57, [lambda: nonce_check(S, VT, VZ, "L_cn")]), (gA + 64, gA + 65, [st(4)])] + pack_fill(0, gA + 64)
    gC0 = len(G)
    units, slots, EV = c_units(), c_slots(), c_events(cfg)
    VA, VL16 = [8, 9, 10], 11
    MC = lambda nt, u: 128 + 8 * nt + 4 * u
    EC = lambda nt, u: 200 + 16 * nt + 4 * u
    CRING = [40, 48, 24, 32, 56]
    OBUF = [(64, 8), (80, 8), (96, 8), (112, 8), (192, 16), (224, 16)]
    OB = lambda j, s, u: OBUF[(j - 6) % 6][0] + OBUF[(j - 6) % 6][1] * s + 4 * u
    sOP = [None, 96, 97, 98]
    if cfg.stop is None:
        setup = [f"v_add_u32 v{VA[0]}, {-6*SLOT & 0xffffffff}, v{VV[1]}", f"v_add_u32 v{VA[1]}, {-3*SLOT & 0xffffffff}, v{VV[1]}", f"v_mov_b32 v{VA[2]}, v{VV[1]}",
                 f"v_lshlrev_b32 v{VL16}, 4, v1"]
        fill += [(gA + 65, gA + 69, setup)]
        gC = gC0 + 32
        def cgroup(j, n, **kw):
            uk, hh, x = units[j]
            sl = slots[("W", j)][0]
            va, so = VA[sl // 3], (sl % 3) * SLOT
            k = len(G) - (gC0 if j < 2 else gC)
            rg = CRING[k % 4] if k < 32 else CRING[(k - 32) % 5]
            if uk == "E":
                nt, sp = n >> 1, n & 1
                rd = [f"ds_read_b64_tr_b16 {vr(rg+4*s+2*r,2)}, v{va} offset:{so + (2*(2*sp+s)+r)*128 + 32*nt}" for s in range(2) for r in range(2)]
                mf = [mfma(EC(nt, u), rg + 4*s, OF(hh, 2*sp+s, u), first=(hh == 0 and sp == 0 and s == 0)) for u in range(2) for s in range(2)]
            else:
                bf = (lambda s, u: OF(hh, 2*x+s, u)) if uk == "M" else (lambda s, u: OB(j, s, u))
                rd = [f"ds_read_b64_tr_b16 {vr(rg+4*s+2*r,2)}, v{va} offset:{so + (2*s+r)*256 + 32*n}" for s in range(2) for r in range(2)]
                mf = [mfma(MC(n, u), rg + 4*s, bf(s, u), first=(j == 0 and s == 0)) for u in range(2) for s in range(2)]
            need = None
            for name, us in WSET.items():
                if j in us and name not in seen: need = EV[name][0]; seen.add(name)
            b0 = len(G) - (k & 3)
            add(rd, mf, 3 if k < 36 else 4, gate={0: b0 - 6, 1: b0 - 4, 2: b0 - 2, 3: b0}[k & 3] if (k & ~3) in (0, 16) else None, need=need, **kw)
        seen = set(); gU = {}
        for j in range(cfg.merge):
            if j == 2:
                fill += [(gC0, gC0 + 1, [st(5)]), (gC0 + 3, gC0 + 16, softmax(1)), (len(G), len(G) + 1, [st(6)])] + pack_fill(1, len(G))
                pv(1)
            gU[j] = len(G)
            for n in range(2 if j >= cfg.defer else 0, 8): cgroup(j, n, free=FU.get(j) if n == 7 else None)
        gM = len(G)
        nm_ = 18 - cfg.merge
        for tau in (1, 2, 3):
            for j in range(cfg.merge, 18):
                for e in range(2): cgroup(j, 2 * tau + e)
        for j in range(min(cfg.defer, cfg.merge), 18):
            for e in range(2): cgroup(j, e)
        def o_loads(j):
            uk, hh, x = units[j]
            return [f"s_add_u32 s{48 + j % 6}, s{sOP[1 + x % 3]}, {WS_O + hh*8192 + (x // 3)*4096}"] + \
                   [f"buffer_load_dwordx4 {vr(OB(j, i >> 1, i & 1), 4)}, v{VL16}, {srd(SWS)}, s{48 + j % 6} offen offset:{i*1024} {cfg.pol_o}" for i in range(4)]
        for k in range(4):
            num, p0 = EV[f"OP{k}"]; lab = f"L_rdy{num}"
            def chk(lab=lab, num=num):
                S(f"v_readfirstlane_b32 s64, v{VPR2}")
                for x in swar(64, num): S(x)
                S(f"s_cbranch_scc0 {lab}")
                S.label(lab + "_ok")
                S.cold += spin_block(lab, lab + "_ok", VPR2, VZ, 0, 64, num, 0)
            fill += [(gC + p0 - 2, gC + p0 - 1, [f"ds_read_b32 v{VPR2}, v{VZ}"]), (gC + p0, gC + p0 + 1, [chk])]
            for i in range(3):
                j = 6 + 3 * k + i
                first = {6: 16, 7: 16, 8: 24, 9: 24, 10: 48, 11: 48}.get(j, 8 * (j - 5))
                a = max(p0 + 1 + cfg.ostep * i, first)
                fill += [(gC + a, gC + a + 2, o_loads(j) if "noold" not in cfg.dbg else ["s_nop 0"])]
                if j == 9: fill += [(gC + a + 2, gC + a + 3, [lambda: signal(F_OI), "s_wakeup"])]
        VMASK, GR = 12, 64
        tagprep = [f"s_and_b32 s72, s{S_NONCE}, 1", f"s_lshl_b32 s73, s{S_NONCE}, 15", "s_and_b32 s73, s73, 0x10000", "s_or_b32 s72, s72, s73",
                   f"v_mov_b32 v{VMASK}, 0xfffefffe"]
        def tpack(base, n):
            o = []
            for k in range(n): o += [f"v_cvt_pk_bf16_f32 v{base+k}, v{base+2*k}, v{base+2*k+1}", f"v_and_or_b32 v{base+k}, v{base+k}, v{VMASK}, s72"]
            return o
        dx = list(tagprep)
        for u in range(2):
            for m_ in range(2):
                for k in range(4):
                    d, a = EC(2*m_, u) + k, EC(2*m_ + (k >> 1), u) + 2 * (k & 1)
                    dx += [f"v_cvt_pk_bf16_f32 v{d}, v{a}, v{a+1}", f"v_and_or_b32 v{d}, v{d}, v{VMASK}, s72"]
        for gm in range(4):
            dx.append(f"buffer_store_dwordx4 {vr(EC(2*(gm & 1), gm >> 1),4)}, v{VL16}, {srd(SWS)}, s99 offen offset:{gm*1024} {cfg.pol_sd}")
        def dsend(tau):
            o = []
            tp = tpack(128 + 16*tau, 8)
            for e in range(2):
                o += tp[8*e:8*e+8]
                o.append(f"buffer_store_dwordx4 {vr(128+16*tau+4*e,4)}, v{VL16}, {srd(SWS)}, s{(100, 101, 57)[tau-1]} offen offset:{e*1024} {cfg.pol_sd}")
            return o
        daddr = [f"v_and_b32 v2, 15, v1", "v_mul_u32_u24 v2, 2304, v2", "v_bfe_u32 v3, v1, 4, 1", "v_lshl_add_u32 v2, v3, 5, v2", "v_lshrrev_b32 v3, 5, v1", "v_lshl_add_u32 v2, v3, 4, v2",
                 "v_mov_b32 v6, 0x10001", "v_mov_b32 v4, 0x3f80", "v_mov_b32 v5, 0x3f800000"]
        q = 2 * nm_
        w = min(q - 1, 6)
        fill += [(gC + cfg.dxpos, gC + cfg.dxpos + 8, dx),
                 (gC + cfg.dxgo, gC + cfg.dxgo + 1, [lambda: signal(F_DX), "s_wakeup"]), (gM + 1, gM + 6, daddr), (gM + q + 1, gM + q + 1 + w, dsend(1)), (gM + 2*q + 1, gM + 2*q + 1 + w, dsend(2)), (gM + 3*q + 1, gM + 3*q + 1 + w, dsend(3))]
        if cfg.mst:
            fill += [(gC + int(x), gC + int(x) + 1, [lambda i=i: stamp(S, cfg, 1 + i, True)]) for i, x in enumerate(cfg.mst.split(","))]
        if cfg.cdetail > 0:
            fill += [((gC if j > 1 else gC0) + 8*j, (gC if j > 1 else gC0) + 8*j + 1, [lambda i=j - (cfg.cdetail - 1): stamp(S, cfg, 1 + i, True)]) for j in range(18) if 0 <= j - (cfg.cdetail - 1) < 12]
    if cfg.adetail:
        fill += [(16*c, 16*c + 1, [lambda c=c: stamp(S, cfg, 1 + c, True)]) for c in range(9)]
        if cfg.stop != "A": fill += [(gA + 32*i, gA + 32*i + 1, [lambda i=i: stamp(S, cfg, 10 + i, True)]) for i in range(3)]
    queue = []
    frees, due = {}, {}
    for gi, g in enumerate(G):
        if g["need"] is not None and not cfg.nocheck:
            lab = f"L_rdy{g['need']}"
            steps = [f"v_readfirstlane_b32 s69, v{VPR}"] + swar(69, g["need"])
            at = max(0, len(queue) - cfg.probe_ahead)
            pg = queue[at][0] if at < len(queue) else g["gate"]
            queue.insert(at, (pg, "r", f"ds_read_b32 v{VPR}, v{VZ}"))
            queue.append((g["gate"], "r", steps[0]))
            queue.append((g["gate"], "gap", None))
            def chk(lab=lab, need=g["need"], steps=steps):
                for x in steps[1:]: S(x)
                S(f"s_cbranch_scc0 {lab}")
                S.label(lab + "_ok")
                S.cold += spin_block(lab, lab + "_ok", VPR, VZ, 0, 69, need, 0)
            queue.append((g["gate"], "c", chk))
        if g["bar"]:
            for _ in range(cfg.bargap): queue.append((g["gate"], "gap", None))
            def br():
                S.wait_lg(0); S("s_barrier")
            queue.append((g["gate"], "c", br))
        for k, r in enumerate(g["reads"]):
            queue.append((g["gate"], "r", (r, f"g{gi}") if k == len(g["reads"]) - 1 else r))
        if g["free"] is not None and not cfg.nofree:
            def fr(gi=gi, f=g["free"]):
                S.wait_lg_tag(f"g{gi}")
                signal(f)
                if cfg.wake: due[m + 2] = lambda: S("s_wakeup")
            frees[f"g{gi}"] = fr
    nm = [len(g["mf"]) for g in G]
    pos = [sum(nm[:i]) for i in range(len(G) + 1)]
    fl = {}
    for (g0, g1, ins) in fill:
        a, b = pos[g0], pos[g1]
        for k, x in enumerate(ins): fl.setdefault(a + (k * (b - a)) // len(ins), []).append(x)
    S("v_mov_b32 v20, 0\nv_mov_b32 v21, 0\nv_lshlrev_b32 v3, 3, v1\nds_write_b64 v3, v[20:21]")
    S.wait_lg(0)
    if tail_fill: fl.setdefault(pos[tail_fill[0]] - 1, []).extend(tail_fill[1])
    S("s_barrier")
    stamp(S, cfg, 1)
    m = 0
    def issue(q):
        emit(S, q[2])
        if isinstance(q[2], tuple) and q[2][1] in frees: due[m + cfg.free_delay] = frees[q[2][1]]
    for gi, g in enumerate(G):
        last_tag = f"g{gi}"
        while any(isinstance(q[2], tuple) and q[2][1] == last_tag for q in queue):
            q = queue.pop(0)
            if q[1] != "gap": issue(q)
        if g.get("wait4"): S.wait_lg_tag(f"g{gi+3}")
        if cfg.gwait2 and "wait4" not in g and gi % 2 == 0: S.wait_lg_tag(f"g{gi+1}")
        if cfg.gwait: S.wait_lg_tag(last_tag)
        for k, mf in enumerate(g["mf"]):
            S(mf)
            if m in due: due.pop(m)()
            n = 0
            while queue and n < 2 and queue[0][0] <= gi:
                q = queue[0]
                if q[1] == "gap": queue.pop(0); break
                if n >= 1 and q[0] == gi and q[1] == "r": break
                queue.pop(0); issue(q); n += 1
            for x in fl.get(m, []): emit(S, x)
            m += 1
    assert not queue
    while due: due.pop(min(due))()
    if cfg.stop == "A":
        stamp(S, cfg, 2)
        for x in pack(QP(1), 192): S(x)
        S(f"s_lshl_b32 s66, s2, 16\ns_lshl_b32 s67, s{S_W}, 14\ns_add_u32 s66, s66, s67\nv_lshlrev_b32 v{VOST}, 4, v1\nv_add_u32 v{VOST}, s66, v{VOST}")
        for i in range(16):
            S(f"s_mov_b32 s66, {i*1024}")
            S(f"buffer_store_dwordx4 {vr(64+4*i,4)}, v{VOST}, {srd(SWS)}, s66 offen")
        S.wait_vm(0); stamps_store(S, cfg); S("s_branch L_end"); return
    if cfg.stop == "B":
        stamp(S, cfg, 6)
        op1, done1 = o_pack(1)
        for x in op1 + [done1]: emit(S, x)
        S.wait_vm(0); stamp(S, cfg, 7); stamps_store(S, cfg); S("s_branch L_end"); return
    stamp(S, cfg, 7)
    S(f"s_mov_b32 s77, {SPIN_LIMIT}")
    S.label("L_d")
    for i in range(6):
        S(f"buffer_load_dwordx4 {vr(GR+4*i,4)}, v{VL16}, {srd(SWS)}, s{74 + i//4} offen offset:{(i%4)*1024} sc1")
    S(f"v_xor_b32 v7, s72, v{GR}")
    for i in range(1, 24): S(f"v_bitop3_b32 v7, v7, v{GR+i}, s72 bitop3:0xf6")
    S("v_and_b32 v7, v7, v6\nv_cmp_eq_u32 vcc, 0, v7\ns_cmp_eq_u64 vcc, -1\ns_cbranch_scc1 L_d_ok")
    S("s_sub_u32 s77, s77, 1\ns_cmp_lg_u32 s77, 0\ns_cbranch_scc1 L_d")
    S.label("L_d_ok")
    stamp(S, cfg, 9)
    for i in range(24): S(f"v_and_b32 v{GR+i}, v{VMASK}, v{GR+i}")
    for tau in range(3):
        for u in range(2):
            for e in range(2):
                for x in range(2):
                    src = GR + 8 * tau + 4*e + 2*u + x; a = MC(e, u) + 2 * x
                    if cfg.dot2: S(f"v_dot2c_f32_bf16 v{a}, v{src}, v4\nv_dot2c_f32_bf16 v{a+1}, v{src}, v5")
                    else: S(f"v_lshlrev_b32 v8, 16, v{src}\nv_and_b32 v9, 0xffff0000, v{src}\nv_add_f32 v{a}, v{a}, v8\nv_add_f32 v{a+1}, v{a+1}, v9")
    if cfg.dot2: S("s_nop 2")
    GS = 48
    for u in range(2):
        for e in range(2):
            for x in range(2):
                S(f"v_cvt_pk_bf16_f32 v{GS+4*u+2*e+x}, v{MC(e,u)+2*x}, v{MC(e,u)+2*x+1}")
    for u in range(2):
        for x in range(2): S(f"v_permlane16_swap_b32 v{GS+4*u+x}, v{GS+4*u+2+x}")
    for u in range(2):
        S(f"buffer_store_dwordx4 {vr(GS+4*u,4)}, v2, {srd(SOUT)}, s{70+u} offen {cfg.pol_out}")
    if cfg.stamps:
        S.wait_vm(0); stamp(S, cfg, 10)
    stamps_store(S, cfg)
    S("s_branch L_end")

Cfg.dxwait = 17
H7 = "bA7 wK0 warm bA8 wK1 V1 wV0 W0 W1 W2 RWA W3 W4 W5 wV1 W6 W7 W8 w2 W9 W10 P0 S0 S1 RWB G0 G1 W11 W12 W13 W14 W15 W16 W17 "
H8 = "warm bA7 wK0 bA8 V0 wK1 W0 W1 wV0 V1 RWA W2 W3 W4 W5 W6 wV1 P0 S0 S1 RWB G0 G1 W7 W8 W9 W10 W11 W12 W13 W14 W15 W16 W17 "
H9 = "K1 bA7 wK0 bA8 V0 wK1 warm wV0 V1 W0 W1 RWA W2 W3 W4 W5 W6 wV1 P0 S0 S1 RWB G0 G1 W7 W8 W9 W10 W11 W12 W13 W14 W15 W16 W17 "
TA = "P1 S2 q0 ROP0 q1 ROP1 G2 f18 S3 RWC G3 w9 w10 w11 RWD q2 ROP2 q3 ROP3 RWE"
TB = "P1 S2 S3 q0 ROP0 q1 ROP1 G2 G3 RWC RWD q2 ROP2 q3 ROP3 RWE"
TD = "q0 ROP0 q1 ROP1 P1 S2 S3 RWC G2 G3 w9 w10 w11 RWD q2 ROP2 q3 ROP3 RWE"
TE = "q0 ROP0 q1 ROP1 P1 f18 S2 S3 RWC G2 G3 w9 w10 w11 RWD q2 ROP2 q3 ROP3 RWE"
HA = "bA7 wK0 warm bA8 wK1 V1 wV0 W0 W1 W2 RWA W3 W4 W5 wV1 W6 W7 W8 w2 W9 W10 W11 W12 P0 S0 S1 RWB W13 W14 W15 W16 W17 G0 G1 "
HB = "K1 bA7 wK0 bA8 V0 wK1 warm wV0 V1 W0 W1 RWA W2 W3 W4 W5 W6 wV1 P0 S0 S1 W7 W8 W9 W10 RWB G0 G1 "
TF = "q0 ROP0 q1 ROP1 P1 f18 S2 S3 W11 W12 W13 RWC G2 G3 W14 W15 W16 W17 w9 w10 w11 RWD q2 ROP2 q3 ROP3 RWE"
TG = "P1 q0 ROP0 q1 ROP1 f18 S2 S3 RWC G2 G3 w9 w10 w11 RWD q2 ROP2 q3 ROP3 RWE"
PROGS = {h + x: H + T for h, H in (("7", H7), ("8", H8), ("9", H9), ("A", HA)) for x, T in (("a", TA), ("b", TB), ("d", TD), ("e", TE), ("g", TG))}
HC = "bA7 wK0 warm bA8 wK1 V1 wV0 W0 W1 W2 RWA W3 W4 W5 wV1 W6 W7 W8 w2 W9 W10 W11 W12 P0 S0 S1 RWB G0 G1 W13 W14 W15 W16 W17 "
HD = "K1 bA7 wK0 bA8 V0 wK1 warm wV0 V1 W0 W1 RWA W2 W3 W4 W5 W6 wV1 W7 W8 P0 S0 S1 RWB G0 G1 W9 W10 W11 W12 W13 W14 W15 W16 W17 "
HE = "warm bA7 wK0 bA8 V0 wK1 W0 W1 wV0 V1 RWA W2 W3 W4 W5 W6 wV1 W7 W8 W9 W10 P0 S0 S1 RWB G0 G1 W11 W12 W13 W14 W15 W16 W17 "
TH = "q0 ROP0 q1 ROP1 w7 w8 P1 w9 w10 f18 S2 S3 RWC w11 RWD G2 G3 q2 ROP2 q3 ROP3 RWE"
TI = "q0 ROP0 q1 ROP1 P1 f18 S2 S3 RWC w9 w10 w11 G2 G3 RWD q2 ROP2 q3 ROP3 RWE"
TJ = "q0 ROP0 q1 ROP1 w7 w8 P1 S2 w9 w10 f18 S3 RWC G2 w11 RWD G3 q2 ROP2 q3 ROP3 RWE"
HF = "bA7 wK0 warm bA8 wK1 V1 wV0 f10 W0 W1 W2 RWA wV1 f12 W5 W6 P0 S0 S1 W3 W4 G0 G1 RWB "
HG = "warm bA7 wK0 bA8 V0 wK1 wV0 V1 f10 W0 W1 W2 RWA wV1 f12 W5 W6 P0 S0 S1 W3 W4 G0 G1 RWB "
HH = "K1 bA7 wK0 bA8 V0 wK1 warm wV0 V1 f10 W0 W1 W2 RWA wV1 f12 W5 W6 P0 S0 S1 W3 W4 G0 G1 RWB "
TK = "q0 ROP0 q1 ROP1 f15 W7 W8 P1 W9 W10 f18 W11 S2 S3 RWC f19 W12 W13 G2 G3 RWD q2 ROP2 q3 ROP3 f20 W14 W15 W16 W17 RWE"
TL = "q0 ROP0 q1 ROP1 f15 W7 W8 P1 S2 W9 W10 f18 W11 S3 RWC G2 f19 W12 W13 G3 RWD q2 ROP2 f20 W14 W15 W16 W17 q3 ROP3 RWE"
TM = "q0 ROP0 q1 ROP1 f15 W7 W8 P1 S2 S3 W9 W10 f17 W11 RWC G2 G3 f19 W12 W13 RWD q2 ROP2 f20 W14 W15 W16 W17 q3 ROP3 RWE"
for h, H in (("F", HF), ("G", HG), ("H", HH)):
    for x, T in (("k", TK), ("l", TL), ("m", TM)): PROGS[h + x] = H + T
HI = "warm bA7 wK0 bA8 D0 wK1 W3 W4 W5 W6 D1 pV0 f10 W0 W1 W2 W11 W12 W13 RWA pV1 W14 W15 W16 W17 P0 S0 S1 RWB G0 G1 "
HJ = "warm bA7 wK0 bA8 D0 wK1 W3 W4 W5 W6 D1 pV0 f10 W0 W1 W2 W7 W8 W9 RWA pV1 W10 W11 W12 W13 P0 S0 S1 RWB G0 G1 W14 W15 W16 W17 "
TN = "q0 ROP0 q1 ROP1 f15 W7 W8 P1 W9 W10 f18 S2 S3 RWC w11 RWD G2 G3 q2 ROP2 q3 ROP3 RWE"
TO = "q0 ROP0 q1 ROP1 f15 W7 W8 P1 S2 W9 W10 f18 S3 RWC G2 w11 RWD G3 q2 ROP2 q3 ROP3 RWE"
PROGS["In"] = HI + TN; PROGS["Io"] = HI + TO; PROGS["Jh"] = HJ + TH; PROGS["Jj"] = HJ + TJ
PROGS["Kn"] = PROGS["In"].replace("warm bA7 wK0 bA8 D0 wK1", "K1 bA7 wK0 bA8 D0 wK1 warm")
HL = "warm bA7 wK0 bA8 D0 wK1 D1 pV0 f10 W0 W1 W2 W3 W4 W5 W6 RWA pV1 W7 W8 W9 W10 W11 W12 W13 P0 S0 S1 RWB G0 G1 W14 W15 W16 W17 "
HM = "warm bA7 wK0 bA8 D0 wK1 W3 W4 D1 pV0 f10 W0 W1 W2 W5 W6 RWA W7 W8 pV1 W9 W10 W11 W12 P0 S0 S1 RWB G0 G1 W13 W14 W15 W16 W17 "
PROGS["Lh"] = HL + TH; PROGS["Mh"] = HM + TH; PROGS["Lj"] = HL + TJ
HN = "warm bA7 wK0 bA8 D0 wK1 D1 pV0 f10 W0 W1 W2 W9 W10 W11 RWA W12 W13 pV1 W14 W15 W16 W17 f12 W5 W6 P0 S0 S1 W3 W4 G0 G1 RWB "
PROGS["N1"] = HN + "q0 ROP0 q1 ROP1 f15 W7 W8 P1 w9 w10 f18 S2 S3 RWC w11 RWD G2 G3 q2 ROP2 q3 ROP3 RWE"
PROGS["N2"] = HN.replace("W9 W10 ", "") + "q0 ROP0 q1 ROP1 f15 W7 W8 P1 W9 W10 f18 S2 S3 RWC w11 RWD G2 G3 q2 ROP2 q3 ROP3 RWE"
PROGS["N3"] = HN.replace("W14 W15 W16 W17 ", "") + "q0 ROP0 q1 ROP1 f15 W7 W8 P1 w9 w10 f18 S2 S3 RWC w11 RWD G2 G3 q2 ROP2 f20 W14 W15 W16 W17 q3 ROP3 RWE"
PROGS["N4"] = HN + "q0 ROP0 q1 ROP1 f15 W7 W8 P1 f18 S2 S3 RWC w9 w10 w11 G2 G3 RWD q2 ROP2 q3 ROP3 RWE"
PROGS["E2"] = PROGS_E2 = None
PROGS["S0"] = ("warm bA7 wK0 bA8 V0 wK1 W0 W1 W2 W3 wV0 V1 W4 W5 RWA W6 W7 W8 wV1 W9 W10 P0 S0 S1 RWB G0 G1 W11 W12 W13 W14 W15 W16 W17 " + TH)
PROGS["S1"] = ("warm bA7 wK0 bA8 W0 W1 W2 W3 wK1 V0 W4 W5 wV0 RWA W6 W7 V1 W8 W9 W10 wV1 P0 W11 W12 S0 S1 RWB G0 G1 W13 W14 W15 W16 W17 " + TH)
PROGS["S2"] = ("warm bA7 wK0 bA8 W0 W1 W2 W3 wK1 V0 W4 W5 wV0 RWA W6 W7 V1 W8 W9 W10 wV1 P0 S0 S1 RWB G0 G1 W11 W12 W13 W14 W15 W16 W17 " + TH)
PROGS["S3"] = ("warm bA7 wK0 bA8 V0 wK1 W0 W1 W2 W3 wV0 V1 W4 W5 RWA W6 W7 W8 wV1 W9 W10 P0 S0 S1 RWB G0 G1 W11 W12 W13 W14 W15 W16 W17 " + TJ.replace("P1 S2 w9 w10 f18 S3", "P1 S2 S3 w9 w10"))
for h, H in (("C", HC), ("D", HD), ("E", HE)):
    for x, T in (("h", TH), ("i", TI), ("j", TJ)): PROGS[h + x] = H + T
PROGS["E2"] = PROGS["Eh"].replace("warm bA7 wK0 bA8 V0 wK1", "warm bA7 V0 bA8 wK0 wK1")
PROGS["E3"] = PROGS["Eh"].replace("warm bA7 wK0 bA8 V0 wK1", "bA7 wK0 bA8 V0 warm wK1")
PROGS["E5"] = PROGS["Eh"].replace("warm bA7 wK0 bA8 V0 wK1 W0 W1 wV0 V1", "warm bA7 wK0 bA8 V1 wK1 W0 W1 wV0")
PROGS["E6"] = PROGS["Eh"].replace("warm bA7 wK0 bA8 V0 wK1 W0 W1 wV0 V1", "bA7 wK0 bA8 V0 wK1 W0 W1 wV0 V1")
PROGS["E7"] = PROGS["Eh"].replace("P0 S0 S1 RWB G0 G1 W11", "P0 S0 S1 G0 G1 RWB W11")
PROGS["E8"] = PROGS["Eh"].replace("W7 W8 W9 W10 P0 S0 S1 RWB G0 G1 W11 W12 W13 W14", "W7 W8 W9 W10 W11 W12 P0 S0 S1 RWB G0 G1 W13 W14")
PROGS["F1"] = PROGS["Eh"].replace("q0 ROP0 q1 ROP1 w7 w8 P1 w9 w10 f18 S2 S3 RWC w11 RWD G2 G3", "w7 w8 q0 ROP0 q1 ROP1 P1 w9 w10 f18 S2 S3 RWC w11 RWD G2 G3")
PROGS["F2"] = PROGS["Eh"].replace("f18 S2 S3 RWC w11 RWD G2 G3", "f18 S2 S3 RWC w11 G2 G3 RWD")
PROGS["F3"] = PROGS["Eh"].replace("P1 w9 w10 f18 S2 S3 RWC w11 RWD G2 G3", "P1 w9 f18 S2 S3 RWC w10 w11 G2 RWD G3")
PROGS["F4"] = PROGS["Eh"].replace("q2 ROP2 q3 ROP3 RWE", "q2 ROP2 w14 w15 q3 ROP3 RWE")
PROGS["G1"] = PROGS["F2"].replace("q2 ROP2 q3 ROP3 RWE", "q2 ROP2 w14 w15 q3 ROP3 RWE")
PROGS["G2"] = PROGS["F2"].replace("RWD q2 ROP2 q3 ROP3 RWE", "RWD w14 w15 q2 ROP2 w16 w17 q3 ROP3 RWE")
PROGS["G3"] = PROGS["G1"].replace("f18 S2 S3 RWC w11 G2 G3 RWD", "f18 S2 S3 RWC G2 G3 w11 RWD")
PROGS["G4"] = PROGS["G1"].replace("w7 w8 P1 w9 w10 f18 S2 S3 RWC w11", "w7 P1 w8 w9 f18 S2 S3 RWC w10 w11")
PROGS["G5"] = PROGS["G1"].replace("G0 G1 W11 W12 W13 W14 W15 W16 W17 q0 ROP0 q1 ROP1", "G0 G1 W11 W12 W13 W14 q0 ROP0 q1 ROP1 W15 W16 W17")
PROGS["E4"] = PROGS["Eh"].replace("warm bA7 wK0 bA8 V0 wK1 W0 W1 wV0 V1", "V0 bA7 wK0 bA8 warm wK1 wV0 V1 W0 W1")
Cfg.prog = "F2"

def gen(cfg):
    hdr = open(REF).read().split("; Override launch")[0].rstrip("\n")
    launch = [f"; @launch grid=(256,1,1) block=(512,1,1) lds={LDS_BYTES}"]
    if cfg.amp >= 0:
        launch = [f"; @launch kernel={NAME} grid=(256,1,1) block=(512,1,1) lds={LDS_BYTES}", "; @launch kernel=amp_kernel grid=(1,1,1) block=(64,1,1) lds=0"]
    if cfg.pre or cfg.post:
        launch = [f"; @launch kernel={NAME} grid=(256,1,1) block=(512,1,1) lds={LDS_BYTES}"]
        if cfg.pre: launch = [f"; @launch kernel=aux_kernel grid=({cfg.pre},1,1) block=(64,1,1) lds=0"] + launch
        if cfg.post: launch += [f"; @launch kernel=aux_kernel grid=({cfg.post},1,1) block=(64,1,1) lds=0"]
    doc = """; One launch, 256 workgroups (one per CU), 8 waves: waves 0-3 compute (32 query rows each), waves 4-7 move data.
; Workgroup g: block = g>>2&1, K quarter kq = g&3, batch = g>>3&7, p = g>>6; heads 8kq+2p, 8kq+2p+1.
;  A  Q^T = wq^T x^T (two heads, k in nine 64-deep chunks through a 3-slot LDS ring, barriers)
;  B  S^T = K Q^T, softmax with the true row maximum, O^T = V^T P^T (row sums by an MFMA with a matrix of ones)
;  C  out^T partial over the quarter's 8 heads: 128 columns per workgroup, O of the three other head pairs comes through d_ws
;     (write-through stores, then a flag carrying this launch's tag); the last 64 columns are done on the own heads only
;  D  partial sums are exchanged as bf16 through d_ws and added in fp32; their lowest bits carry the launch tag and are dropped
; Waves of a workgroup signal each other with progress bytes in LDS words 0 (data ready) and 1 (LDS space free).
; The launch tag is (word found in d_ws) + 1, handed out through d_debug by workgroup 0. All waits are bounded.""".split("\n")
    L = [hdr] + launch + doc + ['.amdgcn_target "amdgcn-amd-amdhsa--gfx950"',
         ".text", f".globl {NAME}", ".p2align 8", f".type {NAME},@function", f"{NAME}:"]
    P = Stream("pro"); prologue(P, cfg); L += P.finish()
    Ld = Stream("loader"); Ld.smem_pending = True; Ld.progname = cfg.prog; loader(Ld, cfg); L += Ld.finish()
    if cfg.prog2:
        import re
        n0 = len(SITES)
        L2 = Stream("loader2"); L2.smem_pending = True; L2.progname = cfg.prog2; loader(L2, cfg)
        body = L2.finish(); body = body[body.index("L_fork:"):]
        ren = lambda x: re.sub(r"\b(L_(?!end\b)\w+)", r"\1_c1", x)
        L += [ren(x) for x in body]
        Ld.cold += [ren(x if isinstance(x, str) else "    " + x.text) for x in L2.cold[L2.ncold:]]
    L.append(".p2align 6")
    C = Stream("compute"); C.smem_pending = True; compute(C, cfg); L += C.finish()
    L.append("L_cold:")
    for s in (Ld, C):
        L += [x if isinstance(x, str) else "    " + x.text for x in s.cold]
    L += ["L_end:", "    s_endpgm", '.section .rodata,"a"', ".p2align 6", f".amdhsa_kernel {NAME}",
          "  .amdhsa_next_free_vgpr 256", "  .amdhsa_next_free_sgpr 102", "  .amdhsa_accum_offset 256",
          "  .amdhsa_group_segment_fixed_size 0", "  .amdhsa_kernarg_size 104", "  .amdhsa_user_sgpr_count 2",
          "  .amdhsa_user_sgpr_kernarg_segment_ptr 1", "  .amdhsa_system_sgpr_workgroup_id_x 1", ".end_amdhsa_kernel", ""]
    if cfg.pre or cfg.post:
        L = L[:-1] + [".text", ".globl aux_kernel", ".p2align 8", ".type aux_kernel,@function", "aux_kernel:", "    s_endpgm",
              '.section .rodata,"a"', ".p2align 6", ".amdhsa_kernel aux_kernel", "  .amdhsa_next_free_vgpr 8", "  .amdhsa_next_free_sgpr 16", "  .amdhsa_accum_offset 8",
              "  .amdhsa_group_segment_fixed_size 0", "  .amdhsa_kernarg_size 104", "  .amdhsa_user_sgpr_count 2",
              "  .amdhsa_user_sgpr_kernarg_segment_ptr 1", "  .amdhsa_system_sgpr_workgroup_id_x 1", ".end_amdhsa_kernel", ""]
    if cfg.amp >= 0:
        Am = Stream("amp")
        Am(f"""s_cmp_ge_u32 s2, 1
        s_cbranch_scc1 amp_end
        s_memrealtime s[24:25]
        s_load_dwordx2 s[4:5], s[0:1], 96
        s_mov_b32 s10, {WS_SIZE}
        s_mov_b32 s11, 0x20000
        s_waitcnt lgkmcnt(0)
        s_mov_b32 s8, s4
        s_and_b32 s9, s5, 0xffff
        v_lshlrev_b32 v1, 9, v0
        s_mov_b32 s12, {WS_STAMP + 64 * cfg.ampw}""")
        for i in range(4):
            Am(f"s_add_u32 s13, s12, {i*64*512}")
            Am(f"buffer_load_dword v{4+i}, v1, s[8:11], s13 offen offset:56")
            Am(f"buffer_load_dword v{8+i}, v1, s[8:11], s13 offen offset:{4*(cfg.amp if cfg.amp < 100 else 15)}")
        Am("v_min_u32 v4, v4, v5\nv_min_u32 v6, v6, v7\nv_min_u32 v4, v4, v6\nv_max_u32 v8, v8, v9\nv_max_u32 v10, v10, v11\nv_max_u32 v8, v8, v10")
        Am("s_mov_b32 s14, -1\ns_mov_b32 s15, 0")
        for l in range(64):
            Am(f"v_readlane_b32 s16, v4, {l}\nv_readlane_b32 s17, v8, {l}\ns_nop 3\ns_min_u32 s14, s14, s16\ns_max_u32 s15, s15, s17")
        if cfg.amp == 100: Am("s_mov_b32 s14, s15\ns_mov_b32 s15, s24")
        if cfg.amp == 101:
            Am(f"s_add_u32 s4, s4, {WS_STAMP - 64}\ns_addc_u32 s5, s5, 0\ns_load_dword s26, s[4:5], 0\ns_waitcnt lgkmcnt(0)\ns_mov_b32 s15, s14\ns_mov_b32 s14, s26")
        if cfg.amp == 102: Am("s_mov_b32 s15, s14")
        Am("s_sub_u32 s14, s15, s14\ns_min_u32 s14, s14, 20000\ns_mul_i32 s14, s14, 10\ns_memrealtime s[18:19]\ns_waitcnt lgkmcnt(0)")
        Am.label("amp_spin")
        Am("s_sleep 2\ns_memrealtime s[20:21]\ns_waitcnt lgkmcnt(0)\ns_sub_u32 s22, s20, s18\ns_cmp_lt_u32 s22, s14\ns_cbranch_scc1 amp_spin")
        Am.label("amp_end")
        Am("s_endpgm")
        L = L[:-1]
        L += [".text", ".globl amp_kernel", ".p2align 8", ".type amp_kernel,@function", "amp_kernel:"] + Am.finish()
        L += [".globl pre_kernel", ".p2align 8", ".type pre_kernel,@function", "pre_kernel:",
              "s_cmp_ge_u32 s2, 1", "s_cbranch_scc1 pre_end", "s_load_dwordx2 s[4:5], s[0:1], 96", f"s_mov_b32 s10, {WS_SIZE}", "s_mov_b32 s11, 0x20000", "s_waitcnt lgkmcnt(0)",
              "s_mov_b32 s8, s4", "s_and_b32 s9, s5, 0xffff", "v_mov_b32 v1, 0", "s_memrealtime s[12:13]", "s_waitcnt lgkmcnt(0)", "v_mov_b32 v2, s12", f"s_mov_b32 s14, {WS_STAMP - 64}",
              "buffer_store_dword v2, v1, s[8:11], s14 offen", "pre_end:", "s_endpgm"]
        L += ['.section .rodata,"a"', ".p2align 6", ".amdhsa_kernel pre_kernel", "  .amdhsa_next_free_vgpr 32", "  .amdhsa_next_free_sgpr 32", "  .amdhsa_accum_offset 32",
              "  .amdhsa_group_segment_fixed_size 0", "  .amdhsa_kernarg_size 104", "  .amdhsa_user_sgpr_count 2",
              "  .amdhsa_user_sgpr_kernarg_segment_ptr 1", "  .amdhsa_system_sgpr_workgroup_id_x 1", ".end_amdhsa_kernel"]
        L += ['.section .rodata,"a"', ".p2align 6", ".amdhsa_kernel amp_kernel", "  .amdhsa_next_free_vgpr 32", "  .amdhsa_next_free_sgpr 32", "  .amdhsa_accum_offset 32",
              "  .amdhsa_group_segment_fixed_size 0", "  .amdhsa_kernarg_size 104", "  .amdhsa_user_sgpr_count 2",
              "  .amdhsa_user_sgpr_kernarg_segment_ptr 1", "  .amdhsa_system_sgpr_workgroup_id_x 1", ".end_amdhsa_kernel", ""]
    if cfg.align:
        from align import align
        k0 = L.index(f"{NAME}:"); k1 = L.index("L_end:") + 2
        body, nprom, npad = align(L[k0:k1], "L_compute", "L_cold", cfg.align == 2)
        L = L[:k0] + body + L[k1:]
        sys.stderr.write(f"align: promoted {nprom} padded {npad}\n")
    sys.stderr.write(f"nops: loader {Ld.nops} compute {C.nops}\n")
    return "\n".join(L)

if __name__ == "__main__":
    cfg = Cfg()
    out = sys.argv[1]
    for a in sys.argv[2:]:
        k, val = a.split("=", 1)
        cur = getattr(Cfg, k)
        if isinstance(cur, bool): val = val in ("1", "true", "True")
        elif isinstance(cur, int): val = int(val)
        elif val == "None": val = None
        if k.startswith("pol_"): val = val.replace("+", " ")
        setattr(cfg, k, val)
    open(out, "w").write(gen(cfg))
    open(out + ".sites", "w").write(" ".join(map(str, SITES)))
```

```python
import sys, math, struct
from sched import Stream, Ins

NAME = "concat_heads__mha_block_cached__gqa_block_cached__near_ridge_kernel"
REF = "concat_heads__mha_block_cached__gqa_block_cached__near_ridge.s.ref"
SLOT = 17408
PITCH = 1056
LB = 512
LDS_BYTES = LB + 9 * SLOT
def slot(i): return LB + i * SLOT
WS_O, WS_D, WS_DX, WS_FLAG, WS_EPOCH, WS_STAMP = 0, 16 << 20, 32 << 20, 40 << 20, 41 << 20, 48 << 20
WS_SIZE = 64 << 20
SPIN_LIMIT = 1 << 18

def f32(x): return struct.unpack("<I", struct.pack("<f", x))[0]
def vr(n, c=1): return f"v{n}" if c == 1 else f"v[{n}:{n+c-1}]"
def mfma(d, a, b, first=False):
    return f"v_mfma_f32_16x16x32_bf16 {vr(d,4)}, {vr(a,4)}, {vr(b,4)}, {'0' if first else vr(d,4)}"
def _raw(text): return [Ins(l.strip()) if not l.strip().endswith(":") else l.strip() for l in text.split("\n") if l.strip()]
def emit(S, x):
    if callable(x): x()
    elif isinstance(x, tuple): S(*x)
    else: S(x)

SX, SWQ, SK, SV, SWO, SWS, SOUT, SDBG = 8, 12, 16, 20, 24, 28, 32, 36
def srd(n): return f"s[{n}:{n+3}]"
S_BLK, S_KQ, S_B, S_P, S_H0, S_W, S_NONCE, S_C = 40, 41, 42, 43, 44, 45, 46, 47

R_K0, R_K1, R_V0, R_WA, R_V1, R_U = 9, 10, 11, 12, 13, 14
F_QK0, F_QK1, F_PV0, F_O0, F_PV1, F_O1 = 10, 11, 12, 13, 15, 16
F_OI, F_DX = 18, 21
FU = {1: 14, 2: 17, 4: 19, 8: 20}
WSET = {"WA": (0, 1), "WB": (2, 3, 4, 5, 6), "WC": (7, 8), "WD": (9, 10, 11, 12, 13), "WE": (14, 15, 16, 17)}
def c_events(cfg):
    pos = {"WB": 12, "WC": 52, "WD": 68, "WE": 8 * min(14, cfg.merge) - 4}
    for k, x in enumerate(cfg.opos.split(",")): pos[f"OP{k}"] = int(x)
    ev = {n: (R_U + i, pos[n]) for i, n in enumerate(sorted(pos, key=lambda n: pos[n]))}
    ev["WA"] = (R_WA, -12)
    return ev

class Cfg:
    pol_x = ""; pol_wq = ""; pol_kv = "nt"; pol_wo = ""
    stop = None
    stamps = False; real = False; adetail = False; cdetail = 0
    ngrp = 3; rotp = 1; rotk = 3
    k0pos = 1; k0cls = 4; kvwait = 6
    codepf = True
    order = "blk"
    flag0 = -5; flag0b = 4; o1pos = 16; flag1 = 44; flag1b = 60; dxpos = 56
    amp = -1; ampw = 0
    probe_ahead = 8
    free_delay = 7
    trace = False
    tlb = 255
    cpf = "5"
    cpfop = ""
    tlbpos = 1
    tlbmode = "dense"
    tlbpos2 = 3
    vpf = 0
    vpfpos = "1,2,3,4,5,6"
    diagsleep = 0
    tlbwo = 1
    tlboff = 0
    pol_st = "sc1"
    pol_sd = "sc1"
    gwait2 = False
    mst = ""
    prog2 = ""
    defer = 10
    dot2 = True
    wprio2 = 0
    dbg = ""
    spoll = True
    blead = 7
    pk = False
    pol_out = ""
    pre = 0
    post = 0
    align = 0
    dxgo = 92
    opos = "28,29,80,86"
    ostep = 2
    pol_o = "sc1"
    pfilter = ""
    o1end = 10
    merge = 14
    dxsleep = 8
    akv = "0:1:4,1:2:4:3"
    o1len = 30
    ptrace = False
    early0 = 72
    warmpos = -1
    k1pos = -1
    warmrot = 3
    wprio = 0
    bargap = 4
    abar = True
    cbar = 6
    nocheck = False
    nofree = False
    alead = 4
    nodma = False
    lprio = 3
    lsleep = 5
    wake = True
    gwait = True
    early = False
    trace_from = 0

def stamp(S, cfg, idx, det=False):
    if not cfg.stamps: return
    if (cfg.cdetail or cfg.adetail) and idx not in (0, 13) and not det: return
    S(f"{'s_memrealtime' if cfg.real else 's_memtime'} s[78:79]")
    S("s_waitcnt lgkmcnt(0)")
    S(f"s_mov_b32 s{80+idx}, s78")

SITES = []
def trace_raw(cfg, who, ident):
    if not cfg.trace or len(SITES) >= 128: return ""
    if cfg.ptrace and not isinstance(ident, str): return ""
    k = len(SITES); SITES.append(ident)
    return f"{'s_memrealtime' if cfg.real else 's_memtime'} s[78:79]\ns_waitcnt lgkmcnt(0)\nv_writelane_b32 v{250 + (k >> 6)}, s78, {k & 63}\n"
def stamps_store(S, cfg):
    if not cfg.stamps: return
    S("s_memrealtime s[78:79]\ns_waitcnt lgkmcnt(0)\ns_mov_b32 s95, s78")
    stamp(S, cfg, 13)
    S(f"s_lshl_b32 s66, s2, 3\ns_add_u32 s66, s66, s3\ns_lshl_b32 s66, s66, 6\ns_add_u32 s66, s66, {WS_STAMP}")
    S("v_mov_b32 v2, 0")
    S("s_mov_b64 exec, 1")
    for i in range(16):
        S(f"v_mov_b32 v3, s{80+i}")
        S(f"buffer_store_dword v3, v2, {srd(SWS)}, s66 offen offset:{4*i}")
    S("s_mov_b64 exec, -1")

def prologue(S, cfg):
    S(f"""s_cmp_ge_u32 s2, 256
    s_cbranch_scc1 L_end
    s_bfe_u32 s{S_BLK}, s2, 0x10002
    s_mul_i32 s66, s{S_BLK}, 40
    s_add_u32 s4, s0, s66
    s_addc_u32 s5, s1, 0
    s_load_dwordx8 s[48:55], s[4:5], 0""")
    if cfg.stamps:
        S(f"s_memrealtime s[6:7]\n{'s_memrealtime' if cfg.real else 's_memtime'} s[92:93]")
    S(f"""v_lshrrev_b32 v2, 6, v0
    v_and_b32 v1, 63, v0
    s_load_dwordx2 s[56:57], s[4:5], 32
    v_readfirstlane_b32 s3, v2
    s_load_dwordx4 s[60:63], s[0:1], 80
    s_load_dwordx2 s[64:65], s[0:1], 96
    s_and_b32 s{S_KQ}, s2, 3
    s_bfe_u32 s{S_B}, s2, 0x30003
    s_lshr_b32 s{S_P}, s2, 6
    s_lshl2_add_u32 s{S_H0}, s{S_KQ}, s{S_P}
    s_lshl_b32 s{S_H0}, s{S_H0}, 1
    s_and_b32 s{S_W}, s3, 3
    s_cmp_lt_u32 s3, 4
    s_cbranch_scc1 L_compute""")
def first_stamps(S, cfg):
    if cfg.stamps:
        S("s_mov_b32 s80, s92\ns_mov_b32 s94, s6")
        for i in range(1, 14): S(f"s_mov_b32 s{80+i}, 0")
SRD_SIZE = {SX: 1179648, SWQ: 4718592, SK: 8388608, SV: 8388608, SWO: 4718592, SWS: WS_SIZE, SOUT: 2359296, SDBG: 256}
def srd_consts(S, which):
    for d in which: S(f"s_mov_b32 s{d+2}, {SRD_SIZE[d]}\ns_mov_b32 s{d+3}, 0x20000")
def srd_bases(S, which):
    for d, p in ((SX, 48), (SWQ, 54), (SK, 50), (SV, 52), (SWO, 56), (SWS, 64), (SOUT, 60), (SDBG, 62)):
        if d in which: S(f"s_mov_b32 s{d}, s{p}\ns_and_b32 s{d+1}, s{p+1}, 0xffff")

def nonce_issue(S, vt, vz):
    S(f"buffer_load_dword v{vt}, v{vz}, {srd(SDBG)}, 0 offen sc1")
def nonce_check(S, vt, vz, lab):
    S(f"v_readfirstlane_b32 s{S_NONCE}, v{vt}")
    S(f"s_cmp_eq_u32 s{S_NONCE}, 0\ns_cbranch_scc1 {lab}")
    S.label(f"{lab}_ok")
    S.cold += _raw(f"""{lab}:
    s_mov_b32 s77, {SPIN_LIMIT}
    {lab}_spin:
    buffer_load_dword v{vt}, v{vz}, {srd(SDBG)}, 0 offen sc1
    s_waitcnt vmcnt(0)
    v_readfirstlane_b32 s{S_NONCE}, v{vt}
    s_nop 4
    s_cmp_lg_u32 s{S_NONCE}, 0
    s_cbranch_scc1 {lab}_ok
    s_sleep 2
    s_sub_u32 s77, s77, 1
    s_cmp_lg_u32 s77, 0
    s_cbranch_scc1 {lab}_spin
    s_branch {lab}_ok""")

def swar(s, need):
    return [f"s_or_b32 s{s}, s{s}, 0x80808080", f"s_sub_u32 s{s}, s{s}, {need * 0x01010101}", f"s_andn2_b32 s{s}, 0x80808080, s{s}", f"s_cmp_eq_u32 s{s}, 0"]
def spin_block(lab, back, vt, vz, off, sreg, need, sleep):
    return _raw(f"""{lab}:
    s_mov_b32 s77, {SPIN_LIMIT}
    {lab}_spin:
    ds_read_b32 v{vt}, v{vz} offset:{off}
    s_waitcnt lgkmcnt(0)
    v_readfirstlane_b32 s{sreg}, v{vt}
    s_nop 3
    """ + "\n".join(swar(sreg, need)) + f"""
    s_cbranch_scc1 {back}
    {'s_sleep ' + str(sleep) if sleep else ''}
    s_sub_u32 s77, s77, 1
    s_cmp_lg_u32 s77, 0
    s_cbranch_scc1 {lab}_spin
    s_branch {back}""")

def c_units():
    u = [("M", 0, 0), ("M", 0, 1), ("E", 0, 0), ("M", 1, 0), ("M", 1, 1), ("E", 1, 0)]
    for hh in (0, 1):
        for ii in range(6): u.append(("P", hh, ii))
    return u
def c_slots():
    sl = [(0, F_QK0), (1, F_QK0), (8, 9), (2, F_O0), (3, F_O0), (4, F_PV0), (5, F_PV0), (6, F_PV1), (7, F_PV1),
          (0, F_O1), (1, F_O1), (8, FU[2]), (2, FU[4]), (3, FU[4]), (4, FU[8]), (5, FU[8]), (6, FU[8]), (7, FU[8])]
    return {("W", j): sl[j] for j in range(18)}

def pack(dst, src):
    return [f"v_cvt_pk_bf16_f32 v{dst+8*s+4*u+2*e+x}, v{src+8*(2*s+e)+4*u+2*x}, v{src+8*(2*s+e)+4*u+2*x+1}" for s in range(4) for u in range(2) for e in range(2) for x in range(2)]
PAY = [0, 1, 2, 4, 5, 6, 8, 9]

def loader(S, cfg):
    VXO, VWO, VKV, VKW, VVW, VMO, VEO, VOO, VFL, VWW, VN, VZ, VP0, VPA, VT = 4, 5, 6, 7, 8, 9, 10, 11, 12, 13, 14, 15, 16, 18, 19
    KVREG = [24, 56, 88, 120]
    sXb, sWb, sCC, sM, sMo, sT, sKV0, sKV1, sA = 66, 67, 68, 69, 70, 71, 72, 73, 75
    sWP, sOP = [65, 96, 97, 98], [62, 99, 100, 101]
    S(f"""s_lshl_b32 s{sT}, s{S_W}, 2
    v_and_b32 v2, 0x38, v1
    v_lshl_add_u32 v2, v2, 1, s{sT}
    v_mul_u32_u24 v3, 1152, v2
    v_and_b32 v20, 7, v1
    v_lshl_add_u32 v{VXO}, v20, 4, v3
    s_lshl_b32 s76, s{S_W}, 3
    s_lshl1_add_u32 s76, s{S_W}, s76
    s_and_b32 s76, s76, 12
    v_and_b32 v2, 32, v1
    v_lshlrev_b32 v2, 12, v2
    v_and_b32 v20, 31, v1
    v_lshl_add_u32 v{VWO}, v20, 4, v2
    s_lshl_b32 s76, s76, 13
    s_mul_i32 s{sM}, s{sT}, {PITCH}
    s_lshl_b32 s75, s{S_H0}, 8
    s_add_u32 s75, s75, s76""")
    n = cfg.ngrp
    if cfg.order == "rot": orders = [[(round(9 * g / n) + c) % 9 for c in range(9)] for g in range(n)]
    else: orders = [[(c // n) * n + (c + g) % n if (c // n + 1) * n <= 9 else c for c in range(9)] for g in range(n)]
    tabs = [sum(x << (4 * i) for i, x in enumerate(o)) for o in orders]
    gtab = sum((i % n) << (2 * i) for i in range(16))
    S(f"""s_mul_i32 s76, s{S_P}, {cfg.rotp}
    s_add_u32 s76, s76, s{S_B}
    s_and_b32 s77, s{S_KQ}, {cfg.rotk}
    s_add_u32 s76, s76, s77
    s_lshl_b32 s76, s76, 1
    s_lshr_b32 s76, {gtab}, s76
    s_and_b32 s76, s76, 3
    s_mov_b32 s58, {tabs[0] & 0xffffffff}
    s_mov_b32 s59, {tabs[0] >> 32}""")
    for g in range(1, n):
        S(f"s_cmp_eq_u32 s76, {g}\ns_cselect_b32 s58, {tabs[g] & 0xffffffff}, s58\ns_cselect_b32 s59, {tabs[g] >> 32}, s59")
    S(f"s_mul_i32 s74, s{S_B}, 147456")
    srd_consts(S, (SX, SWQ))
    S("s_waitcnt lgkmcnt(0)")
    srd_bases(S, (SX, SWQ))
    def chunk(c, mid=None):
        base = slot((c % 3) * 3)
        S(f"""s_and_b32 s{sCC}, s58, 15
        s_lshr_b64 s[58:59], s[58:59], 4
        s_lshl_b32 s{sXb}, s{sCC}, 7
        s_add_u32 s{sXb}, s{sXb}, s74
        s_lshl_b32 s{sWb}, s{sCC}, 19
        s_add_u32 s{sWb}, s{sWb}, s75""")
        for i in range(4):
            S(f"s_add_u32 m0, s{sM}, {base + i*(PITCH-1152)}")
            S(f"buffer_load_dwordx4 v{VXO}, {srd(SX)}, s{sXb} offen offset:{i*1152} {cfg.pol_x} lds", tag=f"ch{c}")
        if mid: mid()
        for st in range(2):
            for i in range(4):
                S(f"s_add_u32 m0, s{sM}, {base + SLOT*(1+st) + i*PITCH}\ns_add_u32 s{sT}, s{sWb}, {(32*st+i)*8192}")
                S(f"buffer_load_dwordx4 v{VWO}, {srd(SWQ)}, s{sT} offen {cfg.pol_wq} lds", tag=f"ch{c}")
    def kv_lines(m):
        sr = SK if m < 2 else SV
        sb = sKV0 if m % 2 == 0 else sKV1
        o = [f"s_add_u32 s{sT}, s{sb}, 4096"]
        for j in range(8):
            o.append((f"buffer_load_dwordx4 {vr(KVREG[m]+4*j,4)}, v{VKV}, {srd(sr)}, s{sb if j < 4 else sT} offen offset:{(j&3)*1024} {cfg.pol_kv}", f"kv{m}"))
        return o
    def kv_load(m):
        for x in kv_lines(m): emit(S, x)
    def v_dma(m, sl):
        sb = sKV0 if m % 2 == 0 else sKV1
        S(f"""v_lshrrev_b32 v2, 4, v1
        v_lshlrev_b32 v2, 13, v2
        v_and_b32 v3, 15, v1
        v_lshl_add_u32 v2, v3, 4, v2
        s_lshl_b32 s76, s{S_W}, 11
        s_add_u32 s{sT}, s{sb}, s76
        s_lshl_b32 s76, s{sM}, 1""")
        for j in range(8):
            S(f"s_add_u32 m0, s76, {slot(sl) + j*(PITCH-256)}")
            S(f"buffer_load_dwordx4 v2, {srd(SV)}, s{sT} offen offset:{j*256} {cfg.pol_kv} lds", tag=f"kv{m}")
    def cond(lab, cls, mask, lines, pre=""):
        S(f"s_and_b32 s76, s{S_B}, {mask}\ns_cmp_lg_u32 s76, {cls}\ns_cbranch_scc1 {lab}")
        S.out += _raw(pre + "\n".join(x[0] if isinstance(x, tuple) else x for x in lines))
        S.label(lab)
    def kv_load_if(m, cls, ncls, pre=""):
        cond(f"L_kv{m}_{cls}", cls, ncls - 1, kv_lines(m), pre)
        if cls == ncls - 1: S.phantom([f"v{KVREG[m]+i}" for i in range(32)], f"kv{m}")
    def warm_lines():
        return f"""s_lshl_b32 s76, s{S_KQ}, 3
        s_add_u32 s76, s76, s{S_B}
        s_lshl_b32 s76, s76, 2
        s_add_u32 s76, s76, s{S_W}
        s_mul_i32 s76, s76, {32*1152}
        s_lshl_b32 s77, s{S_P}, 8
        s_add_u32 s76, s76, s77
        v_lshrrev_b32 v20, 1, v1
        v_mul_u32_u24 v20, 1152, v20
        v_and_b32 v3, 1, v1
        v_lshl_add_u32 v20, v3, 7, v20
        buffer_load_dword v22, v20, {srd(SWO)}, s76 offen {cfg.pol_wo}
        s_lshl_b32 s76, s{S_B}, 2
        s_add_u32 s76, s76, s{S_W}
        s_mul_i32 s76, s76, {8*1152}
        s_add_u32 s76, s76, s64
        v_and_b32 v21, 7, v1
        v_mul_u32_u24 v21, 1152, v21
        buffer_load_dword v23, v21, {srd(SWO)}, s76 offen offset:1024 {cfg.pol_wo}""".split("\n")
    def kv_write(m, sl):
        S.wait_vm_tag(f"kv{m}")
        S(f"s_setprio {cfg.wprio}")
        if "nolw" in cfg.dbg: return
        if m < 2:
            for j in range(8):
                S(f"v_add_u32 v2, {slot(sl) + j*4*PITCH}, v{VKW}")
                S(f"ds_write2_b64 v2, {vr(KVREG[m]+4*j,2)}, {vr(KVREG[m]+4*j+2,2)} offset0:0 offset1:2")
        else:
            S(f"v_add_u32 v2, {slot(sl)}, v{VVW}")
            for j in range(8):
                S(f"ds_write_b128 v2, {vr(KVREG[m]+4*j,4)} offset:{j*4*PITCH}")
    known = [0]; last_pub = [0]
    def wait_free(f, early=None):
        if f <= known[0]: return
        known[0] = f
        if cfg.nofree:
            S("s_sleep 5"); return
        lab = f"L_wf{f}"
        S.wait_lg(0)
        if cfg.trace and f >= cfg.trace_from: S(trace_raw(cfg, "loader", 100 + f))
        S(f"s_setprio {cfg.lprio}\nds_read_b32 v{VT}, v{VZ} offset:4\nv_readfirstlane_b32 s76, v{VT}")
        for x in swar(76, f): S(x)
        S(f"s_cbranch_scc0 {lab}")
        S.label(lab + "_ok")
        S("s_setprio 0")
        if cfg.trace and f >= cfg.trace_from: S(trace_raw(cfg, "loader", 200 + f))
        blk = spin_block(lab, lab + "_ok", VT, VZ, 4, 76, f, cfg.lsleep)
        if early and cfg.early: blk = blk[:1] + _raw(f"s_waitcnt vmcnt(0)\ns_mov_b32 s63, {early}\nv_mov_b32 v{VT}, {early}\nds_write_b8 v{VPA}, v{VT}\n" + (trace_raw(cfg, "loader", 400 + early) if f >= cfg.trace_from else "")) + blk[1:]
        S.cold += blk
    def publish(r):
        last_pub[0] = r
        S.wait_lg(0)
        S(f"s_setprio {cfg.lprio}\nv_mov_b32 v{VT}, {r}\nds_write_b8 v{VPA}, v{VT}\ns_setprio 0")
        if cfg.trace and known[0] >= cfg.trace_from: S(trace_raw(cfg, "loader", 300 + r))
        if cfg.adetail and r <= 12: stamp(S, cfg, r, True)
        if cfg.cdetail > 0 and 0 <= r - R_U < 12: stamp(S, cfg, 1 + r - R_U, True)
    chunk(0)
    first_stamps(S, cfg)
    stamp(S, cfg, 1)
    srd_consts(S, (SK, SV, SWO, SWS, SOUT, SDBG))
    srd_bases(S, (SK, SV, SWO, SWS, SOUT, SDBG))
    S(f"s_add_u32 s50, s64, {WS_FLAG}\ns_addc_u32 s51, s65, 0")
    if cfg.trace: S("s_mov_b32 s92, 0\nv_mov_b32 v250, 0\nv_mov_b32 v251, 0")
    if cfg.codepf:
        S(f"""s_getpc_b64 s[76:77]
        L_pc:
        s_lshr_b32 s{sT}, s2, 3
        s_lshl_b32 s{sT}, s{sT}, 2
        s_add_u32 s{sT}, s{sT}, s{S_W}
        s_mul_i32 s{sT}, s{sT}, 3
        v_min_u32 v2, 2, v1
        v_add_u32 v2, s{sT}, v2
        v_lshlrev_b32 v2, 7, v2
        v_min_u32 v2, L_end-L_pc, v2
        global_load_dword v23, v2, s[76:77]""")
    S(f"""v_mov_b32 v{VZ}, 0
    v_lshl_add_u32 v{VPA}, v1, 2, 64
    s_nop 1
    v_writelane_b32 v{VPA}, s{S_W}, 0
    v_add_u32 v{VEO}, 1024, v{VXO}
    s_lshl_b32 s76, s{S_W}, 13
    v_lshlrev_b32 v{VOO}, 4, v1
    v_add_u32 v{VKV}, s76, v{VOO}
    v_add_u32 v{VWW}, s{sM}, v{VOO}
    s_lshl_b32 s{sKV0}, s{S_B}, 5
    s_add_u32 s{sKV0}, s{sKV0}, s{S_H0}
    s_lshl_b32 s{sKV0}, s{sKV0}, 15
    s_add_u32 s{sKV1}, s{sKV0}, 32768
    v_lshrrev_b32 v2, 4, v1
    v_mul_u32_u24 v20, {PITCH}, v2
    s_lshl_b32 s76, s{S_W}, 8
    v_add_u32 v20, s76, v20
    v_and_b32 v3, 15, v1
    v_lshl_add_u32 v{VVW}, v3, 4, v20
    v_bfe_u32 v3, v1, 2, 2
    v_lshl_add_u32 v20, v3, 6, v20
    v_and_b32 v3, 1, v1
    v_lshl_add_u32 v20, v3, 5, v20
    v_bfe_u32 v3, v1, 1, 1
    v_lshl_add_u32 v{VKW}, v3, 3, v20""")
    for pi in range(4):
        d = sWP[pi]
        S(f"""s_add_u32 s76, s{S_P}, {pi}
        s_and_b32 s76, s76, 3
        s_lshl_b32 s77, s{S_KQ}, 2
        s_add_u32 s77, s77, s76
        s_mul_i32 s77, s77, {256*1152}
        s_lshl_b32 s{d}, s{S_P}, 8
        s_add_u32 s{d}, s{d}, s77""")
        if pi == 0: S("s_mov_b32 s64, s77")
        if True:
            S(f"""s_lshl_b32 s76, s76, 6
            s_and_b32 s77, s2, 63
            s_add_u32 s76, s76, s77
            s_lshl_b32 s76, s76, 2
            s_add_u32 s76, s76, s{S_W}
            s_lshl_b32 s{sOP[pi]}, s76, 14""")
            if pi: S(f"s_lshl_b32 s{54+pi}, s76, 8")
    npf = [0]; vp = [0]
    def code_touch():
        npf[0] += 1
        lab = f"L_pc{npf[0]}"
        S.out += _raw(f"""s_getpc_b64 s[52:53]
        {lab}:
        s_sub_u32 s52, s52, {lab}-L_pc
        s_subb_u32 s53, s53, 0
        s_lshr_b32 s76, s2, 3
        s_lshl2_add_u32 s76, s76, s{S_W}
        s_lshl_b32 s76, s76, 6""")
        for i in range(6):
            S.out += _raw(f"s_min_u32 s77, s76, L_end-L_pc\ns_load_dword s61, s[52:53], s77\ns_add_u32 s76, s76, 8192")
        S.smem_pending = True; S.lg.append(set())
    def tlb_touch(batch=0):
        def touch(bit, base, lines):
            if cfg.tlb & bit: S.out += _raw(lines + f"\ns_load_dword s60, s[{base}:{base+1}], s76")
        mode = cfg.tlbmode
        if batch == 0:
            touch(1, SV, f"s_lshl_b32 s76, s{S_W}, 14\ns_add_u32 s76, s76, s{sKV0}")
            touch(2, SK, f"s_lshl_b32 s76, s{S_W}, 14\ns_add_u32 s76, s76, s{sKV0}")
            if mode == "v1":
                for i in range(5):
                    touch(4, SWO, f"s_mul_i32 s76, s{S_KQ}, {1024*1152}\ns_lshl_b32 s77, s{S_W}, 16\ns_add_u32 s76, s76, s77\ns_add_u32 s76, s76, {i << 18}\ns_min_u32 s76, s76, {4718592 - 4}")
            else:
                touch(4, SWO, f"s_lshr_b32 s77, s2, 3\ns_lshl2_add_u32 s77, s77, s{S_W}\ns_mul_i32 s77, s77, {1179648 // 128}\ns_mul_i32 s76, s{S_KQ}, {1024*1152}\ns_add_u32 s76, s76, s77")
            if mode == "lite":
                touch(8, SWS, f"s_lshl_b32 s77, s{S_W}, 6\ns_add_u32 s77, s77, s2\ns_and_b32 s77, s77, 255\ns_lshl_b32 s76, s77, 16")
                touch(16, SWS, f"s_lshl_b32 s76, s77, 10\ns_add_u32 s76, s76, {WS_FLAG + 128}")
            else:
                for pi in range(4): touch(8, SWS, f"s_mov_b32 s76, s{sOP[pi]}")
                touch(16, SWS, f"s_lshr_b32 s76, s{sOP[0]}, 6\ns_add_u32 s76, s76, {WS_FLAG + 128}")
            touch(32, SWS, f"s_andn2_b32 s76, s2, 3\ns_add_u32 s76, s76, s{S_W}\ns_mul_i32 s76, s76, {4*6144}\ns_add_u32 s76, s76, {WS_D}")
            touch(64, SWS, f"s_lshl3_add_u32 s76, s{S_BLK}, s{S_B}\ns_lshl2_add_u32 s76, s76, s{S_W}\ns_lshl_b32 s76, s76, 16\ns_add_u32 s76, s76, {WS_DX}")
            touch(128, SOUT, f"s_lshl2_add_u32 s76, s{S_B}, s{S_W}\ns_mul_i32 s76, s76, {32*2304}")
            if mode == "dense":
                for i in range(1, 4):
                    touch(64, SWS, f"s_lshl3_add_u32 s76, s{S_BLK}, s{S_B}\ns_lshl2_add_u32 s76, s76, s{S_W}\ns_lshl_b32 s76, s76, 16\ns_add_u32 s76, s76, {WS_DX + i*16384}")
        else:
            for i in range(1, 4): touch(128, SOUT, f"s_lshl2_add_u32 s76, s{S_B}, s{S_W}\ns_mul_i32 s76, s76, {32*2304}\ns_add_u32 s76, s76, {i*8*2304}")
            for pi in range(1, 4): touch(16, SWS, f"s_lshr_b32 s76, s{sOP[pi]}, 6\ns_add_u32 s76, s76, {WS_FLAG + 128}")
            for i in range(1, 3): touch(32, SWS, f"s_andn2_b32 s76, s2, 3\ns_add_u32 s76, s76, s{S_W}\ns_mul_i32 s76, s76, {4*6144}\ns_add_u32 s76, s76, {WS_D + i*8192}")
            for i in range(1, 4):
                touch(1, SV, f"s_lshl_b32 s76, s{S_W}, 14\ns_add_u32 s76, s76, s{sKV0}\ns_add_u32 s76, s76, {i*4096}")
                touch(8, SWS, f"s_add_u32 s76, s{sOP[0]}, {i*4096}")
        S.smem_pending = True; S.lg.append(set())
    if cfg.tlb and cfg.tlbpos == -1: tlb_touch()
    S.wait_vm(9 if cfg.codepf else 8)
    chunk(1)
    S.wait_vm_tag("ch0")
    stamp(S, cfg, 2)
    S("s_barrier")
    def pubch(c):
        S.wait_vm_tag(f"ch{c}"); publish(c)
    chunk(2, None if cfg.abar else (lambda: pubch(1)))
    S(f"""v_lshlrev_b32 v2, 4, v2
    s_lshl_b32 s76, s{S_W}, 2
    v_add_u32 v2, s76, v2
    v_mul_u32_u24 v2, 1152, v2
    s_lshl_b32 s76, s{S_KQ}, 6
    v_add_u32 v3, s76, v{VOO}
    v_and_b32 v3, 0xff, v3
    v_add_u32 v{VMO}, v2, v3
    v_min_u32 v2, 2, v1
    v_add3_u32 v2, v2, s{S_P}, 1
    v_and_b32 v2, 3, v2
    v_lshlrev_b32 v2, 6, v2
    s_and_b32 s76, s2, 63
    v_add_u32 v2, s76, v2
    v_lshlrev_b32 v2, 2, v2
    v_add_u32 v2, s{S_W}, v2
    v_lshlrev_b32 v{VFL}, 8, v2
    s_lshl_b32 s{sMo}, s{S_W}, 12""")
    if cfg.tlb and cfg.tlbpos == 0: tlb_touch()
    if cfg.diagsleep: S(f"s_sleep {cfg.diagsleep}")
    for c in range(1, 7):
        if cfg.abar:
            S.wait_vm_tag(f"ch{c}"); stamp(S, cfg, c, cfg.adetail) if cfg.adetail else None; S("s_barrier"); known[0] = c
        else:
            wait_free(c, c + 1)
            pubch(c + 1)
        if c == 4: nonce_issue(S, VN, VZ)
        if not cfg.nodma: chunk(c + 2)
        if str(c) in cfg.cpf.split(","): code_touch()
        if cfg.vpf and str(c) in cfg.vpfpos.split(","):
            S.out += _raw(f"s_lshl_b32 s76, s{S_W}, 13\ns_add_u32 s76, s76, s{sKV0}\n" +
                          "\n".join(f"s_load_dword s61, s[{SV}:{SV+1}], s76 offset:{(vp[0] + i) * 64}" for i in range(cfg.vpf)))
            vp[0] += cfg.vpf
            S.smem_pending = True; S.lg.append(set())
        if cfg.tlb and cfg.tlbpos == c: tlb_touch()
        if cfg.tlb and cfg.tlbmode == "dense" and c == cfg.tlbpos2: tlb_touch(1)
        for item in cfg.akv.split(","):
            what, first, ncls, rot = (item.split(":") + ["0"])[:4]
            first, ncls, rot = int(first), int(ncls), int(rot)
            if not 0 <= c - first < ncls: continue
            cond(f"L_a{what}_{c}", (c - first + rot) % ncls, ncls - 1, warm_lines() if what == "w" else kv_lines(int(what)), f"s_waitcnt vmcnt({cfg.kvwait})\n")
            if what != "w" and c - first == ncls - 1: S.phantom([f"v{KVREG[int(what)]+i}" for i in range(32)], f"kv{what}")
    nonce_check(S, VN, VZ, "L_ln")
    units, slots = c_units(), c_slots()
    def w_src(j):
        uk, hh, x = units[j]
        if uk == "M": return VMO, 65, (hh * 128 + 64 * x) * 1152
        if uk == "E": return VEO, 64, hh * 128 * 1152
        return VMO, sWP[1 + x % 3], (hh * 128 + 64 * (x // 3)) * 1152
    blocks = [152 + 16 * i for i in range(6)]
    parked = {}
    def w_load(j):
        va, sb, off = w_src(j)
        S(f"s_add_u32 s{sA}, s{sb}, {off}")
        if slots[("W", j)][1] <= known[0] and (j not in (3, 4, 9, 10) or (j > 4) in picked):
            lds_w.add(j)
            for i in range(4):
                S(f"s_add_u32 m0, s{sM}, {slot(slots[('W', j)][0]) + i*(PITCH-1152)}")
                S(f"buffer_load_dwordx4 v{va}, {srd(SWO)}, s{sA} offen offset:{i*1152} {cfg.pol_wo} lds", tag=f"u{j}")
        else:
            parked[j] = blocks.pop(0)
            for i in range(4 if "nopark" not in cfg.dbg else 0):
                S(f"buffer_load_dwordx4 {vr(parked[j]+4*i,4)}, v{va}, {srd(SWO)}, s{sA} offen offset:{i*1152} {cfg.pol_wo}", tag=f"u{j}w")
    lds_w = set()
    def w_write(j):
        assert j not in (3, 4, 9, 10) or (j > 4) in picked
        wait_free(slots[("W", j)][1])
        lds_w.add(j)
        S.wait_vm_tag(f"u{j}w")
        S(f"s_setprio {cfg.wprio if j < 7 else cfg.wprio2}\nv_add_u32 v2, {slot(slots[('W', j)][0])}, v{VWW}")
        for i in range(4 if not ("now" in cfg.dbg and j > 6 or "nolw" in cfg.dbg) else 0): S(f"ds_write_b128 v2, {vr(parked[j]+4*i,4)} offset:{i*PITCH}")
        S.wait_lg(0)
        S("s_setprio 0")
        blocks.append(parked.pop(j))
    def warm():
        for x in warm_lines(): S(x)
    issued, polled = set(), set()
    EV = c_events(cfg)
    def poll_issue(hh):
        issued.add(hh)
        S(f"s_mov_b32 s76, {WS_FLAG}")
        S(f"buffer_load_dword v{VP0 + (hh & 1)}, v{VFL}, {srd(SWS)}, s76 offen offset:{64*hh} sc1")
    def poll(hh):
        lab = f"L_poll{hh}"
        polled.add(hh)
        if "nopoll" in cfg.dbg: return
        if cfg.spoll:
            S.wait_lg(0)
            S(f"s_mov_b32 s77, {SPIN_LIMIT}")
            S.label(lab)
            S.out += _raw("\n".join(f"s_load_dword s{52+i}, s[50:51], s{55+i} offset:{64*hh} glc" for i in range(3)) + f"""
            s_waitcnt lgkmcnt(0)
            s_xor_b32 s52, s52, s{S_NONCE}
            s_xor_b32 s53, s53, s{S_NONCE}
            s_xor_b32 s54, s54, s{S_NONCE}
            s_or_b32 s52, s52, s53
            s_or_b32 s52, s52, s54
            s_cbranch_scc0 {lab}_ok
            s_sub_u32 s77, s77, 1
            s_cmp_lg_u32 s77, 0
            s_cbranch_scc1 {lab}""")
            S.label(f"{lab}_ok")
            return
        if hh not in issued: poll_issue(hh)
        v = VP0 + (hh & 1)
        S(f"v_cmp_eq_u32 vcc, s{S_NONCE}, v{v}")
        S(f"s_cmp_eq_u64 vcc, -1\ns_cbranch_scc0 {lab}")
        S.label(f"{lab}_ok")
        S.cold += _raw(f"""{lab}:
        s_mov_b32 s76, {WS_FLAG}
        s_mov_b32 s77, {SPIN_LIMIT}
        {lab}_spin:
        buffer_load_dword v{v}, v{VFL}, {srd(SWS)}, s76 offen offset:{64*hh} sc1
        s_waitcnt vmcnt(0)
        v_cmp_eq_u32 vcc, s{S_NONCE}, v{v}
        s_nop 1
        s_cmp_eq_u64 vcc, -1
        s_cbranch_scc1 {lab}_ok
        s_sub_u32 s77, s77, 1
        s_cmp_lg_u32 s77, 0
        s_cbranch_scc1 {lab}_spin
        s_branch {lab}_ok""")
    oreg, picked = {}, set()
    def pickup(h):
        wait_free((F_O0, F_O1)[h])
        S(f"s_setprio {cfg.lprio}\nv_add_u32 v2, {slot(2 - 2*h)}, v{VWW}")
        for x in range(2):
            oreg[2*h + x] = blocks.pop(0)
            for i in range(4): S(f"ds_read_b128 {vr(oreg[2*h+x] + 4*i, 4)}, v2 offset:{x*SLOT + i*1024}")
        S.wait_lg(0)
        S("s_setprio 0")
        picked.add(h)
    def o_store(k):
        if "nost" in cfg.dbg: return
        S(f"s_add_u32 s{sA}, s{sOP[0]}, {WS_O + k*4096}")
        for i in range(4):
            S(f"buffer_store_dwordx4 {vr(oreg[k] + 4*i, 4)}, v{VOO}, {srd(SWS)}, s{sA} offen offset:{i*1024} {cfg.pol_st}", tag=f"o{k}")
    def o_flag(k):
        S.wait_vm_tag(f"o{k}")
        S(f"""s_lshr_b32 s76, s{sOP[0]}, 6
        s_add_u32 s76, s76, {WS_FLAG + 64*k}
        v_mov_b32 v3, s{S_NONCE}
        buffer_store_dword v3, v{VZ}, {srd(SWS)}, s76 offen sc1""")
        blocks.append(oreg.pop(k))
    def kv_duty(m, sl, f, r):
        wait_free(f); kv_write(m, sl); publish(r)
        blocks.extend([KVREG[m], KVREG[m] + 16])
    if cfg.prog2:
        S(f"s_and_b32 s76, s{S_B}, 1\ns_cmp_lg_u32 s76, 0\ns_cbranch_scc1 L_fork_c1")
        S.label("L_fork")
        S.ncold = len(S.cold)
    prog = PROGS[S.progname].split()
    for after in cfg.cpfop.split(","):
        if after: prog.insert(prog.index(after) + 1, "cpf")
    if cfg.stop == "A": prog = ["bA7", "bA8"] if cfg.abar else ["p8"]
    if cfg.stop == "B": prog = [x for x in prog if x[0] in "KVpPS" or x[:2] in ("wK", "wV", "bA")]
    for op in prog:
        if cfg.ptrace and (not cfg.pfilter or op in cfg.pfilter.split(",")): S(trace_raw(cfg, "loader", op))
        if op in ("K1", "V0", "V1"): kv_load({"K1": 1, "V0": 2, "V1": 3}[op])
        elif "@" in op: kv_load_if({"K1": 1, "V0": 2, "V1": 3}[op[:2]], int(op[3]), 2)
        elif op in ("D0", "D1"):
            m = 2 + int(op[1]); wait_free(8 + int(op[1])); v_dma(m, 4 + 2 * int(op[1])); blocks.extend([KVREG[m], KVREG[m] + 16])
        elif op in ("pV0", "pV1"):
            S.wait_vm_tag(f"kv{2 + int(op[2])}"); publish((R_V0, R_V1)[int(op[2])])
        elif op == "warm": warm()
        elif op == "p8": S.wait_vm_tag("ch8"); publish(8)
        elif op[0] == "b":
            j = int(op[2:])
            S.wait_vm_tag(f"ch{j}"); known[0] = j
            S.wait_lg(0)
            if cfg.adetail: stamp(S, cfg, j, True)
            S("s_barrier")
        elif op == "wK0": kv_duty(0, 0, 7, R_K0)
        elif op == "wK1": kv_duty(1, 2, 8, R_K1)
        elif op == "wV0": kv_duty(2, 4, 8, R_V0)
        elif op == "wV1": kv_duty(3, 6, 9, R_V1)
        elif op[0] == "W": w_load(int(op[1:]))
        elif op[0] == "w": w_write(int(op[1:]))
        elif op[0] == "f": wait_free(int(op[1:]))
        elif op[0] == "q": poll(int(op[1:]))
        elif op[0] == "Q": poll_issue(int(op[1:]))
        elif op[0] == "P": pickup(int(op[1:]))
        elif op[0] == "S": o_store(int(op[1:]))
        elif op[0] == "G": o_flag(int(op[1:]))
        elif op == "cpf": code_touch()
        elif op[0] == "z": S(f"s_sleep {op[1:]}")
        elif op[0] == "R":
            name = op[1:]
            if name in WSET:
                for j in WSET[name]:
                    if j in parked: w_write(j)
                    assert j in lds_w
                    S.wait_vm_tag(f"u{j}")
            else: assert int(name[2]) in polled
            assert EV[name][0] == last_pub[0] + 1, (name, EV, last_pub)
            publish(EV[name][0])
        else: raise ValueError(op)
    stamp(S, cfg, 3)
    if cfg.trace:
        S(f"s_lshl_b32 s66, s2, 2\ns_add_u32 s66, s66, s{S_W}\ns_lshl_b32 s66, s66, 9\ns_add_u32 s66, s66, {WS_STAMP + (1 << 20)}\nv_lshlrev_b32 v2, 2, v1")
        S(f"buffer_store_dword v250, v2, {srd(SWS)}, s66 offen\nbuffer_store_dword v251, v2, {srd(SWS)}, s66 offen offset:256")
    if cfg.stop:
        S.wait_vm(0); stamps_store(S, cfg); S("s_branch L_end"); return
    S(f"s_cmp_lg_u32 s{S_W}, 0\ns_cbranch_scc1 L_lfin")
    R = 64
    S(f"""v_and_b32 v2, 7, v1
    v_bfe_u32 v3, v1, 3, 2
    v_lshl_add_u32 v2, v3, 4, v2
    s_and_b32 s76, s{S_P}, 1
    s_lshl_b32 s76, s76, 3
    v_add_u32 v2, s76, v2
    v_lshlrev_b32 v2, 4, v2
    v_lshrrev_b32 v3, 5, v1
    v_lshl_add_u32 v4, v3, 14, v2
    s_lshl_b32 s{sA}, s{S_BLK}, 3
    s_add_u32 s{sA}, s{sA}, s{S_B}
    s_lshl_b32 s{sA}, s{sA}, 6
    s_add_u32 s{sA}, s{sA}, s{S_KQ}
    s_lshl_b32 s{sA}, s{sA}, 1
    s_lshr_b32 s76, s{S_P}, 1
    s_add_u32 s{sA}, s{sA}, s76
    s_lshl_b32 s{sA}, s{sA}, 11
    s_add_u32 s{sA}, s{sA}, {WS_DX}
    s_and_b32 s72, s{S_NONCE}, 1
    s_lshl_b32 s73, s{S_NONCE}, 15
    s_and_b32 s73, s73, 0x10000
    s_or_b32 s72, s72, s73
    v_mov_b32 v8, 0x10001
""")
    wait_free(F_DX)
    S(f"s_mov_b32 s77, {SPIN_LIMIT}")
    S.label("L_dx")
    for r in range(8):
        S(f"s_add_u32 s{sT}, s{sA}, {r*2*16384}")
        for gm in range(2):
            S(f"buffer_load_dwordx4 {vr(R+8*r+4*gm,4)}, v4, {srd(SWS)}, s{sT} offen offset:{gm*1024} sc1")
    S(f"v_xor_b32 v5, s72, v{R}")
    for i in range(1, 64): S(f"v_bitop3_b32 v5, v5, v{R+i}, s72 bitop3:0xf6")
    S("v_and_b32 v5, v5, v8\nv_cmp_eq_u32 vcc, 0, v5\ns_cmp_eq_u64 vcc, -1\ns_cbranch_scc1 L_dx_ok")
    S("s_sleep 4\ns_sub_u32 s77, s77, 1\ns_cmp_lg_u32 s77, 0\ns_cbranch_scc1 L_dx")
    S.label("L_dx_ok")
    AC = 24
    S("v_mov_b32 v9, 0xfffefffe")
    for i in range(64): S(f"v_and_b32 v{R+i}, v9, v{R+i}")
    for r in range(8):
        for d in range(8):
            src = R + 8 * r + d
            if r == 0:
                S(f"v_lshlrev_b32 v{AC+2*d}, 16, v{src}\nv_and_b32 v{AC+2*d+1}, 0xffff0000, v{src}")
            else:
                S(f"v_lshlrev_b32 v6, 16, v{src}\nv_and_b32 v7, 0xffff0000, v{src}\nv_add_f32 v{AC+2*d}, v{AC+2*d}, v6\nv_add_f32 v{AC+2*d+1}, v{AC+2*d+1}, v7")
    for i in range(8): S(f"v_permlane32_swap_b32 v{AC+i}, v{AC+8+i}")
    for i in range(8): S(f"v_add_f32 v{AC+i}, v{AC+i}, v{AC+8+i}")
    for i in range(4): S(f"v_cvt_pk_bf16_f32 v{44+i}, v{AC+2*i}, v{AC+2*i+1}")
    S(f"""v_and_b32 v2, 7, v1
    s_lshl_b32 s76, s{S_B}, 7
    s_lshl_b32 s77, s{S_KQ}, 5
    s_add_u32 s76, s76, s77
    s_lshl_b32 s77, s{S_P}, 3
    s_add_u32 s76, s76, s77
    v_add_u32 v2, s76, v2
    v_mul_u32_u24 v2, 2304, v2
    v_bfe_u32 v3, v1, 3, 2
    v_lshl_add_u32 v2, v3, 3, v2
    v_lshrrev_b32 v3, 5, v1
    v_lshl_add_u32 v2, v3, 6, v2
    s_mul_i32 s76, s{S_BLK}, 1152
    s_add_u32 s76, s76, 1024
    buffer_store_dwordx2 v[44:45], v2, {srd(SOUT)}, s76 offen {cfg.pol_out}
    buffer_store_dwordx2 v[46:47], v2, {srd(SOUT)}, s76 offen offset:32 {cfg.pol_out}""")
    S.label("L_lfin")
    if cfg.stamps: S("s_waitcnt vmcnt(0)")
    stamps_store(S, cfg)
    S("s_branch L_end")

def compute(S, cfg):
    VX, VW = [4, 5, 6], [7, 8, 9]
    VK, VV, VOST, VZ, VN = [10, 11], [12, 13], 14, 15, 16
    VM, VT, VRC, VPR, VFA, VFT, VPR2 = [16, 17], 19, [[20, 21], [22, 23]], 18, 2, 3, 19
    ONES, LS = 56, [60, 4]
    QP = lambda h: 64 + 32 * h
    SS = lambda h: 128 + 64 * h
    PP = 64
    OF = lambda h, s, u: 96 + 8 * s + 4 * u if h == 0 else 192 + 16 * s + 4 * u
    S.label("L_compute")
    S(f"v_mov_b32 v{VZ}, 0")
    srd_consts(S, (SWS, SOUT, SDBG))
    S("s_waitcnt lgkmcnt(0)")
    first_stamps(S, cfg)
    srd_bases(S, (SWS, SOUT, SDBG))
    S(f"s_or_b32 s66, s2, s3\ns_cmp_lg_u32 s66, 0\ns_cbranch_scc1 L_notag")
    S.out += _raw(f"""s_mov_b32 s66, {WS_EPOCH}
    buffer_load_dword v2, v{VZ}, {srd(SWS)}, s66 offen sc1
    s_waitcnt vmcnt(0)
    v_add_u32 v2, 1, v2
    v_max_u32 v2, 1, v2
    buffer_store_dword v2, v{VZ}, {srd(SWS)}, s66 offen sc1
    buffer_store_dword v2, v{VZ}, {srd(SDBG)}, 0 offen sc1
    s_waitcnt vmcnt(0)""")
    S.label("L_notag")
    S(f"""v_and_b32 v22, 15, v1
    v_lshrrev_b32 v23, 4, v1
    v_mul_u32_u24 v2, {PITCH}, v22
    v_lshl_add_u32 v{VK[0]}, v23, 4, v2
    v_add_u32 v{VK[0]}, {LB}, v{VK[0]}
    v_add_u32 v{VK[1]}, {2*SLOT}, v{VK[0]}
    s_lshl_b32 s66, s{S_W}, 8
    v_add_u32 v{VX[0]}, s66, v{VK[0]}
    v_add_u32 v{VX[1]}, {3*SLOT}, v{VX[0]}
    v_add_u32 v{VX[2]}, {6*SLOT}, v{VX[0]}
    v_bfe_u32 v2, v1, 2, 3
    v_mul_u32_u24 v2, {PITCH}, v2
    v_lshrrev_b32 v3, 5, v1
    v_lshl_add_u32 v2, v3, 9, v2
    v_and_b32 v3, 3, v1
    v_lshl_add_u32 v2, v3, 3, v2
    v_add_u32 v{VW[0]}, {slot(1)}, v2
    v_add_u32 v{VW[1]}, {slot(4)}, v2
    v_add_u32 v{VW[2]}, {slot(7)}, v2
    v_lshrrev_b32 v2, 2, v1
    v_mul_u32_u24 v2, {PITCH}, v2
    v_lshl_add_u32 v2, v3, 3, v2
    v_add_u32 v{VV[0]}, {slot(4)}, v2
    v_add_u32 v{VV[1]}, {slot(6)}, v2
    s_mul_i32 s66, s{S_W}, {4*PITCH}
    s_add_u32 s66, s66, {slot(0)}
    v_lshlrev_b32 v{VOST}, 4, v1
    v_add_u32 v{VOST}, s66, v{VOST}
    s_add_u32 s66, s{S_W}, 4
    v_lshl_add_u32 v{VFA}, v1, 2, 64
    s_nop 1
    v_writelane_b32 v{VFA}, s66, 0
    s_mov_b32 s{S_C}, {f32(math.log2(math.e) / math.sqrt(128.0))}
    s_mov_b32 s58, s{S_C}
    s_mov_b32 s59, s{S_C}""")
    for pi in range(1, 4):
        S(f"s_add_u32 s66, s2, {64*pi}\ns_and_b32 s66, s66, 255\ns_lshl2_add_u32 s66, s66, s{S_W}\ns_lshl_b32 s{95+pi}, s66, 14")
        S(f"s_add_u32 s66, s{S_KQ}, {pi}\ns_and_b32 s66, s66, 3\ns_andn2_b32 s67, s2, 3\ns_add_u32 s66, s66, s67\ns_lshl2_add_u32 s66, s66, s{S_W}\ns_mul_i32 s66, s66, 6144\ns_add_u32 s{(100, 101, 57)[pi-1]}, s66, {WS_D + (pi-1)*2048}")
    S(f"""s_lshl3_add_u32 s66, s{S_BLK}, s{S_B}
    s_lshr_b32 s67, s{S_H0}, 1
    s_lshl4_add_u32 s66, s66, s67
    s_lshl2_add_u32 s66, s66, s{S_W}
    s_lshl_b32 s66, s66, 12
    s_add_u32 s99, s66, {WS_DX}
    s_lshl2_add_u32 s74, s2, s{S_W}
    s_mul_i32 s74, s74, 6144
    s_add_u32 s74, s74, {WS_D}
    s_add_u32 s75, s74, 4096
    s_lshl2_add_u32 s70, s{S_B}, s{S_W}
    s_mul_i32 s70, s70, {32*2304}
    s_mul_i32 s71, s{S_BLK}, 1152
    s_add_u32 s70, s70, s71
    s_lshl2_add_u32 s71, s{S_P}, s{S_KQ}
    s_lshl_b32 s71, s71, 6
    s_add_u32 s70, s70, s71
    s_add_u32 s71, s70, {16*2304}""")
    G = []
    def add(reads, mf, lead, need=None, free=None, gate=None, bar=False):
        G.append(dict(reads=reads, mf=mf, gate=len(G) - lead if gate is None else gate, need=need, free=free, bar=bar))
    ACC = lambda t, u: 128 + 8 * t + 4 * u
    ARING = [96, 104, 112, 120, 56]
    XF = lambda c, s, u: 24 + 16 * (c & 1) + 8 * s + 4 * u
    for c in range(9):
        for t in range(16):
            rg = ARING[len(G) % 5]
            rd = [f"ds_read_b64_tr_b16 {vr(rg+4*s+2*r,2)}, v{VW[c%3]} offset:{s*SLOT + r*8*PITCH + 32*t}" for s in range(2) for r in range(2)]
            if t == 0: rd = [f"ds_read_b128 {vr(XF(c,s,u),4)}, v{VX[c%3]} offset:{128*u + 64*s}" for s in range(2) for u in range(2)] + rd
            add(rd, [mfma(ACC(t, u), rg + 4*s, XF(c, s, u), first=(c == 0 and s == 0)) for u in range(2) for s in range(2)], cfg.alead,
                need=c if t == 0 and c and not cfg.abar else None, free=c + 1 if t == 15 and (c == 8 or not cfg.abar) else None, bar=cfg.abar and t == 0 and c > 0)
    gA = len(G)
    fill = [(gA - 6, gA, pack(QP(0), 128))]
    tail_fill = None
    KR = lambda i: 24 + 4 * ((i + 4) & 7)
    def qk(h):
        for i in range(32):
            kt, s = i >> 2, i & 3
            add([f"ds_read_b128 {vr(KR(i),4)}, v{VK[h]} offset:{(kt&1)*16*PITCH + (kt>>1)*256 + 64*s}"],
                [mfma(SS(h)+8*kt+4*u, KR(i), QP(h)+8*s+4*u, first=(s == 0)) for u in range(2)], cfg.blead,
                need=R_K0 + h if i == 0 else None, free=F_QK0 + h if i == 31 else None,
                gate=(gA - 3 if i < 4 else max(gA, len(G) - cfg.blead)) if h == 0 else None)
            G[-1]["wait4"] = (i & 3) == 0
    def pv(h):
        g0 = len(G)
        for i in range(32):
            dt, j = i >> 2, i & 3
            add([f"ds_read_b64_tr_b16 {vr(KR(i)+2*r,2)}, v{VV[h]} offset:{r*16*PITCH + j*256 + 32*dt}" for r in range(2)],
                ([mfma(LS[u], ONES, PP+8*jj+4*u, first=(jj == 0)) for u in range(2) for jj in range(4)] if i == 0 else []) +
                [mfma(SS(h)+8*dt+4*u, KR(i), PP+8*j+4*u, first=(j == 0)) for u in range(2)], cfg.blead,
                need=(R_V0, R_V1)[h] if i == 0 else None, free=(F_PV0, F_PV1)[h] if i == 31 else None,
                gate=max(len(G) - cfg.blead, g0 - (3, 3, 2, 2, 1, 1, 0, 0)[i]) if (h == 1 and i < 8) else None)
            G[-1]["wait4"] = (i & 3) == 0
    def softmax(h):
        s = SS(h)
        el = [[s + 8*kt + 4*u + r for kt in range(8) for r in range(4)] for u in range(2)]
        o = []
        for i in range(16):
            for u in range(2):
                e = el[u]
                if i == 0: o.append(f"v_max3_f32 v{VM[u]}, v{e[0]}, v{e[1]}, v{e[2]}")
                elif i < 15: o.append(f"v_max3_f32 v{VM[u]}, v{VM[u]}, v{e[2*i+1]}, v{e[2*i+2]}")
                else: o.append(f"v_max_f32 v{VM[u]}, v{VM[u]}, v{e[31]}")
        a, b = VM
        o += [f"v_permlane32_swap_b32 v{a}, v{b}", f"v_max_f32 v{a}, v{a}, v{b}", f"v_mov_b32 v{b}, v{a}",
              f"v_permlane16_swap_b32 v{a}, v{b}", f"v_max_f32 v{a}, v{a}, v{b}", f"v_mul_f32 v{a}, s{S_C}, v{a}", f"v_mov_b32 v{b}, v{a}",
              f"v_permlane32_swap_b32 v{a}, v{b}"]
        order = [(kt, u, r) for kt in range(8) for u in range(2) for r in range(4)]
        D = 2
        for i in range(64 + 2 * D):
            if i < 64:
                kt, u, r = order[i]; x = s + 8*kt + 4*u + r
                if not cfg.pk: o.append(f"v_fma_f32 v{x}, v{x}, s{S_C}, -v{VM[u]}")
                elif r % 2 == 0: o.append(f"v_pk_fma_f32 {vr(x,2)}, {vr(x,2)}, s[58:59], {vr(VM[0],2)} op_sel:[0,0,{u}] op_sel_hi:[1,1,{u}] neg_lo:[0,0,1] neg_hi:[0,0,1]")
            j = i - D
            if 0 <= j < 64:
                kt, u, r = order[j]; x = s + 8*kt + 4*u + r
                o.append(f"v_exp_f32 v{x}, v{x}")
            j = i - 2 * D
            if 0 <= j < 64:
                kt, u, r = order[j]; x = s + 8*kt + 4*u + r
                if r & 1: o.append(f"v_cvt_pk_bf16_f32 v{PP+8*(kt>>1)+4*u+2*(kt&1)+(r>>1)}, v{x-1}, v{x}")
        return o
    sig = [0]
    def signal(f):
        assert f > sig[0], (f, sig[0])
        sig[0] = f
        S(f"v_mov_b32 v{VFT}, {f}\nds_write_b8 v{VFA}, v{VFT}")
    def o_pack(h):
        s = SS(h); o = []
        need = (F_QK1, FU[1])[h]; lab = f"L_st{h}"
        def chk():
            S(f"v_readfirstlane_b32 s64, v{VPR2}")
            for x in swar(64, need): S(x)
            S(f"s_cbranch_scc0 {lab}")
            S.label(lab + "_ok")
            S.cold += spin_block(lab, lab + "_ok", VPR2, VZ, 4, 64, need, 0)
        for st in range(4):
            part = [f"ds_read_b32 v{VPR2}, v{VZ} offset:4"] if st == 0 else []
            for u in range(2):
                for e in range(2):
                    for r in range(4):
                        x = s + 8*(2*st+e) + 4*u + r
                        if not cfg.pk: part.append(f"v_mul_f32 v{x}, v{x}, v{VRC[h][u]}")
                        elif r % 2 == 0: part.append(f"v_pk_mul_f32 {vr(x,2)}, {vr(x,2)}, {vr(VRC[h][0],2)} op_sel:[0,{u}] op_sel_hi:[1,{u}]")
                i = 2 * st + u
                part += [f"v_cvt_pk_bf16_f32 v{OF(h,st,u)+2*e+x}, v{s+8*(2*st+e)+4*u+2*x}, v{s+8*(2*st+e)+4*u+2*x+1}" for e in range(2) for x in range(2)]
                if i == 0: part.append(chk)
                part.append((f"ds_write_b128 v{VOST}, {vr(OF(h,st,u),4)} offset:{(2 - 2*h + (i >> 2))*SLOT + (i & 3)*1024}", f"st{h}"))
            o.append(part)
        def done():
            S.wait_lg_tag(f"st{h}"); signal((F_O0, F_O1)[h])
        return o, done
    rcp = lambda h: [f"v_rcp_f32 v{VRC[h][u]}, v{LS[u]}" for u in range(2)]
    st = lambda i: (lambda: stamp(S, cfg, i))
    def pack_fill(h, g0):
        op, done = o_pack(h)
        return [(g0 + 4, g0 + 5, rcp(h)), (g0 + 10, g0 + 18, op[0]), (g0 + 18, g0 + 26, op[1]), (g0 + 26, g0 + 33, op[2]), (g0 + 33, g0 + 35, op[3]), (g0 + 35, g0 + 36, [done, "s_wakeup"])]
    if cfg.stop != "A":
        qk(0); qk(1); pv(0)
        fill += [(gA, gA + 1, [st(2), lambda: nonce_issue(S, VT, VZ)]),
                 (gA, gA + 32, pack(QP(1), 192) + [f"v_mov_b32 v{ONES+i}, 0x3f803f80" for i in range(4)]),
                 (gA + 32, gA + 33, [st(3)]), (gA + 33, gA + 64, softmax(0)),
                 (gA + 56, gA + 57, [lambda: nonce_check(S, VT, VZ, "L_cn")]), (gA + 64, gA + 65, [st(4)])] + pack_fill(0, gA + 64)
    gC0 = len(G)
    units, slots, EV = c_units(), c_slots(), c_events(cfg)
    VA, VL16 = [8, 9, 10], 11
    MC = lambda nt, u: 128 + 8 * nt + 4 * u
    EC = lambda nt, u: 200 + 16 * nt + 4 * u
    CRING = [40, 48, 24, 32, 56]
    OBUF = [(64, 8), (80, 8), (96, 8), (112, 8), (192, 16), (224, 16)]
    if cfg.defer < 12: OBUF += [(200, 16), (232, 16)]
    OB = lambda j, s, u: OBUF[(j - 6) % len(OBUF)][0] + OBUF[(j - 6) % len(OBUF)][1] * s + 4 * u
    sOP = [None, 96, 97, 98]
    if cfg.stop is None:
        setup = [f"v_add_u32 v{VA[0]}, {-6*SLOT & 0xffffffff}, v{VV[1]}", f"v_add_u32 v{VA[1]}, {-3*SLOT & 0xffffffff}, v{VV[1]}", f"v_mov_b32 v{VA[2]}, v{VV[1]}",
                 f"v_lshlrev_b32 v{VL16}, 4, v1"]
        fill += [(gA + 65, gA + 69, setup)]
        gC = gC0 + 32
        def cgroup(j, n, **kw):
            uk, hh, x = units[j]
            sl = slots[("W", j)][0]
            va, so = VA[sl // 3], (sl % 3) * SLOT
            k = len(G) - (gC0 if j < 2 else gC)
            rg = CRING[k % 4] if k < 32 else CRING[(k - 32) % 5]
            if uk == "E":
                nt, sp = n >> 1, n & 1
                rd = [f"ds_read_b64_tr_b16 {vr(rg+4*s+2*r,2)}, v{va} offset:{so + (2*(2*sp+s)+r)*128 + 32*nt}" for s in range(2) for r in range(2)]
                mf = [mfma(EC(nt, u), rg + 4*s, OF(hh, 2*sp+s, u), first=(hh == 0 and sp == 0 and s == 0)) for u in range(2) for s in range(2)]
            else:
                bf = (lambda s, u: OF(hh, 2*x+s, u)) if uk == "M" else (lambda s, u: OB(j, s, u))
                rd = [f"ds_read_b64_tr_b16 {vr(rg+4*s+2*r,2)}, v{va} offset:{so + (2*s+r)*256 + 32*n}" for s in range(2) for r in range(2)]
                mf = [mfma(MC(n, u), rg + 4*s, bf(s, u), first=(j == 0 and s == 0)) for u in range(2) for s in range(2)]
            need = None
            for name, us in WSET.items():
                if j in us and name not in seen: need = EV[name][0]; seen.add(name)
            b0 = len(G) - (k & 3)
            add(rd, mf, 3 if k < 36 else 4, gate={0: b0 - 6, 1: b0 - 4, 2: b0 - 2, 3: b0}[k & 3] if (k & ~3) in (0, 16) else None, need=need, **kw)
        seen = set(); gU = {}
        for j in range(cfg.merge):
            if j == 2:
                fill += [(gC0, gC0 + 1, [st(5)]), (gC0 + 3, gC0 + 16, softmax(1)), (len(G), len(G) + 1, [st(6)])] + pack_fill(1, len(G))
                pv(1)
            gU[j] = len(G)
            for n in range(2 if j >= cfg.defer else 0, 8): cgroup(j, n, free=FU.get(j) if n == 7 else None)
        gM = len(G)
        nm_ = 18 - cfg.merge
        for tau in (1, 2, 3):
            for j in range(cfg.merge, 18):
                for e in range(2): cgroup(j, 2 * tau + e)
        for j in range(min(cfg.defer, cfg.merge), 18):
            for e in range(2): cgroup(j, e)
        def o_loads(j):
            uk, hh, x = units[j]
            return [f"s_add_u32 s{48 + j % 6}, s{sOP[1 + x % 3]}, {WS_O + hh*8192 + (x // 3)*4096}"] + \
                   [f"buffer_load_dwordx4 {vr(OB(j, i >> 1, i & 1), 4)}, v{VL16}, {srd(SWS)}, s{48 + j % 6} offen offset:{i*1024} {cfg.pol_o}" for i in range(4)]
        for k in range(4):
            num, p0 = EV[f"OP{k}"]; lab = f"L_rdy{num}"
            def chk(lab=lab, num=num):
                S(f"v_readfirstlane_b32 s64, v{VPR2}")
                for x in swar(64, num): S(x)
                S(f"s_cbranch_scc0 {lab}")
                S.label(lab + "_ok")
                S.cold += spin_block(lab, lab + "_ok", VPR2, VZ, 0, 64, num, 0)
            fill += [(gC + p0 - 2, gC + p0 - 1, [f"ds_read_b32 v{VPR2}, v{VZ}"]), (gC + p0, gC + p0 + 1, [chk])]
            for i in range(3):
                j = 6 + 3 * k + i
                first = {6: 16, 7: 16, 8: 24, 9: 24, 10: 48, 11: 48}.get(j, 8 * (j - 5) if len(OBUF) == 6 else cfg.dxpos + 10 if j < 14 else 8 * (j - 7))
                a = max(p0 + 1 + cfg.ostep * i, first)
                fill += [(gC + a, gC + a + 2, o_loads(j) if "noold" not in cfg.dbg else ["s_nop 0"])]
                if j == 9: fill += [(gC + a + 2, gC + a + 3, [lambda: signal(F_OI), "s_wakeup"])]
        VMASK, GR = 12, 64
        tagprep = [f"s_and_b32 s72, s{S_NONCE}, 1", f"s_lshl_b32 s73, s{S_NONCE}, 15", "s_and_b32 s73, s73, 0x10000", "s_or_b32 s72, s72, s73",
                   f"v_mov_b32 v{VMASK}, 0xfffefffe"]
        def tpack(base, n):
            o = []
            for k in range(n): o += [f"v_cvt_pk_bf16_f32 v{base+k}, v{base+2*k}, v{base+2*k+1}", f"v_and_or_b32 v{base+k}, v{base+k}, v{VMASK}, s72"]
            return o
        dx = list(tagprep)
        for u in range(2):
            for m_ in range(2):
                for k in range(4):
                    d, a = EC(2*m_, u) + k, EC(2*m_ + (k >> 1), u) + 2 * (k & 1)
                    dx += [f"v_cvt_pk_bf16_f32 v{d}, v{a}, v{a+1}", f"v_and_or_b32 v{d}, v{d}, v{VMASK}, s72"]
        for gm in range(4):
            dx.append(f"buffer_store_dwordx4 {vr(EC(2*(gm & 1), gm >> 1),4)}, v{VL16}, {srd(SWS)}, s99 offen offset:{gm*1024} {cfg.pol_sd}")
        def dsend(tau):
            o = []
            tp = tpack(128 + 16*tau, 8)
            for e in range(2):
                o += tp[8*e:8*e+8]
                o.append(f"buffer_store_dwordx4 {vr(128+16*tau+4*e,4)}, v{VL16}, {srd(SWS)}, s{(100, 101, 57)[tau-1]} offen offset:{e*1024} {cfg.pol_sd}")
            return o
        daddr = [f"v_and_b32 v2, 15, v1", "v_mul_u32_u24 v2, 2304, v2", "v_bfe_u32 v3, v1, 4, 1", "v_lshl_add_u32 v2, v3, 5, v2", "v_lshrrev_b32 v3, 5, v1", "v_lshl_add_u32 v2, v3, 4, v2",
                 "v_mov_b32 v6, 0x10001", "v_mov_b32 v4, 0x3f80", "v_mov_b32 v5, 0x3f800000"]
        q = 2 * nm_
        w = min(q - 1, 6)
        fill += [(gC + cfg.dxpos, gC + cfg.dxpos + 8, dx),
                 (gC + cfg.dxgo, gC + cfg.dxgo + 1, [lambda: signal(F_DX), "s_wakeup"]), (gM + 1, gM + 6, daddr), (gM + q + 1, gM + q + 1 + w, dsend(1)), (gM + 2*q + 1, gM + 2*q + 1 + w, dsend(2)), (gM + 3*q + 1, gM + 3*q + 1 + w, dsend(3))]
        if cfg.mst:
            fill += [(gC + int(x), gC + int(x) + 1, [lambda i=i: stamp(S, cfg, 1 + i, True)]) for i, x in enumerate(cfg.mst.split(","))]
        if cfg.cdetail > 0:
            fill += [((gC if j > 1 else gC0) + 8*j, (gC if j > 1 else gC0) + 8*j + 1, [lambda i=j - (cfg.cdetail - 1): stamp(S, cfg, 1 + i, True)]) for j in range(18) if 0 <= j - (cfg.cdetail - 1) < 12]
    if cfg.adetail:
        fill += [(16*c, 16*c + 1, [lambda c=c: stamp(S, cfg, 1 + c, True)]) for c in range(9)]
        if cfg.stop != "A": fill += [(gA + 32*i, gA + 32*i + 1, [lambda i=i: stamp(S, cfg, 10 + i, True)]) for i in range(3)]
    queue = []
    frees, due = {}, {}
    for gi, g in enumerate(G):
        if g["need"] is not None and not cfg.nocheck:
            lab = f"L_rdy{g['need']}"
            steps = [f"v_readfirstlane_b32 s69, v{VPR}"] + swar(69, g["need"])
            at = max(0, len(queue) - cfg.probe_ahead)
            pg = queue[at][0] if at < len(queue) else g["gate"]
            queue.insert(at, (pg, "r", f"ds_read_b32 v{VPR}, v{VZ}"))
            queue.append((g["gate"], "r", steps[0]))
            queue.append((g["gate"], "gap", None))
            def chk(lab=lab, need=g["need"], steps=steps):
                for x in steps[1:]: S(x)
                S(f"s_cbranch_scc0 {lab}")
                S.label(lab + "_ok")
                S.cold += spin_block(lab, lab + "_ok", VPR, VZ, 0, 69, need, 0)
            queue.append((g["gate"], "c", chk))
        if g["bar"]:
            for _ in range(cfg.bargap): queue.append((g["gate"], "gap", None))
            def br():
                S.wait_lg(0); S("s_barrier")
            queue.append((g["gate"], "c", br))
        for k, r in enumerate(g["reads"]):
            queue.append((g["gate"], "r", (r, f"g{gi}") if k == len(g["reads"]) - 1 else r))
        if g["free"] is not None and not cfg.nofree:
            def fr(gi=gi, f=g["free"]):
                S.wait_lg_tag(f"g{gi}")
                signal(f)
                if cfg.wake: due[m + 2] = lambda: S("s_wakeup")
            frees[f"g{gi}"] = fr
    nm = [len(g["mf"]) for g in G]
    pos = [sum(nm[:i]) for i in range(len(G) + 1)]
    fl = {}
    for (g0, g1, ins) in fill:
        a, b = pos[g0], pos[g1]
        for k, x in enumerate(ins): fl.setdefault(a + (k * (b - a)) // len(ins), []).append(x)
    S("v_mov_b32 v20, 0\nv_mov_b32 v21, 0\nv_lshlrev_b32 v3, 3, v1\nds_write_b64 v3, v[20:21]")
    S.wait_lg(0)
    if tail_fill: fl.setdefault(pos[tail_fill[0]] - 1, []).extend(tail_fill[1])
    S("s_barrier")
    stamp(S, cfg, 1)
    m = 0
    def issue(q):
        emit(S, q[2])
        if isinstance(q[2], tuple) and q[2][1] in frees: due[m + cfg.free_delay] = frees[q[2][1]]
    for gi, g in enumerate(G):
        last_tag = f"g{gi}"
        while any(isinstance(q[2], tuple) and q[2][1] == last_tag for q in queue):
            q = queue.pop(0)
            if q[1] != "gap": issue(q)
        if g.get("wait4"): S.wait_lg_tag(f"g{gi+3}")
        if cfg.gwait2 and "wait4" not in g and gi % 2 == 0: S.wait_lg_tag(f"g{gi+1}")
        if cfg.gwait: S.wait_lg_tag(last_tag)
        for k, mf in enumerate(g["mf"]):
            S(mf)
            if m in due: due.pop(m)()
            n = 0
            while queue and n < 2 and queue[0][0] <= gi:
                q = queue[0]
                if q[1] == "gap": queue.pop(0); break
                if n >= 1 and q[0] == gi and q[1] == "r": break
                queue.pop(0); issue(q); n += 1
            for x in fl.get(m, []): emit(S, x)
            m += 1
    assert not queue
    while due: due.pop(min(due))()
    if cfg.stop == "A":
        stamp(S, cfg, 2)
        for x in pack(QP(1), 192): S(x)
        S(f"s_lshl_b32 s66, s2, 16\ns_lshl_b32 s67, s{S_W}, 14\ns_add_u32 s66, s66, s67\nv_lshlrev_b32 v{VOST}, 4, v1\nv_add_u32 v{VOST}, s66, v{VOST}")
        for i in range(16):
            S(f"s_mov_b32 s66, {i*1024}")
            S(f"buffer_store_dwordx4 {vr(64+4*i,4)}, v{VOST}, {srd(SWS)}, s66 offen")
        S.wait_vm(0); stamps_store(S, cfg); S("s_branch L_end"); return
    if cfg.stop == "B":
        stamp(S, cfg, 6)
        op1, done1 = o_pack(1)
        for x in op1 + [done1]: emit(S, x)
        S.wait_vm(0); stamp(S, cfg, 7); stamps_store(S, cfg); S("s_branch L_end"); return
    stamp(S, cfg, 7)
    S(f"s_mov_b32 s77, {SPIN_LIMIT}")
    S.label("L_d")
    for i in range(6):
        S(f"buffer_load_dwordx4 {vr(GR+4*i,4)}, v{VL16}, {srd(SWS)}, s{74 + i//4} offen offset:{(i%4)*1024} sc1")
    S(f"v_xor_b32 v7, s72, v{GR}")
    for i in range(1, 24): S(f"v_bitop3_b32 v7, v7, v{GR+i}, s72 bitop3:0xf6")
    S("v_and_b32 v7, v7, v6\nv_cmp_eq_u32 vcc, 0, v7\ns_cmp_eq_u64 vcc, -1\ns_cbranch_scc1 L_d_ok")
    S("s_sub_u32 s77, s77, 1\ns_cmp_lg_u32 s77, 0\ns_cbranch_scc1 L_d")
    S.label("L_d_ok")
    stamp(S, cfg, 9)
    for i in range(24): S(f"v_and_b32 v{GR+i}, v{VMASK}, v{GR+i}")
    for tau in range(3):
        for u in range(2):
            for e in range(2):
                for x in range(2):
                    src = GR + 8 * tau + 4*e + 2*u + x; a = MC(e, u) + 2 * x
                    if cfg.dot2: S(f"v_dot2c_f32_bf16 v{a}, v{src}, v4\nv_dot2c_f32_bf16 v{a+1}, v{src}, v5")
                    else: S(f"v_lshlrev_b32 v8, 16, v{src}\nv_and_b32 v9, 0xffff0000, v{src}\nv_add_f32 v{a}, v{a}, v8\nv_add_f32 v{a+1}, v{a+1}, v9")
    if cfg.dot2: S("s_nop 2")
    GS = 48
    for u in range(2):
        for e in range(2):
            for x in range(2):
                S(f"v_cvt_pk_bf16_f32 v{GS+4*u+2*e+x}, v{MC(e,u)+2*x}, v{MC(e,u)+2*x+1}")
    for u in range(2):
        for x in range(2): S(f"v_permlane16_swap_b32 v{GS+4*u+x}, v{GS+4*u+2+x}")
    for u in range(2):
        S(f"buffer_store_dwordx4 {vr(GS+4*u,4)}, v2, {srd(SOUT)}, s{70+u} offen {cfg.pol_out}")
    if cfg.stamps:
        S.wait_vm(0); stamp(S, cfg, 10)
    stamps_store(S, cfg)
    S("s_branch L_end")

Cfg.dxwait = 17
H7 = "bA7 wK0 warm bA8 wK1 V1 wV0 W0 W1 W2 RWA W3 W4 W5 wV1 W6 W7 W8 w2 W9 W10 P0 S0 S1 RWB G0 G1 W11 W12 W13 W14 W15 W16 W17 "
H8 = "warm bA7 wK0 bA8 V0 wK1 W0 W1 wV0 V1 RWA W2 W3 W4 W5 W6 wV1 P0 S0 S1 RWB G0 G1 W7 W8 W9 W10 W11 W12 W13 W14 W15 W16 W17 "
H9 = "K1 bA7 wK0 bA8 V0 wK1 warm wV0 V1 W0 W1 RWA W2 W3 W4 W5 W6 wV1 P0 S0 S1 RWB G0 G1 W7 W8 W9 W10 W11 W12 W13 W14 W15 W16 W17 "
TA = "P1 S2 q0 ROP0 q1 ROP1 G2 f18 S3 RWC G3 w9 w10 w11 RWD q2 ROP2 q3 ROP3 RWE"
TB = "P1 S2 S3 q0 ROP0 q1 ROP1 G2 G3 RWC RWD q2 ROP2 q3 ROP3 RWE"
TD = "q0 ROP0 q1 ROP1 P1 S2 S3 RWC G2 G3 w9 w10 w11 RWD q2 ROP2 q3 ROP3 RWE"
TE = "q0 ROP0 q1 ROP1 P1 f18 S2 S3 RWC G2 G3 w9 w10 w11 RWD q2 ROP2 q3 ROP3 RWE"
HA = "bA7 wK0 warm bA8 wK1 V1 wV0 W0 W1 W2 RWA W3 W4 W5 wV1 W6 W7 W8 w2 W9 W10 W11 W12 P0 S0 S1 RWB W13 W14 W15 W16 W17 G0 G1 "
HB = "K1 bA7 wK0 bA8 V0 wK1 warm wV0 V1 W0 W1 RWA W2 W3 W4 W5 W6 wV1 P0 S0 S1 W7 W8 W9 W10 RWB G0 G1 "
TF = "q0 ROP0 q1 ROP1 P1 f18 S2 S3 W11 W12 W13 RWC G2 G3 W14 W15 W16 W17 w9 w10 w11 RWD q2 ROP2 q3 ROP3 RWE"
TG = "P1 q0 ROP0 q1 ROP1 f18 S2 S3 RWC G2 G3 w9 w10 w11 RWD q2 ROP2 q3 ROP3 RWE"
PROGS = {h + x: H + T for h, H in (("7", H7), ("8", H8), ("9", H9), ("A", HA)) for x, T in (("a", TA), ("b", TB), ("d", TD), ("e", TE), ("g", TG))}
HC = "bA7 wK0 warm bA8 wK1 V1 wV0 W0 W1 W2 RWA W3 W4 W5 wV1 W6 W7 W8 w2 W9 W10 W11 W12 P0 S0 S1 RWB G0 G1 W13 W14 W15 W16 W17 "
HD = "K1 bA7 wK0 bA8 V0 wK1 warm wV0 V1 W0 W1 RWA W2 W3 W4 W5 W6 wV1 W7 W8 P0 S0 S1 RWB G0 G1 W9 W10 W11 W12 W13 W14 W15 W16 W17 "
HE = "warm bA7 wK0 bA8 V0 wK1 W0 W1 wV0 V1 RWA W2 W3 W4 W5 W6 wV1 W7 W8 W9 W10 P0 S0 S1 RWB G0 G1 W11 W12 W13 W14 W15 W16 W17 "
TH = "q0 ROP0 q1 ROP1 w7 w8 P1 w9 w10 f18 S2 S3 RWC w11 RWD G2 G3 q2 ROP2 q3 ROP3 RWE"
TI = "q0 ROP0 q1 ROP1 P1 f18 S2 S3 RWC w9 w10 w11 G2 G3 RWD q2 ROP2 q3 ROP3 RWE"
TJ = "q0 ROP0 q1 ROP1 w7 w8 P1 S2 w9 w10 f18 S3 RWC G2 w11 RWD G3 q2 ROP2 q3 ROP3 RWE"
HF = "bA7 wK0 warm bA8 wK1 V1 wV0 f10 W0 W1 W2 RWA wV1 f12 W5 W6 P0 S0 S1 W3 W4 G0 G1 RWB "
HG = "warm bA7 wK0 bA8 V0 wK1 wV0 V1 f10 W0 W1 W2 RWA wV1 f12 W5 W6 P0 S0 S1 W3 W4 G0 G1 RWB "
HH = "K1 bA7 wK0 bA8 V0 wK1 warm wV0 V1 f10 W0 W1 W2 RWA wV1 f12 W5 W6 P0 S0 S1 W3 W4 G0 G1 RWB "
TK = "q0 ROP0 q1 ROP1 f15 W7 W8 P1 W9 W10 f18 W11 S2 S3 RWC f19 W12 W13 G2 G3 RWD q2 ROP2 q3 ROP3 f20 W14 W15 W16 W17 RWE"
TL = "q0 ROP0 q1 ROP1 f15 W7 W8 P1 S2 W9 W10 f18 W11 S3 RWC G2 f19 W12 W13 G3 RWD q2 ROP2 f20 W14 W15 W16 W17 q3 ROP3 RWE"
TM = "q0 ROP0 q1 ROP1 f15 W7 W8 P1 S2 S3 W9 W10 f17 W11 RWC G2 G3 f19 W12 W13 RWD q2 ROP2 f20 W14 W15 W16 W17 q3 ROP3 RWE"
for h, H in (("F", HF), ("G", HG), ("H", HH)):
    for x, T in (("k", TK), ("l", TL), ("m", TM)): PROGS[h + x] = H + T
HI = "warm bA7 wK0 bA8 D0 wK1 W3 W4 W5 W6 D1 pV0 f10 W0 W1 W2 W11 W12 W13 RWA pV1 W14 W15 W16 W17 P0 S0 S1 RWB G0 G1 "
HJ = "warm bA7 wK0 bA8 D0 wK1 W3 W4 W5 W6 D1 pV0 f10 W0 W1 W2 W7 W8 W9 RWA pV1 W10 W11 W12 W13 P0 S0 S1 RWB G0 G1 W14 W15 W16 W17 "
TN = "q0 ROP0 q1 ROP1 f15 W7 W8 P1 W9 W10 f18 S2 S3 RWC w11 RWD G2 G3 q2 ROP2 q3 ROP3 RWE"
TO = "q0 ROP0 q1 ROP1 f15 W7 W8 P1 S2 W9 W10 f18 S3 RWC G2 w11 RWD G3 q2 ROP2 q3 ROP3 RWE"
PROGS["In"] = HI + TN; PROGS["Io"] = HI + TO; PROGS["Jh"] = HJ + TH; PROGS["Jj"] = HJ + TJ
PROGS["Kn"] = PROGS["In"].replace("warm bA7 wK0 bA8 D0 wK1", "K1 bA7 wK0 bA8 D0 wK1 warm")
HL = "warm bA7 wK0 bA8 D0 wK1 D1 pV0 f10 W0 W1 W2 W3 W4 W5 W6 RWA pV1 W7 W8 W9 W10 W11 W12 W13 P0 S0 S1 RWB G0 G1 W14 W15 W16 W17 "
HM = "warm bA7 wK0 bA8 D0 wK1 W3 W4 D1 pV0 f10 W0 W1 W2 W5 W6 RWA W7 W8 pV1 W9 W10 W11 W12 P0 S0 S1 RWB G0 G1 W13 W14 W15 W16 W17 "
PROGS["Lh"] = HL + TH; PROGS["Mh"] = HM + TH; PROGS["Lj"] = HL + TJ
HN = "warm bA7 wK0 bA8 D0 wK1 D1 pV0 f10 W0 W1 W2 W9 W10 W11 RWA W12 W13 pV1 W14 W15 W16 W17 f12 W5 W6 P0 S0 S1 W3 W4 G0 G1 RWB "
PROGS["N1"] = HN + "q0 ROP0 q1 ROP1 f15 W7 W8 P1 w9 w10 f18 S2 S3 RWC w11 RWD G2 G3 q2 ROP2 q3 ROP3 RWE"
PROGS["N2"] = HN.replace("W9 W10 ", "") + "q0 ROP0 q1 ROP1 f15 W7 W8 P1 W9 W10 f18 S2 S3 RWC w11 RWD G2 G3 q2 ROP2 q3 ROP3 RWE"
PROGS["N3"] = HN.replace("W14 W15 W16 W17 ", "") + "q0 ROP0 q1 ROP1 f15 W7 W8 P1 w9 w10 f18 S2 S3 RWC w11 RWD G2 G3 q2 ROP2 f20 W14 W15 W16 W17 q3 ROP3 RWE"
PROGS["N4"] = HN + "q0 ROP0 q1 ROP1 f15 W7 W8 P1 f18 S2 S3 RWC w9 w10 w11 G2 G3 RWD q2 ROP2 q3 ROP3 RWE"
PROGS["E2"] = PROGS_E2 = None
PROGS["S0"] = ("warm bA7 wK0 bA8 V0 wK1 W0 W1 W2 W3 wV0 V1 W4 W5 RWA W6 W7 W8 wV1 W9 W10 P0 S0 S1 RWB G0 G1 W11 W12 W13 W14 W15 W16 W17 " + TH)
PROGS["S1"] = ("warm bA7 wK0 bA8 W0 W1 W2 W3 wK1 V0 W4 W5 wV0 RWA W6 W7 V1 W8 W9 W10 wV1 P0 W11 W12 S0 S1 RWB G0 G1 W13 W14 W15 W16 W17 " + TH)
PROGS["S2"] = ("warm bA7 wK0 bA8 W0 W1 W2 W3 wK1 V0 W4 W5 wV0 RWA W6 W7 V1 W8 W9 W10 wV1 P0 S0 S1 RWB G0 G1 W11 W12 W13 W14 W15 W16 W17 " + TH)
PROGS["S3"] = ("warm bA7 wK0 bA8 V0 wK1 W0 W1 W2 W3 wV0 V1 W4 W5 RWA W6 W7 W8 wV1 W9 W10 P0 S0 S1 RWB G0 G1 W11 W12 W13 W14 W15 W16 W17 " + TJ.replace("P1 S2 w9 w10 f18 S3", "P1 S2 S3 w9 w10"))
for h, H in (("C", HC), ("D", HD), ("E", HE)):
    for x, T in (("h", TH), ("i", TI), ("j", TJ)): PROGS[h + x] = H + T
PROGS["E2"] = PROGS["Eh"].replace("warm bA7 wK0 bA8 V0 wK1", "warm bA7 V0 bA8 wK0 wK1")
PROGS["E3"] = PROGS["Eh"].replace("warm bA7 wK0 bA8 V0 wK1", "bA7 wK0 bA8 V0 warm wK1")
PROGS["E5"] = PROGS["Eh"].replace("warm bA7 wK0 bA8 V0 wK1 W0 W1 wV0 V1", "warm bA7 wK0 bA8 V1 wK1 W0 W1 wV0")
PROGS["E6"] = PROGS["Eh"].replace("warm bA7 wK0 bA8 V0 wK1 W0 W1 wV0 V1", "bA7 wK0 bA8 V0 wK1 W0 W1 wV0 V1")
PROGS["E7"] = PROGS["Eh"].replace("P0 S0 S1 RWB G0 G1 W11", "P0 S0 S1 G0 G1 RWB W11")
PROGS["E8"] = PROGS["Eh"].replace("W7 W8 W9 W10 P0 S0 S1 RWB G0 G1 W11 W12 W13 W14", "W7 W8 W9 W10 W11 W12 P0 S0 S1 RWB G0 G1 W13 W14")
PROGS["F1"] = PROGS["Eh"].replace("q0 ROP0 q1 ROP1 w7 w8 P1 w9 w10 f18 S2 S3 RWC w11 RWD G2 G3", "w7 w8 q0 ROP0 q1 ROP1 P1 w9 w10 f18 S2 S3 RWC w11 RWD G2 G3")
PROGS["F2"] = PROGS["Eh"].replace("f18 S2 S3 RWC w11 RWD G2 G3", "f18 S2 S3 RWC w11 G2 G3 RWD")
PROGS["F3"] = PROGS["Eh"].replace("P1 w9 w10 f18 S2 S3 RWC w11 RWD G2 G3", "P1 w9 f18 S2 S3 RWC w10 w11 G2 RWD G3")
PROGS["F4"] = PROGS["Eh"].replace("q2 ROP2 q3 ROP3 RWE", "q2 ROP2 w14 w15 q3 ROP3 RWE")
PROGS["G1"] = PROGS["F2"].replace("q2 ROP2 q3 ROP3 RWE", "q2 ROP2 w14 w15 q3 ROP3 RWE")
PROGS["G2"] = PROGS["F2"].replace("RWD q2 ROP2 q3 ROP3 RWE", "RWD w14 w15 q2 ROP2 w16 w17 q3 ROP3 RWE")
PROGS["G3"] = PROGS["G1"].replace("f18 S2 S3 RWC w11 G2 G3 RWD", "f18 S2 S3 RWC G2 G3 w11 RWD")
PROGS["G4"] = PROGS["G1"].replace("w7 w8 P1 w9 w10 f18 S2 S3 RWC w11", "w7 P1 w8 w9 f18 S2 S3 RWC w10 w11")
PROGS["G5"] = PROGS["G1"].replace("G0 G1 W11 W12 W13 W14 W15 W16 W17 q0 ROP0 q1 ROP1", "G0 G1 W11 W12 W13 W14 q0 ROP0 q1 ROP1 W15 W16 W17")
PROGS["E4"] = PROGS["Eh"].replace("warm bA7 wK0 bA8 V0 wK1 W0 W1 wV0 V1", "V0 bA7 wK0 bA8 warm wK1 wV0 V1 W0 W1")
Cfg.prog = "F2"

def gen(cfg):
    hdr = open(REF).read().split("; Override launch")[0].rstrip("\n")
    launch = [f"; @launch grid=(256,1,1) block=(512,1,1) lds={LDS_BYTES}"]
    if cfg.amp >= 0:
        launch = [f"; @launch kernel={NAME} grid=(256,1,1) block=(512,1,1) lds={LDS_BYTES}", "; @launch kernel=amp_kernel grid=(1,1,1) block=(64,1,1) lds=0"]
    if cfg.pre or cfg.post:
        launch = [f"; @launch kernel={NAME} grid=(256,1,1) block=(512,1,1) lds={LDS_BYTES}"]
        if cfg.pre: launch = [f"; @launch kernel=aux_kernel grid=({cfg.pre},1,1) block=(64,1,1) lds=0"] + launch
        if cfg.post: launch += [f"; @launch kernel=aux_kernel grid=({cfg.post},1,1) block=(64,1,1) lds=0"]
    doc = """; One launch, 256 workgroups (one per CU), 8 waves: waves 0-3 compute (32 query rows each), waves 4-7 move data.
; Workgroup g: block = g>>2&1, K quarter kq = g&3, batch = g>>3&7, p = g>>6; heads 8kq+2p, 8kq+2p+1.
;  A  Q^T = wq^T x^T (two heads, k in nine 64-deep chunks through a 3-slot LDS ring, barriers)
;  B  S^T = K Q^T, softmax with the true row maximum, O^T = V^T P^T (row sums by an MFMA with a matrix of ones)
;  C  out^T partial over the quarter's 8 heads: 128 columns per workgroup, O of the three other head pairs comes through d_ws
;     (write-through stores, then a flag carrying this launch's tag); the last 64 columns are done on the own heads only
;  D  partial sums are exchanged as bf16 through d_ws and added in fp32; their lowest bits carry the launch tag and are dropped
; Waves of a workgroup signal each other with progress bytes in LDS words 0 (data ready) and 1 (LDS space free).
; The launch tag is (word found in d_ws) + 1, handed out through d_debug by workgroup 0. All waits are bounded.""".split("\n")
    L = [hdr] + launch + doc + ['.amdgcn_target "amdgcn-amd-amdhsa--gfx950"',
         ".text", f".globl {NAME}", ".p2align 8", f".type {NAME},@function", f"{NAME}:"]
    P = Stream("pro"); prologue(P, cfg); L += P.finish()
    Ld = Stream("loader"); Ld.smem_pending = True; Ld.progname = cfg.prog; loader(Ld, cfg); L += Ld.finish()
    if cfg.prog2:
        import re
        n0 = len(SITES)
        L2 = Stream("loader2"); L2.smem_pending = True; L2.progname = cfg.prog2; loader(L2, cfg)
        body = L2.finish(); body = body[body.index("L_fork:"):]
        ren = lambda x: re.sub(r"\b(L_(?!end\b)\w+)", r"\1_c1", x)
        L += [ren(x) for x in body]
        Ld.cold += [ren(x if isinstance(x, str) else "    " + x.text) for x in L2.cold[L2.ncold:]]
    L.append(".p2align 6")
    C = Stream("compute"); C.smem_pending = True; compute(C, cfg); L += C.finish()
    L.append("L_cold:")
    for s in (Ld, C):
        L += [x if isinstance(x, str) else "    " + x.text for x in s.cold]
    L += ["L_end:", "    s_endpgm", '.section .rodata,"a"', ".p2align 6", f".amdhsa_kernel {NAME}",
          "  .amdhsa_next_free_vgpr 256", "  .amdhsa_next_free_sgpr 102", "  .amdhsa_accum_offset 256",
          "  .amdhsa_group_segment_fixed_size 0", "  .amdhsa_kernarg_size 104", "  .amdhsa_user_sgpr_count 2",
          "  .amdhsa_user_sgpr_kernarg_segment_ptr 1", "  .amdhsa_system_sgpr_workgroup_id_x 1", ".end_amdhsa_kernel", ""]
    if cfg.pre or cfg.post:
        L = L[:-1] + [".text", ".globl aux_kernel", ".p2align 8", ".type aux_kernel,@function", "aux_kernel:", "    s_endpgm",
              '.section .rodata,"a"', ".p2align 6", ".amdhsa_kernel aux_kernel", "  .amdhsa_next_free_vgpr 8", "  .amdhsa_next_free_sgpr 16", "  .amdhsa_accum_offset 8",
              "  .amdhsa_group_segment_fixed_size 0", "  .amdhsa_kernarg_size 104", "  .amdhsa_user_sgpr_count 2",
              "  .amdhsa_user_sgpr_kernarg_segment_ptr 1", "  .amdhsa_system_sgpr_workgroup_id_x 1", ".end_amdhsa_kernel", ""]
    if cfg.amp >= 0:
        Am = Stream("amp")
        Am(f"""s_cmp_ge_u32 s2, 1
        s_cbranch_scc1 amp_end
        s_memrealtime s[24:25]
        s_load_dwordx2 s[4:5], s[0:1], 96
        s_mov_b32 s10, {WS_SIZE}
        s_mov_b32 s11, 0x20000
        s_waitcnt lgkmcnt(0)
        s_mov_b32 s8, s4
        s_and_b32 s9, s5, 0xffff
        v_lshlrev_b32 v1, 9, v0
        s_mov_b32 s12, {WS_STAMP + 64 * cfg.ampw}""")
        for i in range(4):
            Am(f"s_add_u32 s13, s12, {i*64*512}")
            Am(f"buffer_load_dword v{4+i}, v1, s[8:11], s13 offen offset:56")
            Am(f"buffer_load_dword v{8+i}, v1, s[8:11], s13 offen offset:{4*(cfg.amp if cfg.amp < 100 else 15)}")
        Am("v_min_u32 v4, v4, v5\nv_min_u32 v6, v6, v7\nv_min_u32 v4, v4, v6\nv_max_u32 v8, v8, v9\nv_max_u32 v10, v10, v11\nv_max_u32 v8, v8, v10")
        Am("s_mov_b32 s14, -1\ns_mov_b32 s15, 0")
        for l in range(64):
            Am(f"v_readlane_b32 s16, v4, {l}\nv_readlane_b32 s17, v8, {l}\ns_nop 3\ns_min_u32 s14, s14, s16\ns_max_u32 s15, s15, s17")
        if cfg.amp == 100: Am("s_mov_b32 s14, s15\ns_mov_b32 s15, s24")
        if cfg.amp == 101:
            Am(f"s_add_u32 s4, s4, {WS_STAMP - 64}\ns_addc_u32 s5, s5, 0\ns_load_dword s26, s[4:5], 0\ns_waitcnt lgkmcnt(0)\ns_mov_b32 s15, s14\ns_mov_b32 s14, s26")
        if cfg.amp == 102: Am("s_mov_b32 s15, s14")
        Am("s_sub_u32 s14, s15, s14\ns_min_u32 s14, s14, 20000\ns_mul_i32 s14, s14, 10\ns_memrealtime s[18:19]\ns_waitcnt lgkmcnt(0)")
        Am.label("amp_spin")
        Am("s_sleep 2\ns_memrealtime s[20:21]\ns_waitcnt lgkmcnt(0)\ns_sub_u32 s22, s20, s18\ns_cmp_lt_u32 s22, s14\ns_cbranch_scc1 amp_spin")
        Am.label("amp_end")
        Am("s_endpgm")
        L = L[:-1]
        L += [".text", ".globl amp_kernel", ".p2align 8", ".type amp_kernel,@function", "amp_kernel:"] + Am.finish()
        L += [".globl pre_kernel", ".p2align 8", ".type pre_kernel,@function", "pre_kernel:",
              "s_cmp_ge_u32 s2, 1", "s_cbranch_scc1 pre_end", "s_load_dwordx2 s[4:5], s[0:1], 96", f"s_mov_b32 s10, {WS_SIZE}", "s_mov_b32 s11, 0x20000", "s_waitcnt lgkmcnt(0)",
              "s_mov_b32 s8, s4", "s_and_b32 s9, s5, 0xffff", "v_mov_b32 v1, 0", "s_memrealtime s[12:13]", "s_waitcnt lgkmcnt(0)", "v_mov_b32 v2, s12", f"s_mov_b32 s14, {WS_STAMP - 64}",
              "buffer_store_dword v2, v1, s[8:11], s14 offen", "pre_end:", "s_endpgm"]
        L += ['.section .rodata,"a"', ".p2align 6", ".amdhsa_kernel pre_kernel", "  .amdhsa_next_free_vgpr 32", "  .amdhsa_next_free_sgpr 32", "  .amdhsa_accum_offset 32",
              "  .amdhsa_group_segment_fixed_size 0", "  .amdhsa_kernarg_size 104", "  .amdhsa_user_sgpr_count 2",
              "  .amdhsa_user_sgpr_kernarg_segment_ptr 1", "  .amdhsa_system_sgpr_workgroup_id_x 1", ".end_amdhsa_kernel"]
        L += ['.section .rodata,"a"', ".p2align 6", ".amdhsa_kernel amp_kernel", "  .amdhsa_next_free_vgpr 32", "  .amdhsa_next_free_sgpr 32", "  .amdhsa_accum_offset 32",
              "  .amdhsa_group_segment_fixed_size 0", "  .amdhsa_kernarg_size 104", "  .amdhsa_user_sgpr_count 2",
              "  .amdhsa_user_sgpr_kernarg_segment_ptr 1", "  .amdhsa_system_sgpr_workgroup_id_x 1", ".end_amdhsa_kernel", ""]
    if cfg.align:
        from align import align
        k0 = L.index(f"{NAME}:"); k1 = L.index("L_end:") + 2
        body, nprom, npad = align(L[k0:k1], "L_compute", "L_cold", cfg.align == 2)
        L = L[:k0] + body + L[k1:]
        sys.stderr.write(f"align: promoted {nprom} padded {npad}\n")
    sys.stderr.write(f"nops: loader {Ld.nops} compute {C.nops}\n")
    return "\n".join(L)

if __name__ == "__main__":
    cfg = Cfg()
    out = sys.argv[1]
    for a in sys.argv[2:]:
        k, val = a.split("=", 1)
        cur = getattr(Cfg, k)
        if isinstance(cur, bool): val = val in ("1", "true", "True")
        elif isinstance(cur, int): val = int(val)
        elif val == "None": val = None
        if k.startswith("pol_"): val = val.replace("+", " ")
        setattr(cfg, k, val)
    open(out, "w").write(gen(cfg))
    open(out + ".sites", "w").write(" ".join(map(str, SITES)))
```

```python
import sys, math, struct
from sched import Stream, Ins

NAME = "concat_heads__mha_block_cached__gqa_block_cached__near_ridge_kernel"
REF = "concat_heads__mha_block_cached__gqa_block_cached__near_ridge.s.ref"
SLOT = 17408
PITCH = 1056
LB = 512
LDS_BYTES = LB + 9 * SLOT
def slot(i): return LB + i * SLOT
WS_O, WS_D, WS_DX, WS_FLAG, WS_EPOCH, WS_STAMP = 0, 16 << 20, 32 << 20, 40 << 20, 41 << 20, 48 << 20
WS_SIZE = 64 << 20
SPIN_LIMIT = 1 << 18

def f32(x): return struct.unpack("<I", struct.pack("<f", x))[0]
def vr(n, c=1): return f"v{n}" if c == 1 else f"v[{n}:{n+c-1}]"
def mfma(d, a, b, first=False):
    return f"v_mfma_f32_16x16x32_bf16 {vr(d,4)}, {vr(a,4)}, {vr(b,4)}, {'0' if first else vr(d,4)}"
def _raw(text): return [Ins(l.strip()) if not l.strip().endswith(":") else l.strip() for l in text.split("\n") if l.strip()]
def emit(S, x):
    if callable(x): x()
    elif isinstance(x, tuple): S(*x)
    else: S(x)

SX, SWQ, SK, SV, SWO, SWS, SOUT, SDBG = 8, 12, 16, 20, 24, 28, 32, 36
def srd(n): return f"s[{n}:{n+3}]"
S_BLK, S_KQ, S_B, S_P, S_H0, S_W, S_NONCE, S_C = 40, 41, 42, 43, 44, 45, 46, 47

R_K0, R_K1, R_V0, R_WA, R_V1, R_U = 9, 10, 11, 12, 13, 14
F_QK0, F_QK1, F_PV0, F_O0, F_PV1, F_O1 = 10, 11, 12, 13, 15, 16
F_OI, F_DX = 18, 21
FU = {1: 14, 2: 17, 4: 19, 8: 20}
WSET = {"WA": (0, 1), "WB": (2, 3, 4, 5, 6), "WC": (7, 8), "WD": (9, 10, 11, 12, 13), "WE": (14, 15, 16, 17)}
def c_events(cfg):
    pos = {"WB": 12, "WC": 52, "WD": 68, "WE": 8 * min(14, cfg.merge) - 4}
    for k, x in enumerate(cfg.opos.split(",")): pos[f"OP{k}"] = int(x)
    ev = {n: (R_U + i, pos[n]) for i, n in enumerate(sorted(pos, key=lambda n: pos[n]))}
    ev["WA"] = (R_WA, -12)
    return ev

class Cfg:
    pol_x = ""; pol_wq = ""; pol_kv = "nt"; pol_wo = ""
    stop = None
    stamps = False; real = False; adetail = False; cdetail = 0
    ngrp = 3; rotp = 1; rotk = 3
    k0pos = 1; k0cls = 4; kvwait = 6
    codepf = True
    order = "blk"
    flag0 = -5; flag0b = 4; o1pos = 16; flag1 = 44; flag1b = 60; dxpos = 56
    amp = -1; ampw = 0
    probe_ahead = 8
    free_delay = 7
    trace = False
    tlb = 255
    cpf = "5"
    cpfop = ""
    tlbpos = 1
    tlbmode = "dense"
    tlbpos2 = 3
    tlbpos3 = 9
    vpf = 0
    vpfpos = "1,2,3,4,5,6"
    diagsleep = 0
    tlbwo = 1
    tlboff = 0
    pol_st = "sc1"
    pol_sd = "sc1"
    gwait2 = False
    mst = ""
    prog2 = ""
    defer = 10
    dot2 = True
    wprio2 = 0
    dbg = ""
    spoll = True
    blead = 7
    pk = False
    pol_out = ""
    pre = 0
    post = 0
    align = 0
    dxgo = 92
    opos = "28,29,80,86"
    ostep = 2
    pol_o = "sc1"
    pfilter = ""
    o1end = 10
    merge = 14
    dxsleep = 8
    akv = "0:1:4,1:2:4:3"
    o1len = 30
    ptrace = False
    early0 = 72
    warmpos = -1
    k1pos = -1
    warmrot = 3
    wprio = 0
    bargap = 4
    abar = True
    cbar = 6
    nocheck = False
    nofree = False
    alead = 4
    nodma = False
    lprio = 3
    lsleep = 5
    wake = True
    gwait = True
    early = False
    trace_from = 0

def stamp(S, cfg, idx, det=False):
    if not cfg.stamps: return
    if (cfg.cdetail or cfg.adetail) and idx not in (0, 13) and not det: return
    S(f"{'s_memrealtime' if cfg.real else 's_memtime'} s[78:79]")
    S("s_waitcnt lgkmcnt(0)")
    S(f"s_mov_b32 s{80+idx}, s78")

SITES = []
def trace_raw(cfg, who, ident):
    if not cfg.trace or len(SITES) >= 128: return ""
    if cfg.ptrace and not isinstance(ident, str): return ""
    k = len(SITES); SITES.append(ident)
    return f"{'s_memrealtime' if cfg.real else 's_memtime'} s[78:79]\ns_waitcnt lgkmcnt(0)\nv_writelane_b32 v{250 + (k >> 6)}, s78, {k & 63}\n"
def stamps_store(S, cfg):
    if not cfg.stamps: return
    S("s_memrealtime s[78:79]\ns_waitcnt lgkmcnt(0)\ns_mov_b32 s95, s78")
    stamp(S, cfg, 13)
    S(f"s_lshl_b32 s66, s2, 3\ns_add_u32 s66, s66, s3\ns_lshl_b32 s66, s66, 6\ns_add_u32 s66, s66, {WS_STAMP}")
    S("v_mov_b32 v2, 0")
    S("s_mov_b64 exec, 1")
    for i in range(16):
        S(f"v_mov_b32 v3, s{80+i}")
        S(f"buffer_store_dword v3, v2, {srd(SWS)}, s66 offen offset:{4*i}")
    S("s_mov_b64 exec, -1")

def prologue(S, cfg):
    S(f"""s_cmp_ge_u32 s2, 256
    s_cbranch_scc1 L_end
    s_bfe_u32 s{S_BLK}, s2, 0x10002
    s_mul_i32 s66, s{S_BLK}, 40
    s_add_u32 s4, s0, s66
    s_addc_u32 s5, s1, 0
    s_load_dwordx8 s[48:55], s[4:5], 0""")
    if cfg.stamps:
        S(f"s_memrealtime s[6:7]\n{'s_memrealtime' if cfg.real else 's_memtime'} s[92:93]")
    S(f"""v_lshrrev_b32 v2, 6, v0
    v_and_b32 v1, 63, v0
    s_load_dwordx2 s[56:57], s[4:5], 32
    v_readfirstlane_b32 s3, v2
    s_load_dwordx4 s[60:63], s[0:1], 80
    s_load_dwordx2 s[64:65], s[0:1], 96
    s_and_b32 s{S_KQ}, s2, 3
    s_bfe_u32 s{S_B}, s2, 0x30003
    s_lshr_b32 s{S_P}, s2, 6
    s_lshl2_add_u32 s{S_H0}, s{S_KQ}, s{S_P}
    s_lshl_b32 s{S_H0}, s{S_H0}, 1
    s_and_b32 s{S_W}, s3, 3
    s_cmp_lt_u32 s3, 4
    s_cbranch_scc1 L_compute""")
def first_stamps(S, cfg):
    if cfg.stamps:
        S("s_mov_b32 s80, s92\ns_mov_b32 s94, s6")
        for i in range(1, 14): S(f"s_mov_b32 s{80+i}, 0")
SRD_SIZE = {SX: 1179648, SWQ: 4718592, SK: 8388608, SV: 8388608, SWO: 4718592, SWS: WS_SIZE, SOUT: 2359296, SDBG: 256}
def srd_consts(S, which):
    for d in which: S(f"s_mov_b32 s{d+2}, {SRD_SIZE[d]}\ns_mov_b32 s{d+3}, 0x20000")
def srd_bases(S, which):
    for d, p in ((SX, 48), (SWQ, 54), (SK, 50), (SV, 52), (SWO, 56), (SWS, 64), (SOUT, 60), (SDBG, 62)):
        if d in which: S(f"s_mov_b32 s{d}, s{p}\ns_and_b32 s{d+1}, s{p+1}, 0xffff")

def nonce_issue(S, vt, vz):
    S(f"buffer_load_dword v{vt}, v{vz}, {srd(SDBG)}, 0 offen sc1")
def nonce_check(S, vt, vz, lab):
    S(f"v_readfirstlane_b32 s{S_NONCE}, v{vt}")
    S(f"s_cmp_eq_u32 s{S_NONCE}, 0\ns_cbranch_scc1 {lab}")
    S.label(f"{lab}_ok")
    S.cold += _raw(f"""{lab}:
    s_mov_b32 s77, {SPIN_LIMIT}
    {lab}_spin:
    buffer_load_dword v{vt}, v{vz}, {srd(SDBG)}, 0 offen sc1
    s_waitcnt vmcnt(0)
    v_readfirstlane_b32 s{S_NONCE}, v{vt}
    s_nop 4
    s_cmp_lg_u32 s{S_NONCE}, 0
    s_cbranch_scc1 {lab}_ok
    s_sleep 2
    s_sub_u32 s77, s77, 1
    s_cmp_lg_u32 s77, 0
    s_cbranch_scc1 {lab}_spin
    s_branch {lab}_ok""")

def swar(s, need):
    return [f"s_or_b32 s{s}, s{s}, 0x80808080", f"s_sub_u32 s{s}, s{s}, {need * 0x01010101}", f"s_andn2_b32 s{s}, 0x80808080, s{s}", f"s_cmp_eq_u32 s{s}, 0"]
def spin_block(lab, back, vt, vz, off, sreg, need, sleep):
    return _raw(f"""{lab}:
    s_mov_b32 s77, {SPIN_LIMIT}
    {lab}_spin:
    ds_read_b32 v{vt}, v{vz} offset:{off}
    s_waitcnt lgkmcnt(0)
    v_readfirstlane_b32 s{sreg}, v{vt}
    s_nop 3
    """ + "\n".join(swar(sreg, need)) + f"""
    s_cbranch_scc1 {back}
    {'s_sleep ' + str(sleep) if sleep else ''}
    s_sub_u32 s77, s77, 1
    s_cmp_lg_u32 s77, 0
    s_cbranch_scc1 {lab}_spin
    s_branch {back}""")

def c_units():
    u = [("M", 0, 0), ("M", 0, 1), ("E", 0, 0), ("M", 1, 0), ("M", 1, 1), ("E", 1, 0)]
    for hh in (0, 1):
        for ii in range(6): u.append(("P", hh, ii))
    return u
def c_slots():
    sl = [(0, F_QK0), (1, F_QK0), (8, 9), (2, F_O0), (3, F_O0), (4, F_PV0), (5, F_PV0), (6, F_PV1), (7, F_PV1),
          (0, F_O1), (1, F_O1), (8, FU[2]), (2, FU[4]), (3, FU[4]), (4, FU[8]), (5, FU[8]), (6, FU[8]), (7, FU[8])]
    return {("W", j): sl[j] for j in range(18)}

def pack(dst, src):
    return [f"v_cvt_pk_bf16_f32 v{dst+8*s+4*u+2*e+x}, v{src+8*(2*s+e)+4*u+2*x}, v{src+8*(2*s+e)+4*u+2*x+1}" for s in range(4) for u in range(2) for e in range(2) for x in range(2)]
PAY = [0, 1, 2, 4, 5, 6, 8, 9]

def loader(S, cfg):
    VXO, VWO, VKV, VKW, VVW, VMO, VEO, VOO, VFL, VWW, VN, VZ, VP0, VPA, VT = 4, 5, 6, 7, 8, 9, 10, 11, 12, 13, 14, 15, 16, 18, 19
    KVREG = [24, 56, 88, 120]
    sXb, sWb, sCC, sM, sMo, sT, sKV0, sKV1, sA = 66, 67, 68, 69, 70, 71, 72, 73, 75
    sWP, sOP = [65, 96, 97, 98], [62, 99, 100, 101]
    S(f"""s_lshl_b32 s{sT}, s{S_W}, 2
    v_and_b32 v2, 0x38, v1
    v_lshl_add_u32 v2, v2, 1, s{sT}
    v_mul_u32_u24 v3, 1152, v2
    v_and_b32 v20, 7, v1
    v_lshl_add_u32 v{VXO}, v20, 4, v3
    s_lshl_b32 s76, s{S_W}, 3
    s_lshl1_add_u32 s76, s{S_W}, s76
    s_and_b32 s76, s76, 12
    v_and_b32 v2, 32, v1
    v_lshlrev_b32 v2, 12, v2
    v_and_b32 v20, 31, v1
    v_lshl_add_u32 v{VWO}, v20, 4, v2
    s_lshl_b32 s76, s76, 13
    s_mul_i32 s{sM}, s{sT}, {PITCH}
    s_lshl_b32 s75, s{S_H0}, 8
    s_add_u32 s75, s75, s76""")
    n = cfg.ngrp
    if cfg.order == "rot": orders = [[(round(9 * g / n) + c) % 9 for c in range(9)] for g in range(n)]
    else: orders = [[(c // n) * n + (c + g) % n if (c // n + 1) * n <= 9 else c for c in range(9)] for g in range(n)]
    tabs = [sum(x << (4 * i) for i, x in enumerate(o)) for o in orders]
    gtab = sum((i % n) << (2 * i) for i in range(16))
    S(f"""s_mul_i32 s76, s{S_P}, {cfg.rotp}
    s_add_u32 s76, s76, s{S_B}
    s_and_b32 s77, s{S_KQ}, {cfg.rotk}
    s_add_u32 s76, s76, s77
    s_lshl_b32 s76, s76, 1
    s_lshr_b32 s76, {gtab}, s76
    s_and_b32 s76, s76, 3
    s_mov_b32 s58, {tabs[0] & 0xffffffff}
    s_mov_b32 s59, {tabs[0] >> 32}""")
    for g in range(1, n):
        S(f"s_cmp_eq_u32 s76, {g}\ns_cselect_b32 s58, {tabs[g] & 0xffffffff}, s58\ns_cselect_b32 s59, {tabs[g] >> 32}, s59")
    S(f"s_mul_i32 s74, s{S_B}, 147456")
    srd_consts(S, (SX, SWQ))
    S("s_waitcnt lgkmcnt(0)")
    srd_bases(S, (SX, SWQ))
    def chunk(c, mid=None):
        base = slot((c % 3) * 3)
        S(f"""s_and_b32 s{sCC}, s58, 15
        s_lshr_b64 s[58:59], s[58:59], 4
        s_lshl_b32 s{sXb}, s{sCC}, 7
        s_add_u32 s{sXb}, s{sXb}, s74
        s_lshl_b32 s{sWb}, s{sCC}, 19
        s_add_u32 s{sWb}, s{sWb}, s75""")
        for i in range(4):
            S(f"s_add_u32 m0, s{sM}, {base + i*(PITCH-1152)}")
            S(f"buffer_load_dwordx4 v{VXO}, {srd(SX)}, s{sXb} offen offset:{i*1152} {cfg.pol_x} lds", tag=f"ch{c}")
        if mid: mid()
        for st in range(2):
            for i in range(4):
                S(f"s_add_u32 m0, s{sM}, {base + SLOT*(1+st) + i*PITCH}\ns_add_u32 s{sT}, s{sWb}, {(32*st+i)*8192}")
                S(f"buffer_load_dwordx4 v{VWO}, {srd(SWQ)}, s{sT} offen {cfg.pol_wq} lds", tag=f"ch{c}")
    def kv_lines(m):
        sr = SK if m < 2 else SV
        sb = sKV0 if m % 2 == 0 else sKV1
        o = [f"s_add_u32 s{sT}, s{sb}, 4096"]
        for j in range(8):
            o.append((f"buffer_load_dwordx4 {vr(KVREG[m]+4*j,4)}, v{VKV}, {srd(sr)}, s{sb if j < 4 else sT} offen offset:{(j&3)*1024} {cfg.pol_kv}", f"kv{m}"))
        return o
    def kv_load(m):
        for x in kv_lines(m): emit(S, x)
    def v_dma(m, sl):
        sb = sKV0 if m % 2 == 0 else sKV1
        S(f"""v_lshrrev_b32 v2, 4, v1
        v_lshlrev_b32 v2, 13, v2
        v_and_b32 v3, 15, v1
        v_lshl_add_u32 v2, v3, 4, v2
        s_lshl_b32 s76, s{S_W}, 11
        s_add_u32 s{sT}, s{sb}, s76
        s_lshl_b32 s76, s{sM}, 1""")
        for j in range(8):
            S(f"s_add_u32 m0, s76, {slot(sl) + j*(PITCH-256)}")
            S(f"buffer_load_dwordx4 v2, {srd(SV)}, s{sT} offen offset:{j*256} {cfg.pol_kv} lds", tag=f"kv{m}")
    def cond(lab, cls, mask, lines, pre=""):
        S(f"s_and_b32 s76, s{S_B}, {mask}\ns_cmp_lg_u32 s76, {cls}\ns_cbranch_scc1 {lab}")
        S.out += _raw(pre + "\n".join(x[0] if isinstance(x, tuple) else x for x in lines))
        S.label(lab)
    def kv_load_if(m, cls, ncls, pre=""):
        cond(f"L_kv{m}_{cls}", cls, ncls - 1, kv_lines(m), pre)
        if cls == ncls - 1: S.phantom([f"v{KVREG[m]+i}" for i in range(32)], f"kv{m}")
    def warm_lines():
        return f"""s_lshl_b32 s76, s{S_KQ}, 3
        s_add_u32 s76, s76, s{S_B}
        s_lshl_b32 s76, s76, 2
        s_add_u32 s76, s76, s{S_W}
        s_mul_i32 s76, s76, {32*1152}
        s_lshl_b32 s77, s{S_P}, 8
        s_add_u32 s76, s76, s77
        v_lshrrev_b32 v20, 1, v1
        v_mul_u32_u24 v20, 1152, v20
        v_and_b32 v3, 1, v1
        v_lshl_add_u32 v20, v3, 7, v20
        buffer_load_dword v22, v20, {srd(SWO)}, s76 offen {cfg.pol_wo}
        s_lshl_b32 s76, s{S_B}, 2
        s_add_u32 s76, s76, s{S_W}
        s_mul_i32 s76, s76, {8*1152}
        s_add_u32 s76, s76, s64
        v_and_b32 v21, 7, v1
        v_mul_u32_u24 v21, 1152, v21
        buffer_load_dword v23, v21, {srd(SWO)}, s76 offen offset:1024 {cfg.pol_wo}""".split("\n")
    def kv_write(m, sl):
        S.wait_vm_tag(f"kv{m}")
        S(f"s_setprio {cfg.wprio}")
        if "nolw" in cfg.dbg: return
        if m < 2:
            for j in range(8):
                S(f"v_add_u32 v2, {slot(sl) + j*4*PITCH}, v{VKW}")
                S(f"ds_write2_b64 v2, {vr(KVREG[m]+4*j,2)}, {vr(KVREG[m]+4*j+2,2)} offset0:0 offset1:2")
        else:
            S(f"v_add_u32 v2, {slot(sl)}, v{VVW}")
            for j in range(8):
                S(f"ds_write_b128 v2, {vr(KVREG[m]+4*j,4)} offset:{j*4*PITCH}")
    known = [0]; last_pub = [0]
    def wait_free(f, early=None):
        if f <= known[0]: return
        known[0] = f
        if cfg.nofree:
            S("s_sleep 5"); return
        lab = f"L_wf{f}"
        S.wait_lg(0)
        if cfg.trace and f >= cfg.trace_from: S(trace_raw(cfg, "loader", 100 + f))
        S(f"s_setprio {cfg.lprio}\nds_read_b32 v{VT}, v{VZ} offset:4\nv_readfirstlane_b32 s76, v{VT}")
        for x in swar(76, f): S(x)
        S(f"s_cbranch_scc0 {lab}")
        S.label(lab + "_ok")
        S("s_setprio 0")
        if cfg.trace and f >= cfg.trace_from: S(trace_raw(cfg, "loader", 200 + f))
        blk = spin_block(lab, lab + "_ok", VT, VZ, 4, 76, f, cfg.lsleep)
        if early and cfg.early: blk = blk[:1] + _raw(f"s_waitcnt vmcnt(0)\ns_mov_b32 s63, {early}\nv_mov_b32 v{VT}, {early}\nds_write_b8 v{VPA}, v{VT}\n" + (trace_raw(cfg, "loader", 400 + early) if f >= cfg.trace_from else "")) + blk[1:]
        S.cold += blk
    def publish(r):
        last_pub[0] = r
        S.wait_lg(0)
        S(f"s_setprio {cfg.lprio}\nv_mov_b32 v{VT}, {r}\nds_write_b8 v{VPA}, v{VT}\ns_setprio 0")
        if cfg.trace and known[0] >= cfg.trace_from: S(trace_raw(cfg, "loader", 300 + r))
        if cfg.adetail and r <= 12: stamp(S, cfg, r, True)
        if cfg.cdetail > 0 and 0 <= r - R_U < 12: stamp(S, cfg, 1 + r - R_U, True)
    chunk(0)
    first_stamps(S, cfg)
    stamp(S, cfg, 1)
    srd_consts(S, (SK, SV, SWO, SWS, SOUT, SDBG))
    srd_bases(S, (SK, SV, SWO, SWS, SOUT, SDBG))
    S(f"s_add_u32 s50, s64, {WS_FLAG}\ns_addc_u32 s51, s65, 0")
    if cfg.trace: S("s_mov_b32 s92, 0\nv_mov_b32 v250, 0\nv_mov_b32 v251, 0")
    if cfg.codepf:
        S(f"""s_getpc_b64 s[76:77]
        L_pc:
        s_lshr_b32 s{sT}, s2, 3
        s_lshl_b32 s{sT}, s{sT}, 2
        s_add_u32 s{sT}, s{sT}, s{S_W}
        s_mul_i32 s{sT}, s{sT}, 3
        v_min_u32 v2, 2, v1
        v_add_u32 v2, s{sT}, v2
        v_lshlrev_b32 v2, 7, v2
        v_min_u32 v2, L_end-L_pc, v2
        global_load_dword v23, v2, s[76:77]""")
    S(f"""v_mov_b32 v{VZ}, 0
    v_lshl_add_u32 v{VPA}, v1, 2, 64
    s_nop 1
    v_writelane_b32 v{VPA}, s{S_W}, 0
    v_add_u32 v{VEO}, 1024, v{VXO}
    s_lshl_b32 s76, s{S_W}, 13
    v_lshlrev_b32 v{VOO}, 4, v1
    v_add_u32 v{VKV}, s76, v{VOO}
    v_add_u32 v{VWW}, s{sM}, v{VOO}
    s_lshl_b32 s{sKV0}, s{S_B}, 5
    s_add_u32 s{sKV0}, s{sKV0}, s{S_H0}
    s_lshl_b32 s{sKV0}, s{sKV0}, 15
    s_add_u32 s{sKV1}, s{sKV0}, 32768
    v_lshrrev_b32 v2, 4, v1
    v_mul_u32_u24 v20, {PITCH}, v2
    s_lshl_b32 s76, s{S_W}, 8
    v_add_u32 v20, s76, v20
    v_and_b32 v3, 15, v1
    v_lshl_add_u32 v{VVW}, v3, 4, v20
    v_bfe_u32 v3, v1, 2, 2
    v_lshl_add_u32 v20, v3, 6, v20
    v_and_b32 v3, 1, v1
    v_lshl_add_u32 v20, v3, 5, v20
    v_bfe_u32 v3, v1, 1, 1
    v_lshl_add_u32 v{VKW}, v3, 3, v20""")
    for pi in range(4):
        d = sWP[pi]
        S(f"""s_add_u32 s76, s{S_P}, {pi}
        s_and_b32 s76, s76, 3
        s_lshl_b32 s77, s{S_KQ}, 2
        s_add_u32 s77, s77, s76
        s_mul_i32 s77, s77, {256*1152}
        s_lshl_b32 s{d}, s{S_P}, 8
        s_add_u32 s{d}, s{d}, s77""")
        if pi == 0: S("s_mov_b32 s64, s77")
        if True:
            S(f"""s_lshl_b32 s76, s76, 6
            s_and_b32 s77, s2, 63
            s_add_u32 s76, s76, s77
            s_lshl_b32 s76, s76, 2
            s_add_u32 s76, s76, s{S_W}
            s_lshl_b32 s{sOP[pi]}, s76, 14""")
            if pi: S(f"s_lshl_b32 s{54+pi}, s76, 8")
    npf = [0]; vp = [0]
    def code_touch():
        npf[0] += 1
        lab = f"L_pc{npf[0]}"
        S.out += _raw(f"""s_getpc_b64 s[52:53]
        {lab}:
        s_sub_u32 s52, s52, {lab}-L_pc
        s_subb_u32 s53, s53, 0
        s_lshr_b32 s76, s2, 3
        s_lshl2_add_u32 s76, s76, s{S_W}
        s_lshl_b32 s76, s76, 6""")
        for i in range(6):
            S.out += _raw(f"s_min_u32 s77, s76, L_end-L_pc\ns_load_dword s61, s[52:53], s77\ns_add_u32 s76, s76, 8192")
        S.smem_pending = True; S.lg.append(set())
    def tlb_touch(batch=0):
        def touch(bit, base, lines):
            if cfg.tlb & bit: S.out += _raw(lines + f"\ns_load_dword s60, s[{base}:{base+1}], s76")
        mode = cfg.tlbmode
        if batch == 0:
            touch(1, SV, f"s_lshl_b32 s76, s{S_W}, 14\ns_add_u32 s76, s76, s{sKV0}")
            touch(2, SK, f"s_lshl_b32 s76, s{S_W}, 14\ns_add_u32 s76, s76, s{sKV0}")
            if mode == "v1":
                for i in range(5):
                    touch(4, SWO, f"s_mul_i32 s76, s{S_KQ}, {1024*1152}\ns_lshl_b32 s77, s{S_W}, 16\ns_add_u32 s76, s76, s77\ns_add_u32 s76, s76, {i << 18}\ns_min_u32 s76, s76, {4718592 - 4}")
            else:
                touch(4, SWO, f"s_lshr_b32 s77, s2, 3\ns_lshl2_add_u32 s77, s77, s{S_W}\ns_mul_i32 s77, s77, {1179648 // 128}\ns_mul_i32 s76, s{S_KQ}, {1024*1152}\ns_add_u32 s76, s76, s77")
            if mode == "lite":
                touch(8, SWS, f"s_lshl_b32 s77, s{S_W}, 6\ns_add_u32 s77, s77, s2\ns_and_b32 s77, s77, 255\ns_lshl_b32 s76, s77, 16")
                touch(16, SWS, f"s_lshl_b32 s76, s77, 10\ns_add_u32 s76, s76, {WS_FLAG + 128}")
            else:
                for pi in range(4): touch(8, SWS, f"s_mov_b32 s76, s{sOP[pi]}")
                touch(16, SWS, f"s_lshr_b32 s76, s{sOP[0]}, 6\ns_add_u32 s76, s76, {WS_FLAG + 128}")
            touch(32, SWS, f"s_andn2_b32 s76, s2, 3\ns_add_u32 s76, s76, s{S_W}\ns_mul_i32 s76, s76, {4*6144}\ns_add_u32 s76, s76, {WS_D}")
            touch(64, SWS, f"s_lshl3_add_u32 s76, s{S_BLK}, s{S_B}\ns_lshl2_add_u32 s76, s76, s{S_W}\ns_lshl_b32 s76, s76, 16\ns_add_u32 s76, s76, {WS_DX}")
            touch(128, SOUT, f"s_lshl2_add_u32 s76, s{S_B}, s{S_W}\ns_mul_i32 s76, s76, {32*2304}")
            if mode == "dense":
                for i in range(1, 4):
                    touch(64, SWS, f"s_lshl3_add_u32 s76, s{S_BLK}, s{S_B}\ns_lshl2_add_u32 s76, s76, s{S_W}\ns_lshl_b32 s76, s76, 16\ns_add_u32 s76, s76, {WS_DX + i*16384}")
        elif batch == 2:
            for i in range(1, 4): touch(2, SK, f"s_lshl_b32 s76, s{S_W}, 14\ns_add_u32 s76, s76, s{sKV0}\ns_add_u32 s76, s76, {i*4096}")
            for i in range(4):
                touch(32, SWS, f"s_andn2_b32 s76, s2, 3\ns_add_u32 s76, s76, {i}\ns_lshl2_add_u32 s76, s76, s{S_W}\ns_mul_i32 s76, s76, 6144\ns_add_u32 s76, s76, {WS_D + 4096}")
            for i in range(4):
                touch(64, SWS, f"s_lshl3_add_u32 s76, s{S_BLK}, s{S_B}\ns_lshl2_add_u32 s76, s76, s{S_W}\ns_lshl2_add_u32 s76, s76, {i}\ns_lshl2_add_u32 s76, s76, s{S_KQ}\ns_lshl_b32 s76, s76, 12\ns_add_u32 s76, s76, {WS_DX}")
            for i in range(1, 3):
                touch(4, SWO, f"s_lshr_b32 s77, s2, 3\ns_lshl2_add_u32 s77, s77, s{S_W}\ns_mul_i32 s77, s77, {1179648 // 128}\ns_mul_i32 s76, s{S_KQ}, {1024*1152}\ns_add_u32 s76, s76, s77\ns_add_u32 s76, s76, {i*3072}")
        else:
            for i in range(1, 4): touch(128, SOUT, f"s_lshl2_add_u32 s76, s{S_B}, s{S_W}\ns_mul_i32 s76, s76, {32*2304}\ns_add_u32 s76, s76, {i*8*2304}")
            for pi in range(1, 4): touch(16, SWS, f"s_lshr_b32 s76, s{sOP[pi]}, 6\ns_add_u32 s76, s76, {WS_FLAG + 128}")
            for i in range(1, 3): touch(32, SWS, f"s_andn2_b32 s76, s2, 3\ns_add_u32 s76, s76, s{S_W}\ns_mul_i32 s76, s76, {4*6144}\ns_add_u32 s76, s76, {WS_D + i*8192}")
            for i in range(1, 4):
                touch(1, SV, f"s_lshl_b32 s76, s{S_W}, 14\ns_add_u32 s76, s76, s{sKV0}\ns_add_u32 s76, s76, {i*4096}")
                touch(8, SWS, f"s_add_u32 s76, s{sOP[0]}, {i*4096}")
        S.smem_pending = True; S.lg.append(set())
    if cfg.tlb and cfg.tlbpos == -1: tlb_touch()
    S.wait_vm(9 if cfg.codepf else 8)
    chunk(1)
    S.wait_vm_tag("ch0")
    stamp(S, cfg, 2)
    S("s_barrier")
    def pubch(c):
        S.wait_vm_tag(f"ch{c}"); publish(c)
    chunk(2, None if cfg.abar else (lambda: pubch(1)))
    S(f"""v_lshlrev_b32 v2, 4, v2
    s_lshl_b32 s76, s{S_W}, 2
    v_add_u32 v2, s76, v2
    v_mul_u32_u24 v2, 1152, v2
    s_lshl_b32 s76, s{S_KQ}, 6
    v_add_u32 v3, s76, v{VOO}
    v_and_b32 v3, 0xff, v3
    v_add_u32 v{VMO}, v2, v3
    v_min_u32 v2, 2, v1
    v_add3_u32 v2, v2, s{S_P}, 1
    v_and_b32 v2, 3, v2
    v_lshlrev_b32 v2, 6, v2
    s_and_b32 s76, s2, 63
    v_add_u32 v2, s76, v2
    v_lshlrev_b32 v2, 2, v2
    v_add_u32 v2, s{S_W}, v2
    v_lshlrev_b32 v{VFL}, 8, v2
    s_lshl_b32 s{sMo}, s{S_W}, 12""")
    if cfg.tlb and cfg.tlbpos == 0: tlb_touch()
    if cfg.tlb and cfg.tlbpos3 == 0: tlb_touch(2)
    if cfg.diagsleep: S(f"s_sleep {cfg.diagsleep}")
    for c in range(1, 7):
        if cfg.abar:
            S.wait_vm_tag(f"ch{c}"); stamp(S, cfg, c, cfg.adetail) if cfg.adetail else None; S("s_barrier"); known[0] = c
        else:
            wait_free(c, c + 1)
            pubch(c + 1)
        if c == 4: nonce_issue(S, VN, VZ)
        if not cfg.nodma: chunk(c + 2)
        if str(c) in cfg.cpf.split(","): code_touch()
        if cfg.vpf and str(c) in cfg.vpfpos.split(","):
            S.out += _raw(f"s_lshl_b32 s76, s{S_W}, 13\ns_add_u32 s76, s76, s{sKV0}\n" +
                          "\n".join(f"s_load_dword s61, s[{SV}:{SV+1}], s76 offset:{(vp[0] + i) * 64}" for i in range(cfg.vpf)))
            vp[0] += cfg.vpf
            S.smem_pending = True; S.lg.append(set())
        if cfg.tlb and cfg.tlbpos == c: tlb_touch()
        if cfg.tlb and cfg.tlbmode == "dense" and c == cfg.tlbpos2: tlb_touch(1)
        if cfg.tlb and cfg.tlbmode == "dense" and c == cfg.tlbpos3: tlb_touch(2)
        for item in cfg.akv.split(","):
            if "+" in item:
                what, lst = item.split(":"); lst = [int(x) for x in lst.split("+")]
            else:
                what, first, ncls, rot = (item.split(":") + ["0"])[:4]
                first, ncls, rot = int(first), int(ncls), int(rot)
                lst = [first + (k - rot) % ncls for k in range(ncls)]
            for k in range(len(lst)):
                if lst[k] == c: cond(f"L_a{what}_{c}_{k}", k, len(lst) - 1, warm_lines() if what == "w" else kv_lines(int(what)), f"s_waitcnt vmcnt({cfg.kvwait})\n")
            if what != "w" and c == max(lst): S.phantom([f"v{KVREG[int(what)]+i}" for i in range(32)], f"kv{what}")
    nonce_check(S, VN, VZ, "L_ln")
    units, slots = c_units(), c_slots()
    def w_src(j):
        uk, hh, x = units[j]
        if uk == "M": return VMO, 65, (hh * 128 + 64 * x) * 1152
        if uk == "E": return VEO, 64, hh * 128 * 1152
        return VMO, sWP[1 + x % 3], (hh * 128 + 64 * (x // 3)) * 1152
    blocks = [152 + 16 * i for i in range(6)]
    parked = {}
    def w_load(j):
        va, sb, off = w_src(j)
        S(f"s_add_u32 s{sA}, s{sb}, {off}")
        if slots[("W", j)][1] <= known[0] and (j not in (3, 4, 9, 10) or (j > 4) in picked):
            lds_w.add(j)
            for i in range(4):
                S(f"s_add_u32 m0, s{sM}, {slot(slots[('W', j)][0]) + i*(PITCH-1152)}")
                S(f"buffer_load_dwordx4 v{va}, {srd(SWO)}, s{sA} offen offset:{i*1152} {cfg.pol_wo} lds", tag=f"u{j}")
        else:
            parked[j] = blocks.pop(0)
            for i in range(4 if "nopark" not in cfg.dbg else 0):
                S(f"buffer_load_dwordx4 {vr(parked[j]+4*i,4)}, v{va}, {srd(SWO)}, s{sA} offen offset:{i*1152} {cfg.pol_wo}", tag=f"u{j}w")
    lds_w = set()
    def w_write(j):
        assert j not in (3, 4, 9, 10) or (j > 4) in picked
        wait_free(slots[("W", j)][1])
        lds_w.add(j)
        S.wait_vm_tag(f"u{j}w")
        S(f"s_setprio {cfg.wprio if j < 7 else cfg.wprio2}\nv_add_u32 v2, {slot(slots[('W', j)][0])}, v{VWW}")
        for i in range(4 if not ("now" in cfg.dbg and j > 6 or "nolw" in cfg.dbg) else 0): S(f"ds_write_b128 v2, {vr(parked[j]+4*i,4)} offset:{i*PITCH}")
        S.wait_lg(0)
        S("s_setprio 0")
        blocks.append(parked.pop(j))
    def warm():
        for x in warm_lines(): S(x)
    issued, polled = set(), set()
    EV = c_events(cfg)
    def poll_issue(hh):
        issued.add(hh)
        S(f"s_mov_b32 s76, {WS_FLAG}")
        S(f"buffer_load_dword v{VP0 + (hh & 1)}, v{VFL}, {srd(SWS)}, s76 offen offset:{64*hh} sc1")
    def poll(hh):
        lab = f"L_poll{hh}"
        polled.add(hh)
        if "nopoll" in cfg.dbg: return
        if cfg.spoll:
            S.wait_lg(0)
            S(f"s_mov_b32 s77, {SPIN_LIMIT}")
            S.label(lab)
            S.out += _raw("\n".join(f"s_load_dword s{52+i}, s[50:51], s{55+i} offset:{64*hh} glc" for i in range(3)) + f"""
            s_waitcnt lgkmcnt(0)
            s_xor_b32 s52, s52, s{S_NONCE}
            s_xor_b32 s53, s53, s{S_NONCE}
            s_xor_b32 s54, s54, s{S_NONCE}
            s_or_b32 s52, s52, s53
            s_or_b32 s52, s52, s54
            s_cbranch_scc0 {lab}_ok
            s_sub_u32 s77, s77, 1
            s_cmp_lg_u32 s77, 0
            s_cbranch_scc1 {lab}""")
            S.label(f"{lab}_ok")
            return
        if hh not in issued: poll_issue(hh)
        v = VP0 + (hh & 1)
        S(f"v_cmp_eq_u32 vcc, s{S_NONCE}, v{v}")
        S(f"s_cmp_eq_u64 vcc, -1\ns_cbranch_scc0 {lab}")
        S.label(f"{lab}_ok")
        S.cold += _raw(f"""{lab}:
        s_mov_b32 s76, {WS_FLAG}
        s_mov_b32 s77, {SPIN_LIMIT}
        {lab}_spin:
        buffer_load_dword v{v}, v{VFL}, {srd(SWS)}, s76 offen offset:{64*hh} sc1
        s_waitcnt vmcnt(0)
        v_cmp_eq_u32 vcc, s{S_NONCE}, v{v}
        s_nop 1
        s_cmp_eq_u64 vcc, -1
        s_cbranch_scc1 {lab}_ok
        s_sub_u32 s77, s77, 1
        s_cmp_lg_u32 s77, 0
        s_cbranch_scc1 {lab}_spin
        s_branch {lab}_ok""")
    oreg, picked = {}, set()
    def pickup(h):
        wait_free((F_O0, F_O1)[h])
        S(f"s_setprio {cfg.lprio}\nv_add_u32 v2, {slot(2 - 2*h)}, v{VWW}")
        for x in range(2):
            oreg[2*h + x] = blocks.pop(0)
            for i in range(4): S(f"ds_read_b128 {vr(oreg[2*h+x] + 4*i, 4)}, v2 offset:{x*SLOT + i*1024}")
        S.wait_lg(0)
        S("s_setprio 0")
        picked.add(h)
    def o_store(k):
        if "nost" in cfg.dbg: return
        S(f"s_add_u32 s{sA}, s{sOP[0]}, {WS_O + k*4096}")
        for i in range(4):
            S(f"buffer_store_dwordx4 {vr(oreg[k] + 4*i, 4)}, v{VOO}, {srd(SWS)}, s{sA} offen offset:{i*1024} {cfg.pol_st}", tag=f"o{k}")
    def o_flag(k):
        S.wait_vm_tag(f"o{k}")
        S(f"""s_lshr_b32 s76, s{sOP[0]}, 6
        s_add_u32 s76, s76, {WS_FLAG + 64*k}
        v_mov_b32 v3, s{S_NONCE}
        buffer_store_dword v3, v{VZ}, {srd(SWS)}, s76 offen sc1""")
        blocks.append(oreg.pop(k))
    def kv_duty(m, sl, f, r):
        wait_free(f); kv_write(m, sl); publish(r)
        blocks.extend([KVREG[m], KVREG[m] + 16])
    if cfg.prog2:
        S(f"s_and_b32 s76, s{S_B}, 1\ns_cmp_lg_u32 s76, 0\ns_cbranch_scc1 L_fork_c1")
        S.label("L_fork")
        S.ncold = len(S.cold)
    prog = PROGS[S.progname].split()
    for after in cfg.cpfop.split(","):
        if after: prog.insert(prog.index(after) + 1, "cpf")
    if cfg.stop == "A": prog = ["bA7", "bA8"] if cfg.abar else ["p8"]
    if cfg.stop == "B": prog = [x for x in prog if x[0] in "KVpPS" or x[:2] in ("wK", "wV", "bA")]
    for op in prog:
        if cfg.ptrace and (not cfg.pfilter or op in cfg.pfilter.split(",")): S(trace_raw(cfg, "loader", op))
        if op in ("K1", "V0", "V1"): kv_load({"K1": 1, "V0": 2, "V1": 3}[op])
        elif "@" in op: kv_load_if({"K1": 1, "V0": 2, "V1": 3}[op[:2]], int(op[3]), 2)
        elif op in ("D0", "D1"):
            m = 2 + int(op[1]); wait_free(8 + int(op[1])); v_dma(m, 4 + 2 * int(op[1])); blocks.extend([KVREG[m], KVREG[m] + 16])
        elif op in ("pV0", "pV1"):
            S.wait_vm_tag(f"kv{2 + int(op[2])}"); publish((R_V0, R_V1)[int(op[2])])
        elif op == "warm": warm()
        elif op == "p8": S.wait_vm_tag("ch8"); publish(8)
        elif op[0] == "b":
            j = int(op[2:])
            S.wait_vm_tag(f"ch{j}"); known[0] = j
            S.wait_lg(0)
            if cfg.adetail: stamp(S, cfg, j, True)
            S("s_barrier")
        elif op == "wK0": kv_duty(0, 0, 7, R_K0)
        elif op == "wK1": kv_duty(1, 2, 8, R_K1)
        elif op == "wV0": kv_duty(2, 4, 8, R_V0)
        elif op == "wV1": kv_duty(3, 6, 9, R_V1)
        elif op[0] == "W": w_load(int(op[1:]))
        elif op[0] == "w": w_write(int(op[1:]))
        elif op[0] == "f": wait_free(int(op[1:]))
        elif op[0] == "q": poll(int(op[1:]))
        elif op[0] == "Q": poll_issue(int(op[1:]))
        elif op[0] == "P": pickup(int(op[1:]))
        elif op[0] == "S": o_store(int(op[1:]))
        elif op[0] == "G": o_flag(int(op[1:]))
        elif op == "cpf": code_touch()
        elif op[0] == "z": S(f"s_sleep {op[1:]}")
        elif op[0] == "R":
            name = op[1:]
            if name in WSET:
                for j in WSET[name]:
                    if j in parked: w_write(j)
                    assert j in lds_w
                    S.wait_vm_tag(f"u{j}")
            else: assert int(name[2]) in polled
            assert EV[name][0] == last_pub[0] + 1, (name, EV, last_pub)
            publish(EV[name][0])
        else: raise ValueError(op)
    stamp(S, cfg, 3)
    if cfg.trace:
        S(f"s_lshl_b32 s66, s2, 2\ns_add_u32 s66, s66, s{S_W}\ns_lshl_b32 s66, s66, 9\ns_add_u32 s66, s66, {WS_STAMP + (1 << 20)}\nv_lshlrev_b32 v2, 2, v1")
        S(f"buffer_store_dword v250, v2, {srd(SWS)}, s66 offen\nbuffer_store_dword v251, v2, {srd(SWS)}, s66 offen offset:256")
    if cfg.stop:
        S.wait_vm(0); stamps_store(S, cfg); S("s_branch L_end"); return
    S(f"s_cmp_lg_u32 s{S_W}, 0\ns_cbranch_scc1 L_lfin")
    R = 64
    S(f"""v_and_b32 v2, 7, v1
    v_bfe_u32 v3, v1, 3, 2
    v_lshl_add_u32 v2, v3, 4, v2
    s_and_b32 s76, s{S_P}, 1
    s_lshl_b32 s76, s76, 3
    v_add_u32 v2, s76, v2
    v_lshlrev_b32 v2, 4, v2
    v_lshrrev_b32 v3, 5, v1
    v_lshl_add_u32 v4, v3, 14, v2
    s_lshl_b32 s{sA}, s{S_BLK}, 3
    s_add_u32 s{sA}, s{sA}, s{S_B}
    s_lshl_b32 s{sA}, s{sA}, 6
    s_add_u32 s{sA}, s{sA}, s{S_KQ}
    s_lshl_b32 s{sA}, s{sA}, 1
    s_lshr_b32 s76, s{S_P}, 1
    s_add_u32 s{sA}, s{sA}, s76
    s_lshl_b32 s{sA}, s{sA}, 11
    s_add_u32 s{sA}, s{sA}, {WS_DX}
    s_and_b32 s72, s{S_NONCE}, 1
    s_lshl_b32 s73, s{S_NONCE}, 15
    s_and_b32 s73, s73, 0x10000
    s_or_b32 s72, s72, s73
    v_mov_b32 v8, 0x10001
""")
    wait_free(F_DX)
    S(f"s_mov_b32 s77, {SPIN_LIMIT}")
    S.label("L_dx")
    for r in range(8):
        S(f"s_add_u32 s{sT}, s{sA}, {r*2*16384}")
        for gm in range(2):
            S(f"buffer_load_dwordx4 {vr(R+8*r+4*gm,4)}, v4, {srd(SWS)}, s{sT} offen offset:{gm*1024} sc1")
    S(f"v_xor_b32 v5, s72, v{R}")
    for i in range(1, 64): S(f"v_bitop3_b32 v5, v5, v{R+i}, s72 bitop3:0xf6")
    S("v_and_b32 v5, v5, v8\nv_cmp_eq_u32 vcc, 0, v5\ns_cmp_eq_u64 vcc, -1\ns_cbranch_scc1 L_dx_ok")
    S("s_sleep 4\ns_sub_u32 s77, s77, 1\ns_cmp_lg_u32 s77, 0\ns_cbranch_scc1 L_dx")
    S.label("L_dx_ok")
    AC = 24
    S("v_mov_b32 v9, 0xfffefffe")
    for i in range(64): S(f"v_and_b32 v{R+i}, v9, v{R+i}")
    for r in range(8):
        for d in range(8):
            src = R + 8 * r + d
            if r == 0:
                S(f"v_lshlrev_b32 v{AC+2*d}, 16, v{src}\nv_and_b32 v{AC+2*d+1}, 0xffff0000, v{src}")
            else:
                S(f"v_lshlrev_b32 v6, 16, v{src}\nv_and_b32 v7, 0xffff0000, v{src}\nv_add_f32 v{AC+2*d}, v{AC+2*d}, v6\nv_add_f32 v{AC+2*d+1}, v{AC+2*d+1}, v7")
    for i in range(8): S(f"v_permlane32_swap_b32 v{AC+i}, v{AC+8+i}")
    for i in range(8): S(f"v_add_f32 v{AC+i}, v{AC+i}, v{AC+8+i}")
    for i in range(4): S(f"v_cvt_pk_bf16_f32 v{44+i}, v{AC+2*i}, v{AC+2*i+1}")
    S(f"""v_and_b32 v2, 7, v1
    s_lshl_b32 s76, s{S_B}, 7
    s_lshl_b32 s77, s{S_KQ}, 5
    s_add_u32 s76, s76, s77
    s_lshl_b32 s77, s{S_P}, 3
    s_add_u32 s76, s76, s77
    v_add_u32 v2, s76, v2
    v_mul_u32_u24 v2, 2304, v2
    v_bfe_u32 v3, v1, 3, 2
    v_lshl_add_u32 v2, v3, 3, v2
    v_lshrrev_b32 v3, 5, v1
    v_lshl_add_u32 v2, v3, 6, v2
    s_mul_i32 s76, s{S_BLK}, 1152
    s_add_u32 s76, s76, 1024
    buffer_store_dwordx2 v[44:45], v2, {srd(SOUT)}, s76 offen {cfg.pol_out}
    buffer_store_dwordx2 v[46:47], v2, {srd(SOUT)}, s76 offen offset:32 {cfg.pol_out}""")
    S.label("L_lfin")
    if cfg.stamps: S("s_waitcnt vmcnt(0)")
    stamps_store(S, cfg)
    S("s_branch L_end")

def compute(S, cfg):
    VX, VW = [4, 5, 6], [7, 8, 9]
    VK, VV, VOST, VZ, VN = [10, 11], [12, 13], 14, 15, 16
    VM, VT, VRC, VPR, VFA, VFT, VPR2 = [16, 17], 19, [[20, 21], [22, 23]], 18, 2, 3, 19
    ONES, LS = 56, [60, 4]
    QP = lambda h: 64 + 32 * h
    SS = lambda h: 128 + 64 * h
    PP = 64
    OF = lambda h, s, u: 96 + 8 * s + 4 * u if h == 0 else 192 + 16 * s + 4 * u
    S.label("L_compute")
    S(f"v_mov_b32 v{VZ}, 0")
    srd_consts(S, (SWS, SOUT, SDBG))
    S("s_waitcnt lgkmcnt(0)")
    first_stamps(S, cfg)
    srd_bases(S, (SWS, SOUT, SDBG))
    S(f"s_or_b32 s66, s2, s3\ns_cmp_lg_u32 s66, 0\ns_cbranch_scc1 L_notag")
    S.out += _raw(f"""s_mov_b32 s66, {WS_EPOCH}
    buffer_load_dword v2, v{VZ}, {srd(SWS)}, s66 offen sc1
    s_waitcnt vmcnt(0)
    v_add_u32 v2, 1, v2
    v_max_u32 v2, 1, v2
    buffer_store_dword v2, v{VZ}, {srd(SWS)}, s66 offen sc1
    buffer_store_dword v2, v{VZ}, {srd(SDBG)}, 0 offen sc1
    s_waitcnt vmcnt(0)""")
    S.label("L_notag")
    S(f"""v_and_b32 v22, 15, v1
    v_lshrrev_b32 v23, 4, v1
    v_mul_u32_u24 v2, {PITCH}, v22
    v_lshl_add_u32 v{VK[0]}, v23, 4, v2
    v_add_u32 v{VK[0]}, {LB}, v{VK[0]}
    v_add_u32 v{VK[1]}, {2*SLOT}, v{VK[0]}
    s_lshl_b32 s66, s{S_W}, 8
    v_add_u32 v{VX[0]}, s66, v{VK[0]}
    v_add_u32 v{VX[1]}, {3*SLOT}, v{VX[0]}
    v_add_u32 v{VX[2]}, {6*SLOT}, v{VX[0]}
    v_bfe_u32 v2, v1, 2, 3
    v_mul_u32_u24 v2, {PITCH}, v2
    v_lshrrev_b32 v3, 5, v1
    v_lshl_add_u32 v2, v3, 9, v2
    v_and_b32 v3, 3, v1
    v_lshl_add_u32 v2, v3, 3, v2
    v_add_u32 v{VW[0]}, {slot(1)}, v2
    v_add_u32 v{VW[1]}, {slot(4)}, v2
    v_add_u32 v{VW[2]}, {slot(7)}, v2
    v_lshrrev_b32 v2, 2, v1
    v_mul_u32_u24 v2, {PITCH}, v2
    v_lshl_add_u32 v2, v3, 3, v2
    v_add_u32 v{VV[0]}, {slot(4)}, v2
    v_add_u32 v{VV[1]}, {slot(6)}, v2
    s_mul_i32 s66, s{S_W}, {4*PITCH}
    s_add_u32 s66, s66, {slot(0)}
    v_lshlrev_b32 v{VOST}, 4, v1
    v_add_u32 v{VOST}, s66, v{VOST}
    s_add_u32 s66, s{S_W}, 4
    v_lshl_add_u32 v{VFA}, v1, 2, 64
    s_nop 1
    v_writelane_b32 v{VFA}, s66, 0
    s_mov_b32 s{S_C}, {f32(math.log2(math.e) / math.sqrt(128.0))}
    s_mov_b32 s58, s{S_C}
    s_mov_b32 s59, s{S_C}""")
    for pi in range(1, 4):
        S(f"s_add_u32 s66, s2, {64*pi}\ns_and_b32 s66, s66, 255\ns_lshl2_add_u32 s66, s66, s{S_W}\ns_lshl_b32 s{95+pi}, s66, 14")
        S(f"s_add_u32 s66, s{S_KQ}, {pi}\ns_and_b32 s66, s66, 3\ns_andn2_b32 s67, s2, 3\ns_add_u32 s66, s66, s67\ns_lshl2_add_u32 s66, s66, s{S_W}\ns_mul_i32 s66, s66, 6144\ns_add_u32 s{(100, 101, 57)[pi-1]}, s66, {WS_D + (pi-1)*2048}")
    S(f"""s_lshl3_add_u32 s66, s{S_BLK}, s{S_B}
    s_lshr_b32 s67, s{S_H0}, 1
    s_lshl4_add_u32 s66, s66, s67
    s_lshl2_add_u32 s66, s66, s{S_W}
    s_lshl_b32 s66, s66, 12
    s_add_u32 s99, s66, {WS_DX}
    s_lshl2_add_u32 s74, s2, s{S_W}
    s_mul_i32 s74, s74, 6144
    s_add_u32 s74, s74, {WS_D}
    s_add_u32 s75, s74, 4096
    s_lshl2_add_u32 s70, s{S_B}, s{S_W}
    s_mul_i32 s70, s70, {32*2304}
    s_mul_i32 s71, s{S_BLK}, 1152
    s_add_u32 s70, s70, s71
    s_lshl2_add_u32 s71, s{S_P}, s{S_KQ}
    s_lshl_b32 s71, s71, 6
    s_add_u32 s70, s70, s71
    s_add_u32 s71, s70, {16*2304}""")
    G = []
    def add(reads, mf, lead, need=None, free=None, gate=None, bar=False):
        G.append(dict(reads=reads, mf=mf, gate=len(G) - lead if gate is None else gate, need=need, free=free, bar=bar))
    ACC = lambda t, u: 128 + 8 * t + 4 * u
    ARING = [96, 104, 112, 120, 56]
    XF = lambda c, s, u: 24 + 16 * (c & 1) + 8 * s + 4 * u
    for c in range(9):
        for t in range(16):
            rg = ARING[len(G) % 5]
            rd = [f"ds_read_b64_tr_b16 {vr(rg+4*s+2*r,2)}, v{VW[c%3]} offset:{s*SLOT + r*8*PITCH + 32*t}" for s in range(2) for r in range(2)]
            if t == 0: rd = [f"ds_read_b128 {vr(XF(c,s,u),4)}, v{VX[c%3]} offset:{128*u + 64*s}" for s in range(2) for u in range(2)] + rd
            add(rd, [mfma(ACC(t, u), rg + 4*s, XF(c, s, u), first=(c == 0 and s == 0)) for u in range(2) for s in range(2)], cfg.alead,
                need=c if t == 0 and c and not cfg.abar else None, free=c + 1 if t == 15 and (c == 8 or not cfg.abar) else None, bar=cfg.abar and t == 0 and c > 0)
    gA = len(G)
    fill = [(gA - 6, gA, pack(QP(0), 128))]
    tail_fill = None
    KR = lambda i: 24 + 4 * ((i + 4) & 7)
    def qk(h):
        for i in range(32):
            kt, s = i >> 2, i & 3
            add([f"ds_read_b128 {vr(KR(i),4)}, v{VK[h]} offset:{(kt&1)*16*PITCH + (kt>>1)*256 + 64*s}"],
                [mfma(SS(h)+8*kt+4*u, KR(i), QP(h)+8*s+4*u, first=(s == 0)) for u in range(2)], cfg.blead,
                need=R_K0 + h if i == 0 else None, free=F_QK0 + h if i == 31 else None,
                gate=(gA - 3 if i < 4 else max(gA, len(G) - cfg.blead)) if h == 0 else None)
            G[-1]["wait4"] = (i & 3) == 0
    def pv(h):
        g0 = len(G)
        for i in range(32):
            dt, j = i >> 2, i & 3
            add([f"ds_read_b64_tr_b16 {vr(KR(i)+2*r,2)}, v{VV[h]} offset:{r*16*PITCH + j*256 + 32*dt}" for r in range(2)],
                ([mfma(LS[u], ONES, PP+8*jj+4*u, first=(jj == 0)) for u in range(2) for jj in range(4)] if i == 0 else []) +
                [mfma(SS(h)+8*dt+4*u, KR(i), PP+8*j+4*u, first=(j == 0)) for u in range(2)], cfg.blead,
                need=(R_V0, R_V1)[h] if i == 0 else None, free=(F_PV0, F_PV1)[h] if i == 31 else None,
                gate=max(len(G) - cfg.blead, g0 - (3, 3, 2, 2, 1, 1, 0, 0)[i]) if (h == 1 and i < 8) else None)
            G[-1]["wait4"] = (i & 3) == 0
    def softmax(h):
        s = SS(h)
        el = [[s + 8*kt + 4*u + r for kt in range(8) for r in range(4)] for u in range(2)]
        o = []
        for i in range(16):
            for u in range(2):
                e = el[u]
                if i == 0: o.append(f"v_max3_f32 v{VM[u]}, v{e[0]}, v{e[1]}, v{e[2]}")
                elif i < 15: o.append(f"v_max3_f32 v{VM[u]}, v{VM[u]}, v{e[2*i+1]}, v{e[2*i+2]}")
                else: o.append(f"v_max_f32 v{VM[u]}, v{VM[u]}, v{e[31]}")
        a, b = VM
        o += [f"v_permlane32_swap_b32 v{a}, v{b}", f"v_max_f32 v{a}, v{a}, v{b}", f"v_mov_b32 v{b}, v{a}",
              f"v_permlane16_swap_b32 v{a}, v{b}", f"v_max_f32 v{a}, v{a}, v{b}", f"v_mul_f32 v{a}, s{S_C}, v{a}", f"v_mov_b32 v{b}, v{a}",
              f"v_permlane32_swap_b32 v{a}, v{b}"]
        order = [(kt, u, r) for kt in range(8) for u in range(2) for r in range(4)]
        D = 2
        for i in range(64 + 2 * D):
            if i < 64:
                kt, u, r = order[i]; x = s + 8*kt + 4*u + r
                if not cfg.pk: o.append(f"v_fma_f32 v{x}, v{x}, s{S_C}, -v{VM[u]}")
                elif r % 2 == 0: o.append(f"v_pk_fma_f32 {vr(x,2)}, {vr(x,2)}, s[58:59], {vr(VM[0],2)} op_sel:[0,0,{u}] op_sel_hi:[1,1,{u}] neg_lo:[0,0,1] neg_hi:[0,0,1]")
            j = i - D
            if 0 <= j < 64:
                kt, u, r = order[j]; x = s + 8*kt + 4*u + r
                o.append(f"v_exp_f32 v{x}, v{x}")
            j = i - 2 * D
            if 0 <= j < 64:
                kt, u, r = order[j]; x = s + 8*kt + 4*u + r
                if r & 1: o.append(f"v_cvt_pk_bf16_f32 v{PP+8*(kt>>1)+4*u+2*(kt&1)+(r>>1)}, v{x-1}, v{x}")
        return o
    sig = [0]
    def signal(f):
        assert f > sig[0], (f, sig[0])
        sig[0] = f
        S(f"v_mov_b32 v{VFT}, {f}\nds_write_b8 v{VFA}, v{VFT}")
    def o_pack(h):
        s = SS(h); o = []
        need = (F_QK1, FU[1])[h]; lab = f"L_st{h}"
        def chk():
            S(f"v_readfirstlane_b32 s64, v{VPR2}")
            for x in swar(64, need): S(x)
            S(f"s_cbranch_scc0 {lab}")
            S.label(lab + "_ok")
            S.cold += spin_block(lab, lab + "_ok", VPR2, VZ, 4, 64, need, 0)
        for st in range(4):
            part = [f"ds_read_b32 v{VPR2}, v{VZ} offset:4"] if st == 0 else []
            for u in range(2):
                for e in range(2):
                    for r in range(4):
                        x = s + 8*(2*st+e) + 4*u + r
                        if not cfg.pk: part.append(f"v_mul_f32 v{x}, v{x}, v{VRC[h][u]}")
                        elif r % 2 == 0: part.append(f"v_pk_mul_f32 {vr(x,2)}, {vr(x,2)}, {vr(VRC[h][0],2)} op_sel:[0,{u}] op_sel_hi:[1,{u}]")
                i = 2 * st + u
                part += [f"v_cvt_pk_bf16_f32 v{OF(h,st,u)+2*e+x}, v{s+8*(2*st+e)+4*u+2*x}, v{s+8*(2*st+e)+4*u+2*x+1}" for e in range(2) for x in range(2)]
                if i == 0: part.append(chk)
                part.append((f"ds_write_b128 v{VOST}, {vr(OF(h,st,u),4)} offset:{(2 - 2*h + (i >> 2))*SLOT + (i & 3)*1024}", f"st{h}"))
            o.append(part)
        def done():
            S.wait_lg_tag(f"st{h}"); signal((F_O0, F_O1)[h])
        return o, done
    rcp = lambda h: [f"v_rcp_f32 v{VRC[h][u]}, v{LS[u]}" for u in range(2)]
    st = lambda i: (lambda: stamp(S, cfg, i))
    def pack_fill(h, g0):
        op, done = o_pack(h)
        return [(g0 + 4, g0 + 5, rcp(h)), (g0 + 10, g0 + 18, op[0]), (g0 + 18, g0 + 26, op[1]), (g0 + 26, g0 + 33, op[2]), (g0 + 33, g0 + 35, op[3]), (g0 + 35, g0 + 36, [done, "s_wakeup"])]
    if cfg.stop != "A":
        qk(0); qk(1); pv(0)
        fill += [(gA, gA + 1, [st(2), lambda: nonce_issue(S, VT, VZ)]),
                 (gA, gA + 32, pack(QP(1), 192) + [f"v_mov_b32 v{ONES+i}, 0x3f803f80" for i in range(4)]),
                 (gA + 32, gA + 33, [st(3)]), (gA + 33, gA + 64, softmax(0)),
                 (gA + 56, gA + 57, [lambda: nonce_check(S, VT, VZ, "L_cn")]), (gA + 64, gA + 65, [st(4)])] + pack_fill(0, gA + 64)
    gC0 = len(G)
    units, slots, EV = c_units(), c_slots(), c_events(cfg)
    VA, VL16 = [8, 9, 10], 11
    MC = lambda nt, u: 128 + 8 * nt + 4 * u
    EC = lambda nt, u: 200 + 16 * nt + 4 * u
    CRING = [40, 48, 24, 32, 56]
    OBUF = [(64, 8), (80, 8), (96, 8), (112, 8), (192, 16), (224, 16)]
    if cfg.defer < 12: OBUF += [(200, 16), (232, 16)]
    OB = lambda j, s, u: OBUF[(j - 6) % len(OBUF)][0] + OBUF[(j - 6) % len(OBUF)][1] * s + 4 * u
    sOP = [None, 96, 97, 98]
    if cfg.stop is None:
        setup = [f"v_add_u32 v{VA[0]}, {-6*SLOT & 0xffffffff}, v{VV[1]}", f"v_add_u32 v{VA[1]}, {-3*SLOT & 0xffffffff}, v{VV[1]}", f"v_mov_b32 v{VA[2]}, v{VV[1]}",
                 f"v_lshlrev_b32 v{VL16}, 4, v1"]
        fill += [(gA + 65, gA + 69, setup)]
        gC = gC0 + 32
        def cgroup(j, n, **kw):
            uk, hh, x = units[j]
            sl = slots[("W", j)][0]
            va, so = VA[sl // 3], (sl % 3) * SLOT
            k = len(G) - (gC0 if j < 2 else gC)
            rg = CRING[k % 4] if k < 32 else CRING[(k - 32) % 5]
            if uk == "E":
                nt, sp = n >> 1, n & 1
                rd = [f"ds_read_b64_tr_b16 {vr(rg+4*s+2*r,2)}, v{va} offset:{so + (2*(2*sp+s)+r)*128 + 32*nt}" for s in range(2) for r in range(2)]
                mf = [mfma(EC(nt, u), rg + 4*s, OF(hh, 2*sp+s, u), first=(hh == 0 and sp == 0 and s == 0)) for u in range(2) for s in range(2)]
            else:
                bf = (lambda s, u: OF(hh, 2*x+s, u)) if uk == "M" else (lambda s, u: OB(j, s, u))
                rd = [f"ds_read_b64_tr_b16 {vr(rg+4*s+2*r,2)}, v{va} offset:{so + (2*s+r)*256 + 32*n}" for s in range(2) for r in range(2)]
                mf = [mfma(MC(n, u), rg + 4*s, bf(s, u), first=(j == 0 and s == 0)) for u in range(2) for s in range(2)]
            need = None
            for name, us in WSET.items():
                if j in us and name not in seen: need = EV[name][0]; seen.add(name)
            b0 = len(G) - (k & 3)
            add(rd, mf, 3 if k < 36 else 4, gate={0: b0 - 6, 1: b0 - 4, 2: b0 - 2, 3: b0}[k & 3] if (k & ~3) in (0, 16) else None, need=need, **kw)
        seen = set(); gU = {}
        for j in range(cfg.merge):
            if j == 2:
                fill += [(gC0, gC0 + 1, [st(5)]), (gC0 + 3, gC0 + 16, softmax(1)), (len(G), len(G) + 1, [st(6)])] + pack_fill(1, len(G))
                pv(1)
            gU[j] = len(G)
            for n in range(2 if j >= cfg.defer else 0, 8): cgroup(j, n, free=FU.get(j) if n == 7 else None)
        gM = len(G)
        nm_ = 18 - cfg.merge
        for tau in (1, 2, 3):
            for j in range(cfg.merge, 18):
                for e in range(2): cgroup(j, 2 * tau + e)
        for j in range(min(cfg.defer, cfg.merge), 18):
            for e in range(2): cgroup(j, e)
        def o_loads(j):
            uk, hh, x = units[j]
            return [f"s_add_u32 s{48 + j % 6}, s{sOP[1 + x % 3]}, {WS_O + hh*8192 + (x // 3)*4096}"] + \
                   [f"buffer_load_dwordx4 {vr(OB(j, i >> 1, i & 1), 4)}, v{VL16}, {srd(SWS)}, s{48 + j % 6} offen offset:{i*1024} {cfg.pol_o}" for i in range(4)]
        for k in range(4):
            num, p0 = EV[f"OP{k}"]; lab = f"L_rdy{num}"
            def chk(lab=lab, num=num):
                S(f"v_readfirstlane_b32 s64, v{VPR2}")
                for x in swar(64, num): S(x)
                S(f"s_cbranch_scc0 {lab}")
                S.label(lab + "_ok")
                S.cold += spin_block(lab, lab + "_ok", VPR2, VZ, 0, 64, num, 0)
            fill += [(gC + p0 - 2, gC + p0 - 1, [f"ds_read_b32 v{VPR2}, v{VZ}"]), (gC + p0, gC + p0 + 1, [chk])]
            for i in range(3):
                j = 6 + 3 * k + i
                first = {6: 16, 7: 16, 8: 24, 9: 24, 10: 48, 11: 48}.get(j, 8 * (j - 5) if len(OBUF) == 6 else cfg.dxpos + 10 if j < 14 else 8 * (j - 7))
                a = max(p0 + 1 + cfg.ostep * i, first)
                fill += [(gC + a, gC + a + 2, o_loads(j) if "noold" not in cfg.dbg else ["s_nop 0"])]
                if j == 9: fill += [(gC + a + 2, gC + a + 3, [lambda: signal(F_OI), "s_wakeup"])]
        VMASK, GR = 12, 64
        tagprep = [f"s_and_b32 s72, s{S_NONCE}, 1", f"s_lshl_b32 s73, s{S_NONCE}, 15", "s_and_b32 s73, s73, 0x10000", "s_or_b32 s72, s72, s73",
                   f"v_mov_b32 v{VMASK}, 0xfffefffe"]
        def tpack(base, n):
            o = []
            for k in range(n): o += [f"v_cvt_pk_bf16_f32 v{base+k}, v{base+2*k}, v{base+2*k+1}", f"v_and_or_b32 v{base+k}, v{base+k}, v{VMASK}, s72"]
            return o
        dx = list(tagprep)
        for u in range(2):
            for m_ in range(2):
                for k in range(4):
                    d, a = EC(2*m_, u) + k, EC(2*m_ + (k >> 1), u) + 2 * (k & 1)
                    dx += [f"v_cvt_pk_bf16_f32 v{d}, v{a}, v{a+1}", f"v_and_or_b32 v{d}, v{d}, v{VMASK}, s72"]
        for gm in range(4):
            dx.append(f"buffer_store_dwordx4 {vr(EC(2*(gm & 1), gm >> 1),4)}, v{VL16}, {srd(SWS)}, s99 offen offset:{gm*1024} {cfg.pol_sd}")
        def dsend(tau):
            o = []
            tp = tpack(128 + 16*tau, 8)
            for e in range(2):
                o += tp[8*e:8*e+8]
                o.append(f"buffer_store_dwordx4 {vr(128+16*tau+4*e,4)}, v{VL16}, {srd(SWS)}, s{(100, 101, 57)[tau-1]} offen offset:{e*1024} {cfg.pol_sd}")
            return o
        daddr = [f"v_and_b32 v2, 15, v1", "v_mul_u32_u24 v2, 2304, v2", "v_bfe_u32 v3, v1, 4, 1", "v_lshl_add_u32 v2, v3, 5, v2", "v_lshrrev_b32 v3, 5, v1", "v_lshl_add_u32 v2, v3, 4, v2",
                 "v_mov_b32 v6, 0x10001", "v_mov_b32 v4, 0x3f80", "v_mov_b32 v5, 0x3f800000"]
        q = 2 * nm_
        w = min(q - 1, 6)
        fill += [(gC + cfg.dxpos, gC + cfg.dxpos + 8, dx),
                 (gC + cfg.dxgo, gC + cfg.dxgo + 1, [lambda: signal(F_DX), "s_wakeup"]), (gM + 1, gM + 6, daddr), (gM + q + 1, gM + q + 1 + w, dsend(1)), (gM + 2*q + 1, gM + 2*q + 1 + w, dsend(2)), (gM + 3*q + 1, gM + 3*q + 1 + w, dsend(3))]
        if cfg.mst:
            fill += [(gC + int(x), gC + int(x) + 1, [lambda i=i: stamp(S, cfg, 1 + i, True)]) for i, x in enumerate(cfg.mst.split(","))]
        if cfg.cdetail > 0:
            fill += [((gC if j > 1 else gC0) + 8*j, (gC if j > 1 else gC0) + 8*j + 1, [lambda i=j - (cfg.cdetail - 1): stamp(S, cfg, 1 + i, True)]) for j in range(18) if 0 <= j - (cfg.cdetail - 1) < 12]
    if cfg.adetail:
        fill += [(16*c, 16*c + 1, [lambda c=c: stamp(S, cfg, 1 + c, True)]) for c in range(9)]
        if cfg.stop != "A": fill += [(gA + 32*i, gA + 32*i + 1, [lambda i=i: stamp(S, cfg, 10 + i, True)]) for i in range(3)]
    queue = []
    frees, due = {}, {}
    for gi, g in enumerate(G):
        if g["need"] is not None and not cfg.nocheck:
            lab = f"L_rdy{g['need']}"
            steps = [f"v_readfirstlane_b32 s69, v{VPR}"] + swar(69, g["need"])
            at = max(0, len(queue) - cfg.probe_ahead)
            pg = queue[at][0] if at < len(queue) else g["gate"]
            queue.insert(at, (pg, "r", f"ds_read_b32 v{VPR}, v{VZ}"))
            queue.append((g["gate"], "r", steps[0]))
            queue.append((g["gate"], "gap", None))
            def chk(lab=lab, need=g["need"], steps=steps):
                for x in steps[1:]: S(x)
                S(f"s_cbranch_scc0 {lab}")
                S.label(lab + "_ok")
                S.cold += spin_block(lab, lab + "_ok", VPR, VZ, 0, 69, need, 0)
            queue.append((g["gate"], "c", chk))
        if g["bar"]:
            for _ in range(cfg.bargap): queue.append((g["gate"], "gap", None))
            def br():
                S.wait_lg(0); S("s_barrier")
            queue.append((g["gate"], "c", br))
        for k, r in enumerate(g["reads"]):
            queue.append((g["gate"], "r", (r, f"g{gi}") if k == len(g["reads"]) - 1 else r))
        if g["free"] is not None and not cfg.nofree:
            def fr(gi=gi, f=g["free"]):
                S.wait_lg_tag(f"g{gi}")
                signal(f)
                if cfg.wake: due[m + 2] = lambda: S("s_wakeup")
            frees[f"g{gi}"] = fr
    nm = [len(g["mf"]) for g in G]
    pos = [sum(nm[:i]) for i in range(len(G) + 1)]
    fl = {}
    for (g0, g1, ins) in fill:
        a, b = pos[g0], pos[g1]
        for k, x in enumerate(ins): fl.setdefault(a + (k * (b - a)) // len(ins), []).append(x)
    S("v_mov_b32 v20, 0\nv_mov_b32 v21, 0\nv_lshlrev_b32 v3, 3, v1\nds_write_b64 v3, v[20:21]")
    S.wait_lg(0)
    if tail_fill: fl.setdefault(pos[tail_fill[0]] - 1, []).extend(tail_fill[1])
    S("s_barrier")
    stamp(S, cfg, 1)
    m = 0
    def issue(q):
        emit(S, q[2])
        if isinstance(q[2], tuple) and q[2][1] in frees: due[m + cfg.free_delay] = frees[q[2][1]]
    for gi, g in enumerate(G):
        last_tag = f"g{gi}"
        while any(isinstance(q[2], tuple) and q[2][1] == last_tag for q in queue):
            q = queue.pop(0)
            if q[1] != "gap": issue(q)
        if g.get("wait4"): S.wait_lg_tag(f"g{gi+3}")
        if cfg.gwait2 and "wait4" not in g and gi % 2 == 0: S.wait_lg_tag(f"g{gi+1}")
        if cfg.gwait: S.wait_lg_tag(last_tag)
        for k, mf in enumerate(g["mf"]):
            S(mf)
            if m in due: due.pop(m)()
            n = 0
            while queue and n < 2 and queue[0][0] <= gi:
                q = queue[0]
                if q[1] == "gap": queue.pop(0); break
                if n >= 1 and q[0] == gi and q[1] == "r": break
                queue.pop(0); issue(q); n += 1
            for x in fl.get(m, []): emit(S, x)
            m += 1
    assert not queue
    while due: due.pop(min(due))()
    if cfg.stop == "A":
        stamp(S, cfg, 2)
        for x in pack(QP(1), 192): S(x)
        S(f"s_lshl_b32 s66, s2, 16\ns_lshl_b32 s67, s{S_W}, 14\ns_add_u32 s66, s66, s67\nv_lshlrev_b32 v{VOST}, 4, v1\nv_add_u32 v{VOST}, s66, v{VOST}")
        for i in range(16):
            S(f"s_mov_b32 s66, {i*1024}")
            S(f"buffer_store_dwordx4 {vr(64+4*i,4)}, v{VOST}, {srd(SWS)}, s66 offen")
        S.wait_vm(0); stamps_store(S, cfg); S("s_branch L_end"); return
    if cfg.stop == "B":
        stamp(S, cfg, 6)
        op1, done1 = o_pack(1)
        for x in op1 + [done1]: emit(S, x)
        S.wait_vm(0); stamp(S, cfg, 7); stamps_store(S, cfg); S("s_branch L_end"); return
    stamp(S, cfg, 7)
    S(f"s_mov_b32 s77, {SPIN_LIMIT}")
    S.label("L_d")
    for i in range(6):
        S(f"buffer_load_dwordx4 {vr(GR+4*i,4)}, v{VL16}, {srd(SWS)}, s{74 + i//4} offen offset:{(i%4)*1024} sc1")
    S(f"v_xor_b32 v7, s72, v{GR}")
    for i in range(1, 24): S(f"v_bitop3_b32 v7, v7, v{GR+i}, s72 bitop3:0xf6")
    S("v_and_b32 v7, v7, v6\nv_cmp_eq_u32 vcc, 0, v7\ns_cmp_eq_u64 vcc, -1\ns_cbranch_scc1 L_d_ok")
    S("s_sub_u32 s77, s77, 1\ns_cmp_lg_u32 s77, 0\ns_cbranch_scc1 L_d")
    S.label("L_d_ok")
    stamp(S, cfg, 9)
    for i in range(24): S(f"v_and_b32 v{GR+i}, v{VMASK}, v{GR+i}")
    for tau in range(3):
        for u in range(2):
            for e in range(2):
                for x in range(2):
                    src = GR + 8 * tau + 4*e + 2*u + x; a = MC(e, u) + 2 * x
                    if cfg.dot2: S(f"v_dot2c_f32_bf16 v{a}, v{src}, v4\nv_dot2c_f32_bf16 v{a+1}, v{src}, v5")
                    else: S(f"v_lshlrev_b32 v8, 16, v{src}\nv_and_b32 v9, 0xffff0000, v{src}\nv_add_f32 v{a}, v{a}, v8\nv_add_f32 v{a+1}, v{a+1}, v9")
    if cfg.dot2: S("s_nop 2")
    GS = 48
    for u in range(2):
        for e in range(2):
            for x in range(2):
                S(f"v_cvt_pk_bf16_f32 v{GS+4*u+2*e+x}, v{MC(e,u)+2*x}, v{MC(e,u)+2*x+1}")
    for u in range(2):
        for x in range(2): S(f"v_permlane16_swap_b32 v{GS+4*u+x}, v{GS+4*u+2+x}")
    for u in range(2):
        S(f"buffer_store_dwordx4 {vr(GS+4*u,4)}, v2, {srd(SOUT)}, s{70+u} offen {cfg.pol_out}")
    if cfg.stamps:
        S.wait_vm(0); stamp(S, cfg, 10)
    stamps_store(S, cfg)
    S("s_branch L_end")

Cfg.dxwait = 17
H7 = "bA7 wK0 warm bA8 wK1 V1 wV0 W0 W1 W2 RWA W3 W4 W5 wV1 W6 W7 W8 w2 W9 W10 P0 S0 S1 RWB G0 G1 W11 W12 W13 W14 W15 W16 W17 "
H8 = "warm bA7 wK0 bA8 V0 wK1 W0 W1 wV0 V1 RWA W2 W3 W4 W5 W6 wV1 P0 S0 S1 RWB G0 G1 W7 W8 W9 W10 W11 W12 W13 W14 W15 W16 W17 "
H9 = "K1 bA7 wK0 bA8 V0 wK1 warm wV0 V1 W0 W1 RWA W2 W3 W4 W5 W6 wV1 P0 S0 S1 RWB G0 G1 W7 W8 W9 W10 W11 W12 W13 W14 W15 W16 W17 "
TA = "P1 S2 q0 ROP0 q1 ROP1 G2 f18 S3 RWC G3 w9 w10 w11 RWD q2 ROP2 q3 ROP3 RWE"
TB = "P1 S2 S3 q0 ROP0 q1 ROP1 G2 G3 RWC RWD q2 ROP2 q3 ROP3 RWE"
TD = "q0 ROP0 q1 ROP1 P1 S2 S3 RWC G2 G3 w9 w10 w11 RWD q2 ROP2 q3 ROP3 RWE"
TE = "q0 ROP0 q1 ROP1 P1 f18 S2 S3 RWC G2 G3 w9 w10 w11 RWD q2 ROP2 q3 ROP3 RWE"
HA = "bA7 wK0 warm bA8 wK1 V1 wV0 W0 W1 W2 RWA W3 W4 W5 wV1 W6 W7 W8 w2 W9 W10 W11 W12 P0 S0 S1 RWB W13 W14 W15 W16 W17 G0 G1 "
HB = "K1 bA7 wK0 bA8 V0 wK1 warm wV0 V1 W0 W1 RWA W2 W3 W4 W5 W6 wV1 P0 S0 S1 W7 W8 W9 W10 RWB G0 G1 "
TF = "q0 ROP0 q1 ROP1 P1 f18 S2 S3 W11 W12 W13 RWC G2 G3 W14 W15 W16 W17 w9 w10 w11 RWD q2 ROP2 q3 ROP3 RWE"
TG = "P1 q0 ROP0 q1 ROP1 f18 S2 S3 RWC G2 G3 w9 w10 w11 RWD q2 ROP2 q3 ROP3 RWE"
PROGS = {h + x: H + T for h, H in (("7", H7), ("8", H8), ("9", H9), ("A", HA)) for x, T in (("a", TA), ("b", TB), ("d", TD), ("e", TE), ("g", TG))}
HC = "bA7 wK0 warm bA8 wK1 V1 wV0 W0 W1 W2 RWA W3 W4 W5 wV1 W6 W7 W8 w2 W9 W10 W11 W12 P0 S0 S1 RWB G0 G1 W13 W14 W15 W16 W17 "
HD = "K1 bA7 wK0 bA8 V0 wK1 warm wV0 V1 W0 W1 RWA W2 W3 W4 W5 W6 wV1 W7 W8 P0 S0 S1 RWB G0 G1 W9 W10 W11 W12 W13 W14 W15 W16 W17 "
HE = "warm bA7 wK0 bA8 V0 wK1 W0 W1 wV0 V1 RWA W2 W3 W4 W5 W6 wV1 W7 W8 W9 W10 P0 S0 S1 RWB G0 G1 W11 W12 W13 W14 W15 W16 W17 "
TH = "q0 ROP0 q1 ROP1 w7 w8 P1 w9 w10 f18 S2 S3 RWC w11 RWD G2 G3 q2 ROP2 q3 ROP3 RWE"
TI = "q0 ROP0 q1 ROP1 P1 f18 S2 S3 RWC w9 w10 w11 G2 G3 RWD q2 ROP2 q3 ROP3 RWE"
TJ = "q0 ROP0 q1 ROP1 w7 w8 P1 S2 w9 w10 f18 S3 RWC G2 w11 RWD G3 q2 ROP2 q3 ROP3 RWE"
HF = "bA7 wK0 warm bA8 wK1 V1 wV0 f10 W0 W1 W2 RWA wV1 f12 W5 W6 P0 S0 S1 W3 W4 G0 G1 RWB "
HG = "warm bA7 wK0 bA8 V0 wK1 wV0 V1 f10 W0 W1 W2 RWA wV1 f12 W5 W6 P0 S0 S1 W3 W4 G0 G1 RWB "
HH = "K1 bA7 wK0 bA8 V0 wK1 warm wV0 V1 f10 W0 W1 W2 RWA wV1 f12 W5 W6 P0 S0 S1 W3 W4 G0 G1 RWB "
TK = "q0 ROP0 q1 ROP1 f15 W7 W8 P1 W9 W10 f18 W11 S2 S3 RWC f19 W12 W13 G2 G3 RWD q2 ROP2 q3 ROP3 f20 W14 W15 W16 W17 RWE"
TL = "q0 ROP0 q1 ROP1 f15 W7 W8 P1 S2 W9 W10 f18 W11 S3 RWC G2 f19 W12 W13 G3 RWD q2 ROP2 f20 W14 W15 W16 W17 q3 ROP3 RWE"
TM = "q0 ROP0 q1 ROP1 f15 W7 W8 P1 S2 S3 W9 W10 f17 W11 RWC G2 G3 f19 W12 W13 RWD q2 ROP2 f20 W14 W15 W16 W17 q3 ROP3 RWE"
for h, H in (("F", HF), ("G", HG), ("H", HH)):
    for x, T in (("k", TK), ("l", TL), ("m", TM)): PROGS[h + x] = H + T
HI = "warm bA7 wK0 bA8 D0 wK1 W3 W4 W5 W6 D1 pV0 f10 W0 W1 W2 W11 W12 W13 RWA pV1 W14 W15 W16 W17 P0 S0 S1 RWB G0 G1 "
HJ = "warm bA7 wK0 bA8 D0 wK1 W3 W4 W5 W6 D1 pV0 f10 W0 W1 W2 W7 W8 W9 RWA pV1 W10 W11 W12 W13 P0 S0 S1 RWB G0 G1 W14 W15 W16 W17 "
TN = "q0 ROP0 q1 ROP1 f15 W7 W8 P1 W9 W10 f18 S2 S3 RWC w11 RWD G2 G3 q2 ROP2 q3 ROP3 RWE"
TO = "q0 ROP0 q1 ROP1 f15 W7 W8 P1 S2 W9 W10 f18 S3 RWC G2 w11 RWD G3 q2 ROP2 q3 ROP3 RWE"
PROGS["In"] = HI + TN; PROGS["Io"] = HI + TO; PROGS["Jh"] = HJ + TH; PROGS["Jj"] = HJ + TJ
PROGS["Kn"] = PROGS["In"].replace("warm bA7 wK0 bA8 D0 wK1", "K1 bA7 wK0 bA8 D0 wK1 warm")
HL = "warm bA7 wK0 bA8 D0 wK1 D1 pV0 f10 W0 W1 W2 W3 W4 W5 W6 RWA pV1 W7 W8 W9 W10 W11 W12 W13 P0 S0 S1 RWB G0 G1 W14 W15 W16 W17 "
HM = "warm bA7 wK0 bA8 D0 wK1 W3 W4 D1 pV0 f10 W0 W1 W2 W5 W6 RWA W7 W8 pV1 W9 W10 W11 W12 P0 S0 S1 RWB G0 G1 W13 W14 W15 W16 W17 "
PROGS["Lh"] = HL + TH; PROGS["Mh"] = HM + TH; PROGS["Lj"] = HL + TJ
HN = "warm bA7 wK0 bA8 D0 wK1 D1 pV0 f10 W0 W1 W2 W9 W10 W11 RWA W12 W13 pV1 W14 W15 W16 W17 f12 W5 W6 P0 S0 S1 W3 W4 G0 G1 RWB "
PROGS["N1"] = HN + "q0 ROP0 q1 ROP1 f15 W7 W8 P1 w9 w10 f18 S2 S3 RWC w11 RWD G2 G3 q2 ROP2 q3 ROP3 RWE"
PROGS["N2"] = HN.replace("W9 W10 ", "") + "q0 ROP0 q1 ROP1 f15 W7 W8 P1 W9 W10 f18 S2 S3 RWC w11 RWD G2 G3 q2 ROP2 q3 ROP3 RWE"
PROGS["N3"] = HN.replace("W14 W15 W16 W17 ", "") + "q0 ROP0 q1 ROP1 f15 W7 W8 P1 w9 w10 f18 S2 S3 RWC w11 RWD G2 G3 q2 ROP2 f20 W14 W15 W16 W17 q3 ROP3 RWE"
PROGS["N4"] = HN + "q0 ROP0 q1 ROP1 f15 W7 W8 P1 f18 S2 S3 RWC w9 w10 w11 G2 G3 RWD q2 ROP2 q3 ROP3 RWE"
PROGS["E2"] = PROGS_E2 = None
PROGS["S0"] = ("warm bA7 wK0 bA8 V0 wK1 W0 W1 W2 W3 wV0 V1 W4 W5 RWA W6 W7 W8 wV1 W9 W10 P0 S0 S1 RWB G0 G1 W11 W12 W13 W14 W15 W16 W17 " + TH)
PROGS["S1"] = ("warm bA7 wK0 bA8 W0 W1 W2 W3 wK1 V0 W4 W5 wV0 RWA W6 W7 V1 W8 W9 W10 wV1 P0 W11 W12 S0 S1 RWB G0 G1 W13 W14 W15 W16 W17 " + TH)
PROGS["S2"] = ("warm bA7 wK0 bA8 W0 W1 W2 W3 wK1 V0 W4 W5 wV0 RWA W6 W7 V1 W8 W9 W10 wV1 P0 S0 S1 RWB G0 G1 W11 W12 W13 W14 W15 W16 W17 " + TH)
PROGS["S3"] = ("warm bA7 wK0 bA8 V0 wK1 W0 W1 W2 W3 wV0 V1 W4 W5 RWA W6 W7 W8 wV1 W9 W10 P0 S0 S1 RWB G0 G1 W11 W12 W13 W14 W15 W16 W17 " + TJ.replace("P1 S2 w9 w10 f18 S3", "P1 S2 S3 w9 w10"))
for h, H in (("C", HC), ("D", HD), ("E", HE)):
    for x, T in (("h", TH), ("i", TI), ("j", TJ)): PROGS[h + x] = H + T
PROGS["E2"] = PROGS["Eh"].replace("warm bA7 wK0 bA8 V0 wK1", "warm bA7 V0 bA8 wK0 wK1")
PROGS["E3"] = PROGS["Eh"].replace("warm bA7 wK0 bA8 V0 wK1", "bA7 wK0 bA8 V0 warm wK1")
PROGS["E5"] = PROGS["Eh"].replace("warm bA7 wK0 bA8 V0 wK1 W0 W1 wV0 V1", "warm bA7 wK0 bA8 V1 wK1 W0 W1 wV0")
PROGS["E6"] = PROGS["Eh"].replace("warm bA7 wK0 bA8 V0 wK1 W0 W1 wV0 V1", "bA7 wK0 bA8 V0 wK1 W0 W1 wV0 V1")
PROGS["E7"] = PROGS["Eh"].replace("P0 S0 S1 RWB G0 G1 W11", "P0 S0 S1 G0 G1 RWB W11")
PROGS["E8"] = PROGS["Eh"].replace("W7 W8 W9 W10 P0 S0 S1 RWB G0 G1 W11 W12 W13 W14", "W7 W8 W9 W10 W11 W12 P0 S0 S1 RWB G0 G1 W13 W14")
PROGS["F1"] = PROGS["Eh"].replace("q0 ROP0 q1 ROP1 w7 w8 P1 w9 w10 f18 S2 S3 RWC w11 RWD G2 G3", "w7 w8 q0 ROP0 q1 ROP1 P1 w9 w10 f18 S2 S3 RWC w11 RWD G2 G3")
PROGS["F2"] = PROGS["Eh"].replace("f18 S2 S3 RWC w11 RWD G2 G3", "f18 S2 S3 RWC w11 G2 G3 RWD")
PROGS["F3"] = PROGS["Eh"].replace("P1 w9 w10 f18 S2 S3 RWC w11 RWD G2 G3", "P1 w9 f18 S2 S3 RWC w10 w11 G2 RWD G3")
PROGS["F4"] = PROGS["Eh"].replace("q2 ROP2 q3 ROP3 RWE", "q2 ROP2 w14 w15 q3 ROP3 RWE")
PROGS["G1"] = PROGS["F2"].replace("q2 ROP2 q3 ROP3 RWE", "q2 ROP2 w14 w15 q3 ROP3 RWE")
PROGS["G2"] = PROGS["F2"].replace("RWD q2 ROP2 q3 ROP3 RWE", "RWD w14 w15 q2 ROP2 w16 w17 q3 ROP3 RWE")
PROGS["G3"] = PROGS["G1"].replace("f18 S2 S3 RWC w11 G2 G3 RWD", "f18 S2 S3 RWC G2 G3 w11 RWD")
PROGS["G4"] = PROGS["G1"].replace("w7 w8 P1 w9 w10 f18 S2 S3 RWC w11", "w7 P1 w8 w9 f18 S2 S3 RWC w10 w11")
PROGS["G5"] = PROGS["G1"].replace("G0 G1 W11 W12 W13 W14 W15 W16 W17 q0 ROP0 q1 ROP1", "G0 G1 W11 W12 W13 W14 q0 ROP0 q1 ROP1 W15 W16 W17")
PROGS["E4"] = PROGS["Eh"].replace("warm bA7 wK0 bA8 V0 wK1 W0 W1 wV0 V1", "V0 bA7 wK0 bA8 warm wK1 wV0 V1 W0 W1")
Cfg.prog = "F2"

def gen(cfg):
    hdr = open(REF).read().split("; Override launch")[0].rstrip("\n")
    launch = [f"; @launch grid=(256,1,1) block=(512,1,1) lds={LDS_BYTES}"]
    if cfg.amp >= 0:
        launch = [f"; @launch kernel={NAME} grid=(256,1,1) block=(512,1,1) lds={LDS_BYTES}", "; @launch kernel=amp_kernel grid=(1,1,1) block=(64,1,1) lds=0"]
    if cfg.pre or cfg.post:
        launch = [f"; @launch kernel={NAME} grid=(256,1,1) block=(512,1,1) lds={LDS_BYTES}"]
        if cfg.pre: launch = [f"; @launch kernel=aux_kernel grid=({cfg.pre},1,1) block=(64,1,1) lds=0"] + launch
        if cfg.post: launch += [f"; @launch kernel=aux_kernel grid=({cfg.post},1,1) block=(64,1,1) lds=0"]
    doc = """; One launch, 256 workgroups (one per CU), 8 waves: waves 0-3 compute (32 query rows each), waves 4-7 move data.
; Workgroup g: block = g>>2&1, K quarter kq = g&3, batch = g>>3&7, p = g>>6; heads 8kq+2p, 8kq+2p+1.
;  A  Q^T = wq^T x^T (two heads, k in nine 64-deep chunks through a 3-slot LDS ring, barriers)
;  B  S^T = K Q^T, softmax with the true row maximum, O^T = V^T P^T (row sums by an MFMA with a matrix of ones)
;  C  out^T partial over the quarter's 8 heads: 128 columns per workgroup, O of the three other head pairs comes through d_ws
;     (write-through stores, then a flag carrying this launch's tag); the last 64 columns are done on the own heads only
;  D  partial sums are exchanged as bf16 through d_ws and added in fp32; their lowest bits carry the launch tag and are dropped
; Waves of a workgroup signal each other with progress bytes in LDS words 0 (data ready) and 1 (LDS space free).
; The launch tag is (word found in d_ws) + 1, handed out through d_debug by workgroup 0. All waits are bounded.""".split("\n")
    L = [hdr] + launch + doc + ['.amdgcn_target "amdgcn-amd-amdhsa--gfx950"',
         ".text", f".globl {NAME}", ".p2align 8", f".type {NAME},@function", f"{NAME}:"]
    P = Stream("pro"); prologue(P, cfg); L += P.finish()
    Ld = Stream("loader"); Ld.smem_pending = True; Ld.progname = cfg.prog; loader(Ld, cfg); L += Ld.finish()
    if cfg.prog2:
        import re
        n0 = len(SITES)
        L2 = Stream("loader2"); L2.smem_pending = True; L2.progname = cfg.prog2; loader(L2, cfg)
        body = L2.finish(); body = body[body.index("L_fork:"):]
        ren = lambda x: re.sub(r"\b(L_(?!end\b)\w+)", r"\1_c1", x)
        L += [ren(x) for x in body]
        Ld.cold += [ren(x if isinstance(x, str) else "    " + x.text) for x in L2.cold[L2.ncold:]]
    L.append(".p2align 6")
    C = Stream("compute"); C.smem_pending = True; compute(C, cfg); L += C.finish()
    L.append("L_cold:")
    for s in (Ld, C):
        L += [x if isinstance(x, str) else "    " + x.text for x in s.cold]
    L += ["L_end:", "    s_endpgm", '.section .rodata,"a"', ".p2align 6", f".amdhsa_kernel {NAME}",
          "  .amdhsa_next_free_vgpr 256", "  .amdhsa_next_free_sgpr 102", "  .amdhsa_accum_offset 256",
          "  .amdhsa_group_segment_fixed_size 0", "  .amdhsa_kernarg_size 104", "  .amdhsa_user_sgpr_count 2",
          "  .amdhsa_user_sgpr_kernarg_segment_ptr 1", "  .amdhsa_system_sgpr_workgroup_id_x 1", ".end_amdhsa_kernel", ""]
    if cfg.pre or cfg.post:
        L = L[:-1] + [".text", ".globl aux_kernel", ".p2align 8", ".type aux_kernel,@function", "aux_kernel:", "    s_endpgm",
              '.section .rodata,"a"', ".p2align 6", ".amdhsa_kernel aux_kernel", "  .amdhsa_next_free_vgpr 8", "  .amdhsa_next_free_sgpr 16", "  .amdhsa_accum_offset 8",
              "  .amdhsa_group_segment_fixed_size 0", "  .amdhsa_kernarg_size 104", "  .amdhsa_user_sgpr_count 2",
              "  .amdhsa_user_sgpr_kernarg_segment_ptr 1", "  .amdhsa_system_sgpr_workgroup_id_x 1", ".end_amdhsa_kernel", ""]
    if cfg.amp >= 0:
        Am = Stream("amp")
        Am(f"""s_cmp_ge_u32 s2, 1
        s_cbranch_scc1 amp_end
        s_memrealtime s[24:25]
        s_load_dwordx2 s[4:5], s[0:1], 96
        s_mov_b32 s10, {WS_SIZE}
        s_mov_b32 s11, 0x20000
        s_waitcnt lgkmcnt(0)
        s_mov_b32 s8, s4
        s_and_b32 s9, s5, 0xffff
        v_lshlrev_b32 v1, 9, v0
        s_mov_b32 s12, {WS_STAMP + 64 * cfg.ampw}""")
        for i in range(4):
            Am(f"s_add_u32 s13, s12, {i*64*512}")
            Am(f"buffer_load_dword v{4+i}, v1, s[8:11], s13 offen offset:56")
            Am(f"buffer_load_dword v{8+i}, v1, s[8:11], s13 offen offset:{4*(cfg.amp if cfg.amp < 100 else 15)}")
        Am("v_min_u32 v4, v4, v5\nv_min_u32 v6, v6, v7\nv_min_u32 v4, v4, v6\nv_max_u32 v8, v8, v9\nv_max_u32 v10, v10, v11\nv_max_u32 v8, v8, v10")
        Am("s_mov_b32 s14, -1\ns_mov_b32 s15, 0")
        for l in range(64):
            Am(f"v_readlane_b32 s16, v4, {l}\nv_readlane_b32 s17, v8, {l}\ns_nop 3\ns_min_u32 s14, s14, s16\ns_max_u32 s15, s15, s17")
        if cfg.amp == 100: Am("s_mov_b32 s14, s15\ns_mov_b32 s15, s24")
        if cfg.amp == 101:
            Am(f"s_add_u32 s4, s4, {WS_STAMP - 64}\ns_addc_u32 s5, s5, 0\ns_load_dword s26, s[4:5], 0\ns_waitcnt lgkmcnt(0)\ns_mov_b32 s15, s14\ns_mov_b32 s14, s26")
        if cfg.amp == 102: Am("s_mov_b32 s15, s14")
        Am("s_sub_u32 s14, s15, s14\ns_min_u32 s14, s14, 20000\ns_mul_i32 s14, s14, 10\ns_memrealtime s[18:19]\ns_waitcnt lgkmcnt(0)")
        Am.label("amp_spin")
        Am("s_sleep 2\ns_memrealtime s[20:21]\ns_waitcnt lgkmcnt(0)\ns_sub_u32 s22, s20, s18\ns_cmp_lt_u32 s22, s14\ns_cbranch_scc1 amp_spin")
        Am.label("amp_end")
        Am("s_endpgm")
        L = L[:-1]
        L += [".text", ".globl amp_kernel", ".p2align 8", ".type amp_kernel,@function", "amp_kernel:"] + Am.finish()
        L += [".globl pre_kernel", ".p2align 8", ".type pre_kernel,@function", "pre_kernel:",
              "s_cmp_ge_u32 s2, 1", "s_cbranch_scc1 pre_end", "s_load_dwordx2 s[4:5], s[0:1], 96", f"s_mov_b32 s10, {WS_SIZE}", "s_mov_b32 s11, 0x20000", "s_waitcnt lgkmcnt(0)",
              "s_mov_b32 s8, s4", "s_and_b32 s9, s5, 0xffff", "v_mov_b32 v1, 0", "s_memrealtime s[12:13]", "s_waitcnt lgkmcnt(0)", "v_mov_b32 v2, s12", f"s_mov_b32 s14, {WS_STAMP - 64}",
              "buffer_store_dword v2, v1, s[8:11], s14 offen", "pre_end:", "s_endpgm"]
        L += ['.section .rodata,"a"', ".p2align 6", ".amdhsa_kernel pre_kernel", "  .amdhsa_next_free_vgpr 32", "  .amdhsa_next_free_sgpr 32", "  .amdhsa_accum_offset 32",
              "  .amdhsa_group_segment_fixed_size 0", "  .amdhsa_kernarg_size 104", "  .amdhsa_user_sgpr_count 2",
              "  .amdhsa_user_sgpr_kernarg_segment_ptr 1", "  .amdhsa_system_sgpr_workgroup_id_x 1", ".end_amdhsa_kernel"]
        L += ['.section .rodata,"a"', ".p2align 6", ".amdhsa_kernel amp_kernel", "  .amdhsa_next_free_vgpr 32", "  .amdhsa_next_free_sgpr 32", "  .amdhsa_accum_offset 32",
              "  .amdhsa_group_segment_fixed_size 0", "  .amdhsa_kernarg_size 104", "  .amdhsa_user_sgpr_count 2",
              "  .amdhsa_user_sgpr_kernarg_segment_ptr 1", "  .amdhsa_system_sgpr_workgroup_id_x 1", ".end_amdhsa_kernel", ""]
    if cfg.align:
        from align import align
        k0 = L.index(f"{NAME}:"); k1 = L.index("L_end:") + 2
        body, nprom, npad = align(L[k0:k1], "L_compute", "L_cold", cfg.align == 2)
        L = L[:k0] + body + L[k1:]
        sys.stderr.write(f"align: promoted {nprom} padded {npad}\n")
    sys.stderr.write(f"nops: loader {Ld.nops} compute {C.nops}\n")
    return "\n".join(L)

if __name__ == "__main__":
    cfg = Cfg()
    out = sys.argv[1]
    for a in sys.argv[2:]:
        k, val = a.split("=", 1)
        cur = getattr(Cfg, k)
        if isinstance(cur, bool): val = val in ("1", "true", "True")
        elif isinstance(cur, int): val = int(val)
        elif val == "None": val = None
        if k.startswith("pol_"): val = val.replace("+", " ")
        setattr(cfg, k, val)
    open(out, "w").write(gen(cfg))
    open(out + ".sites", "w").write(" ".join(map(str, SITES)))
```

```python
import sys, math, struct
from sched import Stream, Ins

NAME = "concat_heads__mha_block_cached__gqa_block_cached__near_ridge_kernel"
REF = "concat_heads__mha_block_cached__gqa_block_cached__near_ridge.s.ref"
SLOT = 17408
PITCH = 1056
LB = 512
LDS_BYTES = LB + 9 * SLOT
def slot(i): return LB + i * SLOT
WS_O, WS_D, WS_DX, WS_FLAG, WS_EPOCH, WS_STAMP = 0, 16 << 20, 32 << 20, 40 << 20, 41 << 20, 48 << 20
WS_SIZE = 64 << 20
SPIN_LIMIT = 1 << 18

def f32(x): return struct.unpack("<I", struct.pack("<f", x))[0]
def vr(n, c=1): return f"v{n}" if c == 1 else f"v[{n}:{n+c-1}]"
def mfma(d, a, b, first=False):
    return f"v_mfma_f32_16x16x32_bf16 {vr(d,4)}, {vr(a,4)}, {vr(b,4)}, {'0' if first else vr(d,4)}"
def _raw(text): return [Ins(l.strip()) if not l.strip().endswith(":") else l.strip() for l in text.split("\n") if l.strip()]
def emit(S, x):
    if callable(x): x()
    elif isinstance(x, tuple): S(*x)
    else: S(x)

SX, SWQ, SK, SV, SWO, SWS, SOUT, SDBG = 8, 12, 16, 20, 24, 28, 32, 36
def srd(n): return f"s[{n}:{n+3}]"
S_BLK, S_KQ, S_B, S_P, S_H0, S_W, S_NONCE, S_C = 40, 41, 42, 43, 44, 45, 46, 47

R_K0, R_K1, R_V0, R_WA, R_V1, R_U = 9, 10, 11, 12, 13, 14
F_QK0, F_QK1, F_PV0, F_O0, F_PV1, F_O1 = 10, 11, 12, 13, 15, 16
F_OI, F_DX = 18, 21
FU = {1: 14, 2: 17, 4: 19, 8: 20}
WSET = {"WA": (0, 1), "WB": (2, 3, 4, 5, 6), "WC": (7, 8), "WD": (9, 10, 11, 12, 13), "WE": (14, 15, 16, 17)}
def c_events(cfg):
    pos = {"WB": 12, "WC": 52, "WD": 68, "WE": 8 * min(14, cfg.merge) - 4}
    for k, x in enumerate(cfg.opos.split(",")): pos[f"OP{k}"] = int(x)
    ev = {n: (R_U + i, pos[n]) for i, n in enumerate(sorted(pos, key=lambda n: pos[n]))}
    ev["WA"] = (R_WA, -12)
    return ev

class Cfg:
    pol_x = ""; pol_wq = ""; pol_kv = "nt"; pol_wo = ""
    stop = None
    stamps = False; real = False; adetail = False; cdetail = 0
    ngrp = 2; rotp = 1; rotk = 3
    k0pos = 1; k0cls = 4; kvwait = 8
    codepf = True
    order = "rot"
    flag0 = -5; flag0b = 4; o1pos = 16; flag1 = 44; flag1b = 60; dxpos = 56
    amp = -1; ampw = 0
    probe_ahead = 8
    free_delay = 7
    trace = False
    tlb = 0
    cpf = "5"
    cpfop = ""
    tlbpos = 1
    tlbmode = "dense"
    tlbpos2 = 3
    tlbpos3 = 9
    vpf = 0
    vpfpos = "1,2,3,4,5,6"
    diagsleep = 0
    tlbwo = 1
    tlboff = 0
    pol_st = "sc1"
    pol_sd = "sc1"
    gwait2 = False
    mst = ""
    prog2 = ""
    defer = 10
    dot2 = True
    wprio2 = 0
    dbg = ""
    spoll = True
    blead = 7
    pk = False
    pol_out = ""
    pre = 0
    post = 0
    align = 0
    dxgo = 92
    opos = "28,29,80,86"
    ostep = 2
    pol_o = "sc1"
    pfilter = ""
    o1end = 10
    merge = 14
    dxsleep = 8
    akv = "0:1:4,1:2:4:3"
    o1len = 30
    ptrace = False
    early0 = 72
    warmpos = -1
    k1pos = -1
    warmrot = 3
    wprio = 0
    bargap = 4
    abar = True
    cbar = 6
    nocheck = False
    nofree = False
    alead = 4
    nodma = False
    lprio = 3
    lsleep = 5
    wake = True
    gwait = True
    early = False
    trace_from = 0

def stamp(S, cfg, idx, det=False):
    if not cfg.stamps: return
    if (cfg.cdetail or cfg.adetail) and idx not in (0, 13) and not det: return
    S(f"{'s_memrealtime' if cfg.real else 's_memtime'} s[78:79]")
    S("s_waitcnt lgkmcnt(0)")
    S(f"s_mov_b32 s{80+idx}, s78")

SITES = []
def trace_raw(cfg, who, ident):
    if not cfg.trace or len(SITES) >= 128: return ""
    if cfg.ptrace and not isinstance(ident, str): return ""
    k = len(SITES); SITES.append(ident)
    return f"{'s_memrealtime' if cfg.real else 's_memtime'} s[78:79]\ns_waitcnt lgkmcnt(0)\nv_writelane_b32 v{250 + (k >> 6)}, s78, {k & 63}\n"
def stamps_store(S, cfg):
    if not cfg.stamps: return
    S("s_memrealtime s[78:79]\ns_waitcnt lgkmcnt(0)\ns_mov_b32 s95, s78")
    stamp(S, cfg, 13)
    S(f"s_lshl_b32 s66, s2, 3\ns_add_u32 s66, s66, s3\ns_lshl_b32 s66, s66, 6\ns_add_u32 s66, s66, {WS_STAMP}")
    S("v_mov_b32 v2, 0")
    S("s_mov_b64 exec, 1")
    for i in range(16):
        S(f"v_mov_b32 v3, s{80+i}")
        S(f"buffer_store_dword v3, v2, {srd(SWS)}, s66 offen offset:{4*i}")
    S("s_mov_b64 exec, -1")

def prologue(S, cfg):
    S(f"""s_cmp_ge_u32 s2, 256
    s_cbranch_scc1 L_end
    s_bfe_u32 s{S_BLK}, s2, 0x10002
    s_mul_i32 s66, s{S_BLK}, 40
    s_add_u32 s4, s0, s66
    s_addc_u32 s5, s1, 0
    s_load_dwordx8 s[48:55], s[4:5], 0""")
    if cfg.stamps:
        S(f"s_memrealtime s[6:7]\n{'s_memrealtime' if cfg.real else 's_memtime'} s[92:93]")
    S(f"""v_lshrrev_b32 v2, 6, v0
    v_and_b32 v1, 63, v0
    s_load_dwordx2 s[56:57], s[4:5], 32
    v_readfirstlane_b32 s3, v2
    s_load_dwordx4 s[60:63], s[0:1], 80
    s_load_dwordx2 s[64:65], s[0:1], 96
    s_and_b32 s{S_KQ}, s2, 3
    s_bfe_u32 s{S_B}, s2, 0x30003
    s_lshr_b32 s{S_P}, s2, 6
    s_lshl2_add_u32 s{S_H0}, s{S_KQ}, s{S_P}
    s_lshl_b32 s{S_H0}, s{S_H0}, 1
    s_and_b32 s{S_W}, s3, 3
    s_cmp_lt_u32 s3, 4
    s_cbranch_scc1 L_compute""")
def first_stamps(S, cfg):
    if cfg.stamps:
        S("s_mov_b32 s80, s92\ns_mov_b32 s94, s6")
        for i in range(1, 14): S(f"s_mov_b32 s{80+i}, 0")
SRD_SIZE = {SX: 1179648, SWQ: 4718592, SK: 8388608, SV: 8388608, SWO: 4718592, SWS: WS_SIZE, SOUT: 2359296, SDBG: 256}
def srd_consts(S, which):
    for d in which: S(f"s_mov_b32 s{d+2}, {SRD_SIZE[d]}\ns_mov_b32 s{d+3}, 0x20000")
def srd_bases(S, which):
    for d, p in ((SX, 48), (SWQ, 54), (SK, 50), (SV, 52), (SWO, 56), (SWS, 64), (SOUT, 60), (SDBG, 62)):
        if d in which: S(f"s_mov_b32 s{d}, s{p}\ns_and_b32 s{d+1}, s{p+1}, 0xffff")

def nonce_issue(S, vt, vz):
    S(f"buffer_load_dword v{vt}, v{vz}, {srd(SDBG)}, 0 offen sc1")
def nonce_check(S, vt, vz, lab):
    S(f"v_readfirstlane_b32 s{S_NONCE}, v{vt}")
    S(f"s_cmp_eq_u32 s{S_NONCE}, 0\ns_cbranch_scc1 {lab}")
    S.label(f"{lab}_ok")
    S.cold += _raw(f"""{lab}:
    s_mov_b32 s77, {SPIN_LIMIT}
    {lab}_spin:
    buffer_load_dword v{vt}, v{vz}, {srd(SDBG)}, 0 offen sc1
    s_waitcnt vmcnt(0)
    v_readfirstlane_b32 s{S_NONCE}, v{vt}
    s_nop 4
    s_cmp_lg_u32 s{S_NONCE}, 0
    s_cbranch_scc1 {lab}_ok
    s_sleep 2
    s_sub_u32 s77, s77, 1
    s_cmp_lg_u32 s77, 0
    s_cbranch_scc1 {lab}_spin
    s_branch {lab}_ok""")

def swar(s, need):
    return [f"s_or_b32 s{s}, s{s}, 0x80808080", f"s_sub_u32 s{s}, s{s}, {need * 0x01010101}", f"s_andn2_b32 s{s}, 0x80808080, s{s}", f"s_cmp_eq_u32 s{s}, 0"]
def spin_block(lab, back, vt, vz, off, sreg, need, sleep):
    return _raw(f"""{lab}:
    s_mov_b32 s77, {SPIN_LIMIT}
    {lab}_spin:
    ds_read_b32 v{vt}, v{vz} offset:{off}
    s_waitcnt lgkmcnt(0)
    v_readfirstlane_b32 s{sreg}, v{vt}
    s_nop 3
    """ + "\n".join(swar(sreg, need)) + f"""
    s_cbranch_scc1 {back}
    {'s_sleep ' + str(sleep) if sleep else ''}
    s_sub_u32 s77, s77, 1
    s_cmp_lg_u32 s77, 0
    s_cbranch_scc1 {lab}_spin
    s_branch {back}""")

def c_units():
    u = [("M", 0, 0), ("M", 0, 1), ("E", 0, 0), ("M", 1, 0), ("M", 1, 1), ("E", 1, 0)]
    for hh in (0, 1):
        for ii in range(6): u.append(("P", hh, ii))
    return u
def c_slots():
    sl = [(0, F_QK0), (1, F_QK0), (8, 9), (2, F_O0), (3, F_O0), (4, F_PV0), (5, F_PV0), (6, F_PV1), (7, F_PV1),
          (0, F_O1), (1, F_O1), (8, FU[2]), (2, FU[4]), (3, FU[4]), (4, FU[8]), (5, FU[8]), (6, FU[8]), (7, FU[8])]
    return {("W", j): sl[j] for j in range(18)}

def pack(dst, src):
    return [f"v_cvt_pk_bf16_f32 v{dst+8*s+4*u+2*e+x}, v{src+8*(2*s+e)+4*u+2*x}, v{src+8*(2*s+e)+4*u+2*x+1}" for s in range(4) for u in range(2) for e in range(2) for x in range(2)]
PAY = [0, 1, 2, 4, 5, 6, 8, 9]

def loader(S, cfg):
    VXO, VWO, VKV, VKW, VVW, VMO, VEO, VOO, VFL, VWW, VN, VZ, VP0, VPA, VT = 4, 5, 6, 7, 8, 9, 10, 11, 12, 13, 14, 15, 16, 18, 19
    KVREG = [24, 56, 88, 120]
    sXb, sWb, sCC, sM, sMo, sT, sKV0, sKV1, sA = 66, 67, 68, 69, 70, 71, 72, 73, 75
    sWP, sOP = [65, 96, 97, 98], [62, 99, 100, 101]
    S(f"""s_lshl_b32 s{sT}, s{S_W}, 2
    v_and_b32 v2, 0x38, v1
    v_lshl_add_u32 v2, v2, 1, s{sT}
    v_mul_u32_u24 v3, 1152, v2
    v_and_b32 v20, 7, v1
    v_lshl_add_u32 v{VXO}, v20, 4, v3
    s_lshl_b32 s76, s{S_W}, 3
    s_lshl1_add_u32 s76, s{S_W}, s76
    s_and_b32 s76, s76, 12
    v_and_b32 v2, 32, v1
    v_lshlrev_b32 v2, 12, v2
    v_and_b32 v20, 31, v1
    v_lshl_add_u32 v{VWO}, v20, 4, v2
    s_lshl_b32 s76, s76, 13
    s_mul_i32 s{sM}, s{sT}, {PITCH}
    s_lshl_b32 s75, s{S_H0}, 8
    s_add_u32 s75, s75, s76""")
    n = cfg.ngrp
    if cfg.order == "rot": orders = [[(round(9 * g / n) + c) % 9 for c in range(9)] for g in range(n)]
    else: orders = [[(c // n) * n + (c + g) % n if (c // n + 1) * n <= 9 else c for c in range(9)] for g in range(n)]
    tabs = [sum(x << (4 * i) for i, x in enumerate(o)) for o in orders]
    gtab = sum((i % n) << (2 * i) for i in range(16))
    S(f"""s_mul_i32 s76, s{S_P}, {cfg.rotp}
    s_add_u32 s76, s76, s{S_B}
    s_and_b32 s77, s{S_KQ}, {cfg.rotk}
    s_add_u32 s76, s76, s77
    s_lshl_b32 s76, s76, 1
    s_lshr_b32 s76, {gtab}, s76
    s_and_b32 s76, s76, 3
    s_mov_b32 s58, {tabs[0] & 0xffffffff}
    s_mov_b32 s59, {tabs[0] >> 32}""")
    for g in range(1, n):
        S(f"s_cmp_eq_u32 s76, {g}\ns_cselect_b32 s58, {tabs[g] & 0xffffffff}, s58\ns_cselect_b32 s59, {tabs[g] >> 32}, s59")
    S(f"s_mul_i32 s74, s{S_B}, 147456")
    srd_consts(S, (SX, SWQ))
    S("s_waitcnt lgkmcnt(0)")
    srd_bases(S, (SX, SWQ))
    def chunk(c, mid=None):
        base = slot((c % 3) * 3)
        S(f"""s_and_b32 s{sCC}, s58, 15
        s_lshr_b64 s[58:59], s[58:59], 4
        s_lshl_b32 s{sXb}, s{sCC}, 7
        s_add_u32 s{sXb}, s{sXb}, s74
        s_lshl_b32 s{sWb}, s{sCC}, 19
        s_add_u32 s{sWb}, s{sWb}, s75""")
        for i in range(4):
            S(f"s_add_u32 m0, s{sM}, {base + i*(PITCH-1152)}")
            S(f"buffer_load_dwordx4 v{VXO}, {srd(SX)}, s{sXb} offen offset:{i*1152} {cfg.pol_x} lds", tag=f"ch{c}")
        if mid: mid()
        for st in range(2):
            for i in range(4):
                S(f"s_add_u32 m0, s{sM}, {base + SLOT*(1+st) + i*PITCH}\ns_add_u32 s{sT}, s{sWb}, {(32*st+i)*8192}")
                S(f"buffer_load_dwordx4 v{VWO}, {srd(SWQ)}, s{sT} offen {cfg.pol_wq} lds", tag=f"ch{c}")
    def kv_lines(m):
        sr = SK if m < 2 else SV
        sb = sKV0 if m % 2 == 0 else sKV1
        o = [f"s_add_u32 s{sT}, s{sb}, 4096"]
        for j in range(8):
            o.append((f"buffer_load_dwordx4 {vr(KVREG[m]+4*j,4)}, v{VKV}, {srd(sr)}, s{sb if j < 4 else sT} offen offset:{(j&3)*1024} {cfg.pol_kv}", f"kv{m}"))
        return o
    def kv_load(m):
        for x in kv_lines(m): emit(S, x)
    def v_dma(m, sl):
        sb = sKV0 if m % 2 == 0 else sKV1
        S(f"""v_lshrrev_b32 v2, 4, v1
        v_lshlrev_b32 v2, 13, v2
        v_and_b32 v3, 15, v1
        v_lshl_add_u32 v2, v3, 4, v2
        s_lshl_b32 s76, s{S_W}, 11
        s_add_u32 s{sT}, s{sb}, s76
        s_lshl_b32 s76, s{sM}, 1""")
        for j in range(8):
            S(f"s_add_u32 m0, s76, {slot(sl) + j*(PITCH-256)}")
            S(f"buffer_load_dwordx4 v2, {srd(SV)}, s{sT} offen offset:{j*256} {cfg.pol_kv} lds", tag=f"kv{m}")
    def cond(lab, cls, mask, lines, pre=""):
        S(f"s_and_b32 s76, s{S_B}, {mask}\ns_cmp_lg_u32 s76, {cls}\ns_cbranch_scc1 {lab}")
        S.out += _raw(pre + "\n".join(x[0] if isinstance(x, tuple) else x for x in lines))
        S.label(lab)
    def kv_load_if(m, cls, ncls, pre=""):
        cond(f"L_kv{m}_{cls}", cls, ncls - 1, kv_lines(m), pre)
        if cls == ncls - 1: S.phantom([f"v{KVREG[m]+i}" for i in range(32)], f"kv{m}")
    def warm_lines():
        return f"""s_lshl_b32 s76, s{S_KQ}, 3
        s_add_u32 s76, s76, s{S_B}
        s_lshl_b32 s76, s76, 2
        s_add_u32 s76, s76, s{S_W}
        s_mul_i32 s76, s76, {32*1152}
        s_lshl_b32 s77, s{S_P}, 8
        s_add_u32 s76, s76, s77
        v_lshrrev_b32 v20, 1, v1
        v_mul_u32_u24 v20, 1152, v20
        v_and_b32 v3, 1, v1
        v_lshl_add_u32 v20, v3, 7, v20
        buffer_load_dword v22, v20, {srd(SWO)}, s76 offen {cfg.pol_wo}
        s_lshl_b32 s76, s{S_B}, 2
        s_add_u32 s76, s76, s{S_W}
        s_mul_i32 s76, s76, {8*1152}
        s_add_u32 s76, s76, s64
        v_and_b32 v21, 7, v1
        v_mul_u32_u24 v21, 1152, v21
        buffer_load_dword v23, v21, {srd(SWO)}, s76 offen offset:1024 {cfg.pol_wo}""".split("\n")
    def kv_write(m, sl):
        S.wait_vm_tag(f"kv{m}")
        S(f"s_setprio {cfg.wprio}")
        if "nolw" in cfg.dbg: return
        if m < 2:
            for j in range(8):
                S(f"v_add_u32 v2, {slot(sl) + j*4*PITCH}, v{VKW}")
                S(f"ds_write2_b64 v2, {vr(KVREG[m]+4*j,2)}, {vr(KVREG[m]+4*j+2,2)} offset0:0 offset1:2")
        else:
            S(f"v_add_u32 v2, {slot(sl)}, v{VVW}")
            for j in range(8):
                S(f"ds_write_b128 v2, {vr(KVREG[m]+4*j,4)} offset:{j*4*PITCH}")
    known = [0]; last_pub = [0]
    def wait_free(f, early=None):
        if f <= known[0]: return
        known[0] = f
        if cfg.nofree:
            S("s_sleep 5"); return
        lab = f"L_wf{f}"
        S.wait_lg(0)
        if cfg.trace and f >= cfg.trace_from: S(trace_raw(cfg, "loader", 100 + f))
        S(f"s_setprio {cfg.lprio}\nds_read_b32 v{VT}, v{VZ} offset:4\nv_readfirstlane_b32 s76, v{VT}")
        for x in swar(76, f): S(x)
        S(f"s_cbranch_scc0 {lab}")
        S.label(lab + "_ok")
        S("s_setprio 0")
        if cfg.trace and f >= cfg.trace_from: S(trace_raw(cfg, "loader", 200 + f))
        blk = spin_block(lab, lab + "_ok", VT, VZ, 4, 76, f, cfg.lsleep)
        if early and cfg.early: blk = blk[:1] + _raw(f"s_waitcnt vmcnt(0)\ns_mov_b32 s63, {early}\nv_mov_b32 v{VT}, {early}\nds_write_b8 v{VPA}, v{VT}\n" + (trace_raw(cfg, "loader", 400 + early) if f >= cfg.trace_from else "")) + blk[1:]
        S.cold += blk
    def publish(r):
        last_pub[0] = r
        S.wait_lg(0)
        S(f"s_setprio {cfg.lprio}\nv_mov_b32 v{VT}, {r}\nds_write_b8 v{VPA}, v{VT}\ns_setprio 0")
        if cfg.trace and known[0] >= cfg.trace_from: S(trace_raw(cfg, "loader", 300 + r))
        if cfg.adetail and r <= 12: stamp(S, cfg, r, True)
        if cfg.cdetail > 0 and 0 <= r - R_U < 12: stamp(S, cfg, 1 + r - R_U, True)
    chunk(0)
    first_stamps(S, cfg)
    stamp(S, cfg, 1)
    srd_consts(S, (SK, SV, SWO, SWS, SOUT, SDBG))
    srd_bases(S, (SK, SV, SWO, SWS, SOUT, SDBG))
    S(f"s_add_u32 s50, s64, {WS_FLAG}\ns_addc_u32 s51, s65, 0")
    if cfg.trace: S("s_mov_b32 s92, 0\nv_mov_b32 v250, 0\nv_mov_b32 v251, 0")
    if cfg.codepf:
        S(f"""s_getpc_b64 s[76:77]
        L_pc:
        s_lshr_b32 s{sT}, s2, 3
        s_lshl_b32 s{sT}, s{sT}, 2
        s_add_u32 s{sT}, s{sT}, s{S_W}
        s_mul_i32 s{sT}, s{sT}, 3
        v_min_u32 v2, 2, v1
        v_add_u32 v2, s{sT}, v2
        v_lshlrev_b32 v2, 7, v2
        v_min_u32 v2, L_end-L_pc, v2
        global_load_dword v23, v2, s[76:77]""")
    S(f"""v_mov_b32 v{VZ}, 0
    v_lshl_add_u32 v{VPA}, v1, 2, 64
    s_nop 1
    v_writelane_b32 v{VPA}, s{S_W}, 0
    v_add_u32 v{VEO}, 1024, v{VXO}
    s_lshl_b32 s76, s{S_W}, 13
    v_lshlrev_b32 v{VOO}, 4, v1
    v_add_u32 v{VKV}, s76, v{VOO}
    v_add_u32 v{VWW}, s{sM}, v{VOO}
    s_lshl_b32 s{sKV0}, s{S_B}, 5
    s_add_u32 s{sKV0}, s{sKV0}, s{S_H0}
    s_lshl_b32 s{sKV0}, s{sKV0}, 15
    s_add_u32 s{sKV1}, s{sKV0}, 32768
    v_lshrrev_b32 v2, 4, v1
    v_mul_u32_u24 v20, {PITCH}, v2
    s_lshl_b32 s76, s{S_W}, 8
    v_add_u32 v20, s76, v20
    v_and_b32 v3, 15, v1
    v_lshl_add_u32 v{VVW}, v3, 4, v20
    v_bfe_u32 v3, v1, 2, 2
    v_lshl_add_u32 v20, v3, 6, v20
    v_and_b32 v3, 1, v1
    v_lshl_add_u32 v20, v3, 5, v20
    v_bfe_u32 v3, v1, 1, 1
    v_lshl_add_u32 v{VKW}, v3, 3, v20""")
    for pi in range(4):
        d = sWP[pi]
        S(f"""s_add_u32 s76, s{S_P}, {pi}
        s_and_b32 s76, s76, 3
        s_lshl_b32 s77, s{S_KQ}, 2
        s_add_u32 s77, s77, s76
        s_mul_i32 s77, s77, {256*1152}
        s_lshl_b32 s{d}, s{S_P}, 8
        s_add_u32 s{d}, s{d}, s77""")
        if pi == 0: S("s_mov_b32 s64, s77")
        if True:
            S(f"""s_lshl_b32 s76, s76, 6
            s_and_b32 s77, s2, 63
            s_add_u32 s76, s76, s77
            s_lshl_b32 s76, s76, 2
            s_add_u32 s76, s76, s{S_W}
            s_lshl_b32 s{sOP[pi]}, s76, 14""")
            if pi: S(f"s_lshl_b32 s{54+pi}, s76, 8")
    npf = [0]; vp = [0]
    def code_touch():
        npf[0] += 1
        lab = f"L_pc{npf[0]}"
        S.out += _raw(f"""s_getpc_b64 s[52:53]
        {lab}:
        s_sub_u32 s52, s52, {lab}-L_pc
        s_subb_u32 s53, s53, 0
        s_lshr_b32 s76, s2, 3
        s_lshl2_add_u32 s76, s76, s{S_W}
        s_lshl_b32 s76, s76, 6""")
        for i in range(6):
            S.out += _raw(f"s_min_u32 s77, s76, L_end-L_pc\ns_load_dword s61, s[52:53], s77\ns_add_u32 s76, s76, 8192")
        S.smem_pending = True; S.lg.append(set())
    def tlb_touch(batch=0):
        def touch(bit, base, lines):
            if cfg.tlb & bit: S.out += _raw(lines + f"\ns_load_dword s60, s[{base}:{base+1}], s76")
        mode = cfg.tlbmode
        if batch == 0:
            touch(1, SV, f"s_lshl_b32 s76, s{S_W}, 14\ns_add_u32 s76, s76, s{sKV0}")
            touch(2, SK, f"s_lshl_b32 s76, s{S_W}, 14\ns_add_u32 s76, s76, s{sKV0}")
            if mode == "v1":
                for i in range(5):
                    touch(4, SWO, f"s_mul_i32 s76, s{S_KQ}, {1024*1152}\ns_lshl_b32 s77, s{S_W}, 16\ns_add_u32 s76, s76, s77\ns_add_u32 s76, s76, {i << 18}\ns_min_u32 s76, s76, {4718592 - 4}")
            else:
                touch(4, SWO, f"s_lshr_b32 s77, s2, 3\ns_lshl2_add_u32 s77, s77, s{S_W}\ns_mul_i32 s77, s77, {1179648 // 128}\ns_mul_i32 s76, s{S_KQ}, {1024*1152}\ns_add_u32 s76, s76, s77")
            if mode == "lite":
                touch(8, SWS, f"s_lshl_b32 s77, s{S_W}, 6\ns_add_u32 s77, s77, s2\ns_and_b32 s77, s77, 255\ns_lshl_b32 s76, s77, 16")
                touch(16, SWS, f"s_lshl_b32 s76, s77, 10\ns_add_u32 s76, s76, {WS_FLAG + 128}")
            else:
                for pi in range(4): touch(8, SWS, f"s_mov_b32 s76, s{sOP[pi]}")
                touch(16, SWS, f"s_lshr_b32 s76, s{sOP[0]}, 6\ns_add_u32 s76, s76, {WS_FLAG + 128}")
            touch(32, SWS, f"s_andn2_b32 s76, s2, 3\ns_add_u32 s76, s76, s{S_W}\ns_mul_i32 s76, s76, {4*6144}\ns_add_u32 s76, s76, {WS_D}")
            touch(64, SWS, f"s_lshl3_add_u32 s76, s{S_BLK}, s{S_B}\ns_lshl2_add_u32 s76, s76, s{S_W}\ns_lshl_b32 s76, s76, 16\ns_add_u32 s76, s76, {WS_DX}")
            touch(128, SOUT, f"s_lshl2_add_u32 s76, s{S_B}, s{S_W}\ns_mul_i32 s76, s76, {32*2304}")
            if mode == "dense":
                for i in range(1, 4):
                    touch(64, SWS, f"s_lshl3_add_u32 s76, s{S_BLK}, s{S_B}\ns_lshl2_add_u32 s76, s76, s{S_W}\ns_lshl_b32 s76, s76, 16\ns_add_u32 s76, s76, {WS_DX + i*16384}")
        elif batch == 2:
            for i in range(1, 4): touch(2, SK, f"s_lshl_b32 s76, s{S_W}, 14\ns_add_u32 s76, s76, s{sKV0}\ns_add_u32 s76, s76, {i*4096}")
            for i in range(4):
                touch(32, SWS, f"s_andn2_b32 s76, s2, 3\ns_add_u32 s76, s76, {i}\ns_lshl2_add_u32 s76, s76, s{S_W}\ns_mul_i32 s76, s76, 6144\ns_add_u32 s76, s76, {WS_D + 4096}")
            for i in range(4):
                touch(64, SWS, f"s_lshl3_add_u32 s76, s{S_BLK}, s{S_B}\ns_lshl2_add_u32 s76, s76, s{S_W}\ns_lshl2_add_u32 s76, s76, {i}\ns_lshl2_add_u32 s76, s76, s{S_KQ}\ns_lshl_b32 s76, s76, 12\ns_add_u32 s76, s76, {WS_DX}")
            for i in range(1, 3):
                touch(4, SWO, f"s_lshr_b32 s77, s2, 3\ns_lshl2_add_u32 s77, s77, s{S_W}\ns_mul_i32 s77, s77, {1179648 // 128}\ns_mul_i32 s76, s{S_KQ}, {1024*1152}\ns_add_u32 s76, s76, s77\ns_add_u32 s76, s76, {i*3072}")
        else:
            for i in range(1, 4): touch(128, SOUT, f"s_lshl2_add_u32 s76, s{S_B}, s{S_W}\ns_mul_i32 s76, s76, {32*2304}\ns_add_u32 s76, s76, {i*8*2304}")
            for pi in range(1, 4): touch(16, SWS, f"s_lshr_b32 s76, s{sOP[pi]}, 6\ns_add_u32 s76, s76, {WS_FLAG + 128}")
            for i in range(1, 3): touch(32, SWS, f"s_andn2_b32 s76, s2, 3\ns_add_u32 s76, s76, s{S_W}\ns_mul_i32 s76, s76, {4*6144}\ns_add_u32 s76, s76, {WS_D + i*8192}")
            for i in range(1, 4):
                touch(1, SV, f"s_lshl_b32 s76, s{S_W}, 14\ns_add_u32 s76, s76, s{sKV0}\ns_add_u32 s76, s76, {i*4096}")
                touch(8, SWS, f"s_add_u32 s76, s{sOP[0]}, {i*4096}")
        S.smem_pending = True; S.lg.append(set())
    if cfg.tlb and cfg.tlbpos == -1: tlb_touch()
    S.wait_vm(9 if cfg.codepf else 8)
    chunk(1)
    S.wait_vm_tag("ch0")
    stamp(S, cfg, 2)
    S("s_barrier")
    def pubch(c):
        S.wait_vm_tag(f"ch{c}"); publish(c)
    chunk(2, None if cfg.abar else (lambda: pubch(1)))
    S(f"""v_lshlrev_b32 v2, 4, v2
    s_lshl_b32 s76, s{S_W}, 2
    v_add_u32 v2, s76, v2
    v_mul_u32_u24 v2, 1152, v2
    s_lshl_b32 s76, s{S_KQ}, 6
    v_add_u32 v3, s76, v{VOO}
    v_and_b32 v3, 0xff, v3
    v_add_u32 v{VMO}, v2, v3
    v_min_u32 v2, 2, v1
    v_add3_u32 v2, v2, s{S_P}, 1
    v_and_b32 v2, 3, v2
    v_lshlrev_b32 v2, 6, v2
    s_and_b32 s76, s2, 63
    v_add_u32 v2, s76, v2
    v_lshlrev_b32 v2, 2, v2
    v_add_u32 v2, s{S_W}, v2
    v_lshlrev_b32 v{VFL}, 8, v2
    s_lshl_b32 s{sMo}, s{S_W}, 12""")
    if cfg.tlb and cfg.tlbpos == 0: tlb_touch()
    if cfg.tlb and cfg.tlbpos3 == 0: tlb_touch(2)
    if cfg.diagsleep: S(f"s_sleep {cfg.diagsleep}")
    for c in range(1, 7):
        if cfg.abar:
            S.wait_vm_tag(f"ch{c}"); stamp(S, cfg, c, cfg.adetail) if cfg.adetail else None; S("s_barrier"); known[0] = c
        else:
            wait_free(c, c + 1)
            pubch(c + 1)
        if c == 4: nonce_issue(S, VN, VZ)
        if not cfg.nodma: chunk(c + 2)
        if str(c) in cfg.cpf.split(","): code_touch()
        if cfg.vpf and str(c) in cfg.vpfpos.split(","):
            S.out += _raw(f"s_lshl_b32 s76, s{S_W}, 13\ns_add_u32 s76, s76, s{sKV0}\n" +
                          "\n".join(f"s_load_dword s61, s[{SV}:{SV+1}], s76 offset:{(vp[0] + i) * 64}" for i in range(cfg.vpf)))
            vp[0] += cfg.vpf
            S.smem_pending = True; S.lg.append(set())
        if cfg.tlb and cfg.tlbpos == c: tlb_touch()
        if cfg.tlb and cfg.tlbmode == "dense" and c == cfg.tlbpos2: tlb_touch(1)
        if cfg.tlb and cfg.tlbmode == "dense" and c == cfg.tlbpos3: tlb_touch(2)
        for item in cfg.akv.split(","):
            if "+" in item:
                what, lst = item.split(":"); lst = [int(x) for x in lst.split("+")]
            else:
                what, first, ncls, rot = (item.split(":") + ["0"])[:4]
                first, ncls, rot = int(first), int(ncls), int(rot)
                lst = [first + (k - rot) % ncls for k in range(ncls)]
            for k in range(len(lst)):
                if lst[k] == c: cond(f"L_a{what}_{c}_{k}", k, len(lst) - 1, warm_lines() if what == "w" else kv_lines(int(what)), f"s_waitcnt vmcnt({cfg.kvwait})\n")
            if what != "w" and c == max(lst): S.phantom([f"v{KVREG[int(what)]+i}" for i in range(32)], f"kv{what}")
    nonce_check(S, VN, VZ, "L_ln")
    units, slots = c_units(), c_slots()
    def w_src(j):
        uk, hh, x = units[j]
        if uk == "M": return VMO, 65, (hh * 128 + 64 * x) * 1152
        if uk == "E": return VEO, 64, hh * 128 * 1152
        return VMO, sWP[1 + x % 3], (hh * 128 + 64 * (x // 3)) * 1152
    blocks = [152 + 16 * i for i in range(6)]
    parked = {}
    def w_load(j):
        va, sb, off = w_src(j)
        S(f"s_add_u32 s{sA}, s{sb}, {off}")
        if slots[("W", j)][1] <= known[0] and (j not in (3, 4, 9, 10) or (j > 4) in picked):
            lds_w.add(j)
            for i in range(4):
                S(f"s_add_u32 m0, s{sM}, {slot(slots[('W', j)][0]) + i*(PITCH-1152)}")
                S(f"buffer_load_dwordx4 v{va}, {srd(SWO)}, s{sA} offen offset:{i*1152} {cfg.pol_wo} lds", tag=f"u{j}")
        else:
            parked[j] = blocks.pop(0)
            for i in range(4 if "nopark" not in cfg.dbg else 0):
                S(f"buffer_load_dwordx4 {vr(parked[j]+4*i,4)}, v{va}, {srd(SWO)}, s{sA} offen offset:{i*1152} {cfg.pol_wo}", tag=f"u{j}w")
    lds_w = set()
    def w_write(j):
        assert j not in (3, 4, 9, 10) or (j > 4) in picked
        wait_free(slots[("W", j)][1])
        lds_w.add(j)
        S.wait_vm_tag(f"u{j}w")
        S(f"s_setprio {cfg.wprio if j < 7 else cfg.wprio2}\nv_add_u32 v2, {slot(slots[('W', j)][0])}, v{VWW}")
        for i in range(4 if not ("now" in cfg.dbg and j > 6 or "nolw" in cfg.dbg) else 0): S(f"ds_write_b128 v2, {vr(parked[j]+4*i,4)} offset:{i*PITCH}")
        S.wait_lg(0)
        S("s_setprio 0")
        blocks.append(parked.pop(j))
    def warm():
        for x in warm_lines(): S(x)
    issued, polled = set(), set()
    EV = c_events(cfg)
    def poll_issue(hh):
        issued.add(hh)
        S(f"s_mov_b32 s76, {WS_FLAG}")
        S(f"buffer_load_dword v{VP0 + (hh & 1)}, v{VFL}, {srd(SWS)}, s76 offen offset:{64*hh} sc1")
    def poll(hh):
        lab = f"L_poll{hh}"
        polled.add(hh)
        if "nopoll" in cfg.dbg: return
        if cfg.spoll:
            S.wait_lg(0)
            S(f"s_mov_b32 s77, {SPIN_LIMIT}")
            S.label(lab)
            S.out += _raw("\n".join(f"s_load_dword s{52+i}, s[50:51], s{55+i} offset:{64*hh} glc" for i in range(3)) + f"""
            s_waitcnt lgkmcnt(0)
            s_xor_b32 s52, s52, s{S_NONCE}
            s_xor_b32 s53, s53, s{S_NONCE}
            s_xor_b32 s54, s54, s{S_NONCE}
            s_or_b32 s52, s52, s53
            s_or_b32 s52, s52, s54
            s_cbranch_scc0 {lab}_ok
            s_sub_u32 s77, s77, 1
            s_cmp_lg_u32 s77, 0
            s_cbranch_scc1 {lab}""")
            S.label(f"{lab}_ok")
            return
        if hh not in issued: poll_issue(hh)
        v = VP0 + (hh & 1)
        S(f"v_cmp_eq_u32 vcc, s{S_NONCE}, v{v}")
        S(f"s_cmp_eq_u64 vcc, -1\ns_cbranch_scc0 {lab}")
        S.label(f"{lab}_ok")
        S.cold += _raw(f"""{lab}:
        s_mov_b32 s76, {WS_FLAG}
        s_mov_b32 s77, {SPIN_LIMIT}
        {lab}_spin:
        buffer_load_dword v{v}, v{VFL}, {srd(SWS)}, s76 offen offset:{64*hh} sc1
        s_waitcnt vmcnt(0)
        v_cmp_eq_u32 vcc, s{S_NONCE}, v{v}
        s_nop 1
        s_cmp_eq_u64 vcc, -1
        s_cbranch_scc1 {lab}_ok
        s_sub_u32 s77, s77, 1
        s_cmp_lg_u32 s77, 0
        s_cbranch_scc1 {lab}_spin
        s_branch {lab}_ok""")
    oreg, picked = {}, set()
    def pickup(h):
        wait_free((F_O0, F_O1)[h])
        S(f"s_setprio {cfg.lprio}\nv_add_u32 v2, {slot(2 - 2*h)}, v{VWW}")
        for x in range(2):
            oreg[2*h + x] = blocks.pop(0)
            for i in range(4): S(f"ds_read_b128 {vr(oreg[2*h+x] + 4*i, 4)}, v2 offset:{x*SLOT + i*1024}")
        S.wait_lg(0)
        S("s_setprio 0")
        picked.add(h)
    def o_store(k):
        if "nost" in cfg.dbg: return
        S(f"s_add_u32 s{sA}, s{sOP[0]}, {WS_O + k*4096}")
        for i in range(4):
            S(f"buffer_store_dwordx4 {vr(oreg[k] + 4*i, 4)}, v{VOO}, {srd(SWS)}, s{sA} offen offset:{i*1024} {cfg.pol_st}", tag=f"o{k}")
    def o_flag(k):
        S.wait_vm_tag(f"o{k}")
        S(f"""s_lshr_b32 s76, s{sOP[0]}, 6
        s_add_u32 s76, s76, {WS_FLAG + 64*k}
        v_mov_b32 v3, s{S_NONCE}
        buffer_store_dword v3, v{VZ}, {srd(SWS)}, s76 offen sc1""")
        blocks.append(oreg.pop(k))
    def kv_duty(m, sl, f, r):
        wait_free(f); kv_write(m, sl); publish(r)
        blocks.extend([KVREG[m], KVREG[m] + 16])
    if cfg.prog2:
        S(f"s_and_b32 s76, s{S_B}, 1\ns_cmp_lg_u32 s76, 0\ns_cbranch_scc1 L_fork_c1")
        S.label("L_fork")
        S.ncold = len(S.cold)
    prog = PROGS[S.progname].split()
    for after in cfg.cpfop.split(","):
        if after: prog.insert(prog.index(after) + 1, "cpf")
    if cfg.stop == "A": prog = ["bA7", "bA8"] if cfg.abar else ["p8"]
    if cfg.stop == "B": prog = [x for x in prog if x[0] in "KVpPS" or x[:2] in ("wK", "wV", "bA")]
    for op in prog:
        if cfg.ptrace and (not cfg.pfilter or op in cfg.pfilter.split(",")): S(trace_raw(cfg, "loader", op))
        if op in ("K1", "V0", "V1"): kv_load({"K1": 1, "V0": 2, "V1": 3}[op])
        elif "@" in op: kv_load_if({"K1": 1, "V0": 2, "V1": 3}[op[:2]], int(op[3]), 2)
        elif op in ("D0", "D1"):
            m = 2 + int(op[1]); wait_free(8 + int(op[1])); v_dma(m, 4 + 2 * int(op[1])); blocks.extend([KVREG[m], KVREG[m] + 16])
        elif op in ("pV0", "pV1"):
            S.wait_vm_tag(f"kv{2 + int(op[2])}"); publish((R_V0, R_V1)[int(op[2])])
        elif op == "warm": warm()
        elif op == "p8": S.wait_vm_tag("ch8"); publish(8)
        elif op[0] == "b":
            j = int(op[2:])
            S.wait_vm_tag(f"ch{j}"); known[0] = j
            S.wait_lg(0)
            if cfg.adetail: stamp(S, cfg, j, True)
            S("s_barrier")
        elif op == "wK0": kv_duty(0, 0, 7, R_K0)
        elif op == "wK1": kv_duty(1, 2, 8, R_K1)
        elif op == "wV0": kv_duty(2, 4, 8, R_V0)
        elif op == "wV1": kv_duty(3, 6, 9, R_V1)
        elif op[0] == "W": w_load(int(op[1:]))
        elif op[0] == "w": w_write(int(op[1:]))
        elif op[0] == "f": wait_free(int(op[1:]))
        elif op[0] == "q": poll(int(op[1:]))
        elif op[0] == "Q": poll_issue(int(op[1:]))
        elif op[0] == "P": pickup(int(op[1:]))
        elif op[0] == "S": o_store(int(op[1:]))
        elif op[0] == "G": o_flag(int(op[1:]))
        elif op == "cpf": code_touch()
        elif op[0] == "z": S(f"s_sleep {op[1:]}")
        elif op[0] == "R":
            name = op[1:]
            if name in WSET:
                for j in WSET[name]:
                    if j in parked: w_write(j)
                    assert j in lds_w
                    S.wait_vm_tag(f"u{j}")
            else: assert int(name[2]) in polled
            assert EV[name][0] == last_pub[0] + 1, (name, EV, last_pub)
            publish(EV[name][0])
        else: raise ValueError(op)
    stamp(S, cfg, 3)
    if cfg.trace:
        S(f"s_lshl_b32 s66, s2, 2\ns_add_u32 s66, s66, s{S_W}\ns_lshl_b32 s66, s66, 9\ns_add_u32 s66, s66, {WS_STAMP + (1 << 20)}\nv_lshlrev_b32 v2, 2, v1")
        S(f"buffer_store_dword v250, v2, {srd(SWS)}, s66 offen\nbuffer_store_dword v251, v2, {srd(SWS)}, s66 offen offset:256")
    if cfg.stop:
        S.wait_vm(0); stamps_store(S, cfg); S("s_branch L_end"); return
    S(f"s_cmp_lg_u32 s{S_W}, 0\ns_cbranch_scc1 L_lfin")
    R = 64
    S(f"""v_and_b32 v2, 7, v1
    v_bfe_u32 v3, v1, 3, 2
    v_lshl_add_u32 v2, v3, 4, v2
    s_and_b32 s76, s{S_P}, 1
    s_lshl_b32 s76, s76, 3
    v_add_u32 v2, s76, v2
    v_lshlrev_b32 v2, 4, v2
    v_lshrrev_b32 v3, 5, v1
    v_lshl_add_u32 v4, v3, 14, v2
    s_lshl_b32 s{sA}, s{S_BLK}, 3
    s_add_u32 s{sA}, s{sA}, s{S_B}
    s_lshl_b32 s{sA}, s{sA}, 6
    s_add_u32 s{sA}, s{sA}, s{S_KQ}
    s_lshl_b32 s{sA}, s{sA}, 1
    s_lshr_b32 s76, s{S_P}, 1
    s_add_u32 s{sA}, s{sA}, s76
    s_lshl_b32 s{sA}, s{sA}, 11
    s_add_u32 s{sA}, s{sA}, {WS_DX}
    s_and_b32 s72, s{S_NONCE}, 1
    s_lshl_b32 s73, s{S_NONCE}, 15
    s_and_b32 s73, s73, 0x10000
    s_or_b32 s72, s72, s73
    v_mov_b32 v8, 0x10001
""")
    wait_free(F_DX)
    S(f"s_mov_b32 s77, {SPIN_LIMIT}")
    S.label("L_dx")
    for r in range(8):
        S(f"s_add_u32 s{sT}, s{sA}, {r*2*16384}")
        for gm in range(2):
            S(f"buffer_load_dwordx4 {vr(R+8*r+4*gm,4)}, v4, {srd(SWS)}, s{sT} offen offset:{gm*1024} sc1")
    S(f"v_xor_b32 v5, s72, v{R}")
    for i in range(1, 64): S(f"v_bitop3_b32 v5, v5, v{R+i}, s72 bitop3:0xf6")
    S("v_and_b32 v5, v5, v8\nv_cmp_eq_u32 vcc, 0, v5\ns_cmp_eq_u64 vcc, -1\ns_cbranch_scc1 L_dx_ok")
    S("s_sleep 4\ns_sub_u32 s77, s77, 1\ns_cmp_lg_u32 s77, 0\ns_cbranch_scc1 L_dx")
    S.label("L_dx_ok")
    AC = 24
    S("v_mov_b32 v9, 0xfffefffe")
    for i in range(64): S(f"v_and_b32 v{R+i}, v9, v{R+i}")
    for r in range(8):
        for d in range(8):
            src = R + 8 * r + d
            if r == 0:
                S(f"v_lshlrev_b32 v{AC+2*d}, 16, v{src}\nv_and_b32 v{AC+2*d+1}, 0xffff0000, v{src}")
            else:
                S(f"v_lshlrev_b32 v6, 16, v{src}\nv_and_b32 v7, 0xffff0000, v{src}\nv_add_f32 v{AC+2*d}, v{AC+2*d}, v6\nv_add_f32 v{AC+2*d+1}, v{AC+2*d+1}, v7")
    for i in range(8): S(f"v_permlane32_swap_b32 v{AC+i}, v{AC+8+i}")
    for i in range(8): S(f"v_add_f32 v{AC+i}, v{AC+i}, v{AC+8+i}")
    for i in range(4): S(f"v_cvt_pk_bf16_f32 v{44+i}, v{AC+2*i}, v{AC+2*i+1}")
    S(f"""v_and_b32 v2, 7, v1
    s_lshl_b32 s76, s{S_B}, 7
    s_lshl_b32 s77, s{S_KQ}, 5
    s_add_u32 s76, s76, s77
    s_lshl_b32 s77, s{S_P}, 3
    s_add_u32 s76, s76, s77
    v_add_u32 v2, s76, v2
    v_mul_u32_u24 v2, 2304, v2
    v_bfe_u32 v3, v1, 3, 2
    v_lshl_add_u32 v2, v3, 3, v2
    v_lshrrev_b32 v3, 5, v1
    v_lshl_add_u32 v2, v3, 6, v2
    s_mul_i32 s76, s{S_BLK}, 1152
    s_add_u32 s76, s76, 1024
    buffer_store_dwordx2 v[44:45], v2, {srd(SOUT)}, s76 offen {cfg.pol_out}
    buffer_store_dwordx2 v[46:47], v2, {srd(SOUT)}, s76 offen offset:32 {cfg.pol_out}""")
    S.label("L_lfin")
    if cfg.stamps: S("s_waitcnt vmcnt(0)")
    stamps_store(S, cfg)
    S("s_branch L_end")

def compute(S, cfg):
    VX, VW = [4, 5, 6], [7, 8, 9]
    VK, VV, VOST, VZ, VN = [10, 11], [12, 13], 14, 15, 16
    VM, VT, VRC, VPR, VFA, VFT, VPR2 = [16, 17], 19, [[20, 21], [22, 23]], 18, 2, 3, 19
    ONES, LS = 56, [60, 4]
    QP = lambda h: 64 + 32 * h
    SS = lambda h: 128 + 64 * h
    PP = 64
    OF = lambda h, s, u: 96 + 8 * s + 4 * u if h == 0 else 192 + 16 * s + 4 * u
    S.label("L_compute")
    S(f"v_mov_b32 v{VZ}, 0")
    srd_consts(S, (SWS, SOUT, SDBG))
    S("s_waitcnt lgkmcnt(0)")
    first_stamps(S, cfg)
    srd_bases(S, (SWS, SOUT, SDBG))
    S(f"s_or_b32 s66, s2, s3\ns_cmp_lg_u32 s66, 0\ns_cbranch_scc1 L_notag")
    S.out += _raw(f"""s_mov_b32 s66, {WS_EPOCH}
    buffer_load_dword v2, v{VZ}, {srd(SWS)}, s66 offen sc1
    s_waitcnt vmcnt(0)
    v_add_u32 v2, 1, v2
    v_max_u32 v2, 1, v2
    buffer_store_dword v2, v{VZ}, {srd(SWS)}, s66 offen sc1
    buffer_store_dword v2, v{VZ}, {srd(SDBG)}, 0 offen sc1
    s_waitcnt vmcnt(0)""")
    S.label("L_notag")
    S(f"""v_and_b32 v22, 15, v1
    v_lshrrev_b32 v23, 4, v1
    v_mul_u32_u24 v2, {PITCH}, v22
    v_lshl_add_u32 v{VK[0]}, v23, 4, v2
    v_add_u32 v{VK[0]}, {LB}, v{VK[0]}
    v_add_u32 v{VK[1]}, {2*SLOT}, v{VK[0]}
    s_lshl_b32 s66, s{S_W}, 8
    v_add_u32 v{VX[0]}, s66, v{VK[0]}
    v_add_u32 v{VX[1]}, {3*SLOT}, v{VX[0]}
    v_add_u32 v{VX[2]}, {6*SLOT}, v{VX[0]}
    v_bfe_u32 v2, v1, 2, 3
    v_mul_u32_u24 v2, {PITCH}, v2
    v_lshrrev_b32 v3, 5, v1
    v_lshl_add_u32 v2, v3, 9, v2
    v_and_b32 v3, 3, v1
    v_lshl_add_u32 v2, v3, 3, v2
    v_add_u32 v{VW[0]}, {slot(1)}, v2
    v_add_u32 v{VW[1]}, {slot(4)}, v2
    v_add_u32 v{VW[2]}, {slot(7)}, v2
    v_lshrrev_b32 v2, 2, v1
    v_mul_u32_u24 v2, {PITCH}, v2
    v_lshl_add_u32 v2, v3, 3, v2
    v_add_u32 v{VV[0]}, {slot(4)}, v2
    v_add_u32 v{VV[1]}, {slot(6)}, v2
    s_mul_i32 s66, s{S_W}, {4*PITCH}
    s_add_u32 s66, s66, {slot(0)}
    v_lshlrev_b32 v{VOST}, 4, v1
    v_add_u32 v{VOST}, s66, v{VOST}
    s_add_u32 s66, s{S_W}, 4
    v_lshl_add_u32 v{VFA}, v1, 2, 64
    s_nop 1
    v_writelane_b32 v{VFA}, s66, 0
    s_mov_b32 s{S_C}, {f32(math.log2(math.e) / math.sqrt(128.0))}
    s_mov_b32 s58, s{S_C}
    s_mov_b32 s59, s{S_C}""")
    for pi in range(1, 4):
        S(f"s_add_u32 s66, s2, {64*pi}\ns_and_b32 s66, s66, 255\ns_lshl2_add_u32 s66, s66, s{S_W}\ns_lshl_b32 s{95+pi}, s66, 14")
        S(f"s_add_u32 s66, s{S_KQ}, {pi}\ns_and_b32 s66, s66, 3\ns_andn2_b32 s67, s2, 3\ns_add_u32 s66, s66, s67\ns_lshl2_add_u32 s66, s66, s{S_W}\ns_mul_i32 s66, s66, 6144\ns_add_u32 s{(100, 101, 57)[pi-1]}, s66, {WS_D + (pi-1)*2048}")
    S(f"""s_lshl3_add_u32 s66, s{S_BLK}, s{S_B}
    s_lshr_b32 s67, s{S_H0}, 1
    s_lshl4_add_u32 s66, s66, s67
    s_lshl2_add_u32 s66, s66, s{S_W}
    s_lshl_b32 s66, s66, 12
    s_add_u32 s99, s66, {WS_DX}
    s_lshl2_add_u32 s74, s2, s{S_W}
    s_mul_i32 s74, s74, 6144
    s_add_u32 s74, s74, {WS_D}
    s_add_u32 s75, s74, 4096
    s_lshl2_add_u32 s70, s{S_B}, s{S_W}
    s_mul_i32 s70, s70, {32*2304}
    s_mul_i32 s71, s{S_BLK}, 1152
    s_add_u32 s70, s70, s71
    s_lshl2_add_u32 s71, s{S_P}, s{S_KQ}
    s_lshl_b32 s71, s71, 6
    s_add_u32 s70, s70, s71
    s_add_u32 s71, s70, {16*2304}""")
    G = []
    def add(reads, mf, lead, need=None, free=None, gate=None, bar=False):
        G.append(dict(reads=reads, mf=mf, gate=len(G) - lead if gate is None else gate, need=need, free=free, bar=bar))
    ACC = lambda t, u: 128 + 8 * t + 4 * u
    ARING = [96, 104, 112, 120, 56]
    XF = lambda c, s, u: 24 + 16 * (c & 1) + 8 * s + 4 * u
    for c in range(9):
        for t in range(16):
            rg = ARING[len(G) % 5]
            rd = [f"ds_read_b64_tr_b16 {vr(rg+4*s+2*r,2)}, v{VW[c%3]} offset:{s*SLOT + r*8*PITCH + 32*t}" for s in range(2) for r in range(2)]
            if t == 0: rd = [f"ds_read_b128 {vr(XF(c,s,u),4)}, v{VX[c%3]} offset:{128*u + 64*s}" for s in range(2) for u in range(2)] + rd
            add(rd, [mfma(ACC(t, u), rg + 4*s, XF(c, s, u), first=(c == 0 and s == 0)) for u in range(2) for s in range(2)], cfg.alead,
                need=c if t == 0 and c and not cfg.abar else None, free=c + 1 if t == 15 and (c == 8 or not cfg.abar) else None, bar=cfg.abar and t == 0 and c > 0)
    gA = len(G)
    fill = [(gA - 6, gA, pack(QP(0), 128))]
    tail_fill = None
    KR = lambda i: 24 + 4 * ((i + 4) & 7)
    def qk(h):
        for i in range(32):
            kt, s = i >> 2, i & 3
            add([f"ds_read_b128 {vr(KR(i),4)}, v{VK[h]} offset:{(kt&1)*16*PITCH + (kt>>1)*256 + 64*s}"],
                [mfma(SS(h)+8*kt+4*u, KR(i), QP(h)+8*s+4*u, first=(s == 0)) for u in range(2)], cfg.blead,
                need=R_K0 + h if i == 0 else None, free=F_QK0 + h if i == 31 else None,
                gate=(gA - 3 if i < 4 else max(gA, len(G) - cfg.blead)) if h == 0 else None)
            G[-1]["wait4"] = (i & 3) == 0
    def pv(h):
        g0 = len(G)
        for i in range(32):
            dt, j = i >> 2, i & 3
            add([f"ds_read_b64_tr_b16 {vr(KR(i)+2*r,2)}, v{VV[h]} offset:{r*16*PITCH + j*256 + 32*dt}" for r in range(2)],
                ([mfma(LS[u], ONES, PP+8*jj+4*u, first=(jj == 0)) for u in range(2) for jj in range(4)] if i == 0 else []) +
                [mfma(SS(h)+8*dt+4*u, KR(i), PP+8*j+4*u, first=(j == 0)) for u in range(2)], cfg.blead,
                need=(R_V0, R_V1)[h] if i == 0 else None, free=(F_PV0, F_PV1)[h] if i == 31 else None,
                gate=max(len(G) - cfg.blead, g0 - (3, 3, 2, 2, 1, 1, 0, 0)[i]) if (h == 1 and i < 8) else None)
            G[-1]["wait4"] = (i & 3) == 0
    def softmax(h):
        s = SS(h)
        el = [[s + 8*kt + 4*u + r for kt in range(8) for r in range(4)] for u in range(2)]
        o = []
        for i in range(16):
            for u in range(2):
                e = el[u]
                if i == 0: o.append(f"v_max3_f32 v{VM[u]}, v{e[0]}, v{e[1]}, v{e[2]}")
                elif i < 15: o.append(f"v_max3_f32 v{VM[u]}, v{VM[u]}, v{e[2*i+1]}, v{e[2*i+2]}")
                else: o.append(f"v_max_f32 v{VM[u]}, v{VM[u]}, v{e[31]}")
        a, b = VM
        o += [f"v_permlane32_swap_b32 v{a}, v{b}", f"v_max_f32 v{a}, v{a}, v{b}", f"v_mov_b32 v{b}, v{a}",
              f"v_permlane16_swap_b32 v{a}, v{b}", f"v_max_f32 v{a}, v{a}, v{b}", f"v_mul_f32 v{a}, s{S_C}, v{a}", f"v_mov_b32 v{b}, v{a}",
              f"v_permlane32_swap_b32 v{a}, v{b}"]
        order = [(kt, u, r) for kt in range(8) for u in range(2) for r in range(4)]
        D = 2
        for i in range(64 + 2 * D):
            if i < 64:
                kt, u, r = order[i]; x = s + 8*kt + 4*u + r
                if not cfg.pk: o.append(f"v_fma_f32 v{x}, v{x}, s{S_C}, -v{VM[u]}")
                elif r % 2 == 0: o.append(f"v_pk_fma_f32 {vr(x,2)}, {vr(x,2)}, s[58:59], {vr(VM[0],2)} op_sel:[0,0,{u}] op_sel_hi:[1,1,{u}] neg_lo:[0,0,1] neg_hi:[0,0,1]")
            j = i - D
            if 0 <= j < 64:
                kt, u, r = order[j]; x = s + 8*kt + 4*u + r
                o.append(f"v_exp_f32 v{x}, v{x}")
            j = i - 2 * D
            if 0 <= j < 64:
                kt, u, r = order[j]; x = s + 8*kt + 4*u + r
                if r & 1: o.append(f"v_cvt_pk_bf16_f32 v{PP+8*(kt>>1)+4*u+2*(kt&1)+(r>>1)}, v{x-1}, v{x}")
        return o
    sig = [0]
    def signal(f):
        assert f > sig[0], (f, sig[0])
        sig[0] = f
        S(f"v_mov_b32 v{VFT}, {f}\nds_write_b8 v{VFA}, v{VFT}")
    def o_pack(h):
        s = SS(h); o = []
        need = (F_QK1, FU[1])[h]; lab = f"L_st{h}"
        def chk():
            S(f"v_readfirstlane_b32 s64, v{VPR2}")
            for x in swar(64, need): S(x)
            S(f"s_cbranch_scc0 {lab}")
            S.label(lab + "_ok")
            S.cold += spin_block(lab, lab + "_ok", VPR2, VZ, 4, 64, need, 0)
        for st in range(4):
            part = [f"ds_read_b32 v{VPR2}, v{VZ} offset:4"] if st == 0 else []
            for u in range(2):
                for e in range(2):
                    for r in range(4):
                        x = s + 8*(2*st+e) + 4*u + r
                        if not cfg.pk: part.append(f"v_mul_f32 v{x}, v{x}, v{VRC[h][u]}")
                        elif r % 2 == 0: part.append(f"v_pk_mul_f32 {vr(x,2)}, {vr(x,2)}, {vr(VRC[h][0],2)} op_sel:[0,{u}] op_sel_hi:[1,{u}]")
                i = 2 * st + u
                part += [f"v_cvt_pk_bf16_f32 v{OF(h,st,u)+2*e+x}, v{s+8*(2*st+e)+4*u+2*x}, v{s+8*(2*st+e)+4*u+2*x+1}" for e in range(2) for x in range(2)]
                if i == 0: part.append(chk)
                part.append((f"ds_write_b128 v{VOST}, {vr(OF(h,st,u),4)} offset:{(2 - 2*h + (i >> 2))*SLOT + (i & 3)*1024}", f"st{h}"))
            o.append(part)
        def done():
            S.wait_lg_tag(f"st{h}"); signal((F_O0, F_O1)[h])
        return o, done
    rcp = lambda h: [f"v_rcp_f32 v{VRC[h][u]}, v{LS[u]}" for u in range(2)]
    st = lambda i: (lambda: stamp(S, cfg, i))
    def pack_fill(h, g0):
        op, done = o_pack(h)
        return [(g0 + 4, g0 + 5, rcp(h)), (g0 + 10, g0 + 18, op[0]), (g0 + 18, g0 + 26, op[1]), (g0 + 26, g0 + 33, op[2]), (g0 + 33, g0 + 35, op[3]), (g0 + 35, g0 + 36, [done, "s_wakeup"])]
    if cfg.stop != "A":
        qk(0); qk(1); pv(0)
        fill += [(gA, gA + 1, [st(2), lambda: nonce_issue(S, VT, VZ)]),
                 (gA, gA + 32, pack(QP(1), 192) + [f"v_mov_b32 v{ONES+i}, 0x3f803f80" for i in range(4)]),
                 (gA + 32, gA + 33, [st(3)]), (gA + 33, gA + 64, softmax(0)),
                 (gA + 56, gA + 57, [lambda: nonce_check(S, VT, VZ, "L_cn")]), (gA + 64, gA + 65, [st(4)])] + pack_fill(0, gA + 64)
    gC0 = len(G)
    units, slots, EV = c_units(), c_slots(), c_events(cfg)
    VA, VL16 = [8, 9, 10], 11
    MC = lambda nt, u: 128 + 8 * nt + 4 * u
    EC = lambda nt, u: 200 + 16 * nt + 4 * u
    CRING = [40, 48, 24, 32, 56]
    OBUF = [(64, 8), (80, 8), (96, 8), (112, 8), (192, 16), (224, 16)]
    if cfg.defer < 12: OBUF += [(200, 16), (232, 16)]
    OB = lambda j, s, u: OBUF[(j - 6) % len(OBUF)][0] + OBUF[(j - 6) % len(OBUF)][1] * s + 4 * u
    sOP = [None, 96, 97, 98]
    if cfg.stop is None:
        setup = [f"v_add_u32 v{VA[0]}, {-6*SLOT & 0xffffffff}, v{VV[1]}", f"v_add_u32 v{VA[1]}, {-3*SLOT & 0xffffffff}, v{VV[1]}", f"v_mov_b32 v{VA[2]}, v{VV[1]}",
                 f"v_lshlrev_b32 v{VL16}, 4, v1"]
        fill += [(gA + 65, gA + 69, setup)]
        gC = gC0 + 32
        def cgroup(j, n, **kw):
            uk, hh, x = units[j]
            sl = slots[("W", j)][0]
            va, so = VA[sl // 3], (sl % 3) * SLOT
            k = len(G) - (gC0 if j < 2 else gC)
            rg = CRING[k % 4] if k < 32 else CRING[(k - 32) % 5]
            if uk == "E":
                nt, sp = n >> 1, n & 1
                rd = [f"ds_read_b64_tr_b16 {vr(rg+4*s+2*r,2)}, v{va} offset:{so + (2*(2*sp+s)+r)*128 + 32*nt}" for s in range(2) for r in range(2)]
                mf = [mfma(EC(nt, u), rg + 4*s, OF(hh, 2*sp+s, u), first=(hh == 0 and sp == 0 and s == 0)) for u in range(2) for s in range(2)]
            else:
                bf = (lambda s, u: OF(hh, 2*x+s, u)) if uk == "M" else (lambda s, u: OB(j, s, u))
                rd = [f"ds_read_b64_tr_b16 {vr(rg+4*s+2*r,2)}, v{va} offset:{so + (2*s+r)*256 + 32*n}" for s in range(2) for r in range(2)]
                mf = [mfma(MC(n, u), rg + 4*s, bf(s, u), first=(j == 0 and s == 0)) for u in range(2) for s in range(2)]
            need = None
            for name, us in WSET.items():
                if j in us and name not in seen: need = EV[name][0]; seen.add(name)
            b0 = len(G) - (k & 3)
            add(rd, mf, 3 if k < 36 else 4, gate={0: b0 - 6, 1: b0 - 4, 2: b0 - 2, 3: b0}[k & 3] if (k & ~3) in (0, 16) else None, need=need, **kw)
        seen = set(); gU = {}
        for j in range(cfg.merge):
            if j == 2:
                fill += [(gC0, gC0 + 1, [st(5)]), (gC0 + 3, gC0 + 16, softmax(1)), (len(G), len(G) + 1, [st(6)])] + pack_fill(1, len(G))
                pv(1)
            gU[j] = len(G)
            for n in range(2 if j >= cfg.defer else 0, 8): cgroup(j, n, free=FU.get(j) if n == 7 else None)
        gM = len(G)
        nm_ = 18 - cfg.merge
        for tau in (1, 2, 3):
            for j in range(cfg.merge, 18):
                for e in range(2): cgroup(j, 2 * tau + e)
        for j in range(min(cfg.defer, cfg.merge), 18):
            for e in range(2): cgroup(j, e)
        def o_loads(j):
            uk, hh, x = units[j]
            return [f"s_add_u32 s{48 + j % 6}, s{sOP[1 + x % 3]}, {WS_O + hh*8192 + (x // 3)*4096}"] + \
                   [f"buffer_load_dwordx4 {vr(OB(j, i >> 1, i & 1), 4)}, v{VL16}, {srd(SWS)}, s{48 + j % 6} offen offset:{i*1024} {cfg.pol_o}" for i in range(4)]
        for k in range(4):
            num, p0 = EV[f"OP{k}"]; lab = f"L_rdy{num}"
            def chk(lab=lab, num=num):
                S(f"v_readfirstlane_b32 s64, v{VPR2}")
                for x in swar(64, num): S(x)
                S(f"s_cbranch_scc0 {lab}")
                S.label(lab + "_ok")
                S.cold += spin_block(lab, lab + "_ok", VPR2, VZ, 0, 64, num, 0)
            fill += [(gC + p0 - 2, gC + p0 - 1, [f"ds_read_b32 v{VPR2}, v{VZ}"]), (gC + p0, gC + p0 + 1, [chk])]
            for i in range(3):
                j = 6 + 3 * k + i
                first = {6: 16, 7: 16, 8: 24, 9: 24, 10: 48, 11: 48}.get(j, 8 * (j - 5) if len(OBUF) == 6 else cfg.dxpos + 10 if j < 14 else 8 * (j - 7))
                a = max(p0 + 1 + cfg.ostep * i, first)
                fill += [(gC + a, gC + a + 2, o_loads(j) if "noold" not in cfg.dbg else ["s_nop 0"])]
                if j == 9: fill += [(gC + a + 2, gC + a + 3, [lambda: signal(F_OI), "s_wakeup"])]
        VMASK, GR = 12, 64
        tagprep = [f"s_and_b32 s72, s{S_NONCE}, 1", f"s_lshl_b32 s73, s{S_NONCE}, 15", "s_and_b32 s73, s73, 0x10000", "s_or_b32 s72, s72, s73",
                   f"v_mov_b32 v{VMASK}, 0xfffefffe"]
        def tpack(base, n):
            o = []
            for k in range(n): o += [f"v_cvt_pk_bf16_f32 v{base+k}, v{base+2*k}, v{base+2*k+1}", f"v_and_or_b32 v{base+k}, v{base+k}, v{VMASK}, s72"]
            return o
        dx = list(tagprep)
        for u in range(2):
            for m_ in range(2):
                for k in range(4):
                    d, a = EC(2*m_, u) + k, EC(2*m_ + (k >> 1), u) + 2 * (k & 1)
                    dx += [f"v_cvt_pk_bf16_f32 v{d}, v{a}, v{a+1}", f"v_and_or_b32 v{d}, v{d}, v{VMASK}, s72"]
        for gm in range(4):
            dx.append(f"buffer_store_dwordx4 {vr(EC(2*(gm & 1), gm >> 1),4)}, v{VL16}, {srd(SWS)}, s99 offen offset:{gm*1024} {cfg.pol_sd}")
        def dsend(tau):
            o = []
            tp = tpack(128 + 16*tau, 8)
            for e in range(2):
                o += tp[8*e:8*e+8]
                o.append(f"buffer_store_dwordx4 {vr(128+16*tau+4*e,4)}, v{VL16}, {srd(SWS)}, s{(100, 101, 57)[tau-1]} offen offset:{e*1024} {cfg.pol_sd}")
            return o
        daddr = [f"v_and_b32 v2, 15, v1", "v_mul_u32_u24 v2, 2304, v2", "v_bfe_u32 v3, v1, 4, 1", "v_lshl_add_u32 v2, v3, 5, v2", "v_lshrrev_b32 v3, 5, v1", "v_lshl_add_u32 v2, v3, 4, v2",
                 "v_mov_b32 v6, 0x10001", "v_mov_b32 v4, 0x3f80", "v_mov_b32 v5, 0x3f800000"]
        q = 2 * nm_
        w = min(q - 1, 6)
        fill += [(gC + cfg.dxpos, gC + cfg.dxpos + 8, dx),
                 (gC + cfg.dxgo, gC + cfg.dxgo + 1, [lambda: signal(F_DX), "s_wakeup"]), (gM + 1, gM + 6, daddr), (gM + q + 1, gM + q + 1 + w, dsend(1)), (gM + 2*q + 1, gM + 2*q + 1 + w, dsend(2)), (gM + 3*q + 1, gM + 3*q + 1 + w, dsend(3))]
        if cfg.mst:
            fill += [(gC + int(x), gC + int(x) + 1, [lambda i=i: stamp(S, cfg, 1 + i, True)]) for i, x in enumerate(cfg.mst.split(","))]
        if cfg.cdetail > 0:
            fill += [((gC if j > 1 else gC0) + 8*j, (gC if j > 1 else gC0) + 8*j + 1, [lambda i=j - (cfg.cdetail - 1): stamp(S, cfg, 1 + i, True)]) for j in range(18) if 0 <= j - (cfg.cdetail - 1) < 12]
    if cfg.adetail:
        fill += [(16*c, 16*c + 1, [lambda c=c: stamp(S, cfg, 1 + c, True)]) for c in range(9)]
        if cfg.stop != "A": fill += [(gA + 32*i, gA + 32*i + 1, [lambda i=i: stamp(S, cfg, 10 + i, True)]) for i in range(3)]
    queue = []
    frees, due = {}, {}
    for gi, g in enumerate(G):
        if g["need"] is not None and not cfg.nocheck:
            lab = f"L_rdy{g['need']}"
            steps = [f"v_readfirstlane_b32 s69, v{VPR}"] + swar(69, g["need"])
            at = max(0, len(queue) - cfg.probe_ahead)
            pg = queue[at][0] if at < len(queue) else g["gate"]
            queue.insert(at, (pg, "r", f"ds_read_b32 v{VPR}, v{VZ}"))
            queue.append((g["gate"], "r", steps[0]))
            queue.append((g["gate"], "gap", None))
            def chk(lab=lab, need=g["need"], steps=steps):
                for x in steps[1:]: S(x)
                S(f"s_cbranch_scc0 {lab}")
                S.label(lab + "_ok")
                S.cold += spin_block(lab, lab + "_ok", VPR, VZ, 0, 69, need, 0)
            queue.append((g["gate"], "c", chk))
        if g["bar"]:
            for _ in range(cfg.bargap): queue.append((g["gate"], "gap", None))
            def br():
                S.wait_lg(0); S("s_barrier")
            queue.append((g["gate"], "c", br))
        for k, r in enumerate(g["reads"]):
            queue.append((g["gate"], "r", (r, f"g{gi}") if k == len(g["reads"]) - 1 else r))
        if g["free"] is not None and not cfg.nofree:
            def fr(gi=gi, f=g["free"]):
                S.wait_lg_tag(f"g{gi}")
                signal(f)
                if cfg.wake: due[m + 2] = lambda: S("s_wakeup")
            frees[f"g{gi}"] = fr
    nm = [len(g["mf"]) for g in G]
    pos = [sum(nm[:i]) for i in range(len(G) + 1)]
    fl = {}
    for (g0, g1, ins) in fill:
        a, b = pos[g0], pos[g1]
        for k, x in enumerate(ins): fl.setdefault(a + (k * (b - a)) // len(ins), []).append(x)
    S("v_mov_b32 v20, 0\nv_mov_b32 v21, 0\nv_lshlrev_b32 v3, 3, v1\nds_write_b64 v3, v[20:21]")
    S.wait_lg(0)
    if tail_fill: fl.setdefault(pos[tail_fill[0]] - 1, []).extend(tail_fill[1])
    S("s_barrier")
    stamp(S, cfg, 1)
    m = 0
    def issue(q):
        emit(S, q[2])
        if isinstance(q[2], tuple) and q[2][1] in frees: due[m + cfg.free_delay] = frees[q[2][1]]
    for gi, g in enumerate(G):
        last_tag = f"g{gi}"
        while any(isinstance(q[2], tuple) and q[2][1] == last_tag for q in queue):
            q = queue.pop(0)
            if q[1] != "gap": issue(q)
        if g.get("wait4"): S.wait_lg_tag(f"g{gi+3}")
        if cfg.gwait2 and "wait4" not in g and gi % 2 == 0: S.wait_lg_tag(f"g{gi+1}")
        if cfg.gwait: S.wait_lg_tag(last_tag)
        for k, mf in enumerate(g["mf"]):
            S(mf)
            if m in due: due.pop(m)()
            n = 0
            while queue and n < 2 and queue[0][0] <= gi:
                q = queue[0]
                if q[1] == "gap": queue.pop(0); break
                if n >= 1 and q[0] == gi and q[1] == "r": break
                queue.pop(0); issue(q); n += 1
            for x in fl.get(m, []): emit(S, x)
            m += 1
    assert not queue
    while due: due.pop(min(due))()
    if cfg.stop == "A":
        stamp(S, cfg, 2)
        for x in pack(QP(1), 192): S(x)
        S(f"s_lshl_b32 s66, s2, 16\ns_lshl_b32 s67, s{S_W}, 14\ns_add_u32 s66, s66, s67\nv_lshlrev_b32 v{VOST}, 4, v1\nv_add_u32 v{VOST}, s66, v{VOST}")
        for i in range(16):
            S(f"s_mov_b32 s66, {i*1024}")
            S(f"buffer_store_dwordx4 {vr(64+4*i,4)}, v{VOST}, {srd(SWS)}, s66 offen")
        S.wait_vm(0); stamps_store(S, cfg); S("s_branch L_end"); return
    if cfg.stop == "B":
        stamp(S, cfg, 6)
        op1, done1 = o_pack(1)
        for x in op1 + [done1]: emit(S, x)
        S.wait_vm(0); stamp(S, cfg, 7); stamps_store(S, cfg); S("s_branch L_end"); return
    stamp(S, cfg, 7)
    S(f"s_mov_b32 s77, {SPIN_LIMIT}")
    S.label("L_d")
    for i in range(6):
        S(f"buffer_load_dwordx4 {vr(GR+4*i,4)}, v{VL16}, {srd(SWS)}, s{74 + i//4} offen offset:{(i%4)*1024} sc1")
    S(f"v_xor_b32 v7, s72, v{GR}")
    for i in range(1, 24): S(f"v_bitop3_b32 v7, v7, v{GR+i}, s72 bitop3:0xf6")
    S("v_and_b32 v7, v7, v6\nv_cmp_eq_u32 vcc, 0, v7\ns_cmp_eq_u64 vcc, -1\ns_cbranch_scc1 L_d_ok")
    S("s_sub_u32 s77, s77, 1\ns_cmp_lg_u32 s77, 0\ns_cbranch_scc1 L_d")
    S.label("L_d_ok")
    stamp(S, cfg, 9)
    for i in range(24): S(f"v_and_b32 v{GR+i}, v{VMASK}, v{GR+i}")
    for tau in range(3):
        for u in range(2):
            for e in range(2):
                for x in range(2):
                    src = GR + 8 * tau + 4*e + 2*u + x; a = MC(e, u) + 2 * x
                    if cfg.dot2: S(f"v_dot2c_f32_bf16 v{a}, v{src}, v4\nv_dot2c_f32_bf16 v{a+1}, v{src}, v5")
                    else: S(f"v_lshlrev_b32 v8, 16, v{src}\nv_and_b32 v9, 0xffff0000, v{src}\nv_add_f32 v{a}, v{a}, v8\nv_add_f32 v{a+1}, v{a+1}, v9")
    if cfg.dot2: S("s_nop 2")
    GS = 48
    for u in range(2):
        for e in range(2):
            for x in range(2):
                S(f"v_cvt_pk_bf16_f32 v{GS+4*u+2*e+x}, v{MC(e,u)+2*x}, v{MC(e,u)+2*x+1}")
    for u in range(2):
        for x in range(2): S(f"v_permlane16_swap_b32 v{GS+4*u+x}, v{GS+4*u+2+x}")
    for u in range(2):
        S(f"buffer_store_dwordx4 {vr(GS+4*u,4)}, v2, {srd(SOUT)}, s{70+u} offen {cfg.pol_out}")
    if cfg.stamps:
        S.wait_vm(0); stamp(S, cfg, 10)
    stamps_store(S, cfg)
    S("s_branch L_end")

Cfg.dxwait = 17
H7 = "bA7 wK0 warm bA8 wK1 V1 wV0 W0 W1 W2 RWA W3 W4 W5 wV1 W6 W7 W8 w2 W9 W10 P0 S0 S1 RWB G0 G1 W11 W12 W13 W14 W15 W16 W17 "
H8 = "warm bA7 wK0 bA8 V0 wK1 W0 W1 wV0 V1 RWA W2 W3 W4 W5 W6 wV1 P0 S0 S1 RWB G0 G1 W7 W8 W9 W10 W11 W12 W13 W14 W15 W16 W17 "
H9 = "K1 bA7 wK0 bA8 V0 wK1 warm wV0 V1 W0 W1 RWA W2 W3 W4 W5 W6 wV1 P0 S0 S1 RWB G0 G1 W7 W8 W9 W10 W11 W12 W13 W14 W15 W16 W17 "
TA = "P1 S2 q0 ROP0 q1 ROP1 G2 f18 S3 RWC G3 w9 w10 w11 RWD q2 ROP2 q3 ROP3 RWE"
TB = "P1 S2 S3 q0 ROP0 q1 ROP1 G2 G3 RWC RWD q2 ROP2 q3 ROP3 RWE"
TD = "q0 ROP0 q1 ROP1 P1 S2 S3 RWC G2 G3 w9 w10 w11 RWD q2 ROP2 q3 ROP3 RWE"
TE = "q0 ROP0 q1 ROP1 P1 f18 S2 S3 RWC G2 G3 w9 w10 w11 RWD q2 ROP2 q3 ROP3 RWE"
HA = "bA7 wK0 warm bA8 wK1 V1 wV0 W0 W1 W2 RWA W3 W4 W5 wV1 W6 W7 W8 w2 W9 W10 W11 W12 P0 S0 S1 RWB W13 W14 W15 W16 W17 G0 G1 "
HB = "K1 bA7 wK0 bA8 V0 wK1 warm wV0 V1 W0 W1 RWA W2 W3 W4 W5 W6 wV1 P0 S0 S1 W7 W8 W9 W10 RWB G0 G1 "
TF = "q0 ROP0 q1 ROP1 P1 f18 S2 S3 W11 W12 W13 RWC G2 G3 W14 W15 W16 W17 w9 w10 w11 RWD q2 ROP2 q3 ROP3 RWE"
TG = "P1 q0 ROP0 q1 ROP1 f18 S2 S3 RWC G2 G3 w9 w10 w11 RWD q2 ROP2 q3 ROP3 RWE"
PROGS = {h + x: H + T for h, H in (("7", H7), ("8", H8), ("9", H9), ("A", HA)) for x, T in (("a", TA), ("b", TB), ("d", TD), ("e", TE), ("g", TG))}
HC = "bA7 wK0 warm bA8 wK1 V1 wV0 W0 W1 W2 RWA W3 W4 W5 wV1 W6 W7 W8 w2 W9 W10 W11 W12 P0 S0 S1 RWB G0 G1 W13 W14 W15 W16 W17 "
HD = "K1 bA7 wK0 bA8 V0 wK1 warm wV0 V1 W0 W1 RWA W2 W3 W4 W5 W6 wV1 W7 W8 P0 S0 S1 RWB G0 G1 W9 W10 W11 W12 W13 W14 W15 W16 W17 "
HE = "warm bA7 wK0 bA8 V0 wK1 W0 W1 wV0 V1 RWA W2 W3 W4 W5 W6 wV1 W7 W8 W9 W10 P0 S0 S1 RWB G0 G1 W11 W12 W13 W14 W15 W16 W17 "
TH = "q0 ROP0 q1 ROP1 w7 w8 P1 w9 w10 f18 S2 S3 RWC w11 RWD G2 G3 q2 ROP2 q3 ROP3 RWE"
TI = "q0 ROP0 q1 ROP1 P1 f18 S2 S3 RWC w9 w10 w11 G2 G3 RWD q2 ROP2 q3 ROP3 RWE"
TJ = "q0 ROP0 q1 ROP1 w7 w8 P1 S2 w9 w10 f18 S3 RWC G2 w11 RWD G3 q2 ROP2 q3 ROP3 RWE"
HF = "bA7 wK0 warm bA8 wK1 V1 wV0 f10 W0 W1 W2 RWA wV1 f12 W5 W6 P0 S0 S1 W3 W4 G0 G1 RWB "
HG = "warm bA7 wK0 bA8 V0 wK1 wV0 V1 f10 W0 W1 W2 RWA wV1 f12 W5 W6 P0 S0 S1 W3 W4 G0 G1 RWB "
HH = "K1 bA7 wK0 bA8 V0 wK1 warm wV0 V1 f10 W0 W1 W2 RWA wV1 f12 W5 W6 P0 S0 S1 W3 W4 G0 G1 RWB "
TK = "q0 ROP0 q1 ROP1 f15 W7 W8 P1 W9 W10 f18 W11 S2 S3 RWC f19 W12 W13 G2 G3 RWD q2 ROP2 q3 ROP3 f20 W14 W15 W16 W17 RWE"
TL = "q0 ROP0 q1 ROP1 f15 W7 W8 P1 S2 W9 W10 f18 W11 S3 RWC G2 f19 W12 W13 G3 RWD q2 ROP2 f20 W14 W15 W16 W17 q3 ROP3 RWE"
TM = "q0 ROP0 q1 ROP1 f15 W7 W8 P1 S2 S3 W9 W10 f17 W11 RWC G2 G3 f19 W12 W13 RWD q2 ROP2 f20 W14 W15 W16 W17 q3 ROP3 RWE"
for h, H in (("F", HF), ("G", HG), ("H", HH)):
    for x, T in (("k", TK), ("l", TL), ("m", TM)): PROGS[h + x] = H + T
HI = "warm bA7 wK0 bA8 D0 wK1 W3 W4 W5 W6 D1 pV0 f10 W0 W1 W2 W11 W12 W13 RWA pV1 W14 W15 W16 W17 P0 S0 S1 RWB G0 G1 "
HJ = "warm bA7 wK0 bA8 D0 wK1 W3 W4 W5 W6 D1 pV0 f10 W0 W1 W2 W7 W8 W9 RWA pV1 W10 W11 W12 W13 P0 S0 S1 RWB G0 G1 W14 W15 W16 W17 "
TN = "q0 ROP0 q1 ROP1 f15 W7 W8 P1 W9 W10 f18 S2 S3 RWC w11 RWD G2 G3 q2 ROP2 q3 ROP3 RWE"
TO = "q0 ROP0 q1 ROP1 f15 W7 W8 P1 S2 W9 W10 f18 S3 RWC G2 w11 RWD G3 q2 ROP2 q3 ROP3 RWE"
PROGS["In"] = HI + TN; PROGS["Io"] = HI + TO; PROGS["Jh"] = HJ + TH; PROGS["Jj"] = HJ + TJ
PROGS["Kn"] = PROGS["In"].replace("warm bA7 wK0 bA8 D0 wK1", "K1 bA7 wK0 bA8 D0 wK1 warm")
HL = "warm bA7 wK0 bA8 D0 wK1 D1 pV0 f10 W0 W1 W2 W3 W4 W5 W6 RWA pV1 W7 W8 W9 W10 W11 W12 W13 P0 S0 S1 RWB G0 G1 W14 W15 W16 W17 "
HM = "warm bA7 wK0 bA8 D0 wK1 W3 W4 D1 pV0 f10 W0 W1 W2 W5 W6 RWA W7 W8 pV1 W9 W10 W11 W12 P0 S0 S1 RWB G0 G1 W13 W14 W15 W16 W17 "
PROGS["Lh"] = HL + TH; PROGS["Mh"] = HM + TH; PROGS["Lj"] = HL + TJ
HN = "warm bA7 wK0 bA8 D0 wK1 D1 pV0 f10 W0 W1 W2 W9 W10 W11 RWA W12 W13 pV1 W14 W15 W16 W17 f12 W5 W6 P0 S0 S1 W3 W4 G0 G1 RWB "
PROGS["N1"] = HN + "q0 ROP0 q1 ROP1 f15 W7 W8 P1 w9 w10 f18 S2 S3 RWC w11 RWD G2 G3 q2 ROP2 q3 ROP3 RWE"
PROGS["N2"] = HN.replace("W9 W10 ", "") + "q0 ROP0 q1 ROP1 f15 W7 W8 P1 W9 W10 f18 S2 S3 RWC w11 RWD G2 G3 q2 ROP2 q3 ROP3 RWE"
PROGS["N3"] = HN.replace("W14 W15 W16 W17 ", "") + "q0 ROP0 q1 ROP1 f15 W7 W8 P1 w9 w10 f18 S2 S3 RWC w11 RWD G2 G3 q2 ROP2 f20 W14 W15 W16 W17 q3 ROP3 RWE"
PROGS["N4"] = HN + "q0 ROP0 q1 ROP1 f15 W7 W8 P1 f18 S2 S3 RWC w9 w10 w11 G2 G3 RWD q2 ROP2 q3 ROP3 RWE"
PROGS["E2"] = PROGS_E2 = None
PROGS["S0"] = ("warm bA7 wK0 bA8 V0 wK1 W0 W1 W2 W3 wV0 V1 W4 W5 RWA W6 W7 W8 wV1 W9 W10 P0 S0 S1 RWB G0 G1 W11 W12 W13 W14 W15 W16 W17 " + TH)
PROGS["S1"] = ("warm bA7 wK0 bA8 W0 W1 W2 W3 wK1 V0 W4 W5 wV0 RWA W6 W7 V1 W8 W9 W10 wV1 P0 W11 W12 S0 S1 RWB G0 G1 W13 W14 W15 W16 W17 " + TH)
PROGS["S2"] = ("warm bA7 wK0 bA8 W0 W1 W2 W3 wK1 V0 W4 W5 wV0 RWA W6 W7 V1 W8 W9 W10 wV1 P0 S0 S1 RWB G0 G1 W11 W12 W13 W14 W15 W16 W17 " + TH)
PROGS["S3"] = ("warm bA7 wK0 bA8 V0 wK1 W0 W1 W2 W3 wV0 V1 W4 W5 RWA W6 W7 W8 wV1 W9 W10 P0 S0 S1 RWB G0 G1 W11 W12 W13 W14 W15 W16 W17 " + TJ.replace("P1 S2 w9 w10 f18 S3", "P1 S2 S3 w9 w10"))
for h, H in (("C", HC), ("D", HD), ("E", HE)):
    for x, T in (("h", TH), ("i", TI), ("j", TJ)): PROGS[h + x] = H + T
PROGS["E2"] = PROGS["Eh"].replace("warm bA7 wK0 bA8 V0 wK1", "warm bA7 V0 bA8 wK0 wK1")
PROGS["E3"] = PROGS["Eh"].replace("warm bA7 wK0 bA8 V0 wK1", "bA7 wK0 bA8 V0 warm wK1")
PROGS["E5"] = PROGS["Eh"].replace("warm bA7 wK0 bA8 V0 wK1 W0 W1 wV0 V1", "warm bA7 wK0 bA8 V1 wK1 W0 W1 wV0")
PROGS["E6"] = PROGS["Eh"].replace("warm bA7 wK0 bA8 V0 wK1 W0 W1 wV0 V1", "bA7 wK0 bA8 V0 wK1 W0 W1 wV0 V1")
PROGS["E7"] = PROGS["Eh"].replace("P0 S0 S1 RWB G0 G1 W11", "P0 S0 S1 G0 G1 RWB W11")
PROGS["E8"] = PROGS["Eh"].replace("W7 W8 W9 W10 P0 S0 S1 RWB G0 G1 W11 W12 W13 W14", "W7 W8 W9 W10 W11 W12 P0 S0 S1 RWB G0 G1 W13 W14")
PROGS["F1"] = PROGS["Eh"].replace("q0 ROP0 q1 ROP1 w7 w8 P1 w9 w10 f18 S2 S3 RWC w11 RWD G2 G3", "w7 w8 q0 ROP0 q1 ROP1 P1 w9 w10 f18 S2 S3 RWC w11 RWD G2 G3")
PROGS["F2"] = PROGS["Eh"].replace("f18 S2 S3 RWC w11 RWD G2 G3", "f18 S2 S3 RWC w11 G2 G3 RWD")
PROGS["F3"] = PROGS["Eh"].replace("P1 w9 w10 f18 S2 S3 RWC w11 RWD G2 G3", "P1 w9 f18 S2 S3 RWC w10 w11 G2 RWD G3")
PROGS["F4"] = PROGS["Eh"].replace("q2 ROP2 q3 ROP3 RWE", "q2 ROP2 w14 w15 q3 ROP3 RWE")
PROGS["G1"] = PROGS["F2"].replace("q2 ROP2 q3 ROP3 RWE", "q2 ROP2 w14 w15 q3 ROP3 RWE")
PROGS["G2"] = PROGS["F2"].replace("RWD q2 ROP2 q3 ROP3 RWE", "RWD w14 w15 q2 ROP2 w16 w17 q3 ROP3 RWE")
PROGS["G3"] = PROGS["G1"].replace("f18 S2 S3 RWC w11 G2 G3 RWD", "f18 S2 S3 RWC G2 G3 w11 RWD")
PROGS["G4"] = PROGS["G1"].replace("w7 w8 P1 w9 w10 f18 S2 S3 RWC w11", "w7 P1 w8 w9 f18 S2 S3 RWC w10 w11")
PROGS["G5"] = PROGS["G1"].replace("G0 G1 W11 W12 W13 W14 W15 W16 W17 q0 ROP0 q1 ROP1", "G0 G1 W11 W12 W13 W14 q0 ROP0 q1 ROP1 W15 W16 W17")
PROGS["E4"] = PROGS["Eh"].replace("warm bA7 wK0 bA8 V0 wK1 W0 W1 wV0 V1", "V0 bA7 wK0 bA8 warm wK1 wV0 V1 W0 W1")
Cfg.prog = "F2"

def gen(cfg):
    hdr = open(REF).read().split("; Override launch")[0].rstrip("\n")
    launch = [f"; @launch grid=(256,1,1) block=(512,1,1) lds={LDS_BYTES}"]
    if cfg.amp >= 0:
        launch = [f"; @launch kernel={NAME} grid=(256,1,1) block=(512,1,1) lds={LDS_BYTES}", "; @launch kernel=amp_kernel grid=(1,1,1) block=(64,1,1) lds=0"]
    if cfg.pre or cfg.post:
        launch = [f"; @launch kernel={NAME} grid=(256,1,1) block=(512,1,1) lds={LDS_BYTES}"]
        if cfg.pre: launch = [f"; @launch kernel=aux_kernel grid=({cfg.pre},1,1) block=(64,1,1) lds=0"] + launch
        if cfg.post: launch += [f"; @launch kernel=aux_kernel grid=({cfg.post},1,1) block=(64,1,1) lds=0"]
    doc = """; One launch, 256 workgroups (one per CU), 8 waves: waves 0-3 compute (32 query rows each), waves 4-7 move data.
; Workgroup g: block = g>>2&1, K quarter kq = g&3, batch = g>>3&7, p = g>>6; heads 8kq+2p, 8kq+2p+1.
;  A  Q^T = wq^T x^T (two heads, k in nine 64-deep chunks through a 3-slot LDS ring, barriers)
;  B  S^T = K Q^T, softmax with the true row maximum, O^T = V^T P^T (row sums by an MFMA with a matrix of ones)
;  C  out^T partial over the quarter's 8 heads: 128 columns per workgroup, O of the three other head pairs comes through d_ws
;     (write-through stores, then a flag carrying this launch's tag); the last 64 columns are done on the own heads only
;  D  partial sums are exchanged as bf16 through d_ws and added in fp32; their lowest bits carry the launch tag and are dropped
; Waves of a workgroup signal each other with progress bytes in LDS words 0 (data ready) and 1 (LDS space free).
; The launch tag is (word found in d_ws) + 1, handed out through d_debug by workgroup 0. All waits are bounded.""".split("\n")
    L = [hdr] + launch + doc + ['.amdgcn_target "amdgcn-amd-amdhsa--gfx950"',
         ".text", f".globl {NAME}", ".p2align 8", f".type {NAME},@function", f"{NAME}:"]
    P = Stream("pro"); prologue(P, cfg); L += P.finish()
    Ld = Stream("loader"); Ld.smem_pending = True; Ld.progname = cfg.prog; loader(Ld, cfg); L += Ld.finish()
    if cfg.prog2:
        import re
        n0 = len(SITES)
        L2 = Stream("loader2"); L2.smem_pending = True; L2.progname = cfg.prog2; loader(L2, cfg)
        body = L2.finish(); body = body[body.index("L_fork:"):]
        ren = lambda x: re.sub(r"\b(L_(?!end\b)\w+)", r"\1_c1", x)
        L += [ren(x) for x in body]
        Ld.cold += [ren(x if isinstance(x, str) else "    " + x.text) for x in L2.cold[L2.ncold:]]
    L.append(".p2align 6")
    C = Stream("compute"); C.smem_pending = True; compute(C, cfg); L += C.finish()
    L.append("L_cold:")
    for s in (Ld, C):
        L += [x if isinstance(x, str) else "    " + x.text for x in s.cold]
    L += ["L_end:", "    s_endpgm", '.section .rodata,"a"', ".p2align 6", f".amdhsa_kernel {NAME}",
          "  .amdhsa_next_free_vgpr 256", "  .amdhsa_next_free_sgpr 102", "  .amdhsa_accum_offset 256",
          "  .amdhsa_group_segment_fixed_size 0", "  .amdhsa_kernarg_size 104", "  .amdhsa_user_sgpr_count 2",
          "  .amdhsa_user_sgpr_kernarg_segment_ptr 1", "  .amdhsa_system_sgpr_workgroup_id_x 1", ".end_amdhsa_kernel", ""]
    if cfg.pre or cfg.post:
        L = L[:-1] + [".text", ".globl aux_kernel", ".p2align 8", ".type aux_kernel,@function", "aux_kernel:", "    s_endpgm",
              '.section .rodata,"a"', ".p2align 6", ".amdhsa_kernel aux_kernel", "  .amdhsa_next_free_vgpr 8", "  .amdhsa_next_free_sgpr 16", "  .amdhsa_accum_offset 8",
              "  .amdhsa_group_segment_fixed_size 0", "  .amdhsa_kernarg_size 104", "  .amdhsa_user_sgpr_count 2",
              "  .amdhsa_user_sgpr_kernarg_segment_ptr 1", "  .amdhsa_system_sgpr_workgroup_id_x 1", ".end_amdhsa_kernel", ""]
    if cfg.amp >= 0:
        Am = Stream("amp")
        Am(f"""s_cmp_ge_u32 s2, 1
        s_cbranch_scc1 amp_end
        s_memrealtime s[24:25]
        s_load_dwordx2 s[4:5], s[0:1], 96
        s_mov_b32 s10, {WS_SIZE}
        s_mov_b32 s11, 0x20000
        s_waitcnt lgkmcnt(0)
        s_mov_b32 s8, s4
        s_and_b32 s9, s5, 0xffff
        v_lshlrev_b32 v1, 9, v0
        s_mov_b32 s12, {WS_STAMP + 64 * cfg.ampw}""")
        for i in range(4):
            Am(f"s_add_u32 s13, s12, {i*64*512}")
            Am(f"buffer_load_dword v{4+i}, v1, s[8:11], s13 offen offset:56")
            Am(f"buffer_load_dword v{8+i}, v1, s[8:11], s13 offen offset:{4*(cfg.amp if cfg.amp < 100 else 15)}")
        Am("v_min_u32 v4, v4, v5\nv_min_u32 v6, v6, v7\nv_min_u32 v4, v4, v6\nv_max_u32 v8, v8, v9\nv_max_u32 v10, v10, v11\nv_max_u32 v8, v8, v10")
        Am("s_mov_b32 s14, -1\ns_mov_b32 s15, 0")
        for l in range(64):
            Am(f"v_readlane_b32 s16, v4, {l}\nv_readlane_b32 s17, v8, {l}\ns_nop 3\ns_min_u32 s14, s14, s16\ns_max_u32 s15, s15, s17")
        if cfg.amp == 100: Am("s_mov_b32 s14, s15\ns_mov_b32 s15, s24")
        if cfg.amp == 101:
            Am(f"s_add_u32 s4, s4, {WS_STAMP - 64}\ns_addc_u32 s5, s5, 0\ns_load_dword s26, s[4:5], 0\ns_waitcnt lgkmcnt(0)\ns_mov_b32 s15, s14\ns_mov_b32 s14, s26")
        if cfg.amp == 102: Am("s_mov_b32 s15, s14")
        Am("s_sub_u32 s14, s15, s14\ns_min_u32 s14, s14, 20000\ns_mul_i32 s14, s14, 10\ns_memrealtime s[18:19]\ns_waitcnt lgkmcnt(0)")
        Am.label("amp_spin")
        Am("s_sleep 2\ns_memrealtime s[20:21]\ns_waitcnt lgkmcnt(0)\ns_sub_u32 s22, s20, s18\ns_cmp_lt_u32 s22, s14\ns_cbranch_scc1 amp_spin")
        Am.label("amp_end")
        Am("s_endpgm")
        L = L[:-1]
        L += [".text", ".globl amp_kernel", ".p2align 8", ".type amp_kernel,@function", "amp_kernel:"] + Am.finish()
        L += [".globl pre_kernel", ".p2align 8", ".type pre_kernel,@function", "pre_kernel:",
              "s_cmp_ge_u32 s2, 1", "s_cbranch_scc1 pre_end", "s_load_dwordx2 s[4:5], s[0:1], 96", f"s_mov_b32 s10, {WS_SIZE}", "s_mov_b32 s11, 0x20000", "s_waitcnt lgkmcnt(0)",
              "s_mov_b32 s8, s4", "s_and_b32 s9, s5, 0xffff", "v_mov_b32 v1, 0", "s_memrealtime s[12:13]", "s_waitcnt lgkmcnt(0)", "v_mov_b32 v2, s12", f"s_mov_b32 s14, {WS_STAMP - 64}",
              "buffer_store_dword v2, v1, s[8:11], s14 offen", "pre_end:", "s_endpgm"]
        L += ['.section .rodata,"a"', ".p2align 6", ".amdhsa_kernel pre_kernel", "  .amdhsa_next_free_vgpr 32", "  .amdhsa_next_free_sgpr 32", "  .amdhsa_accum_offset 32",
              "  .amdhsa_group_segment_fixed_size 0", "  .amdhsa_kernarg_size 104", "  .amdhsa_user_sgpr_count 2",
              "  .amdhsa_user_sgpr_kernarg_segment_ptr 1", "  .amdhsa_system_sgpr_workgroup_id_x 1", ".end_amdhsa_kernel"]
        L += ['.section .rodata,"a"', ".p2align 6", ".amdhsa_kernel amp_kernel", "  .amdhsa_next_free_vgpr 32", "  .amdhsa_next_free_sgpr 32", "  .amdhsa_accum_offset 32",
              "  .amdhsa_group_segment_fixed_size 0", "  .amdhsa_kernarg_size 104", "  .amdhsa_user_sgpr_count 2",
              "  .amdhsa_user_sgpr_kernarg_segment_ptr 1", "  .amdhsa_system_sgpr_workgroup_id_x 1", ".end_amdhsa_kernel", ""]
    if cfg.align:
        from align import align
        k0 = L.index(f"{NAME}:"); k1 = L.index("L_end:") + 2
        body, nprom, npad = align(L[k0:k1], "L_compute", "L_cold", cfg.align == 2)
        L = L[:k0] + body + L[k1:]
        sys.stderr.write(f"align: promoted {nprom} padded {npad}\n")
    sys.stderr.write(f"nops: loader {Ld.nops} compute {C.nops}\n")
    return "\n".join(L)

if __name__ == "__main__":
    cfg = Cfg()
    out = sys.argv[1]
    for a in sys.argv[2:]:
        k, val = a.split("=", 1)
        cur = getattr(Cfg, k)
        if isinstance(cur, bool): val = val in ("1", "true", "True")
        elif isinstance(cur, int): val = int(val)
        elif val == "None": val = None
        if k.startswith("pol_"): val = val.replace("+", " ")
        setattr(cfg, k, val)
    open(out, "w").write(gen(cfg))
    open(out + ".sites", "w").write(" ".join(map(str, SITES)))
```
